```python
import torch

def _softmax(x, axis=-1):
    return torch.softmax(x, dim=axis)
def _gelu(x):
    return torch.nn.functional.gelu(x, approximate="tanh")
def _silu(x):
    return torch.nn.functional.silu(x)
def _sigmoid(x):
    return torch.sigmoid(x)
def _layernorm(x, axis=-1, eps=1e-5):
    m = x.mean(dim=axis, keepdim=True)
    v = x.var(dim=axis, keepdim=True, unbiased=False)
    return (x - m) / torch.sqrt(v + eps)
def _scatter_add(tgt, idx, src, axis=0):
    return tgt.clone().index_add_(axis, idx, src)
def _segment_sum(src, seg, n):
    out = torch.zeros((n,) + src.shape[1:], dtype=src.dtype)
    return out.index_add_(0, seg, src)
def _pad(x, pw):
    flat = tuple(v for pair in reversed(pw) for v in pair)
    return torch.nn.functional.pad(x, flat)

kernel_name = 'concat_heads__mha_block_cached__gqa_block_cached__near_ridge'

def setup_inputs():

    _w = (lambda a: (lambda t: t.to(torch.bfloat16) if t.is_floating_point() else t)(torch.as_tensor(a)))
    def _A_setup():
        B, Sq, D = 8, 96, 1024
        H, Sk, Dh = 32, 512, 128
        return {
            "x": _w((lambda *s: torch.randn(*s, dtype=torch.bfloat16) * 0.8)(B, Sq, D)),
            "k_cache": _w((lambda *s: torch.randn(*s, dtype=torch.bfloat16) * 0.8)(B, H, Sk, Dh)),
            "v_cache": _w((lambda *s: torch.randn(*s, dtype=torch.bfloat16) * 0.05)(B, H, Sk, Dh)),
            "wq": _w((lambda *s: torch.randn(*s, dtype=torch.bfloat16) * 0.8)(D, H * Dh) * (D ** -0.5)),
            "wo": _w((lambda *s: torch.randn(*s, dtype=torch.bfloat16) * 0.05)(H * Dh, D) * ((H * Dh) ** -0.5)),
        }
    _A_in = _A_setup()

    def _B_setup():
        B, Sq, D = 8, 96, 1024
        Hq, Hkv, Sk, Dh = 32, 32, 512, 128
        assert Hq % Hkv == 0, (Hq, Hkv)
        return {
            "x": _w((lambda *s: torch.randn(*s, dtype=torch.bfloat16) * 0.8)(B, Sq, D)),
            "k_cache": _w((lambda *s: torch.randn(*s, dtype=torch.bfloat16) * 0.8)(B, Hkv, Sk, Dh)),
            "v_cache": _w((lambda *s: torch.randn(*s, dtype=torch.bfloat16) * 0.05)(B, Hkv, Sk, Dh)),
            "wq": _w((lambda *s: torch.randn(*s, dtype=torch.bfloat16) * 0.8)(D, Hq * Dh) * (D ** -0.5)),
            "wo": _w((lambda *s: torch.randn(*s, dtype=torch.bfloat16) * 0.05)(Hq * Dh, D) * ((Hq * Dh) ** -0.5)),
        }
    _B_in = _B_setup()

    return {
        "A_x": _A_in["x"],
        "A_k_cache": _A_in["k_cache"],
        "A_v_cache": _A_in["v_cache"],
        "A_wq": _A_in["wq"],
        "A_wo": _A_in["wo"],
        "B_x": _B_in["x"],
        "B_k_cache": _B_in["k_cache"],
        "B_v_cache": _B_in["v_cache"],
        "B_wq": _B_in["wq"],
        "B_wo": _B_in["wo"],
    }

def reference(A_x, A_k_cache, A_v_cache, A_wq, A_wo, B_x, B_k_cache, B_v_cache, B_wq, B_wo):
    def _A_ref(x, k_cache, v_cache, wq, wo):
        B, Sq, D = x.shape
        H, Dh = 32, 128
        q = (lambda x, *d: x.permute(*d))((x @ wq).reshape(B, Sq, H, Dh), 0, 2, 1, 3)
        scores = torch.einsum("bhqd,bhkd->bhqk", q, k_cache) * (Dh ** -0.5)
        p = _softmax(scores, axis=-1)
        o = torch.einsum("bhqk,bhkd->bhqd", p, v_cache)
        return (lambda x, *d: x.permute(*d))(o, 0, 2, 1, 3).reshape(B, Sq, H * Dh) @ wo

    def _B_ref(x, k_cache, v_cache, wq, wo):
        B, Sq, D = x.shape
        Hq, Dh = 32, 128
        Hkv = k_cache.shape[1]
        rep = Hq // Hkv
        q = (lambda x, *d: x.permute(*d))((x @ wq).reshape(B, Sq, Hq, Dh), 0, 2, 1, 3)
        k = (lambda x, n, axis: torch.repeat_interleave(x, n, dim=axis))(k_cache, rep, axis=1)
        v = (lambda x, n, axis: torch.repeat_interleave(x, n, dim=axis))(v_cache, rep, axis=1)
        scores = torch.einsum("bhqd,bhkd->bhqk", q, k) * (Dh ** -0.5)
        p = _softmax(scores, axis=-1)
        o = torch.einsum("bhqk,bhkd->bhqd", p, v)
        return (lambda x, *d: x.permute(*d))(o, 0, 2, 1, 3).reshape(B, Sq, Hq * Dh) @ wo

    a = _A_ref(A_x, A_k_cache, A_v_cache, A_wq, A_wo)
    b = _B_ref(B_x, B_k_cache, B_v_cache, B_wq, B_wo)
    return torch.concatenate([a, b], axis=-1)
```

```python
import re

TRANS = ("v_exp_f32", "v_log_f32", "v_rcp_f32", "v_rsq_f32", "v_sqrt_f32")


def regs(tok):
    tok = tok.strip()
    tok = re.sub(r"^-|^abs\(|\)$", "", tok)
    m = re.fullmatch(r"([vsa])(\d+)", tok)
    if m:
        return [(m.group(1), int(m.group(2)))]
    m = re.fullmatch(r"([vsa])\[(\d+):(\d+)\]", tok)
    if m:
        return [(m.group(1), i) for i in range(int(m.group(2)), int(m.group(3)) + 1)]
    if tok == "vcc":
        return [("s", 106), ("s", 107)]
    if tok == "m0":
        return [("s", 124)]
    if tok == "exec":
        return [("s", 126), ("s", 127)]
    return []


class I:
    def __init__(self, text):
        self.text = text
        self.nop = 0
        self.lgkm = None
        self.vm = None
        t = text.split(";")[0].strip()
        self.label = t.endswith(":") or t.startswith(".")
        self.op = t.split()[0] if t else ""
        rest = t[len(self.op):].strip()
        ops = [o.strip() for o in rest.split(",")] if rest else []
        if ops:
            last = ops[-1].split()
            self.mods = last[1:]
            ops[-1] = last[0]
        else:
            self.mods = []
        R = [regs(o) for o in ops]
        flat = lambda xs: [r for x in xs for r in x]
        op = self.op
        self.rd, self.wr, self.srcc, self.srcab, self.sdata = [], [], [], [], []
        self.kind = "other"
        if self.label:
            self.kind = "label"
        elif op.startswith("v_mfma"):
            self.kind = "mfma"
            self.wr, self.srcab, self.srcc = R[0], R[1] + R[2], R[3]
            self.rd = self.srcab + self.srcc
            self.passes = 4 if "16x16" in op else 8
        elif op.startswith("ds_read"):
            self.kind = "ds"
            self.wr, self.rd = R[0], flat(R[1:])
        elif op.startswith("ds_write"):
            self.kind = "ds"
            self.rd = flat(R)
        elif op.startswith("buffer_load"):
            self.kind = "vmem"
            if "lds" in self.mods:
                self.rd = flat(R) + [("s", 124)]
            else:
                self.wr, self.rd = R[0], flat(R[1:])
        elif op.startswith("buffer_store") or op.startswith("buffer_atomic"):
            self.kind = "vmem"
            self.rd = flat(R)
            if op.endswith("x4") or op.endswith("x3"):
                self.sdata = R[0]
        elif op.startswith("global_load"):
            self.kind = "vmem"
            self.wr, self.rd = R[0], flat(R[1:])
        elif op.startswith("v_"):
            self.kind = "valu"
            if op.startswith("v_permlane"):
                self.wr = self.rd = flat(R)
            else:
                self.wr, self.rd = R[0], flat(R[1:])
                if op.startswith("v_fmac"):
                    self.rd = self.rd + R[0]
        elif op.startswith("s_"):
            self.kind = "salu"
            if op.startswith(("s_cmp", "s_bitcmp")):
                self.rd = flat(R)
            elif op.startswith(("s_waitcnt", "s_barrier", "s_nop", "s_branch", "s_cbranch", "s_endpgm", "s_setprio", "s_sleep")):
                pass
            else:
                self.wr, self.rd = (R[0] if R else []), flat(R[1:])
                if "saveexec" in op:
                    self.wr = self.wr + regs("exec")
            if op.startswith(("s_load", "s_memtime", "s_memrealtime")):
                self.kind = "smem"
        self.trans = op.startswith(TRANS)

    def states(self):
        if self.kind == "label":
            return 0
        if self.op == "s_nop":
            return int(self.text.split()[1]) + 1
        return 1

    def lines(self):
        out = []
        w = []
        if self.vm is not None:
            w.append(f"vmcnt({self.vm})")
        if self.lgkm is not None:
            w.append(f"lgkmcnt({self.lgkm})")
        if w:
            out.append("    s_waitcnt " + " ".join(w))
        n = self.nop
        while n > 0:
            k = min(n, 16)
            out.append(f"    s_nop {k - 1}")
            n -= k
        out.append(self.text if self.kind == "label" else "    " + self.text)
        return out


def need(p, c):
    n = 0
    pw, cr, cw = set(p.wr), set(c.rd), set(c.wr)
    pv = {r for r in pw if r[0] != "s"}
    ps = {r for r in pw if r[0] == "s"}
    if p.kind == "valu":
        if c.kind == "mfma" and pv & cr:
            n = max(n, 2)
        if c.op.startswith("v_permlane") and pv & cr:
            n = max(n, 2)
        if "dpp" in c.op and pv & cr:
            n = max(n, 2)
        if c.op.startswith(("v_readfirstlane", "v_readlane")) and pv & cr:
            n = max(n, 1)
        if p.trans and c.kind == "valu" and not c.trans and pv & cr:
            n = max(n, 1)
        if c.kind == "valu" and ps & cr:
            n = max(n, 2)
        if c.kind == "vmem" and ps & cr:
            n = max(n, 5)
        if c.kind == "salu" and ps & cr:
            n = max(n, 1)
    if p.kind == "mfma":
        big = {4: 8, 8: 12}[p.passes]
        if c.kind == "mfma":
            if pv & set(c.srcab):
                n = max(n, big)
            if pv & set(c.srcc) and c.srcc != p.wr:
                n = max(n, big - 2)
        elif c.kind in ("valu", "vmem", "ds") and pv & (cr | cw):
            n = max(n, big)
        if c.kind == "valu" and set(p.srcc) & cw:
            n = max(n, {4: 3, 8: 7}[p.passes])
    if p.kind == "salu" and ("s", 124) in pw and c.kind == "vmem" and ("s", 124) in cr:
        n = max(n, 1)
    if p.sdata and set(p.sdata) & cw:
        n = max(n, 2)
    return n


def fix_trace(trace):
    changed = False
    lds, vm = [], []
    for ins in trace:
        touch = set(ins.rd) | set(ins.wr)
        for q, attr, cap in ((lds, "lgkm", 12), (vm, "vm", 60)):
            idx = max((k for k, o in enumerate(q) if set(o.wr) & touch), default=None)
            if idx is not None:
                n = min(len(q) - 1 - idx, cap)
                cur = getattr(ins, attr)
                if cur is None or n < cur:
                    setattr(ins, attr, n)
                    changed = True
            cur = getattr(ins, attr)
            if cur is not None:
                del q[: max(0, len(q) - cur)]
        if ins.op == "s_waitcnt":
            m = re.search(r"lgkmcnt\((\d+)\)", ins.text)
            if m:
                del lds[: max(0, len(lds) - int(m.group(1)))]
            m = re.search(r"vmcnt\((\d+)\)", ins.text)
            if m:
                del vm[: max(0, len(vm) - int(m.group(1)))]
        if ins.kind == "ds":
            lds.append(ins)
        if ins.kind == "vmem":
            vm.append(ins)
    for k, c in enumerate(trace):
        if c.kind == "label":
            continue
        dist = c.nop + (1 if (c.lgkm is not None or c.vm is not None) else 0)
        j = k - 1
        while j >= 0 and dist < 13:
            p = trace[j]
            n = need(p, c)
            if n > dist:
                c.nop += n - dist
                dist = n
                changed = True
            dist += p.states() + p.nop + (1 if (p.lgkm is not None or p.vm is not None) else 0)
            j -= 1
    return changed


class Prog:
    def __init__(self):
        self.code = []

    def add(self, text):
        out = []
        if isinstance(text, (list, tuple)):
            for t in text:
                out += self.add(t)
            return out
        for ln in text.split("\n"):
            ln = ln.strip()
            if ln:
                ins = I(ln)
                self.code.append(ins)
                out.append(ins)
        return out

    def finish(self, traces):
        for _ in range(50):
            if not any([fix_trace(t) for t in traces]):
                break
        else:
            raise RuntimeError("no fixpoint")
        seen = {id(i) for t in traces for i in t}
        missing = [i.text for i in self.code if id(i) not in seen and i.kind != "label"]
        assert not missing, missing[:5]
        return "\n".join(l for i in self.code for l in i.lines()) + "\n"


def weave(main, fillers):
    out = []
    by = {}
    for s, t in fillers:
        by.setdefault(min(s, len(main) - 1), []).append(t)
    out += by.get(-1, [])
    for k, m in enumerate(main):
        out.append(m)
        out += by.get(k, [])
    return out


def spread(items, lo, hi):
    n = len(items)
    return [(lo + (k * (hi - lo + 1)) // n, it) for k, it in enumerate(items)]
```

```python
import struct, sys
from asmlib import Prog, weave, spread

NAME = "concat_heads__mha_block_cached__gqa_block_cached__near_ridge"
HEADER = open("cdna_kernels/" + NAME + ".s.ref").read().split("; Override launch")[0]

WS_O, WS_X, WS_INBOX, WS_STAMP, WS_DUMP = 0, 16 << 20, 48 << 20, 200 << 20, 64 << 20
WRING, BRING, ARING = 0, 65536, 65536
WSLOT, BSLOT, ASLOT = 16384, 24576, 32768
SPIN_MAX = 200000

S_WAVE, sX, sK, sV, sWQ, sWO, sOUT, sWS, sDBG = 3, 20, 24, 28, 32, 36, 40, 44, 48
S_BLK, S_HG, S_J, S_BP, S_NU, S_W, S_H = 52, 53, 54, 55, 56, 57, 58
S_T0, S_T1, S_T2, S_T3, S_CNT, S_DW, S_DB, S_C, S_SLOT = 60, 61, 62, 63, 64, 65, 66, 67, 68
S_LWB, S_LWW, S_ROT, S_J2, S_SPIN = 69, 70, 71, 72, 73
S_ST = 76
srd = lambda r: f"s[{r}:{r+3}]"
v4 = lambda r: f"v[{r}:{r+3}]"
v2 = lambda r: f"v[{r}:{r+1}]"
f32 = lambda x: "0x%08x" % struct.unpack("<I", struct.pack("<f", x))[0]
MFMA = "v_mfma_f32_16x16x32_bf16"

ACC = lambda T, t: (T * 3 + t) * 4
QF = lambda s, t: 96 + (s * 3 + t) * 4
FA = lambda b, T: 144 + 44 * b + 4 * T
FB = lambda b, t: 144 + 44 * b + 32 + 4 * t
AW = lambda T: 232 + T
AB = lambda s: 240 + s
V_CHK, V_TMP = 242, 243
FR = lambda f: 144 + 4 * f
SS = lambda kt, t: 176 + (kt * 3 + t) * 4
PP = lambda t: 200 + 4 * t
VM = lambda t: 212 + t
VL = lambda t: 215 + t
VA = lambda t: 218 + t
VN = lambda t: 221 + t
VT = lambda k: 224 + k
AK = lambda s: 244 + s
AV = lambda T: 248 + T


class Cfg:
    def __init__(self, **kw):
        self.pol_x = ""
        self.pol_wq = ""
        self.pol_kv = "nt"
        self.pol_wo = ""
        self.rot = 1
        self.stamps = 0
        self.dump = 0
        self.flag_after = 2
        self.wo_tick = 31
        self.__dict__.update(kw)


def lane_id(v):
    return f"v_mbcnt_lo_u32_b32 v{v}, -1, 0\nv_mbcnt_hi_u32_b32 v{v}, -1, v{v}"


def prologue(P):
    return P.add(f"""
    s_and_b32 s{S_HG}, s2, 3
    s_bfe_u32 s{S_BLK}, s2, 0x10002
    s_load_dwordx4 s[16:19], s[0:1], 88
    s_load_dwordx2 s[14:15], s[0:1], 80
    s_mul_i32 s{S_T0}, s{S_BLK}, 40
    s_add_u32 s0, s0, s{S_T0}
    s_addc_u32 s1, s1, 0
    s_load_dwordx8 s[4:11], s[0:1], 0
    s_load_dwordx2 s[12:13], s[0:1], 32
    v_lshrrev_b32 v1, 6, v0
    v_and_b32 v0, 63, v0
    s_bfe_u32 s{S_J}, s2, 0x30003
    v_readfirstlane_b32 s{S_WAVE}, v1
    s_lshr_b32 s{S_BP}, s2, 6
    s_lshl_b32 s{S_H}, s{S_HG}, 3
    s_add_u32 s{S_H}, s{S_H}, s{S_J}
    s_lshl_b32 s{S_NU}, s{S_BP}, 1
    s_add_u32 s{S_NU}, s{S_NU}, s{S_J}
    s_and_b32 s{S_NU}, s{S_NU}, 7
    s_and_b32 s{S_W}, s{S_WAVE}, 3
    s_mul_i32 s{S_LWB}, s{S_W}, 6144
    s_lshl_b32 s{S_LWW}, s{S_W}, 12
    s_waitcnt lgkmcnt(0)
    """ + "\n".join(
        f"s_mov_b32 s{r}, s{p}\ns_mov_b32 s{r+1}, s{p+1}\ns_mov_b32 s{r+2}, {n}\ns_mov_b32 s{r+3}, 0x20000"
        for r, p, n in ((sX, 4, 768 * 2048), (sWQ, 10, 8 << 20), (sK, 6, 32 << 20), (sV, 8, 32 << 20), (sWO, 12, 8 << 20),
                        (sOUT, 14, 768 * 4096), (sWS, 18, 256 << 20), (sDBG, 16, 256))) + f"""
    s_cmp_ge_u32 s{S_WAVE}, 4
    s_cbranch_scc1 L_loader
    """)


LX = lambda p: 8 + p
LW = lambda p: 14 + p
LK = lambda p: 18 + p
LV = lambda p: 22 + p
LWO = lambda p: 24 + p
LOB, LFLAG, LSTAMP, LPOLL = 28, 29, 30, 31


def loader(P, cfg):
    tr = P.add("L_loader:")
    A = lambda t: tr.extend(P.add(t))
    A(f"""
    v_lshrrev_b32 v1, 4, v0
    v_and_b32 v2, 15, v0
    v_lshrrev_b32 v3, 3, v0
    v_and_b32 v4, 7, v0
    s_mul_i32 s{S_T0}, s{S_BP}, 192
    s_mul_i32 s{S_T1}, s{S_W}, 48
    s_add_u32 s{S_T0}, s{S_T0}, s{S_T1}
    s_lshl_b32 s{S_T0}, s{S_T0}, 11
    v_lshl_add_u32 v5, v3, 11, s{S_T0}
    v_xor_b32 v6, v4, v1
    v_lshl_add_u32 v{LX(0)}, v6, 4, v5
    v_xor_b32 v6, 4, v6
    v_lshl_add_u32 v7, v6, 4, v5
    """)
    for p in range(1, 6):
        A(f"v_add_u32 v{LX(p)}, {p * 16384 - (p % 4) * 1024}, v{7 if p & 1 else LX(0)}")
    A(f"""
    s_lshl_b32 s{S_T0}, s{S_W}, 17
    s_lshl_b32 s{S_T1}, s{S_H}, 8
    s_add_u32 s{S_T0}, s{S_T0}, s{S_T1}
    v_lshl_add_u32 v5, v1, 13, s{S_T0}
    v_lshlrev_b32 v6, 1, v1
    v_xor_b32 v6, v6, v2
    v_lshl_add_u32 v{LW(0)}, v6, 4, v5
    v_xor_b32 v7, 8, v6
    v_lshl_add_u32 v7, v7, 4, v5
    v_add_u32 v{LW(1)}, {32768 - 1024}, v{LW(0)}
    v_add_u32 v{LW(2)}, {2 * 32768 - 2048}, v7
    v_add_u32 v{LW(3)}, {3 * 32768 - 3072}, v7
    s_add_u32 s{S_ROT}, s{S_BP}, s{S_J}
    s_and_b32 s{S_ROT}, s{S_ROT}, 3
    s_lshl_b32 s{S_ROT}, s{S_ROT}, 2
    """)
    if not cfg.rot:
        A(f"s_mov_b32 s{S_ROT}, 0")
    q = []

    def dma(vreg, s, soff, imm, pol, tag):
        A(f"buffer_load_dwordx4 v{vreg}, {srd(s)}, {soff} offen offset:{imm} {pol} lds")
        q.append(tag)

    def wait(tag):
        if tag in q:
            idx = max(k for k, x in enumerate(q) if x == tag)
            A(f"s_waitcnt vmcnt({len(q) - 1 - idx})")
            del q[:idx + 1]

    def issue_q(n):
        A(f"""s_add_u32 s{S_T0}, s{S_ROT}, {n}
        s_and_b32 s{S_T0}, s{S_T0}, 15
        s_lshl_b32 s{S_T1}, s{S_T0}, 19
        s_lshl_b32 s{S_T0}, s{S_T0}, 7
        s_add_u32 m0, s{S_LWW}, {WRING + (n % 4) * WSLOT}""")
        for p in range(4):
            dma(LW(p), sWQ, f"s{S_T1}", p * 1024, cfg.pol_wq, n)
        A(f"s_add_u32 m0, s{S_LWB}, {BRING + (n % 4) * BSLOT}")
        for p in range(4):
            dma(LX(p), sX, f"s{S_T0}", p * 1024, cfg.pol_x, n)
        A(f"s_add_u32 m0, s{S_LWB}, {BRING + (n % 4) * BSLOT + 4096}")
        for p in range(4, 6):
            dma(LX(p), sX, f"s{S_T0}", (p - 4) * 1024, cfg.pol_x, n)

    def issue_a(n):
        e = n - 16
        slot = ARING + (e % 3) * ASLOT
        if e <= 15:
            A(f"s_mov_b32 s{S_T0}, {e * 8192}\ns_add_u32 m0, s{S_LWW}, {slot}")
            for p in range(4):
                dma(LK(p), sK, f"s{S_T0}", p * 1024, cfg.pol_kv, n)
        if e >= 1:
            A(f"s_mov_b32 s{S_T1}, {(e - 1) * 8192}\ns_add_u32 m0, s{S_LWW}, {slot + 16384}")
            for p in range(4):
                dma(LV(p & 1), sV, f"s{S_T1}", p * 1024, cfg.pol_kv, n)

    def issue_ow(m, tag):
        A(f"""s_add_u32 s{S_T0}, s{S_J2}, {m}
        s_and_b32 s{S_T0}, s{S_T0}, 15
        s_lshl_b32 s{S_T1}, s{S_T0}, 17
        s_add_u32 m0, s{S_LWW}, {WRING + (m % 4) * WSLOT}""")
        for p in range(4):
            dma(LWO(p), sWO, f"s{S_T1}", p * 1024, cfg.pol_wo, tag)

    def issue_ob(m, tag):
        A(f"""s_add_u32 s{S_T0}, s{S_J2}, {m}
        s_and_b32 s{S_T0}, s{S_T0}, 15
        s_mul_i32 s{S_T0}, s{S_T0}, 24576
        s_add_u32 s{S_T1}, s{S_T0}, 4096
        s_add_u32 m0, s{S_LWB}, {BRING + (m % 4) * BSLOT}""")
        for p in range(4):
            dma(LOB, sWS, f"s{S_T0}", p * 1024, "sc1", tag)
        A(f"s_add_u32 m0, s{S_LWB}, {BRING + (m % 4) * BSLOT + 4096}")
        for p in range(2):
            dma(LOB, sWS, f"s{S_T1}", p * 1024, "sc1", tag)

    nst = [0]

    def stamp():
        if cfg.stamps:
            A(f"s_memrealtime s[{S_ST}:{S_ST+1}]\ns_memtime s[{S_ST+2}:{S_ST+3}]\ns_cmp_eq_u32 s{S_W}, 1\ns_waitcnt lgkmcnt(0)\n"
              f"s_cselect_b32 s{S_ST+4}, s{S_ST+2}, s{S_ST}\nv_writelane_b32 v{LSTAMP}, s{S_ST+4}, {nst[0]}")
            nst[0] += 1

    def barrier():
        A("s_barrier")
        stamp()

    if cfg.stamps:
        A(f"v_mov_b32 v{LSTAMP}, 0")
    stamp()
    issue_q(0)
    issue_q(1)
    A(f"""
    s_lshr_b32 s{S_T0}, s{S_W}, 1
    s_lshl_b32 s{S_T1}, s{S_BP}, 1
    s_add_u32 s{S_T0}, s{S_T0}, s{S_T1}
    s_lshl_b32 s{S_T0}, s{S_T0}, 5
    s_add_u32 s{S_T0}, s{S_T0}, s{S_H}
    s_lshl_b32 s{S_T0}, s{S_T0}, 17
    s_and_b32 s{S_T1}, s{S_W}, 1
    s_lshl_b32 s{S_T1}, s{S_T1}, 12
    s_add_u32 s{S_T0}, s{S_T0}, s{S_T1}
    v_lshl_add_u32 v5, v1, 8, s{S_T0}
    v_xor_b32 v7, v2, v1
    """)
    for p in range(4):
        A(f"v_xor_b32 v3, {4 * p}, v7\nv_lshl_add_u32 v{LK(p)}, v3, 4, v5")
    A(f"""
    v_lshl_add_u32 v{LV(0)}, v6, 4, v5
    v_xor_b32 v7, 8, v6
    v_lshl_add_u32 v{LV(1)}, v7, 4, v5
    s_lshl_b32 s{S_T0}, s{S_HG}, 21
    s_lshl_b32 s{S_T1}, s{S_W}, 15
    s_add_u32 s{S_T0}, s{S_T0}, s{S_T1}
    s_lshl_b32 s{S_T1}, s{S_NU}, 8
    s_add_u32 s{S_T0}, s{S_T0}, s{S_T1}
    v_lshl_add_u32 v5, v1, 11, s{S_T0}
    v_lshl_add_u32 v{LWO(0)}, v6, 4, v5
    v_lshl_add_u32 v7, v7, 4, v5
    v_add_u32 v{LWO(1)}, {8192 - 1024}, v7
    v_add_u32 v{LWO(2)}, {2 * 8192 - 2048}, v{LWO(0)}
    v_add_u32 v{LWO(3)}, {3 * 8192 - 3072}, v7
    s_and_b32 s{S_T0}, s2, 7
    s_lshl_b32 s{S_T1}, s{S_BP}, 3
    s_add_u32 s{S_T0}, s{S_T0}, s{S_T1}
    s_mul_i32 s{S_T0}, s{S_T0}, 393216
    s_add_u32 s{S_T0}, s{S_T0}, s{S_LWB}
    v_lshl_add_u32 v{LOB}, v0, 4, s{S_T0}
    s_lshl_b32 s{S_T0}, s2, 8
    s_lshl_b32 s{S_T1}, s{S_W}, 2
    s_add_u32 s{S_T0}, s{S_T0}, s{S_T1}
    s_add_u32 s{S_T0}, s{S_T0}, {WS_INBOX}
    v_lshl_add_u32 v{LFLAG}, v4, 4, s{S_T0}
    s_lshl_b32 s{S_J2}, s{S_J}, 1
    """)
    for k in range(0, 33):
        wait(k)
        barrier()
        n = k + 2
        if n <= 15:
            issue_q(n)
        elif n <= 32:
            issue_a(n)
        if k == cfg.wo_tick:
            for m in range(4):
                issue_ow(m, 33 if m < 2 else 33 + m)
    wait(33)
    barrier()
    A(f"s_mov_b32 s{S_SPIN}, 0")
    loop = P.add(f"""L_poll1:
    buffer_load_dword v{LPOLL}, v{LFLAG}, {srd(sWS)}, 0 offen sc1
    s_add_u32 s{S_SPIN}, s{S_SPIN}, 1
    s_cmp_ge_u32 s{S_SPIN}, {SPIN_MAX}
    s_cbranch_scc1 L_poll1_done
    s_waitcnt vmcnt(0)
    v_cmp_ne_u32 vcc, 1, v{LPOLL}
    s_cbranch_vccnz L_poll1""")
    tr.extend(loop + loop)
    A("L_poll1_done:")
    del q[:]
    q.append("poll")
    stamp()
    issue_ob(2, 35)
    issue_ob(3, 36)
    for k in range(35, 50):
        wait(k)
        barrier()
        m = k + 2 - 33
        if m <= 15:
            issue_ow(m, k + 2)
            issue_ob(m, k + 2)
    if cfg.stamps:
        A(f"""s_lshl_b32 s{S_T0}, s2, 3
        s_add_u32 s{S_T0}, s{S_T0}, s{S_WAVE}
        s_lshl_b32 s{S_T0}, s{S_T0}, 8
        s_add_u32 s{S_T0}, s{S_T0}, {WS_STAMP}
        v_lshl_add_u32 v1, v0, 2, s{S_T0}
        buffer_store_dword v{LSTAMP}, v1, {srd(sWS)}, 0 offen""")
    A("s_endpgm")
    return tr


def gemm_reads(b, s, kind, with_b=True):
    r = []
    if with_b:
        for t in range(3):
            if kind == "q":
                r.append(f"ds_read_b128 {v4(FB(b, t))}, v{AB(s)} offset:{t * 2048}")
            else:
                r.append(f"ds_read_b128 {v4(FB(b, t))}, v{AB(0)} offset:{s * 3072 + t * 1024}")
    for T in range(8):
        for u in range(2):
            off = s * 8192 + u * (1024 if kind == "q" else 4096)
            r.append(f"ds_read_b64_tr_b16 {v2(FA(b, T) + 2 * u)}, v{AW(T)} offset:{off}")
    return r


def gemm_mfma(b, bsrc=None, zero=False):
    return [f"{MFMA} {v4(ACC(T, t))}, {v4(FA(b, T))}, {v4(bsrc(t) if bsrc else FB(b, t))}, {'0' if zero else v4(ACC(T, t))}"
            for T in range(8) for t in range(3)]


def ring_step(kind):
    sal = f"""s_add_u32 s{S_SLOT}, s{S_SLOT}, 1
    s_and_b32 s{S_SLOT}, s{S_SLOT}, 3
    s_cselect_b32 s{S_DW}, {WSLOT}, s{S_T2}
    s_cselect_b32 s{S_DB}, {BSLOT}, s{S_T3}""".split("\n")
    val = [f"v_add_u32 v{AB(s)}, s{S_DB}, v{AB(s)}" for s in range(2 if kind == "q" else 1)]
    val += [f"v_add_u32 v{AW(T)}, s{S_DW}, v{AW(T)}" for T in range(8)]
    return sal, val


def gemm_loop(P, tr, kind, label, iters):
    sal, val = ring_step(kind)
    h0 = weave(gemm_mfma(0), spread(gemm_reads(1, 1, kind), 0, 18) + spread(sal, 2, 8) + spread(val, 19, 22)
               + [(22, "s_waitcnt lgkmcnt(0)"), (22, "s_barrier")])
    h1 = weave(gemm_mfma(1), spread(gemm_reads(0, 0, kind), -1, 17)
               + [(20, f"s_sub_u32 s{S_CNT}, s{S_CNT}, 1"), (21, f"s_cmp_lg_u32 s{S_CNT}, 0")])
    tr.extend(P.add(f"s_mov_b32 s{S_CNT}, {iters}\n.p2align 3"))
    body = P.add([label + ":", "s_waitcnt lgkmcnt(0)"] + h0 + h1 + [f"s_cbranch_scc1 {label}"])
    tr.extend(body + body)


def k_reads():
    return [f"ds_read_b128 {v4(FR(kt * 4 + s))}, v{AK(s)} offset:{kt * 4096}" for kt in range(2) for s in range(4)]


def v_reads(T):
    return [f"ds_read_b64_tr_b16 {v2(FR(T) + 2 * u)}, v{AV(T)} offset:{u * 4096}" for u in range(2)]


def qk_mfma():
    return [f"{MFMA} {v4(SS(kt, t))}, {v4(FR(kt * 4 + s))}, {v4(QF(s, t))}, {'0' if s == 0 else v4(SS(kt, t))}"
            for kt in range(2) for s in range(4) for t in range(3)]


def pv_mfma():
    return [f"{MFMA} {v4(ACC(T, t))}, {v4(FR(T))}, {v4(PP(t))}, {v4(ACC(T, t))}" for T in range(8) for t in range(3)]


def xlane(op, regs, tmps):
    out = []
    for sw in ("v_permlane32_swap_b32", "v_permlane16_swap_b32"):
        out += [f"v_mov_b32 v{x}, v{r}" for r, x in zip(regs, tmps)]
        out += [f"{sw} v{r}, v{x}" for r, x in zip(regs, tmps)]
        out += [f"{op} v{r}, v{r}, v{x}" for r, x in zip(regs, tmps)]
    return out


def softmax(first):
    o = []
    T3 = range(3)
    if first:
        o += [f"v_max_f32 v{VM(t)}, v{SS(0, t)}, v{SS(0, t) + 1}" for t in T3]
    else:
        o += [f"v_max3_f32 v{VM(t)}, v{SS(0, t)}, v{SS(0, t) + 1}, v{VM(t)}" for t in T3]
    o += [f"v_max3_f32 v{VM(t)}, v{SS(0, t) + 2}, v{SS(0, t) + 3}, v{VM(t)}" for t in T3]
    o += [f"v_max3_f32 v{VM(t)}, v{SS(1, t)}, v{SS(1, t) + 1}, v{VM(t)}" for t in T3]
    o += [f"v_max3_f32 v{VM(t)}, v{SS(1, t) + 2}, v{SS(1, t) + 3}, v{VM(t)}" for t in T3]
    o += xlane("v_max_f32", [VM(t) for t in T3], [VT(t) for t in T3])
    if first:
        o += [f"v_mul_f32 v{VN(t)}, -s{S_C}, v{VM(t)}" for t in T3]
        o += [f"v_mov_b32 v{VA(t)}, 0" for t in T3]
        o += [f"v_mov_b32 v{VL(t)}, 0" for t in T3]
    else:
        o += [f"v_mul_f32 v{VT(t)}, -s{S_C}, v{VM(t)}" for t in T3]
        o += [f"v_sub_f32 v{VA(t)}, v{VT(t)}, v{VN(t)}" for t in T3]
        o += [f"v_mov_b32 v{VN(t)}, v{VT(t)}" for t in T3]
        o += [f"v_exp_f32 v{VA(t)}, v{VA(t)}" for t in T3]
    idx = [(kt, r) for kt in range(2) for r in range(4)]
    for n, (kt, r) in enumerate(idx):
        o += [f"v_fma_f32 v{SS(kt, t) + r}, v{SS(kt, t) + r}, s{S_C}, v{VN(t)}" for t in T3]
        if n == 0 and not first:
            o += [f"v_mul_f32 v{VL(t)}, v{VL(t)}, v{VA(t)}" for t in T3]
        if n >= 1:
            pk, pr = idx[n - 1]
            o += [f"v_add_f32 v{VL(t)}, v{VL(t)}, v{SS(pk, t) + pr}" for t in T3]
        o += [f"v_exp_f32 v{SS(kt, t) + r}, v{SS(kt, t) + r}" for t in T3]
    o += [f"v_add_f32 v{VL(t)}, v{VL(t)}, v{SS(1, t) + 3}" for t in T3]
    return o


def p_cvt():
    return [f"v_cvt_pk_bf16_f32 v{PP(t) + 2 * kt + h}, v{SS(kt, t) + 2 * h}, v{SS(kt, t) + 2 * h + 1}"
            for kt in range(2) for t in range(3) for h in range(2)]


def rescale():
    return [f"v_mul_f32 v{ACC(T, t) + r}, v{ACC(T, t) + r}, v{VA(t)}" for T in range(8) for t in range(3) for r in range(4)]


def acc_to_frag(s):
    return [f"v_cvt_pk_bf16_f32 v{QF(s, t) + 2 * u + h}, v{ACC(2 * s + u, t) + 2 * h}, v{ACC(2 * s + u, t) + 2 * h + 1}"
            for u in range(2) for t in range(3) for h in range(2)]


def a_step():
    return f"""s_add_u32 s{S_SLOT}, s{S_SLOT}, 1
    s_cmp_eq_u32 s{S_SLOT}, 3
    s_cselect_b32 s{S_SLOT}, 0, s{S_SLOT}
    s_cselect_b32 s{S_DW}, s{S_T2}, {ASLOT}""".split("\n")


def compute(P, cfg):
    tr = []
    A = lambda t: tr.extend(P.add(t))
    nst = [0]

    def stamp():
        if cfg.stamps:
            A(f"s_memrealtime s[{S_ST + 2 * nst[0]}:{S_ST + 2 * nst[0] + 1}]\ns_waitcnt lgkmcnt(0)")
            nst[0] += 1

    def dump(base, nregs, slot):
        A(f"""{lane_id(V_TMP)}
        s_lshl_b32 s{S_T0}, s2, 2
        s_add_u32 s{S_T0}, s{S_T0}, s{S_W}
        s_mul_i32 s{S_T0}, s{S_T0}, {96 * 256}
        s_add_u32 s{S_T0}, s{S_T0}, {WS_DUMP + (slot << 25)}
        v_lshl_add_u32 v{V_TMP}, v{V_TMP}, 4, s{S_T0}""")
        for k in range(nregs // 4):
            A(f"s_mov_b32 s{S_T0}, {k * 1024}\nbuffer_store_dwordx4 {v4(base + 4 * k)}, v{V_TMP}, {srd(sWS)}, s{S_T0} offen")
        A(f"s_waitcnt vmcnt(0)\nv_mov_b32 v{V_TMP}, 0")

    A(f"""
    s_cmp_lg_u32 s{S_W}, 0
    s_cbranch_scc1 L_noclear
    s_lshl_b32 s{S_T0}, s2, 8
    s_add_u32 s{S_T0}, s{S_T0}, {WS_INBOX}
    v_lshl_add_u32 v1, v0, 2, s{S_T0}
    v_mov_b32 v2, 0
    buffer_store_dword v2, v1, {srd(sWS)}, 0 offen sc1
    L_noclear:
    v_lshrrev_b32 v100, 4, v0
    v_and_b32 v101, 15, v0
    v_bfe_u32 v102, v0, 2, 2
    v_bfe_u32 v103, v0, 1, 1
    v_and_b32 v104, 1, v0
    """)
    A(f"""
    v_lshl_add_u32 v105, v100, 3, v102
    v_lshlrev_b32 v105, 8, v105
    v_lshl_add_u32 v105, v104, 3, v105
    v_lshl_add_u32 v105, v103, 4, v105
    v_and_b32 v106, 1, v100
    v_lshl_add_u32 v106, v106, 2, v102
    v_lshl_add_u32 v{AW(0)}, v106, 5, v105
    """)
    for T in range(1, 8):
        A(f"v_xor_b32 v{AW(T)}, {T << 5}, v{AW(0)}")
    A(f"""
    s_add_u32 s{S_T0}, s{S_LWB}, {BRING}
    v_lshl_add_u32 v105, v101, 7, s{S_T0}
    v_lshrrev_b32 v107, 1, v101
    v_xor_b32 v107, v107, v100
    v_lshl_add_u32 v{AB(0)}, v107, 4, v105
    v_xor_b32 v{AB(1)}, 64, v{AB(0)}
    """)
    A(f"""
    s_lshr_b32 s{S_T0}, s{S_W}, 1
    s_lshl_b32 s{S_T0}, s{S_T0}, 13
    s_add_u32 s{S_T0}, s{S_T0}, {ARING}
    v_lshl_add_u32 v105, v101, 8, s{S_T0}
    v_lshrrev_b32 v107, 1, v100
    v_and_b32 v108, 1, v100
    v_lshl_add_u32 v107, v108, 1, v107
    v_xor_b32 v107, v107, v101
    v_lshl_add_u32 v{AK(0)}, v107, 4, v105
    """)
    for s in range(1, 4):
        A(f"v_xor_b32 v{AK(s)}, {s << 6}, v{AK(0)}")
    A(f"""
    s_add_u32 s{S_T0}, s{S_T0}, {16384 + ASLOT}
    v_lshl_add_u32 v105, v100, 2, v102
    v_lshl_add_u32 v105, v105, 8, s{S_T0}
    v_lshl_add_u32 v105, v104, 3, v105
    v_lshl_add_u32 v105, v103, 4, v105
    v_lshl_add_u32 v{AV(0)}, v106, 5, v105
    """)
    for T in range(1, 8):
        A(f"v_xor_b32 v{AV(T)}, {T << 5}, v{AV(0)}")
    A(f"s_mov_b32 s{S_C}, {f32(1.4426950408889634 / 128 ** 0.5)}")
    A(f"s_mov_b32 s{S_T2}, {-3 * WSLOT}\ns_mov_b32 s{S_T3}, {-3 * BSLOT}\ns_mov_b32 s{S_SLOT}, 0")
    A(f"""
    s_cmp_lg_u32 s{S_W}, 0
    s_cbranch_scc1 L_nocount
    v_mov_b32 v1, 1
    v_mov_b32 v2, 0
    s_mov_b64 exec, 1
    s_waitcnt vmcnt(0)
    buffer_atomic_add v1, v2, {srd(sDBG)}, 0 offen
    s_mov_b64 exec, -1
    L_nocount:
    """)
    A([f"v_mov_b32 v{r}, 0" for r in range(96)])
    A("s_barrier")
    A(gemm_reads(0, 0, "q"))
    gemm_loop(P, tr, "q", "L_qloop", 16)
    A(f"v_mov_b32 v{V_TMP}, 0")
    A(k_reads())
    A(f"buffer_load_dword v{V_CHK}, v{V_TMP}, {srd(sDBG)}, 0 offen sc1")
    for s in range(4):
        A(acc_to_frag(s))
    for s in range(4):
        for t in range(3):
            A([f"v_permlane16_swap_b32 v{QF(s, t) + h}, v{QF(s, t) + 2 + h}" for h in range(2)])
    if cfg.dump:
        dump(96, 48, 0)
    A(f"s_mov_b32 s{S_T2}, {-2 * ASLOT}\ns_mov_b32 s{S_SLOT}, 1")
    kstep = [f"v_add_u32 v{AK(s)}, s{S_DW}, v{AK(s)}" for s in range(4)]
    vstep = [f"v_add_u32 v{AV(T)}, s{S_DW}, v{AV(T)}" for T in range(8)]
    A(weave(qk_mfma(), spread([f"v_add_u32 v{AK(s)}, {ASLOT}, v{AK(s)}" for s in range(4)], 20, 23)))
    A(softmax(True))
    A("s_barrier")
    A(k_reads())

    def iteration(last):
        rs = rescale()
        vr = [(3 * T + 2, x) for T in range(8) for x in v_reads(T)]
        ph1 = weave(qk_mfma(), [(-1, x) for x in p_cvt() + rs[:12]] + spread(rs[12:], 0, 22) + vr)
        extra = spread(a_step(), 0, 1) + spread(kstep + vstep, 2, 5)
        ph2 = weave(pv_mfma(), extra + spread(softmax(False), 2, 23))
        if last:
            return ph1 + ph2
        return ph1 + ph2 + [f"s_sub_u32 s{S_CNT}, s{S_CNT}, 1", f"s_cmp_lg_u32 s{S_CNT}, 0", "s_barrier"] + k_reads()

    A(f"s_mov_b32 s{S_CNT}, 14\n.p2align 3")
    body = P.add(["L_aloop:"] + iteration(False) + ["s_cbranch_scc1 L_aloop"])
    tr.extend(body + body)
    A(iteration(True))
    T3 = range(3)
    A(xlane("v_add_f32", [VL(t) for t in T3], [VT(t) for t in T3]))
    A([f"v_rcp_f32 v{VL(t)}, v{VL(t)}" for t in T3])
    A([f"v_mul_f32 v{VA(t)}, v{VA(t)}, v{VL(t)}" for t in T3])
    A([f"v_mul_f32 v{SS(kt, t) + r}, v{SS(kt, t) + r}, v{VL(t)}" for kt in range(2) for t in T3 for r in range(4)])
    A(p_cvt())
    A(rescale())
    A(f"""
    {lane_id(VT(0))}
    s_lshl_b32 s{S_T0}, s{S_HG}, 6
    v_and_b32 v{AW(0)}, 0xfff, v{AV(0)}
    v_xor_b32 v{AW(0)}, s{S_T0}, v{AW(0)}
    """)
    for T in range(1, 8):
        A(f"v_xor_b32 v{AW(T)}, {T << 5}, v{AW(0)}")
    A(f"""
    s_add_u32 s{S_T0}, s{S_LWB}, {BRING + 2 * BSLOT}
    v_lshl_add_u32 v{AB(0)}, v{VT(0)}, 4, s{S_T0}
    s_and_b32 s{S_T0}, s2, 7
    s_lshl_b32 s{S_T1}, s{S_BP}, 3
    s_add_u32 s{S_T0}, s{S_T0}, s{S_T1}
    s_mul_i32 s{S_T0}, s{S_T0}, 393216
    s_mul_i32 s{S_T1}, s{S_J}, 49152
    s_add_u32 s{S_T0}, s{S_T0}, s{S_T1}
    s_add_u32 s{S_T0}, s{S_T0}, s{S_LWB}
    v_lshl_add_u32 v{AB(1)}, v{VT(0)}, 4, s{S_T0}
    s_andn2_b32 s{S_T0}, s2, 0x38
    s_lshl_b32 s{S_T0}, s{S_T0}, 8
    s_lshl_b32 s{S_T1}, s{S_J}, 4
    s_add_u32 s{S_T0}, s{S_T0}, s{S_T1}
    s_lshl_b32 s{S_T1}, s{S_W}, 2
    s_add_u32 s{S_T0}, s{S_T0}, s{S_T1}
    s_add_u32 s{S_T0}, s{S_T0}, {WS_INBOX}
    v_lshl_add_u32 v{AK(0)}, v{VT(0)}, 11, s{S_T0}
    v_mov_b32 v{AK(1)}, 1
    s_mov_b32 s{S_T2}, {-3 * WSLOT}
    s_mov_b32 s{S_SPIN}, 0
    """)
    chk = P.add(f"""L_chk:
    s_waitcnt vmcnt(0)
    v_cmp_gt_u32 vcc, 0x100, v{V_CHK}
    s_cbranch_vccz L_chk_done
    buffer_load_dword v{V_CHK}, v{V_TMP}, {srd(sDBG)}, 0 offen sc1
    s_add_u32 s{S_SPIN}, s{S_SPIN}, 1
    s_cmp_lt_u32 s{S_SPIN}, {SPIN_MAX}
    s_cbranch_scc1 L_chk""")
    tr.extend(chk + chk)
    A("L_chk_done:")
    A("s_barrier")
    A([x for T in range(8) for x in v_reads(T)])
    A(weave(pv_mfma(), [(21, "s_barrier")]))
    A(gemm_reads(0, 0, "o", with_b=False))
    for s in range(4):
        A(acc_to_frag(s))
        A(f"s_mov_b32 s{S_T0}, {(s >> 1) * 24576 + (s & 1) * 3072}")
        A([f"buffer_store_dwordx4 {v4(QF(s, t))}, v{AB(1)}, {srd(sWS)}, s{S_T0} offen offset:{t * 1024} sc1" for t in T3])
    stamp()
    flag = ["s_waitcnt vmcnt(0)", "s_mov_b64 exec, 0xff", f"buffer_store_dword v{AK(1)}, v{AK(0)}, {srd(sWS)}, 0 offen sc1", "s_mov_b64 exec, -1"]
    wstep = [f"v_add_u32 v{AW(T)}, {WSLOT}, v{AW(T)}" for T in range(8)]
    for hs in range(4):
        if hs == cfg.flag_after:
            A(flag)
            stamp()
        fill = []
        if hs < 3:
            fill += spread(gemm_reads((hs + 1) & 1, (hs + 1) & 1, "o", with_b=False), 0, 15)
        if hs in (0, 2):
            fill += spread(wstep, 16, 23)
        A(weave(gemm_mfma(hs & 1, bsrc=lambda t: QF(hs, t), zero=(hs == 0)), fill))
    if cfg.flag_after == 4:
        A(flag)
        stamp()
    A(f"s_mov_b32 s{S_SLOT}, 2")
    A("s_barrier")
    A(gemm_reads(0, 0, "o"))
    gemm_loop(P, tr, "o", "L_oloop", 14)
    stamp()
    A(f"""
    {lane_id(AK(2))}
    s_mul_i32 s{S_T0}, s{S_W}, 18432
    s_add_u32 s{S_T0}, s{S_T0}, {WS_X}
    v_lshl_add_u32 v{AB(0)}, v{AK(2)}, 4, s{S_T0}
    v_and_b32 v{AK(3)}, 3, v{AK(2)}
    s_lshl_b32 s{S_T0}, s{S_W}, 4
    s_add_u32 s{S_T0}, s{S_T0}, {WS_INBOX + 128}
    v_lshl_add_u32 v{AB(1)}, v{AK(3)}, 2, s{S_T0}
    v_xor_b32 v{AK(0)}, s2, v{AK(3)}
    v_lshl_add_u32 v{AK(0)}, v{AK(0)}, 8, v{AB(1)}
    s_lshl_b32 s{S_T0}, s2, 8
    v_add_u32 v{AB(1)}, s{S_T0}, v{AB(1)}
    """)
    for i in range(1, 4):
        A(f"""s_xor_b32 s{S_T0}, s2, {i}
        s_mul_i32 s{S_T0}, s{S_T0}, 73728
        s_add_u32 s{S_T0}, s{S_T0}, {(i - 1) * 6144}
        s_add_u32 s{S_T1}, s{S_T0}, 4096""")
        for k in range(6):
            A(f"buffer_store_dwordx4 {v4(24 * i + 4 * k)}, v{AB(0)}, {srd(sWS)}, s{S_T0 if k < 4 else S_T1} offen offset:{(k % 4) * 1024} sc1")
    A(["s_waitcnt vmcnt(0)", "s_mov_b64 exec, 15", f"buffer_store_dword v{AK(1)}, v{AK(0)}, {srd(sWS)}, 0 offen sc1", "s_mov_b64 exec, -1"])
    stamp()
    A(f"""
    v_and_b32 v{AV(0)}, 15, v{AK(2)}
    v_bfe_u32 v{AV(1)}, v{AK(2)}, 4, 1
    v_bfe_u32 v{AV(2)}, v{AK(2)}, 5, 1
    s_mul_i32 s{S_T0}, s{S_BP}, 192
    s_mul_i32 s{S_T1}, s{S_W}, 48
    s_add_u32 s{S_T0}, s{S_T0}, s{S_T1}
    s_lshl_b32 s{S_T0}, s{S_T0}, 12
    s_lshl_b32 s{S_T1}, s{S_BLK}, 11
    s_add_u32 s{S_T0}, s{S_T0}, s{S_T1}
    s_lshl_b32 s{S_T1}, s{S_NU}, 8
    s_add_u32 s{S_T0}, s{S_T0}, s{S_T1}
    s_lshl_b32 s{S_T1}, s{S_HG}, 6
    s_add_u32 s{S_T0}, s{S_T0}, s{S_T1}
    v_lshl_add_u32 v{AV(0)}, v{AV(0)}, 12, s{S_T0}
    v_lshl_add_u32 v{AV(0)}, v{AV(1)}, 5, v{AV(0)}
    v_lshl_add_u32 v{AV(0)}, v{AV(2)}, 4, v{AV(0)}
    s_mov_b32 s{S_SPIN}, 0
    """)
    poll = P.add(f"""L_poll2:
    buffer_load_dword v{V_CHK}, v{AB(1)}, {srd(sWS)}, 0 offen sc1
    s_add_u32 s{S_SPIN}, s{S_SPIN}, 1
    s_cmp_ge_u32 s{S_SPIN}, {SPIN_MAX}
    s_cbranch_scc1 L_poll2_done
    s_waitcnt vmcnt(0)
    v_cmp_ne_u32 vcc, 1, v{V_CHK}
    s_cbranch_vccnz L_poll2""")
    tr.extend(poll + poll)
    A("L_poll2_done:")
    stamp()
    A(f"s_mul_i32 s{S_T0}, s2, 73728")
    for k in range(18):
        if k and k % 4 == 0:
            A(f"s_add_u32 s{S_T0}, s{S_T0}, 4096")
        A(f"buffer_load_dwordx4 {v4(24 + 4 * k)}, v{AB(0)}, {srd(sWS)}, s{S_T0} offen offset:{(k % 4) * 1024} sc1")
    for i in range(1, 4):
        A([f"v_add_f32 v{r}, v{r}, v{24 * i + r}" for r in range(24)])
    A(acc_to_frag(0))
    for t in T3:
        A([f"v_permlane16_swap_b32 v{QF(0, t) + h}, v{QF(0, t) + 2 + h}" for h in range(2)])
    for t in T3:
        A(f"s_mov_b32 s{S_T0}, {t * 65536}\nbuffer_store_dwordx4 {v4(QF(0, t))}, v{AV(0)}, {srd(sOUT)}, s{S_T0} offen")
    if cfg.stamps:
        A("s_waitcnt vmcnt(0)")
        stamp()
        A(f"v_mov_b32 v1, 0")
        for k in range(nst[0]):
            A(f"v_writelane_b32 v1, s{S_ST + 2 * k}, {k}")
        A(f"""s_lshl_b32 s{S_T0}, s2, 3
        s_add_u32 s{S_T0}, s{S_T0}, s{S_WAVE}
        s_lshl_b32 s{S_T0}, s{S_T0}, 8
        s_add_u32 s{S_T0}, s{S_T0}, {WS_STAMP}
        v_lshl_add_u32 v2, v{AK(2)}, 2, s{S_T0}
        buffer_store_dword v1, v2, {srd(sWS)}, 0 offen""")
    A("L_exit:\ns_endpgm")
    return tr


def generate(cfg):
    P = Prog()
    pre = P.add("s_cmp_ge_u32 s2, 256\ns_cbranch_scc1 L_exit") + prologue(P)
    tc = compute(P, cfg)
    tl = loader(P, cfg)
    body = P.finish([pre + tc, pre + tl])
    return (HEADER + "; @launch grid=(256,1,1) block=(512,1,1) lds=163840\n"
            + '.amdgcn_target "amdgcn-amd-amdhsa--gfx950"\n.text\n'
            + f".globl {NAME}_kernel\n.p2align 8\n.type {NAME}_kernel,@function\n{NAME}_kernel:\n" + body
            + f""".section .rodata,"a"
.p2align 6
.amdhsa_kernel {NAME}_kernel
  .amdhsa_next_free_vgpr 256
  .amdhsa_next_free_sgpr 102
  .amdhsa_accum_offset 256
  .amdhsa_group_segment_fixed_size 0
  .amdhsa_kernarg_size 104
  .amdhsa_user_sgpr_count 2
  .amdhsa_user_sgpr_kernarg_segment_ptr 1
  .amdhsa_system_sgpr_workgroup_id_x 1
  .amdhsa_float_denorm_mode_32 3
.end_amdhsa_kernel
""")


if __name__ == "__main__":
    out = sys.argv[1]
    kw = {}
    for a in sys.argv[2:]:
        k, v = a.split("=")
        kw[k] = int(v) if v.lstrip("-").isdigit() else v.replace("+", " ")
    open(out, "w").write(generate(Cfg(**kw)))
```

```python
import gen, sys
NAME = gen.NAME


def pre_kernel(srcs, pol, depth=6):
    L = []
    A = L.append
    A(".globl pre_kernel\n.p2align 8\n.type pre_kernel,@function\npre_kernel:")
    A("s_cmp_ge_u32 s2, 256\ns_cbranch_scc1 LP_end")
    if srcs:
        A("v_lshrrev_b32 v1, 6, v0\nv_and_b32 v2, 63, v0\ns_nop 0\nv_readfirstlane_b32 s3, v1\nv_lshlrev_b32 v3, 4, v2")
        for w in range(len(srcs)):
            A(f"s_cmp_eq_u32 s3, {w}\ns_cbranch_scc1 LP_r{w}")
        A("s_branch LP_end")
        for w, (ko, nb, stride, base, n) in enumerate(srcs):
            A(f"LP_r{w}:\ns_load_dwordx2 s[4:5], s[0:1], {ko}\ns_waitcnt lgkmcnt(0)")
            A(f"s_mov_b32 s8, s4\ns_mov_b32 s9, s5\ns_mov_b32 s10, {nb}\ns_mov_b32 s11, 0x20000")
            A(f"s_mul_i32 s12, s2, {stride}\ns_add_u32 s12, s12, {base}\ns_mov_b32 s13, {n}")
            A(f"LP_l{w}:\nbuffer_load_dwordx4 v[8:11], v3, s[8:11], s12 offen {pol}\ns_add_u32 s12, s12, 1024")
            A(f"s_waitcnt vmcnt({depth - 1})\ns_sub_u32 s13, s13, 1\ns_cmp_lg_u32 s13, 0\ns_cbranch_scc1 LP_l{w}\ns_waitcnt vmcnt(0)\ns_branch LP_end")
    A("LP_end:\ns_endpgm")
    kd = """.amdhsa_kernel pre_kernel
  .amdhsa_next_free_vgpr 16
  .amdhsa_next_free_sgpr 32
  .amdhsa_accum_offset 16
  .amdhsa_group_segment_fixed_size 0
  .amdhsa_kernarg_size 104
  .amdhsa_user_sgpr_count 2
  .amdhsa_user_sgpr_kernarg_segment_ptr 1
  .amdhsa_system_sgpr_workgroup_id_x 1
.end_amdhsa_kernel
"""
    return "\n".join(L) + "\n", kd


def build(path, srcs, pol, **kw):
    main = gen.generate(gen.Cfg(**kw))
    code, kd = pre_kernel(srcs, pol)
    main = main.replace("; @launch grid=(256,1,1) block=(512,1,1) lds=163840",
                        f"; @launch kernel=pre_kernel grid=(256,1,1) block=(256,1,1) lds=163840\n; @launch kernel={NAME}_kernel grid=(256,1,1) block=(512,1,1) lds=163840")
    main = main.replace('.section .rodata,"a"', code + '.section .rodata,"a"')
    main += ".p2align 6\n" + kd
    open(path, "w").write(main)


KV = [(o, 32 << 20, 131072, 0, 128) for o in (8, 16, 48, 56)]
WS = [(96, 256 << 20, 131072, (128 << 20) + (i << 25), 128) for i in range(4)]
WT = [(o, 8 << 20, 32768, 0, 32) for o in (24, 32, 64, 72)]
build("c_empty.s", [], "")
build("c_kvnt.s", KV, "nt")
build("c_kvdef.s", KV, "")
build("c_wsnt.s", WS, "nt")
build("c_wdef.s", WT, "")
open("c_main.s", "w").write(gen.generate(gen.Cfg()))
```

```python
import gen, sys
NAME = gen.NAME


def post_kernel(a, b, zero):
    L = []
    A = L.append
    A(".globl post_kernel\n.p2align 8\n.type post_kernel,@function\npost_kernel:")
    A("s_cmp_ge_u32 s2, 1\ns_cbranch_scc1 LP_end")
    A("s_load_dwordx2 s[4:5], s[0:1], 96\ns_waitcnt lgkmcnt(0)")
    A(f"s_mov_b32 s8, s4\ns_mov_b32 s9, s5\ns_mov_b32 s10, {256 << 20}\ns_mov_b32 s11, 0x20000")
    A("v_lshlrev_b32 v1, 11, v0")
    for n, (w, k, op) in enumerate((a, b)):
        for q in range(4):
            A(f"s_mov_b32 s12, {gen.WS_STAMP + q * 64 * 2048 + w * 256 + k * 4}\nbuffer_load_dword v{2 + 4 * n + q}, v1, s[8:11], s12 offen")
    A("s_waitcnt vmcnt(0)")
    for n, (w, k, op) in enumerate((a, b)):
        r = 2 + 4 * n
        A(f"v_{op}_u32 v{r}, v{r}, v{r+1}\nv_{op}_u32 v{r+2}, v{r+2}, v{r+3}\nv_{op}_u32 v{r}, v{r}, v{r+2}\ns_nop 1")
        A(f"v_readlane_b32 s{20 + n}, v{r}, 0")
        for l in range(1, 64):
            A(f"v_readlane_b32 s24, v{r}, {l}\ns_nop 0\ns_{op}_u32 s{20 + n}, s{20 + n}, s24")
    A("s_sub_u32 s22, s21, s20\ns_min_u32 s22, s22, 20000")
    if zero:
        A("s_mov_b32 s22, 0")
    A("s_memrealtime s[26:27]\ns_waitcnt lgkmcnt(0)")
    A("LP_spin:\ns_memrealtime s[28:29]\ns_waitcnt lgkmcnt(0)\ns_sub_u32 s30, s28, s26\ns_cmp_lt_u32 s30, s22\ns_cbranch_scc1 LP_spin")
    A("LP_end:\ns_endpgm")
    kd = """.amdhsa_kernel post_kernel
  .amdhsa_next_free_vgpr 16
  .amdhsa_next_free_sgpr 40
  .amdhsa_accum_offset 16
  .amdhsa_group_segment_fixed_size 0
  .amdhsa_kernarg_size 104
  .amdhsa_user_sgpr_count 2
  .amdhsa_user_sgpr_kernarg_segment_ptr 1
  .amdhsa_system_sgpr_workgroup_id_x 1
.end_amdhsa_kernel
"""
    return "\n".join(L) + "\n", kd


def build(path, a, b, zero=False, **kw):
    main = gen.generate(gen.Cfg(stamps=1, **kw))
    code, kd = post_kernel(a, b, zero)
    main = main.replace("; @launch grid=(256,1,1) block=(512,1,1) lds=163840",
                        f"; @launch kernel={NAME}_kernel grid=(256,1,1) block=(512,1,1) lds=163840\n; @launch kernel=post_kernel grid=(1,1,1) block=(64,1,1) lds=0")
    main = main.replace('.section .rodata,"a"', code + '.section .rodata,"a"')
    main += ".p2align 6\n" + kd
    open(path, "w").write(main)


if __name__ == "__main__":
    S = (4, 0, "min")
    build("d_zero.s", S, (0, 5, "max"), zero=True)
    build("d_end.s", S, (0, 5, "max"))
    build("d_b3.s", S, (4, 4, "max"))
    build("d_b16.s", S, (4, 17, "max"))
    build("d_b32.s", S, (4, 33, "max"))
    build("d_b35.s", S, (4, 36, "max"))
```

```python
import gen, calib2
NAME = gen.NAME


def stamp_kernel(name, slot):
    code = f""".globl {name}
.p2align 8
.type {name},@function
{name}:
s_memrealtime s[20:21]
s_cmp_ge_u32 s2, 256
s_cbranch_scc1 L{name}_end
s_load_dwordx2 s[4:5], s[0:1], 96
s_waitcnt lgkmcnt(0)
s_mov_b32 s8, s4
s_mov_b32 s9, s5
s_mov_b32 s10, {256 << 20}
s_mov_b32 s11, 0x20000
s_lshl_b32 s12, s2, 11
s_add_u32 s12, s12, {gen.WS_STAMP + (1 << 20) + slot * 256}
v_mov_b32 v1, s20
v_lshlrev_b32 v2, 2, v0
buffer_store_dword v1, v2, s[8:11], s12 offen
L{name}_end:
s_endpgm
"""
    kd = f""".p2align 6
.amdhsa_kernel {name}
  .amdhsa_next_free_vgpr 16
  .amdhsa_next_free_sgpr 40
  .amdhsa_accum_offset 16
  .amdhsa_group_segment_fixed_size 0
  .amdhsa_kernarg_size 104
  .amdhsa_user_sgpr_count 2
  .amdhsa_user_sgpr_kernarg_segment_ptr 1
  .amdhsa_system_sgpr_workgroup_id_x 1
.end_amdhsa_kernel
"""
    return code, kd


def build(path, a, b, zero=False, mul=1):
    main = gen.generate(gen.Cfg(stamps=1))
    code, kd = calib2.post_kernel(a, b, zero)
    code = code.replace("s_sub_u32 s22, s21, s20\n", f"s_sub_u32 s22, s21, s20\ns_mul_i32 s22, s22, {mul}\n")
    c1, k1 = stamp_kernel("sa_kernel", 0)
    c2, k2 = stamp_kernel("sb_kernel", 1)
    main = main.replace("; @launch grid=(256,1,1) block=(512,1,1) lds=163840",
                        "; @launch kernel=sa_kernel grid=(256,1,1) block=(64,1,1) lds=0\n"
                        f"; @launch kernel={NAME}_kernel grid=(256,1,1) block=(512,1,1) lds=163840\n"
                        "; @launch kernel=sb_kernel grid=(256,1,1) block=(64,1,1) lds=0\n"
                        "; @launch kernel=post_kernel grid=(1,1,1) block=(64,1,1) lds=0")
    main = main.replace('.section .rodata,"a"', code + c1 + c2 + '.section .rodata,"a"')
    main += ".p2align 6\n" + kd + k1 + k2
    open(path, "w").write(main)


SA = lambda op: (4096, 0, op)
SB = lambda op: (4097, 0, op)
build("e_zero.s", SA("min"), SB("min"), zero=True)
build("e_all.s", SA("min"), SB("min"))
build("e_head.s", SA("max"), (4, 0, "min"), mul=4)
build("e_tail.s", (0, 5, "max"), SB("min"), mul=4)
build("e_skew.s", (4, 0, "min"), (4, 0, "max"), mul=4)
build("e_saskew.s", SA("min"), SA("max"), mul=4)
```

```python
import calib, gen
import types
def b(path, ko, nb, stride, base):
    srcs = [(ko, nb, stride, base + w * (stride // 4), 8 if stride == 32768 else 32) for w in range(4)]
    orig = calib.pre_kernel
    calib.pre_kernel = lambda s, p: orig(s, p, depth=1)
    calib.build(path, srcs, "nt")
    calib.pre_kernel = orig
b("f_ak.s", 8, 32 << 20, 131072, 0)
b("f_av.s", 16, 32 << 20, 131072, 0)
b("f_bk.s", 48, 32 << 20, 131072, 0)
b("f_bv.s", 56, 32 << 20, 131072, 0)
b("f_ws.s", 96, 256 << 20, 131072, 224 << 20)
```

```python
import re

TRANS = ("v_exp_f32", "v_log_f32", "v_rcp_f32", "v_rsq_f32", "v_sqrt_f32")


def regs(tok):
    tok = tok.strip()
    tok = re.sub(r"^-|^abs\(|\)$", "", tok)
    m = re.fullmatch(r"([vsa])(\d+)", tok)
    if m:
        return [(m.group(1), int(m.group(2)))]
    m = re.fullmatch(r"([vsa])\[(\d+):(\d+)\]", tok)
    if m:
        return [(m.group(1), i) for i in range(int(m.group(2)), int(m.group(3)) + 1)]
    if tok == "vcc":
        return [("s", 106), ("s", 107)]
    if tok == "m0":
        return [("s", 124)]
    if tok == "exec":
        return [("s", 126), ("s", 127)]
    return []


class I:
    def __init__(self, text):
        self.text = text
        self.nop = 0
        self.lgkm = None
        self.vm = None
        t = text.split(";")[0].strip()
        self.label = t.endswith(":") or t.startswith(".") or not t
        self.op = t.split()[0] if t else ""
        rest = re.sub(r"\s(op_sel|op_sel_hi|neg_lo|neg_hi):\[[^\]]*\]", "", t[len(self.op):]).strip()
        ops = [o.strip() for o in rest.split(",")] if rest else []
        if ops:
            last = ops[-1].split()
            self.mods = last[1:]
            ops[-1] = last[0]
        else:
            self.mods = []
        R = [regs(o) for o in ops]
        flat = lambda xs: [r for x in xs for r in x]
        op = self.op
        self.rd, self.wr, self.srcc, self.srcab, self.sdata = [], [], [], [], []
        self.kind = "other"
        if self.label:
            self.kind = "label"
        elif op.startswith("v_mfma"):
            self.kind = "mfma"
            self.wr, self.srcab, self.srcc = R[0], R[1] + R[2], R[3]
            self.rd = self.srcab + self.srcc
            self.passes = 4 if "16x16" in op else 8
        elif op.startswith("ds_read"):
            self.kind = "ds"
            self.wr, self.rd = R[0], flat(R[1:])
        elif op.startswith("ds_write"):
            self.kind = "ds"
            self.rd = flat(R)
        elif op.startswith("buffer_load"):
            self.kind = "vmem"
            if "lds" in self.mods:
                self.rd = flat(R) + [("s", 124)]
            else:
                self.wr, self.rd = R[0], flat(R[1:])
        elif op.startswith("buffer_store") or op.startswith("buffer_atomic"):
            self.kind = "vmem"
            self.rd = flat(R)
            if op.endswith("x4") or op.endswith("x3"):
                self.sdata = R[0]
        elif op.startswith("global_load"):
            self.kind = "vmem"
            self.wr, self.rd = R[0], flat(R[1:])
        elif op.startswith("v_"):
            self.kind = "valu"
            if op.startswith("v_permlane"):
                self.wr = self.rd = flat(R)
            else:
                self.wr, self.rd = R[0], flat(R[1:])
                if op.startswith(("v_fmac", "v_writelane")):
                    self.rd = self.rd + R[0]
        elif op.startswith("s_"):
            self.kind = "salu"
            if op.startswith(("s_cmp", "s_bitcmp")):
                self.rd = flat(R)
            elif op.startswith(("s_waitcnt", "s_barrier", "s_nop", "s_branch", "s_cbranch", "s_endpgm", "s_setprio", "s_sleep")):
                pass
            else:
                self.wr, self.rd = (R[0] if R else []), flat(R[1:])
                if "saveexec" in op:
                    self.wr = self.wr + regs("exec")
            if op.startswith(("s_load", "s_memtime", "s_memrealtime")):
                self.kind = "smem"
        self.trans = op.startswith(TRANS)

    def states(self):
        if self.kind == "label":
            return 0
        if self.op == "s_nop":
            return int(self.text.split()[1]) + 1
        return 1

    def lines(self):
        out = []
        w = []
        if self.vm is not None:
            w.append(f"vmcnt({self.vm})")
        if self.lgkm is not None:
            w.append(f"lgkmcnt({self.lgkm})")
        if w:
            out.append("    s_waitcnt " + " ".join(w))
        n = self.nop
        while n > 0:
            k = min(n, 16)
            out.append(f"    s_nop {k - 1}")
            n -= k
        out.append(self.text if self.kind == "label" else "    " + self.text)
        return out


def need(p, c):
    n = 0
    pw, cr, cw = set(p.wr), set(c.rd), set(c.wr)
    pv = {r for r in pw if r[0] != "s"}
    ps = {r for r in pw if r[0] == "s"}
    if p.kind == "valu":
        if c.kind == "mfma" and pv & cr:
            n = max(n, 2)
        if c.op.startswith("v_permlane") and pv & cr:
            n = max(n, 2)
        if "dpp" in c.op and pv & cr:
            n = max(n, 2)
        if c.op.startswith(("v_readfirstlane", "v_readlane")) and pv & cr:
            n = max(n, 1)
        if p.trans and c.kind == "valu" and not c.trans and pv & cr:
            n = max(n, 1)
        if c.kind == "valu" and ps & cr:
            n = max(n, 2)
        if c.kind == "vmem" and ps & cr:
            n = max(n, 5)
        if c.kind == "salu" and ps & cr:
            n = max(n, 1)
    if p.kind == "mfma":
        big = {4: 8, 8: 12}[p.passes]
        if c.kind == "mfma":
            if pv & set(c.srcab):
                n = max(n, big)
            if pv & set(c.srcc) and c.srcc != p.wr:
                n = max(n, big - 2)
        elif c.kind in ("valu", "vmem", "ds") and pv & (cr | cw):
            n = max(n, big)
        if c.kind == "valu" and set(p.srcc) & cw:
            n = max(n, {4: 3, 8: 7}[p.passes])
    if p.kind == "salu" and ("s", 124) in pw and c.kind == "vmem" and ("s", 124) in cr:
        n = max(n, 1)
    if p.sdata and set(p.sdata) & cw:
        n = max(n, 2)
    return n


def fix_trace(trace):
    changed = False
    lds, vm = [], []
    for ins in trace:
        touch = set(ins.rd) | (set() if ins.kind == "vmem" else set(ins.wr))
        for q, attr, cap in ((lds, "lgkm", 12), (vm, "vm", 60)):
            idx = max((k for k, o in enumerate(q) if set(o.wr) & touch), default=None)
            if idx is not None:
                n = min(len(q) - 1 - idx, cap)
                cur = getattr(ins, attr)
                if cur is None or n < cur:
                    setattr(ins, attr, n)
                    changed = True
            cur = getattr(ins, attr)
            if cur is not None:
                del q[: max(0, len(q) - cur)]
        if ins.op == "s_waitcnt":
            m = re.search(r"lgkmcnt\((\d+)\)", ins.text)
            if m:
                del lds[: max(0, len(lds) - int(m.group(1)))]
            m = re.search(r"vmcnt\((\d+)\)", ins.text)
            if m:
                del vm[: max(0, len(vm) - int(m.group(1)))]
        if ins.kind == "ds":
            lds.append(ins)
        if ins.kind == "vmem":
            vm.append(ins)
    for k, c in enumerate(trace):
        if c.kind == "label":
            continue
        dist = c.nop + (1 if (c.lgkm is not None or c.vm is not None) else 0)
        j = k - 1
        while j >= 0 and dist < 13:
            p = trace[j]
            n = need(p, c)
            if n > dist:
                c.nop += n - dist
                dist = n
                changed = True
            dist += p.states() + p.nop + (1 if (p.lgkm is not None or p.vm is not None) else 0)
            j -= 1
    return changed


class Prog:
    def __init__(self):
        self.code = []

    def add(self, text):
        out = []
        if isinstance(text, (list, tuple)):
            for t in text:
                out += self.add(t)
            return out
        for ln in text.split("\n"):
            ln = ln.strip()
            if ln:
                ins = I(ln)
                self.code.append(ins)
                out.append(ins)
        return out

    def finish(self, traces):
        for _ in range(50):
            if not any([fix_trace(t) for t in traces]):
                break
        else:
            raise RuntimeError("no fixpoint")
        seen = {id(i) for t in traces for i in t}
        missing = [i.text for i in self.code if id(i) not in seen and i.kind != "label"]
        assert not missing, missing[:5]
        return "\n".join(l for i in self.code for l in i.lines()) + "\n"


def weave(main, fillers):
    out = []
    by = {}
    for s, t in fillers:
        by.setdefault(min(s, len(main) - 1), []).append(t)
    out += by.get(-1, [])
    for k, m in enumerate(main):
        out.append(m)
        out += by.get(k, [])
    return out


def spread(items, lo, hi):
    n = len(items)
    return [(lo + (k * (hi - lo + 1)) // n, it) for k, it in enumerate(items)]


def cost(text):
    op = text.split()[0]
    if op.endswith(":"):
        return 0
    return 8 if op.startswith(TRANS) else 4


def balance(main, fixed, streams, head=0):
    n = len(main)
    gaps = {g: [] for g in range(-1, n)}
    for g, t in fixed:
        gaps[g].append(t)
    pos = [0] * len(streams)
    left = sum(cost(t) for _, t in fixed if _ >= 0) + sum(cost(t) for st, _, _ in streams for t in st) - head
    for g in range(-1, n):
        fx = sum(cost(t) for t in gaps[g])
        target = head if g < 0 else left / (n - g)
        have = fx
        while True:
            cand = [k for k, (st, lo, hi) in enumerate(streams) if pos[k] < len(st) and lo <= g]
            if not cand:
                break
            press = lambda k: sum(cost(t) for t in streams[k][0][pos[k]:]) / (streams[k][2] - g + 1e-3)
            k = max(cand, key=press)
            t = streams[k][0][pos[k]]
            if have + cost(t) / 2 > target and press(k) <= max(target, 8):
                break
            gaps[g].append(t)
            have += cost(t)
            pos[k] += 1
        if g >= 0:
            left -= have
        else:
            left += head - (have - fx)
    assert all(pos[k] == len(streams[k][0]) for k in range(len(streams)))
    out = list(gaps[-1])
    for g in range(n):
        out.append(main[g])
        out += gaps[g]
    return out


VOP12 = ("v_exp_f32", "v_add_f32", "v_sub_f32", "v_mul_f32", "v_max_f32", "v_mov_b32", "v_add_u32", "v_rcp_f32",
         "v_lshlrev_b32", "v_and_b32", "v_xor_b32", "v_cmp_lt_f32", "v_lshrrev_b32", "v_min_u32", "v_max_u32", "v_mul_u32_u24")
INLINE = {str(i) for i in range(-16, 65)} | {"0.5", "1.0", "2.0", "4.0"}


def size_of(line):
    t = line.strip()
    op = t.split()[0]
    ops = [o.strip().split()[0] for o in t[len(op):].split(",") if o.strip()]
    lit = any((re.fullmatch(r"-?\d+|0x[0-9a-f]+", o) and str(int(o, 0)) not in INLINE) or (o.startswith("L_") and op.startswith("v_")) for o in ops)
    if op.startswith("s_"):
        if op.startswith(("s_load", "s_mem")):
            return 8, False
        if op.startswith(("s_waitcnt", "s_nop", "s_barrier", "s_branch", "s_cbranch", "s_endpgm", "s_setprio", "s_sleep", "s_getreg")):
            return 4, False
        return (8 if lit else 4), False
    if op in VOP12:
        if lit or "-v" in t or "-s" in t or (len(ops) == 3 and not ops[2].startswith("v")):
            return 8, False
        return 4, True
    if op.startswith(("v_permlane", "v_readfirstlane", "v_cmp", "v_cndmask", "v_mov_b64")):
        return (8 if lit else 4), False
    return 8, False


def align8(text):
    lines = text.split("\n")
    off = 0
    cand = None
    for k, ln in enumerate(lines):
        t = ln.strip()
        if not t or t.endswith(":") or t.startswith(";"):
            continue
        if t.startswith(".p2align"):
            off, cand = 0, None
            continue
        sz, wide = size_of(t)
        if sz == 8:
            if off and cand is not None:
                op = lines[cand].split()[0]
                lines[cand] = lines[cand].replace(op, op + "_e64", 1)
                off = 0
            cand = None
        else:
            off ^= 4
            if wide:
                cand = k
    return "\n".join(lines)
```

```python
import struct, sys
from asmlib import Prog, weave, spread, balance, align8

NAME = "concat_heads__mha_block_cached__gqa_block_cached__near_ridge"
HEADER = open("cdna_kernels/" + NAME + ".s.ref").read().split("; Override launch")[0]

WS_O, WS_X, WS_INBOX, WS_STAMP, WS_DUMP = 0, 16 << 20, 48 << 20, 200 << 20, 64 << 20
WRING, BRING, KRING, VRING = 0, 65536, 65536, 114688
WSLOT, BSLOT, ASLOT = 16384, 24576, 16384
SPIN_MAX = 200000
T3 = range(3)

S_WAVE, sX, sK, sV, sWQ, sWO, sOUT, sWS, sDBG = 3, 20, 24, 28, 32, 36, 40, 44, 48
S_BLK, S_HG, S_J, S_BP, S_NU, S_W, S_H, S_DB = 52, 53, 54, 55, 56, 57, 58, 59
S_T0, S_T1, S_T2, S_T3, S_CNT, S_DW, S_C, S_SLOT = 60, 61, 62, 63, 64, 65, 66, 68
S_LWB, S_LWW, S_ROT, S_J2, S_SPIN, S_FLAG, S_XCC, S_GRP = 69, 70, 71, 72, 73, 74, 75, 76
S_ST = 80
srd = lambda r: f"s[{r}:{r+3}]"
v4 = lambda r: f"v[{r}:{r+3}]"
v2 = lambda r: f"v[{r}:{r+1}]"
f32 = lambda x: "0x%08x" % struct.unpack("<I", struct.pack("<f", x))[0]
MFMA = "v_mfma_f32_16x16x32_bf16"

ACC = lambda T, t: (T * 3 + t) * 4
QF = lambda s, t: 96 + (s * 3 + t) * 4
FA = lambda b, T: 144 + 44 * b + 4 * T
FB = lambda b, t: 144 + 44 * b + 32 + 4 * t
AW = lambda T: 232 + T
AB = lambda s: 240 + s
V_CHK, V_TMP = 242, 243
FR = lambda f: 144 + 4 * f
SS = lambda kt, t: 176 + (kt * 3 + t) * 4
PP = lambda t: 200 + 4 * t
NM = lambda t: 212 + 4 * t
VL = lambda t: 224 + 2 * t
VX = 230
VD = lambda t: 232 + t
VT = lambda k: 235 + k
VA = lambda t: 238 + t
AK = lambda s: 244 + s
AV = lambda T: 248 + T


class Cfg:
    def __init__(self, **kw):
        self.pol_x = ""
        self.pol_wq = ""
        self.pol_kv = "nt"
        self.pol_wo = ""
        self.pol_ob = "sc1"
        self.rot = 1
        self.stamps = 0
        self.flag_after = 1
        self.pre = ""
        self.last = 30
        self.win = 6
        self.win16 = 10
        self.wo_at = "31.31.33.33"
        self.qd = 1
        self.thr = 8.0
        self.local = 1
        self.pk = 0
        self.snake = 1
        self.align = 1
        self.prio = 0
        self.remap = 0
        self.nurot = 1
        self.otouch = 0
        self.stag = 0
        self.s1pre = 36
        self.s1win = 8
        self.s0win = 8
        self.s0late = 8
        self.s0sw = 28
        self.prog = 0
        self.__dict__.update(kw)


def lane_id(v):
    return f"v_mbcnt_lo_u32_b32 v{v}, -1, 0\nv_mbcnt_hi_u32_b32 v{v}, -1, v{v}"


def prologue(P, cfg):
    return P.add(f"""
    s_and_b32 s{S_HG}, s2, 3
    s_bfe_u32 s{S_BLK}, s2, 0x10002
    s_load_dwordx4 s[16:19], s[0:1], 88
    s_load_dwordx2 s[14:15], s[0:1], 80
    s_mul_i32 s{S_T0}, s{S_BLK}, 40
    s_add_u32 s0, s0, s{S_T0}
    s_addc_u32 s1, s1, 0
    s_load_dwordx8 s[4:11], s[0:1], 0
    s_load_dwordx2 s[12:13], s[0:1], 32
    v_lshrrev_b32 v1, 6, v0
    v_and_b32 v0, 63, v0
    s_bfe_u32 s{S_J}, s2, 0x30003
    v_readfirstlane_b32 s{S_WAVE}, v1
    s_lshr_b32 s{S_BP}, s2, 6
    s_lshl_b32 s{S_H}, s{S_HG}, 3
    s_add_u32 s{S_H}, s{S_H}, s{S_J}
    s_mul_i32 s{S_NU}, s{S_BP}, {2 * cfg.nurot}
    s_add_u32 s{S_NU}, s{S_NU}, s{S_J}
    s_and_b32 s{S_NU}, s{S_NU}, 7
    s_and_b32 s{S_GRP}, s2, 7
    s_lshl_b32 s{S_T1}, s{S_BP}, 3
    s_add_u32 s{S_GRP}, s{S_GRP}, s{S_T1}
    s_and_b32 s{S_W}, s{S_WAVE}, 3
    s_mul_i32 s{S_LWB}, s{S_W}, 6144
    s_lshl_b32 s{S_LWW}, s{S_W}, 12
    s_waitcnt lgkmcnt(0)
    """ + "\n".join(
        f"s_mov_b32 s{r}, s{p}\ns_mov_b32 s{r+1}, s{p+1}\ns_mov_b32 s{r+2}, {n}\ns_mov_b32 s{r+3}, 0x20000"
        for r, p, n in ((sX, 4, 768 * 2048), (sWQ, 10, 8 << 20), (sK, 6, 32 << 20), (sV, 8, 32 << 20), (sWO, 12, 8 << 20),
                        (sOUT, 14, 768 * 4096), (sWS, 18, 256 << 20), (sDBG, 16, 256))) + f"""
    s_cmp_ge_u32 s{S_WAVE}, 4
    s_cbranch_scc1 L_loader
    """)


def poll_loop(P, tr, name, vdst, vaddr):
    tr.extend(P.add(f"s_mov_b32 s{S_SPIN}, 0"))
    loop = P.add(f"""L_{name}:
    buffer_load_dword v{vdst}, v{vaddr}, {srd(sWS)}, 0 offen sc1
    s_add_u32 s{S_SPIN}, s{S_SPIN}, 1
    s_cmp_ge_u32 s{S_SPIN}, {SPIN_MAX}
    s_cbranch_scc1 L_{name}_done
    s_waitcnt vmcnt(0)
    v_cmp_ne_u32 vcc, 1, v{vdst}
    s_cbranch_vccnz L_{name}""")
    tr.extend(loop + loop)
    tr.extend(P.add(f"L_{name}_done:"))


LX = lambda p: 8 + p
LW = lambda p: 14 + p
LK = lambda p: 18 + p
LV = lambda p: 22 + p
LWO = lambda p: 24 + p
LOB, LFLAG, LSTAMP, LPOLL = 28, 29, 30, 31
LDSW = lambda h: 1 + h
LPOOL = 32


def late_setup(A):
    A(f"""
    s_lshr_b32 s{S_T0}, s{S_W}, 1
    s_lshl_b32 s{S_T1}, s{S_BP}, 1
    s_add_u32 s{S_T0}, s{S_T0}, s{S_T1}
    s_lshl_b32 s{S_T0}, s{S_T0}, 5
    s_add_u32 s{S_T0}, s{S_T0}, s{S_H}
    s_lshl_b32 s{S_T0}, s{S_T0}, 17
    s_and_b32 s{S_T1}, s{S_W}, 1
    s_lshl_b32 s{S_T1}, s{S_T1}, 12
    s_add_u32 s{S_T0}, s{S_T0}, s{S_T1}
    v_lshl_add_u32 v5, v1, 8, s{S_T0}
    v_xor_b32 v7, v2, v1
    """)
    for p in range(4):
        A(f"v_xor_b32 v3, {4 * p}, v7\nv_lshl_add_u32 v{LK(p)}, v3, 4, v5")
    A(f"""
    v_lshl_add_u32 v{LV(0)}, v6, 4, v5
    v_xor_b32 v7, 8, v6
    v_lshl_add_u32 v{LV(1)}, v7, 4, v5
    s_lshl_b32 s{S_T0}, s{S_HG}, 21
    s_lshl_b32 s{S_T1}, s{S_W}, 15
    s_add_u32 s{S_T0}, s{S_T0}, s{S_T1}
    s_lshl_b32 s{S_T1}, s{S_NU}, 8
    s_add_u32 s{S_T0}, s{S_T0}, s{S_T1}
    v_lshl_add_u32 v5, v1, 11, s{S_T0}
    v_lshl_add_u32 v{LWO(0)}, v6, 4, v5
    v_lshl_add_u32 v7, v7, 4, v5
    v_add_u32 v{LWO(1)}, {8192 - 1024}, v7
    v_add_u32 v{LWO(2)}, {2 * 8192 - 2048}, v{LWO(0)}
    v_add_u32 v{LWO(3)}, {3 * 8192 - 3072}, v7
    s_mul_i32 s{S_T0}, s{S_GRP}, 393216
    s_add_u32 s{S_T0}, s{S_T0}, s{S_LWB}
    v_lshl_add_u32 v{LOB}, v0, 4, s{S_T0}
    s_lshl_b32 s{S_T0}, s2, 13
    s_lshl_b32 s{S_T1}, s{S_W}, 7
    s_add_u32 s{S_T0}, s{S_T0}, s{S_T1}
    s_add_u32 s{S_T0}, s{S_T0}, {WS_INBOX}
    v_lshl_add_u32 v{LFLAG}, v4, 2, s{S_T0}
    s_lshl_b32 s{S_J2}, s{S_J}, 1
    s_add_u32 s{S_T0}, s{S_LWW}, {KRING}
    v_lshl_add_u32 v{LDSW(0)}, v0, 4, s{S_T0}
    v_add_u32 v{LDSW(1)}, {VRING - KRING}, v{LDSW(0)}
    """)


def loader(P, cfg):
    tr = P.add("L_loader:")
    A = lambda t: tr.extend(P.add(t))
    A(f"""
    v_lshrrev_b32 v1, 4, v0
    v_and_b32 v2, 15, v0
    v_lshrrev_b32 v3, 3, v0
    v_and_b32 v4, 7, v0
    s_mul_i32 s{S_T0}, s{S_BP}, 192
    s_mul_i32 s{S_T1}, s{S_W}, 48
    s_add_u32 s{S_T0}, s{S_T0}, s{S_T1}
    s_lshl_b32 s{S_T0}, s{S_T0}, 11
    v_lshl_add_u32 v5, v3, 11, s{S_T0}
    v_xor_b32 v6, v4, v1
    v_lshl_add_u32 v{LX(0)}, v6, 4, v5
    v_xor_b32 v6, 4, v6
    v_lshl_add_u32 v7, v6, 4, v5
    """)
    for p in range(1, 6):
        A(f"v_add_u32 v{LX(p)}, {p * 16384 - (p % 4) * 1024}, v{7 if p & 1 else LX(0)}")
    A(f"""
    s_lshl_b32 s{S_T0}, s{S_W}, 17
    s_lshl_b32 s{S_T1}, s{S_H}, 8
    s_add_u32 s{S_T0}, s{S_T0}, s{S_T1}
    v_lshl_add_u32 v5, v1, 13, s{S_T0}
    v_lshlrev_b32 v6, 1, v1
    v_xor_b32 v6, v6, v2
    v_lshl_add_u32 v{LW(0)}, v6, 4, v5
    v_xor_b32 v7, 8, v6
    v_lshl_add_u32 v7, v7, 4, v5
    v_add_u32 v{LW(1)}, {32768 - 1024}, v{LW(0)}
    v_add_u32 v{LW(2)}, {2 * 32768 - 2048}, v7
    v_add_u32 v{LW(3)}, {3 * 32768 - 3072}, v7
    """)
    if cfg.rot == 1:
        A(f"s_add_u32 s{S_ROT}, s{S_BP}, s{S_J}\ns_and_b32 s{S_ROT}, s{S_ROT}, 3\ns_lshl_b32 s{S_ROT}, s{S_ROT}, 2")
    elif cfg.rot == 2:
        A(f"s_add_u32 s{S_ROT}, s{S_BP}, s{S_J}\ns_and_b32 s{S_ROT}, s{S_ROT}, 1\ns_lshl_b32 s{S_ROT}, s{S_ROT}, 3")
    elif cfg.rot == 3:
        A(f"s_lshl_b32 s{S_ROT}, s{S_HG}, 2")
    else:
        A(f"s_mov_b32 s{S_ROT}, 0")
    late_setup(A)
    if not cfg.stag:
        return [loader_role(P, cfg, tr, None)]
    A(f"s_cmp_ge_u32 s{S_BP}, 2\ns_cbranch_scc1 L_late")
    t0 = loader_role(P, cfg, list(tr), 0)
    return [t0, loader_role(P, cfg, list(tr) + P.add("L_late:"), 1)]


def loader_role(P, cfg, tr, role):
    A = lambda t: tr.extend(P.add(t))
    sfx = "" if role is None else str(role)
    q = []

    def throttle(win):
        if win and len(q) >= win:
            A(f"s_waitcnt vmcnt({win - 1})")
            del q[:len(q) - (win - 1)]

    def dma(vreg, s, soff, imm, pol, tag, win=0):
        throttle(win)
        A(f"buffer_load_dwordx4 v{vreg}, {srd(s)}, {soff} offen offset:{imm} {pol} lds")
        q.append(tag)

    def wait(tag):
        if tag in q:
            idx = max(k for k, x in enumerate(q) if x == tag)
            A(f"s_waitcnt vmcnt({len(q) - 1 - idx})")
            del q[:idx + 1]

    def issue_q(n):
        A(f"""s_add_u32 s{S_T0}, s{S_ROT}, {n}
        s_add_u32 m0, s{S_LWW}, {WRING + (n % 4) * WSLOT}
        s_and_b32 s{S_T0}, s{S_T0}, 15
        s_lshl_b32 s{S_T1}, s{S_T0}, 19""")
        for p in range(4):
            dma(LW(p), sWQ, f"s{S_T1}", p * 1024, cfg.pol_wq, n)
        A(f"s_add_u32 m0, s{S_LWB}, {BRING + (n % 4) * BSLOT}\ns_lshl_b32 s{S_T0}, s{S_T0}, 7")
        for p in range(4):
            dma(LX(p), sX, f"s{S_T0}", p * 1024, cfg.pol_x, n)
        A(f"s_add_u32 m0, s{S_LWB}, {BRING + (n % 4) * BSLOT + 4096}")
        for p in range(4, 6):
            dma(LX(p), sX, f"s{S_T0}", (p - 4) * 1024, cfg.pol_x, n)

    kv = []
    for e in range(17):
        if e <= 15:
            kv += [(16 + e, 0, e, p) for p in range(4)]
        if e >= 1:
            kv += [(16 + e, 1, e - 1, p) for p in range(4)]
    pool = list(range(LPOOL, 256, 4))
    parked = []
    state = dict(next=0, m0=None, soff=None, lds=False)

    def issue_kv(upto, k, win):
        state["m0"] = state["soff"] = None
        while state["next"] < upto:
            stage, isv, tile, p = kv[state["next"]]
            state["next"] += 1
            vo, sr = (LV(p & 1), sV) if isv else (LK(p), sK)
            if stage <= k + 2 and state["m0"] != (stage, isv):
                A(f"s_add_u32 m0, s{S_LWW}, {(VRING if isv else KRING) + (tile % 3) * ASLOT}")
                state["m0"] = (stage, isv)
            if state["soff"] != tile:
                A(f"s_mov_b32 s{S_T0}, {tile * 8192}")
                state["soff"] = tile
            if stage <= k + 2:
                dma(vo, sr, f"s{S_T0}", p * 1024, cfg.pol_kv, stage, win)
            else:
                r = pool.pop(0)
                throttle(win)
                A(f"buffer_load_dwordx4 {v4(r)}, v{vo}, {srd(sr)}, s{S_T0} offen offset:{p * 1024} {cfg.pol_kv}")
                q.append(("r", r))
                parked.append((stage, isv, tile, p, r))

    def unpark(k):
        while parked and parked[0][0] <= k + 2:
            stage, isv, tile, p, r = parked.pop(0)
            wait(("r", r))
            A(f"ds_write_b128 v{LDSW(isv)}, {v4(r)} offset:{(tile % 3) * ASLOT + p * 1024}")
            pool.append(r)
            state["lds"] = True

    def issue_ow(m, tag, win=0):
        A(f"""s_add_u32 s{S_T0}, s{S_J2}, {m}
        s_add_u32 m0, s{S_LWW}, {WRING + (m % 4) * WSLOT}
        s_and_b32 s{S_T0}, s{S_T0}, 15
        s_lshl_b32 s{S_T1}, s{S_T0}, 17""")
        for p in range(4):
            dma(LWO(p), sWO, f"s{S_T1}", p * 1024, cfg.pol_wo, tag, win)

    def issue_ob(m, tag):
        A(f"""s_add_u32 s{S_T0}, s{S_J2}, {m}
        s_add_u32 m0, s{S_LWB}, {BRING + ((m - 2) % 4) * BSLOT}
        s_and_b32 s{S_T0}, s{S_T0}, 15
        s_mul_i32 s{S_T0}, s{S_T0}, 24576""")
        for p in range(4):
            dma(LOB, sWS, f"s{S_T0}", p * 1024, cfg.pol_ob, tag)
        A(f"s_add_u32 m0, s{S_LWB}, {BRING + ((m - 2) % 4) * BSLOT + 4096}\ns_add_u32 s{S_T1}, s{S_T0}, 4096")
        for p in range(2):
            dma(LOB, sWS, f"s{S_T1}", p * 1024, cfg.pol_ob, tag)

    nst = [0]

    def stamp():
        if cfg.stamps:
            A(f"s_memrealtime s[{S_ST}:{S_ST+1}]\ns_memtime s[{S_ST+2}:{S_ST+3}]\ns_cmp_eq_u32 s{S_W}, 1\ns_waitcnt lgkmcnt(0)\n"
              f"s_cselect_b32 s{S_ST+4}, s{S_ST+2}, s{S_ST}\nv_writelane_b32 v{LSTAMP}, s{S_ST+4}, {nst[0]}")
            nst[0] += 1

    def barrier():
        if state["lds"]:
            A("s_waitcnt lgkmcnt(0)")
            state["lds"] = False
        A("s_barrier")
        stamp()

    if cfg.stamps:
        A(f"v_mov_b32 v{LSTAMP}, 0")
    stamp()
    end = lambda n: 0 if n < 16 else min(128, 4 + 8 * (n - 16))
    pre = [int(x) for x in str(cfg.pre).split(".")] if cfg.pre and role is None else []
    pre = [0] * (17 - len(pre)) + pre
    wo_at = [int(x) for x in str(cfg.wo_at).split(".")]
    wtag = lambda m: 33 if m < 2 else 33 + m
    if role == 1:
        A(f"""
        s_lshr_b32 s{S_T0}, s2, 3
        s_and_b32 s{S_T0}, s{S_T0}, 15
        s_lshl_b32 s{S_T0}, s{S_T0}, 2
        s_add_u32 s{S_T0}, s{S_T0}, s{S_W}
        s_lshl_b32 s{S_T1}, s{S_T0}, 13
        s_lshl_b32 s{S_T2}, s{S_HG}, 11
        s_add_u32 s{S_T1}, s{S_T1}, s{S_T2}
        v_lshrrev_b32 v3, 4, v0
        v_and_b32 v4, 15, v0
        v_lshl_add_u32 v5, v3, 19, s{S_T1}
        v_lshl_add_u32 v5, v4, 7, v5
        s_mul_i32 s{S_T1}, s{S_T0}, {6 * 2048}
        v_lshrrev_b32 v3, 3, v0
        v_min_u32 v3, 5, v3
        v_and_b32 v4, 7, v0
        v_lshl_add_u32 v6, v3, 11, s{S_T1}
        v_lshl_add_u32 v6, v4, 7, v6
        """)
        for qt in range(4):
            if qt % 2 == 0:
                A(f"buffer_load_dword v{LPOLL}, v6, {srd(sX)}, 0 offen offset:{(qt // 2) * 1024}")
                q.append("t")
            A(f"s_mov_b32 s{S_T0}, {qt << 21}\nbuffer_load_dword v{LPOLL}, v5, {srd(sWQ)}, s{S_T0} offen")
            q.append("t")
        A(f"s_mov_b32 s{S_T0}, {384 * 2048}")
        for h in range(2):
            A(f"buffer_load_dword v{LPOLL}, v6, {srd(sX)}, s{S_T0} offen offset:{h * 1024}")
            q.append("t")
        pre[0] = cfg.s1pre
        issue_kv(pre[0], -1, cfg.s1win)
    issue_q(0)
    issue_q(1)
    base = sum(pre)
    issue_kv(pre[0], -1, 0)
    nq = 2
    for k in range(0, 33):
        wait(k)
        barrier()
        unpark(k)
        while nq <= min(15, k + 1 + cfg.qd):
            issue_q(nq)
            nq += 1
        w = cfg.win if role is None else (cfg.s1win if role else (cfg.s0win if k < cfg.s0sw else cfg.s0late))
        win = 0 if k < 16 else (max(w, cfg.win16) if k == 16 else w)
        lead = min(128, end(k + 1) + (win or 8)) if k >= 14 else 0
        if k <= 15:
            ramp = sum(pre[:k + 2]) + (4 * max(0, k - 13) if role == 1 else 0)
        else:
            b0 = base + cfg.win16 + (8 if role == 1 else 0)
            ramp = min(128, b0 + ((128 - b0) * (k - 16)) // (cfg.last - 16))
        issue_kv(max(lead, ramp if base else 0), k, win)
        if k == 26:
            A(f"buffer_load_dword v{LPOLL}, v{LFLAG}, {srd(sWS)}, 0 offen sc1")
            q.append("t")
        for m in range(4):
            if wo_at[m] == k:
                issue_ow(m, wtag(m), win if state["next"] < 128 else 0)
    assert state["next"] == 128 and not parked
    wait(33)
    barrier()
    if wo_at[2] == 33:
        issue_ow(2, 35)
    poll_loop(P, tr, "poll1" + sfx, LPOLL, LFLAG)
    del q[:]
    q.append("poll")
    stamp()
    issue_ob(2, 35)
    if wo_at[3] == 33:
        issue_ow(3, 36)
    issue_ob(3, 36)
    for k in range(35, 50):
        wait(k)
        barrier()
        m = k + 2 - 33
        if m <= 15:
            issue_ow(m, k + 2)
            issue_ob(m, k + 2)
    if cfg.stamps:
        A(f"""s_lshl_b32 s{S_T0}, s2, 3
        s_add_u32 s{S_T0}, s{S_T0}, s{S_WAVE}
        s_lshl_b32 s{S_T0}, s{S_T0}, 8
        s_add_u32 s{S_T0}, s{S_T0}, {WS_STAMP}
        v_lshl_add_u32 v1, v0, 2, s{S_T0}
        buffer_store_dword v{LSTAMP}, v1, {srd(sWS)}, 0 offen""")
    A("s_endpgm")
    return tr


def order(n, snake):
    return [(T, t) for T in range(n) for t in (reversed(T3) if snake and T & 1 else T3)]


def gemm_reads(b, s, kind, with_b=True):
    r = []
    if with_b:
        for t in T3:
            if kind == "q":
                r.append(f"ds_read_b128 {v4(FB(b, t))}, v{AB(s)} offset:{t * 2048}")
            else:
                r.append(f"ds_read_b128 {v4(FB(b, t))}, v{AB(0)} offset:{s * 3072 + t * 1024}")
    for T in range(8):
        for u in range(2):
            off = s * 8192 + u * (1024 if kind == "q" else 4096)
            r.append(f"ds_read_b64_tr_b16 {v2(FA(b, T) + 2 * u)}, v{AW(T)} offset:{off}")
    return r


def gemm_mfma(cfg, b, bsrc=None, zero=False):
    return [f"{MFMA} {v4(ACC(T, t))}, {v4(FA(b, T))}, {v4(bsrc(t) if bsrc else FB(b, t))}, {'0' if zero else v4(ACC(T, t))}"
            for T, t in order(8, cfg.snake)]


def gemm_loop(P, tr, cfg, kind, label, iters):
    sal = [f"s_add_u32 s{S_SLOT}, s{S_SLOT}, 1", f"s_and_b32 s{S_SLOT}, s{S_SLOT}, 3", f"s_cselect_b32 s{S_DW}, {WSLOT}, s{S_T2}"]
    if kind == "o":
        sal.append(f"s_cmp_lg_u32 s{S_SLOT}, 2")
    sal.append(f"s_cselect_b32 s{S_DB}, {BSLOT}, s{S_T3}")
    val = [f"v_add_u32 v{AB(s)}, s{S_DB}, v{AB(s)}" for s in range(2 if kind == "q" else 1)]
    val += [f"v_add_u32 v{AW(T)}, s{S_DW}, v{AW(T)}" for T in range(8)]
    nb = len(val) - 8
    h0 = weave(gemm_mfma(cfg, 0), spread(gemm_reads(1, 1, kind), 0, 18) + spread(sal, 0, 4) + spread(val[:nb + 6], 12, 19)
               + spread(val[nb + 6:], 20, 21) + [(22, "s_waitcnt lgkmcnt(0)"), (22, "s_barrier")])
    h1 = weave(gemm_mfma(cfg, 1), spread(gemm_reads(0, 0, kind), -1, 17)
               + [(20, f"s_sub_u32 s{S_CNT}, s{S_CNT}, 1"), (20, f"s_cmp_lg_u32 s{S_CNT}, 0")])
    tr.extend(P.add(f"s_mov_b32 s{S_CNT}, {iters}\ns_waitcnt lgkmcnt(0)\n.p2align 3"))
    body = P.add([label + ":"] + h0 + h1 + ["s_waitcnt lgkmcnt(0)", f"s_cbranch_scc1 {label}"])
    tr.extend(body + body)


def k_reads(tile):
    return [f"ds_read_b128 {v4(FR(kt * 4 + s))}, v{AK(s)} offset:{(tile % 3) * ASLOT + kt * 4096}" for kt in range(2) for s in range(4)]


def v_reads(T, tile):
    return [f"ds_read_b64_tr_b16 {v2(FR(T) + 2 * u)}, v{AV(T)} offset:{(tile % 3) * ASLOT + u * 4096}" for u in range(2)]


def qk_mfma(first=False):
    c0 = lambda t: "0" if first else v4(NM(t))
    return [f"{MFMA} {v4(SS(kt, t))}, {v4(FR(kt * 4 + s))}, {v4(QF(s, t))}, {c0(t) if s == 0 else v4(SS(kt, t))}"
            for kt in range(2) for s in range(4) for t in T3]


def pv_mfma(cfg):
    return [f"{MFMA} {v4(ACC(T, t))}, {v4(FR(T))}, {v4(PP(t))}, {v4(ACC(T, t))}" for T, t in order(8, cfg.snake)]


def xlane(op, regs, tmps):
    out = []
    for sw in ("v_permlane32_swap_b32", "v_permlane16_swap_b32"):
        out += [f"v_mov_b32 v{x}, v{r}" for r, x in zip(regs, tmps)]
        out += [f"{sw} v{r}, v{x}" for r, x in zip(regs, tmps)]
        out += [f"{op} v{r}, v{r}, v{x}" for r, x in zip(regs, tmps)]
    return out


def row_max():
    o = [f"v_max3_f32 v{VD(t)}, v{SS(0, t)}, v{SS(0, t) + 1}, v{SS(0, t) + 2}" for t in T3]
    o += [f"v_max3_f32 v{VD(t)}, v{SS(0, t) + 3}, v{SS(1, t)}, v{VD(t)}" for t in T3]
    o += [f"v_max3_f32 v{VD(t)}, v{SS(1, t) + 1}, v{SS(1, t) + 2}, v{VD(t)}" for t in T3]
    o += [f"v_max_f32 v{VD(t)}, v{SS(1, t) + 3}, v{VD(t)}" for t in T3]
    return o + xlane("v_max_f32", [VD(t) for t in T3], [VT(t) for t in T3])


def shift_scores():
    return [f"v_sub_f32 v{SS(kt, t) + r}, v{SS(kt, t) + r}, v{VD(t)}" for kt in range(2) for t in T3 for r in range(4)]


def guard_max(kt):
    r = [SS(kt, t) + k for t in T3 for k in range(4)]
    if kt == 0:
        o = [f"v_max3_f32 v{VX}, v{r[0]}, v{r[1]}, v{r[2]}"]
        o += [f"v_max3_f32 v{VX}, v{r[k]}, v{r[k + 1]}, v{VX}" for k in range(3, 11, 2)]
        return o + [f"v_max_f32 v{VX}, v{r[11]}, v{VX}"]
    return [f"v_max3_f32 v{VX}, v{r[k]}, v{r[k + 1]}, v{VX}" for k in range(0, 12, 2)]


def p_cvt(kt, h=None):
    return [f"v_cvt_pk_bf16_f32 v{PP(t) + 2 * kt + hh}, v{SS(kt, t) + 2 * hh}, v{SS(kt, t) + 2 * hh + 1}"
            for hh in ((0, 1) if h is None else (h,)) for t in T3]


def exp_sum(cfg, kt, h):
    o = [f"v_exp_f32 v{SS(kt, t) + 2 * h + r}, v{SS(kt, t) + 2 * h + r}" for t in T3 for r in range(2)]
    if cfg.pk:
        o += [f"v_pk_add_f32 {v2(VL(t))}, {v2(VL(t))}, {v2(SS(kt, t) + 2 * h)}" for t in T3]
    else:
        o += [f"v_add_f32 v{VL(t) + r}, v{VL(t) + r}, v{SS(kt, t) + 2 * h + r}" for t in T3 for r in range(2)]
    return o


def rescale(by):
    return [f"v_mul_f32 v{ACC(T, t) + r}, v{ACC(T, t) + r}, v{by(t)}" for T in range(8) for t in T3 for r in range(4)]


def acc_to_frag(s):
    return [f"v_cvt_pk_bf16_f32 v{QF(s, t) + 2 * u + h}, v{ACC(2 * s + u, t) + 2 * h}, v{ACC(2 * s + u, t) + 2 * h + 1}"
            for u in range(2) for t in T3 for h in range(2)]


def compute(P, cfg):
    tr = []
    A = lambda t: tr.extend(P.add(t))
    nst = [0]

    def stamp():
        if cfg.stamps:
            A(f"s_memrealtime s[{S_ST + 2 * nst[0]}:{S_ST + 2 * nst[0] + 1}]\ns_waitcnt lgkmcnt(0)")
            nst[0] += 1

    if cfg.prio:
        A(f"s_setprio {cfg.prio}")
    A(f"""
    s_getreg_b32 s{S_XCC}, hwreg(HW_REG_XCC_ID, 0, 3)
    s_cmp_lg_u32 s{S_W}, 0
    s_cbranch_scc1 L_noclear
    s_lshl_b32 s{S_T0}, s2, 13
    s_add_u32 s{S_T0}, s{S_T0}, {WS_INBOX}
    v_lshrrev_b32 v1, 3, v0
    v_and_b32 v2, 7, v0
    v_lshlrev_b32 v2, 2, v2
    v_lshl_add_u32 v2, v1, 7, v2
    v_min_u32 v1, 47, v0
    v_lshlrev_b32 v1, 7, v1
    v_cmp_gt_u32 vcc, 32, v0
    v_cndmask_b32 v1, v1, v2, vcc
    v_mov_b32 v2, 0
    buffer_store_dword v2, v1, {srd(sWS)}, s{S_T0} offen sc1
    L_noclear:
    s_lshl_b32 s{S_XCC}, s{S_XCC}, 2
    s_lshl_b32 s{S_T0}, s{S_GRP}, 2
    v_mov_b32 v{V_TMP}, 0xfc
    v_writelane_b32 v{V_TMP}, s{S_T0}, 1
    v_lshrrev_b32 v100, 4, v0
    v_and_b32 v101, 15, v0
    v_bfe_u32 v102, v0, 2, 2
    v_bfe_u32 v103, v0, 1, 1
    v_and_b32 v104, 1, v0
    """)
    A(f"""
    v_lshl_add_u32 v105, v100, 3, v102
    v_lshlrev_b32 v105, 8, v105
    v_lshl_add_u32 v105, v104, 3, v105
    v_lshl_add_u32 v105, v103, 4, v105
    v_and_b32 v106, 1, v100
    v_lshl_add_u32 v106, v106, 2, v102
    v_lshl_add_u32 v{AW(0)}, v106, 5, v105
    """)
    for T in range(1, 8):
        A(f"v_xor_b32 v{AW(T)}, {T << 5}, v{AW(0)}")
    A(f"""
    s_add_u32 s{S_T0}, s{S_LWB}, {BRING}
    v_lshl_add_u32 v105, v101, 7, s{S_T0}
    v_lshrrev_b32 v107, 1, v101
    v_xor_b32 v107, v107, v100
    v_lshl_add_u32 v{AB(0)}, v107, 4, v105
    v_xor_b32 v{AB(1)}, 64, v{AB(0)}
    """)
    A(f"""
    s_lshr_b32 s{S_T0}, s{S_W}, 1
    s_lshl_b32 s{S_T0}, s{S_T0}, 13
    s_add_u32 s{S_T0}, s{S_T0}, {KRING}
    v_lshl_add_u32 v105, v101, 8, s{S_T0}
    v_lshrrev_b32 v107, 1, v100
    v_and_b32 v108, 1, v100
    v_lshl_add_u32 v107, v108, 1, v107
    v_xor_b32 v107, v107, v101
    v_lshl_add_u32 v{AK(0)}, v107, 4, v105
    """)
    for s in range(1, 4):
        A(f"v_xor_b32 v{AK(s)}, {s << 6}, v{AK(0)}")
    A(f"""
    s_add_u32 s{S_T0}, s{S_T0}, {VRING - KRING}
    v_lshl_add_u32 v105, v100, 2, v102
    v_lshl_add_u32 v105, v105, 8, s{S_T0}
    v_lshl_add_u32 v105, v104, 3, v105
    v_lshl_add_u32 v105, v103, 4, v105
    v_lshl_add_u32 v{AV(0)}, v106, 5, v105
    """)
    for T in range(1, 8):
        A(f"v_xor_b32 v{AV(T)}, {T << 5}, v{AV(0)}")
    A(f"s_mov_b32 s{S_C}, {f32(1.4426950408889634 / 128 ** 0.5)}\ns_mov_b32 s{S_C + 1}, s{S_C}")
    A(f"s_mov_b32 s{S_T2}, {-3 * WSLOT}\ns_mov_b32 s{S_T3}, {-3 * BSLOT}\ns_mov_b32 s{S_SLOT}, 0")
    A([f"v_pk_mov_b32 {v2(r)}, 0, 0" for r in range(0, 96, 2)])
    A(f"""
    s_cmp_lg_u32 s{S_W}, 0
    s_cbranch_scc1 L_nocount
    s_lshl_b32 s{S_T0}, 1, s{S_XCC}
    v_mov_b32 v100, 1
    v_writelane_b32 v100, s{S_T0}, 1
    s_mov_b64 exec, 3
    s_waitcnt vmcnt(0)
    buffer_atomic_add v100, v{V_TMP}, {srd(sDBG)}, 0 offen
    s_mov_b64 exec, -1
    L_nocount:
    """)
    A("s_barrier")
    A(gemm_reads(0, 0, "q"))
    gemm_loop(P, tr, cfg, "q", "L_qloop", 16)
    A(k_reads(0))
    A(f"buffer_load_dword v{V_CHK}, v{V_TMP}, {srd(sDBG)}, 0 offen sc1")

    def q_frag(s):
        return ([f"v_pk_mul_f32 {v2(r)}, {v2(r)}, s[{S_C}:{S_C + 1}]" for r in range(24 * s, 24 * s + 24, 2)] + acc_to_frag(s)
                + [f"v_permlane16_swap_b32 v{QF(s, t) + h}, v{QF(s, t) + 2 + h}" for t in T3 for h in range(2)])

    qk0 = qk_mfma(True)
    qk0 = [qk0[kt * 12 + s * 3 + t] for s in range(4) for kt in range(2) for t in T3]
    zero = [f"v_pk_mov_b32 {v2(r)}, 0, 0" for r in range(0, 96, 2)]
    A(q_frag(0))
    A(weave(qk0, [(6 * s - 6 + k // 5, x) for s in range(1, 4) for k, x in enumerate(q_frag(s))] + spread(zero[:16], 18, 23)))
    A(zero[16:24])
    A(row_max())
    A(shift_scores())
    A([f"v_sub_f32 v{NM(t) + r}, 0, v{VD(t)}" for t in T3 for r in range(4)])
    A([f"v_pk_mov_b32 {v2(VL(t))}, 0, 0" for t in T3])
    A(exp_sum(cfg, 0, 0) + exp_sum(cfg, 0, 1))
    A("s_barrier")
    A(k_reads(1))
    A(zero[24:])

    rare = []

    def iteration(i):
        vr = [(3 * T + 2, x) for T in range(8) for x in v_reads(T, i)]
        waits = [(-1, "s_waitcnt lgkmcnt(6)"), (5, "s_waitcnt lgkmcnt(4)"), (23, "s_waitcnt lgkmcnt(4)"), (35, "s_waitcnt lgkmcnt(0)")]
        chkp = [f"v_cmp_lt_f32 vcc, s{S_C}, v{VX}", f"s_cbranch_vccnz L_up1_{i}", f"L_back1_{i}:"]
        late = exp_sum(cfg, 1, 0) + p_cvt(1, 0) + exp_sum(cfg, 1, 1) + p_cvt(1, 1)
        pre = p_cvt(0) + late[:8]
        cnt = [f"s_sub_u32 s{S_CNT}, s{S_CNT}, 1"] if i == 2 else []
        body = balance(qk_mfma() + pv_mfma(cfg), vr + waits[1:] + [(29, chkp[0]), (30, chkp[1]), (30, chkp[2])],
                       [(late[8:], 0, 11), (cnt + guard_max(0), 15, 23), (guard_max(1), 26, 28),
                        (exp_sum(cfg, 0, 0) + exp_sum(cfg, 0, 1), 31, 47)])
        fin = [f"s_cmp_lg_u32 s{S_FLAG}, 0", f"s_cbranch_scc1 L_up2_{i}", f"L_back2_{i}:"]
        up1 = ([f"L_up1_{i}:"] + row_max() + [f"v_max_f32 v{VD(t)}, 0, v{VD(t)}" for t in T3] + shift_scores()
               + [f"v_exp_f32 v{VA(t)}, -v{VD(t)}" for t in T3]
               + [f"v_sub_f32 v{NM(t) + r}, v{NM(t) + r}, v{VD(t)}" for t in T3 for r in range(4)]
               + [f"v_mul_f32 v{VL(t) + r}, v{VL(t) + r}, v{VA(t)}" for t in T3 for r in range(2)]
               + [f"s_mov_b32 s{S_FLAG}, 1", f"s_branch L_back1_{i}"])
        up2 = [f"L_up2_{i}:"] + rescale(VA) + [f"s_mov_b32 s{S_FLAG}, 0", f"s_branch L_back2_{i}"]
        rare.append((up1, up2))
        return pre + [waits[0][1]] + body + fin

    A(f"s_mov_b32 s{S_C}, {f32(cfg.thr)}\ns_mov_b32 s{S_CNT}, 5\ns_mov_b32 s{S_FLAG}, 0\ns_branch L_aenter\n.p2align 3")
    top = P.add(["L_aloop:", "s_barrier"] + k_reads(1) + ["L_aenter:"])
    body = P.add(iteration(0) + ["s_barrier"] + k_reads(2) + iteration(1) + ["s_barrier"] + k_reads(0) + iteration(2)
                 + [f"s_cmp_lg_u32 s{S_CNT}, 0", "s_cbranch_scc1 L_aloop"])
    tr.extend(body + top + body)
    A(exp_sum(cfg, 1, 0) + exp_sum(cfg, 1, 1))
    A([f"v_add_f32 v{VL(t)}, v{VL(t)}, v{VL(t) + 1}" for t in T3])
    A(xlane("v_add_f32", [VL(t) for t in T3], [VT(t) for t in T3]))
    A([f"v_rcp_f32 v{VL(t)}, v{VL(t)}" for t in T3])
    A([f"v_mov_b32 v{VL(t) + 1}, v{VL(t)}" for t in T3])
    A([f"v_pk_mul_f32 {v2(SS(kt, t) + r)}, {v2(SS(kt, t) + r)}, {v2(VL(t))}" for kt in range(2) for t in T3 for r in (0, 2)])
    A(p_cvt(0) + p_cvt(1))
    A([f"v_pk_mul_f32 {v2(ACC(T, t) + r)}, {v2(ACC(T, t) + r)}, {v2(VL(t))}" for T in range(8) for t in T3 for r in (0, 2)])
    A(f"s_mov_b32 s{S_SPIN}, 0")
    chk = P.add(f"""L_chk:
    s_waitcnt vmcnt(0)
    v_readlane_b32 s{S_T0}, v{V_CHK}, 0
    v_readlane_b32 s{S_T1}, v{V_CHK}, 1
    s_cmp_ge_u32 s{S_T0}, 0x100
    s_cbranch_scc1 L_chk_done
    buffer_load_dword v{V_CHK}, v{V_TMP}, {srd(sDBG)}, 0 offen sc1
    s_add_u32 s{S_SPIN}, s{S_SPIN}, 1
    s_cmp_lt_u32 s{S_SPIN}, {SPIN_MAX}
    s_cbranch_scc1 L_chk""")
    tr.extend(chk + chk)
    A(f"""L_chk_done:
    s_lshl_b32 s{S_T0}, 8, s{S_XCC}
    s_cmp_eq_u32 s{S_T0}, s{S_T1}
    s_cselect_b32 s{S_FLAG}, 1, 0""")
    A(f"""
    {lane_id(V_TMP)}
    s_lshl_b32 s{S_T0}, s{S_HG}, 6
    v_and_b32 v{AW(0)}, 0xfff, v{AV(0)}
    v_xor_b32 v{AW(0)}, s{S_T0}, v{AW(0)}
    """)
    for T in range(1, 8):
        A(f"v_xor_b32 v{AW(T)}, {T << 5}, v{AW(0)}")
    A(f"""
    s_add_u32 s{S_T0}, s{S_LWB}, {BRING}
    v_lshl_add_u32 v{AB(0)}, v{V_TMP}, 4, s{S_T0}
    s_mul_i32 s{S_T0}, s{S_GRP}, 393216
    s_mul_i32 s{S_T1}, s{S_J}, 49152
    s_add_u32 s{S_T0}, s{S_T0}, s{S_T1}
    s_add_u32 s{S_T0}, s{S_T0}, s{S_LWB}
    v_lshl_add_u32 v{AB(1)}, v{V_TMP}, 4, s{S_T0}
    s_andn2_b32 s{S_T0}, s2, 0x38
    s_lshl_b32 s{S_T0}, s{S_T0}, 13
    s_lshl_b32 s{S_T1}, s{S_J}, 2
    s_add_u32 s{S_T0}, s{S_T0}, s{S_T1}
    s_lshl_b32 s{S_T1}, s{S_W}, 7
    s_add_u32 s{S_T0}, s{S_T0}, s{S_T1}
    s_add_u32 s{S_T0}, s{S_T0}, {WS_INBOX}
    v_lshl_add_u32 v{AK(0)}, v{V_TMP}, 16, s{S_T0}
    v_mov_b32 v{AK(1)}, 1
    """)

    def publish(name, lines):
        if not cfg.local:
            return [x + " sc1" for x in lines]
        return ([f"s_cmp_eq_u32 s{S_FLAG}, 1", f"s_cbranch_scc1 L_{name}_l"] + [x + " sc1" for x in lines]
                + [f"s_branch L_{name}_j", f"L_{name}_l:"] + lines + [f"L_{name}_j:"])

    def o_out(s):
        return (acc_to_frag(s) + [f"s_mov_b32 s{S_T0}, {(s >> 1) * 24576 + (s & 1) * 3072}"]
                + publish(f"o{s}", [f"buffer_store_dwordx4 {v4(QF(s, t))}, v{AB(1)}, {srd(sWS)}, s{S_T0} offen offset:{t * 1024}" for t in T3]))

    if cfg.otouch:
        A(f"""s_cmp_eq_u32 s{S_FLAG}, 1
        s_cbranch_scc0 L_notouch
        v_mul_u32_u24 v{VX}, 0x70, v{V_TMP}
        v_add_u32 v{VX}, v{VX}, v{AB(1)}
        s_mov_b32 s{S_T0}, 24576
        s_mov_b32 exec_hi, 0xffff
        buffer_load_dword v{VX + 1}, v{VX}, {srd(sWS)}, 0 offen sc1
        buffer_load_dword v{VX + 1}, v{VX}, {srd(sWS)}, s{S_T0} offen sc1
        s_mov_b64 exec, -1
        L_notouch:""")
    A("s_barrier")
    A([x for T in range(8) for x in v_reads(T, 15)])
    fill = []
    for s in range(3):
        o = o_out(s)
        fill += spread(o[:12], 6 * s + 7, 6 * s + 11) + [(6 * s + 11, x) for x in o[12:]]
    A(weave(pv_mfma(cfg), fill))
    A(o_out(3))
    stamp()
    flag = (["s_waitcnt vmcnt(0)", "s_mov_b64 exec, 0xff"]
            + publish("f", [f"buffer_store_dword v{AK(1)}, v{AK(0)}, {srd(sWS)}, 0 offen"]) + ["s_mov_b64 exec, -1"])
    if cfg.flag_after < 0:
        A(flag)
        stamp()
    A("s_barrier")
    A(gemm_reads(0, 0, "o", with_b=False))
    wstep = [f"v_add_u32 v{AW(T)}, {WSLOT}, v{AW(T)}" for T in range(8)]
    for hs in range(4):
        if hs == cfg.flag_after:
            A(flag)
            stamp()
        fill = []
        if hs < 3:
            fill += spread(gemm_reads((hs + 1) & 1, (hs + 1) & 1, "o", with_b=False), 0, 15)
        if hs in (0, 2):
            fill += spread(wstep, 16, 23)
        A(weave(gemm_mfma(cfg, hs & 1, bsrc=lambda t: QF(hs, t), zero=(hs == 0)), fill))
    A(f"""
    s_mul_i32 s{S_T0}, s{S_W}, 9216
    s_add_u32 s{S_T0}, s{S_T0}, {WS_X}
    v_lshl_add_u32 v{AB(1)}, v{V_TMP}, 4, s{S_T0}
    v_and_b32 v{AK(3)}, 3, v{V_TMP}
    s_lshl_b32 s{S_T0}, s{S_W}, 9
    s_add_u32 s{S_T0}, s{S_T0}, {WS_INBOX + 4096}
    v_lshl_add_u32 v{AK(2)}, v{AK(3)}, 7, s{S_T0}
    v_xor_b32 v{AK(0)}, s2, v{AK(3)}
    v_lshl_add_u32 v{AK(0)}, v{AK(0)}, 13, v{AK(2)}
    v_max_u32 v{AK(3)}, 1, v{AK(3)}
    s_lshl_b32 s{S_T1}, s2, 13
    s_add_u32 s{S_T0}, s{S_T0}, s{S_T1}
    v_lshl_add_u32 v{AK(2)}, v{AK(3)}, 7, s{S_T0}
    v_and_b32 v{AV(0)}, 15, v{V_TMP}
    v_bfe_u32 v{AV(1)}, v{V_TMP}, 4, 1
    v_bfe_u32 v{AV(2)}, v{V_TMP}, 5, 1
    s_mul_i32 s{S_T0}, s{S_BP}, 192
    s_mul_i32 s{S_T1}, s{S_W}, 48
    s_add_u32 s{S_T0}, s{S_T0}, s{S_T1}
    s_lshl_b32 s{S_T0}, s{S_T0}, 12
    s_lshl_b32 s{S_T1}, s{S_BLK}, 11
    s_add_u32 s{S_T0}, s{S_T0}, s{S_T1}
    s_lshl_b32 s{S_T1}, s{S_NU}, 8
    s_add_u32 s{S_T0}, s{S_T0}, s{S_T1}
    s_lshl_b32 s{S_T1}, s{S_HG}, 6
    s_add_u32 s{S_T0}, s{S_T0}, s{S_T1}
    v_lshl_add_u32 v{AV(0)}, v{AV(0)}, 12, s{S_T0}
    v_lshl_add_u32 v{AV(0)}, v{AV(1)}, 5, v{AV(0)}
    v_lshl_add_u32 v{AV(0)}, v{AV(2)}, 4, v{AV(0)}
    s_mov_b32 s{S_SLOT}, 2
    """)
    A("s_barrier")
    A(gemm_reads(0, 0, "o"))
    gemm_loop(P, tr, cfg, "o", "L_oloop", 14)
    stamp()
    for i in range(1, 4):
        A(f"""s_xor_b32 s{S_T0}, s2, {i}
        s_mul_i32 s{S_T0}, s{S_T0}, 36864
        s_add_u32 s{S_T0}, s{S_T0}, {(i - 1) * 3072}""")
        A(acc_to_frag(i))
        A([f"buffer_store_dwordx4 {v4(QF(i, t))}, v{AB(1)}, {srd(sWS)}, s{S_T0} offen offset:{t * 1024} sc1" for t in T3])
    A(["s_waitcnt vmcnt(0)", "s_mov_b64 exec, 14", f"buffer_store_dword v{AK(1)}, v{AK(0)}, {srd(sWS)}, 0 offen sc1", "s_mov_b64 exec, -1"])
    stamp()
    poll_loop(P, tr, "poll2", V_CHK, AK(2))
    stamp()
    A(f"s_mul_i32 s{S_T0}, s2, 36864")
    for k in range(9):
        if k and k % 4 == 0:
            A(f"s_add_u32 s{S_T0}, s{S_T0}, 4096")
        A(f"buffer_load_dwordx4 {v4(24 + 4 * k)}, v{AB(1)}, {srd(sWS)}, s{S_T0} offen offset:{(k % 4) * 1024} sc1")
    for k in range(9):
        t = k % 3
        for d in range(4):
            src, dst = 24 + 4 * k + d, ACC(d >> 1, t) + 2 * (d & 1)
            A(f"""v_lshlrev_b32 v64, 16, v{src}
            v_and_b32 v65, 0xffff0000, v{src}
            v_pk_add_f32 {v2(dst)}, {v2(dst)}, v[64:65]""")
    A(acc_to_frag(0))
    A([f"v_permlane16_swap_b32 v{QF(0, t) + h}, v{QF(0, t) + 2 + h}" for t in T3 for h in range(2)])
    for t in T3:
        A(f"s_mov_b32 s{S_T0}, {t * 65536}\nbuffer_store_dwordx4 {v4(QF(0, t))}, v{AV(0)}, {srd(sOUT)}, s{S_T0} offen")
    if cfg.stamps:
        A("s_waitcnt vmcnt(0)")
        stamp()
        A(f"v_mov_b32 v1, 0")
        for k in range(nst[0]):
            A(f"v_writelane_b32 v1, s{S_ST + 2 * k}, {k}")
        A(f"""s_lshl_b32 s{S_T0}, s2, 3
        s_add_u32 s{S_T0}, s{S_T0}, s{S_WAVE}
        s_lshl_b32 s{S_T0}, s{S_T0}, 8
        s_add_u32 s{S_T0}, s{S_T0}, {WS_STAMP}
        v_lshl_add_u32 v2, v{V_TMP}, 2, s{S_T0}
        buffer_store_dword v1, v2, {srd(sWS)}, 0 offen""")
    A("L_exit:\ns_endpgm")
    blocks = {}
    for up1, up2 in rare:
        for blk in (up1, up2):
            blocks[blk[0][:-1]] = P.add(blk)
    tr2 = []
    for ins in tr:
        tr2.append(ins)
        if ins.op.startswith("s_cbranch") and ins.text.split()[1] in blocks:
            tr2 += blocks[ins.text.split()[1]]
    return tr, tr2


def generate(cfg):
    P = Prog()
    pre = P.add("s_cmp_ge_u32 s2, 256\ns_cbranch_scc1 L_exit")
    if cfg.remap:
        pre += P.add("""s_bfe_u32 s4, s2, 0x20003
        s_lshr_b32 s5, s2, 5
        s_and_b32 s2, s2, 7
        s_lshl_b32 s4, s4, 6
        s_lshl_b32 s5, s5, 3
        s_or_b32 s2, s2, s4
        s_or_b32 s2, s2, s5""")
    pre += prologue(P, cfg)
    tc, tc2 = compute(P, cfg)
    tl = loader(P, cfg)
    body = P.finish([pre + tc, pre + tc2] + [pre + t for t in tl])
    if cfg.align:
        body = align8(body)
    return (HEADER + "; @launch grid=(256,1,1) block=(512,1,1) lds=163840\n"
            + '.amdgcn_target "amdgcn-amd-amdhsa--gfx950"\n.text\n'
            + f".globl {NAME}_kernel\n.p2align 8\n.type {NAME}_kernel,@function\n{NAME}_kernel:\n" + body
            + f""".section .rodata,"a"
.p2align 6
.amdhsa_kernel {NAME}_kernel
  .amdhsa_next_free_vgpr 256
  .amdhsa_next_free_sgpr 102
  .amdhsa_accum_offset 256
  .amdhsa_group_segment_fixed_size 0
  .amdhsa_kernarg_size 104
  .amdhsa_user_sgpr_count 2
  .amdhsa_user_sgpr_kernarg_segment_ptr 1
  .amdhsa_system_sgpr_workgroup_id_x 1
  .amdhsa_float_denorm_mode_32 3
.end_amdhsa_kernel
""")


def parse(args):
    kw = {}
    for a in args:
        k, v = a.split("=")
        kw[k] = float(v) if k == "thr" else (int(v) if v.lstrip("-").isdigit() and k != "pre" else v.replace("+", " "))
    return Cfg(**kw)


if __name__ == "__main__":
    open(sys.argv[1], "w").write(generate(parse(sys.argv[2:])))
```

```python
import struct, sys
from asmlib import Prog, weave, spread, balance, align8

NAME = "concat_heads__mha_block_cached__gqa_block_cached__near_ridge"
HEADER = open("cdna_kernels/" + NAME + ".s.ref").read().split("; Override launch")[0]

WS_O, WS_X, WS_INBOX, WS_STAMP, WS_DUMP = 0, 16 << 20, 48 << 20, 200 << 20, 64 << 20
WRING, BRING, KRING, VRING = 0, 65536, 65536, 114688
WSLOT, BSLOT, ASLOT = 16384, 24576, 16384
SPIN_MAX = 200000
T3 = range(3)

S_WAVE, sX, sK, sV, sWQ, sWO, sOUT, sWS, sDBG = 3, 20, 24, 28, 32, 36, 40, 44, 48
S_BLK, S_HG, S_J, S_BP, S_NU, S_W, S_H, S_DB = 52, 53, 54, 55, 56, 57, 58, 59
S_T0, S_T1, S_T2, S_T3, S_CNT, S_DW, S_C, S_SLOT = 60, 61, 62, 63, 64, 65, 66, 68
S_LWB, S_LWW, S_ROT, S_J2, S_SPIN, S_FLAG, S_XCC, S_GRP = 69, 70, 71, 72, 73, 74, 75, 76
S_MASK, S_PC = 77, 78
S_ST = 80
srd = lambda r: f"s[{r}:{r+3}]"
v4 = lambda r: f"v[{r}:{r+3}]"
v2 = lambda r: f"v[{r}:{r+1}]"
f32 = lambda x: "0x%08x" % struct.unpack("<I", struct.pack("<f", x))[0]
MFMA = "v_mfma_f32_16x16x32_bf16"

ACC = lambda T, t: (T * 3 + t) * 4
QF = lambda s, t: 96 + (s * 3 + t) * 4
FA = lambda b, T: 144 + 44 * b + 4 * T
FB = lambda b, t: 144 + 44 * b + 32 + 4 * t
AW = lambda T: 232 + T
AB = lambda s: 240 + s
V_CHK, V_TMP = 242, 243
FR = lambda f: 144 + 4 * f
SS = lambda kt, t: 176 + (kt * 3 + t) * 4
PP = lambda t: 200 + 4 * t
NM = lambda t: 212 + 4 * t
VL = lambda t: 224 + 2 * t
VX = 230
VD = lambda t: 232 + t
VT = lambda k: 235 + k
VA = lambda t: 238 + t
AK = lambda s: 244 + s
AV = lambda T: 248 + T


class Cfg:
    def __init__(self, **kw):
        self.pol_x = ""
        self.pol_wq = ""
        self.pol_kv = "nt"
        self.pol_wo = ""
        self.pol_ob = "sc1"
        self.rot = 1
        self.stamps = 0
        self.flag_after = 1
        self.pre = ""
        self.last = 30
        self.win = 6
        self.win16 = 10
        self.wo_at = "31.31.33.33"
        self.qd = 1
        self.thr = 8.0
        self.local = 1
        self.pk = 0
        self.snake = 1
        self.align = 1
        self.prio = 0
        self.remap = 0
        self.nurot = 1
        self.otouch = 0
        self.stag = 0
        self.s1pre = 36
        self.s1win = 8
        self.s0win = 8
        self.s0late = 8
        self.s0sw = 28
        self.prog = 0
        self.pre1 = ''
        self.tag = 0
        self.oclear = 0
        self.promote = 0
        self.pol_out = ''
        self.ptouch = ''
        self.wb = 0
        self.wbmask = 0xf8
        self.oord = 0
        self.od = 1
        self.ctouch = 0
        self.count_at = 12
        self.chk_max = SPIN_MAX
        self.__dict__.update(kw)


def lane_id(v):
    return f"v_mbcnt_lo_u32_b32 v{v}, -1, 0\nv_mbcnt_hi_u32_b32 v{v}, -1, v{v}"


def make_srd(items):
    return "\n".join(f"s_mov_b32 s{r}, s{p}\ns_mov_b32 s{r+1}, s{p+1}\ns_mov_b32 s{r+2}, {n}\ns_mov_b32 s{r+3}, 0x20000" for r, p, n in items)


def prologue(P, cfg):
    return P.add(f"""
    s_bfe_u32 s{S_BLK}, s2, 0x10002
    s_mul_i32 s{S_T0}, s{S_BLK}, 40
    s_load_dwordx8 s[4:11], s[0:1], s{S_T0}
    s_add_u32 s{S_T1}, s{S_T0}, 32
    s_load_dwordx2 s[12:13], s[0:1], s{S_T1}
    s_load_dwordx4 s[16:19], s[0:1], 88
    s_load_dwordx2 s[14:15], s[0:1], 80
    v_lshrrev_b32 v1, 6, v0
    v_and_b32 v0, 63, v0
    s_and_b32 s{S_HG}, s2, 3
    v_readfirstlane_b32 s{S_WAVE}, v1
    s_bfe_u32 s{S_J}, s2, 0x30003
    s_lshr_b32 s{S_BP}, s2, 6
    s_lshl_b32 s{S_H}, s{S_HG}, 3
    s_add_u32 s{S_H}, s{S_H}, s{S_J}
    s_and_b32 s{S_W}, s{S_WAVE}, 3
    s_mul_i32 s{S_LWB}, s{S_W}, 6144
    s_lshl_b32 s{S_LWW}, s{S_W}, 12
    s_cmp_lt_u32 s{S_WAVE}, 4
    s_cbranch_scc1 L_compute
    """)


def late_ids(cfg):
    return f"""s_mul_i32 s{S_NU}, s{S_BP}, {2 * cfg.nurot}
    s_add_u32 s{S_NU}, s{S_NU}, s{S_J}
    s_and_b32 s{S_NU}, s{S_NU}, 7
    s_and_b32 s{S_GRP}, s2, 7
    s_lshl_b32 s{S_T1}, s{S_BP}, 3
    s_add_u32 s{S_GRP}, s{S_GRP}, s{S_T1}"""


def code_touch(lane, vaddr, vdst):
    return f"""s_lshr_b32 s{S_T0}, s2, 3
    s_lshl_b32 s{S_T0}, s{S_T0}, 10
    v_and_b32 v{vaddr}, 7, v{lane}
    v_lshl_add_u32 v{vaddr}, v{vaddr}, 7, s{S_T0}
    v_min_u32 v{vaddr}, L_text_end-L_text-4, v{vaddr}
    global_load_dword v{vdst}, v{vaddr}, s[{S_PC}:{S_PC + 1}]"""


def poll_loop(P, tr, name, vdst, vaddr):
    tr.extend(P.add(f"s_mov_b32 s{S_SPIN}, 0"))
    loop = P.add(f"""L_{name}:
    buffer_load_dword v{vdst}, v{vaddr}, {srd(sWS)}, 0 offen sc1
    s_add_u32 s{S_SPIN}, s{S_SPIN}, 1
    s_cmp_ge_u32 s{S_SPIN}, {SPIN_MAX}
    s_cbranch_scc1 L_{name}_done
    s_waitcnt vmcnt(0)
    v_cmp_ne_u32 vcc, 1, v{vdst}
    s_cbranch_vccnz L_{name}""")
    tr.extend(loop + loop)
    tr.extend(P.add(f"L_{name}_done:"))


LX = lambda p: 8 + p
LW = lambda p: 14 + p
LK = lambda p: 18 + p
LV = lambda p: 22 + p
LWO = lambda p: 24 + p
LOB, LFLAG, LSTAMP, LPOLL = 28, 29, 30, 31
LDSW = lambda h: 1 + h
LTQ, LTO = 32, 33
LPOOL = 36


def late_setup(A):
    A(f"""
    s_lshr_b32 s{S_T0}, s{S_W}, 1
    s_lshl_b32 s{S_T1}, s{S_BP}, 1
    s_add_u32 s{S_T0}, s{S_T0}, s{S_T1}
    s_lshl_b32 s{S_T0}, s{S_T0}, 5
    s_add_u32 s{S_T0}, s{S_T0}, s{S_H}
    s_lshl_b32 s{S_T0}, s{S_T0}, 17
    s_and_b32 s{S_T1}, s{S_W}, 1
    s_lshl_b32 s{S_T1}, s{S_T1}, 12
    s_add_u32 s{S_T0}, s{S_T0}, s{S_T1}
    v_lshl_add_u32 v5, v1, 8, s{S_T0}
    v_xor_b32 v7, v2, v1
    """)
    for p in range(4):
        A(f"v_xor_b32 v3, {4 * p}, v7\nv_lshl_add_u32 v{LK(p)}, v3, 4, v5")
    A(f"""
    v_lshl_add_u32 v{LV(0)}, v6, 4, v5
    v_xor_b32 v7, 8, v6
    v_lshl_add_u32 v{LV(1)}, v7, 4, v5
    s_lshl_b32 s{S_T0}, s{S_HG}, 21
    s_lshl_b32 s{S_T1}, s{S_W}, 15
    s_add_u32 s{S_T0}, s{S_T0}, s{S_T1}
    s_lshl_b32 s{S_T1}, s{S_NU}, 8
    s_add_u32 s{S_T0}, s{S_T0}, s{S_T1}
    v_lshl_add_u32 v5, v1, 11, s{S_T0}
    v_add_u32 v{LTO}, s{S_T0}, v{LTO}
    v_lshl_add_u32 v{LWO(0)}, v6, 4, v5
    v_lshl_add_u32 v7, v7, 4, v5
    v_add_u32 v{LWO(1)}, {8192 - 1024}, v7
    v_add_u32 v{LWO(2)}, {2 * 8192 - 2048}, v{LWO(0)}
    v_add_u32 v{LWO(3)}, {3 * 8192 - 3072}, v7
    s_mul_i32 s{S_T0}, s{S_GRP}, 393216
    s_add_u32 s{S_T0}, s{S_T0}, s{S_LWB}
    v_lshl_add_u32 v{LOB}, v0, 4, s{S_T0}
    s_lshl_b32 s{S_T0}, s2, 13
    s_lshl_b32 s{S_T1}, s{S_W}, 7
    s_add_u32 s{S_T0}, s{S_T0}, s{S_T1}
    s_add_u32 s{S_T0}, s{S_T0}, {WS_INBOX}
    v_lshl_add_u32 v{LFLAG}, v4, 2, s{S_T0}
    s_lshl_b32 s{S_J2}, s{S_J}, 1
    s_add_u32 s{S_T0}, s{S_LWW}, {KRING}
    v_lshl_add_u32 v{LDSW(0)}, v0, 4, s{S_T0}
    v_add_u32 v{LDSW(1)}, {VRING - KRING}, v{LDSW(0)}
    """)


def loader(P, cfg):
    tr = []
    A = lambda t: tr.extend(P.add(t))
    A(f"""
    v_lshrrev_b32 v1, 4, v0
    v_and_b32 v2, 15, v0
    v_lshrrev_b32 v3, 3, v0
    v_and_b32 v4, 7, v0
    s_mul_i32 s{S_T0}, s{S_BP}, 192
    s_mul_i32 s{S_T1}, s{S_W}, 48
    s_add_u32 s{S_T0}, s{S_T0}, s{S_T1}
    s_lshl_b32 s{S_T0}, s{S_T0}, 11
    v_lshl_add_u32 v5, v3, 11, s{S_T0}
    v_xor_b32 v6, v4, v1
    v_lshl_add_u32 v{LX(0)}, v6, 4, v5
    v_xor_b32 v6, 4, v6
    v_lshl_add_u32 v7, v6, 4, v5
    """)
    for p in range(1, 6):
        A(f"v_add_u32 v{LX(p)}, {p * 16384 - (p % 4) * 1024}, v{7 if p & 1 else LX(0)}")
    A(f"""
    s_lshl_b32 s{S_T0}, s{S_W}, 17
    s_lshl_b32 s{S_T1}, s{S_H}, 8
    s_add_u32 s{S_T0}, s{S_T0}, s{S_T1}
    v_lshl_add_u32 v5, v1, 13, s{S_T0}
    v_lshlrev_b32 v6, 1, v1
    v_xor_b32 v6, v6, v2
    v_lshl_add_u32 v{LW(0)}, v6, 4, v5
    v_xor_b32 v7, 8, v6
    v_lshl_add_u32 v7, v7, 4, v5
    v_add_u32 v{LW(1)}, {32768 - 1024}, v{LW(0)}
    v_add_u32 v{LW(2)}, {2 * 32768 - 2048}, v7
    v_add_u32 v{LW(3)}, {3 * 32768 - 3072}, v7
    """)
    if cfg.rot == 1:
        A(f"s_add_u32 s{S_ROT}, s{S_BP}, s{S_J}\ns_and_b32 s{S_ROT}, s{S_ROT}, 3\ns_lshl_b32 s{S_ROT}, s{S_ROT}, 2")
    elif cfg.rot == 2:
        A(f"s_add_u32 s{S_ROT}, s{S_BP}, s{S_J}\ns_and_b32 s{S_ROT}, s{S_ROT}, 1\ns_lshl_b32 s{S_ROT}, s{S_ROT}, 3")
    elif cfg.rot == 3:
        A(f"s_lshl_b32 s{S_ROT}, s{S_HG}, 2")
    elif cfg.rot == 4:
        A(f"s_lshl_b32 s{S_ROT}, s{S_BP}, 2")
    elif cfg.rot == 5:
        A(f"s_lshl_b32 s{S_ROT}, s{S_J}, 1")
    elif cfg.rot == 6:
        A(f"s_and_b32 s{S_ROT}, s{S_J}, 3\ns_lshl_b32 s{S_ROT}, s{S_ROT}, 2")
    else:
        A(f"s_mov_b32 s{S_ROT}, 0")
    A(f"""
    v_bfe_u32 v7, v0, 1, 4
    v_and_b32 v5, 1, v0
    v_lshlrev_b32 v5, 7, v5
    v_lshl_add_u32 v{LTO}, v7, 11, v5
    v_lshl_add_u32 v{LTQ}, v7, 13, v5
    v_add_u32 v{LTQ}, s{S_T0}, v{LTQ}
    """)
    A("s_waitcnt lgkmcnt(0)")
    A(make_srd(((sWQ, 10, 8 << 20), (sX, 4, 768 * 2048))))
    q0 = []
    if cfg.stamps:
        A(f"v_mov_b32 v{LSTAMP}, 0")
        A(loader_stamp(0))
    if not cfg.stag:
        for n in range(2):
            for text, isload in q_stage(cfg, n):
                A(text)
                if isload:
                    q0.append(n)
    A(make_srd(((sK, 6, 32 << 20), (sV, 8, 32 << 20), (sWO, 12, 8 << 20), (sWS, 18, 256 << 20))))
    A(late_ids(cfg))
    late_setup(A)
    if cfg.pre1:
        A(f"s_bitcmp1_b32 s{S_BP}, 0\ns_cbranch_scc1 L_late")
        t0 = loader_role(P, cfg, list(tr), q0, None, cfg.pre, "a")
        return [t0, loader_role(P, cfg, list(tr) + P.add("L_late:"), q0, None, cfg.pre1, "b")]
    if not cfg.stag:
        return [loader_role(P, cfg, tr, q0, None, cfg.pre)]
    A(f"s_cmp_ge_u32 s{S_BP}, 2\ns_cbranch_scc1 L_late")
    t0 = loader_role(P, cfg, list(tr), q0, 0)
    return [t0, loader_role(P, cfg, list(tr) + P.add("L_late:"), q0, 1)]


def loader_stamp(n):
    return (f"s_memrealtime s[{S_ST}:{S_ST+1}]\ns_memtime s[{S_ST+2}:{S_ST+3}]\ns_cmp_eq_u32 s{S_W}, 1\ns_waitcnt lgkmcnt(0)\n"
            f"s_cselect_b32 s{S_ST+4}, s{S_ST+2}, s{S_ST}\nv_writelane_b32 v{LSTAMP}, s{S_ST+4}, {n}")


def q_stage(cfg, n):
    dma = lambda vreg, sr, so, imm, pol: (f"buffer_load_dwordx4 v{vreg}, {srd(sr)}, s{so} offen offset:{imm} {pol} lds", True)
    first = cfg.promote & 1 and n < 4
    o = [(f"""s_add_u32 s{S_T0}, s{S_ROT}, {n}
    s_add_u32 m0, s{S_LWW}, {WRING + (n % 4) * WSLOT}
    s_and_b32 s{S_T0}, s{S_T0}, 15
    s_lshl_b32 s{S_T1}, s{S_T0}, 19""", False)]
    o += [dma(LW(p), sWQ, S_T1, p * 1024, "nt" if first else cfg.pol_wq) for p in range(4)]
    if first:
        o.append((f"buffer_load_dword v{LPOLL}, v{LTQ}, {srd(sWQ)}, s{S_T1} offen", True))
    o.append((f"s_add_u32 m0, s{S_LWB}, {BRING + (n % 4) * BSLOT}\ns_lshl_b32 s{S_T0}, s{S_T0}, 7", False))
    o += [dma(LX(p), sX, S_T0, p * 1024, cfg.pol_x) for p in range(4)]
    o.append((f"s_add_u32 m0, s{S_LWB}, {BRING + (n % 4) * BSLOT + 4096}", False))
    o += [dma(LX(p), sX, S_T0, (p - 4) * 1024, cfg.pol_x) for p in range(4, 6)]
    return o


def loader_role(P, cfg, tr, q0, role, pre="", sfx=""):
    A = lambda t: tr.extend(P.add(t))
    sfx += "" if role is None else str(role)
    q = list(q0)

    def throttle(win):
        win = win or 56
        if win and len(q) >= win:
            A(f"s_waitcnt vmcnt({win - 1})")
            del q[:len(q) - (win - 1)]

    def dma(vreg, s, soff, imm, pol, tag, win=0):
        throttle(win)
        A(f"buffer_load_dwordx4 v{vreg}, {srd(s)}, {soff} offen offset:{imm} {pol} lds")
        q.append(tag)

    def wait(tag):
        if tag in q:
            idx = max(k for k, x in enumerate(q) if x == tag)
            A(f"s_waitcnt vmcnt({len(q) - 1 - idx})")
            del q[:idx + 1]

    def issue_q(n):
        for text, isload in q_stage(cfg, n):
            if isload:
                throttle(0)
                q.append(n)
            A(text)

    kv = []
    for e in range(17):
        if e <= 15:
            kv += [(16 + e, 0, e, p) for p in range(4)]
        if e >= 1:
            kv += [(16 + e, 1, e - 1, p) for p in range(4)]
    pool = list(range(LPOOL, 256, 4))
    parked = []
    state = dict(next=0, m0=None, soff=None, lds=False)

    def issue_kv(upto, k, win):
        state["m0"] = state["soff"] = None
        while state["next"] < upto:
            stage, isv, tile, p = kv[state["next"]]
            state["next"] += 1
            vo, sr = (LV(p & 1), sV) if isv else (LK(p), sK)
            if stage <= k + 2 and state["m0"] != (stage, isv):
                A(f"s_add_u32 m0, s{S_LWW}, {(VRING if isv else KRING) + (tile % 3) * ASLOT}")
                state["m0"] = (stage, isv)
            if state["soff"] != tile:
                A(f"s_mov_b32 s{S_T0}, {tile * 8192}")
                state["soff"] = tile
            if stage <= k + 2:
                dma(vo, sr, f"s{S_T0}", p * 1024, cfg.pol_kv, stage, win)
            else:
                r = pool.pop(0)
                throttle(win)
                A(f"buffer_load_dwordx4 {v4(r)}, v{vo}, {srd(sr)}, s{S_T0} offen offset:{p * 1024} {cfg.pol_kv}")
                q.append(("r", r))
                parked.append((stage, isv, tile, p, r))

    def unpark(k):
        while parked and parked[0][0] <= k + 2:
            stage, isv, tile, p, r = parked.pop(0)
            wait(("r", r))
            A(f"ds_write_b128 v{LDSW(isv)}, {v4(r)} offset:{(tile % 3) * ASLOT + p * 1024}")
            pool.append(r)
            state["lds"] = True

    def o_index(m):
        if m < 2 or not cfg.oord:
            return f"s_add_u32 s{S_T0}, s{S_J2}, {m}"
        return f"""s_cmp_gt_u32 s{S_T3}, {(m - 2) // 2}
        s_cselect_b32 s{S_T0}, {m - 2}, {m}
        s_add_u32 s{S_T0}, s{S_T0}, s{S_T2}"""

    def issue_ow(m, tag, win=0):
        A(f"""{o_index(m)}
        s_add_u32 m0, s{S_LWW}, {WRING + (m % 4) * WSLOT}
        s_and_b32 s{S_T0}, s{S_T0}, 15
        s_lshl_b32 s{S_T1}, s{S_T0}, 17""")
        first = cfg.promote & 2 and m < 4
        for p in range(4):
            dma(LWO(p), sWO, f"s{S_T1}", p * 1024, "nt" if first else cfg.pol_wo, tag, 0 if first else win)
        if first:
            A(f"buffer_load_dword v{LPOLL}, v{LTO}, {srd(sWO)}, s{S_T1} offen")
            q.append("t")

    def issue_ob(m, tag):
        A(f"""{o_index(m)}
        s_add_u32 m0, s{S_LWB}, {BRING + ((m - 2) % 4) * BSLOT}
        s_and_b32 s{S_T0}, s{S_T0}, 15
        s_mul_i32 s{S_T0}, s{S_T0}, 24576""")
        for p in range(4):
            dma(LOB, sWS, f"s{S_T0}", p * 1024, cfg.pol_ob, tag)
        A(f"s_add_u32 m0, s{S_LWB}, {BRING + ((m - 2) % 4) * BSLOT + 4096}\ns_add_u32 s{S_T1}, s{S_T0}, 4096")
        for p in range(2):
            dma(LOB, sWS, f"s{S_T1}", p * 1024, cfg.pol_ob, tag)

    nst = [1]

    def stamp():
        if cfg.stamps:
            A(loader_stamp(nst[0]))
            nst[0] += 1

    def barrier():
        if state["lds"]:
            A("s_waitcnt lgkmcnt(0)")
            state["lds"] = False
        A("s_barrier")
        stamp()

    end = lambda n: 0 if n < 16 else min(128, 4 + 8 * (n - 16))
    pre = [int(x) for x in str(pre).split(".")] if pre else []
    pre = [0] * (17 - len(pre)) + pre
    wo_at = [int(x) for x in str(cfg.wo_at).split(".")]
    wtag = lambda m: 33 if m < 2 else 33 + m
    if role == 1:
        A(f"""
        s_lshr_b32 s{S_T0}, s2, 3
        s_and_b32 s{S_T0}, s{S_T0}, 15
        s_lshl_b32 s{S_T0}, s{S_T0}, 2
        s_add_u32 s{S_T0}, s{S_T0}, s{S_W}
        s_lshl_b32 s{S_T1}, s{S_T0}, 13
        s_lshl_b32 s{S_T2}, s{S_HG}, 11
        s_add_u32 s{S_T1}, s{S_T1}, s{S_T2}
        v_lshrrev_b32 v3, 4, v0
        v_and_b32 v4, 15, v0
        v_lshl_add_u32 v5, v3, 19, s{S_T1}
        v_lshl_add_u32 v5, v4, 7, v5
        s_mul_i32 s{S_T1}, s{S_T0}, {6 * 2048}
        v_lshrrev_b32 v3, 3, v0
        v_min_u32 v3, 5, v3
        v_and_b32 v4, 7, v0
        v_lshl_add_u32 v6, v3, 11, s{S_T1}
        v_lshl_add_u32 v6, v4, 7, v6
        """)
        for qt in range(4):
            if qt % 2 == 0:
                A(f"buffer_load_dword v{LPOLL}, v6, {srd(sX)}, 0 offen offset:{(qt // 2) * 1024}")
                q.append("t")
            A(f"s_mov_b32 s{S_T0}, {qt << 21}\nbuffer_load_dword v{LPOLL}, v5, {srd(sWQ)}, s{S_T0} offen")
            q.append("t")
        A(f"s_mov_b32 s{S_T0}, {384 * 2048}")
        for h in range(2):
            A(f"buffer_load_dword v{LPOLL}, v6, {srd(sX)}, s{S_T0} offen offset:{h * 1024}")
            q.append("t")
        pre[0] = cfg.s1pre
        issue_kv(pre[0], -1, cfg.s1win)
    if cfg.stag:
        issue_q(0)
        issue_q(1)
    base = sum(pre)
    issue_kv(pre[0], -1, 0)
    nq = 2
    for k in range(0, 33):
        wait(k)
        barrier()
        unpark(k)
        while nq <= min(15, k + 1 + cfg.qd):
            issue_q(nq)
            nq += 1
        w = cfg.win if role is None else (cfg.s1win if role else (cfg.s0win if k < cfg.s0sw else cfg.s0late))
        win = 0 if k < 16 else (max(w, cfg.win16) if k == 16 else w)
        lead = min(128, end(k + 1) + (win or 8)) if k >= 14 else 0
        if k <= 15:
            ramp = sum(pre[:k + 2]) + (4 * max(0, k - 13) if role == 1 else 0)
        else:
            b0 = base + cfg.win16 + (8 if role == 1 else 0)
            ramp = min(128, b0 + ((128 - b0) * (k - 16)) // (cfg.last - 16))
        issue_kv(max(lead, ramp if base else 0), k, win)
        if k == 20 and cfg.oord:
            A(f"""s_add_u32 s{S_T2}, s{S_BP}, s{S_J}
            s_and_b32 s{S_T2}, s{S_T2}, {cfg.oord - 1}
            s_mul_i32 s{S_T2}, s{S_T2}, {8 // cfg.oord}
            s_sub_u32 s{S_T3}, s{S_J}, s{S_T2}
            s_and_b32 s{S_T3}, s{S_T3}, 7
            s_lshl_b32 s{S_T2}, s{S_T2}, 1""")
        for h, tk in enumerate(str(cfg.ptouch).split(".") if cfg.ptouch else []):
            if int(tk) == k:
                throttle(win)
                A(f"""s_mul_i32 s{S_T0}, s{S_J}, 49152
                s_add_u32 s{S_T0}, s{S_T0}, {h * 24576}
                v_mul_u32_u24 v3, 0x70, v0
                v_add_u32 v3, v3, v{LOB}
                s_mov_b32 exec_hi, 0xffff
                buffer_load_dword v{LPOLL}, v3, {srd(sWS)}, s{S_T0} offen
                s_mov_b64 exec, -1""")
                q.append("t")
        if k == 26:
            A(f"buffer_load_dword v{LPOLL}, v{LFLAG}, {srd(sWS)}, 0 offen sc1")
            q.append("t")
        for m in range(4):
            if wo_at[m] == k:
                issue_ow(m, wtag(m), win if state["next"] < 128 else 0)
    assert state["next"] == 128 and not parked
    wait(33)
    barrier()
    def need_head(m):
        A(f"""{o_index(m)}
        s_bfe_u32 s{S_T1}, s{S_T0}, 0x30001
        s_mov_b32 s{S_SPIN}, 0""")
        n = f"L_need{m}{sfx}"
        loop = P.add(f"""{n}:
        s_bitcmp1_b32 s{S_MASK}, s{S_T1}
        s_cbranch_scc1 {n}_done
        buffer_load_dword v{LPOLL}, v{LFLAG}, {srd(sWS)}, 0 offen sc1
        s_add_u32 s{S_SPIN}, s{S_SPIN}, 1
        s_waitcnt vmcnt(0)
        v_cmp_eq_u32 vcc, 1, v{LPOLL}
        s_mov_b32 s{S_MASK}, vcc_lo
        s_cmp_lt_u32 s{S_SPIN}, {SPIN_MAX}
        s_cbranch_scc1 {n}""")
        tr.extend(loop + loop)
        A(f"{n}_done:")

    if wo_at[2] == 33:
        issue_ow(2, 35)
    if cfg.prog:
        A(f"s_mov_b32 s{S_MASK}, 0")
        need_head(2)
    else:
        poll_loop(P, tr, "poll1" + sfx, LPOLL, LFLAG)
        del q[:]
        q.append("poll")
    stamp()
    issue_ob(2, 35)
    if wo_at[2] == 34:
        issue_ow(2, 35)
    if wo_at[3] == 33:
        issue_ow(3, 36)
    issue_ob(3, 36)
    if wo_at[3] == 34:
        issue_ow(3, 36)
    nm = 4
    for k in range(35, 50):
        wait(k)
        barrier()
        while nm <= min(15, k + 1 + cfg.od - 33):
            issue_ow(nm, nm + 33)
            if cfg.prog and nm % 2 == 0:
                need_head(nm)
            issue_ob(nm, nm + 33)
            nm += 1
    if cfg.stamps:
        A(f"""s_lshl_b32 s{S_T0}, s2, 3
        s_add_u32 s{S_T0}, s{S_T0}, s{S_WAVE}
        s_lshl_b32 s{S_T0}, s{S_T0}, 8
        s_add_u32 s{S_T0}, s{S_T0}, {WS_STAMP}
        v_lshl_add_u32 v1, v0, 2, s{S_T0}
        buffer_store_dword v{LSTAMP}, v1, {srd(sWS)}, 0 offen""")
    A("s_endpgm")
    return tr


def order(n, snake):
    return [(T, t) for T in range(n) for t in (reversed(T3) if snake and T & 1 else T3)]


def gemm_reads(b, s, kind, with_b=True):
    r = []
    if with_b:
        for t in T3:
            if kind == "q":
                r.append(f"ds_read_b128 {v4(FB(b, t))}, v{AB(s)} offset:{t * 2048}")
            else:
                r.append(f"ds_read_b128 {v4(FB(b, t))}, v{AB(0)} offset:{s * 3072 + t * 1024}")
    for T in range(8):
        for u in range(2):
            off = s * 8192 + u * (1024 if kind == "q" else 4096)
            r.append(f"ds_read_b64_tr_b16 {v2(FA(b, T) + 2 * u)}, v{AW(T)} offset:{off}")
    return r


def gemm_mfma(cfg, b, bsrc=None, zero=False):
    return [f"{MFMA} {v4(ACC(T, t))}, {v4(FA(b, T))}, {v4(bsrc(t) if bsrc else FB(b, t))}, {'0' if zero else v4(ACC(T, t))}"
            for T, t in order(8, cfg.snake)]


def gemm_loop(P, tr, cfg, kind, label, iters):
    sal = [f"s_add_u32 s{S_SLOT}, s{S_SLOT}, 1", f"s_and_b32 s{S_SLOT}, s{S_SLOT}, 3", f"s_cselect_b32 s{S_DW}, {WSLOT}, s{S_T2}"]
    if kind == "o":
        sal.append(f"s_cmp_lg_u32 s{S_SLOT}, 2")
    sal.append(f"s_cselect_b32 s{S_DB}, {BSLOT}, s{S_T3}")
    val = [f"v_add_u32 v{AB(s)}, s{S_DB}, v{AB(s)}" for s in range(2 if kind == "q" else 1)]
    val += [f"v_add_u32 v{AW(T)}, s{S_DW}, v{AW(T)}" for T in range(8)]
    nb = len(val) - 8
    hook = [(18, f"s_cmp_eq_u32 s{S_CNT}, s{S_FLAG}"), (19, "s_cbranch_scc1 L_count"), (19, "L_counted:")] if kind == "q" else []
    if kind == "o" and cfg.wb:
        hook = [(18, f"s_cmp_eq_u32 s{S_CNT}, s{S_FLAG}"), (19, "s_cbranch_scc1 L_wb"), (19, "L_wbdone:")]
    h0 = weave(gemm_mfma(cfg, 0), spread(gemm_reads(1, 1, kind), 0, 18) + spread(sal, 0, 4) + spread(val[:nb + 6], 12, 19)
               + spread(val[nb + 6:], 20, 21) + [(22, "s_waitcnt lgkmcnt(0)"), (22, "s_barrier")])
    h1 = weave(gemm_mfma(cfg, 1), spread(gemm_reads(0, 0, kind), -1, 17)
               + hook + [(20, f"s_sub_u32 s{S_CNT}, s{S_CNT}, 1"), (20, f"s_cmp_lg_u32 s{S_CNT}, 0")])
    tr.extend(P.add(f"s_mov_b32 s{S_CNT}, {iters}\ns_waitcnt lgkmcnt(0)\n.p2align 3"))
    body = P.add([label + ":"] + h0 + h1 + ["s_waitcnt lgkmcnt(0)", f"s_cbranch_scc1 {label}"])
    tr.extend(body + body)


def k_reads(tile):
    return [f"ds_read_b128 {v4(FR(kt * 4 + s))}, v{AK(s)} offset:{(tile % 3) * ASLOT + kt * 4096}" for kt in range(2) for s in range(4)]


def v_reads(T, tile):
    return [f"ds_read_b64_tr_b16 {v2(FR(T) + 2 * u)}, v{AV(T)} offset:{(tile % 3) * ASLOT + u * 4096}" for u in range(2)]


def qk_mfma(first=False):
    c0 = lambda t: "0" if first else v4(NM(t))
    return [f"{MFMA} {v4(SS(kt, t))}, {v4(FR(kt * 4 + s))}, {v4(QF(s, t))}, {c0(t) if s == 0 else v4(SS(kt, t))}"
            for kt in range(2) for s in range(4) for t in T3]


def pv_mfma(cfg):
    return [f"{MFMA} {v4(ACC(T, t))}, {v4(FR(T))}, {v4(PP(t))}, {v4(ACC(T, t))}" for T, t in order(8, cfg.snake)]


def xlane(op, regs, tmps):
    out = []
    for sw in ("v_permlane32_swap_b32", "v_permlane16_swap_b32"):
        out += [f"v_mov_b32 v{x}, v{r}" for r, x in zip(regs, tmps)]
        out += [f"{sw} v{r}, v{x}" for r, x in zip(regs, tmps)]
        out += [f"{op} v{r}, v{r}, v{x}" for r, x in zip(regs, tmps)]
    return out


def row_max():
    o = [f"v_max3_f32 v{VD(t)}, v{SS(0, t)}, v{SS(0, t) + 1}, v{SS(0, t) + 2}" for t in T3]
    o += [f"v_max3_f32 v{VD(t)}, v{SS(0, t) + 3}, v{SS(1, t)}, v{VD(t)}" for t in T3]
    o += [f"v_max3_f32 v{VD(t)}, v{SS(1, t) + 1}, v{SS(1, t) + 2}, v{VD(t)}" for t in T3]
    o += [f"v_max_f32 v{VD(t)}, v{SS(1, t) + 3}, v{VD(t)}" for t in T3]
    return o + xlane("v_max_f32", [VD(t) for t in T3], [VT(t) for t in T3])


def shift_scores():
    return [f"v_sub_f32 v{SS(kt, t) + r}, v{SS(kt, t) + r}, v{VD(t)}" for kt in range(2) for t in T3 for r in range(4)]


def guard_max(kt):
    r = [SS(kt, t) + k for t in T3 for k in range(4)]
    if kt == 0:
        o = [f"v_max3_f32 v{VX}, v{r[0]}, v{r[1]}, v{r[2]}"]
        o += [f"v_max3_f32 v{VX}, v{r[k]}, v{r[k + 1]}, v{VX}" for k in range(3, 11, 2)]
        return o + [f"v_max_f32 v{VX}, v{r[11]}, v{VX}"]
    return [f"v_max3_f32 v{VX}, v{r[k]}, v{r[k + 1]}, v{VX}" for k in range(0, 12, 2)]


def p_cvt(kt, h=None):
    return [f"v_cvt_pk_bf16_f32 v{PP(t) + 2 * kt + hh}, v{SS(kt, t) + 2 * hh}, v{SS(kt, t) + 2 * hh + 1}"
            for hh in ((0, 1) if h is None else (h,)) for t in T3]


def exp_sum(cfg, kt, h):
    o = [f"v_exp_f32 v{SS(kt, t) + 2 * h + r}, v{SS(kt, t) + 2 * h + r}" for t in T3 for r in range(2)]
    if cfg.pk:
        o += [f"v_pk_add_f32 {v2(VL(t))}, {v2(VL(t))}, {v2(SS(kt, t) + 2 * h)}" for t in T3]
    else:
        o += [f"v_add_f32 v{VL(t) + r}, v{VL(t) + r}, v{SS(kt, t) + 2 * h + r}" for t in T3 for r in range(2)]
    return o


def rescale(by):
    return [f"v_mul_f32 v{ACC(T, t) + r}, v{ACC(T, t) + r}, v{by(t)}" for T in range(8) for t in T3 for r in range(4)]


def acc_to_frag(s):
    return [f"v_cvt_pk_bf16_f32 v{QF(s, t) + 2 * u + h}, v{ACC(2 * s + u, t) + 2 * h}, v{ACC(2 * s + u, t) + 2 * h + 1}"
            for u in range(2) for t in T3 for h in range(2)]


def compute(P, cfg):
    tr = []
    A = lambda t: tr.extend(P.add(t))
    nst = [0]

    def stamp():
        if cfg.stamps:
            A(f"s_memrealtime s[{S_ST + 2 * nst[0]}:{S_ST + 2 * nst[0] + 1}]\ns_waitcnt lgkmcnt(0)")
            nst[0] += 1

    A(f"L_compute:\ns_getpc_b64 s[{S_PC}:{S_PC + 1}]\nL_text:\n{late_ids(cfg)}\ns_waitcnt lgkmcnt(0)")
    A(make_srd(((sOUT, 14, 768 * 4096), (sWS, 18, 256 << 20), (sDBG, 16, 256))))
    if cfg.prio:
        A(f"s_setprio {cfg.prio}")
    A(f"""
    s_getreg_b32 s{S_XCC}, hwreg(HW_REG_XCC_ID, 0, 3)
    s_cmp_lg_u32 s{S_W}, 0
    s_cbranch_scc1 L_noclear
    s_lshl_b32 s{S_T0}, s2, 13
    s_add_u32 s{S_T0}, s{S_T0}, {WS_INBOX}
    v_lshrrev_b32 v1, 3, v0
    v_and_b32 v2, 7, v0
    v_lshlrev_b32 v2, 2, v2
    v_lshl_add_u32 v2, v1, 7, v2
    v_min_u32 v1, 47, v0
    v_lshlrev_b32 v1, 7, v1
    v_cmp_gt_u32 vcc, 32, v0
    v_cndmask_b32 v1, v1, v2, vcc
    v_mov_b32 v2, 0
    buffer_store_dword v2, v1, {srd(sWS)}, s{S_T0} offen sc1
    {code_touch(0, 110, 111) if cfg.ctouch else ""}
    L_noclear:
    s_lshl_b32 s{S_XCC}, s{S_XCC}, 2
    v_and_b32 v{V_TMP}, 3, v0
    v_xor_b32 v{V_TMP}, s{S_GRP}, v{V_TMP}
    v_lshlrev_b32 v{V_TMP}, 2, v{V_TMP}
    v_lshrrev_b32 v100, 4, v0
    v_and_b32 v101, 15, v0
    v_bfe_u32 v102, v0, 2, 2
    v_bfe_u32 v103, v0, 1, 1
    v_and_b32 v104, 1, v0
    v_lshlrev_b32 v109, 4, v0
    """)
    A(f"""
    v_lshl_add_u32 v105, v100, 3, v102
    v_lshlrev_b32 v105, 8, v105
    v_lshl_add_u32 v105, v104, 3, v105
    v_lshl_add_u32 v105, v103, 4, v105
    v_and_b32 v106, 1, v100
    v_lshl_add_u32 v106, v106, 2, v102
    v_lshl_add_u32 v{AW(0)}, v106, 5, v105
    """)
    for T in range(1, 8):
        A(f"v_xor_b32 v{AW(T)}, {T << 5}, v{AW(0)}")
    A(f"""
    s_add_u32 s{S_T0}, s{S_LWB}, {BRING}
    v_lshl_add_u32 v105, v101, 7, s{S_T0}
    v_lshrrev_b32 v107, 1, v101
    v_xor_b32 v107, v107, v100
    v_lshl_add_u32 v{AB(0)}, v107, 4, v105
    v_xor_b32 v{AB(1)}, 64, v{AB(0)}
    """)
    A(f"""
    s_lshr_b32 s{S_T0}, s{S_W}, 1
    s_lshl_b32 s{S_T0}, s{S_T0}, 13
    s_add_u32 s{S_T0}, s{S_T0}, {KRING}
    v_lshl_add_u32 v105, v101, 8, s{S_T0}
    v_lshrrev_b32 v107, 1, v100
    v_and_b32 v108, 1, v100
    v_lshl_add_u32 v107, v108, 1, v107
    v_xor_b32 v107, v107, v101
    v_lshl_add_u32 v{AK(0)}, v107, 4, v105
    """)
    for s in range(1, 4):
        A(f"v_xor_b32 v{AK(s)}, {s << 6}, v{AK(0)}")
    A(f"""
    s_add_u32 s{S_T0}, s{S_T0}, {VRING - KRING}
    v_lshl_add_u32 v105, v100, 2, v102
    v_lshl_add_u32 v105, v105, 8, s{S_T0}
    v_lshl_add_u32 v105, v104, 3, v105
    v_lshl_add_u32 v105, v103, 4, v105
    v_lshl_add_u32 v{AV(0)}, v106, 5, v105
    """)
    for T in range(1, 8):
        A(f"v_xor_b32 v{AV(T)}, {T << 5}, v{AV(0)}")
    A(f"s_mov_b32 s{S_C}, {f32(1.4426950408889634 / 128 ** 0.5)}\ns_mov_b32 s{S_C + 1}, s{S_C}")
    A(f"s_mov_b32 s{S_T2}, {-3 * WSLOT}\ns_mov_b32 s{S_T3}, {-3 * BSLOT}\ns_mov_b32 s{S_SLOT}, 0")
    A([f"v_pk_mov_b32 {v2(r)}, 0, 0" for r in range(0, 96, 2)])
    if cfg.tag or cfg.oclear:
        A([f"v_mov_b32 v{r}, -1" for r in range(112, 116)])
    if cfg.tag:
        A(f"""s_mul_i32 s{S_T0}, s{S_W}, 9216
        s_mul_i32 s{S_T1}, s2, 36864
        s_add_u32 s{S_T0}, s{S_T0}, s{S_T1}
        s_add_u32 s{S_T0}, s{S_T0}, {WS_X}""")
        for k in range(9):
            if k and k % 4 == 0:
                A(f"s_add_u32 s{S_T0}, s{S_T0}, 4096")
            A(f"buffer_store_dwordx4 v[112:115], v109, {srd(sWS)}, s{S_T0} offen offset:{(k % 4) * 1024} sc1")
    if cfg.oclear:
        A(f"""s_mul_i32 s{S_T0}, s{S_GRP}, 393216
        s_mul_i32 s{S_T1}, s{S_J}, 49152
        s_add_u32 s{S_T0}, s{S_T0}, s{S_T1}
        s_mul_i32 s{S_T1}, s{S_W}, 12288
        s_add_u32 s{S_T0}, s{S_T0}, s{S_T1}""")
        for k in range(12):
            if k and k % 4 == 0:
                A(f"s_add_u32 s{S_T0}, s{S_T0}, 4096")
            A(f"buffer_store_dwordx4 v[112:115], v109, {srd(sWS)}, s{S_T0} offen offset:{(k % 4) * 1024} sc1")
    count = f"""s_lshl_b32 s{S_T0}, 1, s{S_XCC}
    v_mov_b32 v{V_CHK}, s{S_T0}
    s_mov_b64 exec, 1
    s_waitcnt vmcnt(0)
    buffer_atomic_add v{V_CHK}, v{V_TMP}, {srd(sDBG)}, 0 offen
    s_mov_b64 exec, -1""".split("\n")
    rare = [["L_count:", "s_waitcnt vmcnt(0)", f"s_cmp_lg_u32 s{S_W}, 0", "s_cbranch_scc1 L_counted"] + count + ["s_branch L_counted"]]
    A(f"s_cmp_eq_u32 s{S_W}, 0\ns_cselect_b32 s{S_FLAG}, {cfg.count_at}, {cfg.count_at + 1}")
    assert not (cfg.stag and (cfg.tag or cfg.oclear))
    if cfg.stag:
        A([f"s_cmp_ge_u32 s{S_BP}, 2", f"s_cselect_b32 s{S_T1}, s{S_FLAG}, 0", f"s_cmp_lg_u32 s{S_T1}, {cfg.count_at}", "s_cbranch_scc1 L_nocount"]
          + count + [f"s_mov_b32 s{S_FLAG}, 0", "L_nocount:"])
    A("s_barrier")
    A(gemm_reads(0, 0, "q"))
    gemm_loop(P, tr, cfg, "q", "L_qloop", 16)
    A(k_reads(0))
    A(f"buffer_load_dword v{V_CHK}, v{V_TMP}, {srd(sDBG)}, 0 offen sc1")

    def q_frag(s):
        return ([f"v_pk_mul_f32 {v2(r)}, {v2(r)}, s[{S_C}:{S_C + 1}]" for r in range(24 * s, 24 * s + 24, 2)] + acc_to_frag(s)
                + [f"v_permlane16_swap_b32 v{QF(s, t) + h}, v{QF(s, t) + 2 + h}" for t in T3 for h in range(2)])

    qk0 = qk_mfma(True)
    qk0 = [qk0[kt * 12 + s * 3 + t] for s in range(4) for kt in range(2) for t in T3]
    zero = [f"v_pk_mov_b32 {v2(r)}, 0, 0" for r in range(0, 96, 2)]
    A(q_frag(0))
    A(weave(qk0, [(6 * s - 6 + k // 5, x) for s in range(1, 4) for k, x in enumerate(q_frag(s))] + spread(zero[:16], 18, 23)))
    A(zero[16:24])
    A(row_max())
    A(shift_scores())
    A([f"v_sub_f32 v{NM(t) + r}, 0, v{VD(t)}" for t in T3 for r in range(4)])
    A([f"v_pk_mov_b32 {v2(VL(t))}, 0, 0" for t in T3])
    A(exp_sum(cfg, 0, 0) + exp_sum(cfg, 0, 1))
    A("s_barrier")
    A(k_reads(1))
    A(zero[24:])

    def iteration(i):
        vr = [(3 * T + 2, x) for T in range(8) for x in v_reads(T, i)]
        waits = [(-1, "s_waitcnt lgkmcnt(6)"), (5, "s_waitcnt lgkmcnt(4)"), (23, "s_waitcnt lgkmcnt(4)"), (35, "s_waitcnt lgkmcnt(0)")]
        chkp = [f"v_cmp_lt_f32 vcc, s{S_C}, v{VX}", f"s_cbranch_vccnz L_up1_{i}", f"L_back1_{i}:"]
        late = exp_sum(cfg, 1, 0) + p_cvt(1, 0) + exp_sum(cfg, 1, 1) + p_cvt(1, 1)
        pre = p_cvt(0) + late[:8]
        cnt = [f"s_sub_u32 s{S_CNT}, s{S_CNT}, 1"] if i == 2 else []
        body = balance(qk_mfma() + pv_mfma(cfg), vr + waits[1:] + [(29, chkp[0]), (30, chkp[1]), (30, chkp[2])],
                       [(late[8:], 0, 11), (cnt + guard_max(0), 15, 23), (guard_max(1), 26, 28),
                        (exp_sum(cfg, 0, 0) + exp_sum(cfg, 0, 1), 31, 47)])
        fin = [f"s_cmp_lg_u32 s{S_FLAG}, 0", f"s_cbranch_scc1 L_up2_{i}", f"L_back2_{i}:"]
        up1 = ([f"L_up1_{i}:"] + row_max() + [f"v_max_f32 v{VD(t)}, 0, v{VD(t)}" for t in T3] + shift_scores()
               + [f"v_exp_f32 v{VA(t)}, -v{VD(t)}" for t in T3]
               + [f"v_sub_f32 v{NM(t) + r}, v{NM(t) + r}, v{VD(t)}" for t in T3 for r in range(4)]
               + [f"v_mul_f32 v{VL(t) + r}, v{VL(t) + r}, v{VA(t)}" for t in T3 for r in range(2)]
               + [f"s_mov_b32 s{S_FLAG}, 1", f"s_branch L_back1_{i}"])
        up2 = [f"L_up2_{i}:"] + rescale(VA) + [f"s_mov_b32 s{S_FLAG}, 0", f"s_branch L_back2_{i}"]
        rare.extend([up1, up2])
        return pre + [waits[0][1]] + body + fin

    A(f"s_mov_b32 s{S_C}, {f32(cfg.thr)}\ns_mov_b32 s{S_CNT}, 5\ns_mov_b32 s{S_FLAG}, 0\ns_branch L_aenter\n.p2align 3")
    top = P.add(["L_aloop:", "s_barrier"] + k_reads(1) + ["L_aenter:"])
    body = P.add(iteration(0) + ["s_barrier"] + k_reads(2) + iteration(1) + ["s_barrier"] + k_reads(0) + iteration(2)
                 + [f"s_cmp_lg_u32 s{S_CNT}, 0", "s_cbranch_scc1 L_aloop"])
    tr.extend(body + top + body)
    A(exp_sum(cfg, 1, 0) + exp_sum(cfg, 1, 1))
    A([f"v_add_f32 v{VL(t)}, v{VL(t)}, v{VL(t) + 1}" for t in T3])
    A(xlane("v_add_f32", [VL(t) for t in T3], [VT(t) for t in T3]))
    A([f"v_rcp_f32 v{VL(t)}, v{VL(t)}" for t in T3])
    A([f"v_mov_b32 v{VL(t) + 1}, v{VL(t)}" for t in T3])
    A([f"v_pk_mul_f32 {v2(SS(kt, t) + r)}, {v2(SS(kt, t) + r)}, {v2(VL(t))}" for kt in range(2) for t in T3 for r in (0, 2)])
    A(p_cvt(0) + p_cvt(1))
    A([f"v_pk_mul_f32 {v2(ACC(T, t) + r)}, {v2(ACC(T, t) + r)}, {v2(VL(t))}" for T in range(8) for t in T3 for r in (0, 2)])
    A(f"s_mov_b32 s{S_SPIN}, 0")
    chk = P.add(f"""L_chk:
    s_waitcnt vmcnt(0)
    v_lshrrev_b32 v{VT(0)}, 4, v{V_CHK}
    v_and_b32 v{VT(0)}, 0x0f0f0f0f, v{VT(0)}
    v_and_b32 v{VT(1)}, 0x0f0f0f0f, v{V_CHK}
    v_add_u32 v{VT(0)}, v{VT(0)}, v{VT(1)}
    v_sad_u8 v{VT(0)}, v{VT(0)}, 0, 0
    v_readfirstlane_b32 s{S_T1}, v{V_CHK}
    v_cmp_ne_u32 vcc, 8, v{VT(0)}
    s_cbranch_vccz L_chk_done
    buffer_load_dword v{V_CHK}, v{V_TMP}, {srd(sDBG)}, 0 offen sc1
    s_add_u32 s{S_SPIN}, s{S_SPIN}, 1
    s_cmp_lt_u32 s{S_SPIN}, {cfg.chk_max}
    s_cbranch_scc1 L_chk""")
    tr.extend(chk + chk)
    A(f"""L_chk_done:
    s_lshl_b32 s{S_T0}, 8, s{S_XCC}
    s_cmp_eq_u32 s{S_T0}, s{S_T1}
    s_cselect_b32 s{S_FLAG}, 1, 0""")
    A(f"""
    {lane_id(V_TMP)}
    s_lshl_b32 s{S_T0}, s{S_HG}, 6
    v_and_b32 v{AW(0)}, 0xfff, v{AV(0)}
    v_xor_b32 v{AW(0)}, s{S_T0}, v{AW(0)}
    """)
    for T in range(1, 8):
        A(f"v_xor_b32 v{AW(T)}, {T << 5}, v{AW(0)}")
    A(f"""
    s_add_u32 s{S_T0}, s{S_LWB}, {BRING}
    v_lshl_add_u32 v{AB(0)}, v{V_TMP}, 4, s{S_T0}
    s_mul_i32 s{S_T0}, s{S_GRP}, 393216
    s_mul_i32 s{S_T1}, s{S_J}, 49152
    s_add_u32 s{S_T0}, s{S_T0}, s{S_T1}
    s_add_u32 s{S_T0}, s{S_T0}, s{S_LWB}
    v_lshl_add_u32 v{AB(1)}, v{V_TMP}, 4, s{S_T0}
    s_andn2_b32 s{S_T0}, s2, 0x38
    s_lshl_b32 s{S_T0}, s{S_T0}, 13
    s_lshl_b32 s{S_T1}, s{S_J}, 2
    s_add_u32 s{S_T0}, s{S_T0}, s{S_T1}
    s_lshl_b32 s{S_T1}, s{S_W}, 7
    s_add_u32 s{S_T0}, s{S_T0}, s{S_T1}
    s_add_u32 s{S_T0}, s{S_T0}, {WS_INBOX}
    v_lshl_add_u32 v{AK(0)}, v{V_TMP}, 16, s{S_T0}
    v_mov_b32 v{AK(1)}, 1
    """)

    def publish(name, lines):
        if not cfg.local:
            return [x + " sc1" for x in lines]
        return ([f"s_cmp_eq_u32 s{S_FLAG}, 1", f"s_cbranch_scc1 L_{name}_l"] + [x + " sc1" for x in lines]
                + [f"s_branch L_{name}_j", f"L_{name}_l:"] + lines + [f"L_{name}_j:"])

    def o_out(s):
        return (acc_to_frag(s) + [f"s_mov_b32 s{S_T0}, {(s >> 1) * 24576 + (s & 1) * 3072}"]
                + publish(f"o{s}", [f"buffer_store_dwordx4 {v4(QF(s, t))}, v{AB(1)}, {srd(sWS)}, s{S_T0} offen offset:{t * 1024}" for t in T3]))

    if cfg.otouch:
        A(f"""s_cmp_eq_u32 s{S_FLAG}, 1
        s_cbranch_scc0 L_notouch
        v_mul_u32_u24 v{VX}, 0x70, v{V_TMP}
        v_add_u32 v{VX}, v{VX}, v{AB(1)}
        s_mov_b32 s{S_T0}, 24576
        s_mov_b32 exec_hi, 0xffff
        buffer_load_dword v{VX + 1}, v{VX}, {srd(sWS)}, 0 offen sc1
        buffer_load_dword v{VX + 1}, v{VX}, {srd(sWS)}, s{S_T0} offen sc1
        s_mov_b64 exec, -1
        L_notouch:""")
    A("s_barrier")
    A([x for T in range(8) for x in v_reads(T, 15)])
    fill = []
    for s in range(3):
        o = o_out(s)
        fill += spread(o[:12], 6 * s + 7, 6 * s + 11) + [(6 * s + 11, x) for x in o[12:]]
    A(weave(pv_mfma(cfg), fill))
    A(o_out(3))
    stamp()
    flag = (["s_waitcnt vmcnt(0)", "s_mov_b64 exec, 0xff"]
            + publish("f", [f"buffer_store_dword v{AK(1)}, v{AK(0)}, {srd(sWS)}, 0 offen"]) + ["s_mov_b64 exec, -1"])
    if cfg.flag_after < 0:
        A(flag)
        stamp()
    A("s_barrier")
    A(gemm_reads(0, 0, "o", with_b=False))
    wstep = [f"v_add_u32 v{AW(T)}, {WSLOT}, v{AW(T)}" for T in range(8)]
    for hs in range(4):
        if hs == cfg.flag_after:
            A(flag)
            stamp()
        fill = []
        if hs < 3:
            fill += spread(gemm_reads((hs + 1) & 1, (hs + 1) & 1, "o", with_b=False), 0, 15)
        if hs in (0, 2):
            fill += spread(wstep, 16, 23)
        A(weave(gemm_mfma(cfg, hs & 1, bsrc=lambda t: QF(hs, t), zero=(hs == 0)), fill))
    A(f"""
    s_mul_i32 s{S_T0}, s{S_W}, 9216
    s_add_u32 s{S_T0}, s{S_T0}, {WS_X}
    v_lshl_add_u32 v{AB(1)}, v{V_TMP}, 4, s{S_T0}
    v_and_b32 v{AK(3)}, 3, v{V_TMP}
    s_lshl_b32 s{S_T0}, s{S_W}, 9
    s_add_u32 s{S_T0}, s{S_T0}, {WS_INBOX + 4096}
    v_lshl_add_u32 v{AK(2)}, v{AK(3)}, 7, s{S_T0}
    v_xor_b32 v{AK(0)}, s2, v{AK(3)}
    v_lshl_add_u32 v{AK(0)}, v{AK(0)}, 13, v{AK(2)}
    v_max_u32 v{AK(3)}, 1, v{AK(3)}
    s_lshl_b32 s{S_T1}, s2, 13
    s_add_u32 s{S_T0}, s{S_T0}, s{S_T1}
    v_lshl_add_u32 v{AK(2)}, v{AK(3)}, 7, s{S_T0}
    v_and_b32 v{AV(0)}, 15, v{V_TMP}
    v_bfe_u32 v{AV(1)}, v{V_TMP}, 4, 1
    v_bfe_u32 v{AV(2)}, v{V_TMP}, 5, 1
    s_mul_i32 s{S_T0}, s{S_BP}, 192
    s_mul_i32 s{S_T1}, s{S_W}, 48
    s_add_u32 s{S_T0}, s{S_T0}, s{S_T1}
    s_lshl_b32 s{S_T0}, s{S_T0}, 12
    s_lshl_b32 s{S_T1}, s{S_BLK}, 11
    s_add_u32 s{S_T0}, s{S_T0}, s{S_T1}
    s_lshl_b32 s{S_T1}, s{S_NU}, 8
    s_add_u32 s{S_T0}, s{S_T0}, s{S_T1}
    s_lshl_b32 s{S_T1}, s{S_HG}, 6
    s_add_u32 s{S_T0}, s{S_T0}, s{S_T1}
    v_lshl_add_u32 v{AV(0)}, v{AV(0)}, 12, s{S_T0}
    v_lshl_add_u32 v{AV(0)}, v{AV(1)}, 5, v{AV(0)}
    v_lshl_add_u32 v{AV(0)}, v{AV(2)}, 4, v{AV(0)}
    s_mov_b32 s{S_SLOT}, 2
    """)
    if cfg.wb:
        A(f"""s_and_b32 s{S_T0}, s2, {cfg.wbmask}
        s_or_b32 s{S_T0}, s{S_T0}, s{S_W}
        s_cselect_b32 s{S_FLAG}, 0, {cfg.wb}""")
        rare.append(["L_wb:", "buffer_wbl2 sc1", "s_branch L_wbdone"])
    A("s_barrier")
    A(gemm_reads(0, 0, "o"))
    gemm_loop(P, tr, cfg, "o", "L_oloop", 14)
    stamp()
    for i in range(1, 4):
        A(f"""s_xor_b32 s{S_T0}, s2, {i}
        s_mul_i32 s{S_T0}, s{S_T0}, 36864
        s_add_u32 s{S_T0}, s{S_T0}, {(i - 1) * 3072}""")
        A(acc_to_frag(i))
        A([f"buffer_store_dwordx4 {v4(QF(i, t))}, v{AB(1)}, {srd(sWS)}, s{S_T0} offen offset:{t * 1024} sc1" for t in T3])
    xload = lambda k, so: f"buffer_load_dwordx4 {v4(24 + 4 * k)}, v{AB(1)}, {srd(sWS)}, s{so} offen offset:{(k % 3) * 1024} sc1"

    def xadd(i):
        for k in range(3 * i, 3 * i + 3):
            for d in range(4):
                src, dst = 24 + 4 * k + d, ACC(d >> 1, k % 3) + 2 * (d & 1)
                A(f"""v_lshlrev_b32 v64, 16, v{src}
                v_and_b32 v65, 0xffff0000, v{src}
                v_pk_add_f32 {v2(dst)}, {v2(dst)}, v[64:65]""")

    so = (S_T0, S_T1, S_T2)
    xbase = f"s_mul_i32 s{S_T0}, s2, 36864\ns_add_u32 s{S_T1}, s{S_T0}, 3072\ns_add_u32 s{S_T2}, s{S_T0}, 6144"
    if not cfg.tag:
        A(["s_waitcnt vmcnt(0)", "s_mov_b64 exec, 14", f"buffer_store_dword v{AK(1)}, v{AK(0)}, {srd(sWS)}, 0 offen sc1", "s_mov_b64 exec, -1"])
        stamp()
        poll_loop(P, tr, "poll2", V_CHK, AK(2))
        stamp()
        A(xbase)
        A([xload(k, so[k // 3]) for k in range(9)])
        for i in range(3):
            xadd(i)
    else:
        stamp()
        A(xbase)
        A(f"s_mov_b32 s{S_SPIN}, 0")
        if cfg.tag == 2:
            probe = P.add(["L_probe:"] + [xload(3 * i + 2, so[i]) for i in range(3)] + f"""s_add_u32 s{S_SPIN}, s{S_SPIN}, 1
            s_cmp_ge_u32 s{S_SPIN}, {SPIN_MAX}
            s_cbranch_scc1 L_probed
            s_waitcnt vmcnt(0)
            v_max3_u32 v64, v35, v47, v59
            v_cmp_eq_u32 vcc, -1, v64
            s_cbranch_vccnz L_probe""".split("\n"))
            tr.extend(probe + probe)
            A("L_probed:")
        first = [xload(k, so[k // 3]) for k in range(9) if cfg.tag == 1 or k % 3 != 2]
        A(first)
        for i in range(3):
            b = 24 + 12 * i
            chk2 = ([f"v_max3_u32 v64, v{b}, v{b + 1}, v{b + 2}"] + [f"v_max3_u32 v64, v{b + k}, v{b + k + 1}, v64" for k in range(3, 11, 2)]
                    + [f"v_max_u32 v64, v{b + 11}, v64", "v_cmp_eq_u32 vcc, -1, v64"])
            A([f"L_x{i}:"] + chk2 + [f"s_cbranch_vccnz L_xr{i}", f"L_xok{i}:"])
            rare.append([f"L_xr{i}:"] + [xload(k, so[i]) for k in range(3 * i, 3 * i + 3)]
                        + [f"s_add_u32 s{S_SPIN}, s{S_SPIN}, 1", f"s_cmp_lt_u32 s{S_SPIN}, {SPIN_MAX}", "s_waitcnt vmcnt(0)",
                           f"s_cbranch_scc1 L_x{i}", f"s_branch L_xok{i}"])
            if i == 2:
                stamp()
            xadd(i)
    A(acc_to_frag(0))
    A([f"v_permlane16_swap_b32 v{QF(0, t) + h}, v{QF(0, t) + 2 + h}" for t in T3 for h in range(2)])
    for t in T3:
        A(f"s_mov_b32 s{S_T0}, {t * 65536}\nbuffer_store_dwordx4 {v4(QF(0, t))}, v{AV(0)}, {srd(sOUT)}, s{S_T0} offen {cfg.pol_out}")
    if cfg.stamps:
        A("s_waitcnt vmcnt(0)")
        stamp()
        A(f"v_mov_b32 v1, 0")
        for k in range(nst[0]):
            A(f"v_writelane_b32 v1, s{S_ST + 2 * k}, {k}")
        A(f"""s_lshl_b32 s{S_T0}, s2, 3
        s_add_u32 s{S_T0}, s{S_T0}, s{S_WAVE}
        s_lshl_b32 s{S_T0}, s{S_T0}, 8
        s_add_u32 s{S_T0}, s{S_T0}, {WS_STAMP}
        v_lshl_add_u32 v2, v{V_TMP}, 2, s{S_T0}
        buffer_store_dword v1, v2, {srd(sWS)}, 0 offen""")
    A("L_exit:\ns_endpgm")
    blocks = {}
    for blk in rare:
        blocks[blk[0][:-1]] = P.add(blk)
    tr2 = []
    for ins in tr:
        tr2.append(ins)
        if ins.op.startswith("s_cbranch") and ins.text.split()[1] in blocks:
            tr2 += blocks[ins.text.split()[1]]
    return tr, tr2


def generate(cfg):
    P = Prog()
    pre = P.add("s_cmp_ge_u32 s2, 256\ns_cbranch_scc1 L_exit")
    if cfg.remap:
        pre += P.add("""s_bfe_u32 s4, s2, 0x20003
        s_lshr_b32 s5, s2, 5
        s_and_b32 s2, s2, 7
        s_lshl_b32 s4, s4, 6
        s_lshl_b32 s5, s5, 3
        s_or_b32 s2, s2, s4
        s_or_b32 s2, s2, s5""")
    pre += prologue(P, cfg)
    tl = loader(P, cfg)
    tc, tc2 = compute(P, cfg)
    body = P.finish([pre + tc, pre + tc2] + [pre + t for t in tl])
    if cfg.align:
        body = align8(body)
    return (HEADER + "; @launch grid=(256,1,1) block=(512,1,1) lds=163840\n"
            + '.amdgcn_target "amdgcn-amd-amdhsa--gfx950"\n.text\n'
            + f".globl {NAME}_kernel\n.p2align 8\n.type {NAME}_kernel,@function\n{NAME}_kernel:\n" + body
            + f"""L_text_end:
.section .rodata,"a"
.p2align 6
.amdhsa_kernel {NAME}_kernel
  .amdhsa_next_free_vgpr 256
  .amdhsa_next_free_sgpr 102
  .amdhsa_accum_offset 256
  .amdhsa_group_segment_fixed_size 0
  .amdhsa_kernarg_size 104
  .amdhsa_user_sgpr_count 2
  .amdhsa_user_sgpr_kernarg_segment_ptr 1
  .amdhsa_system_sgpr_workgroup_id_x 1
  .amdhsa_float_denorm_mode_32 3
.end_amdhsa_kernel
""")


def parse(args):
    kw = {}
    for a in args:
        k, v = a.split("=")
        kw[k] = float(v) if k == "thr" else (int(v) if v.lstrip("-").isdigit() and not k.startswith(("pre", "ptouch")) else v.replace("+", " "))
    return Cfg(**kw)


if __name__ == "__main__":
    open(sys.argv[1], "w").write(generate(parse(sys.argv[2:])))
```

```python
import struct, sys
from asmlib import Prog, weave, spread, balance, align8

NAME = "concat_heads__mha_block_cached__gqa_block_cached__near_ridge"
HEADER = open("cdna_kernels/" + NAME + ".s.ref").read().split("; Override launch")[0]

WS_O, WS_X, WS_INBOX, WS_STAMP, WS_DUMP = 0, 16 << 20, 48 << 20, 200 << 20, 64 << 20
WRING, BRING, KRING, VRING = 0, 65536, 65536, 114688
WSLOT, BSLOT, ASLOT = 16384, 24576, 16384
SPIN_MAX = 200000
T3 = range(3)

S_WAVE, sX, sK, sV, sWQ, sWO, sOUT, sWS, sDBG = 3, 20, 24, 28, 32, 36, 40, 44, 48
S_BLK, S_HG, S_J, S_BP, S_NU, S_W, S_H, S_DB = 52, 53, 54, 55, 56, 57, 58, 59
S_T0, S_T1, S_T2, S_T3, S_CNT, S_DW, S_C, S_SLOT = 60, 61, 62, 63, 64, 65, 66, 68
S_LWB, S_LWW, S_ROT, S_J2, S_SPIN, S_FLAG, S_XCC, S_GRP = 69, 70, 71, 72, 73, 74, 75, 76
S_MASK, S_PC = 77, 78
S_SB = 94
S_ST = 80
srd = lambda r: f"s[{r}:{r+3}]"
v4 = lambda r: f"v[{r}:{r+3}]"
v2 = lambda r: f"v[{r}:{r+1}]"
f32 = lambda x: "0x%08x" % struct.unpack("<I", struct.pack("<f", x))[0]
MFMA = "v_mfma_f32_16x16x32_bf16"

ACC = lambda T, t: (T * 3 + t) * 4
QF = lambda s, t: 96 + (s * 3 + t) * 4
FA = lambda b, T: 144 + 44 * b + 4 * T
FB = lambda b, t: 144 + 44 * b + 32 + 4 * t
AW = lambda T: 232 + T
AB = lambda s: 240 + s
V_CHK, V_TMP = 242, 243
FR = lambda f: 144 + 4 * f
SS = lambda kt, t: 176 + (kt * 3 + t) * 4
PP = lambda t: 200 + 4 * t
NM = lambda t: 212 + 4 * t
VL = lambda t: 224 + 2 * t
VX = 230
V_OST, V_FLG = 241, 231
VD = lambda t: 232 + t
VT = lambda k: 235 + k
VA = lambda t: 238 + t
AK = lambda s: 244 + s
AV = lambda T: 248 + T


class Cfg:
    def __init__(self, **kw):
        self.pol_x = ""
        self.pol_wq = ""
        self.pol_kv = "nt"
        self.pol_wo = ""
        self.pol_ob = "sc1"
        self.rot = 1
        self.stamps = 0
        self.flag_after = 1
        self.pre = ""
        self.last = 30
        self.win = 6
        self.win16 = 10
        self.wo_at = "31.31.33.33"
        self.qd = 1
        self.thr = 8.0
        self.local = 1
        self.pk = 0
        self.snake = 1
        self.align = 1
        self.prio = 0
        self.remap = 0
        self.nurot = 1
        self.otouch = 0
        self.stag = 0
        self.s1pre = 36
        self.s1win = 8
        self.s0win = 8
        self.s0late = 8
        self.s0sw = 28
        self.prog = 0
        self.pre1 = ''
        self.tag = 0
        self.oclear = 0
        self.par = 0
        self.spre = ''
        self.coop = ''
        self.coopw0 = 31
        self.promote = 0
        self.pol_out = ''
        self.ptouch = ''
        self.wb = 0
        self.wbmask = 0xf8
        self.oord = 0
        self.od = 1
        self.ctouch = 0
        self.count_at = 12
        self.fetch_at = 3
        self.chk_max = SPIN_MAX
        self.__dict__.update(kw)


def lane_id(v):
    return f"v_mbcnt_lo_u32_b32 v{v}, -1, 0\nv_mbcnt_hi_u32_b32 v{v}, -1, v{v}"


def make_srd(items):
    return "\n".join(f"s_mov_b32 s{r}, s{p}\ns_mov_b32 s{r+1}, s{p+1}\ns_mov_b32 s{r+2}, {n}\ns_mov_b32 s{r+3}, 0x20000" for r, p, n in items)


def prologue(P, cfg):
    return P.add(f"""
    s_bfe_u32 s{S_BLK}, s2, 0x10002
    s_mul_i32 s{S_T0}, s{S_BLK}, 40
    s_load_dwordx8 s[4:11], s[0:1], s{S_T0}
    s_add_u32 s{S_T1}, s{S_T0}, 32
    s_load_dwordx2 s[12:13], s[0:1], s{S_T1}
    s_load_dwordx4 s[16:19], s[0:1], 88
    s_load_dwordx2 s[14:15], s[0:1], 80
    v_lshrrev_b32 v1, 6, v0
    v_and_b32 v0, 63, v0
    s_and_b32 s{S_HG}, s2, 3
    v_readfirstlane_b32 s{S_WAVE}, v1
    s_bfe_u32 s{S_J}, s2, 0x30003
    s_lshr_b32 s{S_BP}, s2, 6
    s_lshl_b32 s{S_H}, s{S_HG}, 3
    s_add_u32 s{S_H}, s{S_H}, s{S_J}
    s_and_b32 s{S_W}, s{S_WAVE}, 3
    s_mul_i32 s{S_LWB}, s{S_W}, 6144
    s_lshl_b32 s{S_LWW}, s{S_W}, 12
    s_cmp_lt_u32 s{S_WAVE}, 4
    s_cbranch_scc1 L_compute
    """)


def late_ids(cfg):
    return f"""s_mul_i32 s{S_NU}, s{S_BP}, {2 * cfg.nurot}
    s_add_u32 s{S_NU}, s{S_NU}, s{S_J}
    s_and_b32 s{S_NU}, s{S_NU}, 7
    s_and_b32 s{S_GRP}, s2, 7
    s_lshl_b32 s{S_T1}, s{S_BP}, 3
    s_add_u32 s{S_GRP}, s{S_GRP}, s{S_T1}"""


def code_touch(lane, vaddr, vdst):
    return f"""s_lshr_b32 s{S_T0}, s2, 3
    s_lshl_b32 s{S_T0}, s{S_T0}, 10
    v_and_b32 v{vaddr}, 7, v{lane}
    v_lshl_add_u32 v{vaddr}, v{vaddr}, 7, s{S_T0}
    v_min_u32 v{vaddr}, L_text_end-L_text-4, v{vaddr}
    global_load_dword v{vdst}, v{vaddr}, s[{S_PC}:{S_PC + 1}]"""


def poll_loop(P, tr, name, vdst, vaddr):
    tr.extend(P.add(f"s_mov_b32 s{S_SPIN}, 0"))
    loop = P.add(f"""L_{name}:
    buffer_load_dword v{vdst}, v{vaddr}, {srd(sWS)}, 0 offen sc1
    s_add_u32 s{S_SPIN}, s{S_SPIN}, 1
    s_cmp_ge_u32 s{S_SPIN}, {SPIN_MAX}
    s_cbranch_scc1 L_{name}_done
    s_waitcnt vmcnt(0)
    v_cmp_ne_u32 vcc, 1, v{vdst}
    s_cbranch_vccnz L_{name}""")
    tr.extend(loop + loop)
    tr.extend(P.add(f"L_{name}_done:"))


LX = lambda p: 8 + p
LW = lambda p: 14 + p
LK = lambda p: 18 + p
LV = lambda p: 22 + p
LWO = lambda p: 24 + p
LOB, LFLAG, LSTAMP, LPOLL = 28, 29, 30, 31
LDSW = lambda h: 1 + h
LTQ, LTO, LTB = 32, 33, 34
LPOOL = 36


def late_setup(A):
    A(f"""
    s_lshr_b32 s{S_T0}, s{S_W}, 1
    s_lshl_b32 s{S_T1}, s{S_BP}, 1
    s_add_u32 s{S_T0}, s{S_T0}, s{S_T1}
    s_lshl_b32 s{S_T0}, s{S_T0}, 5
    s_add_u32 s{S_T0}, s{S_T0}, s{S_H}
    s_lshl_b32 s{S_T0}, s{S_T0}, 17
    s_and_b32 s{S_T1}, s{S_W}, 1
    s_lshl_b32 s{S_T1}, s{S_T1}, 12
    s_add_u32 s{S_T0}, s{S_T0}, s{S_T1}
    v_lshl_add_u32 v5, v1, 8, s{S_T0}
    v_xor_b32 v7, v2, v1
    """)
    for p in range(4):
        A(f"v_xor_b32 v3, {4 * p}, v7\nv_lshl_add_u32 v{LK(p)}, v3, 4, v5")
    A(f"""
    v_lshl_add_u32 v{LV(0)}, v6, 4, v5
    v_xor_b32 v7, 8, v6
    v_lshl_add_u32 v{LV(1)}, v7, 4, v5
    s_lshl_b32 s{S_T0}, s{S_HG}, 21
    s_lshl_b32 s{S_T1}, s{S_W}, 15
    s_add_u32 s{S_T0}, s{S_T0}, s{S_T1}
    s_lshl_b32 s{S_T1}, s{S_NU}, 8
    s_add_u32 s{S_T0}, s{S_T0}, s{S_T1}
    v_lshl_add_u32 v5, v1, 11, s{S_T0}
    v_add_u32 v{LTO}, s{S_T0}, v{LTO}
    v_lshl_add_u32 v{LWO(0)}, v6, 4, v5
    v_lshl_add_u32 v7, v7, 4, v5
    v_add_u32 v{LWO(1)}, {8192 - 1024}, v7
    v_add_u32 v{LWO(2)}, {2 * 8192 - 2048}, v{LWO(0)}
    v_add_u32 v{LWO(3)}, {3 * 8192 - 3072}, v7
    s_mul_i32 s{S_T0}, s{S_GRP}, 393216
    s_add_u32 s{S_T0}, s{S_T0}, s{S_LWB}
    v_lshl_add_u32 v{LOB}, v0, 4, s{S_T0}
    s_lshl_b32 s{S_T1}, s{S_J}, 2
    s_add_u32 s{S_T1}, s{S_T1}, s{S_W}
    s_mul_i32 s{S_T1}, s{S_T1}, 3072
    s_mul_i32 s{S_T0}, s{S_GRP}, 393216
    s_add_u32 s{S_T0}, s{S_T0}, s{S_T1}
    v_min_u32 v{LTB}, 23, v0
    v_lshl_add_u32 v{LTB}, v{LTB}, 7, s{S_T0}
    s_lshl_b32 s{S_T0}, s2, 13
    s_lshl_b32 s{S_T1}, s{S_W}, 7
    s_add_u32 s{S_T0}, s{S_T0}, s{S_T1}
    s_add_u32 s{S_T0}, s{S_T0}, {WS_INBOX}
    v_lshl_add_u32 v{LFLAG}, v4, 2, s{S_T0}
    s_lshl_b32 s{S_J2}, s{S_J}, 1
    s_add_u32 s{S_T0}, s{S_LWW}, {KRING}
    v_lshl_add_u32 v{LDSW(0)}, v0, 4, s{S_T0}
    v_add_u32 v{LDSW(1)}, {VRING - KRING}, v{LDSW(0)}
    """)


def loader(P, cfg):
    tr = []
    A = lambda t: tr.extend(P.add(t))
    A(f"""
    v_lshrrev_b32 v1, 4, v0
    v_and_b32 v2, 15, v0
    v_lshrrev_b32 v3, 3, v0
    v_and_b32 v4, 7, v0
    s_mul_i32 s{S_T0}, s{S_BP}, 192
    s_mul_i32 s{S_T1}, s{S_W}, 48
    s_add_u32 s{S_T0}, s{S_T0}, s{S_T1}
    s_lshl_b32 s{S_T0}, s{S_T0}, 11
    v_lshl_add_u32 v5, v3, 11, s{S_T0}
    v_xor_b32 v6, v4, v1
    v_lshl_add_u32 v{LX(0)}, v6, 4, v5
    v_xor_b32 v6, 4, v6
    v_lshl_add_u32 v7, v6, 4, v5
    """)
    for p in range(1, 6):
        A(f"v_add_u32 v{LX(p)}, {p * 16384 - (p % 4) * 1024}, v{7 if p & 1 else LX(0)}")
    A(f"""
    s_lshl_b32 s{S_T0}, s{S_W}, 17
    s_lshl_b32 s{S_T1}, s{S_H}, 8
    s_add_u32 s{S_T0}, s{S_T0}, s{S_T1}
    v_lshl_add_u32 v5, v1, 13, s{S_T0}
    v_lshlrev_b32 v6, 1, v1
    v_xor_b32 v6, v6, v2
    v_lshl_add_u32 v{LW(0)}, v6, 4, v5
    v_xor_b32 v7, 8, v6
    v_lshl_add_u32 v7, v7, 4, v5
    v_add_u32 v{LW(1)}, {32768 - 1024}, v{LW(0)}
    v_add_u32 v{LW(2)}, {2 * 32768 - 2048}, v7
    v_add_u32 v{LW(3)}, {3 * 32768 - 3072}, v7
    """)
    if cfg.rot == 1:
        A(f"s_add_u32 s{S_ROT}, s{S_BP}, s{S_J}\ns_and_b32 s{S_ROT}, s{S_ROT}, 3\ns_lshl_b32 s{S_ROT}, s{S_ROT}, 2")
    elif cfg.rot == 2:
        A(f"s_add_u32 s{S_ROT}, s{S_BP}, s{S_J}\ns_and_b32 s{S_ROT}, s{S_ROT}, 1\ns_lshl_b32 s{S_ROT}, s{S_ROT}, 3")
    elif cfg.rot == 3:
        A(f"s_lshl_b32 s{S_ROT}, s{S_HG}, 2")
    elif cfg.rot == 4:
        A(f"s_lshl_b32 s{S_ROT}, s{S_BP}, 2")
    elif cfg.rot == 5:
        A(f"s_lshl_b32 s{S_ROT}, s{S_J}, 1")
    elif cfg.rot == 6:
        A(f"s_and_b32 s{S_ROT}, s{S_J}, 3\ns_lshl_b32 s{S_ROT}, s{S_ROT}, 2")
    else:
        A(f"s_mov_b32 s{S_ROT}, 0")
    A(f"""
    v_bfe_u32 v7, v0, 1, 4
    v_and_b32 v5, 1, v0
    v_lshlrev_b32 v5, 7, v5
    v_lshl_add_u32 v{LTO}, v7, 11, v5
    v_lshl_add_u32 v{LTQ}, v7, 13, v5
    v_add_u32 v{LTQ}, s{S_T0}, v{LTQ}
    """)
    A("s_waitcnt lgkmcnt(0)")
    A(make_srd(((sWQ, 10, 8 << 20), (sX, 4, 768 * 2048))))
    q0 = []
    if cfg.stamps:
        A(f"v_mov_b32 v{LSTAMP}, 0")
        A(loader_stamp(0))
    if not cfg.stag:
        for n in range(2):
            for text, isload in q_stage(cfg, n):
                A(text)
                if isload:
                    q0.append(n)
    A(make_srd(((sK, 6, 32 << 20), (sV, 8, 32 << 20), (sWO, 12, 8 << 20), (sWS, 18, 256 << 20))))
    A(late_ids(cfg))
    late_setup(A)
    if cfg.pre1:
        A(f"s_bitcmp1_b32 s{S_BP}, 0\ns_cbranch_scc1 L_late")
        t0 = loader_role(P, cfg, list(tr), q0, None, cfg.pre, "a")
        return [t0, loader_role(P, cfg, list(tr) + P.add("L_late:"), q0, None, cfg.pre1, "b")]
    if not cfg.stag:
        return [loader_role(P, cfg, tr, q0, None, cfg.pre)]
    A(f"s_cmp_ge_u32 s{S_BP}, 2\ns_cbranch_scc1 L_late")
    t0 = loader_role(P, cfg, list(tr), q0, 0)
    return [t0, loader_role(P, cfg, list(tr) + P.add("L_late:"), q0, 1)]


def loader_stamp(n):
    return (f"s_memrealtime s[{S_ST}:{S_ST+1}]\ns_memtime s[{S_ST+2}:{S_ST+3}]\ns_cmp_eq_u32 s{S_W}, 1\ns_waitcnt lgkmcnt(0)\n"
            f"s_cselect_b32 s{S_ST+4}, s{S_ST+2}, s{S_ST}\nv_writelane_b32 v{LSTAMP}, s{S_ST+4}, {n}")


def q_stage(cfg, n):
    dma = lambda vreg, sr, so, imm, pol: (f"buffer_load_dwordx4 v{vreg}, {srd(sr)}, s{so} offen offset:{imm} {pol} lds", True)
    first = cfg.promote & 1 and n < 4
    o = [(f"""s_add_u32 s{S_T0}, s{S_ROT}, {n}
    s_add_u32 m0, s{S_LWW}, {WRING + (n % 4) * WSLOT}
    s_and_b32 s{S_T0}, s{S_T0}, 15
    s_lshl_b32 s{S_T1}, s{S_T0}, 19""", False)]
    o += [dma(LW(p), sWQ, S_T1, p * 1024, "nt" if first else cfg.pol_wq) for p in range(4)]
    if first:
        o.append((f"buffer_load_dword v{LPOLL}, v{LTQ}, {srd(sWQ)}, s{S_T1} offen", True))
    o.append((f"s_add_u32 m0, s{S_LWB}, {BRING + (n % 4) * BSLOT}\ns_lshl_b32 s{S_T0}, s{S_T0}, 7", False))
    o += [dma(LX(p), sX, S_T0, p * 1024, cfg.pol_x) for p in range(4)]
    o.append((f"s_add_u32 m0, s{S_LWB}, {BRING + (n % 4) * BSLOT + 4096}", False))
    o += [dma(LX(p), sX, S_T0, (p - 4) * 1024, cfg.pol_x) for p in range(4, 6)]
    return o


def loader_role(P, cfg, tr, q0, role, pre="", sfx=""):
    A = lambda t: tr.extend(P.add(t))
    sfx += "" if role is None else str(role)
    q = list(q0)

    def throttle(win):
        win = win or 56
        if win and len(q) >= win:
            A(f"s_waitcnt vmcnt({win - 1})")
            del q[:len(q) - (win - 1)]

    def dma(vreg, s, soff, imm, pol, tag, win=0):
        throttle(win)
        A(f"buffer_load_dwordx4 v{vreg}, {srd(s)}, {soff} offen offset:{imm} {pol} lds")
        q.append(tag)

    def wait(tag):
        if tag in q:
            idx = max(k for k, x in enumerate(q) if x == tag)
            A(f"s_waitcnt vmcnt({len(q) - 1 - idx})")
            del q[:idx + 1]

    def issue_q(n):
        for text, isload in q_stage(cfg, n):
            if isload:
                throttle(0)
                q.append(n)
            A(text)

    kv = []
    for e in range(17):
        if e <= 15:
            kv += [(16 + e, 0, e, p) for p in range(4)]
        if e >= 1:
            kv += [(16 + e, 1, e - 1, p) for p in range(4)]
    pool = list(range(LPOOL, 256, 4))
    parked = []
    state = dict(next=0, m0=None, soff=None, lds=False)

    def issue_kv(upto, k, win):
        state["m0"] = state["soff"] = None
        while state["next"] < upto:
            stage, isv, tile, p = kv[state["next"]]
            state["next"] += 1
            vo, sr = (LV(p & 1), sV) if isv else (LK(p), sK)
            if stage <= k + 2 and state["m0"] != (stage, isv):
                A(f"s_add_u32 m0, s{S_LWW}, {(VRING if isv else KRING) + (tile % 3) * ASLOT}")
                state["m0"] = (stage, isv)
            if state["soff"] != tile:
                A(f"s_mov_b32 s{S_T0}, {tile * 8192}")
                state["soff"] = tile
            if stage <= k + 2:
                dma(vo, sr, f"s{S_T0}", p * 1024, cfg.pol_kv, stage, win)
            else:
                r = pool.pop(0)
                throttle(win)
                A(f"buffer_load_dwordx4 {v4(r)}, v{vo}, {srd(sr)}, s{S_T0} offen offset:{p * 1024} {cfg.pol_kv}")
                q.append(("r", r))
                parked.append((stage, isv, tile, p, r))

    def unpark(k):
        while parked and parked[0][0] <= k + 2:
            stage, isv, tile, p, r = parked.pop(0)
            wait(("r", r))
            A(f"ds_write_b128 v{LDSW(isv)}, {v4(r)} offset:{(tile % 3) * ASLOT + p * 1024}")
            pool.append(r)
            state["lds"] = True

    def o_index(m):
        if cfg.par:
            if m < 8:
                return f"s_add_u32 s{S_T0}, s{S_J2}, {4 * (m >> 1) + (m & 1)}"
            if cfg.par == 1:
                return f"s_add_u32 s{S_T0}, s{S_J2}, {4 * ((m - 8) >> 1) + (m & 1) + 2}"
            return f"s_lshl_b32 s{S_T0}, s{S_NU}, 1\ns_add_u32 s{S_T0}, s{S_T0}, {4 * ((m - 8) >> 1) + (m & 1) + 2}"
        if m < 2 or not cfg.oord:
            return f"s_add_u32 s{S_T0}, s{S_J2}, {m}"
        return f"""s_cmp_gt_u32 s{S_T3}, {(m - 2) // 2}
        s_cselect_b32 s{S_T0}, {m - 2}, {m}
        s_add_u32 s{S_T0}, s{S_T0}, s{S_T2}"""

    def issue_ow(m, tag, win=0):
        A(f"""{o_index(m)}
        s_add_u32 m0, s{S_LWW}, {WRING + (m % 4) * WSLOT}
        s_and_b32 s{S_T0}, s{S_T0}, 15
        s_lshl_b32 s{S_T1}, s{S_T0}, 17""")
        first = cfg.promote & 2 and m < 4
        for p in range(4):
            dma(LWO(p), sWO, f"s{S_T1}", p * 1024, "nt" if first else cfg.pol_wo, tag, 0 if first else win)
        if first:
            A(f"buffer_load_dword v{LPOLL}, v{LTO}, {srd(sWO)}, s{S_T1} offen")
            q.append("t")

    def touch_w(b):
        A(f"""s_lshl_b32 s{S_T0}, s{S_BP}, 17
        s_add_u32 s{S_T0}, s{S_T0}, {b << 19}
        buffer_load_dword v{LPOLL}, v{LTO}, {srd(sWO)}, s{S_T0} offen""")
        q.append("t")

    def touch_b(b):
        A(f"s_mov_b32 s{S_T0}, {b * 98304}\nbuffer_load_dword v{LPOLL}, v{LTB}, {srd(sWS)}, s{S_T0} offen sc1")
        q.append("t")

    coop = [int(x) for x in str(cfg.coop).split(".")] if cfg.coop else []
    spre = [int(x) for x in str(cfg.spre).split(".")] if cfg.spre else []
    sdone = [0]

    def scalar_pre():
        for _ in range(spre.pop(0) if spre else 0):
            n, r = divmod(sdone[0], 32)
            if n > 3:
                break
            if r == 0:
                A(f"""s_add_u32 s{S_T0}, s{S_NU}, {2 * n + 1}
                s_and_b32 s{S_T0}, s{S_T0}, 7
                s_lshl_b32 s{S_T0}, s{S_T0}, 18
                s_add_u32 s{S_T0}, s{S_T0}, s{S_DW}
                s_add_u32 s{S_SB + 2 * (n & 1)}, s12, s{S_T0}
                s_addc_u32 s{S_SB + 2 * (n & 1) + 1}, s13, 0""")
            A(f"s_load_dword s{S_SB + 4}, s[{S_SB + 2 * (n & 1)}:{S_SB + 2 * (n & 1) + 1}], {(r >> 2) * 2048 + (r & 3) * 64}")
            sdone[0] += 1

    def coop_after(m):
        for b, mm in enumerate(coop):
            if mm == m:
                touch_b(b + 1)
                touch_w(b + 1)

    def issue_ob(m, tag):
        A(f"""{o_index(m)}
        s_add_u32 m0, s{S_LWB}, {BRING + ((m - 2) % 4) * BSLOT}
        s_and_b32 s{S_T0}, s{S_T0}, 15
        s_mul_i32 s{S_T0}, s{S_T0}, 24576""")
        for p in range(4):
            dma(LOB, sWS, f"s{S_T0}", p * 1024, cfg.pol_ob, tag)
        A(f"s_add_u32 m0, s{S_LWB}, {BRING + ((m - 2) % 4) * BSLOT + 4096}\ns_add_u32 s{S_T1}, s{S_T0}, 4096")
        for p in range(2):
            dma(LOB, sWS, f"s{S_T1}", p * 1024, cfg.pol_ob, tag)

    nst = [1]

    def stamp():
        if cfg.stamps:
            A(loader_stamp(nst[0]))
            nst[0] += 1

    def barrier():
        if state["lds"]:
            A("s_waitcnt lgkmcnt(0)")
            state["lds"] = False
        A("s_barrier")
        stamp()

    end = lambda n: 0 if n < 16 else min(128, 4 + 8 * (n - 16))
    pre = [int(x) for x in str(pre).split(".")] if pre else []
    pre = [0] * (17 - len(pre)) + pre
    wo_at = [int(x) for x in str(cfg.wo_at).split(".")]
    wtag = lambda m: 33 if m < 2 else 33 + m
    if role == 1:
        A(f"""
        s_lshr_b32 s{S_T0}, s2, 3
        s_and_b32 s{S_T0}, s{S_T0}, 15
        s_lshl_b32 s{S_T0}, s{S_T0}, 2
        s_add_u32 s{S_T0}, s{S_T0}, s{S_W}
        s_lshl_b32 s{S_T1}, s{S_T0}, 13
        s_lshl_b32 s{S_T2}, s{S_HG}, 11
        s_add_u32 s{S_T1}, s{S_T1}, s{S_T2}
        v_lshrrev_b32 v3, 4, v0
        v_and_b32 v4, 15, v0
        v_lshl_add_u32 v5, v3, 19, s{S_T1}
        v_lshl_add_u32 v5, v4, 7, v5
        s_mul_i32 s{S_T1}, s{S_T0}, {6 * 2048}
        v_lshrrev_b32 v3, 3, v0
        v_min_u32 v3, 5, v3
        v_and_b32 v4, 7, v0
        v_lshl_add_u32 v6, v3, 11, s{S_T1}
        v_lshl_add_u32 v6, v4, 7, v6
        """)
        for qt in range(4):
            if qt % 2 == 0:
                A(f"buffer_load_dword v{LPOLL}, v6, {srd(sX)}, 0 offen offset:{(qt // 2) * 1024}")
                q.append("t")
            A(f"s_mov_b32 s{S_T0}, {qt << 21}\nbuffer_load_dword v{LPOLL}, v5, {srd(sWQ)}, s{S_T0} offen")
            q.append("t")
        A(f"s_mov_b32 s{S_T0}, {384 * 2048}")
        for h in range(2):
            A(f"buffer_load_dword v{LPOLL}, v6, {srd(sX)}, s{S_T0} offen offset:{h * 1024}")
            q.append("t")
        pre[0] = cfg.s1pre
        issue_kv(pre[0], -1, cfg.s1win)
    if cfg.stag:
        issue_q(0)
        issue_q(1)
    base = sum(pre)
    issue_kv(pre[0], -1, 0)
    nq = 2
    for k in range(0, 33):
        wait(k)
        barrier()
        unpark(k)
        while nq <= min(15, k + 1 + cfg.qd):
            issue_q(nq)
            nq += 1
        w = cfg.win if role is None else (cfg.s1win if role else (cfg.s0win if k < cfg.s0sw else cfg.s0late))
        win = 0 if k < 16 else (max(w, cfg.win16) if k == 16 else w)
        lead = min(128, end(k + 1) + (win or 8)) if k >= 14 else 0
        if k <= 15:
            ramp = sum(pre[:k + 2]) + (4 * max(0, k - 13) if role == 1 else 0)
        else:
            b0 = base + cfg.win16 + (8 if role == 1 else 0)
            ramp = min(128, b0 + ((128 - b0) * (k - 16)) // (cfg.last - 16))
        issue_kv(max(lead, ramp if base else 0), k, win)
        if k == 20 and cfg.oord:
            A(f"""s_add_u32 s{S_T2}, s{S_BP}, s{S_J}
            s_and_b32 s{S_T2}, s{S_T2}, {cfg.oord - 1}
            s_mul_i32 s{S_T2}, s{S_T2}, {8 // cfg.oord}
            s_sub_u32 s{S_T3}, s{S_J}, s{S_T2}
            s_and_b32 s{S_T3}, s{S_T3}, 7
            s_lshl_b32 s{S_T2}, s{S_T2}, 1""")
        for h, tk in enumerate(str(cfg.ptouch).split(".") if cfg.ptouch else []):
            if int(tk) == k:
                throttle(win)
                A(f"""s_mul_i32 s{S_T0}, s{S_J}, 49152
                s_add_u32 s{S_T0}, s{S_T0}, {h * 24576}
                v_mul_u32_u24 v3, 0x70, v0
                v_add_u32 v3, v3, v{LOB}
                s_mov_b32 exec_hi, 0xffff
                buffer_load_dword v{LPOLL}, v3, {srd(sWS)}, s{S_T0} offen
                s_mov_b64 exec, -1""")
                q.append("t")
        if k == 26:
            A(f"buffer_load_dword v{LPOLL}, v{LFLAG}, {srd(sWS)}, 0 offen sc1")
            q.append("t")
        for m in range(4):
            if wo_at[m] == k:
                issue_ow(m, wtag(m), win if state["next"] < 128 else 0)
        if coop and k == cfg.coopw0:
            touch_w(0)
    assert state["next"] == 128 and not parked
    if spre:
        A(f"""s_lshl_b32 s{S_DW}, s{S_HG}, 21
        s_lshl_b32 s{S_T0}, s{S_BP}, 16
        s_add_u32 s{S_DW}, s{S_DW}, s{S_T0}
        s_lshl_b32 s{S_T0}, s{S_W}, 14
        s_add_u32 s{S_DW}, s{S_DW}, s{S_T0}
        s_lshl_b32 s{S_T0}, s{S_NU}, 8
        s_add_u32 s{S_DW}, s{S_DW}, s{S_T0}""")
    wait(33)
    barrier()
    def need_head(m):
        A(f"""{o_index(m)}
        s_bfe_u32 s{S_T1}, s{S_T0}, 0x30001
        s_mov_b32 s{S_SPIN}, 0""")
        n = f"L_need{m}{sfx}"
        loop = P.add(f"""{n}:
        s_bitcmp1_b32 s{S_MASK}, s{S_T1}
        s_cbranch_scc1 {n}_done
        buffer_load_dword v{LPOLL}, v{LFLAG}, {srd(sWS)}, 0 offen sc1
        s_add_u32 s{S_SPIN}, s{S_SPIN}, 1
        s_waitcnt vmcnt(0)
        v_cmp_eq_u32 vcc, 1, v{LPOLL}
        s_mov_b32 s{S_MASK}, vcc_lo
        s_cmp_lt_u32 s{S_SPIN}, {SPIN_MAX}
        s_cbranch_scc1 {n}""")
        tr.extend(loop + loop)
        A(f"{n}_done:")

    if wo_at[2] == 33:
        issue_ow(2, 35)
    if cfg.prog:
        A(f"s_mov_b32 s{S_MASK}, 0")
        need_head(2)
    else:
        poll_loop(P, tr, "poll1" + sfx, LPOLL, LFLAG)
        del q[:]
        q.append("poll")
    stamp()
    if coop:
        touch_b(0)
    issue_ob(2, 35)
    if wo_at[2] == 34:
        issue_ow(2, 35)
    coop_after(2)
    if wo_at[3] == 33:
        issue_ow(3, 36)
    issue_ob(3, 36)
    if wo_at[3] == 34:
        issue_ow(3, 36)
    coop_after(3)
    scalar_pre()
    nm = 4
    for k in range(35, 49):
        wait(k)
        barrier()
        while nm <= min(15, k + 1 + cfg.od - 33):
            issue_ow(nm, nm + 33)
            if cfg.prog and nm % 2 == 0:
                need_head(nm)
            issue_ob(nm, nm + 33)
            coop_after(nm)
            nm += 1
        scalar_pre()
    if cfg.stamps:
        A(f"""s_lshl_b32 s{S_T0}, s2, 3
        s_add_u32 s{S_T0}, s{S_T0}, s{S_WAVE}
        s_lshl_b32 s{S_T0}, s{S_T0}, 8
        s_add_u32 s{S_T0}, s{S_T0}, {WS_STAMP}
        v_lshl_add_u32 v1, v0, 2, s{S_T0}
        buffer_store_dword v{LSTAMP}, v1, {srd(sWS)}, 0 offen""")
    A("s_endpgm")
    return tr


def order(n, snake):
    return [(T, t) for T in range(n) for t in (reversed(T3) if snake and T & 1 else T3)]


def gemm_reads(b, s, kind, with_b=True):
    r = []
    if with_b:
        for t in T3:
            if kind == "q":
                r.append(f"ds_read_b128 {v4(FB(b, t))}, v{AB(s)} offset:{t * 2048}")
            else:
                r.append(f"ds_read_b128 {v4(FB(b, t))}, v{AB(0)} offset:{s * 3072 + t * 1024}")
    for T in range(8):
        for u in range(2):
            off = s * 8192 + u * (1024 if kind == "q" else 4096)
            r.append(f"ds_read_b64_tr_b16 {v2(FA(b, T) + 2 * u)}, v{AW(T)} offset:{off}")
    return r


def gemm_mfma(cfg, b, bsrc=None, zero=False):
    return [f"{MFMA} {v4(ACC(T, t))}, {v4(FA(b, T))}, {v4(bsrc(t) if bsrc else FB(b, t))}, {'0' if zero else v4(ACC(T, t))}"
            for T, t in order(8, cfg.snake)]


def gemm_loop(P, tr, cfg, kind, label, iters):
    sal = [f"s_add_u32 s{S_SLOT}, s{S_SLOT}, 1", f"s_and_b32 s{S_SLOT}, s{S_SLOT}, 3", f"s_cselect_b32 s{S_DW}, {WSLOT}, s{S_T2}"]
    if kind == "o":
        sal.append(f"s_cmp_lg_u32 s{S_SLOT}, 2")
    sal.append(f"s_cselect_b32 s{S_DB}, {BSLOT}, s{S_T3}")
    val = [f"v_add_u32 v{AB(s)}, s{S_DB}, v{AB(s)}" for s in range(2 if kind == "q" else 1)]
    val += [f"v_add_u32 v{AW(T)}, s{S_DW}, v{AW(T)}" for T in range(8)]
    nb = len(val) - 8
    hook = [(18, f"s_cmp_eq_u32 s{S_CNT}, s{S_FLAG}"), (19, "s_cbranch_scc1 L_count"), (19, "L_counted:")] if kind == "q" else []
    if kind == "o" and cfg.wb:
        hook = [(18, f"s_cmp_eq_u32 s{S_CNT}, s{S_FLAG}"), (19, "s_cbranch_scc1 L_wb"), (19, "L_wbdone:")]
    h0 = weave(gemm_mfma(cfg, 0), spread(gemm_reads(1, 1, kind), 0, 18) + spread(sal, 0, 4) + spread(val[:nb + 6], 12, 19)
               + spread(val[nb + 6:], 20, 21) + [(22, "s_waitcnt lgkmcnt(0)"), (22, "s_barrier")])
    h1 = weave(gemm_mfma(cfg, 1), spread(gemm_reads(0, 0, kind), -1, 17)
               + hook + [(20, f"s_sub_u32 s{S_CNT}, s{S_CNT}, 1"), (20, f"s_cmp_lg_u32 s{S_CNT}, 0")])
    tr.extend(P.add(f"s_mov_b32 s{S_CNT}, {iters}\ns_waitcnt lgkmcnt(0)"))
    if kind == "q":
        tr.extend(P.add(".p2align 3"))
        body = P.add([label + ":"] + h0 + h1 + ["s_waitcnt lgkmcnt(0)", f"s_cbranch_scc1 {label}"])
        tr.extend(body + body)
        return
    h0 = weave(gemm_mfma(cfg, 0), spread(gemm_reads(1, 1, kind), 0, 18) + spread(sal, 0, 4) + spread(val[:nb + 6], 11, 18)
               + spread(val[nb + 6:], 19, 19) + [(6, f"s_sub_u32 s{S_CNT}, s{S_CNT}, 1"), (7, f"s_cmp_eq_u32 s{S_CNT}, 0"),
                                                  (20, f"s_cbranch_scc1 {label}_out"), (22, "s_waitcnt lgkmcnt(0)"), (22, "s_barrier")])
    h1 = weave(gemm_mfma(cfg, 1), spread(gemm_reads(0, 0, kind), -1, 17) + hook)
    cut = h0.index(f"s_cbranch_scc1 {label}_out") + 1
    tr.extend(P.add(".p2align 3"))
    first = P.add([label + ":"] + h0[:cut])
    rest = P.add(h0[cut:] + h1 + ["s_waitcnt lgkmcnt(0)", f"s_branch {label}"])
    tr.extend(first + rest + first + P.add([label + "_out:"] + gemm_mfma(cfg, 0)[21:]))


def k_reads(tile):
    return [f"ds_read_b128 {v4(FR(kt * 4 + s))}, v{AK(s)} offset:{(tile % 3) * ASLOT + kt * 4096}" for kt in range(2) for s in range(4)]


def v_reads(T, tile):
    return [f"ds_read_b64_tr_b16 {v2(FR(T) + 2 * u)}, v{AV(T)} offset:{(tile % 3) * ASLOT + u * 4096}" for u in range(2)]


def qk_mfma(first=False):
    c0 = lambda t: "0" if first else v4(NM(t))
    return [f"{MFMA} {v4(SS(kt, t))}, {v4(FR(kt * 4 + s))}, {v4(QF(s, t))}, {c0(t) if s == 0 else v4(SS(kt, t))}"
            for kt in range(2) for s in range(4) for t in T3]


def pv_mfma(cfg):
    return [f"{MFMA} {v4(ACC(T, t))}, {v4(FR(T))}, {v4(PP(t))}, {v4(ACC(T, t))}" for T, t in order(8, cfg.snake)]


def xlane(op, regs, tmps):
    out = []
    for sw in ("v_permlane32_swap_b32", "v_permlane16_swap_b32"):
        out += [f"v_mov_b32 v{x}, v{r}" for r, x in zip(regs, tmps)]
        out += [f"{sw} v{r}, v{x}" for r, x in zip(regs, tmps)]
        out += [f"{op} v{r}, v{r}, v{x}" for r, x in zip(regs, tmps)]
    return out


def row_max():
    o = [f"v_max3_f32 v{VD(t)}, v{SS(0, t)}, v{SS(0, t) + 1}, v{SS(0, t) + 2}" for t in T3]
    o += [f"v_max3_f32 v{VD(t)}, v{SS(0, t) + 3}, v{SS(1, t)}, v{VD(t)}" for t in T3]
    o += [f"v_max3_f32 v{VD(t)}, v{SS(1, t) + 1}, v{SS(1, t) + 2}, v{VD(t)}" for t in T3]
    o += [f"v_max_f32 v{VD(t)}, v{SS(1, t) + 3}, v{VD(t)}" for t in T3]
    return o + xlane("v_max_f32", [VD(t) for t in T3], [VT(t) for t in T3])


def shift_scores():
    return [f"v_sub_f32 v{SS(kt, t) + r}, v{SS(kt, t) + r}, v{VD(t)}" for kt in range(2) for t in T3 for r in range(4)]


def guard_max(kt):
    r = [SS(kt, t) + k for t in T3 for k in range(4)]
    if kt == 0:
        o = [f"v_max3_f32 v{VX}, v{r[0]}, v{r[1]}, v{r[2]}"]
        o += [f"v_max3_f32 v{VX}, v{r[k]}, v{r[k + 1]}, v{VX}" for k in range(3, 11, 2)]
        return o + [f"v_max_f32 v{VX}, v{r[11]}, v{VX}"]
    return [f"v_max3_f32 v{VX}, v{r[k]}, v{r[k + 1]}, v{VX}" for k in range(0, 12, 2)]


def p_cvt(kt, h=None):
    return [f"v_cvt_pk_bf16_f32 v{PP(t) + 2 * kt + hh}, v{SS(kt, t) + 2 * hh}, v{SS(kt, t) + 2 * hh + 1}"
            for hh in ((0, 1) if h is None else (h,)) for t in T3]


def exp_sum(cfg, kt, h):
    o = [f"v_exp_f32 v{SS(kt, t) + 2 * h + r}, v{SS(kt, t) + 2 * h + r}" for t in T3 for r in range(2)]
    if cfg.pk:
        o += [f"v_pk_add_f32 {v2(VL(t))}, {v2(VL(t))}, {v2(SS(kt, t) + 2 * h)}" for t in T3]
    else:
        o += [f"v_add_f32 v{VL(t) + r}, v{VL(t) + r}, v{SS(kt, t) + 2 * h + r}" for t in T3 for r in range(2)]
    return o


def exps(kt, h):
    return [f"v_exp_f32 v{SS(kt, t) + 2 * h + r}, v{SS(kt, t) + 2 * h + r}" for t in T3 for r in range(2)]


def pk_sum(kt, h):
    return [f"v_pk_add_f32 {v2(VL(t))}, {v2(VL(t))}, {v2(SS(kt, t) + 2 * h)}" for t in T3]


def rescale(by):
    return [f"v_mul_f32 v{ACC(T, t) + r}, v{ACC(T, t) + r}, v{by(t)}" for T in range(8) for t in T3 for r in range(4)]


def acc_to_frag(s):
    return [f"v_cvt_pk_bf16_f32 v{QF(s, t) + 2 * u + h}, v{ACC(2 * s + u, t) + 2 * h}, v{ACC(2 * s + u, t) + 2 * h + 1}"
            for u in range(2) for t in T3 for h in range(2)]


def compute(P, cfg):
    tr = []
    A = lambda t: tr.extend(P.add(t))
    nst = [0]

    def stamp():
        if cfg.stamps:
            A(f"s_memrealtime s[{S_ST + 2 * nst[0]}:{S_ST + 2 * nst[0] + 1}]\ns_waitcnt lgkmcnt(0)")
            nst[0] += 1

    A(f"L_compute:\ns_getpc_b64 s[{S_PC}:{S_PC + 1}]\nL_text:\n{late_ids(cfg)}\ns_waitcnt lgkmcnt(0)")
    A(make_srd(((sOUT, 14, 768 * 4096), (sWS, 18, 256 << 20), (sDBG, 16, 256))))
    if cfg.prio:
        A(f"s_setprio {cfg.prio}")
    A(f"""
    s_getreg_b32 s{S_XCC}, hwreg(HW_REG_XCC_ID, 0, 3)
    s_cmp_lg_u32 s{S_W}, 0
    s_cbranch_scc1 L_noclear
    s_lshl_b32 s{S_T0}, s2, 13
    s_add_u32 s{S_T0}, s{S_T0}, {WS_INBOX}
    v_lshrrev_b32 v1, 3, v0
    v_and_b32 v2, 7, v0
    v_lshlrev_b32 v2, 2, v2
    v_lshl_add_u32 v2, v1, 7, v2
    v_min_u32 v1, 47, v0
    v_lshlrev_b32 v1, 7, v1
    v_cmp_gt_u32 vcc, 32, v0
    v_cndmask_b32 v1, v1, v2, vcc
    v_mov_b32 v2, 0
    buffer_store_dword v2, v1, {srd(sWS)}, s{S_T0} offen sc1
    {code_touch(0, 110, 111) if cfg.ctouch else ""}
    L_noclear:
    s_lshl_b32 s{S_XCC}, s{S_XCC}, 2
    v_and_b32 v{V_TMP}, 3, v0
    v_xor_b32 v{V_TMP}, s{S_GRP}, v{V_TMP}
    v_lshlrev_b32 v{V_TMP}, 2, v{V_TMP}
    v_lshrrev_b32 v100, 4, v0
    v_and_b32 v101, 15, v0
    v_bfe_u32 v102, v0, 2, 2
    v_bfe_u32 v103, v0, 1, 1
    v_and_b32 v104, 1, v0
    v_lshlrev_b32 v109, 4, v0
    """)
    A(f"""
    v_lshl_add_u32 v105, v100, 3, v102
    v_lshlrev_b32 v105, 8, v105
    v_lshl_add_u32 v105, v104, 3, v105
    v_lshl_add_u32 v105, v103, 4, v105
    v_and_b32 v106, 1, v100
    v_lshl_add_u32 v106, v106, 2, v102
    v_lshl_add_u32 v{AW(0)}, v106, 5, v105
    """)
    for T in range(1, 8):
        A(f"v_xor_b32 v{AW(T)}, {T << 5}, v{AW(0)}")
    A(f"""
    s_add_u32 s{S_T0}, s{S_LWB}, {BRING}
    v_lshl_add_u32 v105, v101, 7, s{S_T0}
    v_lshrrev_b32 v107, 1, v101
    v_xor_b32 v107, v107, v100
    v_lshl_add_u32 v{AB(0)}, v107, 4, v105
    v_xor_b32 v{AB(1)}, 64, v{AB(0)}
    """)
    A(f"""
    s_lshr_b32 s{S_T0}, s{S_W}, 1
    s_lshl_b32 s{S_T0}, s{S_T0}, 13
    s_add_u32 s{S_T0}, s{S_T0}, {KRING}
    v_lshl_add_u32 v105, v101, 8, s{S_T0}
    v_lshrrev_b32 v107, 1, v100
    v_and_b32 v108, 1, v100
    v_lshl_add_u32 v107, v108, 1, v107
    v_xor_b32 v107, v107, v101
    v_lshl_add_u32 v{AK(0)}, v107, 4, v105
    """)
    for s in range(1, 4):
        A(f"v_xor_b32 v{AK(s)}, {s << 6}, v{AK(0)}")
    A(f"""
    s_add_u32 s{S_T0}, s{S_T0}, {VRING - KRING}
    v_lshl_add_u32 v105, v100, 2, v102
    v_lshl_add_u32 v105, v105, 8, s{S_T0}
    v_lshl_add_u32 v105, v104, 3, v105
    v_lshl_add_u32 v105, v103, 4, v105
    v_lshl_add_u32 v{AV(0)}, v106, 5, v105
    """)
    for T in range(1, 8):
        A(f"v_xor_b32 v{AV(T)}, {T << 5}, v{AV(0)}")
    A(f"s_mov_b32 s{S_C}, {f32(1.4426950408889634 / 128 ** 0.5)}\ns_mov_b32 s{S_C + 1}, s{S_C}")
    A(f"s_mov_b32 s{S_T2}, {-3 * WSLOT}\ns_mov_b32 s{S_T3}, {-3 * BSLOT}\ns_mov_b32 s{S_SLOT}, 0")
    A([f"v_pk_mov_b32 {v2(r)}, 0, 0" for r in range(0, 96, 2)])
    if cfg.tag or cfg.oclear:
        A([f"v_mov_b32 v{r}, -1" for r in range(112, 116)])
    if cfg.tag:
        A(f"""s_mul_i32 s{S_T0}, s{S_W}, 9216
        s_mul_i32 s{S_T1}, s2, 36864
        s_add_u32 s{S_T0}, s{S_T0}, s{S_T1}
        s_add_u32 s{S_T0}, s{S_T0}, {WS_X}""")
        for k in range(9):
            if k and k % 4 == 0:
                A(f"s_add_u32 s{S_T0}, s{S_T0}, 4096")
            A(f"buffer_store_dwordx4 v[112:115], v109, {srd(sWS)}, s{S_T0} offen offset:{(k % 4) * 1024} sc1")
    if cfg.oclear:
        A(f"""s_mul_i32 s{S_T0}, s{S_GRP}, 393216
        s_mul_i32 s{S_T1}, s{S_J}, 49152
        s_add_u32 s{S_T0}, s{S_T0}, s{S_T1}
        s_mul_i32 s{S_T1}, s{S_W}, 12288
        s_add_u32 s{S_T0}, s{S_T0}, s{S_T1}""")
        for k in range(12):
            if k and k % 4 == 0:
                A(f"s_add_u32 s{S_T0}, s{S_T0}, 4096")
            A(f"buffer_store_dwordx4 v[112:115], v109, {srd(sWS)}, s{S_T0} offen offset:{(k % 4) * 1024} sc1")
    count = f"""s_lshl_b32 s{S_T0}, 1, s{S_XCC}
    v_mov_b32 v{V_CHK}, s{S_T0}
    s_mov_b64 exec, 1
    s_waitcnt vmcnt(0)
    buffer_atomic_add v{V_CHK}, v{V_TMP}, {srd(sDBG)}, 0 offen
    s_mov_b64 exec, -1""".split("\n")
    rare = [["L_count:", f"s_cmp_eq_u32 s{S_FLAG}, {cfg.fetch_at}", "s_cbranch_scc1 L_fetch", f"s_mov_b32 s{S_FLAG}, {cfg.fetch_at}",
             "s_waitcnt vmcnt(0)", f"s_cmp_lg_u32 s{S_W}, 0", "s_cbranch_scc1 L_counted"] + count + ["s_branch L_counted",
             "L_fetch:", f"buffer_load_dword v{V_CHK}, v{V_TMP}, {srd(sDBG)}, 0 offen sc1", "s_branch L_counted"]]
    A(f"s_cmp_eq_u32 s{S_W}, 0\ns_cselect_b32 s{S_FLAG}, {cfg.count_at}, {cfg.count_at + 1}")
    assert not (cfg.stag and (cfg.tag or cfg.oclear))
    if cfg.stag:
        A([f"s_cmp_ge_u32 s{S_BP}, 2", f"s_cselect_b32 s{S_T1}, s{S_FLAG}, 0", f"s_cmp_lg_u32 s{S_T1}, {cfg.count_at}", "s_cbranch_scc1 L_nocount"]
          + count + [f"s_mov_b32 s{S_FLAG}, {cfg.fetch_at}", "L_nocount:"])
    A("s_barrier")
    A(gemm_reads(0, 0, "q"))
    gemm_loop(P, tr, cfg, "q", "L_qloop", 16)
    A(k_reads(0))
    A(f"s_mov_b32 s{S_SPIN}, 0")
    chk = P.add(f"""L_chk:
    s_waitcnt vmcnt(0)
    v_lshrrev_b32 v{VT(0)}, 4, v{V_CHK}
    v_and_b32 v{VT(0)}, 0x0f0f0f0f, v{VT(0)}
    v_and_b32 v{VT(1)}, 0x0f0f0f0f, v{V_CHK}
    v_add_u32 v{VT(0)}, v{VT(0)}, v{VT(1)}
    v_sad_u8 v{VT(0)}, v{VT(0)}, 0, 0
    v_readfirstlane_b32 s{S_T1}, v{V_CHK}
    v_cmp_ne_u32 vcc, 8, v{VT(0)}
    s_cbranch_vccnz L_rechk
    L_chk_done:""")
    tr.extend(chk)
    rare.append(["L_rechk:", f"buffer_load_dword v{V_CHK}, v{V_TMP}, {srd(sDBG)}, 0 offen sc1", f"s_add_u32 s{S_SPIN}, s{S_SPIN}, 1",
                 f"s_cmp_lt_u32 s{S_SPIN}, {cfg.chk_max}", "s_cbranch_scc1 L_chk", "s_waitcnt vmcnt(0)", "s_branch L_chk_done"])
    A([f"v_pk_mul_f32 {v2(r)}, {v2(r)}, s[{S_C}:{S_C + 1}]" for r in range(0, 96, 2)])

    def q_frag(s):
        return acc_to_frag(s) + [f"v_permlane16_swap_b32 v{QF(s, t) + h}, v{QF(s, t) + 2 + h}" for t in T3 for h in range(2)]

    qk0 = qk_mfma(True)
    qk0 = [qk0[kt * 12 + s * 3 + t] for s in range(4) for kt in range(2) for t in T3]
    zero = [f"v_mov_b64 {v2(r)}, 0" for r in range(0, 96, 2)]
    addr = f"""s_lshl_b32 s{S_T0}, 8, s{S_XCC}
    s_cmp_eq_u32 s{S_T0}, s{S_T1}
    s_cselect_b32 s{S_FLAG}, {cfg.local}, 0
    {lane_id(V_TMP)}
    s_mul_i32 s{S_T0}, s{S_GRP}, 393216
    s_mul_i32 s{S_T1}, s{S_J}, 49152
    s_add_u32 s{S_T0}, s{S_T0}, s{S_T1}
    s_add_u32 s{S_T0}, s{S_T0}, s{S_LWB}
    v_lshl_add_u32 v{V_OST}, v{V_TMP}, 4, s{S_T0}
    s_andn2_b32 s{S_T0}, s2, 0x38
    s_lshl_b32 s{S_T0}, s{S_T0}, 13
    s_lshl_b32 s{S_T1}, s{S_J}, 2
    s_add_u32 s{S_T0}, s{S_T0}, s{S_T1}
    s_lshl_b32 s{S_T1}, s{S_W}, 7
    s_add_u32 s{S_T0}, s{S_T0}, s{S_T1}
    s_add_u32 s{S_T0}, s{S_T0}, {WS_INBOX}
    v_lshl_add_u32 v{V_FLG}, v{V_TMP}, 16, s{S_T0}
    v_mov_b32 v{V_CHK}, 1""".split("\n")
    A(q_frag(0))
    A(weave(qk0, spread(addr, 0, 20) + [(6 * s - 6 + k // 3, x) for s in range(1, 4) for k, x in enumerate(q_frag(s))] + spread(zero[:12], 18, 23)))
    A(zero[12:20])
    A(row_max())
    A([f"v_pk_add_f32 {v2(SS(kt, t) + r)}, {v2(SS(kt, t) + r)}, {v2(VD(t) & ~1)} op_sel:[0,{VD(t) & 1}] op_sel_hi:[1,{VD(t) & 1}] neg_lo:[0,1] neg_hi:[0,1]"
       for kt in range(2) for t in T3 for r in (0, 2)])
    A([f"v_sub_f32 v{NM(t) + r}, 0, v{VD(t)}" for t in T3 for r in range(4)])
    A([f"v_mov_b64 {v2(VL(t))}, 0" for t in T3])
    A(exps(0, 0) + exps(0, 1) + exps(1, 0))
    A(zero[20:])
    A("s_barrier")
    A(k_reads(1))

    def iteration(i):
        pre = pk_sum(0, 0) + pk_sum(0, 1) + pk_sum(1, 0) + p_cvt(0) + p_cvt(1, 0)
        vr = [x for T in range(8) for x in v_reads(T, i)]
        vgap = list(range(8, 22)) + [23, 24]
        add11 = [f"v_add_f32 v{VL(t) + r}, v{VL(t) + r}, v{SS(1, t) + 2 + r}" for t in T3 for r in range(2)]
        early = exps(0, 0) + exps(0, 1) + exps(1, 0)
        fill = ([(5, "s_waitcnt lgkmcnt(0)"), (22, "s_waitcnt lgkmcnt(4)"), (35, "s_waitcnt lgkmcnt(0)")]
                + ([(12, f"s_sub_u32 s{S_CNT}, s{S_CNT}, 1"), (40, f"s_cmp_lg_u32 s{S_CNT}, 0")] if i == 2 else [])
                + list(zip(vgap, vr)) + list(zip(range(6), exps(1, 1))) + list(zip((6, 6, 7, 7, 8, 9), add11)) + list(zip((10, 11, 11), p_cvt(1, 1)))
                + list(zip(range(16, 22), guard_max(0))) + list(zip((25, 25, 26, 26, 27, 27), guard_max(1)))
                + [(28, f"v_cmp_lt_f32 vcc, s{S_C}, v{VX}"), (29, f"s_cbranch_vccnz L_up_{i}")] + list(zip(range(30, 48), early)))
        mf = qk_mfma() + pv_mfma(cfg)
        rare.append([f"L_up_{i}:", "s_waitcnt lgkmcnt(0)"] + mf[30:] + row_max() + [f"v_max_f32 v{VD(t)}, 0, v{VD(t)}" for t in T3] + shift_scores()
                    + [f"v_exp_f32 v{VA(t)}, -v{VD(t)}" for t in T3]
                    + [f"v_sub_f32 v{NM(t) + r}, v{NM(t) + r}, v{VD(t)}" for t in T3 for r in range(4)]
                    + [f"v_mul_f32 v{VL(t) + r}, v{VL(t) + r}, v{VA(t)}" for t in T3 for r in range(2)]
                    + rescale(VA) + early + [f"s_cmp_lg_u32 s{S_CNT}, 0", f"s_branch L_back_{i}"])
        return pre + ["s_waitcnt lgkmcnt(6)"] + weave(mf, fill) + [f"L_back_{i}:"]

    A(f"s_mov_b32 s{S_C}, {f32(cfg.thr)}\ns_mov_b32 s{S_CNT}, 5\ns_branch L_aenter\n.p2align 3")
    top = P.add(["L_aloop:", "s_barrier"] + k_reads(1) + ["L_aenter:"])
    body = P.add(iteration(0) + ["s_barrier"] + k_reads(2) + iteration(1) + ["s_barrier"] + k_reads(0) + iteration(2)
                 + ["s_cbranch_scc1 L_aloop"])
    tr.extend(body + top + body)
    A(exps(1, 1) + pk_sum(0, 0) + pk_sum(0, 1) + pk_sum(1, 0) + pk_sum(1, 1))
    A([f"v_add_f32 v{VL(t)}, v{VL(t)}, v{VL(t) + 1}" for t in T3])
    A(xlane("v_add_f32", [VL(t) for t in T3], [VT(t) for t in T3]))
    A([f"v_rcp_f32 v{VL(t)}, v{VL(t)}" for t in T3])
    bc = "op_sel_hi:[1,0]"
    A([f"v_pk_mul_f32 {v2(SS(kt, t) + r)}, {v2(SS(kt, t) + r)}, {v2(VL(t))} {bc}" for kt in range(2) for t in T3 for r in (0, 2)])
    A(p_cvt(0) + p_cvt(1))
    oscale = [f"v_pk_mul_f32 {v2(ACC(T, t) + r)}, {v2(ACC(T, t) + r)}, {v2(VL(t))} {bc}" for T in range(8) for t in T3 for r in (0, 2)]
    A(oscale[:24])
    A("s_barrier")
    A([x for T in range(8) for x in v_reads(T, 15)])
    A(oscale[24:])

    def last_pv(pol):
        def o_out(s):
            return (acc_to_frag(s) + [f"s_mov_b32 s{S_T0}, {(s >> 1) * 24576 + (s & 1) * 3072}"]
                    + [f"buffer_store_dwordx4 {v4(QF(s, t))}, v{V_OST}, {srd(sWS)}, s{S_T0} offen offset:{t * 1024} {pol}" for t in T3])
        fill = []
        for s in range(3):
            o = o_out(s)
            fill += [(6 * s + 12, x) for x in o[12:]] if s < 2 else []
            fill += spread(o[:12], 6 * s + 6, 6 * s + 11)
        return weave(pv_mfma(cfg), fill) + o_out(2)[12:] + o_out(3)

    A([f"s_cmp_eq_u32 s{S_FLAG}, 0", "s_cbranch_scc1 L_far"] + last_pv("") + ["L_near:"])
    rare.append(["L_far:"] + last_pv("sc1") + ["s_branch L_near"])
    stamp()
    fst = f"buffer_store_dword v{V_CHK}, v{V_FLG}, {srd(sWS)}, 0 offen"
    flag = [f"s_cmp_eq_u32 s{S_FLAG}, 0", "s_mov_b64 exec, 0xff", "s_waitcnt vmcnt(0)", "s_cbranch_scc1 L_farflag", fst, "L_flagged:", "s_mov_b64 exec, -1"]
    rare.append(["L_farflag:", fst + " sc1", "s_branch L_flagged"])
    A(f"""
    s_lshl_b32 s{S_T0}, s{S_HG}, 6
    v_and_b32 v{AW(0)}, 0xfff, v{AV(0)}
    v_xor_b32 v{AW(0)}, s{S_T0}, v{AW(0)}
    """)
    for T in range(1, 8):
        A(f"v_xor_b32 v{AW(T)}, {T << 5}, v{AW(0)}")
    A(f"""
    s_add_u32 s{S_T0}, s{S_LWB}, {BRING}
    v_lshl_add_u32 v{AB(0)}, v{V_TMP}, 4, s{S_T0}
    v_mov_b32 v{AK(1)}, 1
    """)
    if cfg.flag_after < 0:
        A(flag)
        stamp()
    A("s_barrier")
    A(gemm_reads(0, 0, "o", with_b=False))
    wstep = [f"v_add_u32 v{AW(T)}, {WSLOT}, v{AW(T)}" for T in range(8)]
    for hs in range(4):
        if hs == cfg.flag_after:
            A(flag)
            stamp()
        fill = []
        if hs < 3:
            fill += spread(gemm_reads((hs + 1) & 1, (hs + 1) & 1, "o", with_b=False), 0, 15)
        if hs in (0, 2):
            fill += spread(wstep, 16, 23)
        A(weave(gemm_mfma(cfg, hs & 1, bsrc=lambda t: QF(hs, t), zero=(hs == 0)), fill))
    A(f"""
    s_mul_i32 s{S_T0}, s{S_W}, 9216
    s_add_u32 s{S_T0}, s{S_T0}, {WS_X}
    v_lshl_add_u32 v{AB(1)}, v{V_TMP}, 4, s{S_T0}
    v_and_b32 v{AK(3)}, 3, v{V_TMP}
    s_lshl_b32 s{S_T0}, s{S_W}, 9
    s_add_u32 s{S_T0}, s{S_T0}, {WS_INBOX + 4096}
    v_lshl_add_u32 v{AK(2)}, v{AK(3)}, 7, s{S_T0}
    v_xor_b32 v{AK(0)}, s2, v{AK(3)}
    v_lshl_add_u32 v{AK(0)}, v{AK(0)}, 13, v{AK(2)}
    v_max_u32 v{AK(3)}, 1, v{AK(3)}
    s_lshl_b32 s{S_T1}, s2, 13
    s_add_u32 s{S_T0}, s{S_T0}, s{S_T1}
    v_lshl_add_u32 v{AK(2)}, v{AK(3)}, 7, s{S_T0}
    v_and_b32 v{AV(0)}, 15, v{V_TMP}
    v_bfe_u32 v{AV(1)}, v{V_TMP}, 4, 1
    v_bfe_u32 v{AV(2)}, v{V_TMP}, 5, 1
    s_mul_i32 s{S_T0}, s{S_BP}, 192
    s_mul_i32 s{S_T1}, s{S_W}, 48
    s_add_u32 s{S_T0}, s{S_T0}, s{S_T1}
    s_lshl_b32 s{S_T0}, s{S_T0}, 12
    s_lshl_b32 s{S_T1}, s{S_BLK}, 11
    s_add_u32 s{S_T0}, s{S_T0}, s{S_T1}
    s_lshl_b32 s{S_T1}, s{S_NU}, 8
    s_add_u32 s{S_T0}, s{S_T0}, s{S_T1}
    s_lshl_b32 s{S_T1}, s{S_HG}, 6
    s_add_u32 s{S_T0}, s{S_T0}, s{S_T1}
    v_lshl_add_u32 v{AV(0)}, v{AV(0)}, 12, s{S_T0}
    v_lshl_add_u32 v{AV(0)}, v{AV(1)}, 5, v{AV(0)}
    v_lshl_add_u32 v{AV(0)}, v{AV(2)}, 4, v{AV(0)}
    s_mov_b32 s{S_SLOT}, 2
    """)
    if cfg.wb:
        A(f"""s_and_b32 s{S_T0}, s2, {cfg.wbmask}
        s_or_b32 s{S_T0}, s{S_T0}, s{S_W}
        s_cselect_b32 s{S_FLAG}, 0, {cfg.wb}""")
        rare.append(["L_wb:", "buffer_wbl2 sc1", "s_branch L_wbdone"])
    A("s_barrier")
    A(gemm_reads(0, 0, "o"))
    gemm_loop(P, tr, cfg, "o", "L_oloop", 14)
    mf = gemm_mfma(cfg, 1)
    fill = []
    for i in range(1, 4):
        so = [f"s_xor_b32 s{S_T0}, s2, {i}", f"s_mul_i32 s{S_T0}, s{S_T0}, 36864", f"s_add_u32 s{S_T0}, s{S_T0}, {(i - 1) * 3072}"]
        st = [f"buffer_store_dwordx4 {v4(QF(i, t))}, v{AB(1)}, {srd(sWS)}, s{S_T0} offen offset:{t * 1024} sc1" for t in T3]
        fill += [(6 * i + 6, x) for x in st] + list(zip(range(6 * i + 1, 6 * i + 4), so)) + spread(acc_to_frag(i), 6 * i, 6 * i + 5)
    last = [x for g, x in fill if g == 24]
    A(weave(mf[6:] + mf[:6], [(g, x) for g, x in fill if g < 24]) + last)
    stamp()
    xload = lambda k, so: f"buffer_load_dwordx4 {v4(24 + 4 * k)}, v{AB(1)}, {srd(sWS)}, s{so} offen offset:{(k % 3) * 1024} sc1"

    def xadd(i):
        for k in range(3 * i, 3 * i + 3):
            for d in range(4):
                src, dst = 24 + 4 * k + d, ACC(d >> 1, k % 3) + 2 * (d & 1)
                A(f"""v_lshlrev_b32 v64, 16, v{src}
                v_and_b32 v65, 0xffff0000, v{src}
                v_pk_add_f32 {v2(dst)}, {v2(dst)}, v[64:65]""")

    so = (S_T0, S_T1, S_T2)
    xbase = f"s_mul_i32 s{S_T0}, s2, 36864\ns_add_u32 s{S_T1}, s{S_T0}, 3072\ns_add_u32 s{S_T2}, s{S_T0}, 6144"
    if not cfg.tag:
        A(["s_waitcnt vmcnt(0)", "s_mov_b64 exec, 14", f"buffer_store_dword v{AK(1)}, v{AK(0)}, {srd(sWS)}, 0 offen sc1", "s_mov_b64 exec, -1"])
        stamp()
        poll_loop(P, tr, "poll2", V_CHK, AK(2))
        stamp()
        A(xbase)
        A([xload(k, so[k // 3]) for k in range(9)])
        for i in range(3):
            xadd(i)
    else:
        stamp()
        A(xbase)
        A(f"s_mov_b32 s{S_SPIN}, 0")
        if cfg.tag == 2:
            probe = P.add(["L_probe:"] + [xload(3 * i + 2, so[i]) for i in range(3)] + f"""s_add_u32 s{S_SPIN}, s{S_SPIN}, 1
            s_cmp_ge_u32 s{S_SPIN}, {SPIN_MAX}
            s_cbranch_scc1 L_probed
            s_waitcnt vmcnt(0)
            v_max3_u32 v64, v35, v47, v59
            v_cmp_eq_u32 vcc, -1, v64
            s_cbranch_vccnz L_probe""".split("\n"))
            tr.extend(probe + probe)
            A("L_probed:")
        first = [xload(k, so[k // 3]) for k in range(9) if cfg.tag == 1 or k % 3 != 2]
        A(first)
        for i in range(3):
            b = 24 + 12 * i
            chk2 = ([f"v_max3_u32 v64, v{b}, v{b + 1}, v{b + 2}"] + [f"v_max3_u32 v64, v{b + k}, v{b + k + 1}, v64" for k in range(3, 11, 2)]
                    + [f"v_max_u32 v64, v{b + 11}, v64", "v_cmp_eq_u32 vcc, -1, v64"])
            A([f"L_x{i}:"] + chk2 + [f"s_cbranch_vccnz L_xr{i}", f"L_xok{i}:"])
            rare.append([f"L_xr{i}:"] + [xload(k, so[i]) for k in range(3 * i, 3 * i + 3)]
                        + [f"s_add_u32 s{S_SPIN}, s{S_SPIN}, 1", f"s_cmp_lt_u32 s{S_SPIN}, {SPIN_MAX}", "s_waitcnt vmcnt(0)",
                           f"s_cbranch_scc1 L_x{i}", f"s_branch L_xok{i}"])
            if i == 2:
                stamp()
            xadd(i)
    A(acc_to_frag(0))
    A([f"v_permlane16_swap_b32 v{QF(0, t) + h}, v{QF(0, t) + 2 + h}" for t in T3 for h in range(2)])
    for t in T3:
        A(f"s_mov_b32 s{S_T0}, {t * 65536}\nbuffer_store_dwordx4 {v4(QF(0, t))}, v{AV(0)}, {srd(sOUT)}, s{S_T0} offen {cfg.pol_out}")
    if cfg.stamps:
        A("s_waitcnt vmcnt(0)")
        stamp()
        A(f"v_mov_b32 v1, 0")
        for k in range(nst[0]):
            A(f"v_writelane_b32 v1, s{S_ST + 2 * k}, {k}")
        A(f"""s_lshl_b32 s{S_T0}, s2, 3
        s_add_u32 s{S_T0}, s{S_T0}, s{S_WAVE}
        s_lshl_b32 s{S_T0}, s{S_T0}, 8
        s_add_u32 s{S_T0}, s{S_T0}, {WS_STAMP}
        v_lshl_add_u32 v2, v{V_TMP}, 2, s{S_T0}
        buffer_store_dword v1, v2, {srd(sWS)}, 0 offen""")
    A("L_exit:\ns_endpgm")
    blocks = {}
    for blk in rare:
        blocks[blk[0][:-1]] = P.add(blk)
    tr2 = []
    skip = None
    for ins in tr:
        if skip:
            if ins.text == skip + ":":
                skip = None
            else:
                continue
        tr2.append(ins)
        if ins.op.startswith("s_cbranch") and ins.text.split()[1] in blocks:
            blk = blocks[ins.text.split()[1]]
            tr2 += blk
            skip = blk[-1].text.split()[1]
    assert skip is None
    return tr, tr2


def generate(cfg):
    P = Prog()
    pre = P.add("s_cmp_ge_u32 s2, 256\ns_cbranch_scc1 L_exit")
    if cfg.remap:
        pre += P.add("""s_bfe_u32 s4, s2, 0x20003
        s_lshr_b32 s5, s2, 5
        s_and_b32 s2, s2, 7
        s_lshl_b32 s4, s4, 6
        s_lshl_b32 s5, s5, 3
        s_or_b32 s2, s2, s4
        s_or_b32 s2, s2, s5""")
    pre += prologue(P, cfg)
    tl = loader(P, cfg)
    tc, tc2 = compute(P, cfg)
    body = P.finish([pre + tc, pre + tc2] + [pre + t for t in tl])
    if cfg.align:
        body = align8(body)
    return (HEADER + "; @launch grid=(256,1,1) block=(512,1,1) lds=163840\n"
            + '.amdgcn_target "amdgcn-amd-amdhsa--gfx950"\n.text\n'
            + f".globl {NAME}_kernel\n.p2align 8\n.type {NAME}_kernel,@function\n{NAME}_kernel:\n" + body
            + f"""L_text_end:
.section .rodata,"a"
.p2align 6
.amdhsa_kernel {NAME}_kernel
  .amdhsa_next_free_vgpr 256
  .amdhsa_next_free_sgpr 102
  .amdhsa_accum_offset 256
  .amdhsa_group_segment_fixed_size 0
  .amdhsa_kernarg_size 104
  .amdhsa_user_sgpr_count 2
  .amdhsa_user_sgpr_kernarg_segment_ptr 1
  .amdhsa_system_sgpr_workgroup_id_x 1
  .amdhsa_float_denorm_mode_32 3
.end_amdhsa_kernel
""")


def parse(args):
    kw = {}
    for a in args:
        k, v = a.split("=")
        kw[k] = float(v) if k == "thr" else (int(v) if v.lstrip("-").isdigit() and not k.startswith(("pre", "ptouch", "spre")) else v.replace("+", " "))
    return Cfg(**kw)


if __name__ == "__main__":
    open(sys.argv[1], "w").write(generate(parse(sys.argv[2:])))
```

```python
import struct, sys
from asmlib import Prog, weave, spread, balance, align8

NAME = "concat_heads__mha_block_cached__gqa_block_cached__near_ridge"
HEADER = open("cdna_kernels/" + NAME + ".s.ref").read().split("; Override launch")[0]

WS_O, WS_X, WS_INBOX, WS_STAMP, WS_DUMP = 0, 16 << 20, 48 << 20, 200 << 20, 64 << 20
WRING, BRING, KRING, VRING = 0, 65536, 65536, 114688
WSLOT, BSLOT, ASLOT = 16384, 24576, 16384
SPIN_MAX = 200000
T3 = range(3)

S_WAVE, sX, sK, sV, sWQ, sWO, sOUT, sWS, sDBG = 3, 20, 24, 28, 32, 36, 40, 44, 48
S_BLK, S_HG, S_J, S_BP, S_NU, S_W, S_H, S_DB = 52, 53, 54, 55, 56, 57, 58, 59
S_T0, S_T1, S_T2, S_T3, S_CNT, S_DW, S_C, S_SLOT = 60, 61, 62, 63, 64, 65, 66, 68
S_LWB, S_LWW, S_ROT, S_J2, S_SPIN, S_FLAG, S_XCC, S_GRP = 69, 70, 71, 72, 73, 74, 75, 76
S_MASK, S_PC = 77, 78
S_SB = 94
S_ST = 80
srd = lambda r: f"s[{r}:{r+3}]"
v4 = lambda r: f"v[{r}:{r+3}]"
v2 = lambda r: f"v[{r}:{r+1}]"
f32 = lambda x: "0x%08x" % struct.unpack("<I", struct.pack("<f", x))[0]
MFMA = "v_mfma_f32_16x16x32_bf16"

ACC = lambda T, t: (T * 3 + t) * 4
QF = lambda s, t: 96 + (s * 3 + t) * 4
FA = lambda b, T: 144 + 44 * b + 4 * T
FB = lambda b, t: 144 + 44 * b + 32 + 4 * t
AW = lambda T: 232 + T
AB = lambda s: 240 + s
V_CHK, V_TMP = 242, 243
FR = lambda f: 144 + 4 * f
SS = lambda kt, t: 176 + (kt * 3 + t) * 4
PP = lambda t: 200 + 4 * t
NM = lambda t: 212 + 4 * t
VL = lambda t: 224 + 2 * t
VX = 230
V_OST, V_FLG = 241, 231
VD = lambda t: 232 + t
VT = lambda k: 235 + k
VA = lambda t: 238 + t
AK = lambda s: 244 + s
AV = lambda T: 248 + T


class Cfg:
    def __init__(self, **kw):
        self.pol_x = ""
        self.pol_wq = ""
        self.pol_kv = "nt"
        self.pol_wo = ""
        self.pol_ob = "sc1"
        self.rot = 1
        self.stamps = 0
        self.flag_after = 1
        self.pre = ""
        self.last = 30
        self.win = 6
        self.win16 = 10
        self.wo_at = "31.31.33.33"
        self.qd = 1
        self.thr = 8.0
        self.local = 1
        self.pk = 0
        self.snake = 1
        self.align = 1
        self.prio = 0
        self.remap = 0
        self.nurot = 1
        self.otouch = 0
        self.stag = 0
        self.s1pre = 36
        self.s1win = 8
        self.s0win = 8
        self.s0late = 8
        self.s0sw = 28
        self.prog = 0
        self.pre1 = ''
        self.tag = 0
        self.oclear = 0
        self.bwin = 0
        self.afirst = 0
        self.winb = 0
        self.lastb = 0
        self.par = 0
        self.spre = ''
        self.coop = ''
        self.coopw0 = 31
        self.promote = 0
        self.pol_out = ''
        self.ptouch = ''
        self.wb = 0
        self.wbmask = 0xf8
        self.oord = 0
        self.od = 1
        self.ctouch = 0
        self.count_at = 12
        self.fetch_at = 3
        self.chk_max = SPIN_MAX
        self.__dict__.update(kw)


def lane_id(v):
    return f"v_mbcnt_lo_u32_b32 v{v}, -1, 0\nv_mbcnt_hi_u32_b32 v{v}, -1, v{v}"


def make_srd(items):
    return "\n".join(f"s_mov_b32 s{r}, s{p}\ns_mov_b32 s{r+1}, s{p+1}\ns_mov_b32 s{r+2}, {n}\ns_mov_b32 s{r+3}, 0x20000" for r, p, n in items)


def prologue(P, cfg):
    return P.add(f"""
    s_bfe_u32 s{S_BLK}, s2, 0x10002
    s_mul_i32 s{S_T0}, s{S_BLK}, 40
    s_load_dwordx8 s[4:11], s[0:1], s{S_T0}
    s_add_u32 s{S_T1}, s{S_T0}, 32
    s_load_dwordx2 s[12:13], s[0:1], s{S_T1}
    s_load_dwordx4 s[16:19], s[0:1], 88
    s_load_dwordx2 s[14:15], s[0:1], 80
    v_lshrrev_b32 v1, 6, v0
    v_and_b32 v0, 63, v0
    s_and_b32 s{S_HG}, s2, 3
    v_readfirstlane_b32 s{S_WAVE}, v1
    s_bfe_u32 s{S_J}, s2, 0x30003
    s_lshr_b32 s{S_BP}, s2, 6
    s_lshl_b32 s{S_H}, s{S_HG}, 3
    s_add_u32 s{S_H}, s{S_H}, s{S_J}
    s_and_b32 s{S_W}, s{S_WAVE}, 3
    s_mul_i32 s{S_LWB}, s{S_W}, 6144
    s_lshl_b32 s{S_LWW}, s{S_W}, 12
    s_cmp_lt_u32 s{S_WAVE}, 4
    s_cbranch_scc1 L_compute
    """)


def late_ids(cfg):
    return f"""s_mul_i32 s{S_NU}, s{S_BP}, {2 * cfg.nurot}
    s_add_u32 s{S_NU}, s{S_NU}, s{S_J}
    s_and_b32 s{S_NU}, s{S_NU}, 7
    s_and_b32 s{S_GRP}, s2, 7
    s_lshl_b32 s{S_T1}, s{S_BP}, 3
    s_add_u32 s{S_GRP}, s{S_GRP}, s{S_T1}"""


def code_touch(lane, vaddr, vdst):
    return f"""s_lshr_b32 s{S_T0}, s2, 3
    s_lshl_b32 s{S_T0}, s{S_T0}, 10
    v_and_b32 v{vaddr}, 7, v{lane}
    v_lshl_add_u32 v{vaddr}, v{vaddr}, 7, s{S_T0}
    v_min_u32 v{vaddr}, L_text_end-L_text-4, v{vaddr}
    global_load_dword v{vdst}, v{vaddr}, s[{S_PC}:{S_PC + 1}]"""


def poll_loop(P, tr, name, vdst, vaddr):
    tr.extend(P.add(f"s_mov_b32 s{S_SPIN}, 0"))
    loop = P.add(f"""L_{name}:
    buffer_load_dword v{vdst}, v{vaddr}, {srd(sWS)}, 0 offen sc1
    s_add_u32 s{S_SPIN}, s{S_SPIN}, 1
    s_cmp_ge_u32 s{S_SPIN}, {SPIN_MAX}
    s_cbranch_scc1 L_{name}_done
    s_waitcnt vmcnt(0)
    v_cmp_ne_u32 vcc, 1, v{vdst}
    s_cbranch_vccnz L_{name}""")
    tr.extend(loop + loop)
    tr.extend(P.add(f"L_{name}_done:"))


LX = lambda p: 8 + p
LW = lambda p: 14 + p
LK = lambda p: 18 + p
LV = lambda p: 22 + p
LWO = lambda p: 24 + p
LOB, LFLAG, LSTAMP, LPOLL = 28, 29, 30, 31
LDSW = lambda h: 1 + h
LTQ, LTO, LTB = 32, 33, 34
LPOOL = 36


def late_setup(A):
    A(f"""
    s_lshr_b32 s{S_T0}, s{S_W}, 1
    s_lshl_b32 s{S_T1}, s{S_BP}, 1
    s_add_u32 s{S_T0}, s{S_T0}, s{S_T1}
    s_lshl_b32 s{S_T0}, s{S_T0}, 5
    s_add_u32 s{S_T0}, s{S_T0}, s{S_H}
    s_lshl_b32 s{S_T0}, s{S_T0}, 17
    s_and_b32 s{S_T1}, s{S_W}, 1
    s_lshl_b32 s{S_T1}, s{S_T1}, 12
    s_add_u32 s{S_T0}, s{S_T0}, s{S_T1}
    v_lshl_add_u32 v5, v1, 8, s{S_T0}
    v_xor_b32 v7, v2, v1
    """)
    for p in range(4):
        A(f"v_xor_b32 v3, {4 * p}, v7\nv_lshl_add_u32 v{LK(p)}, v3, 4, v5")
    A(f"""
    v_lshl_add_u32 v{LV(0)}, v6, 4, v5
    v_xor_b32 v7, 8, v6
    v_lshl_add_u32 v{LV(1)}, v7, 4, v5
    s_lshl_b32 s{S_T0}, s{S_HG}, 21
    s_lshl_b32 s{S_T1}, s{S_W}, 15
    s_add_u32 s{S_T0}, s{S_T0}, s{S_T1}
    s_lshl_b32 s{S_T1}, s{S_NU}, 8
    s_add_u32 s{S_T0}, s{S_T0}, s{S_T1}
    v_lshl_add_u32 v5, v1, 11, s{S_T0}
    v_add_u32 v{LTO}, s{S_T0}, v{LTO}
    v_lshl_add_u32 v{LWO(0)}, v6, 4, v5
    v_lshl_add_u32 v7, v7, 4, v5
    v_add_u32 v{LWO(1)}, {8192 - 1024}, v7
    v_add_u32 v{LWO(2)}, {2 * 8192 - 2048}, v{LWO(0)}
    v_add_u32 v{LWO(3)}, {3 * 8192 - 3072}, v7
    s_mul_i32 s{S_T0}, s{S_GRP}, 393216
    s_add_u32 s{S_T0}, s{S_T0}, s{S_LWB}
    v_lshl_add_u32 v{LOB}, v0, 4, s{S_T0}
    s_lshl_b32 s{S_T1}, s{S_J}, 2
    s_add_u32 s{S_T1}, s{S_T1}, s{S_W}
    s_mul_i32 s{S_T1}, s{S_T1}, 3072
    s_mul_i32 s{S_T0}, s{S_GRP}, 393216
    s_add_u32 s{S_T0}, s{S_T0}, s{S_T1}
    v_min_u32 v{LTB}, 23, v0
    v_lshl_add_u32 v{LTB}, v{LTB}, 7, s{S_T0}
    s_lshl_b32 s{S_T0}, s2, 13
    s_lshl_b32 s{S_T1}, s{S_W}, 7
    s_add_u32 s{S_T0}, s{S_T0}, s{S_T1}
    s_add_u32 s{S_T0}, s{S_T0}, {WS_INBOX}
    v_lshl_add_u32 v{LFLAG}, v4, 2, s{S_T0}
    s_lshl_b32 s{S_J2}, s{S_J}, 1
    s_add_u32 s{S_T0}, s{S_LWW}, {KRING}
    v_lshl_add_u32 v{LDSW(0)}, v0, 4, s{S_T0}
    v_add_u32 v{LDSW(1)}, {VRING - KRING}, v{LDSW(0)}
    """)


def loader(P, cfg):
    tr = []
    A = lambda t: tr.extend(P.add(t))
    A(f"""
    v_lshrrev_b32 v1, 4, v0
    v_and_b32 v2, 15, v0
    v_lshrrev_b32 v3, 3, v0
    v_and_b32 v4, 7, v0
    s_mul_i32 s{S_T0}, s{S_BP}, 192
    s_mul_i32 s{S_T1}, s{S_W}, 48
    s_add_u32 s{S_T0}, s{S_T0}, s{S_T1}
    s_lshl_b32 s{S_T0}, s{S_T0}, 11
    v_lshl_add_u32 v5, v3, 11, s{S_T0}
    v_xor_b32 v6, v4, v1
    v_lshl_add_u32 v{LX(0)}, v6, 4, v5
    v_xor_b32 v6, 4, v6
    v_lshl_add_u32 v7, v6, 4, v5
    """)
    for p in range(1, 6):
        A(f"v_add_u32 v{LX(p)}, {p * 16384 - (p % 4) * 1024}, v{7 if p & 1 else LX(0)}")
    A(f"""
    s_lshl_b32 s{S_T0}, s{S_W}, 17
    s_lshl_b32 s{S_T1}, s{S_H}, 8
    s_add_u32 s{S_T0}, s{S_T0}, s{S_T1}
    v_lshl_add_u32 v5, v1, 13, s{S_T0}
    v_lshlrev_b32 v6, 1, v1
    v_xor_b32 v6, v6, v2
    v_lshl_add_u32 v{LW(0)}, v6, 4, v5
    v_xor_b32 v7, 8, v6
    v_lshl_add_u32 v7, v7, 4, v5
    v_add_u32 v{LW(1)}, {32768 - 1024}, v{LW(0)}
    v_add_u32 v{LW(2)}, {2 * 32768 - 2048}, v7
    v_add_u32 v{LW(3)}, {3 * 32768 - 3072}, v7
    """)
    if cfg.rot == 1:
        A(f"s_add_u32 s{S_ROT}, s{S_BP}, s{S_J}\ns_and_b32 s{S_ROT}, s{S_ROT}, 3\ns_lshl_b32 s{S_ROT}, s{S_ROT}, 2")
    elif cfg.rot == 2:
        A(f"s_add_u32 s{S_ROT}, s{S_BP}, s{S_J}\ns_and_b32 s{S_ROT}, s{S_ROT}, 1\ns_lshl_b32 s{S_ROT}, s{S_ROT}, 3")
    elif cfg.rot == 3:
        A(f"s_lshl_b32 s{S_ROT}, s{S_HG}, 2")
    elif cfg.rot == 4:
        A(f"s_lshl_b32 s{S_ROT}, s{S_BP}, 2")
    elif cfg.rot == 5:
        A(f"s_lshl_b32 s{S_ROT}, s{S_J}, 1")
    elif cfg.rot == 6:
        A(f"s_and_b32 s{S_ROT}, s{S_J}, 3\ns_lshl_b32 s{S_ROT}, s{S_ROT}, 2")
    else:
        A(f"s_mov_b32 s{S_ROT}, 0")
    A(f"""
    v_bfe_u32 v7, v0, 1, 4
    v_and_b32 v5, 1, v0
    v_lshlrev_b32 v5, 7, v5
    v_lshl_add_u32 v{LTO}, v7, 11, v5
    v_lshl_add_u32 v{LTQ}, v7, 13, v5
    v_add_u32 v{LTQ}, s{S_T0}, v{LTQ}
    """)
    A("s_waitcnt lgkmcnt(0)")
    A(make_srd(((sWQ, 10, 8 << 20), (sX, 4, 768 * 2048))))
    q0 = []
    if cfg.stamps:
        A(f"v_mov_b32 v{LSTAMP}, 0")
        A(loader_stamp(0))
    if cfg.afirst:
        A(f"s_bitcmp1_b32 s{S_BP}, 0\ns_cbranch_scc1 L_bstart")
        for n in range(4):
            A(f"""s_add_u32 s{S_T1}, s{S_ROT}, {n}
            s_lshl_b32 s{S_T1}, s{S_T1}, 19
            buffer_load_dword v{LPOLL}, v{LTQ}, {srd(sWQ)}, s{S_T1} offen""")
        A("s_branch L_started\nL_bstart:")
    if not cfg.stag:
        for n in range(2):
            for text, isload in q_stage(cfg, n):
                A(text)
                if isload:
                    q0.append(n)
    if cfg.afirst:
        A("L_started:")
    A(make_srd(((sK, 6, 32 << 20), (sV, 8, 32 << 20), (sWO, 12, 8 << 20), (sWS, 18, 256 << 20))))
    A(late_ids(cfg))
    late_setup(A)
    if cfg.pre1:
        A(f"s_bitcmp1_b32 s{S_BP}, 0\ns_cbranch_scc1 L_late")
        t0 = loader_role(P, cfg, list(tr), ["t"] * 4 if cfg.afirst else q0, None, cfg.pre, "a")
        return [t0, loader_role(P, cfg, list(tr) + P.add("L_late:"), q0, None, cfg.pre1, "b")]
    if not cfg.stag:
        return [loader_role(P, cfg, tr, q0, None, cfg.pre)]
    A(f"s_cmp_ge_u32 s{S_BP}, 2\ns_cbranch_scc1 L_late")
    t0 = loader_role(P, cfg, list(tr), q0, 0)
    return [t0, loader_role(P, cfg, list(tr) + P.add("L_late:"), q0, 1)]


def loader_stamp(n):
    return (f"s_memrealtime s[{S_ST}:{S_ST+1}]\ns_memtime s[{S_ST+2}:{S_ST+3}]\ns_cmp_eq_u32 s{S_W}, 1\ns_waitcnt lgkmcnt(0)\n"
            f"s_cselect_b32 s{S_ST+4}, s{S_ST+2}, s{S_ST}\nv_writelane_b32 v{LSTAMP}, s{S_ST+4}, {n}")


def q_stage(cfg, n):
    dma = lambda vreg, sr, so, imm, pol: (f"buffer_load_dwordx4 v{vreg}, {srd(sr)}, s{so} offen offset:{imm} {pol} lds", True)
    first = cfg.promote & 1 and n < 4
    o = [(f"""s_add_u32 s{S_T0}, s{S_ROT}, {n}
    s_add_u32 m0, s{S_LWW}, {WRING + (n % 4) * WSLOT}
    s_and_b32 s{S_T0}, s{S_T0}, 15
    s_lshl_b32 s{S_T1}, s{S_T0}, 19""", False)]
    o += [dma(LW(p), sWQ, S_T1, p * 1024, "nt" if first else cfg.pol_wq) for p in range(4)]
    if first:
        o.append((f"buffer_load_dword v{LPOLL}, v{LTQ}, {srd(sWQ)}, s{S_T1} offen", True))
    o.append((f"s_add_u32 m0, s{S_LWB}, {BRING + (n % 4) * BSLOT}\ns_lshl_b32 s{S_T0}, s{S_T0}, 7", False))
    o += [dma(LX(p), sX, S_T0, p * 1024, cfg.pol_x) for p in range(4)]
    o.append((f"s_add_u32 m0, s{S_LWB}, {BRING + (n % 4) * BSLOT + 4096}", False))
    o += [dma(LX(p), sX, S_T0, (p - 4) * 1024, cfg.pol_x) for p in range(4, 6)]
    return o


def loader_role(P, cfg, tr, q0, role, pre="", sfx=""):
    A = lambda t: tr.extend(P.add(t))
    sfx += "" if role is None else str(role)
    q = list(q0)

    def throttle(win):
        win = win or 56
        if win and len(q) >= win:
            A(f"s_waitcnt vmcnt({win - 1})")
            del q[:len(q) - (win - 1)]

    def dma(vreg, s, soff, imm, pol, tag, win=0):
        throttle(win)
        A(f"buffer_load_dwordx4 v{vreg}, {srd(s)}, {soff} offen offset:{imm} {pol} lds")
        q.append(tag)

    def wait(tag):
        if tag in q:
            idx = max(k for k, x in enumerate(q) if x == tag)
            A(f"s_waitcnt vmcnt({len(q) - 1 - idx})")
            del q[:idx + 1]

    def issue_q(n):
        for text, isload in q_stage(cfg, n):
            if isload:
                throttle(0)
                q.append(n)
            A(text)

    kv = []
    for e in range(17):
        if e <= 15:
            kv += [(16 + e, 0, e, p) for p in range(4)]
        if e >= 1:
            kv += [(16 + e, 1, e - 1, p) for p in range(4)]
    pool = list(range(LPOOL, 256, 4))
    parked = []
    state = dict(next=0, m0=None, soff=None, lds=False)

    def issue_kv(upto, k, win):
        state["m0"] = state["soff"] = None
        while state["next"] < upto:
            stage, isv, tile, p = kv[state["next"]]
            state["next"] += 1
            vo, sr = (LV(p & 1), sV) if isv else (LK(p), sK)
            if stage <= k + 2 and state["m0"] != (stage, isv):
                A(f"s_add_u32 m0, s{S_LWW}, {(VRING if isv else KRING) + (tile % 3) * ASLOT}")
                state["m0"] = (stage, isv)
            if state["soff"] != tile:
                A(f"s_mov_b32 s{S_T0}, {tile * 8192}")
                state["soff"] = tile
            if stage <= k + 2:
                dma(vo, sr, f"s{S_T0}", p * 1024, cfg.pol_kv, stage, win)
            else:
                r = pool.pop(0)
                throttle(win)
                A(f"buffer_load_dwordx4 {v4(r)}, v{vo}, {srd(sr)}, s{S_T0} offen offset:{p * 1024} {cfg.pol_kv}")
                q.append(("r", r))
                parked.append((stage, isv, tile, p, r))

    def unpark(k):
        while parked and parked[0][0] <= k + 2:
            stage, isv, tile, p, r = parked.pop(0)
            wait(("r", r))
            A(f"ds_write_b128 v{LDSW(isv)}, {v4(r)} offset:{(tile % 3) * ASLOT + p * 1024}")
            pool.append(r)
            state["lds"] = True

    def o_index(m):
        if cfg.par:
            if m < 8:
                return f"s_add_u32 s{S_T0}, s{S_J2}, {4 * (m >> 1) + (m & 1)}"
            if cfg.par == 1:
                return f"s_add_u32 s{S_T0}, s{S_J2}, {4 * ((m - 8) >> 1) + (m & 1) + 2}"
            return f"s_lshl_b32 s{S_T0}, s{S_NU}, 1\ns_add_u32 s{S_T0}, s{S_T0}, {4 * ((m - 8) >> 1) + (m & 1) + 2}"
        if m < 2 or not cfg.oord:
            return f"s_add_u32 s{S_T0}, s{S_J2}, {m}"
        return f"""s_cmp_gt_u32 s{S_T3}, {(m - 2) // 2}
        s_cselect_b32 s{S_T0}, {m - 2}, {m}
        s_add_u32 s{S_T0}, s{S_T0}, s{S_T2}"""

    def issue_ow(m, tag, win=0):
        A(f"""{o_index(m)}
        s_add_u32 m0, s{S_LWW}, {WRING + (m % 4) * WSLOT}
        s_and_b32 s{S_T0}, s{S_T0}, 15
        s_lshl_b32 s{S_T1}, s{S_T0}, 17""")
        first = cfg.promote & 2 and m < 4
        for p in range(4):
            dma(LWO(p), sWO, f"s{S_T1}", p * 1024, "nt" if first else cfg.pol_wo, tag, 0 if first else win)
        if first:
            A(f"buffer_load_dword v{LPOLL}, v{LTO}, {srd(sWO)}, s{S_T1} offen")
            q.append("t")

    def touch_w(b):
        A(f"""s_lshl_b32 s{S_T0}, s{S_BP}, 17
        s_add_u32 s{S_T0}, s{S_T0}, {b << 19}
        buffer_load_dword v{LPOLL}, v{LTO}, {srd(sWO)}, s{S_T0} offen""")
        q.append("t")

    def touch_b(b):
        A(f"s_mov_b32 s{S_T0}, {b * 98304}\nbuffer_load_dword v{LPOLL}, v{LTB}, {srd(sWS)}, s{S_T0} offen sc1")
        q.append("t")

    coop = [int(x) for x in str(cfg.coop).split(".")] if cfg.coop else []
    spre = [int(x) for x in str(cfg.spre).split(".")] if cfg.spre else []
    sdone = [0]

    def scalar_pre():
        for _ in range(spre.pop(0) if spre else 0):
            n, r = divmod(sdone[0], 32)
            if n > 3:
                break
            if r == 0:
                A(f"""s_add_u32 s{S_T0}, s{S_NU}, {2 * n + 1}
                s_and_b32 s{S_T0}, s{S_T0}, 7
                s_lshl_b32 s{S_T0}, s{S_T0}, 18
                s_add_u32 s{S_T0}, s{S_T0}, s{S_DW}
                s_add_u32 s{S_SB + 2 * (n & 1)}, s12, s{S_T0}
                s_addc_u32 s{S_SB + 2 * (n & 1) + 1}, s13, 0""")
            A(f"s_load_dword s{S_SB + 4}, s[{S_SB + 2 * (n & 1)}:{S_SB + 2 * (n & 1) + 1}], {(r >> 2) * 2048 + (r & 3) * 64}")
            sdone[0] += 1

    def coop_after(m):
        for b, mm in enumerate(coop):
            if mm == m:
                touch_b(b + 1)
                touch_w(b + 1)

    def issue_ob(m, tag):
        A(f"""{o_index(m)}
        s_add_u32 m0, s{S_LWB}, {BRING + ((m - 2) % 4) * BSLOT}
        s_and_b32 s{S_T0}, s{S_T0}, 15
        s_mul_i32 s{S_T0}, s{S_T0}, 24576""")
        for p in range(4):
            dma(LOB, sWS, f"s{S_T0}", p * 1024, cfg.pol_ob, tag)
        A(f"s_add_u32 m0, s{S_LWB}, {BRING + ((m - 2) % 4) * BSLOT + 4096}\ns_add_u32 s{S_T1}, s{S_T0}, 4096")
        for p in range(2):
            dma(LOB, sWS, f"s{S_T1}", p * 1024, cfg.pol_ob, tag)

    nst = [1]

    def stamp():
        if cfg.stamps:
            A(loader_stamp(nst[0]))
            nst[0] += 1

    def barrier():
        if state["lds"]:
            A("s_waitcnt lgkmcnt(0)")
            state["lds"] = False
        A("s_barrier")
        stamp()

    end = lambda n: 0 if n < 16 else min(128, 4 + 8 * (n - 16))
    pre = [int(x) for x in str(pre).split(".")] if pre else []
    pre = [0] * (17 - len(pre)) + pre
    wo_at = [int(x) for x in str(cfg.wo_at).split(".")]
    wtag = lambda m: 33 if m < 2 else 33 + m
    if role == 1:
        A(f"""
        s_lshr_b32 s{S_T0}, s2, 3
        s_and_b32 s{S_T0}, s{S_T0}, 15
        s_lshl_b32 s{S_T0}, s{S_T0}, 2
        s_add_u32 s{S_T0}, s{S_T0}, s{S_W}
        s_lshl_b32 s{S_T1}, s{S_T0}, 13
        s_lshl_b32 s{S_T2}, s{S_HG}, 11
        s_add_u32 s{S_T1}, s{S_T1}, s{S_T2}
        v_lshrrev_b32 v3, 4, v0
        v_and_b32 v4, 15, v0
        v_lshl_add_u32 v5, v3, 19, s{S_T1}
        v_lshl_add_u32 v5, v4, 7, v5
        s_mul_i32 s{S_T1}, s{S_T0}, {6 * 2048}
        v_lshrrev_b32 v3, 3, v0
        v_min_u32 v3, 5, v3
        v_and_b32 v4, 7, v0
        v_lshl_add_u32 v6, v3, 11, s{S_T1}
        v_lshl_add_u32 v6, v4, 7, v6
        """)
        for qt in range(4):
            if qt % 2 == 0:
                A(f"buffer_load_dword v{LPOLL}, v6, {srd(sX)}, 0 offen offset:{(qt // 2) * 1024}")
                q.append("t")
            A(f"s_mov_b32 s{S_T0}, {qt << 21}\nbuffer_load_dword v{LPOLL}, v5, {srd(sWQ)}, s{S_T0} offen")
            q.append("t")
        A(f"s_mov_b32 s{S_T0}, {384 * 2048}")
        for h in range(2):
            A(f"buffer_load_dword v{LPOLL}, v6, {srd(sX)}, s{S_T0} offen offset:{h * 1024}")
            q.append("t")
        pre[0] = cfg.s1pre
        issue_kv(pre[0], -1, cfg.s1win)
    if cfg.afirst and sfx == "a":
        pre[0] = cfg.afirst
        issue_kv(pre[0], -1, cfg.bwin or 8)
    if cfg.stag or (cfg.afirst and sfx == "a"):
        issue_q(0)
        issue_q(1)
    base = sum(pre)
    issue_kv(pre[0], -1, 0)
    nq = 2
    for k in range(0, 33):
        wait(k)
        barrier()
        unpark(k)
        while nq <= min(15, k + 1 + cfg.qd):
            issue_q(nq)
            nq += 1
        w = ((cfg.winb or cfg.win) if sfx == 'b' else cfg.win) if role is None else (cfg.s1win if role else (cfg.s0win if k < cfg.s0sw else cfg.s0late))
        win = 0 if k < 16 else (max(w, cfg.win16) if k == 16 else w)
        lead = min(128, end(k + 1) + (win or 8)) if k >= 14 else 0
        if k <= 15:
            ramp = sum(pre[:k + 2]) + (4 * max(0, k - 13) if role == 1 else 0)
        else:
            b0 = base + cfg.win16 + (8 if role == 1 else 0)
            last = (cfg.lastb or cfg.last) if sfx == 'b' else cfg.last
            ramp = min(128, b0 + ((128 - b0) * (k - 16)) // (last - 16))
        issue_kv(max(lead, ramp if base else 0), k, win or cfg.bwin)
        if k == 20 and cfg.oord:
            A(f"""s_add_u32 s{S_T2}, s{S_BP}, s{S_J}
            s_and_b32 s{S_T2}, s{S_T2}, {cfg.oord - 1}
            s_mul_i32 s{S_T2}, s{S_T2}, {8 // cfg.oord}
            s_sub_u32 s{S_T3}, s{S_J}, s{S_T2}
            s_and_b32 s{S_T3}, s{S_T3}, 7
            s_lshl_b32 s{S_T2}, s{S_T2}, 1""")
        for h, tk in enumerate(str(cfg.ptouch).split(".") if cfg.ptouch else []):
            if int(tk) == k:
                throttle(win)
                A(f"""s_mul_i32 s{S_T0}, s{S_J}, 49152
                s_add_u32 s{S_T0}, s{S_T0}, {h * 24576}
                v_mul_u32_u24 v3, 0x70, v0
                v_add_u32 v3, v3, v{LOB}
                s_mov_b32 exec_hi, 0xffff
                buffer_load_dword v{LPOLL}, v3, {srd(sWS)}, s{S_T0} offen
                s_mov_b64 exec, -1""")
                q.append("t")
        if k == 26:
            A(f"buffer_load_dword v{LPOLL}, v{LFLAG}, {srd(sWS)}, 0 offen sc1")
            q.append("t")
        for m in range(4):
            if wo_at[m] == k:
                issue_ow(m, wtag(m), win if state["next"] < 128 else 0)
        if coop and k == cfg.coopw0:
            touch_w(0)
    assert state["next"] == 128 and not parked
    if spre:
        A(f"""s_lshl_b32 s{S_DW}, s{S_HG}, 21
        s_lshl_b32 s{S_T0}, s{S_BP}, 16
        s_add_u32 s{S_DW}, s{S_DW}, s{S_T0}
        s_lshl_b32 s{S_T0}, s{S_W}, 14
        s_add_u32 s{S_DW}, s{S_DW}, s{S_T0}
        s_lshl_b32 s{S_T0}, s{S_NU}, 8
        s_add_u32 s{S_DW}, s{S_DW}, s{S_T0}""")
    wait(33)
    barrier()
    def need_head(m):
        A(f"""{o_index(m)}
        s_bfe_u32 s{S_T1}, s{S_T0}, 0x30001
        s_mov_b32 s{S_SPIN}, 0""")
        n = f"L_need{m}{sfx}"
        loop = P.add(f"""{n}:
        s_bitcmp1_b32 s{S_MASK}, s{S_T1}
        s_cbranch_scc1 {n}_done
        buffer_load_dword v{LPOLL}, v{LFLAG}, {srd(sWS)}, 0 offen sc1
        s_add_u32 s{S_SPIN}, s{S_SPIN}, 1
        s_waitcnt vmcnt(0)
        v_cmp_eq_u32 vcc, 1, v{LPOLL}
        s_mov_b32 s{S_MASK}, vcc_lo
        s_cmp_lt_u32 s{S_SPIN}, {SPIN_MAX}
        s_cbranch_scc1 {n}""")
        tr.extend(loop + loop)
        A(f"{n}_done:")

    if wo_at[2] == 33:
        issue_ow(2, 35)
    if cfg.prog:
        A(f"s_mov_b32 s{S_MASK}, 0")
        need_head(2)
    else:
        poll_loop(P, tr, "poll1" + sfx, LPOLL, LFLAG)
        del q[:]
        q.append("poll")
    stamp()
    if coop:
        touch_b(0)
    issue_ob(2, 35)
    if wo_at[2] == 34:
        issue_ow(2, 35)
    coop_after(2)
    if wo_at[3] == 33:
        issue_ow(3, 36)
    issue_ob(3, 36)
    if wo_at[3] == 34:
        issue_ow(3, 36)
    coop_after(3)
    scalar_pre()
    nm = 4
    for k in range(35, 49):
        wait(k)
        barrier()
        while nm <= min(15, k + 1 + cfg.od - 33):
            issue_ow(nm, nm + 33)
            if cfg.prog and nm % 2 == 0:
                need_head(nm)
            issue_ob(nm, nm + 33)
            coop_after(nm)
            nm += 1
        scalar_pre()
    if cfg.stamps:
        A(f"""s_lshl_b32 s{S_T0}, s2, 3
        s_add_u32 s{S_T0}, s{S_T0}, s{S_WAVE}
        s_lshl_b32 s{S_T0}, s{S_T0}, 8
        s_add_u32 s{S_T0}, s{S_T0}, {WS_STAMP}
        v_lshl_add_u32 v1, v0, 2, s{S_T0}
        buffer_store_dword v{LSTAMP}, v1, {srd(sWS)}, 0 offen""")
    A("s_endpgm")
    return tr


def order(n, snake):
    return [(T, t) for T in range(n) for t in (reversed(T3) if snake and T & 1 else T3)]


def gemm_reads(b, s, kind, with_b=True):
    r = []
    if with_b:
        for t in T3:
            if kind == "q":
                r.append(f"ds_read_b128 {v4(FB(b, t))}, v{AB(s)} offset:{t * 2048}")
            else:
                r.append(f"ds_read_b128 {v4(FB(b, t))}, v{AB(0)} offset:{s * 3072 + t * 1024}")
    for T in range(8):
        for u in range(2):
            off = s * 8192 + u * (1024 if kind == "q" else 4096)
            r.append(f"ds_read_b64_tr_b16 {v2(FA(b, T) + 2 * u)}, v{AW(T)} offset:{off}")
    return r


def gemm_mfma(cfg, b, bsrc=None, zero=False):
    return [f"{MFMA} {v4(ACC(T, t))}, {v4(FA(b, T))}, {v4(bsrc(t) if bsrc else FB(b, t))}, {'0' if zero else v4(ACC(T, t))}"
            for T, t in order(8, cfg.snake)]


def gemm_loop(P, tr, cfg, kind, label, iters):
    sal = [f"s_add_u32 s{S_SLOT}, s{S_SLOT}, 1", f"s_and_b32 s{S_SLOT}, s{S_SLOT}, 3", f"s_cselect_b32 s{S_DW}, {WSLOT}, s{S_T2}"]
    if kind == "o":
        sal.append(f"s_cmp_lg_u32 s{S_SLOT}, 2")
    sal.append(f"s_cselect_b32 s{S_DB}, {BSLOT}, s{S_T3}")
    val = [f"v_add_u32 v{AB(s)}, s{S_DB}, v{AB(s)}" for s in range(2 if kind == "q" else 1)]
    val += [f"v_add_u32 v{AW(T)}, s{S_DW}, v{AW(T)}" for T in range(8)]
    nb = len(val) - 8
    hook = [(18, f"s_cmp_eq_u32 s{S_CNT}, s{S_FLAG}"), (19, "s_cbranch_scc1 L_count"), (19, "L_counted:")] if kind == "q" else []
    if kind == "o" and cfg.wb:
        hook = [(18, f"s_cmp_eq_u32 s{S_CNT}, s{S_FLAG}"), (19, "s_cbranch_scc1 L_wb"), (19, "L_wbdone:")]
    h0 = weave(gemm_mfma(cfg, 0), spread(gemm_reads(1, 1, kind), 0, 18) + spread(sal, 0, 4) + spread(val[:nb + 6], 12, 19)
               + spread(val[nb + 6:], 20, 21) + [(22, "s_waitcnt lgkmcnt(0)"), (22, "s_barrier")])
    h1 = weave(gemm_mfma(cfg, 1), spread(gemm_reads(0, 0, kind), -1, 17)
               + hook + [(20, f"s_sub_u32 s{S_CNT}, s{S_CNT}, 1"), (20, f"s_cmp_lg_u32 s{S_CNT}, 0")])
    tr.extend(P.add(f"s_mov_b32 s{S_CNT}, {iters}\ns_waitcnt lgkmcnt(0)"))
    if kind == "q":
        tr.extend(P.add(".p2align 3"))
        body = P.add([label + ":"] + h0 + h1 + ["s_waitcnt lgkmcnt(0)", f"s_cbranch_scc1 {label}"])
        tr.extend(body + body)
        return
    h0 = weave(gemm_mfma(cfg, 0), spread(gemm_reads(1, 1, kind), 0, 18) + spread(sal, 0, 4) + spread(val[:nb + 6], 11, 18)
               + spread(val[nb + 6:], 19, 19) + [(6, f"s_sub_u32 s{S_CNT}, s{S_CNT}, 1"), (7, f"s_cmp_eq_u32 s{S_CNT}, 0"),
                                                  (20, f"s_cbranch_scc1 {label}_out"), (22, "s_waitcnt lgkmcnt(0)"), (22, "s_barrier")])
    h1 = weave(gemm_mfma(cfg, 1), spread(gemm_reads(0, 0, kind), -1, 17) + hook)
    cut = h0.index(f"s_cbranch_scc1 {label}_out") + 1
    tr.extend(P.add(".p2align 3"))
    first = P.add([label + ":"] + h0[:cut])
    rest = P.add(h0[cut:] + h1 + ["s_waitcnt lgkmcnt(0)", f"s_branch {label}"])
    tr.extend(first + rest + first + P.add([label + "_out:"] + gemm_mfma(cfg, 0)[21:]))


def k_reads(tile):
    return [f"ds_read_b128 {v4(FR(kt * 4 + s))}, v{AK(s)} offset:{(tile % 3) * ASLOT + kt * 4096}" for kt in range(2) for s in range(4)]


def v_reads(T, tile):
    return [f"ds_read_b64_tr_b16 {v2(FR(T) + 2 * u)}, v{AV(T)} offset:{(tile % 3) * ASLOT + u * 4096}" for u in range(2)]


def qk_mfma(first=False):
    c0 = lambda t: "0" if first else v4(NM(t))
    return [f"{MFMA} {v4(SS(kt, t))}, {v4(FR(kt * 4 + s))}, {v4(QF(s, t))}, {c0(t) if s == 0 else v4(SS(kt, t))}"
            for kt in range(2) for s in range(4) for t in T3]


def pv_mfma(cfg):
    return [f"{MFMA} {v4(ACC(T, t))}, {v4(FR(T))}, {v4(PP(t))}, {v4(ACC(T, t))}" for T, t in order(8, cfg.snake)]


def xlane(op, regs, tmps):
    out = []
    for sw in ("v_permlane32_swap_b32", "v_permlane16_swap_b32"):
        out += [f"v_mov_b32 v{x}, v{r}" for r, x in zip(regs, tmps)]
        out += [f"{sw} v{r}, v{x}" for r, x in zip(regs, tmps)]
        out += [f"{op} v{r}, v{r}, v{x}" for r, x in zip(regs, tmps)]
    return out


def row_max():
    o = [f"v_max3_f32 v{VD(t)}, v{SS(0, t)}, v{SS(0, t) + 1}, v{SS(0, t) + 2}" for t in T3]
    o += [f"v_max3_f32 v{VD(t)}, v{SS(0, t) + 3}, v{SS(1, t)}, v{VD(t)}" for t in T3]
    o += [f"v_max3_f32 v{VD(t)}, v{SS(1, t) + 1}, v{SS(1, t) + 2}, v{VD(t)}" for t in T3]
    o += [f"v_max_f32 v{VD(t)}, v{SS(1, t) + 3}, v{VD(t)}" for t in T3]
    return o + xlane("v_max_f32", [VD(t) for t in T3], [VT(t) for t in T3])


def shift_scores():
    return [f"v_sub_f32 v{SS(kt, t) + r}, v{SS(kt, t) + r}, v{VD(t)}" for kt in range(2) for t in T3 for r in range(4)]


def guard_max(kt):
    r = [SS(kt, t) + k for t in T3 for k in range(4)]
    if kt == 0:
        o = [f"v_max3_f32 v{VX}, v{r[0]}, v{r[1]}, v{r[2]}"]
        o += [f"v_max3_f32 v{VX}, v{r[k]}, v{r[k + 1]}, v{VX}" for k in range(3, 11, 2)]
        return o + [f"v_max_f32 v{VX}, v{r[11]}, v{VX}"]
    return [f"v_max3_f32 v{VX}, v{r[k]}, v{r[k + 1]}, v{VX}" for k in range(0, 12, 2)]


def p_cvt(kt, h=None):
    return [f"v_cvt_pk_bf16_f32 v{PP(t) + 2 * kt + hh}, v{SS(kt, t) + 2 * hh}, v{SS(kt, t) + 2 * hh + 1}"
            for hh in ((0, 1) if h is None else (h,)) for t in T3]


def exp_sum(cfg, kt, h):
    o = [f"v_exp_f32 v{SS(kt, t) + 2 * h + r}, v{SS(kt, t) + 2 * h + r}" for t in T3 for r in range(2)]
    if cfg.pk:
        o += [f"v_pk_add_f32 {v2(VL(t))}, {v2(VL(t))}, {v2(SS(kt, t) + 2 * h)}" for t in T3]
    else:
        o += [f"v_add_f32 v{VL(t) + r}, v{VL(t) + r}, v{SS(kt, t) + 2 * h + r}" for t in T3 for r in range(2)]
    return o


def exps(kt, h):
    return [f"v_exp_f32 v{SS(kt, t) + 2 * h + r}, v{SS(kt, t) + 2 * h + r}" for t in T3 for r in range(2)]


def pk_sum(kt, h):
    return [f"v_pk_add_f32 {v2(VL(t))}, {v2(VL(t))}, {v2(SS(kt, t) + 2 * h)}" for t in T3]


def rescale(by):
    return [f"v_mul_f32 v{ACC(T, t) + r}, v{ACC(T, t) + r}, v{by(t)}" for T in range(8) for t in T3 for r in range(4)]


def acc_to_frag(s):
    return [f"v_cvt_pk_bf16_f32 v{QF(s, t) + 2 * u + h}, v{ACC(2 * s + u, t) + 2 * h}, v{ACC(2 * s + u, t) + 2 * h + 1}"
            for u in range(2) for t in T3 for h in range(2)]


def compute(P, cfg):
    tr = []
    A = lambda t: tr.extend(P.add(t))
    nst = [0]

    def stamp():
        if cfg.stamps:
            A(f"s_memrealtime s[{S_ST + 2 * nst[0]}:{S_ST + 2 * nst[0] + 1}]\ns_waitcnt lgkmcnt(0)")
            nst[0] += 1

    A(f"L_compute:\ns_getpc_b64 s[{S_PC}:{S_PC + 1}]\nL_text:\n{late_ids(cfg)}\ns_waitcnt lgkmcnt(0)")
    A(make_srd(((sOUT, 14, 768 * 4096), (sWS, 18, 256 << 20), (sDBG, 16, 256))))
    if cfg.prio:
        A(f"s_setprio {cfg.prio}")
    A(f"""
    s_getreg_b32 s{S_XCC}, hwreg(HW_REG_XCC_ID, 0, 3)
    s_cmp_lg_u32 s{S_W}, 0
    s_cbranch_scc1 L_noclear
    s_lshl_b32 s{S_T0}, s2, 13
    s_add_u32 s{S_T0}, s{S_T0}, {WS_INBOX}
    v_lshrrev_b32 v1, 3, v0
    v_and_b32 v2, 7, v0
    v_lshlrev_b32 v2, 2, v2
    v_lshl_add_u32 v2, v1, 7, v2
    v_min_u32 v1, 47, v0
    v_lshlrev_b32 v1, 7, v1
    v_cmp_gt_u32 vcc, 32, v0
    v_cndmask_b32 v1, v1, v2, vcc
    v_mov_b32 v2, 0
    buffer_store_dword v2, v1, {srd(sWS)}, s{S_T0} offen sc1
    {code_touch(0, 110, 111) if cfg.ctouch else ""}
    L_noclear:
    s_lshl_b32 s{S_XCC}, s{S_XCC}, 2
    v_and_b32 v{V_TMP}, 3, v0
    v_xor_b32 v{V_TMP}, s{S_GRP}, v{V_TMP}
    v_lshlrev_b32 v{V_TMP}, 2, v{V_TMP}
    v_lshrrev_b32 v100, 4, v0
    v_and_b32 v101, 15, v0
    v_bfe_u32 v102, v0, 2, 2
    v_bfe_u32 v103, v0, 1, 1
    v_and_b32 v104, 1, v0
    v_lshlrev_b32 v109, 4, v0
    """)
    A(f"""
    v_lshl_add_u32 v105, v100, 3, v102
    v_lshlrev_b32 v105, 8, v105
    v_lshl_add_u32 v105, v104, 3, v105
    v_lshl_add_u32 v105, v103, 4, v105
    v_and_b32 v106, 1, v100
    v_lshl_add_u32 v106, v106, 2, v102
    v_lshl_add_u32 v{AW(0)}, v106, 5, v105
    """)
    for T in range(1, 8):
        A(f"v_xor_b32 v{AW(T)}, {T << 5}, v{AW(0)}")
    A(f"""
    s_add_u32 s{S_T0}, s{S_LWB}, {BRING}
    v_lshl_add_u32 v105, v101, 7, s{S_T0}
    v_lshrrev_b32 v107, 1, v101
    v_xor_b32 v107, v107, v100
    v_lshl_add_u32 v{AB(0)}, v107, 4, v105
    v_xor_b32 v{AB(1)}, 64, v{AB(0)}
    """)
    A(f"""
    s_lshr_b32 s{S_T0}, s{S_W}, 1
    s_lshl_b32 s{S_T0}, s{S_T0}, 13
    s_add_u32 s{S_T0}, s{S_T0}, {KRING}
    v_lshl_add_u32 v105, v101, 8, s{S_T0}
    v_lshrrev_b32 v107, 1, v100
    v_and_b32 v108, 1, v100
    v_lshl_add_u32 v107, v108, 1, v107
    v_xor_b32 v107, v107, v101
    v_lshl_add_u32 v{AK(0)}, v107, 4, v105
    """)
    for s in range(1, 4):
        A(f"v_xor_b32 v{AK(s)}, {s << 6}, v{AK(0)}")
    A(f"""
    s_add_u32 s{S_T0}, s{S_T0}, {VRING - KRING}
    v_lshl_add_u32 v105, v100, 2, v102
    v_lshl_add_u32 v105, v105, 8, s{S_T0}
    v_lshl_add_u32 v105, v104, 3, v105
    v_lshl_add_u32 v105, v103, 4, v105
    v_lshl_add_u32 v{AV(0)}, v106, 5, v105
    """)
    for T in range(1, 8):
        A(f"v_xor_b32 v{AV(T)}, {T << 5}, v{AV(0)}")
    A(f"s_mov_b32 s{S_C}, {f32(1.4426950408889634 / 128 ** 0.5)}\ns_mov_b32 s{S_C + 1}, s{S_C}")
    A(f"s_mov_b32 s{S_T2}, {-3 * WSLOT}\ns_mov_b32 s{S_T3}, {-3 * BSLOT}\ns_mov_b32 s{S_SLOT}, 0")
    A([f"v_pk_mov_b32 {v2(r)}, 0, 0" for r in range(0, 96, 2)])
    if cfg.tag or cfg.oclear:
        A([f"v_mov_b32 v{r}, -1" for r in range(112, 116)])
    if cfg.tag:
        A(f"""s_mul_i32 s{S_T0}, s{S_W}, 9216
        s_mul_i32 s{S_T1}, s2, 36864
        s_add_u32 s{S_T0}, s{S_T0}, s{S_T1}
        s_add_u32 s{S_T0}, s{S_T0}, {WS_X}""")
        for k in range(9):
            if k and k % 4 == 0:
                A(f"s_add_u32 s{S_T0}, s{S_T0}, 4096")
            A(f"buffer_store_dwordx4 v[112:115], v109, {srd(sWS)}, s{S_T0} offen offset:{(k % 4) * 1024} sc1")
    if cfg.oclear:
        A(f"""s_mul_i32 s{S_T0}, s{S_GRP}, 393216
        s_mul_i32 s{S_T1}, s{S_J}, 49152
        s_add_u32 s{S_T0}, s{S_T0}, s{S_T1}
        s_mul_i32 s{S_T1}, s{S_W}, 12288
        s_add_u32 s{S_T0}, s{S_T0}, s{S_T1}""")
        for k in range(12):
            if k and k % 4 == 0:
                A(f"s_add_u32 s{S_T0}, s{S_T0}, 4096")
            A(f"buffer_store_dwordx4 v[112:115], v109, {srd(sWS)}, s{S_T0} offen offset:{(k % 4) * 1024} sc1")
    count = f"""s_lshl_b32 s{S_T0}, 1, s{S_XCC}
    v_mov_b32 v{V_CHK}, s{S_T0}
    s_mov_b64 exec, 1
    s_waitcnt vmcnt(0)
    buffer_atomic_add v{V_CHK}, v{V_TMP}, {srd(sDBG)}, 0 offen
    s_mov_b64 exec, -1""".split("\n")
    rare = [["L_count:", f"s_cmp_eq_u32 s{S_FLAG}, {cfg.fetch_at}", "s_cbranch_scc1 L_fetch", f"s_mov_b32 s{S_FLAG}, {cfg.fetch_at}",
             "s_waitcnt vmcnt(0)", f"s_cmp_lg_u32 s{S_W}, 0", "s_cbranch_scc1 L_counted"] + count + ["s_branch L_counted",
             "L_fetch:", f"buffer_load_dword v{V_CHK}, v{V_TMP}, {srd(sDBG)}, 0 offen sc1", "s_branch L_counted"]]
    A(f"s_cmp_eq_u32 s{S_W}, 0\ns_cselect_b32 s{S_FLAG}, {cfg.count_at}, {cfg.count_at + 1}")
    assert not (cfg.stag and (cfg.tag or cfg.oclear))
    if cfg.stag:
        A([f"s_cmp_ge_u32 s{S_BP}, 2", f"s_cselect_b32 s{S_T1}, s{S_FLAG}, 0", f"s_cmp_lg_u32 s{S_T1}, {cfg.count_at}", "s_cbranch_scc1 L_nocount"]
          + count + [f"s_mov_b32 s{S_FLAG}, {cfg.fetch_at}", "L_nocount:"])
    A("s_barrier")
    A(gemm_reads(0, 0, "q"))
    gemm_loop(P, tr, cfg, "q", "L_qloop", 16)
    A(k_reads(0))
    A(f"s_mov_b32 s{S_SPIN}, 0")
    chk = P.add(f"""L_chk:
    s_waitcnt vmcnt(0)
    v_lshrrev_b32 v{VT(0)}, 4, v{V_CHK}
    v_and_b32 v{VT(0)}, 0x0f0f0f0f, v{VT(0)}
    v_and_b32 v{VT(1)}, 0x0f0f0f0f, v{V_CHK}
    v_add_u32 v{VT(0)}, v{VT(0)}, v{VT(1)}
    v_sad_u8 v{VT(0)}, v{VT(0)}, 0, 0
    v_readfirstlane_b32 s{S_T1}, v{V_CHK}
    v_cmp_ne_u32 vcc, 8, v{VT(0)}
    s_cbranch_vccnz L_rechk
    L_chk_done:""")
    tr.extend(chk)
    rare.append(["L_rechk:", f"buffer_load_dword v{V_CHK}, v{V_TMP}, {srd(sDBG)}, 0 offen sc1", f"s_add_u32 s{S_SPIN}, s{S_SPIN}, 1",
                 f"s_cmp_lt_u32 s{S_SPIN}, {cfg.chk_max}", "s_cbranch_scc1 L_chk", "s_waitcnt vmcnt(0)", "s_branch L_chk_done"])
    A([f"v_pk_mul_f32 {v2(r)}, {v2(r)}, s[{S_C}:{S_C + 1}]" for r in range(0, 96, 2)])

    def q_frag(s):
        return acc_to_frag(s) + [f"v_permlane16_swap_b32 v{QF(s, t) + h}, v{QF(s, t) + 2 + h}" for t in T3 for h in range(2)]

    qk0 = qk_mfma(True)
    qk0 = [qk0[kt * 12 + s * 3 + t] for s in range(4) for kt in range(2) for t in T3]
    zero = [f"v_mov_b64 {v2(r)}, 0" for r in range(0, 96, 2)]
    addr = f"""s_lshl_b32 s{S_T0}, 8, s{S_XCC}
    s_cmp_eq_u32 s{S_T0}, s{S_T1}
    s_cselect_b32 s{S_FLAG}, {cfg.local}, 0
    {lane_id(V_TMP)}
    s_mul_i32 s{S_T0}, s{S_GRP}, 393216
    s_mul_i32 s{S_T1}, s{S_J}, 49152
    s_add_u32 s{S_T0}, s{S_T0}, s{S_T1}
    s_add_u32 s{S_T0}, s{S_T0}, s{S_LWB}
    v_lshl_add_u32 v{V_OST}, v{V_TMP}, 4, s{S_T0}
    s_andn2_b32 s{S_T0}, s2, 0x38
    s_lshl_b32 s{S_T0}, s{S_T0}, 13
    s_lshl_b32 s{S_T1}, s{S_J}, 2
    s_add_u32 s{S_T0}, s{S_T0}, s{S_T1}
    s_lshl_b32 s{S_T1}, s{S_W}, 7
    s_add_u32 s{S_T0}, s{S_T0}, s{S_T1}
    s_add_u32 s{S_T0}, s{S_T0}, {WS_INBOX}
    v_lshl_add_u32 v{V_FLG}, v{V_TMP}, 16, s{S_T0}
    v_mov_b32 v{V_CHK}, 1""".split("\n")
    A(q_frag(0))
    A(weave(qk0, spread(addr, 0, 20) + [(6 * s - 6 + k // 3, x) for s in range(1, 4) for k, x in enumerate(q_frag(s))] + spread(zero[:12], 18, 23)))
    A(zero[12:20])
    A(row_max())
    A([f"v_pk_add_f32 {v2(SS(kt, t) + r)}, {v2(SS(kt, t) + r)}, {v2(VD(t) & ~1)} op_sel:[0,{VD(t) & 1}] op_sel_hi:[1,{VD(t) & 1}] neg_lo:[0,1] neg_hi:[0,1]"
       for kt in range(2) for t in T3 for r in (0, 2)])
    A([f"v_sub_f32 v{NM(t) + r}, 0, v{VD(t)}" for t in T3 for r in range(4)])
    A([f"v_mov_b64 {v2(VL(t))}, 0" for t in T3])
    A(exps(0, 0) + exps(0, 1) + exps(1, 0))
    A(zero[20:])
    A("s_barrier")
    A(k_reads(1))

    def iteration(i):
        pre = pk_sum(0, 0) + pk_sum(0, 1) + pk_sum(1, 0) + p_cvt(0) + p_cvt(1, 0)
        vr = [x for T in range(8) for x in v_reads(T, i)]
        vgap = list(range(8, 22)) + [23, 24]
        add11 = [f"v_add_f32 v{VL(t) + r}, v{VL(t) + r}, v{SS(1, t) + 2 + r}" for t in T3 for r in range(2)]
        early = exps(0, 0) + exps(0, 1) + exps(1, 0)
        fill = ([(5, "s_waitcnt lgkmcnt(0)"), (22, "s_waitcnt lgkmcnt(4)"), (35, "s_waitcnt lgkmcnt(0)")]
                + ([(12, f"s_sub_u32 s{S_CNT}, s{S_CNT}, 1"), (40, f"s_cmp_lg_u32 s{S_CNT}, 0")] if i == 2 else [])
                + list(zip(vgap, vr)) + list(zip(range(6), exps(1, 1))) + list(zip((6, 6, 7, 7, 8, 9), add11)) + list(zip((10, 11, 11), p_cvt(1, 1)))
                + list(zip(range(16, 22), guard_max(0))) + list(zip((25, 25, 26, 26, 27, 27), guard_max(1)))
                + [(28, f"v_cmp_lt_f32 vcc, s{S_C}, v{VX}"), (29, f"s_cbranch_vccnz L_up_{i}")] + list(zip(range(30, 48), early)))
        mf = qk_mfma() + pv_mfma(cfg)
        rare.append([f"L_up_{i}:", "s_waitcnt lgkmcnt(0)"] + mf[30:] + row_max() + [f"v_max_f32 v{VD(t)}, 0, v{VD(t)}" for t in T3] + shift_scores()
                    + [f"v_exp_f32 v{VA(t)}, -v{VD(t)}" for t in T3]
                    + [f"v_sub_f32 v{NM(t) + r}, v{NM(t) + r}, v{VD(t)}" for t in T3 for r in range(4)]
                    + [f"v_mul_f32 v{VL(t) + r}, v{VL(t) + r}, v{VA(t)}" for t in T3 for r in range(2)]
                    + rescale(VA) + early + [f"s_cmp_lg_u32 s{S_CNT}, 0", f"s_branch L_back_{i}"])
        return pre + ["s_waitcnt lgkmcnt(6)"] + weave(mf, fill) + [f"L_back_{i}:"]

    A(f"s_mov_b32 s{S_C}, {f32(cfg.thr)}\ns_mov_b32 s{S_CNT}, 5\ns_branch L_aenter\n.p2align 3")
    top = P.add(["L_aloop:", "s_barrier"] + k_reads(1) + ["L_aenter:"])
    body = P.add(iteration(0) + ["s_barrier"] + k_reads(2) + iteration(1) + ["s_barrier"] + k_reads(0) + iteration(2)
                 + ["s_cbranch_scc1 L_aloop"])
    tr.extend(body + top + body)
    A(exps(1, 1) + pk_sum(0, 0) + pk_sum(0, 1) + pk_sum(1, 0) + pk_sum(1, 1))
    A([f"v_add_f32 v{VL(t)}, v{VL(t)}, v{VL(t) + 1}" for t in T3])
    A(xlane("v_add_f32", [VL(t) for t in T3], [VT(t) for t in T3]))
    A([f"v_rcp_f32 v{VL(t)}, v{VL(t)}" for t in T3])
    bc = "op_sel_hi:[1,0]"
    A([f"v_pk_mul_f32 {v2(SS(kt, t) + r)}, {v2(SS(kt, t) + r)}, {v2(VL(t))} {bc}" for kt in range(2) for t in T3 for r in (0, 2)])
    A(p_cvt(0) + p_cvt(1))
    oscale = [f"v_pk_mul_f32 {v2(ACC(T, t) + r)}, {v2(ACC(T, t) + r)}, {v2(VL(t))} {bc}" for T in range(8) for t in T3 for r in (0, 2)]
    A(oscale[:24])
    A("s_barrier")
    A([x for T in range(8) for x in v_reads(T, 15)])
    A(oscale[24:])

    def last_pv(pol):
        def o_out(s):
            return (acc_to_frag(s) + [f"s_mov_b32 s{S_T0}, {(s >> 1) * 24576 + (s & 1) * 3072}"]
                    + [f"buffer_store_dwordx4 {v4(QF(s, t))}, v{V_OST}, {srd(sWS)}, s{S_T0} offen offset:{t * 1024} {pol}" for t in T3])
        fill = []
        for s in range(3):
            o = o_out(s)
            fill += [(6 * s + 12, x) for x in o[12:]] if s < 2 else []
            fill += spread(o[:12], 6 * s + 6, 6 * s + 11)
        return weave(pv_mfma(cfg), fill) + o_out(2)[12:] + o_out(3)

    A([f"s_cmp_eq_u32 s{S_FLAG}, 0", "s_cbranch_scc1 L_far"] + last_pv("") + ["L_near:"])
    rare.append(["L_far:"] + last_pv("sc1") + ["s_branch L_near"])
    stamp()
    fst = f"buffer_store_dword v{V_CHK}, v{V_FLG}, {srd(sWS)}, 0 offen"
    flag = [f"s_cmp_eq_u32 s{S_FLAG}, 0", "s_mov_b64 exec, 0xff", "s_waitcnt vmcnt(0)", "s_cbranch_scc1 L_farflag", fst, "L_flagged:", "s_mov_b64 exec, -1"]
    rare.append(["L_farflag:", fst + " sc1", "s_branch L_flagged"])
    A(f"""
    s_lshl_b32 s{S_T0}, s{S_HG}, 6
    v_and_b32 v{AW(0)}, 0xfff, v{AV(0)}
    v_xor_b32 v{AW(0)}, s{S_T0}, v{AW(0)}
    """)
    for T in range(1, 8):
        A(f"v_xor_b32 v{AW(T)}, {T << 5}, v{AW(0)}")
    A(f"""
    s_add_u32 s{S_T0}, s{S_LWB}, {BRING}
    v_lshl_add_u32 v{AB(0)}, v{V_TMP}, 4, s{S_T0}
    v_mov_b32 v{AK(1)}, 1
    """)
    if cfg.flag_after < 0:
        A(flag)
        stamp()
    A("s_barrier")
    A(gemm_reads(0, 0, "o", with_b=False))
    wstep = [f"v_add_u32 v{AW(T)}, {WSLOT}, v{AW(T)}" for T in range(8)]
    for hs in range(4):
        if hs == cfg.flag_after:
            A(flag)
            stamp()
        fill = []
        if hs < 3:
            fill += spread(gemm_reads((hs + 1) & 1, (hs + 1) & 1, "o", with_b=False), 0, 15)
        if hs in (0, 2):
            fill += spread(wstep, 16, 23)
        A(weave(gemm_mfma(cfg, hs & 1, bsrc=lambda t: QF(hs, t), zero=(hs == 0)), fill))
    A(f"""
    s_mul_i32 s{S_T0}, s{S_W}, 9216
    s_add_u32 s{S_T0}, s{S_T0}, {WS_X}
    v_lshl_add_u32 v{AB(1)}, v{V_TMP}, 4, s{S_T0}
    v_and_b32 v{AK(3)}, 3, v{V_TMP}
    s_lshl_b32 s{S_T0}, s{S_W}, 9
    s_add_u32 s{S_T0}, s{S_T0}, {WS_INBOX + 4096}
    v_lshl_add_u32 v{AK(2)}, v{AK(3)}, 7, s{S_T0}
    v_xor_b32 v{AK(0)}, s2, v{AK(3)}
    v_lshl_add_u32 v{AK(0)}, v{AK(0)}, 13, v{AK(2)}
    v_max_u32 v{AK(3)}, 1, v{AK(3)}
    s_lshl_b32 s{S_T1}, s2, 13
    s_add_u32 s{S_T0}, s{S_T0}, s{S_T1}
    v_lshl_add_u32 v{AK(2)}, v{AK(3)}, 7, s{S_T0}
    v_and_b32 v{AV(0)}, 15, v{V_TMP}
    v_bfe_u32 v{AV(1)}, v{V_TMP}, 4, 1
    v_bfe_u32 v{AV(2)}, v{V_TMP}, 5, 1
    s_mul_i32 s{S_T0}, s{S_BP}, 192
    s_mul_i32 s{S_T1}, s{S_W}, 48
    s_add_u32 s{S_T0}, s{S_T0}, s{S_T1}
    s_lshl_b32 s{S_T0}, s{S_T0}, 12
    s_lshl_b32 s{S_T1}, s{S_BLK}, 11
    s_add_u32 s{S_T0}, s{S_T0}, s{S_T1}
    s_lshl_b32 s{S_T1}, s{S_NU}, 8
    s_add_u32 s{S_T0}, s{S_T0}, s{S_T1}
    s_lshl_b32 s{S_T1}, s{S_HG}, 6
    s_add_u32 s{S_T0}, s{S_T0}, s{S_T1}
    v_lshl_add_u32 v{AV(0)}, v{AV(0)}, 12, s{S_T0}
    v_lshl_add_u32 v{AV(0)}, v{AV(1)}, 5, v{AV(0)}
    v_lshl_add_u32 v{AV(0)}, v{AV(2)}, 4, v{AV(0)}
    s_mov_b32 s{S_SLOT}, 2
    """)
    if cfg.wb:
        A(f"""s_and_b32 s{S_T0}, s2, {cfg.wbmask}
        s_or_b32 s{S_T0}, s{S_T0}, s{S_W}
        s_cselect_b32 s{S_FLAG}, 0, {cfg.wb}""")
        rare.append(["L_wb:", "buffer_wbl2 sc1", "s_branch L_wbdone"])
    A("s_barrier")
    A(gemm_reads(0, 0, "o"))
    gemm_loop(P, tr, cfg, "o", "L_oloop", 14)
    mf = gemm_mfma(cfg, 1)
    fill = []
    for i in range(1, 4):
        so = [f"s_xor_b32 s{S_T0}, s2, {i}", f"s_mul_i32 s{S_T0}, s{S_T0}, 36864", f"s_add_u32 s{S_T0}, s{S_T0}, {(i - 1) * 3072}"]
        st = [f"buffer_store_dwordx4 {v4(QF(i, t))}, v{AB(1)}, {srd(sWS)}, s{S_T0} offen offset:{t * 1024} sc1" for t in T3]
        fill += [(6 * i + 6, x) for x in st] + list(zip(range(6 * i + 1, 6 * i + 4), so)) + spread(acc_to_frag(i), 6 * i, 6 * i + 5)
    last = [x for g, x in fill if g == 24]
    A(weave(mf[6:] + mf[:6], [(g, x) for g, x in fill if g < 24]) + last)
    stamp()
    xload = lambda k, so: f"buffer_load_dwordx4 {v4(24 + 4 * k)}, v{AB(1)}, {srd(sWS)}, s{so} offen offset:{(k % 3) * 1024} sc1"

    def xadd(i):
        for k in range(3 * i, 3 * i + 3):
            for d in range(4):
                src, dst = 24 + 4 * k + d, ACC(d >> 1, k % 3) + 2 * (d & 1)
                A(f"""v_lshlrev_b32 v64, 16, v{src}
                v_and_b32 v65, 0xffff0000, v{src}
                v_pk_add_f32 {v2(dst)}, {v2(dst)}, v[64:65]""")

    so = (S_T0, S_T1, S_T2)
    xbase = f"s_mul_i32 s{S_T0}, s2, 36864\ns_add_u32 s{S_T1}, s{S_T0}, 3072\ns_add_u32 s{S_T2}, s{S_T0}, 6144"
    if not cfg.tag:
        A(["s_waitcnt vmcnt(0)", "s_mov_b64 exec, 14", f"buffer_store_dword v{AK(1)}, v{AK(0)}, {srd(sWS)}, 0 offen sc1", "s_mov_b64 exec, -1"])
        stamp()
        poll_loop(P, tr, "poll2", V_CHK, AK(2))
        stamp()
        A(xbase)
        A([xload(k, so[k // 3]) for k in range(9)])
        for i in range(3):
            xadd(i)
    else:
        stamp()
        A(xbase)
        A(f"s_mov_b32 s{S_SPIN}, 0")
        if cfg.tag == 2:
            probe = P.add(["L_probe:"] + [xload(3 * i + 2, so[i]) for i in range(3)] + f"""s_add_u32 s{S_SPIN}, s{S_SPIN}, 1
            s_cmp_ge_u32 s{S_SPIN}, {SPIN_MAX}
            s_cbranch_scc1 L_probed
            s_waitcnt vmcnt(0)
            v_max3_u32 v64, v35, v47, v59
            v_cmp_eq_u32 vcc, -1, v64
            s_cbranch_vccnz L_probe""".split("\n"))
            tr.extend(probe + probe)
            A("L_probed:")
        first = [xload(k, so[k // 3]) for k in range(9) if cfg.tag == 1 or k % 3 != 2]
        A(first)
        for i in range(3):
            b = 24 + 12 * i
            chk2 = ([f"v_max3_u32 v64, v{b}, v{b + 1}, v{b + 2}"] + [f"v_max3_u32 v64, v{b + k}, v{b + k + 1}, v64" for k in range(3, 11, 2)]
                    + [f"v_max_u32 v64, v{b + 11}, v64", "v_cmp_eq_u32 vcc, -1, v64"])
            A([f"L_x{i}:"] + chk2 + [f"s_cbranch_vccnz L_xr{i}", f"L_xok{i}:"])
            rare.append([f"L_xr{i}:"] + [xload(k, so[i]) for k in range(3 * i, 3 * i + 3)]
                        + [f"s_add_u32 s{S_SPIN}, s{S_SPIN}, 1", f"s_cmp_lt_u32 s{S_SPIN}, {SPIN_MAX}", "s_waitcnt vmcnt(0)",
                           f"s_cbranch_scc1 L_x{i}", f"s_branch L_xok{i}"])
            if i == 2:
                stamp()
            xadd(i)
    A(acc_to_frag(0))
    A([f"v_permlane16_swap_b32 v{QF(0, t) + h}, v{QF(0, t) + 2 + h}" for t in T3 for h in range(2)])
    for t in T3:
        A(f"s_mov_b32 s{S_T0}, {t * 65536}\nbuffer_store_dwordx4 {v4(QF(0, t))}, v{AV(0)}, {srd(sOUT)}, s{S_T0} offen {cfg.pol_out}")
    if cfg.stamps:
        A("s_waitcnt vmcnt(0)")
        stamp()
        A(f"v_mov_b32 v1, 0")
        for k in range(nst[0]):
            A(f"v_writelane_b32 v1, s{S_ST + 2 * k}, {k}")
        A(f"""s_lshl_b32 s{S_T0}, s2, 3
        s_add_u32 s{S_T0}, s{S_T0}, s{S_WAVE}
        s_lshl_b32 s{S_T0}, s{S_T0}, 8
        s_add_u32 s{S_T0}, s{S_T0}, {WS_STAMP}
        v_lshl_add_u32 v2, v{V_TMP}, 2, s{S_T0}
        buffer_store_dword v1, v2, {srd(sWS)}, 0 offen""")
    A("L_exit:\ns_endpgm")
    blocks = {}
    for blk in rare:
        blocks[blk[0][:-1]] = P.add(blk)
    tr2 = []
    skip = None
    for ins in tr:
        if skip:
            if ins.text == skip + ":":
                skip = None
            else:
                continue
        tr2.append(ins)
        if ins.op.startswith("s_cbranch") and ins.text.split()[1] in blocks:
            blk = blocks[ins.text.split()[1]]
            tr2 += blk
            skip = blk[-1].text.split()[1]
    assert skip is None
    return tr, tr2


def generate(cfg):
    P = Prog()
    pre = P.add("s_cmp_ge_u32 s2, 256\ns_cbranch_scc1 L_exit")
    if cfg.remap:
        pre += P.add("""s_bfe_u32 s4, s2, 0x20003
        s_lshr_b32 s5, s2, 5
        s_and_b32 s2, s2, 7
        s_lshl_b32 s4, s4, 6
        s_lshl_b32 s5, s5, 3
        s_or_b32 s2, s2, s4
        s_or_b32 s2, s2, s5""")
    pre += prologue(P, cfg)
    tl = loader(P, cfg)
    tc, tc2 = compute(P, cfg)
    body = P.finish([pre + tc, pre + tc2] + [pre + t for t in tl])
    if cfg.align:
        body = align8(body)
    return (HEADER + "; @launch grid=(256,1,1) block=(512,1,1) lds=163840\n"
            + '.amdgcn_target "amdgcn-amd-amdhsa--gfx950"\n.text\n'
            + f".globl {NAME}_kernel\n.p2align 8\n.type {NAME}_kernel,@function\n{NAME}_kernel:\n" + body
            + f"""L_text_end:
.section .rodata,"a"
.p2align 6
.amdhsa_kernel {NAME}_kernel
  .amdhsa_next_free_vgpr 256
  .amdhsa_next_free_sgpr 102
  .amdhsa_accum_offset 256
  .amdhsa_group_segment_fixed_size 0
  .amdhsa_kernarg_size 104
  .amdhsa_user_sgpr_count 2
  .amdhsa_user_sgpr_kernarg_segment_ptr 1
  .amdhsa_system_sgpr_workgroup_id_x 1
  .amdhsa_float_denorm_mode_32 3
.end_amdhsa_kernel
""")


def parse(args):
    kw = {}
    for a in args:
        k, v = a.split("=")
        kw[k] = float(v) if k == "thr" else (int(v) if v.lstrip("-").isdigit() and not k.startswith(("pre", "ptouch", "spre")) else v.replace("+", " "))
    return Cfg(**kw)


if __name__ == "__main__":
    open(sys.argv[1], "w").write(generate(parse(sys.argv[2:])))
```

```python
import struct, sys
from asmlib import Prog, weave, spread, balance, align8

NAME = "concat_heads__mha_block_cached__gqa_block_cached__near_ridge"
HEADER = open("cdna_kernels/" + NAME + ".s.ref").read().split("; Override launch")[0]

WS_O, WS_X, WS_INBOX, WS_STAMP, WS_DUMP = 0, 16 << 20, 48 << 20, 200 << 20, 64 << 20
WRING, BRING, KRING, VRING = 0, 65536, 65536, 114688
WSLOT, BSLOT, ASLOT = 16384, 24576, 16384
SPIN_MAX = 200000
T3 = range(3)

S_WAVE, sX, sK, sV, sWQ, sWO, sOUT, sWS, sDBG = 3, 20, 24, 28, 32, 36, 40, 44, 48
S_BLK, S_HG, S_J, S_BP, S_NU, S_W, S_H, S_DB = 52, 53, 54, 55, 56, 57, 58, 59
S_T0, S_T1, S_T2, S_T3, S_CNT, S_DW, S_C, S_SLOT = 60, 61, 62, 63, 64, 65, 66, 68
S_LWB, S_LWW, S_ROT, S_J2, S_SPIN, S_FLAG, S_XCC, S_GRP = 69, 70, 71, 72, 73, 74, 75, 76
S_MASK, S_PC = 77, 78
S_SB = 94
S_TBL, S_BO = 92, 94
S_ST = 80
srd = lambda r: f"s[{r}:{r+3}]"
v4 = lambda r: f"v[{r}:{r+3}]"
v2 = lambda r: f"v[{r}:{r+1}]"
f32 = lambda x: "0x%08x" % struct.unpack("<I", struct.pack("<f", x))[0]
MFMA = "v_mfma_f32_16x16x32_bf16"

ACC = lambda T, t: (T * 3 + t) * 4
QF = lambda s, t: 96 + (s * 3 + t) * 4
FA = lambda b, T: 144 + 44 * b + 4 * T
FB = lambda b, t: 144 + 44 * b + 32 + 4 * t
AW = lambda T: 232 + T
AB = lambda s: 240 + s
V_CHK, V_TMP = 242, 243
FR = lambda f: 144 + 4 * f
SS = lambda kt, t: 176 + (kt * 3 + t) * 4
PP = lambda t: 200 + 4 * t
NM = lambda t: 212 + 4 * t
VL = lambda t: 224 + 2 * t
VX = 230
V_OST, V_FLG = 241, 231
VD = lambda t: 232 + t
VT = lambda k: 235 + k
VA = lambda t: 238 + t
AK = lambda s: 244 + s
AV = lambda T: 248 + T


class Cfg:
    def __init__(self, **kw):
        self.pol_x = ""
        self.pol_wq = ""
        self.pol_kv = "nt"
        self.pol_wo = ""
        self.pol_ob = "sc1"
        self.rot = 1
        self.stamps = 0
        self.flag_after = 1
        self.pre = ""
        self.last = 30
        self.win = 6
        self.win16 = 10
        self.wo_at = "31.31.33.33"
        self.qd = 1
        self.thr = 8.0
        self.local = 1
        self.pk = 0
        self.snake = 1
        self.align = 1
        self.prio = 0
        self.remap = 0
        self.nurot = 1
        self.otouch = 0
        self.stag = 0
        self.s1pre = 36
        self.s1win = 8
        self.s0win = 8
        self.s0late = 8
        self.s0sw = 28
        self.prog = 0
        self.pre1 = ''
        self.tag = 0
        self.oclear = 0
        self.winlate = 0
        self.late = 27
        self.wwin = 0
        self.defer = 0
        self.bdirect = 0
        self.bgaps = '17.19.21'
        self.bwin = 0
        self.afirst = 0
        self.winb = 0
        self.lastb = 0
        self.par = 0
        self.spre = ''
        self.coop = ''
        self.coopw0 = 31
        self.promote = 0
        self.pol_out = ''
        self.ptouch = ''
        self.wb = 0
        self.wbmask = 0xf8
        self.oord = 0
        self.od = 1
        self.ctouch = 0
        self.count_at = 12
        self.fetch_at = 3
        self.chk_max = SPIN_MAX
        self.__dict__.update(kw)


def lane_id(v):
    return f"v_mbcnt_lo_u32_b32 v{v}, -1, 0\nv_mbcnt_hi_u32_b32 v{v}, -1, v{v}"


def make_srd(items):
    return "\n".join(f"s_mov_b32 s{r}, s{p}\ns_mov_b32 s{r+1}, s{p+1}\ns_mov_b32 s{r+2}, {n}\ns_mov_b32 s{r+3}, 0x20000" for r, p, n in items)


def prologue(P, cfg):
    return P.add(f"""
    s_bfe_u32 s{S_BLK}, s2, 0x10002
    s_mul_i32 s{S_T0}, s{S_BLK}, 40
    s_load_dwordx8 s[4:11], s[0:1], s{S_T0}
    s_add_u32 s{S_T1}, s{S_T0}, 32
    s_load_dwordx2 s[12:13], s[0:1], s{S_T1}
    s_load_dwordx4 s[16:19], s[0:1], 88
    s_load_dwordx2 s[14:15], s[0:1], 80
    v_lshrrev_b32 v1, 6, v0
    v_and_b32 v0, 63, v0
    s_and_b32 s{S_HG}, s2, 3
    v_readfirstlane_b32 s{S_WAVE}, v1
    s_bfe_u32 s{S_J}, s2, 0x30003
    s_lshr_b32 s{S_BP}, s2, 6
    s_lshl_b32 s{S_H}, s{S_HG}, 3
    s_add_u32 s{S_H}, s{S_H}, s{S_J}
    s_and_b32 s{S_W}, s{S_WAVE}, 3
    s_mul_i32 s{S_LWB}, s{S_W}, 6144
    s_lshl_b32 s{S_LWW}, s{S_W}, 12
    s_cmp_lt_u32 s{S_WAVE}, 4
    s_cbranch_scc1 L_compute
    """)


def late_ids(cfg):
    return f"""s_mul_i32 s{S_NU}, s{S_BP}, {2 * cfg.nurot}
    s_add_u32 s{S_NU}, s{S_NU}, s{S_J}
    s_and_b32 s{S_NU}, s{S_NU}, 7
    s_and_b32 s{S_GRP}, s2, 7
    s_lshl_b32 s{S_T1}, s{S_BP}, 3
    s_add_u32 s{S_GRP}, s{S_GRP}, s{S_T1}"""


def code_touch(lane, vaddr, vdst):
    return f"""s_lshr_b32 s{S_T0}, s2, 3
    s_lshl_b32 s{S_T0}, s{S_T0}, 10
    v_and_b32 v{vaddr}, 7, v{lane}
    v_lshl_add_u32 v{vaddr}, v{vaddr}, 7, s{S_T0}
    v_min_u32 v{vaddr}, L_text_end-L_text-4, v{vaddr}
    global_load_dword v{vdst}, v{vaddr}, s[{S_PC}:{S_PC + 1}]"""


def poll_loop(P, tr, name, vdst, vaddr):
    tr.extend(P.add(f"s_mov_b32 s{S_SPIN}, 0"))
    loop = P.add(f"""L_{name}:
    buffer_load_dword v{vdst}, v{vaddr}, {srd(sWS)}, 0 offen sc1
    s_add_u32 s{S_SPIN}, s{S_SPIN}, 1
    s_cmp_ge_u32 s{S_SPIN}, {SPIN_MAX}
    s_cbranch_scc1 L_{name}_done
    s_waitcnt vmcnt(0)
    v_cmp_ne_u32 vcc, 1, v{vdst}
    s_cbranch_vccnz L_{name}""")
    tr.extend(loop + loop)
    tr.extend(P.add(f"L_{name}_done:"))


LX = lambda p: 8 + p
LW = lambda p: 14 + p
LK = lambda p: 18 + p
LV = lambda p: 22 + p
LWO = lambda p: 24 + p
LOB, LFLAG, LSTAMP, LPOLL = 28, 29, 30, 31
LDSW = lambda h: 1 + h
LTQ, LTO, LTB = 32, 33, 34
LPOOL = 36


def late_setup(A):
    A(f"""
    s_lshr_b32 s{S_T0}, s{S_W}, 1
    s_lshl_b32 s{S_T1}, s{S_BP}, 1
    s_add_u32 s{S_T0}, s{S_T0}, s{S_T1}
    s_lshl_b32 s{S_T0}, s{S_T0}, 5
    s_add_u32 s{S_T0}, s{S_T0}, s{S_H}
    s_lshl_b32 s{S_T0}, s{S_T0}, 17
    s_and_b32 s{S_T1}, s{S_W}, 1
    s_lshl_b32 s{S_T1}, s{S_T1}, 12
    s_add_u32 s{S_T0}, s{S_T0}, s{S_T1}
    v_lshl_add_u32 v5, v1, 8, s{S_T0}
    v_xor_b32 v7, v2, v1
    """)
    for p in range(4):
        A(f"v_xor_b32 v3, {4 * p}, v7\nv_lshl_add_u32 v{LK(p)}, v3, 4, v5")
    A(f"""
    v_lshl_add_u32 v{LV(0)}, v6, 4, v5
    v_xor_b32 v7, 8, v6
    v_lshl_add_u32 v{LV(1)}, v7, 4, v5
    s_lshl_b32 s{S_T0}, s{S_HG}, 21
    s_lshl_b32 s{S_T1}, s{S_W}, 15
    s_add_u32 s{S_T0}, s{S_T0}, s{S_T1}
    s_lshl_b32 s{S_T1}, s{S_NU}, 8
    s_add_u32 s{S_T0}, s{S_T0}, s{S_T1}
    v_lshl_add_u32 v5, v1, 11, s{S_T0}
    v_add_u32 v{LTO}, s{S_T0}, v{LTO}
    v_lshl_add_u32 v{LWO(0)}, v6, 4, v5
    v_lshl_add_u32 v7, v7, 4, v5
    v_add_u32 v{LWO(1)}, {8192 - 1024}, v7
    v_add_u32 v{LWO(2)}, {2 * 8192 - 2048}, v{LWO(0)}
    v_add_u32 v{LWO(3)}, {3 * 8192 - 3072}, v7
    s_mul_i32 s{S_T0}, s{S_GRP}, 393216
    s_add_u32 s{S_T0}, s{S_T0}, s{S_LWB}
    v_lshl_add_u32 v{LOB}, v0, 4, s{S_T0}
    s_lshl_b32 s{S_T1}, s{S_J}, 2
    s_add_u32 s{S_T1}, s{S_T1}, s{S_W}
    s_mul_i32 s{S_T1}, s{S_T1}, 3072
    s_mul_i32 s{S_T0}, s{S_GRP}, 393216
    s_add_u32 s{S_T0}, s{S_T0}, s{S_T1}
    v_min_u32 v{LTB}, 23, v0
    v_lshl_add_u32 v{LTB}, v{LTB}, 7, s{S_T0}
    s_lshl_b32 s{S_T0}, s2, 13
    s_lshl_b32 s{S_T1}, s{S_W}, 7
    s_add_u32 s{S_T0}, s{S_T0}, s{S_T1}
    s_add_u32 s{S_T0}, s{S_T0}, {WS_INBOX}
    v_lshl_add_u32 v{LFLAG}, v4, 2, s{S_T0}
    s_lshl_b32 s{S_J2}, s{S_J}, 1
    s_add_u32 s{S_T0}, s{S_LWW}, {KRING}
    v_lshl_add_u32 v{LDSW(0)}, v0, 4, s{S_T0}
    v_add_u32 v{LDSW(1)}, {VRING - KRING}, v{LDSW(0)}
    """)


def loader(P, cfg):
    tr = []
    A = lambda t: tr.extend(P.add(t))
    A(f"""
    v_lshrrev_b32 v1, 4, v0
    v_and_b32 v2, 15, v0
    v_lshrrev_b32 v3, 3, v0
    v_and_b32 v4, 7, v0
    s_mul_i32 s{S_T0}, s{S_BP}, 192
    s_mul_i32 s{S_T1}, s{S_W}, 48
    s_add_u32 s{S_T0}, s{S_T0}, s{S_T1}
    s_lshl_b32 s{S_T0}, s{S_T0}, 11
    v_lshl_add_u32 v5, v3, 11, s{S_T0}
    v_xor_b32 v6, v4, v1
    v_lshl_add_u32 v{LX(0)}, v6, 4, v5
    v_xor_b32 v6, 4, v6
    v_lshl_add_u32 v7, v6, 4, v5
    """)
    for p in range(1, 6):
        A(f"v_add_u32 v{LX(p)}, {p * 16384 - (p % 4) * 1024}, v{7 if p & 1 else LX(0)}")
    A(f"""
    s_lshl_b32 s{S_T0}, s{S_W}, 17
    s_lshl_b32 s{S_T1}, s{S_H}, 8
    s_add_u32 s{S_T0}, s{S_T0}, s{S_T1}
    v_lshl_add_u32 v5, v1, 13, s{S_T0}
    v_lshlrev_b32 v6, 1, v1
    v_xor_b32 v6, v6, v2
    v_lshl_add_u32 v{LW(0)}, v6, 4, v5
    v_xor_b32 v7, 8, v6
    v_lshl_add_u32 v7, v7, 4, v5
    v_add_u32 v{LW(1)}, {32768 - 1024}, v{LW(0)}
    v_add_u32 v{LW(2)}, {2 * 32768 - 2048}, v7
    v_add_u32 v{LW(3)}, {3 * 32768 - 3072}, v7
    """)
    if cfg.rot == 1:
        A(f"s_add_u32 s{S_ROT}, s{S_BP}, s{S_J}\ns_and_b32 s{S_ROT}, s{S_ROT}, 3\ns_lshl_b32 s{S_ROT}, s{S_ROT}, 2")
    elif cfg.rot == 2:
        A(f"s_add_u32 s{S_ROT}, s{S_BP}, s{S_J}\ns_and_b32 s{S_ROT}, s{S_ROT}, 1\ns_lshl_b32 s{S_ROT}, s{S_ROT}, 3")
    elif cfg.rot == 3:
        A(f"s_lshl_b32 s{S_ROT}, s{S_HG}, 2")
    elif cfg.rot == 4:
        A(f"s_lshl_b32 s{S_ROT}, s{S_BP}, 2")
    elif cfg.rot == 5:
        A(f"s_lshl_b32 s{S_ROT}, s{S_J}, 1")
    elif cfg.rot == 6:
        A(f"s_and_b32 s{S_ROT}, s{S_J}, 3\ns_lshl_b32 s{S_ROT}, s{S_ROT}, 2")
    else:
        A(f"s_mov_b32 s{S_ROT}, 0")
    A(f"""
    v_bfe_u32 v7, v0, 1, 4
    v_and_b32 v5, 1, v0
    v_lshlrev_b32 v5, 7, v5
    v_lshl_add_u32 v{LTO}, v7, 11, v5
    v_lshl_add_u32 v{LTQ}, v7, 13, v5
    v_add_u32 v{LTQ}, s{S_T0}, v{LTQ}
    """)
    A("s_waitcnt lgkmcnt(0)")
    A(make_srd(((sWQ, 10, 8 << 20), (sX, 4, 768 * 2048))))
    q0 = []
    if cfg.stamps:
        A(f"v_mov_b32 v{LSTAMP}, 0")
        A(loader_stamp(0))
    if cfg.afirst:
        A(f"s_bitcmp1_b32 s{S_BP}, 0\ns_cbranch_scc1 L_bstart")
        for n in range(4):
            A(f"""s_add_u32 s{S_T1}, s{S_ROT}, {n}
            s_lshl_b32 s{S_T1}, s{S_T1}, 19
            buffer_load_dword v{LPOLL}, v{LTQ}, {srd(sWQ)}, s{S_T1} offen""")
        A("s_branch L_started\nL_bstart:")
    if not cfg.stag:
        for n in range(2):
            for text, isload in q_stage(cfg, n):
                A(text)
                if isload:
                    q0.append(n)
    if cfg.afirst:
        A("L_started:")
    A(make_srd(((sK, 6, 32 << 20), (sV, 8, 32 << 20), (sWO, 12, 8 << 20), (sWS, 18, 256 << 20))))
    A(late_ids(cfg))
    late_setup(A)
    if cfg.pre1:
        A(f"s_bitcmp1_b32 s{S_BP}, 0\ns_cbranch_scc1 L_late")
        t0 = loader_role(P, cfg, list(tr), ["t"] * 4 if cfg.afirst else q0, None, cfg.pre, "a")
        return [t0, loader_role(P, cfg, list(tr) + P.add("L_late:"), q0, None, cfg.pre1, "b")]
    if not cfg.stag:
        return [loader_role(P, cfg, tr, q0, None, cfg.pre)]
    A(f"s_cmp_ge_u32 s{S_BP}, 2\ns_cbranch_scc1 L_late")
    t0 = loader_role(P, cfg, list(tr), q0, 0)
    return [t0, loader_role(P, cfg, list(tr) + P.add("L_late:"), q0, 1)]


def loader_stamp(n):
    return (f"s_memrealtime s[{S_ST}:{S_ST+1}]\ns_memtime s[{S_ST+2}:{S_ST+3}]\ns_cmp_eq_u32 s{S_W}, 1\ns_waitcnt lgkmcnt(0)\n"
            f"s_cselect_b32 s{S_ST+4}, s{S_ST+2}, s{S_ST}\nv_writelane_b32 v{LSTAMP}, s{S_ST+4}, {n}")


def q_stage(cfg, n):
    dma = lambda vreg, sr, so, imm, pol: (f"buffer_load_dwordx4 v{vreg}, {srd(sr)}, s{so} offen offset:{imm} {pol} lds", True)
    first = cfg.promote & 1 and n < 4
    o = [(f"""s_add_u32 s{S_T0}, s{S_ROT}, {n}
    s_add_u32 m0, s{S_LWW}, {WRING + (n % 4) * WSLOT}
    s_and_b32 s{S_T0}, s{S_T0}, 15
    s_lshl_b32 s{S_T1}, s{S_T0}, 19""", False)]
    o += [dma(LW(p), sWQ, S_T1, p * 1024, "nt" if first else cfg.pol_wq) for p in range(4)]
    if first:
        o.append((f"buffer_load_dword v{LPOLL}, v{LTQ}, {srd(sWQ)}, s{S_T1} offen", True))
    o.append((f"s_add_u32 m0, s{S_LWB}, {BRING + (n % 4) * BSLOT}\ns_lshl_b32 s{S_T0}, s{S_T0}, 7", False))
    o += [dma(LX(p), sX, S_T0, p * 1024, cfg.pol_x) for p in range(4)]
    o.append((f"s_add_u32 m0, s{S_LWB}, {BRING + (n % 4) * BSLOT + 4096}", False))
    o += [dma(LX(p), sX, S_T0, (p - 4) * 1024, cfg.pol_x) for p in range(4, 6)]
    return o


def loader_role(P, cfg, tr, q0, role, pre="", sfx=""):
    A = lambda t: tr.extend(P.add(t))
    sfx += "" if role is None else str(role)
    q = list(q0)

    def throttle(win):
        win = win or 56
        if win and len(q) >= win:
            A(f"s_waitcnt vmcnt({win - 1})")
            del q[:len(q) - (win - 1)]

    def dma(vreg, s, soff, imm, pol, tag, win=0):
        throttle(win)
        A(f"buffer_load_dwordx4 v{vreg}, {srd(s)}, {soff} offen offset:{imm} {pol} lds")
        q.append(tag)

    def wait(tag):
        if tag in q:
            idx = max(k for k, x in enumerate(q) if x == tag)
            A(f"s_waitcnt vmcnt({len(q) - 1 - idx})")
            del q[:idx + 1]

    def issue_q(n):
        for text, isload in q_stage(cfg, n):
            if isload:
                throttle(0)
                q.append(n)
            A(text)

    kv = []
    for e in range(17):
        if e <= 15:
            kv += [(16 + e, 0, e, p) for p in range(4)]
        if e >= 1:
            kv += [(16 + e, 1, e - 1, p) for p in range(4)]
    pool = list(range(LPOOL, 256, 4))
    parked = []
    state = dict(next=0, m0=None, soff=None, lds=False)

    def issue_kv(upto, k, win):
        state["m0"] = state["soff"] = None
        while state["next"] < upto:
            stage, isv, tile, p = kv[state["next"]]
            state["next"] += 1
            vo, sr = (LV(p & 1), sV) if isv else (LK(p), sK)
            if stage <= k + 2 and state["m0"] != (stage, isv):
                A(f"s_add_u32 m0, s{S_LWW}, {(VRING if isv else KRING) + (tile % 3) * ASLOT}")
                state["m0"] = (stage, isv)
            if state["soff"] != tile:
                A(f"s_mov_b32 s{S_T0}, {tile * 8192}")
                state["soff"] = tile
            if stage <= k + 2:
                dma(vo, sr, f"s{S_T0}", p * 1024, cfg.pol_kv, stage, win)
            else:
                r = pool.pop(0)
                throttle(win)
                A(f"buffer_load_dwordx4 {v4(r)}, v{vo}, {srd(sr)}, s{S_T0} offen offset:{p * 1024} {cfg.pol_kv}")
                q.append(("r", r))
                parked.append((stage, isv, tile, p, r))

    def unpark(k):
        while parked and parked[0][0] <= k + 2:
            stage, isv, tile, p, r = parked.pop(0)
            wait(("r", r))
            A(f"ds_write_b128 v{LDSW(isv)}, {v4(r)} offset:{(tile % 3) * ASLOT + p * 1024}")
            pool.append(r)
            state["lds"] = True

    def o_index(m):
        if cfg.par:
            if m < 8:
                return f"s_add_u32 s{S_T0}, s{S_J2}, {4 * (m >> 1) + (m & 1)}"
            if cfg.par == 1:
                return f"s_add_u32 s{S_T0}, s{S_J2}, {4 * ((m - 8) >> 1) + (m & 1) + 2}"
            return f"s_lshl_b32 s{S_T0}, s{S_NU}, 1\ns_add_u32 s{S_T0}, s{S_T0}, {4 * ((m - 8) >> 1) + (m & 1) + 2}"
        if m < 2 or not cfg.oord:
            return f"s_add_u32 s{S_T0}, s{S_J2}, {m}"
        return f"""s_cmp_gt_u32 s{S_T3}, {(m - 2) // 2}
        s_cselect_b32 s{S_T0}, {m - 2}, {m}
        s_add_u32 s{S_T0}, s{S_T0}, s{S_T2}"""

    def issue_ow(m, tag, win=0):
        A(f"""{o_index(m)}
        s_add_u32 m0, s{S_LWW}, {WRING + (m % 4) * WSLOT}
        s_and_b32 s{S_T0}, s{S_T0}, 15
        s_lshl_b32 s{S_T1}, s{S_T0}, 17""")
        first = cfg.promote & 2 and m < 4
        for p in range(4):
            dma(LWO(p), sWO, f"s{S_T1}", p * 1024, "nt" if first else cfg.pol_wo, tag, 0 if first else win)
        if first:
            A(f"buffer_load_dword v{LPOLL}, v{LTO}, {srd(sWO)}, s{S_T1} offen")
            q.append("t")

    def touch_w(b):
        A(f"""s_lshl_b32 s{S_T0}, s{S_BP}, 17
        s_add_u32 s{S_T0}, s{S_T0}, {b << 19}
        buffer_load_dword v{LPOLL}, v{LTO}, {srd(sWO)}, s{S_T0} offen""")
        q.append("t")

    def touch_b(b):
        A(f"s_mov_b32 s{S_T0}, {b * 98304}\nbuffer_load_dword v{LPOLL}, v{LTB}, {srd(sWS)}, s{S_T0} offen sc1")
        q.append("t")

    coop = [int(x) for x in str(cfg.coop).split(".")] if cfg.coop else []
    spre = [int(x) for x in str(cfg.spre).split(".")] if cfg.spre else []
    sdone = [0]

    def scalar_pre():
        for _ in range(spre.pop(0) if spre else 0):
            n, r = divmod(sdone[0], 32)
            if n > 3:
                break
            if r == 0:
                A(f"""s_add_u32 s{S_T0}, s{S_NU}, {2 * n + 1}
                s_and_b32 s{S_T0}, s{S_T0}, 7
                s_lshl_b32 s{S_T0}, s{S_T0}, 18
                s_add_u32 s{S_T0}, s{S_T0}, s{S_DW}
                s_add_u32 s{S_SB + 2 * (n & 1)}, s12, s{S_T0}
                s_addc_u32 s{S_SB + 2 * (n & 1) + 1}, s13, 0""")
            A(f"s_load_dword s{S_SB + 4}, s[{S_SB + 2 * (n & 1)}:{S_SB + 2 * (n & 1) + 1}], {(r >> 2) * 2048 + (r & 3) * 64}")
            sdone[0] += 1

    def coop_after(m):
        for b, mm in enumerate(coop):
            if mm == m:
                touch_b(b + 1)
                touch_w(b + 1)

    def issue_ob(m, tag):
        A(f"""{o_index(m)}
        s_add_u32 m0, s{S_LWB}, {BRING + ((m - 2) % 4) * BSLOT}
        s_and_b32 s{S_T0}, s{S_T0}, 15
        s_mul_i32 s{S_T0}, s{S_T0}, 24576""")
        for p in range(4):
            dma(LOB, sWS, f"s{S_T0}", p * 1024, cfg.pol_ob, tag)
        A(f"s_add_u32 m0, s{S_LWB}, {BRING + ((m - 2) % 4) * BSLOT + 4096}\ns_add_u32 s{S_T1}, s{S_T0}, 4096")
        for p in range(2):
            dma(LOB, sWS, f"s{S_T1}", p * 1024, cfg.pol_ob, tag)

    nst = [1]

    def stamp():
        if cfg.stamps:
            A(loader_stamp(nst[0]))
            nst[0] += 1

    def barrier():
        if state["lds"]:
            A("s_waitcnt lgkmcnt(0)")
            state["lds"] = False
        A("s_barrier")
        stamp()

    end = lambda n: 0 if n < 16 else min(128, 4 + 8 * (n - 16))
    pre = [int(x) for x in str(pre).split(".")] if pre else []
    pre = [0] * (17 - len(pre)) + pre
    wo_at = [int(x) for x in str(cfg.wo_at).split(".")]
    wtag = lambda m: 33 if m < 2 else 33 + m
    if role == 1:
        A(f"""
        s_lshr_b32 s{S_T0}, s2, 3
        s_and_b32 s{S_T0}, s{S_T0}, 15
        s_lshl_b32 s{S_T0}, s{S_T0}, 2
        s_add_u32 s{S_T0}, s{S_T0}, s{S_W}
        s_lshl_b32 s{S_T1}, s{S_T0}, 13
        s_lshl_b32 s{S_T2}, s{S_HG}, 11
        s_add_u32 s{S_T1}, s{S_T1}, s{S_T2}
        v_lshrrev_b32 v3, 4, v0
        v_and_b32 v4, 15, v0
        v_lshl_add_u32 v5, v3, 19, s{S_T1}
        v_lshl_add_u32 v5, v4, 7, v5
        s_mul_i32 s{S_T1}, s{S_T0}, {6 * 2048}
        v_lshrrev_b32 v3, 3, v0
        v_min_u32 v3, 5, v3
        v_and_b32 v4, 7, v0
        v_lshl_add_u32 v6, v3, 11, s{S_T1}
        v_lshl_add_u32 v6, v4, 7, v6
        """)
        for qt in range(4):
            if qt % 2 == 0:
                A(f"buffer_load_dword v{LPOLL}, v6, {srd(sX)}, 0 offen offset:{(qt // 2) * 1024}")
                q.append("t")
            A(f"s_mov_b32 s{S_T0}, {qt << 21}\nbuffer_load_dword v{LPOLL}, v5, {srd(sWQ)}, s{S_T0} offen")
            q.append("t")
        A(f"s_mov_b32 s{S_T0}, {384 * 2048}")
        for h in range(2):
            A(f"buffer_load_dword v{LPOLL}, v6, {srd(sX)}, s{S_T0} offen offset:{h * 1024}")
            q.append("t")
        pre[0] = cfg.s1pre
        issue_kv(pre[0], -1, cfg.s1win)
    if cfg.afirst and sfx == "a":
        pre[0] = cfg.afirst
        issue_kv(pre[0], -1, cfg.bwin or 8)
    if cfg.stag or (cfg.afirst and sfx == "a"):
        issue_q(0)
        issue_q(1)
    base = sum(pre)
    issue_kv(pre[0], -1, 0)
    nq = 2
    for k in range(0, 33):
        wait(k)
        barrier()
        unpark(k)
        while nq <= min(15, k + 1 + cfg.qd):
            issue_q(nq)
            nq += 1
        w = ((cfg.winb or cfg.win) if sfx == 'b' else cfg.win) if role is None else (cfg.s1win if role else (cfg.s0win if k < cfg.s0sw else cfg.s0late))
        if cfg.winlate and k >= cfg.late:
            w = cfg.winlate
        win = 0 if k < 16 else (max(w, cfg.win16) if k == 16 else w)
        lead = min(128, end(k + 1) + (win or 8)) if k >= 14 else 0
        if k <= 15:
            ramp = sum(pre[:k + 2]) + (4 * max(0, k - 13) if role == 1 else 0)
        else:
            b0 = base + cfg.win16 + (8 if role == 1 else 0)
            last = (cfg.lastb or cfg.last) if sfx == 'b' else cfg.last
            ramp = min(128, b0 + ((128 - b0) * (k - 16)) // (last - 16))
        issue_kv(max(lead, ramp if base else 0), k, win or cfg.bwin)
        if k == 20 and cfg.oord:
            A(f"""s_add_u32 s{S_T2}, s{S_BP}, s{S_J}
            s_and_b32 s{S_T2}, s{S_T2}, {cfg.oord - 1}
            s_mul_i32 s{S_T2}, s{S_T2}, {8 // cfg.oord}
            s_sub_u32 s{S_T3}, s{S_J}, s{S_T2}
            s_and_b32 s{S_T3}, s{S_T3}, 7
            s_lshl_b32 s{S_T2}, s{S_T2}, 1""")
        for h, tk in enumerate(str(cfg.ptouch).split(".") if cfg.ptouch else []):
            if int(tk) == k:
                throttle(win)
                A(f"""s_mul_i32 s{S_T0}, s{S_J}, 49152
                s_add_u32 s{S_T0}, s{S_T0}, {h * 24576}
                v_mul_u32_u24 v3, 0x70, v0
                v_add_u32 v3, v3, v{LOB}
                s_mov_b32 exec_hi, 0xffff
                buffer_load_dword v{LPOLL}, v3, {srd(sWS)}, s{S_T0} offen
                s_mov_b64 exec, -1""")
                q.append("t")
        if k == 26:
            A(f"buffer_load_dword v{LPOLL}, v{LFLAG}, {srd(sWS)}, 0 offen sc1")
            q.append("t")
        for m in range(4):
            if wo_at[m] == k:
                issue_ow(m, wtag(m), win if state["next"] < 128 else (cfg.wwin if k == 32 else 0))
        if coop and k == cfg.coopw0:
            touch_w(0)
    assert state["next"] == 128 and not parked
    if spre:
        A(f"""s_lshl_b32 s{S_DW}, s{S_HG}, 21
        s_lshl_b32 s{S_T0}, s{S_BP}, 16
        s_add_u32 s{S_DW}, s{S_DW}, s{S_T0}
        s_lshl_b32 s{S_T0}, s{S_W}, 14
        s_add_u32 s{S_DW}, s{S_DW}, s{S_T0}
        s_lshl_b32 s{S_T0}, s{S_NU}, 8
        s_add_u32 s{S_DW}, s{S_DW}, s{S_T0}""")
    wait(33)
    barrier()
    def finish():
        if cfg.stamps:
            A(f"""s_lshl_b32 s{S_T0}, s2, 3
            s_add_u32 s{S_T0}, s{S_T0}, s{S_WAVE}
            s_lshl_b32 s{S_T0}, s{S_T0}, 8
            s_add_u32 s{S_T0}, s{S_T0}, {WS_STAMP}
            v_lshl_add_u32 v1, v0, 2, s{S_T0}
            buffer_store_dword v{LSTAMP}, v1, {srd(sWS)}, 0 offen""")
        A("s_endpgm")
        return tr

    def need_head(m):
        A(f"""{o_index(m)}
        s_bfe_u32 s{S_T1}, s{S_T0}, 0x30001
        s_mov_b32 s{S_SPIN}, 0""")
        n = f"L_need{m}{sfx}"
        loop = P.add(f"""{n}:
        s_bitcmp1_b32 s{S_MASK}, s{S_T1}
        s_cbranch_scc1 {n}_done
        buffer_load_dword v{LPOLL}, v{LFLAG}, {srd(sWS)}, 0 offen sc1
        s_add_u32 s{S_SPIN}, s{S_SPIN}, 1
        s_waitcnt vmcnt(0)
        v_cmp_eq_u32 vcc, 1, v{LPOLL}
        s_mov_b32 s{S_MASK}, vcc_lo
        s_cmp_lt_u32 s{S_SPIN}, {SPIN_MAX}
        s_cbranch_scc1 {n}""")
        tr.extend(loop + loop)
        A(f"{n}_done:")

    if cfg.bdirect:
        for m in (2, 3):
            if wo_at[m] == 33:
                issue_ow(m, 33 + m)
        A(f"s_mov_b32 s{S_MASK}, 0")
        need_head(2)
        A("s_barrier")
        stamp()
        for m in (2, 3):
            if wo_at[m] == 34:
                issue_ow(m, 33 + m)
        nm = 4
        for k in range(35, 49):
            if (k - 31) % 2 == 0 and k - 31 <= 14:
                need_head(k - 31)
            wait(k)
            barrier()
            while nm <= min(15, k + 1 + cfg.od - 33):
                issue_ow(nm, nm + 33)
                nm += 1
        return finish()
    if wo_at[2] == 33:
        issue_ow(2, 35)
    if cfg.prog:
        A(f"s_mov_b32 s{S_MASK}, 0")
        need_head(2)
    else:
        poll_loop(P, tr, "poll1" + sfx, LPOLL, LFLAG)
        del q[:]
        q.append("poll")
    stamp()
    if coop:
        touch_b(0)
    issue_ob(2, 35)
    if wo_at[2] == 34:
        issue_ow(2, 35)
    coop_after(2)
    if wo_at[3] == 33:
        issue_ow(3, 36)
    issue_ob(3, 36)
    if wo_at[3] == 34:
        issue_ow(3, 36)
    coop_after(3)
    scalar_pre()
    nm = 4
    for k in range(35, 49):
        wait(k)
        barrier()
        while nm <= min(15, k + 1 + cfg.od - 33):
            issue_ow(nm, nm + 33)
            if cfg.prog and nm % 2 == 0:
                need_head(nm)
            issue_ob(nm, nm + 33)
            coop_after(nm)
            nm += 1
        scalar_pre()
    return finish()


def order(n, snake):
    return [(T, t) for T in range(n) for t in (reversed(T3) if snake and T & 1 else T3)]


def gemm_reads(b, s, kind, with_b=True):
    r = []
    if with_b:
        for t in T3:
            if kind == "q":
                r.append(f"ds_read_b128 {v4(FB(b, t))}, v{AB(s)} offset:{t * 2048}")
            else:
                r.append(f"ds_read_b128 {v4(FB(b, t))}, v{AB(0)} offset:{s * 3072 + t * 1024}")
    for T in range(8):
        for u in range(2):
            off = s * 8192 + u * (1024 if kind == "q" else 4096)
            r.append(f"ds_read_b64_tr_b16 {v2(FA(b, T) + 2 * u)}, v{AW(T)} offset:{off}")
    return r


def gemm_mfma(cfg, b, bsrc=None, zero=False):
    return [f"{MFMA} {v4(ACC(T, t))}, {v4(FA(b, T))}, {v4(bsrc(t) if bsrc else FB(b, t))}, {'0' if zero else v4(ACC(T, t))}"
            for T, t in order(8, cfg.snake)]


def gemm_loop(P, tr, cfg, kind, label, iters):
    sal = [f"s_add_u32 s{S_SLOT}, s{S_SLOT}, 1", f"s_and_b32 s{S_SLOT}, s{S_SLOT}, 3", f"s_cselect_b32 s{S_DW}, {WSLOT}, s{S_T2}"]
    if kind == "o":
        sal.append(f"s_cmp_lg_u32 s{S_SLOT}, 2")
    sal.append(f"s_cselect_b32 s{S_DB}, {BSLOT}, s{S_T3}")
    val = [f"v_add_u32 v{AB(s)}, s{S_DB}, v{AB(s)}" for s in range(2 if kind == "q" else 1)]
    val += [f"v_add_u32 v{AW(T)}, s{S_DW}, v{AW(T)}" for T in range(8)]
    nb = len(val) - 8
    hook = [(18, f"s_cmp_eq_u32 s{S_CNT}, s{S_FLAG}"), (19, "s_cbranch_scc1 L_count"), (19, "L_counted:")] if kind == "q" else []
    if kind == "o" and cfg.wb:
        hook = [(18, f"s_cmp_eq_u32 s{S_CNT}, s{S_FLAG}"), (19, "s_cbranch_scc1 L_wb"), (19, "L_wbdone:")]
    h0 = weave(gemm_mfma(cfg, 0), spread(gemm_reads(1, 1, kind), 0, 18) + spread(sal, 0, 4) + spread(val[:nb + 6], 12, 19)
               + spread(val[nb + 6:], 20, 21) + [(22, "s_waitcnt lgkmcnt(0)"), (22, "s_barrier")])
    h1 = weave(gemm_mfma(cfg, 1), spread(gemm_reads(0, 0, kind), -1, 17)
               + hook + [(20, f"s_sub_u32 s{S_CNT}, s{S_CNT}, 1"), (20, f"s_cmp_lg_u32 s{S_CNT}, 0")])
    tr.extend(P.add(f"s_mov_b32 s{S_CNT}, {iters}\ns_waitcnt lgkmcnt(0)"))
    if kind == "q":
        tr.extend(P.add(".p2align 3"))
        body = P.add([label + ":"] + h0 + h1 + ["s_waitcnt lgkmcnt(0)", f"s_cbranch_scc1 {label}"])
        tr.extend(body + body)
        return
    h0 = weave(gemm_mfma(cfg, 0), spread(gemm_reads(1, 1, kind), 0, 18) + spread(sal, 0, 4) + spread(val[:nb + 6], 11, 18)
               + spread(val[nb + 6:], 19, 19) + [(6, f"s_sub_u32 s{S_CNT}, s{S_CNT}, 1"), (7, f"s_cmp_eq_u32 s{S_CNT}, 0"),
                                                  (20, f"s_cbranch_scc1 {label}_out"), (22, "s_waitcnt lgkmcnt(0)"), (22, "s_barrier")])
    h1 = weave(gemm_mfma(cfg, 1), spread(gemm_reads(0, 0, kind), -1, 17) + hook)
    cut = h0.index(f"s_cbranch_scc1 {label}_out") + 1
    tr.extend(P.add(".p2align 3"))
    first = P.add([label + ":"] + h0[:cut])
    rest = P.add(h0[cut:] + h1 + ["s_waitcnt lgkmcnt(0)", f"s_branch {label}"])
    tr.extend(first + rest + first + P.add([label + "_out:"] + gemm_mfma(cfg, 0)[21:]))


def k_reads(tile):
    return [f"ds_read_b128 {v4(FR(kt * 4 + s))}, v{AK(s)} offset:{(tile % 3) * ASLOT + kt * 4096}" for kt in range(2) for s in range(4)]


def v_reads(T, tile):
    return [f"ds_read_b64_tr_b16 {v2(FR(T) + 2 * u)}, v{AV(T)} offset:{(tile % 3) * ASLOT + u * 4096}" for u in range(2)]


def qk_mfma(first=False):
    c0 = lambda t: "0" if first else v4(NM(t))
    return [f"{MFMA} {v4(SS(kt, t))}, {v4(FR(kt * 4 + s))}, {v4(QF(s, t))}, {c0(t) if s == 0 else v4(SS(kt, t))}"
            for kt in range(2) for s in range(4) for t in T3]


def pv_mfma(cfg):
    return [f"{MFMA} {v4(ACC(T, t))}, {v4(FR(T))}, {v4(PP(t))}, {v4(ACC(T, t))}" for T, t in order(8, cfg.snake)]


def xlane(op, regs, tmps):
    out = []
    for sw in ("v_permlane32_swap_b32", "v_permlane16_swap_b32"):
        out += [f"v_mov_b32 v{x}, v{r}" for r, x in zip(regs, tmps)]
        out += [f"{sw} v{r}, v{x}" for r, x in zip(regs, tmps)]
        out += [f"{op} v{r}, v{r}, v{x}" for r, x in zip(regs, tmps)]
    return out


def row_max():
    o = [f"v_max3_f32 v{VD(t)}, v{SS(0, t)}, v{SS(0, t) + 1}, v{SS(0, t) + 2}" for t in T3]
    o += [f"v_max3_f32 v{VD(t)}, v{SS(0, t) + 3}, v{SS(1, t)}, v{VD(t)}" for t in T3]
    o += [f"v_max3_f32 v{VD(t)}, v{SS(1, t) + 1}, v{SS(1, t) + 2}, v{VD(t)}" for t in T3]
    o += [f"v_max_f32 v{VD(t)}, v{SS(1, t) + 3}, v{VD(t)}" for t in T3]
    return o + xlane("v_max_f32", [VD(t) for t in T3], [VT(t) for t in T3])


def shift_scores():
    return [f"v_sub_f32 v{SS(kt, t) + r}, v{SS(kt, t) + r}, v{VD(t)}" for kt in range(2) for t in T3 for r in range(4)]


def guard_max(kt):
    r = [SS(kt, t) + k for t in T3 for k in range(4)]
    if kt == 0:
        o = [f"v_max3_f32 v{VX}, v{r[0]}, v{r[1]}, v{r[2]}"]
        o += [f"v_max3_f32 v{VX}, v{r[k]}, v{r[k + 1]}, v{VX}" for k in range(3, 11, 2)]
        return o + [f"v_max_f32 v{VX}, v{r[11]}, v{VX}"]
    return [f"v_max3_f32 v{VX}, v{r[k]}, v{r[k + 1]}, v{VX}" for k in range(0, 12, 2)]


def p_cvt(kt, h=None):
    return [f"v_cvt_pk_bf16_f32 v{PP(t) + 2 * kt + hh}, v{SS(kt, t) + 2 * hh}, v{SS(kt, t) + 2 * hh + 1}"
            for hh in ((0, 1) if h is None else (h,)) for t in T3]


def exp_sum(cfg, kt, h):
    o = [f"v_exp_f32 v{SS(kt, t) + 2 * h + r}, v{SS(kt, t) + 2 * h + r}" for t in T3 for r in range(2)]
    if cfg.pk:
        o += [f"v_pk_add_f32 {v2(VL(t))}, {v2(VL(t))}, {v2(SS(kt, t) + 2 * h)}" for t in T3]
    else:
        o += [f"v_add_f32 v{VL(t) + r}, v{VL(t) + r}, v{SS(kt, t) + 2 * h + r}" for t in T3 for r in range(2)]
    return o


def exps(kt, h):
    return [f"v_exp_f32 v{SS(kt, t) + 2 * h + r}, v{SS(kt, t) + 2 * h + r}" for t in T3 for r in range(2)]


def pk_sum(kt, h):
    return [f"v_pk_add_f32 {v2(VL(t))}, {v2(VL(t))}, {v2(SS(kt, t) + 2 * h)}" for t in T3]


def rescale(by):
    return [f"v_mul_f32 v{ACC(T, t) + r}, v{ACC(T, t) + r}, v{by(t)}" for T in range(8) for t in T3 for r in range(4)]


def acc_to_frag(s, QF=QF):
    return [f"v_cvt_pk_bf16_f32 v{QF(s, t) + 2 * u + h}, v{ACC(2 * s + u, t) + 2 * h}, v{ACC(2 * s + u, t) + 2 * h + 1}"
            for u in range(2) for t in T3 for h in range(2)]


def compute(P, cfg):
    tr = []
    A = lambda t: tr.extend(P.add(t))
    nst = [0]

    def stamp():
        if cfg.stamps:
            A(f"s_memrealtime s[{S_ST + 2 * nst[0]}:{S_ST + 2 * nst[0] + 1}]\ns_waitcnt lgkmcnt(0)")
            nst[0] += 1

    A(f"L_compute:\ns_getpc_b64 s[{S_PC}:{S_PC + 1}]\nL_text:\n{late_ids(cfg)}\ns_waitcnt lgkmcnt(0)")
    A(make_srd(((sOUT, 14, 768 * 4096), (sWS, 18, 256 << 20), (sDBG, 16, 256))))
    if cfg.prio:
        A(f"s_setprio {cfg.prio}")
    A(f"""
    s_getreg_b32 s{S_XCC}, hwreg(HW_REG_XCC_ID, 0, 3)
    s_cmp_lg_u32 s{S_W}, 0
    s_cbranch_scc1 L_noclear
    s_lshl_b32 s{S_T0}, s2, 13
    s_add_u32 s{S_T0}, s{S_T0}, {WS_INBOX}
    v_lshrrev_b32 v1, 3, v0
    v_and_b32 v2, 7, v0
    v_lshlrev_b32 v2, 2, v2
    v_lshl_add_u32 v2, v1, 7, v2
    v_min_u32 v1, 47, v0
    v_lshlrev_b32 v1, 7, v1
    v_cmp_gt_u32 vcc, 32, v0
    v_cndmask_b32 v1, v1, v2, vcc
    v_mov_b32 v2, 0
    buffer_store_dword v2, v1, {srd(sWS)}, s{S_T0} offen sc1
    {code_touch(0, 110, 111) if cfg.ctouch else ""}
    L_noclear:
    s_lshl_b32 s{S_XCC}, s{S_XCC}, 2
    v_and_b32 v{V_TMP}, 3, v0
    v_xor_b32 v{V_TMP}, s{S_GRP}, v{V_TMP}
    v_lshlrev_b32 v{V_TMP}, 2, v{V_TMP}
    v_lshrrev_b32 v100, 4, v0
    v_and_b32 v101, 15, v0
    v_bfe_u32 v102, v0, 2, 2
    v_bfe_u32 v103, v0, 1, 1
    v_and_b32 v104, 1, v0
    v_lshlrev_b32 v109, 4, v0
    """)
    A(f"""
    v_lshl_add_u32 v105, v100, 3, v102
    v_lshlrev_b32 v105, 8, v105
    v_lshl_add_u32 v105, v104, 3, v105
    v_lshl_add_u32 v105, v103, 4, v105
    v_and_b32 v106, 1, v100
    v_lshl_add_u32 v106, v106, 2, v102
    v_lshl_add_u32 v{AW(0)}, v106, 5, v105
    """)
    for T in range(1, 8):
        A(f"v_xor_b32 v{AW(T)}, {T << 5}, v{AW(0)}")
    A(f"""
    s_add_u32 s{S_T0}, s{S_LWB}, {BRING}
    v_lshl_add_u32 v105, v101, 7, s{S_T0}
    v_lshrrev_b32 v107, 1, v101
    v_xor_b32 v107, v107, v100
    v_lshl_add_u32 v{AB(0)}, v107, 4, v105
    v_xor_b32 v{AB(1)}, 64, v{AB(0)}
    """)
    A(f"""
    s_lshr_b32 s{S_T0}, s{S_W}, 1
    s_lshl_b32 s{S_T0}, s{S_T0}, 13
    s_add_u32 s{S_T0}, s{S_T0}, {KRING}
    v_lshl_add_u32 v105, v101, 8, s{S_T0}
    v_lshrrev_b32 v107, 1, v100
    v_and_b32 v108, 1, v100
    v_lshl_add_u32 v107, v108, 1, v107
    v_xor_b32 v107, v107, v101
    v_lshl_add_u32 v{AK(0)}, v107, 4, v105
    """)
    for s in range(1, 4):
        A(f"v_xor_b32 v{AK(s)}, {s << 6}, v{AK(0)}")
    A(f"""
    s_add_u32 s{S_T0}, s{S_T0}, {VRING - KRING}
    v_lshl_add_u32 v105, v100, 2, v102
    v_lshl_add_u32 v105, v105, 8, s{S_T0}
    v_lshl_add_u32 v105, v104, 3, v105
    v_lshl_add_u32 v105, v103, 4, v105
    v_lshl_add_u32 v{AV(0)}, v106, 5, v105
    """)
    for T in range(1, 8):
        A(f"v_xor_b32 v{AV(T)}, {T << 5}, v{AV(0)}")
    A(f"s_mov_b32 s{S_C}, {f32(1.4426950408889634 / 128 ** 0.5)}\ns_mov_b32 s{S_C + 1}, s{S_C}")
    A(f"s_mov_b32 s{S_T2}, {-3 * WSLOT}\ns_mov_b32 s{S_T3}, {-3 * BSLOT}\ns_mov_b32 s{S_SLOT}, 0")
    A([f"v_pk_mov_b32 {v2(r)}, 0, 0" for r in range(0, 96, 2)])
    if cfg.tag or cfg.oclear:
        A([f"v_mov_b32 v{r}, -1" for r in range(112, 116)])
    if cfg.tag:
        A(f"""s_mul_i32 s{S_T0}, s{S_W}, 9216
        s_mul_i32 s{S_T1}, s2, 36864
        s_add_u32 s{S_T0}, s{S_T0}, s{S_T1}
        s_add_u32 s{S_T0}, s{S_T0}, {WS_X}""")
        for k in range(9):
            if k and k % 4 == 0:
                A(f"s_add_u32 s{S_T0}, s{S_T0}, 4096")
            A(f"buffer_store_dwordx4 v[112:115], v109, {srd(sWS)}, s{S_T0} offen offset:{(k % 4) * 1024} sc1")
    if cfg.oclear:
        A(f"""s_mul_i32 s{S_T0}, s{S_GRP}, 393216
        s_mul_i32 s{S_T1}, s{S_J}, 49152
        s_add_u32 s{S_T0}, s{S_T0}, s{S_T1}
        s_mul_i32 s{S_T1}, s{S_W}, 12288
        s_add_u32 s{S_T0}, s{S_T0}, s{S_T1}""")
        for k in range(12):
            if k and k % 4 == 0:
                A(f"s_add_u32 s{S_T0}, s{S_T0}, 4096")
            A(f"buffer_store_dwordx4 v[112:115], v109, {srd(sWS)}, s{S_T0} offen offset:{(k % 4) * 1024} sc1")
    count = f"""s_lshl_b32 s{S_T0}, 1, s{S_XCC}
    v_mov_b32 v{V_CHK}, s{S_T0}
    s_mov_b64 exec, 1
    s_waitcnt vmcnt(0)
    buffer_atomic_add v{V_CHK}, v{V_TMP}, {srd(sDBG)}, 0 offen
    s_mov_b64 exec, -1""".split("\n")
    rare = [["L_count:", f"s_cmp_eq_u32 s{S_FLAG}, {cfg.fetch_at}", "s_cbranch_scc1 L_fetch", f"s_mov_b32 s{S_FLAG}, {cfg.fetch_at}",
             "s_waitcnt vmcnt(0)", f"s_cmp_lg_u32 s{S_W}, 0", "s_cbranch_scc1 L_counted"] + count + ["s_branch L_counted",
             "L_fetch:", f"buffer_load_dword v{V_CHK}, v{V_TMP}, {srd(sDBG)}, 0 offen sc1", "s_branch L_counted"]]
    A(f"s_cmp_eq_u32 s{S_W}, 0\ns_cselect_b32 s{S_FLAG}, {cfg.count_at}, {cfg.count_at + 1}")
    assert not (cfg.stag and (cfg.tag or cfg.oclear))
    if cfg.stag:
        A([f"s_cmp_ge_u32 s{S_BP}, 2", f"s_cselect_b32 s{S_T1}, s{S_FLAG}, 0", f"s_cmp_lg_u32 s{S_T1}, {cfg.count_at}", "s_cbranch_scc1 L_nocount"]
          + count + [f"s_mov_b32 s{S_FLAG}, {cfg.fetch_at}", "L_nocount:"])
    A("s_barrier")
    A(gemm_reads(0, 0, "q"))
    gemm_loop(P, tr, cfg, "q", "L_qloop", 16)
    A(k_reads(0))
    A(f"s_mov_b32 s{S_SPIN}, 0")
    chk = P.add(f"""L_chk:
    s_waitcnt vmcnt(0)
    v_lshrrev_b32 v{VT(0)}, 4, v{V_CHK}
    v_and_b32 v{VT(0)}, 0x0f0f0f0f, v{VT(0)}
    v_and_b32 v{VT(1)}, 0x0f0f0f0f, v{V_CHK}
    v_add_u32 v{VT(0)}, v{VT(0)}, v{VT(1)}
    v_sad_u8 v{VT(0)}, v{VT(0)}, 0, 0
    v_readfirstlane_b32 s{S_T1}, v{V_CHK}
    v_cmp_ne_u32 vcc, 8, v{VT(0)}
    s_cbranch_vccnz L_rechk
    L_chk_done:""")
    tr.extend(chk)
    rare.append(["L_rechk:", f"buffer_load_dword v{V_CHK}, v{V_TMP}, {srd(sDBG)}, 0 offen sc1", f"s_add_u32 s{S_SPIN}, s{S_SPIN}, 1",
                 f"s_cmp_lt_u32 s{S_SPIN}, {cfg.chk_max}", "s_cbranch_scc1 L_chk", "s_waitcnt vmcnt(0)", "s_branch L_chk_done"])
    A([f"v_pk_mul_f32 {v2(r)}, {v2(r)}, s[{S_C}:{S_C + 1}]" for r in range(0, 96, 2)])

    def q_frag(s):
        return acc_to_frag(s) + [f"v_permlane16_swap_b32 v{QF(s, t) + h}, v{QF(s, t) + 2 + h}" for t in T3 for h in range(2)]

    qk0 = qk_mfma(True)
    qk0 = [qk0[kt * 12 + s * 3 + t] for s in range(4) for kt in range(2) for t in T3]
    zero = [f"v_mov_b64 {v2(r)}, 0" for r in range(0, 96, 2)]
    addr = f"""s_lshl_b32 s{S_T0}, 8, s{S_XCC}
    s_cmp_eq_u32 s{S_T0}, s{S_T1}
    s_cselect_b32 s{S_FLAG}, {cfg.local}, 0
    {lane_id(V_TMP)}
    s_mul_i32 s{S_T0}, s{S_GRP}, 393216
    s_mul_i32 s{S_T1}, s{S_J}, 49152
    s_add_u32 s{S_T0}, s{S_T0}, s{S_T1}
    s_add_u32 s{S_T0}, s{S_T0}, s{S_LWB}
    v_lshl_add_u32 v{V_OST}, v{V_TMP}, 4, s{S_T0}
    s_andn2_b32 s{S_T0}, s2, 0x38
    s_lshl_b32 s{S_T0}, s{S_T0}, 13
    s_lshl_b32 s{S_T1}, s{S_J}, 2
    s_add_u32 s{S_T0}, s{S_T0}, s{S_T1}
    s_lshl_b32 s{S_T1}, s{S_W}, 7
    s_add_u32 s{S_T0}, s{S_T0}, s{S_T1}
    s_add_u32 s{S_T0}, s{S_T0}, {WS_INBOX}
    v_lshl_add_u32 v{V_FLG}, v{V_TMP}, 16, s{S_T0}
    v_mov_b32 v{V_CHK}, 1""".split("\n")
    A(q_frag(0))
    A(weave(qk0, spread(addr, 0, 20) + [(6 * s - 6 + k // 3, x) for s in range(1, 4) for k, x in enumerate(q_frag(s))] + spread(zero[:12], 18, 23)))
    A(zero[12:20])
    A(row_max())
    A([f"v_pk_add_f32 {v2(SS(kt, t) + r)}, {v2(SS(kt, t) + r)}, {v2(VD(t) & ~1)} op_sel:[0,{VD(t) & 1}] op_sel_hi:[1,{VD(t) & 1}] neg_lo:[0,1] neg_hi:[0,1]"
       for kt in range(2) for t in T3 for r in (0, 2)])
    A([f"v_sub_f32 v{NM(t) + r}, 0, v{VD(t)}" for t in T3 for r in range(4)])
    A([f"v_mov_b64 {v2(VL(t))}, 0" for t in T3])
    A(exps(0, 0) + exps(0, 1) + exps(1, 0))
    A(zero[20:])
    A("s_barrier")
    A(k_reads(1))

    def iteration(i):
        pre = pk_sum(0, 0) + pk_sum(0, 1) + pk_sum(1, 0) + p_cvt(0) + p_cvt(1, 0)
        vr = [x for T in range(8) for x in v_reads(T, i)]
        vgap = list(range(8, 22)) + [23, 24]
        add11 = [f"v_add_f32 v{VL(t) + r}, v{VL(t) + r}, v{SS(1, t) + 2 + r}" for t in T3 for r in range(2)]
        early = exps(0, 0) + exps(0, 1) + exps(1, 0)
        fill = ([(5, "s_waitcnt lgkmcnt(0)"), (22, "s_waitcnt lgkmcnt(4)"), (35, "s_waitcnt lgkmcnt(0)")]
                + ([(12, f"s_sub_u32 s{S_CNT}, s{S_CNT}, 1"), (40, f"s_cmp_lg_u32 s{S_CNT}, 0")] if i == 2 else [])
                + list(zip(vgap, vr)) + list(zip(range(6), exps(1, 1))) + list(zip((6, 6, 7, 7, 8, 9), add11)) + list(zip((10, 11, 11), p_cvt(1, 1)))
                + list(zip(range(16, 22), guard_max(0))) + list(zip((25, 25, 26, 26, 27, 27), guard_max(1)))
                + [(28, f"v_cmp_lt_f32 vcc, s{S_C}, v{VX}"), (29, f"s_cbranch_vccnz L_up_{i}")] + list(zip(range(30, 48), early)))
        mf = qk_mfma() + pv_mfma(cfg)
        rare.append([f"L_up_{i}:", "s_waitcnt lgkmcnt(0)"] + mf[30:] + row_max() + [f"v_max_f32 v{VD(t)}, 0, v{VD(t)}" for t in T3] + shift_scores()
                    + [f"v_exp_f32 v{VA(t)}, -v{VD(t)}" for t in T3]
                    + [f"v_sub_f32 v{NM(t) + r}, v{NM(t) + r}, v{VD(t)}" for t in T3 for r in range(4)]
                    + [f"v_mul_f32 v{VL(t) + r}, v{VL(t) + r}, v{VA(t)}" for t in T3 for r in range(2)]
                    + rescale(VA) + early + [f"s_cmp_lg_u32 s{S_CNT}, 0", f"s_branch L_back_{i}"])
        return pre + ["s_waitcnt lgkmcnt(6)"] + weave(mf, fill) + [f"L_back_{i}:"]

    A(f"s_mov_b32 s{S_C}, {f32(cfg.thr)}\ns_mov_b32 s{S_CNT}, 5\ns_branch L_aenter\n.p2align 3")
    top = P.add(["L_aloop:", "s_barrier"] + k_reads(1) + ["L_aenter:"])
    body = P.add(iteration(0) + ["s_barrier"] + k_reads(2) + iteration(1) + ["s_barrier"] + k_reads(0) + iteration(2)
                 + ["s_cbranch_scc1 L_aloop"])
    tr.extend(body + top + body)
    A(exps(1, 1) + pk_sum(0, 0) + pk_sum(0, 1) + pk_sum(1, 0) + pk_sum(1, 1))
    A([f"v_add_f32 v{VL(t)}, v{VL(t)}, v{VL(t) + 1}" for t in T3])
    A(xlane("v_add_f32", [VL(t) for t in T3], [VT(t) for t in T3]))
    A([f"v_rcp_f32 v{VL(t)}, v{VL(t)}" for t in T3])
    bc = "op_sel_hi:[1,0]"
    A([f"v_pk_mul_f32 {v2(SS(kt, t) + r)}, {v2(SS(kt, t) + r)}, {v2(VL(t))} {bc}" for kt in range(2) for t in T3 for r in (0, 2)])
    A(p_cvt(0) + p_cvt(1))
    oscale = [f"v_pk_mul_f32 {v2(ACC(T, t) + r)}, {v2(ACC(T, t) + r)}, {v2(VL(t))} {bc}" for T in range(8) for t in T3 for r in (0, 2)]
    A(oscale[:24])
    A("s_barrier")
    A([x for T in range(8) for x in v_reads(T, 15)])
    A(oscale[24:])

    def last_pv(pol):
        def o_out(s):
            return (acc_to_frag(s) + [f"s_mov_b32 s{S_T0}, {(s >> 1) * 24576 + (s & 1) * 3072}"]
                    + [f"buffer_store_dwordx4 {v4(QF(s, t))}, v{V_OST}, {srd(sWS)}, s{S_T0} offen offset:{t * 1024} {pol}" for t in T3])
        fill = []
        for s in range(3):
            o = o_out(s)
            fill += [(6 * s + 12, x) for x in o[12:]] if s < 2 else []
            fill += spread(o[:12], 6 * s + 6, 6 * s + 11)
        return weave(pv_mfma(cfg), fill) + o_out(2)[12:] + o_out(3)

    A([f"s_cmp_eq_u32 s{S_FLAG}, 0", "s_cbranch_scc1 L_far"] + last_pv("") + ["L_near:"])
    rare.append(["L_far:"] + last_pv("sc1") + ["s_branch L_near"])
    stamp()
    fst = f"buffer_store_dword v{V_CHK}, v{V_FLG}, {srd(sWS)}, 0 offen"
    flag = [f"s_cmp_eq_u32 s{S_FLAG}, 0", "s_mov_b64 exec, 0xff", "s_waitcnt vmcnt(0)", "s_cbranch_scc1 L_farflag", fst, "L_flagged:", "s_mov_b64 exec, -1"]
    rare.append(["L_farflag:", fst + " sc1", "s_branch L_flagged"])
    A(f"""
    s_lshl_b32 s{S_T0}, s{S_HG}, 6
    v_and_b32 v{AW(0)}, 0xfff, v{AV(0)}
    v_xor_b32 v{AW(0)}, s{S_T0}, v{AW(0)}
    """)
    for T in range(1, 8):
        A(f"v_xor_b32 v{AW(T)}, {T << 5}, v{AW(0)}")
    A(f"""
    s_add_u32 s{S_T0}, s{S_LWB}, {BRING}
    v_lshl_add_u32 v{AB(0)}, v{V_TMP}, 4, s{S_T0}
    v_mov_b32 v{AK(1)}, 1
    """)
    if cfg.flag_after < 0:
        A(flag)
        stamp()
    A("s_barrier")
    A(gemm_reads(0, 0, "o", with_b=False))
    wstep = [f"v_add_u32 v{AW(T)}, {WSLOT}, v{AW(T)}" for T in range(8)]
    for hs in range(0 if cfg.bdirect else 4):
        if hs == cfg.flag_after:
            A(flag)
            stamp()
        fill = []
        if hs < 3:
            fill += spread(gemm_reads((hs + 1) & 1, (hs + 1) & 1, "o", with_b=False), 0, 15)
        if hs in (0, 2):
            fill += spread(wstep, 16, 23)
        A(weave(gemm_mfma(cfg, hs & 1, bsrc=lambda t: QF(hs, t), zero=(hs == 0)), fill))
    xaddr = (f"""
    s_mul_i32 s{S_T0}, s{S_W}, 9216
    s_add_u32 s{S_T0}, s{S_T0}, {WS_X}
    v_lshl_add_u32 v{AB(1)}, v{V_TMP}, 4, s{S_T0}
    v_and_b32 v{AK(3)}, 3, v{V_TMP}
    s_lshl_b32 s{S_T0}, s{S_W}, 9
    s_add_u32 s{S_T0}, s{S_T0}, {WS_INBOX + 4096}
    v_lshl_add_u32 v{AK(2)}, v{AK(3)}, 7, s{S_T0}
    v_xor_b32 v{AK(0)}, s2, v{AK(3)}
    v_lshl_add_u32 v{AK(0)}, v{AK(0)}, 13, v{AK(2)}
    v_max_u32 v{AK(3)}, 1, v{AK(3)}
    s_lshl_b32 s{S_T1}, s2, 13
    s_add_u32 s{S_T0}, s{S_T0}, s{S_T1}
    v_lshl_add_u32 v{AK(2)}, v{AK(3)}, 7, s{S_T0}
    v_and_b32 v{AV(0)}, 15, v{V_TMP}
    v_bfe_u32 v{AV(1)}, v{V_TMP}, 4, 1
    v_bfe_u32 v{AV(2)}, v{V_TMP}, 5, 1
    s_mul_i32 s{S_T0}, s{S_BP}, 192
    s_mul_i32 s{S_T1}, s{S_W}, 48
    s_add_u32 s{S_T0}, s{S_T0}, s{S_T1}
    s_lshl_b32 s{S_T0}, s{S_T0}, 12
    s_lshl_b32 s{S_T1}, s{S_BLK}, 11
    s_add_u32 s{S_T0}, s{S_T0}, s{S_T1}
    s_lshl_b32 s{S_T1}, s{S_NU}, 8
    s_add_u32 s{S_T0}, s{S_T0}, s{S_T1}
    s_lshl_b32 s{S_T1}, s{S_HG}, 6
    s_add_u32 s{S_T0}, s{S_T0}, s{S_T1}
    v_lshl_add_u32 v{AV(0)}, v{AV(0)}, 12, s{S_T0}
    v_lshl_add_u32 v{AV(0)}, v{AV(1)}, 5, v{AV(0)}
    v_lshl_add_u32 v{AV(0)}, v{AV(2)}, 4, v{AV(0)}
    """)
    if not cfg.bdirect:
        A(xaddr + f"s_mov_b32 s{S_SLOT}, 2")
    if cfg.wb:
        A(f"""s_and_b32 s{S_T0}, s2, {cfg.wbmask}
        s_or_b32 s{S_T0}, s{S_T0}, s{S_W}
        s_cselect_b32 s{S_FLAG}, 0, {cfg.wb}""")
        rare.append(["L_wb:", "buffer_wbl2 sc1", "s_branch L_wbdone"])
    XF = QF
    after = []
    mf = gemm_mfma(cfg, 1)
    if cfg.bdirect:
        assert cfg.par in (0, 1) and not cfg.oord and cfg.flag_after == 1
        ring = [FB(0, 0), FB(1, 0)] + [QF(s, 0) for s in range(4)]
        BR = lambda h: (lambda t: ring[(h - 4) % 6] + 4 * t)
        rel = [m if not cfg.par else (4 * (m >> 1) + (m & 1) if m < 8 else 4 * ((m - 8) >> 1) + (m & 1) + 2) for m in range(2, 16)]
        tbl = sum(r << (4 * n) for n, r in enumerate(rel))
        nxt = [f"s_add_u32 s{S_BO}, s{S_TBL}, s{S_J2}", f"s_and_b32 s{S_BO}, s{S_BO}, 15", f"s_mul_i32 s{S_BO}, s{S_BO}, 24576",
               f"s_lshr_b64 s[{S_TBL}:{S_TBL + 1}], s[{S_TBL}:{S_TBL + 1}], 4"]
        bload = lambda h: [f"buffer_load_dwordx4 {v4(BR(h)(t))}, v{AV(3) if h & 1 else AB(0)}, {srd(sWS)}, s{S_BO} offen offset:{t * 1024} {cfg.pol_ob}" for t in T3]
        bgaps = [int(x) for x in cfg.bgaps.split(".")]
        sal = [f"s_add_u32 s{S_SLOT}, s{S_SLOT}, 1", f"s_and_b32 s{S_SLOT}, s{S_SLOT}, 3", f"s_cselect_b32 s{S_DW}, {WSLOT}, s{S_T2}"]
        val = [f"v_add_u32 v{AW(T)}, s{S_DW}, v{AW(T)}" for T in range(8)]

        def half(h, extra=()):
            b = h & 1
            fill = []
            if 2 <= h <= 26:
                fill += (list(zip(range(4, 8), nxt)) if b else []) + list(zip(bgaps, bload(h + 5)))
            if b:
                fill += spread(gemm_reads(0, 0, "o", with_b=False), -1, 14) + [(22, "s_waitcnt lgkmcnt(0)")]
            else:
                fill += spread(gemm_reads(1, 1, "o", with_b=False), 0, 15) + list(zip(range(3), sal)) + list(zip((8, 9, 10, 11, 12, 13, 14, 16), val))
                fill += [(22, "s_waitcnt lgkmcnt(0)")] + ([(22, "s_barrier")] if 2 <= h <= 28 else [])
            if 3 <= h <= 30:
                fill += [(23, f"s_waitcnt vmcnt({3 * min(4, 30 - h)})")]
            return weave(gemm_mfma(cfg, b, bsrc=BR(h), zero=(h == 0)), fill + list(extra))

        A(f"""s_mul_i32 s{S_T0}, s{S_GRP}, 393216
        s_add_u32 s{S_T0}, s{S_T0}, s{S_LWB}
        v_lshl_add_u32 v{AB(0)}, v{V_TMP}, 4, s{S_T0}
        v_add_u32 v{AV(3)}, 3072, v{AB(0)}
        s_mov_b32 s{S_TBL}, {tbl & 0xffffffff}
        s_mov_b32 s{S_TBL + 1}, {tbl >> 32}
        s_lshl_b32 s{S_J2}, s{S_J}, 1
        s_mov_b32 s{S_SLOT}, 0""")
        xa = [x.strip() for x in xaddr.split("\n") if x.strip()]
        A(half(0))
        A(flag)
        stamp()
        A(half(1, spread(xa, 0, 21)))
        A(["s_barrier"] + nxt + bload(4) + bload(5) + nxt + bload(6))
        A(half(2))
        A(f"s_mov_b32 s{S_CNT}, 4\n.p2align 3")
        body = P.add(["L_oloop:"] + half(3) + half(4) + half(5) + half(6) + half(7)
                     + half(8, [(5, f"s_sub_u32 s{S_CNT}, s{S_CNT}, 1"), (6, f"s_cmp_lg_u32 s{S_CNT}, 0")]) + ["s_cbranch_scc1 L_oloop"])
        tr.extend(body + body)
        XF = lambda i, t: QF(0, t) if i == 0 else 144 + ((i - 1) * 3 + t) * 4
        mf = gemm_mfma(cfg, 1, bsrc=BR(31))
        if not cfg.defer:
            for h in range(27, 31):
                A(half(h))
        else:
            rd = lambda h, T, reg: [f"ds_read_b64_tr_b16 {v2(reg + 2 * u)}, v{AW(T)} offset:{(h - 28) * 8192 + u * 4096}" for u in range(2)]
            own = lambda h, T: {27: FA(1, T), 28: FA(0, T), 29: QF(2, 0) + 4 * T, 30: FA(1, T), 31: FA(0, T)}[h]
            ownrd = lambda h: [x for T in range(2) for x in rd(h, T, own(h, T))]
            for h in range(27, 31):
                b = h & 1
                reads = [x for T in range(2, 8) for x in rd(h + 1, T, FA(1 - b, T))] + ownrd(28 + (h - 27) // 2)[2 * (1 - b):2 * (1 - b) + 2]
                fill = spread(reads, -1 if b else 0, 12 if b else 13)
                fill += [(16, "s_waitcnt lgkmcnt(2)")] + ([(16, "s_barrier")] if h == 28 else []) + [(17, f"s_waitcnt vmcnt({3 * (30 - h)})")]
                A(weave(gemm_mfma(cfg, b, bsrc=BR(h))[6:], fill))
            XF = lambda i, t: {0: QF(0, t), 1: FA(0, 2 + t), 2: FA(0, 5 + t), 3: FA(1, 2 + t)}[i]
            late = [f"{MFMA} {v4(ACC(T, t))}, {v4(own(h, T))}, {v4(BR(h)(t))}, {v4(ACC(T, t))}" for h in range(27, 32) for T, t in order(2, cfg.snake)]
            mf = late[:6] + mf[6:]
            after = weave(late[6:], list(zip(range(0, 4), ownrd(30))) + list(zip(range(6, 10), ownrd(31))))
    else:
        A("s_barrier")
        A(gemm_reads(0, 0, "o"))
        gemm_loop(P, tr, cfg, "o", "L_oloop", 14)
    fill = []
    for i in range(1, 4):
        so = [f"s_xor_b32 s{S_T0}, s2, {i}", f"s_mul_i32 s{S_T0}, s{S_T0}, 36864", f"s_add_u32 s{S_T0}, s{S_T0}, {(i - 1) * 3072}"]
        st = [f"buffer_store_dwordx4 {v4(XF(i, t))}, v{AB(1)}, {srd(sWS)}, s{S_T0} offen offset:{t * 1024} sc1" for t in T3]
        fill += [(6 * i + 6, x) for x in st] + list(zip(range(6 * i + 1, 6 * i + 4), so)) + spread(acc_to_frag(i, XF), 6 * i, 6 * i + 5)
    last = [x for g, x in fill if g == 24]
    A(weave(mf[6:] + mf[:6], [(g, x) for g, x in fill if g < 24]) + last)
    stamp()
    A(after)
    xload = lambda k, so: f"buffer_load_dwordx4 {v4(24 + 4 * k)}, v{AB(1)}, {srd(sWS)}, s{so} offen offset:{(k % 3) * 1024} sc1"

    def xadd(i):
        for k in range(3 * i, 3 * i + 3):
            for d in range(4):
                src, dst = 24 + 4 * k + d, ACC(d >> 1, k % 3) + 2 * (d & 1)
                A(f"""v_lshlrev_b32 v64, 16, v{src}
                v_and_b32 v65, 0xffff0000, v{src}
                v_pk_add_f32 {v2(dst)}, {v2(dst)}, v[64:65]""")

    so = (S_T0, S_T1, S_T2)
    xbase = f"s_mul_i32 s{S_T0}, s2, 36864\ns_add_u32 s{S_T1}, s{S_T0}, 3072\ns_add_u32 s{S_T2}, s{S_T0}, 6144"
    if not cfg.tag:
        A(["s_waitcnt vmcnt(0)", "s_mov_b64 exec, 14", f"buffer_store_dword v{AK(1)}, v{AK(0)}, {srd(sWS)}, 0 offen sc1", "s_mov_b64 exec, -1"])
        stamp()
        poll_loop(P, tr, "poll2", V_CHK, AK(2))
        stamp()
        A(xbase)
        A([xload(k, so[k // 3]) for k in range(9)])
        for i in range(3):
            xadd(i)
    else:
        stamp()
        A(xbase)
        A(f"s_mov_b32 s{S_SPIN}, 0")
        if cfg.tag == 2:
            probe = P.add(["L_probe:"] + [xload(3 * i + 2, so[i]) for i in range(3)] + f"""s_add_u32 s{S_SPIN}, s{S_SPIN}, 1
            s_cmp_ge_u32 s{S_SPIN}, {SPIN_MAX}
            s_cbranch_scc1 L_probed
            s_waitcnt vmcnt(0)
            v_max3_u32 v64, v35, v47, v59
            v_cmp_eq_u32 vcc, -1, v64
            s_cbranch_vccnz L_probe""".split("\n"))
            tr.extend(probe + probe)
            A("L_probed:")
        first = [xload(k, so[k // 3]) for k in range(9) if cfg.tag == 1 or k % 3 != 2]
        A(first)
        for i in range(3):
            b = 24 + 12 * i
            chk2 = ([f"v_max3_u32 v64, v{b}, v{b + 1}, v{b + 2}"] + [f"v_max3_u32 v64, v{b + k}, v{b + k + 1}, v64" for k in range(3, 11, 2)]
                    + [f"v_max_u32 v64, v{b + 11}, v64", "v_cmp_eq_u32 vcc, -1, v64"])
            A([f"L_x{i}:"] + chk2 + [f"s_cbranch_vccnz L_xr{i}", f"L_xok{i}:"])
            rare.append([f"L_xr{i}:"] + [xload(k, so[i]) for k in range(3 * i, 3 * i + 3)]
                        + [f"s_add_u32 s{S_SPIN}, s{S_SPIN}, 1", f"s_cmp_lt_u32 s{S_SPIN}, {SPIN_MAX}", "s_waitcnt vmcnt(0)",
                           f"s_cbranch_scc1 L_x{i}", f"s_branch L_xok{i}"])
            if i == 2:
                stamp()
            xadd(i)
    A(acc_to_frag(0))
    A([f"v_permlane16_swap_b32 v{QF(0, t) + h}, v{QF(0, t) + 2 + h}" for t in T3 for h in range(2)])
    for t in T3:
        A(f"s_mov_b32 s{S_T0}, {t * 65536}\nbuffer_store_dwordx4 {v4(QF(0, t))}, v{AV(0)}, {srd(sOUT)}, s{S_T0} offen {cfg.pol_out}")
    if cfg.stamps:
        A("s_waitcnt vmcnt(0)")
        stamp()
        A(f"v_mov_b32 v1, 0")
        for k in range(nst[0]):
            A(f"v_writelane_b32 v1, s{S_ST + 2 * k}, {k}")
        A(f"""s_lshl_b32 s{S_T0}, s2, 3
        s_add_u32 s{S_T0}, s{S_T0}, s{S_WAVE}
        s_lshl_b32 s{S_T0}, s{S_T0}, 8
        s_add_u32 s{S_T0}, s{S_T0}, {WS_STAMP}
        v_lshl_add_u32 v2, v{V_TMP}, 2, s{S_T0}
        buffer_store_dword v1, v2, {srd(sWS)}, 0 offen""")
    A("L_exit:\ns_endpgm")
    blocks = {}
    for blk in rare:
        blocks[blk[0][:-1]] = P.add(blk)
    tr2 = []
    skip = None
    for ins in tr:
        if skip:
            if ins.text == skip + ":":
                skip = None
            else:
                continue
        tr2.append(ins)
        if ins.op.startswith("s_cbranch") and ins.text.split()[1] in blocks:
            blk = blocks[ins.text.split()[1]]
            tr2 += blk
            skip = blk[-1].text.split()[1]
    assert skip is None
    return tr, tr2


def generate(cfg):
    P = Prog()
    pre = P.add("s_cmp_ge_u32 s2, 256\ns_cbranch_scc1 L_exit")
    if cfg.remap:
        pre += P.add("""s_bfe_u32 s4, s2, 0x20003
        s_lshr_b32 s5, s2, 5
        s_and_b32 s2, s2, 7
        s_lshl_b32 s4, s4, 6
        s_lshl_b32 s5, s5, 3
        s_or_b32 s2, s2, s4
        s_or_b32 s2, s2, s5""")
    pre += prologue(P, cfg)
    tl = loader(P, cfg)
    tc, tc2 = compute(P, cfg)
    body = P.finish([pre + tc, pre + tc2] + [pre + t for t in tl])
    if cfg.align:
        body = align8(body)
    return (HEADER + "; @launch grid=(256,1,1) block=(512,1,1) lds=163840\n"
            + '.amdgcn_target "amdgcn-amd-amdhsa--gfx950"\n.text\n'
            + f".globl {NAME}_kernel\n.p2align 8\n.type {NAME}_kernel,@function\n{NAME}_kernel:\n" + body
            + f"""L_text_end:
.section .rodata,"a"
.p2align 6
.amdhsa_kernel {NAME}_kernel
  .amdhsa_next_free_vgpr 256
  .amdhsa_next_free_sgpr 102
  .amdhsa_accum_offset 256
  .amdhsa_group_segment_fixed_size 0
  .amdhsa_kernarg_size 104
  .amdhsa_user_sgpr_count 2
  .amdhsa_user_sgpr_kernarg_segment_ptr 1
  .amdhsa_system_sgpr_workgroup_id_x 1
  .amdhsa_float_denorm_mode_32 3
.end_amdhsa_kernel
""")


def parse(args):
    kw = {}
    for a in args:
        k, v = a.split("=")
        kw[k] = float(v) if k == "thr" else (int(v) if v.lstrip("-").isdigit() and not k.startswith(("pre", "ptouch", "spre", "bgaps")) else v.replace("+", " "))
    return Cfg(**kw)


if __name__ == "__main__":
    open(sys.argv[1], "w").write(generate(parse(sys.argv[2:])))
```

```python
import gen, calib2, sys
KW = dict(qd=2, prog=1, par=1, pre="40.0.0.0.0.0.0.0.0.0.0.4.4", pre1="0.0.0.0.0.0.0.0.20.0.12.8.8", bdirect=1, defer=1, od=2, win=6)
S = (4, 0, "min")


def b(path, a, c, zero=False, mul=1):
    calib2.build(path, a, c, zero=zero, **KW)
    s = open(path).read().replace("s_sub_u32 s22, s21, s20\n", f"s_sub_u32 s22, s21, s20\ns_mul_i32 s22, s22, {mul}\n")
    open(path, "w").write(s)


b("d_zero.s", S, (0, 5, "max"), zero=True)
b("d_skew.s", S, (4, 0, "max"), mul=4)
b("d_b0.s", S, (4, 1, "max"), mul=4)
b("d_b3.s", S, (4, 4, "max"), mul=2)
b("d_b32.s", S, (4, 33, "max"))
b("d_end.s", S, (0, 5, "max"))
```

```python
import struct, sys
from asmlib import Prog, weave, spread, balance, align8

NAME = "concat_heads__mha_block_cached__gqa_block_cached__near_ridge"
HEADER = open("cdna_kernels/" + NAME + ".s.ref").read().split("; Override launch")[0]

WS_O, WS_X, WS_INBOX, WS_STAMP, WS_DUMP = 0, 16 << 20, 48 << 20, 200 << 20, 64 << 20
WRING, BRING, KRING, VRING = 0, 65536, 65536, 114688
WSLOT, BSLOT, ASLOT = 16384, 24576, 16384
SPIN_MAX = 200000
T3 = range(3)

S_WAVE, sX, sK, sV, sWQ, sWO, sOUT, sWS, sDBG = 3, 20, 24, 28, 32, 36, 40, 44, 48
S_BLK, S_HG, S_J, S_BP, S_NU, S_W, S_H, S_DB = 52, 53, 54, 55, 56, 57, 58, 59
S_T0, S_T1, S_T2, S_T3, S_CNT, S_DW, S_C, S_SLOT = 60, 61, 62, 63, 64, 65, 66, 68
S_LWB, S_LWW, S_ROT, S_J2, S_SPIN, S_FLAG, S_XCC, S_GRP = 69, 70, 71, 72, 73, 74, 75, 76
S_MASK, S_PC = 77, 78
S_SB = 94
S_TBL, S_BO = 92, 94
S_ST = 80
srd = lambda r: f"s[{r}:{r+3}]"
v4 = lambda r: f"v[{r}:{r+3}]"
v2 = lambda r: f"v[{r}:{r+1}]"
f32 = lambda x: "0x%08x" % struct.unpack("<I", struct.pack("<f", x))[0]
MFMA = "v_mfma_f32_16x16x32_bf16"

ACC = lambda T, t: (T * 3 + t) * 4
QF = lambda s, t: 96 + (s * 3 + t) * 4
FA = lambda b, T: 144 + 44 * b + 4 * T
FB = lambda b, t: 144 + 44 * b + 32 + 4 * t
AW = lambda T: 232 + T
AB = lambda s: 240 + s
V_CHK, V_TMP = 242, 243
FR = lambda f: 144 + 4 * f
SS = lambda kt, t: 176 + (kt * 3 + t) * 4
PP = lambda t: 200 + 4 * t
NM = lambda t: 212 + 4 * t
VL = lambda t: 224 + 2 * t
VX = 230
V_OST, V_FLG = 241, 231
VD = lambda t: 232 + t
VT = lambda k: 235 + k
VA = lambda t: 238 + t
AK = lambda s: 244 + s
AV = lambda T: 248 + T


class Cfg:
    def __init__(self, **kw):
        self.pol_x = ""
        self.pol_wq = ""
        self.pol_kv = "nt"
        self.pol_wo = ""
        self.pol_ob = "sc1"
        self.rot = 1
        self.stamps = 0
        self.flag_after = 1
        self.pre = "40.0.0.0.0.0.0.0.0.0.0.4.4"
        self.last = 30
        self.win = 6
        self.win16 = 10
        self.wo_at = "31.31.33.33"
        self.qd = 2
        self.thr = 8.0
        self.local = 1
        self.pk = 0
        self.snake = 1
        self.align = 1
        self.prio = 0
        self.remap = 0
        self.nurot = 1
        self.otouch = 0
        self.stag = 0
        self.s1pre = 36
        self.s1win = 8
        self.s0win = 8
        self.s0late = 8
        self.s0sw = 28
        self.prog = 1
        self.pre1 = '0.0.0.0.0.0.0.0.20.0.12.8.8'
        self.tag = 0
        self.oclear = 0
        self.lazyp = 0
        self.w1late = 0
        self.linout = 0
        self.spreadc = 0
        self.latefetch = 0
        self.spreadsh = 4
        self.nocount = 0
        self.cls = 3
        self.clsinv = 1
        self.winlate = 0
        self.late = 27
        self.wwin = 0
        self.defer = 1
        self.bdirect = 1
        self.bgaps = '17.19.21'
        self.bwin = 0
        self.afirst = 0
        self.winb = 0
        self.lastb = 0
        self.par = 1
        self.spre = ''
        self.coop = ''
        self.coopw0 = 31
        self.promote = 0
        self.pol_out = ''
        self.ptouch = ''
        self.wb = 0
        self.wbmask = 0xf8
        self.oord = 0
        self.od = 2
        self.ctouch = 1
        self.count_at = 13
        self.fetch_at = 3
        self.chk_max = SPIN_MAX
        self.__dict__.update(kw)


def lane_id(v):
    return f"v_mbcnt_lo_u32_b32 v{v}, -1, 0\nv_mbcnt_hi_u32_b32 v{v}, -1, v{v}"


def make_srd(items):
    return "\n".join(f"s_mov_b32 s{r}, s{p}\ns_mov_b32 s{r+1}, s{p+1}\ns_mov_b32 s{r+2}, {n}\ns_mov_b32 s{r+3}, 0x20000" for r, p, n in items)


def prologue(P, cfg):
    return P.add(f"""
    s_bfe_u32 s{S_BLK}, s2, 0x10002
    s_mul_i32 s{S_T0}, s{S_BLK}, 40
    s_load_dwordx8 s[4:11], s[0:1], s{S_T0}
    s_add_u32 s{S_T1}, s{S_T0}, 32
    s_load_dwordx2 s[12:13], s[0:1], s{S_T1}
    s_load_dwordx4 s[16:19], s[0:1], 88
    s_load_dwordx2 s[14:15], s[0:1], 80
    v_lshrrev_b32 v1, 6, v0
    v_and_b32 v0, 63, v0
    s_and_b32 s{S_HG}, s2, 3
    v_readfirstlane_b32 s{S_WAVE}, v1
    s_bfe_u32 s{S_J}, s2, 0x30003
    s_lshr_b32 s{S_BP}, s2, 6
    s_lshl_b32 s{S_H}, s{S_HG}, 3
    s_add_u32 s{S_H}, s{S_H}, s{S_J}
    s_and_b32 s{S_W}, s{S_WAVE}, 3
    s_mul_i32 s{S_LWB}, s{S_W}, 6144
    s_lshl_b32 s{S_LWW}, s{S_W}, 12
    s_cmp_lt_u32 s{S_WAVE}, 4
    s_cbranch_scc1 L_compute
    """)


def late_ids(cfg):
    return f"""s_mul_i32 s{S_NU}, s{S_BP}, {2 * cfg.nurot}
    s_add_u32 s{S_NU}, s{S_NU}, s{S_J}
    s_and_b32 s{S_NU}, s{S_NU}, 7
    s_and_b32 s{S_GRP}, s2, 7
    s_lshl_b32 s{S_T1}, s{S_BP}, 3
    s_add_u32 s{S_GRP}, s{S_GRP}, s{S_T1}"""


def code_touch(lane, vaddr, vdst):
    return f"""s_lshr_b32 s{S_T0}, s2, 3
    s_lshl_b32 s{S_T0}, s{S_T0}, 10
    v_and_b32 v{vaddr}, 7, v{lane}
    v_lshl_add_u32 v{vaddr}, v{vaddr}, 7, s{S_T0}
    v_min_u32 v{vaddr}, L_text_end-L_text-4, v{vaddr}
    global_load_dword v{vdst}, v{vaddr}, s[{S_PC}:{S_PC + 1}]"""


def poll_loop(P, tr, name, vdst, vaddr):
    tr.extend(P.add(f"s_mov_b32 s{S_SPIN}, 0"))
    loop = P.add(f"""L_{name}:
    buffer_load_dword v{vdst}, v{vaddr}, {srd(sWS)}, 0 offen sc1
    s_add_u32 s{S_SPIN}, s{S_SPIN}, 1
    s_cmp_ge_u32 s{S_SPIN}, {SPIN_MAX}
    s_cbranch_scc1 L_{name}_done
    s_waitcnt vmcnt(0)
    v_cmp_ne_u32 vcc, 1, v{vdst}
    s_cbranch_vccnz L_{name}""")
    tr.extend(loop + loop)
    tr.extend(P.add(f"L_{name}_done:"))


LX = lambda p: 8 + p
LW = lambda p: 14 + p
LK = lambda p: 18 + p
LV = lambda p: 22 + p
LWO = lambda p: 24 + p
LOB, LFLAG, LSTAMP, LPOLL = 28, 29, 30, 31
LDSW = lambda h: 1 + h
LTQ, LTO, LTB = 32, 33, 34
LPOOL = 36


def late_setup(A):
    A(f"""
    s_lshr_b32 s{S_T0}, s{S_W}, 1
    s_lshl_b32 s{S_T1}, s{S_BP}, 1
    s_add_u32 s{S_T0}, s{S_T0}, s{S_T1}
    s_lshl_b32 s{S_T0}, s{S_T0}, 5
    s_add_u32 s{S_T0}, s{S_T0}, s{S_H}
    s_lshl_b32 s{S_T0}, s{S_T0}, 17
    s_and_b32 s{S_T1}, s{S_W}, 1
    s_lshl_b32 s{S_T1}, s{S_T1}, 12
    s_add_u32 s{S_T0}, s{S_T0}, s{S_T1}
    v_lshl_add_u32 v5, v1, 8, s{S_T0}
    v_xor_b32 v7, v2, v1
    """)
    for p in range(4):
        A(f"v_xor_b32 v3, {4 * p}, v7\nv_lshl_add_u32 v{LK(p)}, v3, 4, v5")
    A(f"""
    v_lshl_add_u32 v{LV(0)}, v6, 4, v5
    v_xor_b32 v7, 8, v6
    v_lshl_add_u32 v{LV(1)}, v7, 4, v5
    s_lshl_b32 s{S_T0}, s{S_HG}, 21
    s_lshl_b32 s{S_T1}, s{S_W}, 15
    s_add_u32 s{S_T0}, s{S_T0}, s{S_T1}
    s_lshl_b32 s{S_T1}, s{S_NU}, 8
    s_add_u32 s{S_T0}, s{S_T0}, s{S_T1}
    v_lshl_add_u32 v5, v1, 11, s{S_T0}
    v_add_u32 v{LTO}, s{S_T0}, v{LTO}
    v_lshl_add_u32 v{LWO(0)}, v6, 4, v5
    v_lshl_add_u32 v7, v7, 4, v5
    v_add_u32 v{LWO(1)}, {8192 - 1024}, v7
    v_add_u32 v{LWO(2)}, {2 * 8192 - 2048}, v{LWO(0)}
    v_add_u32 v{LWO(3)}, {3 * 8192 - 3072}, v7
    s_mul_i32 s{S_T0}, s{S_GRP}, 393216
    s_add_u32 s{S_T0}, s{S_T0}, s{S_LWB}
    v_lshl_add_u32 v{LOB}, v0, 4, s{S_T0}
    s_lshl_b32 s{S_T1}, s{S_J}, 2
    s_add_u32 s{S_T1}, s{S_T1}, s{S_W}
    s_mul_i32 s{S_T1}, s{S_T1}, 3072
    s_mul_i32 s{S_T0}, s{S_GRP}, 393216
    s_add_u32 s{S_T0}, s{S_T0}, s{S_T1}
    v_min_u32 v{LTB}, 23, v0
    v_lshl_add_u32 v{LTB}, v{LTB}, 7, s{S_T0}
    s_lshl_b32 s{S_T0}, s2, 11
    s_lshl_b32 s{S_T1}, s{S_W}, 9
    s_add_u32 s{S_T0}, s{S_T0}, s{S_T1}
    s_add_u32 s{S_T0}, s{S_T0}, {WS_INBOX}
    v_lshl_add_u32 v{LFLAG}, v4, 2, s{S_T0}
    s_lshl_b32 s{S_J2}, s{S_J}, 1
    s_add_u32 s{S_T0}, s{S_LWW}, {KRING}
    v_lshl_add_u32 v{LDSW(0)}, v0, 4, s{S_T0}
    v_add_u32 v{LDSW(1)}, {VRING - KRING}, v{LDSW(0)}
    """)


def loader(P, cfg):
    tr = []
    A = lambda t: tr.extend(P.add(t))
    A(f"""
    v_lshrrev_b32 v1, 4, v0
    v_and_b32 v2, 15, v0
    v_lshrrev_b32 v3, 3, v0
    v_and_b32 v4, 7, v0
    s_mul_i32 s{S_T0}, s{S_BP}, 192
    s_mul_i32 s{S_T1}, s{S_W}, 48
    s_add_u32 s{S_T0}, s{S_T0}, s{S_T1}
    s_lshl_b32 s{S_T0}, s{S_T0}, 11
    v_lshl_add_u32 v5, v3, 11, s{S_T0}
    v_xor_b32 v6, v4, v1
    v_lshl_add_u32 v{LX(0)}, v6, 4, v5
    v_xor_b32 v6, 4, v6
    v_lshl_add_u32 v7, v6, 4, v5
    """)
    for p in range(1, 6):
        A(f"v_add_u32 v{LX(p)}, {p * 16384 - (p % 4) * 1024}, v{7 if p & 1 else LX(0)}")
    A(f"""
    s_lshl_b32 s{S_T0}, s{S_W}, 17
    s_lshl_b32 s{S_T1}, s{S_H}, 8
    s_add_u32 s{S_T0}, s{S_T0}, s{S_T1}
    v_lshl_add_u32 v5, v1, 13, s{S_T0}
    v_lshlrev_b32 v6, 1, v1
    v_xor_b32 v6, v6, v2
    v_lshl_add_u32 v{LW(0)}, v6, 4, v5
    v_xor_b32 v7, 8, v6
    v_lshl_add_u32 v7, v7, 4, v5
    v_add_u32 v{LW(1)}, {32768 - 1024}, v{LW(0)}
    v_add_u32 v{LW(2)}, {2 * 32768 - 2048}, v7
    v_add_u32 v{LW(3)}, {3 * 32768 - 3072}, v7
    """)
    if cfg.rot == 1:
        A(f"s_add_u32 s{S_ROT}, s{S_BP}, s{S_J}\ns_and_b32 s{S_ROT}, s{S_ROT}, 3\ns_lshl_b32 s{S_ROT}, s{S_ROT}, 2")
    elif cfg.rot == 2:
        A(f"s_add_u32 s{S_ROT}, s{S_BP}, s{S_J}\ns_and_b32 s{S_ROT}, s{S_ROT}, 1\ns_lshl_b32 s{S_ROT}, s{S_ROT}, 3")
    elif cfg.rot == 3:
        A(f"s_lshl_b32 s{S_ROT}, s{S_HG}, 2")
    elif cfg.rot == 4:
        A(f"s_lshl_b32 s{S_ROT}, s{S_BP}, 2")
    elif cfg.rot == 5:
        A(f"s_lshl_b32 s{S_ROT}, s{S_J}, 1")
    elif cfg.rot in (7, 8, 9):
        A(f"s_lshr_b32 s{S_ROT}, s{S_J}, 1\ns_add_u32 s{S_ROT}, s{S_ROT}, s{S_BP}\ns_and_b32 s{S_ROT}, s{S_ROT}, 3\ns_lshl_b32 s{S_ROT}, s{S_ROT}, {9 - cfg.rot}")
    elif cfg.rot == 6:
        A(f"s_and_b32 s{S_ROT}, s{S_J}, 3\ns_lshl_b32 s{S_ROT}, s{S_ROT}, 2")
    else:
        A(f"s_mov_b32 s{S_ROT}, 0")
    A(f"""
    v_bfe_u32 v7, v0, 1, 4
    v_and_b32 v5, 1, v0
    v_lshlrev_b32 v5, 7, v5
    v_lshl_add_u32 v{LTO}, v7, 11, v5
    v_lshl_add_u32 v{LTQ}, v7, 13, v5
    v_add_u32 v{LTQ}, s{S_T0}, v{LTQ}
    """)
    A("s_waitcnt lgkmcnt(0)")
    A(make_srd(((sWQ, 10, 8 << 20), (sX, 4, 768 * 2048))))
    q0 = []
    if cfg.stamps:
        A(f"v_mov_b32 v{LSTAMP}, 0")
        A(loader_stamp(0))
        A(f"v_writelane_b32 v{LSTAMP}, s96, 63")
    if cfg.afirst:
        A(f"s_bitcmp{1 - cfg.clsinv}_b32 s2, {cfg.cls}\ns_cbranch_scc1 L_bstart")
        for n in range(4 if cfg.cls == 6 else 0):
            A(f"""s_add_u32 s{S_T1}, s{S_ROT}, {n}
            s_lshl_b32 s{S_T1}, s{S_T1}, 19
            buffer_load_dword v{LPOLL}, v{LTQ}, {srd(sWQ)}, s{S_T1} offen""")
        A("s_branch L_started\nL_bstart:")
    if not cfg.stag:
        for n in range(2):
            for text, isload in q_stage(cfg, n):
                A(text)
                if isload:
                    q0.append(n)
    if cfg.afirst:
        A("L_started:")
    A(make_srd(((sK, 6, 32 << 20), (sV, 8, 32 << 20), (sWO, 12, 8 << 20), (sWS, 18, 256 << 20))))
    A(late_ids(cfg))
    late_setup(A)
    if cfg.pre1:
        A(f"s_bitcmp{1 - cfg.clsinv}_b32 s2, {cfg.cls}\ns_cbranch_scc1 L_late")
        t0 = loader_role(P, cfg, list(tr), ["t"] * (4 if cfg.cls == 6 else 0) if cfg.afirst else q0, None, cfg.pre, "a")
        return [t0, loader_role(P, cfg, list(tr) + P.add("L_late:"), q0, None, cfg.pre1, "b")]
    if not cfg.stag:
        return [loader_role(P, cfg, tr, q0, None, cfg.pre)]
    A(f"s_cmp_ge_u32 s{S_BP}, 2\ns_cbranch_scc1 L_late")
    t0 = loader_role(P, cfg, list(tr), q0, 0)
    return [t0, loader_role(P, cfg, list(tr) + P.add("L_late:"), q0, 1)]


def loader_stamp(n):
    return (f"s_memrealtime s[{S_ST}:{S_ST+1}]\ns_memtime s[{S_ST+2}:{S_ST+3}]\ns_cmp_eq_u32 s{S_W}, 1\ns_waitcnt lgkmcnt(0)\n"
            f"s_cselect_b32 s{S_ST+4}, s{S_ST+2}, s{S_ST}\nv_writelane_b32 v{LSTAMP}, s{S_ST+4}, {n}")


def q_stage(cfg, n):
    dma = lambda vreg, sr, so, imm, pol: (f"buffer_load_dwordx4 v{vreg}, {srd(sr)}, s{so} offen offset:{imm} {pol} lds", True)
    first = cfg.promote & 1 and n < 4
    mask = {8: 7, 9: 3}.get(cfg.rot, 15)
    o = [(f"""s_add_u32 s{S_T0}, s{S_ROT}, {n}
    s_add_u32 m0, s{S_LWW}, {WRING + (n % 4) * WSLOT}
    s_and_b32 s{S_T0}, s{S_T0}, {mask}
    {f"s_or_b32 s{S_T0}, s{S_T0}, {n & ~mask}" if n & ~mask else ""}
    s_lshl_b32 s{S_T1}, s{S_T0}, 19""", False)]
    o += [dma(LW(p), sWQ, S_T1, p * 1024, "nt" if first else cfg.pol_wq) for p in range(4)]
    if first:
        o.append((f"buffer_load_dword v{LPOLL}, v{LTQ}, {srd(sWQ)}, s{S_T1} offen", True))
    o.append((f"s_add_u32 m0, s{S_LWB}, {BRING + (n % 4) * BSLOT}\ns_lshl_b32 s{S_T0}, s{S_T0}, 7", False))
    o += [dma(LX(p), sX, S_T0, p * 1024, cfg.pol_x) for p in range(4)]
    o.append((f"s_add_u32 m0, s{S_LWB}, {BRING + (n % 4) * BSLOT + 4096}", False))
    o += [dma(LX(p), sX, S_T0, (p - 4) * 1024, cfg.pol_x) for p in range(4, 6)]
    return o


def loader_role(P, cfg, tr, q0, role, pre="", sfx=""):
    A = lambda t: tr.extend(P.add(t))
    sfx += "" if role is None else str(role)
    q = list(q0)

    def throttle(win):
        win = win or 56
        if win and len(q) >= win:
            A(f"s_waitcnt vmcnt({win - 1})")
            del q[:len(q) - (win - 1)]

    def dma(vreg, s, soff, imm, pol, tag, win=0):
        throttle(win)
        A(f"buffer_load_dwordx4 v{vreg}, {srd(s)}, {soff} offen offset:{imm} {pol} lds")
        q.append(tag)

    def wait(tag):
        if tag in q:
            idx = max(k for k, x in enumerate(q) if x == tag)
            A(f"s_waitcnt vmcnt({len(q) - 1 - idx})")
            del q[:idx + 1]

    def issue_q(n):
        for text, isload in q_stage(cfg, n):
            if isload:
                throttle(0)
                q.append(n)
            A(text)

    kv = []
    for e in range(17):
        if e <= 15:
            kv += [(16 + e, 0, e, p) for p in range(4)]
        if e >= 1:
            kv += [(16 + e, 1, e - 1, p) for p in range(4)]
    pool = list(range(LPOOL, 256, 4))
    parked = []
    state = dict(next=0, m0=None, soff=None, lds=False)

    def issue_kv(upto, k, win):
        state["m0"] = state["soff"] = None
        while state["next"] < upto:
            stage, isv, tile, p = kv[state["next"]]
            state["next"] += 1
            vo, sr = (LV(p & 1), sV) if isv else (LK(p), sK)
            if stage <= k + 2 and state["m0"] != (stage, isv):
                A(f"s_add_u32 m0, s{S_LWW}, {(VRING if isv else KRING) + (tile % 3) * ASLOT}")
                state["m0"] = (stage, isv)
            if state["soff"] != tile:
                A(f"s_mov_b32 s{S_T0}, {tile * 8192}")
                state["soff"] = tile
            if stage <= k + 2:
                dma(vo, sr, f"s{S_T0}", p * 1024, cfg.pol_kv, stage, win)
            else:
                if not pool:
                    unpark(k, 2)
                r = pool.pop(0)
                throttle(win)
                A(f"buffer_load_dwordx4 {v4(r)}, v{vo}, {srd(sr)}, s{S_T0} offen offset:{p * 1024} {cfg.pol_kv}")
                q.append(("r", r))
                parked.append((stage, isv, tile, p, r))
            if cfg.lazyp:
                unpark(k, cfg.lazyp, True)

    def unpark(k, most=99, landed=False):
        while parked and parked[0][0] <= k + 2 and most and not (landed and ("r", parked[0][4]) in q):
            most -= 1
            stage, isv, tile, p, r = parked.pop(0)
            wait(("r", r))
            A(f"ds_write_b128 v{LDSW(isv)}, {v4(r)} offset:{(tile % 3) * ASLOT + p * 1024}")
            pool.append(r)
            state["lds"] = True

    def o_index(m):
        if cfg.par:
            if m < 8:
                return f"s_add_u32 s{S_T0}, s{S_J2}, {4 * (m >> 1) + (m & 1)}"
            if cfg.par == 1:
                return f"s_add_u32 s{S_T0}, s{S_J2}, {4 * ((m - 8) >> 1) + (m & 1) + 2}"
            return f"s_lshl_b32 s{S_T0}, s{S_NU}, 1\ns_add_u32 s{S_T0}, s{S_T0}, {4 * ((m - 8) >> 1) + (m & 1) + 2}"
        if m < 2 or not cfg.oord:
            return f"s_add_u32 s{S_T0}, s{S_J2}, {m}"
        return f"""s_cmp_gt_u32 s{S_T3}, {(m - 2) // 2}
        s_cselect_b32 s{S_T0}, {m - 2}, {m}
        s_add_u32 s{S_T0}, s{S_T0}, s{S_T2}"""

    def issue_ow(m, tag, win=0):
        A(f"""{o_index(m)}
        s_add_u32 m0, s{S_LWW}, {WRING + (m % 4) * WSLOT}
        s_and_b32 s{S_T0}, s{S_T0}, 15
        s_lshl_b32 s{S_T1}, s{S_T0}, 17""")
        first = cfg.promote & 2 and m < 4
        for p in range(4):
            dma(LWO(p), sWO, f"s{S_T1}", p * 1024, "nt" if first else cfg.pol_wo, tag, 0 if first else win)
        if first:
            A(f"buffer_load_dword v{LPOLL}, v{LTO}, {srd(sWO)}, s{S_T1} offen")
            q.append("t")

    def touch_w(b):
        A(f"""s_lshl_b32 s{S_T0}, s{S_BP}, 17
        s_add_u32 s{S_T0}, s{S_T0}, {b << 19}
        buffer_load_dword v{LPOLL}, v{LTO}, {srd(sWO)}, s{S_T0} offen""")
        q.append("t")

    def touch_b(b):
        A(f"s_mov_b32 s{S_T0}, {b * 98304}\nbuffer_load_dword v{LPOLL}, v{LTB}, {srd(sWS)}, s{S_T0} offen sc1")
        q.append("t")

    coop = [int(x) for x in str(cfg.coop).split(".")] if cfg.coop else []
    spre = [int(x) for x in str(cfg.spre).split(".")] if cfg.spre else []
    sdone = [0]

    def scalar_pre():
        for _ in range(spre.pop(0) if spre else 0):
            n, r = divmod(sdone[0], 32)
            if n > 3:
                break
            if r == 0:
                A(f"""s_add_u32 s{S_T0}, s{S_NU}, {2 * n + 1}
                s_and_b32 s{S_T0}, s{S_T0}, 7
                s_lshl_b32 s{S_T0}, s{S_T0}, 18
                s_add_u32 s{S_T0}, s{S_T0}, s{S_DW}
                s_add_u32 s{S_SB + 2 * (n & 1)}, s12, s{S_T0}
                s_addc_u32 s{S_SB + 2 * (n & 1) + 1}, s13, 0""")
            A(f"s_load_dword s{S_SB + 4}, s[{S_SB + 2 * (n & 1)}:{S_SB + 2 * (n & 1) + 1}], {(r >> 2) * 2048 + (r & 3) * 64}")
            sdone[0] += 1

    def coop_after(m):
        for b, mm in enumerate(coop):
            if mm == m:
                touch_b(b + 1)
                touch_w(b + 1)

    def issue_ob(m, tag):
        A(f"""{o_index(m)}
        s_add_u32 m0, s{S_LWB}, {BRING + ((m - 2) % 4) * BSLOT}
        s_and_b32 s{S_T0}, s{S_T0}, 15
        s_mul_i32 s{S_T0}, s{S_T0}, 24576""")
        for p in range(4):
            dma(LOB, sWS, f"s{S_T0}", p * 1024, cfg.pol_ob, tag)
        A(f"s_add_u32 m0, s{S_LWB}, {BRING + ((m - 2) % 4) * BSLOT + 4096}\ns_add_u32 s{S_T1}, s{S_T0}, 4096")
        for p in range(2):
            dma(LOB, sWS, f"s{S_T1}", p * 1024, cfg.pol_ob, tag)

    nst = [1]

    def stamp():
        if cfg.stamps:
            A(loader_stamp(nst[0]))
            nst[0] += 1

    def barrier():
        if state["lds"]:
            A("s_waitcnt lgkmcnt(0)")
            state["lds"] = False
        A("s_barrier")
        stamp()

    end = lambda n: 0 if n < 16 else min(128, 4 + 8 * (n - 16))
    pre = [int(x) for x in str(pre).split(".")] if pre else []
    pre = [0] * (17 - len(pre)) + pre
    wo_at = [int(x) for x in str(cfg.wo_at).split(".")]
    wtag = lambda m: 33 if m < 2 else 33 + m
    if role == 1:
        A(f"""
        s_lshr_b32 s{S_T0}, s2, 3
        s_and_b32 s{S_T0}, s{S_T0}, 15
        s_lshl_b32 s{S_T0}, s{S_T0}, 2
        s_add_u32 s{S_T0}, s{S_T0}, s{S_W}
        s_lshl_b32 s{S_T1}, s{S_T0}, 13
        s_lshl_b32 s{S_T2}, s{S_HG}, 11
        s_add_u32 s{S_T1}, s{S_T1}, s{S_T2}
        v_lshrrev_b32 v3, 4, v0
        v_and_b32 v4, 15, v0
        v_lshl_add_u32 v5, v3, 19, s{S_T1}
        v_lshl_add_u32 v5, v4, 7, v5
        s_mul_i32 s{S_T1}, s{S_T0}, {6 * 2048}
        v_lshrrev_b32 v3, 3, v0
        v_min_u32 v3, 5, v3
        v_and_b32 v4, 7, v0
        v_lshl_add_u32 v6, v3, 11, s{S_T1}
        v_lshl_add_u32 v6, v4, 7, v6
        """)
        for qt in range(4):
            if qt % 2 == 0:
                A(f"buffer_load_dword v{LPOLL}, v6, {srd(sX)}, 0 offen offset:{(qt // 2) * 1024}")
                q.append("t")
            A(f"s_mov_b32 s{S_T0}, {qt << 21}\nbuffer_load_dword v{LPOLL}, v5, {srd(sWQ)}, s{S_T0} offen")
            q.append("t")
        A(f"s_mov_b32 s{S_T0}, {384 * 2048}")
        for h in range(2):
            A(f"buffer_load_dword v{LPOLL}, v6, {srd(sX)}, s{S_T0} offen offset:{h * 1024}")
            q.append("t")
        pre[0] = cfg.s1pre
        issue_kv(pre[0], -1, cfg.s1win)
    if cfg.afirst and sfx == "a":
        pre[0] = cfg.afirst
        issue_kv(pre[0], -1, cfg.bwin or 8)
    if cfg.stag or (cfg.afirst and sfx == "a"):
        issue_q(0)
        issue_q(1)
    base = sum(pre)
    issue_kv(pre[0], -1, 0)
    nq = 2
    for k in range(0, 33):
        wait(k)
        barrier()
        if not cfg.lazyp:
            unpark(k)
        while nq <= min(15, k + 1 + cfg.qd):
            issue_q(nq)
            nq += 1
        w = ((cfg.winb or cfg.win) if sfx == 'b' else cfg.win) if role is None else (cfg.s1win if role else (cfg.s0win if k < cfg.s0sw else cfg.s0late))
        if cfg.winlate and k >= cfg.late and sfx != 'b':
            w = cfg.winlate
        win = 0 if k < 16 else (max(w, cfg.win16) if k == 16 else w)
        lead = min(128, end(k + 1) + (win or 8)) if k >= 14 else 0
        if k <= 15:
            ramp = sum(pre[:k + 2]) + (4 * max(0, k - 13) if role == 1 else 0)
        else:
            b0 = base + cfg.win16 + (8 if role == 1 else 0)
            last = (cfg.lastb or cfg.last) if sfx == 'b' else cfg.last
            ramp = min(128, b0 + ((128 - b0) * (k - 16)) // (last - 16))
        issue_kv(max(lead, ramp if base else 0), k, win or cfg.bwin)
        if cfg.lazyp:
            unpark(k, 99, True)
            unpark(k - 1)
        if k == 20 and cfg.oord:
            A(f"""s_add_u32 s{S_T2}, s{S_BP}, s{S_J}
            s_and_b32 s{S_T2}, s{S_T2}, {cfg.oord - 1}
            s_mul_i32 s{S_T2}, s{S_T2}, {8 // cfg.oord}
            s_sub_u32 s{S_T3}, s{S_J}, s{S_T2}
            s_and_b32 s{S_T3}, s{S_T3}, 7
            s_lshl_b32 s{S_T2}, s{S_T2}, 1""")
        for h, tk in enumerate(str(cfg.ptouch).split(".") if cfg.ptouch else []):
            if int(tk) == k:
                throttle(win)
                A(f"""s_mul_i32 s{S_T0}, s{S_J}, 49152
                s_add_u32 s{S_T0}, s{S_T0}, {h * 24576}
                v_mul_u32_u24 v3, 0x70, v0
                v_add_u32 v3, v3, v{LOB}
                s_mov_b32 exec_hi, 0xffff
                buffer_load_dword v{LPOLL}, v3, {srd(sWS)}, s{S_T0} offen
                s_mov_b64 exec, -1""")
                q.append("t")
        if k == 26:
            A(f"buffer_load_dword v{LPOLL}, v{LFLAG}, {srd(sWS)}, 0 offen sc1")
            q.append("t")
        for m in range(4):
            if wo_at[m] == k and not (m < 2 and m >= 2 - cfg.w1late):
                issue_ow(m, wtag(m), win if state["next"] < 128 else (cfg.wwin if k == 32 else 0))
        if coop and k == cfg.coopw0:
            touch_w(0)
    assert state["next"] == 128 and not parked
    if spre:
        A(f"""s_lshl_b32 s{S_DW}, s{S_HG}, 21
        s_lshl_b32 s{S_T0}, s{S_BP}, 16
        s_add_u32 s{S_DW}, s{S_DW}, s{S_T0}
        s_lshl_b32 s{S_T0}, s{S_W}, 14
        s_add_u32 s{S_DW}, s{S_DW}, s{S_T0}
        s_lshl_b32 s{S_T0}, s{S_NU}, 8
        s_add_u32 s{S_DW}, s{S_DW}, s{S_T0}""")
    if cfg.w1late:
        A("s_barrier")
        if cfg.w1late == 2:
            issue_ow(0, 33)
        issue_ow(1, 34)
    wait(33)
    barrier()
    if cfg.w1late:
        wait(34)
        A("s_barrier")
    def finish():
        if cfg.stamps:
            A(f"""s_lshl_b32 s{S_T0}, s2, 3
            s_add_u32 s{S_T0}, s{S_T0}, s{S_WAVE}
            s_lshl_b32 s{S_T0}, s{S_T0}, 8
            s_add_u32 s{S_T0}, s{S_T0}, {WS_STAMP}
            v_lshl_add_u32 v1, v0, 2, s{S_T0}
            buffer_store_dword v{LSTAMP}, v1, {srd(sWS)}, 0 offen""")
        A("s_endpgm")
        return tr

    def need_head(m):
        A(f"""{o_index(m)}
        s_bfe_u32 s{S_T1}, s{S_T0}, 0x30001
        s_mov_b32 s{S_SPIN}, 0""")
        n = f"L_need{m}{sfx}"
        loop = P.add(f"""{n}:
        s_bitcmp1_b32 s{S_MASK}, s{S_T1}
        s_cbranch_scc1 {n}_done
        buffer_load_dword v{LPOLL}, v{LFLAG}, {srd(sWS)}, 0 offen sc1
        s_add_u32 s{S_SPIN}, s{S_SPIN}, 1
        s_waitcnt vmcnt(0)
        v_cmp_eq_u32 vcc, 1, v{LPOLL}
        s_mov_b32 s{S_MASK}, vcc_lo
        s_cmp_lt_u32 s{S_SPIN}, {SPIN_MAX}
        s_cbranch_scc1 {n}""")
        tr.extend(loop + loop)
        A(f"{n}_done:")

    if cfg.bdirect:
        for m in (2, 3):
            if wo_at[m] == 33:
                issue_ow(m, 33 + m)
        A(f"s_mov_b32 s{S_MASK}, 0")
        need_head(2)
        A("s_barrier")
        stamp()
        for m in (2, 3):
            if wo_at[m] == 34:
                issue_ow(m, 33 + m)
        nm = 4
        for k in range(35, 49):
            if (k - 31) % 2 == 0 and k - 31 <= 14:
                need_head(k - 31)
            wait(k)
            barrier()
            while nm <= min(15, k + 1 + cfg.od - 33):
                issue_ow(nm, nm + 33)
                nm += 1
        return finish()
    if wo_at[2] == 33:
        issue_ow(2, 35)
    if cfg.prog:
        A(f"s_mov_b32 s{S_MASK}, 0")
        need_head(2)
    else:
        poll_loop(P, tr, "poll1" + sfx, LPOLL, LFLAG)
        del q[:]
        q.append("poll")
    stamp()
    if coop:
        touch_b(0)
    issue_ob(2, 35)
    if wo_at[2] == 34:
        issue_ow(2, 35)
    coop_after(2)
    if wo_at[3] == 33:
        issue_ow(3, 36)
    issue_ob(3, 36)
    if wo_at[3] == 34:
        issue_ow(3, 36)
    coop_after(3)
    scalar_pre()
    nm = 4
    for k in range(35, 49):
        wait(k)
        barrier()
        while nm <= min(15, k + 1 + cfg.od - 33):
            issue_ow(nm, nm + 33)
            if cfg.prog and nm % 2 == 0:
                need_head(nm)
            issue_ob(nm, nm + 33)
            coop_after(nm)
            nm += 1
        scalar_pre()
    return finish()


def order(n, snake):
    return [(T, t) for T in range(n) for t in (reversed(T3) if snake and T & 1 else T3)]


def gemm_reads(b, s, kind, with_b=True):
    r = []
    if with_b:
        for t in T3:
            if kind == "q":
                r.append(f"ds_read_b128 {v4(FB(b, t))}, v{AB(s)} offset:{t * 2048}")
            else:
                r.append(f"ds_read_b128 {v4(FB(b, t))}, v{AB(0)} offset:{s * 3072 + t * 1024}")
    for T in range(8):
        for u in range(2):
            off = s * 8192 + u * (1024 if kind == "q" else 4096)
            r.append(f"ds_read_b64_tr_b16 {v2(FA(b, T) + 2 * u)}, v{AW(T)} offset:{off}")
    return r


def gemm_mfma(cfg, b, bsrc=None, zero=False):
    return [f"{MFMA} {v4(ACC(T, t))}, {v4(FA(b, T))}, {v4(bsrc(t) if bsrc else FB(b, t))}, {'0' if zero else v4(ACC(T, t))}"
            for T, t in order(8, cfg.snake)]


def gemm_loop(P, tr, cfg, kind, label, iters):
    sal = [f"s_add_u32 s{S_SLOT}, s{S_SLOT}, 1", f"s_and_b32 s{S_SLOT}, s{S_SLOT}, 3", f"s_cselect_b32 s{S_DW}, {WSLOT}, s{S_T2}"]
    if kind == "o":
        sal.append(f"s_cmp_lg_u32 s{S_SLOT}, 2")
    sal.append(f"s_cselect_b32 s{S_DB}, {BSLOT}, s{S_T3}")
    val = [f"v_add_u32 v{AB(s)}, s{S_DB}, v{AB(s)}" for s in range(2 if kind == "q" else 1)]
    val += [f"v_add_u32 v{AW(T)}, s{S_DW}, v{AW(T)}" for T in range(8)]
    nb = len(val) - 8
    hook = [(18, f"s_cmp_eq_u32 s{S_CNT}, s{S_FLAG}"), (19, "s_cbranch_scc1 L_count"), (19, "L_counted:")] if kind == "q" else []
    if kind == "o" and cfg.wb:
        hook = [(18, f"s_cmp_eq_u32 s{S_CNT}, s{S_FLAG}"), (19, "s_cbranch_scc1 L_wb"), (19, "L_wbdone:")]
    h0 = weave(gemm_mfma(cfg, 0), spread(gemm_reads(1, 1, kind), 0, 18) + spread(sal, 0, 4) + spread(val[:nb + 6], 12, 19)
               + spread(val[nb + 6:], 20, 21) + [(22, "s_waitcnt lgkmcnt(0)"), (22, "s_barrier")])
    h1 = weave(gemm_mfma(cfg, 1), spread(gemm_reads(0, 0, kind), -1, 17)
               + hook + [(20, f"s_sub_u32 s{S_CNT}, s{S_CNT}, 1"), (20, f"s_cmp_lg_u32 s{S_CNT}, 0")])
    tr.extend(P.add(f"s_mov_b32 s{S_CNT}, {iters}\ns_waitcnt lgkmcnt(0)"))
    if kind == "q":
        tr.extend(P.add(".p2align 3"))
        body = P.add([label + ":"] + h0 + h1 + ["s_waitcnt lgkmcnt(0)", f"s_cbranch_scc1 {label}"])
        tr.extend(body + body)
        return
    h0 = weave(gemm_mfma(cfg, 0), spread(gemm_reads(1, 1, kind), 0, 18) + spread(sal, 0, 4) + spread(val[:nb + 6], 11, 18)
               + spread(val[nb + 6:], 19, 19) + [(6, f"s_sub_u32 s{S_CNT}, s{S_CNT}, 1"), (7, f"s_cmp_eq_u32 s{S_CNT}, 0"),
                                                  (20, f"s_cbranch_scc1 {label}_out"), (22, "s_waitcnt lgkmcnt(0)"), (22, "s_barrier")])
    h1 = weave(gemm_mfma(cfg, 1), spread(gemm_reads(0, 0, kind), -1, 17) + hook)
    cut = h0.index(f"s_cbranch_scc1 {label}_out") + 1
    tr.extend(P.add(".p2align 3"))
    first = P.add([label + ":"] + h0[:cut])
    rest = P.add(h0[cut:] + h1 + ["s_waitcnt lgkmcnt(0)", f"s_branch {label}"])
    tr.extend(first + rest + first + P.add([label + "_out:"] + gemm_mfma(cfg, 0)[21:]))


def k_reads(tile):
    return [f"ds_read_b128 {v4(FR(kt * 4 + s))}, v{AK(s)} offset:{(tile % 3) * ASLOT + kt * 4096}" for kt in range(2) for s in range(4)]


def v_reads(T, tile):
    return [f"ds_read_b64_tr_b16 {v2(FR(T) + 2 * u)}, v{AV(T)} offset:{(tile % 3) * ASLOT + u * 4096}" for u in range(2)]


def qk_mfma(first=False):
    c0 = lambda t: "0" if first else v4(NM(t))
    return [f"{MFMA} {v4(SS(kt, t))}, {v4(FR(kt * 4 + s))}, {v4(QF(s, t))}, {c0(t) if s == 0 else v4(SS(kt, t))}"
            for kt in range(2) for s in range(4) for t in T3]


def pv_mfma(cfg):
    return [f"{MFMA} {v4(ACC(T, t))}, {v4(FR(T))}, {v4(PP(t))}, {v4(ACC(T, t))}" for T, t in order(8, cfg.snake)]


def xlane(op, regs, tmps):
    out = []
    for sw in ("v_permlane32_swap_b32", "v_permlane16_swap_b32"):
        out += [f"v_mov_b32 v{x}, v{r}" for r, x in zip(regs, tmps)]
        out += [f"{sw} v{r}, v{x}" for r, x in zip(regs, tmps)]
        out += [f"{op} v{r}, v{r}, v{x}" for r, x in zip(regs, tmps)]
    return out


def row_max():
    o = [f"v_max3_f32 v{VD(t)}, v{SS(0, t)}, v{SS(0, t) + 1}, v{SS(0, t) + 2}" for t in T3]
    o += [f"v_max3_f32 v{VD(t)}, v{SS(0, t) + 3}, v{SS(1, t)}, v{VD(t)}" for t in T3]
    o += [f"v_max3_f32 v{VD(t)}, v{SS(1, t) + 1}, v{SS(1, t) + 2}, v{VD(t)}" for t in T3]
    o += [f"v_max_f32 v{VD(t)}, v{SS(1, t) + 3}, v{VD(t)}" for t in T3]
    return o + xlane("v_max_f32", [VD(t) for t in T3], [VT(t) for t in T3])


def shift_scores():
    return [f"v_sub_f32 v{SS(kt, t) + r}, v{SS(kt, t) + r}, v{VD(t)}" for kt in range(2) for t in T3 for r in range(4)]


def guard_max(kt):
    r = [SS(kt, t) + k for t in T3 for k in range(4)]
    if kt == 0:
        o = [f"v_max3_f32 v{VX}, v{r[0]}, v{r[1]}, v{r[2]}"]
        o += [f"v_max3_f32 v{VX}, v{r[k]}, v{r[k + 1]}, v{VX}" for k in range(3, 11, 2)]
        return o + [f"v_max_f32 v{VX}, v{r[11]}, v{VX}"]
    return [f"v_max3_f32 v{VX}, v{r[k]}, v{r[k + 1]}, v{VX}" for k in range(0, 12, 2)]


def p_cvt(kt, h=None):
    return [f"v_cvt_pk_bf16_f32 v{PP(t) + 2 * kt + hh}, v{SS(kt, t) + 2 * hh}, v{SS(kt, t) + 2 * hh + 1}"
            for hh in ((0, 1) if h is None else (h,)) for t in T3]


def exp_sum(cfg, kt, h):
    o = [f"v_exp_f32 v{SS(kt, t) + 2 * h + r}, v{SS(kt, t) + 2 * h + r}" for t in T3 for r in range(2)]
    if cfg.pk:
        o += [f"v_pk_add_f32 {v2(VL(t))}, {v2(VL(t))}, {v2(SS(kt, t) + 2 * h)}" for t in T3]
    else:
        o += [f"v_add_f32 v{VL(t) + r}, v{VL(t) + r}, v{SS(kt, t) + 2 * h + r}" for t in T3 for r in range(2)]
    return o


def exps(kt, h):
    return [f"v_exp_f32 v{SS(kt, t) + 2 * h + r}, v{SS(kt, t) + 2 * h + r}" for t in T3 for r in range(2)]


def pk_sum(kt, h):
    return [f"v_pk_add_f32 {v2(VL(t))}, {v2(VL(t))}, {v2(SS(kt, t) + 2 * h)}" for t in T3]


def rescale(by):
    return [f"v_mul_f32 v{ACC(T, t) + r}, v{ACC(T, t) + r}, v{by(t)}" for T in range(8) for t in T3 for r in range(4)]


def acc_to_frag(s, QF=QF):
    return [f"v_cvt_pk_bf16_f32 v{QF(s, t) + 2 * u + h}, v{ACC(2 * s + u, t) + 2 * h}, v{ACC(2 * s + u, t) + 2 * h + 1}"
            for u in range(2) for t in T3 for h in range(2)]


def compute(P, cfg):
    tr = []
    A = lambda t: tr.extend(P.add(t))
    nst = [0]

    def stamp():
        if cfg.stamps:
            A(f"s_memrealtime s[{S_ST + 2 * nst[0]}:{S_ST + 2 * nst[0] + 1}]\ns_waitcnt lgkmcnt(0)")
            nst[0] += 1

    A(f"L_compute:\ns_getpc_b64 s[{S_PC}:{S_PC + 1}]\nL_text:\n{late_ids(cfg)}\ns_waitcnt lgkmcnt(0)")
    A(make_srd(((sOUT, 14, 768 * 4096), (sWS, 18, 256 << 20), (sDBG, 16, 256))))
    if cfg.prio:
        A(f"s_setprio {cfg.prio}")
    A(f"""
    s_getreg_b32 s{S_XCC}, hwreg(HW_REG_XCC_ID, 0, 3)
    s_cmp_lg_u32 s{S_W}, 0
    s_cbranch_scc1 L_noclear
    s_lshl_b32 s{S_T0}, s2, 11
    s_add_u32 s{S_T0}, s{S_T0}, {WS_INBOX}
    v_lshlrev_b32 v1, 4, v0
    v_mov_b64 v[4:5], 0
    v_mov_b64 v[6:7], 0
    buffer_store_dwordx4 v[4:7], v1, {srd(sWS)}, s{S_T0} offen sc1
    buffer_store_dwordx4 v[4:7], v1, {srd(sWS)}, s{S_T0} offen offset:1024 sc1
    {code_touch(0, 110, 111) if cfg.ctouch else ""}
    L_noclear:
    s_lshl_b32 s{S_XCC}, s{S_XCC}, 2
    v_and_b32 v{V_TMP}, 3, v0
    v_xor_b32 v{V_TMP}, s{S_GRP}, v{V_TMP}
    v_lshlrev_b32 v{V_TMP}, 2, v{V_TMP}
    v_lshrrev_b32 v100, 4, v0
    v_and_b32 v101, 15, v0
    v_bfe_u32 v102, v0, 2, 2
    v_bfe_u32 v103, v0, 1, 1
    v_and_b32 v104, 1, v0
    v_lshlrev_b32 v109, 4, v0
    """)
    A(f"""
    v_lshl_add_u32 v105, v100, 3, v102
    v_lshlrev_b32 v105, 8, v105
    v_lshl_add_u32 v105, v104, 3, v105
    v_lshl_add_u32 v105, v103, 4, v105
    v_and_b32 v106, 1, v100
    v_lshl_add_u32 v106, v106, 2, v102
    v_lshl_add_u32 v{AW(0)}, v106, 5, v105
    """)
    for T in range(1, 8):
        A(f"v_xor_b32 v{AW(T)}, {T << 5}, v{AW(0)}")
    A(f"""
    s_add_u32 s{S_T0}, s{S_LWB}, {BRING}
    v_lshl_add_u32 v105, v101, 7, s{S_T0}
    v_lshrrev_b32 v107, 1, v101
    v_xor_b32 v107, v107, v100
    v_lshl_add_u32 v{AB(0)}, v107, 4, v105
    v_xor_b32 v{AB(1)}, 64, v{AB(0)}
    """)
    A(f"""
    s_lshr_b32 s{S_T0}, s{S_W}, 1
    s_lshl_b32 s{S_T0}, s{S_T0}, 13
    s_add_u32 s{S_T0}, s{S_T0}, {KRING}
    v_lshl_add_u32 v105, v101, 8, s{S_T0}
    v_lshrrev_b32 v107, 1, v100
    v_and_b32 v108, 1, v100
    v_lshl_add_u32 v107, v108, 1, v107
    v_xor_b32 v107, v107, v101
    v_lshl_add_u32 v{AK(0)}, v107, 4, v105
    """)
    for s in range(1, 4):
        A(f"v_xor_b32 v{AK(s)}, {s << 6}, v{AK(0)}")
    A(f"""
    s_add_u32 s{S_T0}, s{S_T0}, {VRING - KRING}
    v_lshl_add_u32 v105, v100, 2, v102
    v_lshl_add_u32 v105, v105, 8, s{S_T0}
    v_lshl_add_u32 v105, v104, 3, v105
    v_lshl_add_u32 v105, v103, 4, v105
    v_lshl_add_u32 v{AV(0)}, v106, 5, v105
    """)
    for T in range(1, 8):
        A(f"v_xor_b32 v{AV(T)}, {T << 5}, v{AV(0)}")
    A(f"s_mov_b32 s{S_C}, {f32(1.4426950408889634 / 128 ** 0.5)}\ns_mov_b32 s{S_C + 1}, s{S_C}")
    A(f"s_mov_b32 s{S_T2}, {-3 * WSLOT}\ns_mov_b32 s{S_T3}, {-3 * BSLOT}\ns_mov_b32 s{S_SLOT}, 0")
    A([f"v_pk_mov_b32 {v2(r)}, 0, 0" for r in range(0, 96, 2)])
    if cfg.tag or cfg.oclear:
        A([f"v_mov_b32 v{r}, -1" for r in range(112, 116)])
    if cfg.tag:
        A(f"""s_mul_i32 s{S_T0}, s{S_W}, 9216
        s_mul_i32 s{S_T1}, s2, 36864
        s_add_u32 s{S_T0}, s{S_T0}, s{S_T1}
        s_add_u32 s{S_T0}, s{S_T0}, {WS_X}""")
        for k in range(9):
            if k and k % 4 == 0:
                A(f"s_add_u32 s{S_T0}, s{S_T0}, 4096")
            A(f"buffer_store_dwordx4 v[112:115], v109, {srd(sWS)}, s{S_T0} offen offset:{(k % 4) * 1024} sc1")
    if cfg.oclear:
        A(f"""s_mul_i32 s{S_T0}, s{S_GRP}, 393216
        s_mul_i32 s{S_T1}, s{S_J}, 49152
        s_add_u32 s{S_T0}, s{S_T0}, s{S_T1}
        s_mul_i32 s{S_T1}, s{S_W}, 12288
        s_add_u32 s{S_T0}, s{S_T0}, s{S_T1}""")
        for k in range(12):
            if k and k % 4 == 0:
                A(f"s_add_u32 s{S_T0}, s{S_T0}, 4096")
            A(f"buffer_store_dwordx4 v[112:115], v109, {srd(sWS)}, s{S_T0} offen offset:{(k % 4) * 1024} sc1")
    count = f"""s_lshl_b32 s{S_T0}, 1, s{S_XCC}
    v_mov_b32 v{V_CHK}, s{S_T0}
    s_mov_b64 exec, 1
    s_waitcnt vmcnt(0)
    buffer_atomic_add v{V_CHK}, v{V_TMP}, {srd(sDBG)}, 0 offen
    s_mov_b64 exec, -1""".split("\n")
    rare = [["L_count:", f"s_cmp_eq_u32 s{S_FLAG}, {cfg.fetch_at}", "s_cbranch_scc1 L_fetch", f"s_mov_b32 s{S_FLAG}, {cfg.fetch_at}",
             "s_waitcnt vmcnt(0)", f"s_cmp_lg_u32 s{S_W}, 0", "s_cbranch_scc1 L_counted"] + count + ["s_branch L_counted",
             "L_fetch:", f"buffer_load_dword v{V_CHK}, v{V_TMP}, {srd(sDBG)}, 0 offen sc1", "s_branch L_counted"]]
    if cfg.latefetch:
        assert not (cfg.tag or cfg.oclear or cfg.stag)
        rare = [["L_count:"] + count + ["s_branch L_counted"]]
        A(f"""s_lshr_b32 s{S_T0}, s2, {cfg.spreadsh}
        s_and_b32 s{S_T0}, s{S_T0}, {cfg.spreadc}
        s_sub_u32 s{S_T0}, {cfg.count_at}, s{S_T0}
        s_cmp_eq_u32 s{S_W}, {4 if cfg.nocount else 0}
        s_cselect_b32 s{S_FLAG}, s{S_T0}, 0""")
    else:
        A(f"s_cmp_eq_u32 s{S_W}, 0\ns_cselect_b32 s{S_FLAG}, {cfg.count_at}, {cfg.count_at + 1}")
    assert not (cfg.stag and (cfg.tag or cfg.oclear))
    if cfg.stag:
        A([f"s_cmp_ge_u32 s{S_BP}, 2", f"s_cselect_b32 s{S_T1}, s{S_FLAG}, 0", f"s_cmp_lg_u32 s{S_T1}, {cfg.count_at}", "s_cbranch_scc1 L_nocount"]
          + count + [f"s_mov_b32 s{S_FLAG}, {cfg.fetch_at}", "L_nocount:"])
    A("s_barrier")
    A(gemm_reads(0, 0, "q"))
    gemm_loop(P, tr, cfg, "q", "L_qloop", 16)
    A(k_reads(0))
    def judge(v):
        return f"""v_lshrrev_b32 v{VT(0)}, 4, v{v}
        v_and_b32 v{VT(0)}, 0x0f0f0f0f, v{VT(0)}
        v_and_b32 v{VT(1)}, 0x0f0f0f0f, v{v}
        v_add_u32 v{VT(0)}, v{VT(0)}, v{VT(1)}
        v_sad_u8 v{VT(0)}, v{VT(0)}, 0, 0
        v_readfirstlane_b32 s{S_T1}, v{v}
        v_cmp_ne_u32 vcc, 8, v{VT(0)}
        s_lshl_b32 s{S_T0}, 8, s{S_XCC}
        s_cmp_eq_u32 s{S_T0}, s{S_T1}
        s_cselect_b32 s{S_FLAG}, {cfg.local}, 0
        s_cmp_eq_u64 vcc, 0
        s_cselect_b32 s{S_FLAG}, s{S_FLAG}, 2""".split("\n")

    dbgaddr = lambda v: [f"v_and_b32 v{v}, 3, v{V_TMP}", f"v_xor_b32 v{v}, s{S_GRP}, v{v}", f"v_lshlrev_b32 v{v}, 2, v{v}"]
    ahook = []
    if cfg.latefetch:
        ahook = [f"s_cmp_le_u32 s{S_CNT}, 2", "s_cbranch_scc1 L_ahook", "L_ahooked:"]
        rare.append(["L_ahook:", f"s_cmp_eq_u32 s{S_CNT}, 1", "s_cbranch_scc1 L_judge"] + dbgaddr(VT(0))
                    + [f"buffer_load_dword v{V_CHK}, v{VT(0)}, {srd(sDBG)}, 0 offen sc1", "s_branch L_ahooked", "L_judge:", "s_waitcnt vmcnt(0)"]
                    + judge(V_CHK) + ([f"s_mov_b32 s{S_FLAG}, 1"] if cfg.nocount else []) + [f"v_mov_b32 v{V_CHK}, 1", "s_branch L_ahooked"])
    else:
        A(["s_waitcnt vmcnt(0)"] + judge(V_CHK))
    A([f"v_pk_mul_f32 {v2(r)}, {v2(r)}, s[{S_C}:{S_C + 1}]" for r in range(0, 96, 2)])

    def q_frag(s):
        return acc_to_frag(s) + [f"v_permlane16_swap_b32 v{QF(s, t) + h}, v{QF(s, t) + 2 + h}" for t in T3 for h in range(2)]

    qk0 = qk_mfma(True)
    qk0 = [qk0[kt * 12 + s * 3 + t] for s in range(4) for kt in range(2) for t in T3]
    zero = [f"v_mov_b64 {v2(r)}, 0" for r in range(0, 96, 2)]
    addr = f"""{lane_id(V_TMP)}
    s_mul_i32 s{S_T0}, s{S_GRP}, 393216
    s_mul_i32 s{S_T1}, s{S_J}, 49152
    s_add_u32 s{S_T0}, s{S_T0}, s{S_T1}
    s_add_u32 s{S_T0}, s{S_T0}, s{S_LWB}
    v_lshl_add_u32 v{V_OST}, v{V_TMP}, 4, s{S_T0}
    s_andn2_b32 s{S_T0}, s2, 0x38
    s_lshl_b32 s{S_T0}, s{S_T0}, 11
    s_lshl_b32 s{S_T1}, s{S_J}, 2
    s_add_u32 s{S_T0}, s{S_T0}, s{S_T1}
    s_lshl_b32 s{S_T1}, s{S_W}, 9
    s_add_u32 s{S_T0}, s{S_T0}, s{S_T1}
    s_add_u32 s{S_T0}, s{S_T0}, {WS_INBOX}
    v_lshl_add_u32 v{V_FLG}, v{V_TMP}, 14, s{S_T0}
    v_mov_b32 v{V_CHK}, 1""".split("\n")
    A(q_frag(0))
    A(weave(qk0, spread(addr, 0, 20) + [(6 * s - 6 + k // 3, x) for s in range(1, 4) for k, x in enumerate(q_frag(s))] + spread(zero[:12], 18, 23)))
    A(zero[12:20])
    A(row_max())
    A([f"v_pk_add_f32 {v2(SS(kt, t) + r)}, {v2(SS(kt, t) + r)}, {v2(VD(t) & ~1)} op_sel:[0,{VD(t) & 1}] op_sel_hi:[1,{VD(t) & 1}] neg_lo:[0,1] neg_hi:[0,1]"
       for kt in range(2) for t in T3 for r in (0, 2)])
    A([f"v_sub_f32 v{NM(t) + r}, 0, v{VD(t)}" for t in T3 for r in range(4)])
    A([f"v_mov_b64 {v2(VL(t))}, 0" for t in T3])
    A(exps(0, 0) + exps(0, 1) + exps(1, 0))
    A(zero[20:])
    A("s_barrier")
    A(k_reads(1))

    def iteration(i):
        pre = pk_sum(0, 0) + pk_sum(0, 1) + pk_sum(1, 0) + p_cvt(0) + p_cvt(1, 0)
        vr = [x for T in range(8) for x in v_reads(T, i)]
        vgap = list(range(8, 22)) + [23, 24]
        add11 = [f"v_add_f32 v{VL(t) + r}, v{VL(t) + r}, v{SS(1, t) + 2 + r}" for t in T3 for r in range(2)]
        early = exps(0, 0) + exps(0, 1) + exps(1, 0)
        fill = ([(5, "s_waitcnt lgkmcnt(0)"), (22, "s_waitcnt lgkmcnt(4)"), (35, "s_waitcnt lgkmcnt(0)")]
                + ([(12, f"s_sub_u32 s{S_CNT}, s{S_CNT}, 1"), (40, f"s_cmp_lg_u32 s{S_CNT}, 0")] if i == 2 else [])
                + list(zip(vgap, vr)) + list(zip(range(6), exps(1, 1))) + list(zip((6, 6, 7, 7, 8, 9), add11)) + list(zip((10, 11, 11), p_cvt(1, 1)))
                + list(zip(range(16, 22), guard_max(0))) + list(zip((25, 25, 26, 26, 27, 27), guard_max(1)))
                + [(28, f"v_cmp_lt_f32 vcc, s{S_C}, v{VX}"), (29, f"s_cbranch_vccnz L_up_{i}")] + list(zip(range(30, 48), early)))
        mf = qk_mfma() + pv_mfma(cfg)
        rare.append([f"L_up_{i}:", "s_waitcnt lgkmcnt(0)"] + mf[30:] + row_max() + [f"v_max_f32 v{VD(t)}, 0, v{VD(t)}" for t in T3] + shift_scores()
                    + [f"v_exp_f32 v{VA(t)}, -v{VD(t)}" for t in T3]
                    + [f"v_sub_f32 v{NM(t) + r}, v{NM(t) + r}, v{VD(t)}" for t in T3 for r in range(4)]
                    + [f"v_mul_f32 v{VL(t) + r}, v{VL(t) + r}, v{VA(t)}" for t in T3 for r in range(2)]
                    + rescale(VA) + early + [f"s_cmp_lg_u32 s{S_CNT}, 0", f"s_branch L_back_{i}"])
        return pre + ["s_waitcnt lgkmcnt(6)"] + weave(mf, fill) + [f"L_back_{i}:"]

    A(f"s_mov_b32 s{S_C}, {f32(cfg.thr)}\ns_mov_b32 s{S_CNT}, 5\ns_branch L_aenter\n.p2align 3")
    top = P.add(["L_aloop:"] + ahook + ["s_barrier"] + k_reads(1) + ["L_aenter:"])
    body = P.add(iteration(0) + ["s_barrier"] + k_reads(2) + iteration(1) + ["s_barrier"] + k_reads(0) + iteration(2)
                 + ["s_cbranch_scc1 L_aloop"])
    tr.extend(body + top + body)
    A(exps(1, 1) + pk_sum(0, 0) + pk_sum(0, 1) + pk_sum(1, 0) + pk_sum(1, 1))
    A([f"v_add_f32 v{VL(t)}, v{VL(t)}, v{VL(t) + 1}" for t in T3])
    A(xlane("v_add_f32", [VL(t) for t in T3], [VT(t) for t in T3]))
    A([f"v_rcp_f32 v{VL(t)}, v{VL(t)}" for t in T3])
    bc = "op_sel_hi:[1,0]"
    A([f"v_pk_mul_f32 {v2(SS(kt, t) + r)}, {v2(SS(kt, t) + r)}, {v2(VL(t))} {bc}" for kt in range(2) for t in T3 for r in (0, 2)])
    A(p_cvt(0) + p_cvt(1))
    oscale = [f"v_pk_mul_f32 {v2(ACC(T, t) + r)}, {v2(ACC(T, t) + r)}, {v2(VL(t))} {bc}" for T in range(8) for t in T3 for r in (0, 2)]
    A(oscale[:24])
    A("s_barrier")
    A([x for T in range(8) for x in v_reads(T, 15)])
    A(oscale[24:])

    def last_pv(pol):
        def o_out(s):
            return (acc_to_frag(s) + [f"s_mov_b32 s{S_T0}, {(s >> 1) * 24576 + (s & 1) * 3072}"]
                    + [f"buffer_store_dwordx4 {v4(QF(s, t))}, v{V_OST}, {srd(sWS)}, s{S_T0} offen offset:{t * 1024} {pol}" for t in T3])
        fill = []
        for s in range(3):
            o = o_out(s)
            fill += [(6 * s + 12, x) for x in o[12:]] if s < 2 else []
            fill += spread(o[:12], 6 * s + 6, 6 * s + 11)
        return weave(pv_mfma(cfg), fill) + o_out(2)[12:] + o_out(3)

    A([f"s_cmp_lg_u32 s{S_FLAG}, 1", "s_cbranch_scc1 L_far"] + last_pv("") + ["L_near:"])
    rare.append(["L_far:"] + last_pv("sc1")
                + [f"v_and_b32 v{VA(0)}, 3, v{V_TMP}", f"v_xor_b32 v{VA(0)}, s{S_GRP}, v{VA(0)}", f"v_lshlrev_b32 v{VA(0)}, 2, v{VA(0)}",
                   f"s_mov_b32 s{S_SPIN}, 0", "L_rechk:", f"s_cmp_lg_u32 s{S_FLAG}, 2", "s_cbranch_scc1 L_rechk_done",
                   f"buffer_load_dword v{VA(1)}, v{VA(0)}, {srd(sDBG)}, 0 offen sc1", "s_waitcnt vmcnt(0)"] + judge(VA(1))
                + [f"s_add_u32 s{S_SPIN}, s{S_SPIN}, 1", f"s_cmp_lt_u32 s{S_SPIN}, {cfg.chk_max}", "s_cbranch_scc1 L_rechk",
                   "L_rechk_done:", f"s_mov_b32 s{S_FLAG}, 0", "s_branch L_near"])
    stamp()
    if cfg.w1late:
        A("s_barrier")
    fst = f"buffer_store_dword v{V_CHK}, v{V_FLG}, {srd(sWS)}, 0 offen"
    flag = [f"s_cmp_eq_u32 s{S_FLAG}, 0", "s_mov_b64 exec, 0xff", "s_waitcnt vmcnt(0)", "s_cbranch_scc1 L_farflag", fst, "L_flagged:", "s_mov_b64 exec, -1"]
    rare.append(["L_farflag:", fst + " sc1", "s_branch L_flagged"])
    A(f"""
    s_lshl_b32 s{S_T0}, s{S_HG}, 6
    v_and_b32 v{AW(0)}, 0xfff, v{AV(0)}
    v_xor_b32 v{AW(0)}, s{S_T0}, v{AW(0)}
    """)
    for T in range(1, 8):
        A(f"v_xor_b32 v{AW(T)}, {T << 5}, v{AW(0)}")
    A(f"""
    s_add_u32 s{S_T0}, s{S_LWB}, {BRING}
    v_lshl_add_u32 v{AB(0)}, v{V_TMP}, 4, s{S_T0}
    v_mov_b32 v{AK(1)}, 1
    """)
    if cfg.flag_after < 0:
        A(flag)
        stamp()
    A("s_barrier")
    A(gemm_reads(0, 0, "o", with_b=False))
    wstep = [f"v_add_u32 v{AW(T)}, {WSLOT}, v{AW(T)}" for T in range(8)]
    for hs in range(0 if cfg.bdirect else 4):
        if hs == cfg.flag_after:
            A(flag)
            stamp()
        fill = []
        if hs < 3:
            fill += spread(gemm_reads((hs + 1) & 1, (hs + 1) & 1, "o", with_b=False), 0, 15)
        if hs in (0, 2):
            fill += spread(wstep, 16, 23)
        A(weave(gemm_mfma(cfg, hs & 1, bsrc=lambda t: QF(hs, t), zero=(hs == 0)), fill))
    xaddr = (f"""
    s_mul_i32 s{S_T0}, s{S_W}, 9216
    s_add_u32 s{S_T0}, s{S_T0}, {WS_X}
    v_lshl_add_u32 v{AB(1)}, v{V_TMP}, 4, s{S_T0}
    v_and_b32 v{AK(3)}, 3, v{V_TMP}
    s_lshl_b32 s{S_T0}, s{S_W}, 9
    s_add_u32 s{S_T0}, s{S_T0}, {WS_INBOX}
    v_lshl_add_u32 v{AK(2)}, v{AK(3)}, 7, s{S_T0}
    v_xor_b32 v{AK(0)}, s2, v{AK(3)}
    v_lshl_add_u32 v{AK(0)}, v{AK(0)}, 11, v{AK(2)}
    v_max_u32 v{AK(3)}, 1, v{AK(3)}
    s_lshl_b32 s{S_T1}, s2, 11
    s_add_u32 s{S_T0}, s{S_T0}, s{S_T1}
    v_lshl_add_u32 v{AK(2)}, v{AK(3)}, 7, s{S_T0}
    v_and_b32 v{AV(0)}, 15, v{V_TMP}
    v_bfe_u32 v{AV(1)}, v{V_TMP}, 4, 1
    v_bfe_u32 v{AV(2)}, v{V_TMP}, 5, 1
    s_mul_i32 s{S_T0}, s{S_BP}, 192
    s_mul_i32 s{S_T1}, s{S_W}, 48
    s_add_u32 s{S_T0}, s{S_T0}, s{S_T1}
    s_lshl_b32 s{S_T0}, s{S_T0}, 12
    s_lshl_b32 s{S_T1}, s{S_BLK}, 11
    s_add_u32 s{S_T0}, s{S_T0}, s{S_T1}
    s_lshl_b32 s{S_T1}, s{S_NU}, 8
    s_add_u32 s{S_T0}, s{S_T0}, s{S_T1}
    s_lshl_b32 s{S_T1}, s{S_HG}, 6
    s_add_u32 s{S_T0}, s{S_T0}, s{S_T1}
    v_lshl_add_u32 v{AV(0)}, v{AV(0)}, 12, s{S_T0}
    v_lshl_add_u32 v{AV(0)}, v{AV(1)}, 5, v{AV(0)}
    v_lshl_add_u32 v{AV(0)}, v{AV(2)}, 4, v{AV(0)}
    """)
    if not cfg.bdirect:
        A(xaddr + f"s_mov_b32 s{S_SLOT}, 2")
    if cfg.wb:
        A(f"""s_and_b32 s{S_T0}, s2, {cfg.wbmask}
        s_or_b32 s{S_T0}, s{S_T0}, s{S_W}
        s_cselect_b32 s{S_FLAG}, 0, {cfg.wb}""")
        rare.append(["L_wb:", "buffer_wbl2 sc1", "s_branch L_wbdone"])
    XF = QF
    after = []
    mf = gemm_mfma(cfg, 1)
    if cfg.bdirect:
        assert cfg.par in (0, 1) and not cfg.oord and cfg.flag_after in (-1, 1)
        ring = [FB(0, 0), FB(1, 0)] + [QF(s, 0) for s in range(4)]
        BR = lambda h: (lambda t: ring[(h - 4) % 6] + 4 * t)
        rel = [m if not cfg.par else (4 * (m >> 1) + (m & 1) if m < 8 else 4 * ((m - 8) >> 1) + (m & 1) + 2) for m in range(2, 16)]
        tbl = sum(r << (4 * n) for n, r in enumerate(rel))
        nxt = [f"s_add_u32 s{S_BO}, s{S_TBL}, s{S_J2}", f"s_and_b32 s{S_BO}, s{S_BO}, 15", f"s_mul_i32 s{S_BO}, s{S_BO}, 24576",
               f"s_lshr_b64 s[{S_TBL}:{S_TBL + 1}], s[{S_TBL}:{S_TBL + 1}], 4"]
        bload = lambda h: [f"buffer_load_dwordx4 {v4(BR(h)(t))}, v{AV(3) if h & 1 else AB(0)}, {srd(sWS)}, s{S_BO} offen offset:{t * 1024} {cfg.pol_ob}" for t in T3]
        bgaps = [int(x) for x in cfg.bgaps.split(".")]
        sal = [f"s_add_u32 s{S_SLOT}, s{S_SLOT}, 1", f"s_and_b32 s{S_SLOT}, s{S_SLOT}, 3", f"s_cselect_b32 s{S_DW}, {WSLOT}, s{S_T2}"]
        val = [f"v_add_u32 v{AW(T)}, s{S_DW}, v{AW(T)}" for T in range(8)]

        def half(h, extra=()):
            b = h & 1
            fill = []
            if 2 <= h <= 26:
                fill += (list(zip(range(4, 8), nxt)) if b else []) + list(zip(bgaps, bload(h + 5)))
            if b:
                fill += spread(gemm_reads(0, 0, "o", with_b=False), -1, 14) + [(22, "s_waitcnt lgkmcnt(0)")]
            else:
                fill += spread(gemm_reads(1, 1, "o", with_b=False), 0, 15) + list(zip(range(3), sal)) + list(zip((8, 9, 10, 11, 12, 13, 14, 16), val))
                fill += [(22, "s_waitcnt lgkmcnt(0)")] + ([(22, "s_barrier")] if 2 <= h <= 28 or (h == 0 and cfg.w1late) else [])
            if 3 <= h <= 30:
                fill += [(23, f"s_waitcnt vmcnt({3 * min(4, 30 - h)})")]
            return weave(gemm_mfma(cfg, b, bsrc=BR(h), zero=(h == 0)), fill + list(extra))

        A(f"""s_mul_i32 s{S_T0}, s{S_GRP}, 393216
        s_add_u32 s{S_T0}, s{S_T0}, s{S_LWB}
        v_lshl_add_u32 v{AB(0)}, v{V_TMP}, 4, s{S_T0}
        v_add_u32 v{AV(3)}, 3072, v{AB(0)}
        s_mov_b32 s{S_TBL}, {tbl & 0xffffffff}
        s_mov_b32 s{S_TBL + 1}, {tbl >> 32}
        s_lshl_b32 s{S_J2}, s{S_J}, 1
        s_mov_b32 s{S_SLOT}, 0""")
        xa = [x.strip() for x in xaddr.split("\n") if x.strip()]
        A(half(0))
        if cfg.flag_after == 1:
            A(flag)
            stamp()
        A(half(1, spread(xa, 0, 21)))
        A(["s_barrier"] + nxt + bload(4) + bload(5) + nxt + bload(6))
        A(half(2))
        A(f"s_mov_b32 s{S_CNT}, 4\n.p2align 3")
        body = P.add(["L_oloop:"] + half(3) + half(4) + half(5) + half(6) + half(7)
                     + half(8, [(5, f"s_sub_u32 s{S_CNT}, s{S_CNT}, 1"), (6, f"s_cmp_lg_u32 s{S_CNT}, 0")]) + ["s_cbranch_scc1 L_oloop"])
        tr.extend(body + body)
        XF = lambda i, t: QF(0, t) if i == 0 else 144 + ((i - 1) * 3 + t) * 4
        mf = gemm_mfma(cfg, 1, bsrc=BR(31))
        if not cfg.defer:
            for h in range(27, 31):
                A(half(h))
        else:
            rd = lambda h, T, reg: [f"ds_read_b64_tr_b16 {v2(reg + 2 * u)}, v{AW(T)} offset:{(h - 28) * 8192 + u * 4096}" for u in range(2)]
            own = lambda h, T: {27: FA(1, T), 28: FA(0, T), 29: QF(2, 0) + 4 * T, 30: FA(1, T), 31: FA(0, T)}[h]
            ownrd = lambda h: [x for T in range(2) for x in rd(h, T, own(h, T))]
            for h in range(27, 31):
                b = h & 1
                reads = [x for T in range(2, 8) for x in rd(h + 1, T, FA(1 - b, T))] + ownrd(28 + (h - 27) // 2)[2 * (1 - b):2 * (1 - b) + 2]
                fill = spread(reads, -1 if b else 0, 12 if b else 13)
                fill += [(16, "s_waitcnt lgkmcnt(2)")] + ([(16, "s_barrier")] if h == 28 else []) + [(17, f"s_waitcnt vmcnt({3 * (30 - h)})")]
                A(weave(gemm_mfma(cfg, b, bsrc=BR(h))[6:], fill))
            XF = lambda i, t: {0: QF(0, t), 1: FA(0, 2 + t), 2: FA(0, 5 + t), 3: FA(1, 2 + t)}[i]
            late = [f"{MFMA} {v4(ACC(T, t))}, {v4(own(h, T))}, {v4(BR(h)(t))}, {v4(ACC(T, t))}" for h in range(27, 32) for T, t in order(2, cfg.snake)]
            mf = late[:6] + mf[6:]
            after = weave(late[6:], list(zip(range(0, 4), ownrd(30))) + list(zip(range(6, 10), ownrd(31))))
    else:
        A("s_barrier")
        A(gemm_reads(0, 0, "o"))
        gemm_loop(P, tr, cfg, "o", "L_oloop", 14)
    fill = []
    for i in range(1, 4):
        so = [f"s_xor_b32 s{S_T0}, s2, {i}", f"s_mul_i32 s{S_T0}, s{S_T0}, 36864", f"s_add_u32 s{S_T0}, s{S_T0}, {(i - 1) * 3072}"]
        st = [f"buffer_store_dwordx4 {v4(XF(i, t))}, v{AB(1)}, {srd(sWS)}, s{S_T0} offen offset:{t * 1024} sc1" for t in T3]
        fill += [(6 * i + 6, x) for x in st] + list(zip(range(6 * i + 1, 6 * i + 4), so)) + spread(acc_to_frag(i, XF), 6 * i, 6 * i + 5)
    last = [x for g, x in fill if g == 24]
    A(weave(mf[6:] + mf[:6], [(g, x) for g, x in fill if g < 24]) + last)
    stamp()
    A(after)
    xload = lambda k, so: f"buffer_load_dwordx4 {v4(24 + 4 * k)}, v{AB(1)}, {srd(sWS)}, s{so} offen offset:{(k % 3) * 1024} sc1"

    def xadd(i):
        for k in range(3 * i, 3 * i + 3):
            for d in range(4):
                src, dst = 24 + 4 * k + d, ACC(d >> 1, k % 3) + 2 * (d & 1)
                A(f"""v_lshlrev_b32 v64, 16, v{src}
                v_and_b32 v65, 0xffff0000, v{src}
                v_pk_add_f32 {v2(dst)}, {v2(dst)}, v[64:65]""")

    so = (S_T0, S_T1, S_T2)
    xbase = f"s_mul_i32 s{S_T0}, s2, 36864\ns_add_u32 s{S_T1}, s{S_T0}, 3072\ns_add_u32 s{S_T2}, s{S_T0}, 6144"
    if not cfg.tag:
        A(["s_waitcnt vmcnt(0)", "s_mov_b64 exec, 14", f"buffer_store_dword v{AK(1)}, v{AK(0)}, {srd(sWS)}, 0 offen sc1", "s_mov_b64 exec, -1"])
        stamp()
        poll_loop(P, tr, "poll2", V_CHK, AK(2))
        stamp()
        A(xbase)
        A([xload(k, so[k // 3]) for k in range(9)])
        for i in range(3):
            xadd(i)
    else:
        stamp()
        A(xbase)
        A(f"s_mov_b32 s{S_SPIN}, 0")
        if cfg.tag == 2:
            probe = P.add(["L_probe:"] + [xload(3 * i + 2, so[i]) for i in range(3)] + f"""s_add_u32 s{S_SPIN}, s{S_SPIN}, 1
            s_cmp_ge_u32 s{S_SPIN}, {SPIN_MAX}
            s_cbranch_scc1 L_probed
            s_waitcnt vmcnt(0)
            v_max3_u32 v64, v35, v47, v59
            v_cmp_eq_u32 vcc, -1, v64
            s_cbranch_vccnz L_probe""".split("\n"))
            tr.extend(probe + probe)
            A("L_probed:")
        first = [xload(k, so[k // 3]) for k in range(9) if cfg.tag == 1 or k % 3 != 2]
        A(first)
        for i in range(3):
            b = 24 + 12 * i
            chk2 = ([f"v_max3_u32 v64, v{b}, v{b + 1}, v{b + 2}"] + [f"v_max3_u32 v64, v{b + k}, v{b + k + 1}, v64" for k in range(3, 11, 2)]
                    + [f"v_max_u32 v64, v{b + 11}, v64", "v_cmp_eq_u32 vcc, -1, v64"])
            A([f"L_x{i}:"] + chk2 + [f"s_cbranch_vccnz L_xr{i}", f"L_xok{i}:"])
            rare.append([f"L_xr{i}:"] + [xload(k, so[i]) for k in range(3 * i, 3 * i + 3)]
                        + [f"s_add_u32 s{S_SPIN}, s{S_SPIN}, 1", f"s_cmp_lt_u32 s{S_SPIN}, {SPIN_MAX}", "s_waitcnt vmcnt(0)",
                           f"s_cbranch_scc1 L_x{i}", f"s_branch L_xok{i}"])
            if i == 2:
                stamp()
            xadd(i)
    A(acc_to_frag(0))
    A([f"v_permlane16_swap_b32 v{QF(0, t) + h}, v{QF(0, t) + 2 + h}" for t in T3 for h in range(2)])
    if cfg.linout:
        A(f"s_lshl_b32 s{S_T0}, s2, 2\ns_add_u32 s{S_T0}, s{S_T0}, s{S_W}\ns_mul_i32 s{S_T0}, s{S_T0}, 3072\nv_lshl_add_u32 v{AV(0)}, v{V_TMP}, 4, s{S_T0}")
    for t in T3:
        A(f"s_mov_b32 s{S_T0}, {t * (1024 if cfg.linout else 65536)}\nbuffer_store_dwordx4 {v4(QF(0, t))}, v{AV(0)}, {srd(sOUT)}, s{S_T0} offen {cfg.pol_out}")
    if cfg.stamps:
        A("s_waitcnt vmcnt(0)")
        stamp()
        A(f"v_mov_b32 v1, 0")
        for k in range(nst[0]):
            A(f"v_writelane_b32 v1, s{S_ST + 2 * k}, {k}")
        A(f"""s_lshl_b32 s{S_T0}, s2, 3
        s_add_u32 s{S_T0}, s{S_T0}, s{S_WAVE}
        s_lshl_b32 s{S_T0}, s{S_T0}, 8
        s_add_u32 s{S_T0}, s{S_T0}, {WS_STAMP}
        v_lshl_add_u32 v2, v{V_TMP}, 2, s{S_T0}
        buffer_store_dword v1, v2, {srd(sWS)}, 0 offen""")
    A("L_exit:\ns_endpgm")
    blocks = {}
    for blk in rare:
        blocks[blk[0][:-1]] = P.add(blk)
    tr2 = []
    skip = None
    for ins in tr:
        if skip:
            if ins.text == skip + ":":
                skip = None
            else:
                continue
        tr2.append(ins)
        if ins.op.startswith("s_cbranch") and ins.text.split()[1] in blocks:
            blk = blocks[ins.text.split()[1]]
            tr2 += blk
            skip = blk[-1].text.split()[1]
    assert skip is None
    return tr, tr2


def generate(cfg):
    P = Prog()
    pre = P.add(("s_memrealtime s[96:97]\n" if cfg.stamps else "") + "s_cmp_ge_u32 s2, 256\ns_cbranch_scc1 L_exit")
    if cfg.remap:
        pre += P.add("""s_bfe_u32 s4, s2, 0x20003
        s_lshr_b32 s5, s2, 5
        s_and_b32 s2, s2, 7
        s_lshl_b32 s4, s4, 6
        s_lshl_b32 s5, s5, 3
        s_or_b32 s2, s2, s4
        s_or_b32 s2, s2, s5""")
    pre += prologue(P, cfg)
    tl = loader(P, cfg)
    tc, tc2 = compute(P, cfg)
    body = P.finish([pre + tc, pre + tc2] + [pre + t for t in tl])
    if cfg.align:
        body = align8(body)
    return (HEADER + "; @launch grid=(256,1,1) block=(512,1,1) lds=163840\n"
            + '.amdgcn_target "amdgcn-amd-amdhsa--gfx950"\n.text\n'
            + f".globl {NAME}_kernel\n.p2align 8\n.type {NAME}_kernel,@function\n{NAME}_kernel:\n" + body
            + f"""L_text_end:
.section .rodata,"a"
.p2align 6
.amdhsa_kernel {NAME}_kernel
  .amdhsa_next_free_vgpr 256
  .amdhsa_next_free_sgpr 102
  .amdhsa_accum_offset 256
  .amdhsa_group_segment_fixed_size 0
  .amdhsa_kernarg_size 104
  .amdhsa_user_sgpr_count 2
  .amdhsa_user_sgpr_kernarg_segment_ptr 1
  .amdhsa_system_sgpr_workgroup_id_x 1
  .amdhsa_float_denorm_mode_32 3
.end_amdhsa_kernel
""")


def parse(args):
    kw = {}
    for a in args:
        k, v = a.split("=")
        kw[k] = float(v) if k == "thr" else (int(v) if v.lstrip("-").isdigit() and not k.startswith(("pre", "ptouch", "spre", "bgaps")) else v.replace("+", " "))
    return Cfg(**kw)


if __name__ == "__main__":
    open(sys.argv[1], "w").write(generate(parse(sys.argv[2:])))
```

```python
import struct, sys
from asmlib import Prog, weave, spread, balance, align8

NAME = "concat_heads__mha_block_cached__gqa_block_cached__near_ridge"
HEADER = open("cdna_kernels/" + NAME + ".s.ref").read().split("; Override launch")[0]

WS_O, WS_X, WS_INBOX, WS_STAMP, WS_DUMP = 0, 16 << 20, 48 << 20, 200 << 20, 64 << 20
WRING, BRING, KRING, VRING = 0, 65536, 65536, 114688
WSLOT, BSLOT, ASLOT = 16384, 24576, 16384
SPIN_MAX = 400000
T3 = range(3)

S_WAVE, sX, sK, sV, sWQ, sWO, sOUT, sWS, sDBG = 3, 20, 24, 28, 32, 36, 40, 44, 48
S_BLK, S_HG, S_J, S_BP, S_NU, S_W, S_H, S_DB = 52, 53, 54, 55, 56, 57, 58, 59
S_T0, S_T1, S_T2, S_T3, S_CNT, S_DW, S_C, S_SLOT = 60, 61, 62, 63, 64, 65, 66, 68
S_LWB, S_LWW, S_ROT, S_J2, S_SPIN, S_FLAG, S_XCC, S_GRP = 69, 70, 71, 72, 73, 74, 75, 76
S_MASK, S_PC = 77, 78
S_SB = 94
S_TBL, S_BO = 92, 94
S_KR = 67
S_ST = 80
srd = lambda r: f"s[{r}:{r+3}]"
v4 = lambda r: f"v[{r}:{r+3}]"
v2 = lambda r: f"v[{r}:{r+1}]"
f32 = lambda x: "0x%08x" % struct.unpack("<I", struct.pack("<f", x))[0]
MFMA = "v_mfma_f32_16x16x32_bf16"

ACC = lambda T, t: (T * 3 + t) * 4
QF = lambda s, t: 96 + (s * 3 + t) * 4
FA = lambda b, T: 144 + 44 * b + 4 * T
FB = lambda b, t: 144 + 44 * b + 32 + 4 * t
AW = lambda T: 232 + T
AB = lambda s: 240 + s
V_CHK, V_TMP = 242, 243
FR = lambda f: 144 + 4 * f
SS = lambda kt, t: 176 + (kt * 3 + t) * 4
PP = lambda t: 200 + 4 * t
NM = lambda t: 212 + 4 * t
VL = lambda t: 224 + 2 * t
VX = 230
V_OST, V_FLG = 241, 231
VD = lambda t: 232 + t
VT = lambda k: 235 + k
VA = lambda t: 238 + t
AK = lambda s: 244 + s
AV = lambda T: 248 + T


class Cfg:
    def __init__(self, **kw):
        self.pol_x = ""
        self.pol_wq = ""
        self.pol_kv = "nt"
        self.pol_wo = ""
        self.pol_ob = "sc1"
        self.rot = 7
        self.stamps = 0
        self.flag_after = 1
        self.pre = "40.0.0.0.0.0.0.0.0.0.0.4.4"
        self.last = 30
        self.win = 5
        self.win16 = 10
        self.wo_at = "31.31.33.33"
        self.qd = 2
        self.thr = 8.0
        self.local = 1
        self.pk = 0
        self.snake = 1
        self.align = 1
        self.prio = 0
        self.remap = 0
        self.nurot = 1
        self.otouch = 0
        self.stag = 0
        self.s1pre = 36
        self.s1win = 8
        self.s0win = 8
        self.s0late = 8
        self.s0sw = 28
        self.prog = 1
        self.pre1 = '0.0.0.0.0.0.0.0.20.0.12.8.8'
        self.tag = 0
        self.oclear = 0
        self.order = '48c59d26ae37bf'
        self.clear_at = 0
        self.clear_b = 0
        self.krot = 0
        self.ksh = 0
        self.sigma = 5
        self.xtouch = 1
        self.hgrot = 3
        self.lazyp = 2
        self.w1late = 0
        self.linout = 0
        self.spreadc = 0
        self.latefetch = 0
        self.spreadsh = 4
        self.nocount = 0
        self.cls = 3
        self.clsinv = 1
        self.winlate = 0
        self.late = 27
        self.wwin = 0
        self.defer = 1
        self.bdirect = 1
        self.bgaps = '17.19.21'
        self.bwin = 0
        self.afirst = 0
        self.winb = 0
        self.lastb = 0
        self.par = 1
        self.spre = ''
        self.coop = ''
        self.coopw0 = 31
        self.promote = 0
        self.pol_out = ''
        self.ptouch = ''
        self.wb = 0
        self.wbmask = 0xf8
        self.oord = 0
        self.od = 2
        self.ctouch = 1
        self.count_at = 13
        self.fetch_at = 3
        self.chk_max = 50000
        self.__dict__.update(kw)


def o_rel(cfg):
    if cfg.order:
        r = [0, 1] + [int(c, 16) for c in cfg.order]
        assert sorted(r) == list(range(16))
        return r
    return [m if not cfg.par else (4 * (m >> 1) + (m & 1) if m < 8 else 4 * ((m - 8) >> 1) + (m & 1) + 2) for m in range(16)]


def lane_id(v):
    return f"v_mbcnt_lo_u32_b32 v{v}, -1, 0\nv_mbcnt_hi_u32_b32 v{v}, -1, v{v}"


def make_srd(items):
    return "\n".join(f"s_mov_b32 s{r}, s{p}\ns_mov_b32 s{r+1}, s{p+1}\ns_mov_b32 s{r+2}, {n}\ns_mov_b32 s{r+3}, 0x20000" for r, p, n in items)


def prologue(P, cfg):
    return P.add(f"""
    s_bfe_u32 s{S_BLK}, s2, 0x10002
    s_mul_i32 s{S_T0}, s{S_BLK}, 40
    s_load_dwordx8 s[4:11], s[0:1], s{S_T0}
    s_add_u32 s{S_T1}, s{S_T0}, 32
    s_load_dwordx2 s[12:13], s[0:1], s{S_T1}
    s_load_dwordx4 s[16:19], s[0:1], 88
    s_load_dwordx2 s[14:15], s[0:1], 80
    v_lshrrev_b32 v1, 6, v0
    v_and_b32 v0, 63, v0
    s_and_b32 s{S_HG}, s2, 3
    v_readfirstlane_b32 s{S_WAVE}, v1
    s_bfe_u32 s{S_J}, s2, 0x30003
    s_lshr_b32 s{S_BP}, s2, 6
    s_lshl_b32 s{S_H}, s{S_HG}, 3
    s_add_u32 s{S_H}, s{S_H}, s{S_J}
    s_and_b32 s{S_W}, s{S_WAVE}, 3
    s_mul_i32 s{S_LWB}, s{S_W}, 6144
    s_lshl_b32 s{S_LWW}, s{S_W}, 12
    s_cmp_lt_u32 s{S_WAVE}, 4
    s_cbranch_scc1 L_compute
    """)


def late_ids(cfg):
    return f"""s_mul_i32 s{S_NU}, s{S_BP}, {2 * cfg.nurot}
    s_add_u32 s{S_NU}, s{S_NU}, s{S_J}
    s_and_b32 s{S_NU}, s{S_NU}, 7
    {f"s_xor_b32 s{S_NU}, s{S_NU}, s{S_BLK}" if cfg.sigma & 4 else ""}
    {f"s_lshl_b32 s{S_NU}, s{S_NU}, 2" if cfg.sigma & 3 else ""}
    {f"s_lshr_b32 s{S_NU}, {[0, 0x73625140, 0x75643120][cfg.sigma & 3]}, s{S_NU}" if cfg.sigma & 3 else ""}
    {f"s_and_b32 s{S_NU}, s{S_NU}, 7" if cfg.sigma & 3 else ""}
    s_and_b32 s{S_GRP}, s2, 7
    s_lshl_b32 s{S_T1}, s{S_BP}, 3
    s_add_u32 s{S_GRP}, s{S_GRP}, s{S_T1}"""


def x_touch(cfg, vaddr, vdst):
    if cfg.xtouch & 3 == 1:
        return [f"""s_lshr_b32 s{S_T0}, s2, 3
        s_lshl_b32 s{S_T0}, s{S_T0}, 2
        s_add_u32 s{S_T0}, s{S_T0}, s{S_HG}
        s_lshl_b32 s{S_T0}, s{S_T0}, 2
        s_add_u32 s{S_T0}, s{S_T0}, s{S_W}
        s_mul_i32 s{S_T0}, s{S_T0}, 3072
        v_min_u32 v{vaddr}, 23, v0
        v_lshlrev_b32 v{vaddr}, 7, v{vaddr}""", f"buffer_load_dword v{vdst}, v{vaddr}, {srd(sX)}, s{S_T0} offen"]
    return [f"""s_lshr_b32 s{S_T0}, s2, 3
    s_lshl_b32 s{S_T0}, s{S_T0}, 2
    s_add_u32 s{S_T0}, s{S_T0}, s{S_W}
    s_mul_i32 s{S_T0}, s{S_T0}, 12288
    s_add_u32 s{S_T1}, s{S_T0}, 6144
    v_min_u32 v{vaddr}, 47, v0
    v_lshlrev_b32 v{vaddr}, 7, v{vaddr}""", f"buffer_load_dword v{vdst}, v{vaddr}, {srd(sX)}, s{S_T0} offen",
            f"buffer_load_dword v{vdst}, v{vaddr}, {srd(sX)}, s{S_T1} offen"]


def code_touch(lane, vaddr, vdst):
    return f"""s_lshr_b32 s{S_T0}, s2, 3
    s_lshl_b32 s{S_T0}, s{S_T0}, 10
    v_and_b32 v{vaddr}, 7, v{lane}
    v_lshl_add_u32 v{vaddr}, v{vaddr}, 7, s{S_T0}
    v_min_u32 v{vaddr}, L_text_end-L_text-4, v{vaddr}
    global_load_dword v{vdst}, v{vaddr}, s[{S_PC}:{S_PC + 1}]"""


def poll_loop(P, tr, name, vdst, vaddr):
    tr.extend(P.add(f"s_mov_b32 s{S_SPIN}, 0"))
    loop = P.add(f"""L_{name}:
    buffer_load_dword v{vdst}, v{vaddr}, {srd(sWS)}, 0 offen sc1
    s_add_u32 s{S_SPIN}, s{S_SPIN}, 1
    s_cmp_ge_u32 s{S_SPIN}, {SPIN_MAX}
    s_cbranch_scc1 L_{name}_done
    s_waitcnt vmcnt(0)
    v_cmp_ne_u32 vcc, 1, v{vdst}
    s_cbranch_vccnz L_{name}""")
    tr.extend(loop + loop)
    tr.extend(P.add(f"L_{name}_done:"))


LX = lambda p: 8 + p
LW = lambda p: 14 + p
LK = lambda p: 18 + p
LV = lambda p: 22 + p
LWO = lambda p: 24 + p
LOB, LFLAG, LSTAMP, LPOLL = 28, 29, 30, 31
LDSW = lambda h: 1 + h
LTQ, LTO, LTB = 32, 33, 34
LPOOL = 36


def late_setup(A):
    A(f"""
    s_lshr_b32 s{S_T0}, s{S_W}, 1
    s_lshl_b32 s{S_T1}, s{S_BP}, 1
    s_add_u32 s{S_T0}, s{S_T0}, s{S_T1}
    s_lshl_b32 s{S_T0}, s{S_T0}, 5
    s_add_u32 s{S_T0}, s{S_T0}, s{S_H}
    s_lshl_b32 s{S_T0}, s{S_T0}, 17
    s_and_b32 s{S_T1}, s{S_W}, 1
    s_lshl_b32 s{S_T1}, s{S_T1}, 12
    s_add_u32 s{S_T0}, s{S_T0}, s{S_T1}
    v_lshl_add_u32 v5, v1, 8, s{S_T0}
    v_xor_b32 v7, v2, v1
    """)
    for p in range(4):
        A(f"v_xor_b32 v3, {4 * p}, v7\nv_lshl_add_u32 v{LK(p)}, v3, 4, v5")
    A(f"""
    v_lshl_add_u32 v{LV(0)}, v6, 4, v5
    v_xor_b32 v7, 8, v6
    v_lshl_add_u32 v{LV(1)}, v7, 4, v5
    s_lshl_b32 s{S_T0}, s{S_HG}, 21
    s_lshl_b32 s{S_T1}, s{S_W}, 15
    s_add_u32 s{S_T0}, s{S_T0}, s{S_T1}
    s_lshl_b32 s{S_T1}, s{S_NU}, 8
    s_add_u32 s{S_T0}, s{S_T0}, s{S_T1}
    v_lshl_add_u32 v5, v1, 11, s{S_T0}
    v_add_u32 v{LTO}, s{S_T0}, v{LTO}
    v_lshl_add_u32 v{LWO(0)}, v6, 4, v5
    v_lshl_add_u32 v7, v7, 4, v5
    v_add_u32 v{LWO(1)}, {8192 - 1024}, v7
    v_add_u32 v{LWO(2)}, {2 * 8192 - 2048}, v{LWO(0)}
    v_add_u32 v{LWO(3)}, {3 * 8192 - 3072}, v7
    s_mul_i32 s{S_T0}, s{S_GRP}, 393216
    s_add_u32 s{S_T0}, s{S_T0}, s{S_LWB}
    v_lshl_add_u32 v{LOB}, v0, 4, s{S_T0}
    s_lshl_b32 s{S_T1}, s{S_J}, 2
    s_add_u32 s{S_T1}, s{S_T1}, s{S_W}
    s_mul_i32 s{S_T1}, s{S_T1}, 3072
    s_mul_i32 s{S_T0}, s{S_GRP}, 393216
    s_add_u32 s{S_T0}, s{S_T0}, s{S_T1}
    v_min_u32 v{LTB}, 23, v0
    v_lshl_add_u32 v{LTB}, v{LTB}, 7, s{S_T0}
    s_lshl_b32 s{S_T0}, s2, 11
    s_lshl_b32 s{S_T1}, s{S_W}, 9
    s_add_u32 s{S_T0}, s{S_T0}, s{S_T1}
    s_add_u32 s{S_T0}, s{S_T0}, {WS_INBOX}
    v_lshl_add_u32 v{LFLAG}, v4, 2, s{S_T0}
    s_lshl_b32 s{S_J2}, s{S_J}, 1
    s_add_u32 s{S_T0}, s{S_LWW}, {KRING}
    v_lshl_add_u32 v{LDSW(0)}, v0, 4, s{S_T0}
    v_add_u32 v{LDSW(1)}, {VRING - KRING}, v{LDSW(0)}
    """)


def loader(P, cfg):
    tr = []
    A = lambda t: tr.extend(P.add(t))
    A(f"""
    v_lshrrev_b32 v1, 4, v0
    v_and_b32 v2, 15, v0
    v_lshrrev_b32 v3, 3, v0
    v_and_b32 v4, 7, v0
    s_mul_i32 s{S_T0}, s{S_BP}, 192
    s_mul_i32 s{S_T1}, s{S_W}, 48
    s_add_u32 s{S_T0}, s{S_T0}, s{S_T1}
    s_lshl_b32 s{S_T0}, s{S_T0}, 11
    v_lshl_add_u32 v5, v3, 11, s{S_T0}
    v_xor_b32 v6, v4, v1
    v_lshl_add_u32 v{LX(0)}, v6, 4, v5
    v_xor_b32 v6, 4, v6
    v_lshl_add_u32 v7, v6, 4, v5
    """)
    for p in range(1, 6):
        A(f"v_add_u32 v{LX(p)}, {p * 16384 - (p % 4) * 1024}, v{7 if p & 1 else LX(0)}")
    A(f"""
    s_lshl_b32 s{S_T0}, s{S_W}, 17
    s_lshl_b32 s{S_T1}, s{S_H}, 8
    s_add_u32 s{S_T0}, s{S_T0}, s{S_T1}
    v_lshl_add_u32 v5, v1, 13, s{S_T0}
    v_lshlrev_b32 v6, 1, v1
    v_xor_b32 v6, v6, v2
    v_lshl_add_u32 v{LW(0)}, v6, 4, v5
    v_xor_b32 v7, 8, v6
    v_lshl_add_u32 v7, v7, 4, v5
    v_add_u32 v{LW(1)}, {32768 - 1024}, v{LW(0)}
    v_add_u32 v{LW(2)}, {2 * 32768 - 2048}, v7
    v_add_u32 v{LW(3)}, {3 * 32768 - 3072}, v7
    """)
    if cfg.rot == 1:
        A(f"s_add_u32 s{S_ROT}, s{S_BP}, s{S_J}\ns_and_b32 s{S_ROT}, s{S_ROT}, 3\ns_lshl_b32 s{S_ROT}, s{S_ROT}, 2")
    elif cfg.rot == 2:
        A(f"s_add_u32 s{S_ROT}, s{S_BP}, s{S_J}\ns_and_b32 s{S_ROT}, s{S_ROT}, 1\ns_lshl_b32 s{S_ROT}, s{S_ROT}, 3")
    elif cfg.rot == 3:
        A(f"s_lshl_b32 s{S_ROT}, s{S_HG}, 2")
    elif cfg.rot == 4:
        A(f"s_lshl_b32 s{S_ROT}, s{S_BP}, 2")
    elif cfg.rot == 5:
        A(f"s_lshl_b32 s{S_ROT}, s{S_J}, 1")
    elif cfg.rot in (7, 8, 9):
        A(f"s_lshr_b32 s{S_ROT}, s{S_J}, 1\ns_add_u32 s{S_ROT}, s{S_ROT}, s{S_BP}\ns_and_b32 s{S_ROT}, s{S_ROT}, 3\ns_lshl_b32 s{S_ROT}, s{S_ROT}, {9 - cfg.rot}")
    elif cfg.rot == 6:
        A(f"s_and_b32 s{S_ROT}, s{S_J}, 3\ns_lshl_b32 s{S_ROT}, s{S_ROT}, 2")
    else:
        A(f"s_mov_b32 s{S_ROT}, 0")
    A(f"""
    v_bfe_u32 v7, v0, 1, 4
    v_and_b32 v5, 1, v0
    v_lshlrev_b32 v5, 7, v5
    v_lshl_add_u32 v{LTO}, v7, 11, v5
    v_lshl_add_u32 v{LTQ}, v7, 13, v5
    v_add_u32 v{LTQ}, s{S_T0}, v{LTQ}
    """)
    A("s_waitcnt lgkmcnt(0)")
    A(make_srd(((sWQ, 10, 8 << 20), (sX, 4, 768 * 2048))))
    q0 = []
    if cfg.stamps:
        A(f"v_mov_b32 v{LSTAMP}, 0")
        A(loader_stamp(0))
        A(f"v_writelane_b32 v{LSTAMP}, s96, 63")
    if cfg.xtouch & 4:
        xt = x_touch(cfg, 3, LPOLL)
        A(xt)
        q0 += ["t"] * (len(xt) - 1)
    if cfg.afirst:
        A(f"s_bitcmp{1 - cfg.clsinv}_b32 s2, {cfg.cls}\ns_cbranch_scc1 L_bstart")
        for n in range(4 if cfg.cls == 6 else 0):
            A(f"""s_add_u32 s{S_T1}, s{S_ROT}, {n}
            s_lshl_b32 s{S_T1}, s{S_T1}, 19
            buffer_load_dword v{LPOLL}, v{LTQ}, {srd(sWQ)}, s{S_T1} offen""")
        A("s_branch L_started\nL_bstart:")
    if not cfg.stag:
        for n in range(2):
            for text, isload in q_stage(cfg, n):
                A(text)
                if isload:
                    q0.append(n)
    if cfg.afirst:
        A("L_started:")
    A(make_srd(((sK, 6, 32 << 20), (sV, 8, 32 << 20), (sWO, 12, 8 << 20), (sWS, 18, 256 << 20))))
    A(late_ids(cfg))
    late_setup(A)
    if cfg.krot:
        A(f"s_mul_i32 s{S_KR}, s2, {cfg.krot}\ns_lshr_b32 s{S_KR}, s{S_KR}, {cfg.ksh}\ns_lshl_b32 s{S_KR}, s{S_KR}, 13")
    if cfg.pre1:
        A(f"s_bitcmp{1 - cfg.clsinv}_b32 s2, {cfg.cls}\ns_cbranch_scc1 L_late")
        t0 = loader_role(P, cfg, list(tr), ["t"] * (4 if cfg.cls == 6 else 0) if cfg.afirst else q0, None, cfg.pre, "a")
        return [t0, loader_role(P, cfg, list(tr) + P.add("L_late:"), q0, None, cfg.pre1, "b")]
    if not cfg.stag:
        return [loader_role(P, cfg, tr, q0, None, cfg.pre)]
    A(f"s_cmp_ge_u32 s{S_BP}, 2\ns_cbranch_scc1 L_late")
    t0 = loader_role(P, cfg, list(tr), q0, 0)
    return [t0, loader_role(P, cfg, list(tr) + P.add("L_late:"), q0, 1)]


def loader_stamp(n):
    return (f"s_memrealtime s[{S_ST}:{S_ST+1}]\ns_memtime s[{S_ST+2}:{S_ST+3}]\ns_cmp_eq_u32 s{S_W}, 1\ns_waitcnt lgkmcnt(0)\n"
            f"s_cselect_b32 s{S_ST+4}, s{S_ST+2}, s{S_ST}\nv_writelane_b32 v{LSTAMP}, s{S_ST+4}, {n}")


def q_stage(cfg, n):
    dma = lambda vreg, sr, so, imm, pol: (f"buffer_load_dwordx4 v{vreg}, {srd(sr)}, s{so} offen offset:{imm} {pol} lds", True)
    first = cfg.promote & 1 and n < 4
    mask = {8: 7, 9: 3}.get(cfg.rot, 15)
    hgr = ""
    if cfg.hgrot == 1:
        hgr = f"s_add_u32 s{S_T1}, s{S_HG}, {n}\ns_and_b32 s{S_T1}, s{S_T1}, 3\ns_or_b32 s{S_T0}, s{S_T0}, s{S_T1}"
    if cfg.hgrot == 3:
        hgr = f"s_lshr_b32 s{S_T1}, s{S_T0}, 2\ns_xor_b32 s{S_T0}, s{S_T0}, s{S_T1}"
    if cfg.hgrot == 4:
        hgr = f"s_lshr_b32 s{S_T1}, s{S_T0}, 2\ns_and_b32 s{S_T1}, s{S_T1}, 2\ns_xor_b32 s{S_T0}, s{S_T0}, s{S_T1}"
    if cfg.hgrot == 5:
        hgr = f"s_lshr_b32 s{S_T1}, s{S_T0}, 1\ns_and_b32 s{S_T1}, s{S_T1}, 2\ns_xor_b32 s{S_T0}, s{S_T0}, s{S_T1}"
    if cfg.hgrot == 6:
        hgr = f"s_lshr_b32 s{S_T1}, s{S_T0}, 2\ns_lshl_b32 s{S_T0}, s{S_T0}, 2\ns_and_b32 s{S_T0}, s{S_T0}, 12\ns_or_b32 s{S_T0}, s{S_T0}, s{S_T1}"
    if cfg.hgrot == 7:
        hgr = f"s_lshl_b32 s{S_T1}, s{S_BLK}, 1\ns_xor_b32 s{S_T0}, s{S_T0}, s{S_T1}"
    if cfg.hgrot == 2:
        hgr = f"s_xor_b32 s{S_T1}, s{S_HG}, {n & 3}\ns_or_b32 s{S_T0}, s{S_T0}, s{S_T1}"
    o = [(f"""s_add_u32 s{S_T0}, s{S_ROT}, {n}
    s_add_u32 m0, s{S_LWW}, {WRING + (n % 4) * WSLOT}
    s_and_b32 s{S_T0}, s{S_T0}, {12 if cfg.hgrot in (1, 2) else mask}
    {hgr}
    {f"s_or_b32 s{S_T0}, s{S_T0}, {n & ~mask}" if n & ~mask else ""}
    s_lshl_b32 s{S_T1}, s{S_T0}, 19""", False)]
    o += [dma(LW(p), sWQ, S_T1, p * 1024, "nt" if first else cfg.pol_wq) for p in range(4)]
    if first:
        o.append((f"buffer_load_dword v{LPOLL}, v{LTQ}, {srd(sWQ)}, s{S_T1} offen", True))
    o.append((f"s_add_u32 m0, s{S_LWB}, {BRING + (n % 4) * BSLOT}\ns_lshl_b32 s{S_T0}, s{S_T0}, 7", False))
    o += [dma(LX(p), sX, S_T0, p * 1024, cfg.pol_x) for p in range(4)]
    o.append((f"s_add_u32 m0, s{S_LWB}, {BRING + (n % 4) * BSLOT + 4096}", False))
    o += [dma(LX(p), sX, S_T0, (p - 4) * 1024, cfg.pol_x) for p in range(4, 6)]
    return o


def loader_role(P, cfg, tr, q0, role, pre="", sfx=""):
    A = lambda t: tr.extend(P.add(t))
    sfx += "" if role is None else str(role)
    q = list(q0)

    flip = [0]

    def throttle(win):
        if win in (45, 55):
            flip[0] ^= 1
            win = win // 10 + flip[0]
        win = win or 56
        if win and len(q) >= win:
            A(f"s_waitcnt vmcnt({win - 1})")
            del q[:len(q) - (win - 1)]

    def dma(vreg, s, soff, imm, pol, tag, win=0):
        throttle(win)
        A(f"buffer_load_dwordx4 v{vreg}, {srd(s)}, {soff} offen offset:{imm} {pol} lds")
        q.append(tag)

    def wait(tag):
        if tag in q:
            idx = max(k for k, x in enumerate(q) if x == tag)
            A(f"s_waitcnt vmcnt({len(q) - 1 - idx})")
            del q[:idx + 1]

    def issue_q(n):
        for text, isload in q_stage(cfg, n):
            if isload:
                throttle(0)
                q.append(n)
            A(text)

    kv = []
    for e in range(17):
        if e <= 15:
            kv += [(16 + e, 0, e, p) for p in range(4)]
        if e >= 1:
            kv += [(16 + e, 1, e - 1, p) for p in range(4)]
    pool = list(range(LPOOL, 256, 4))
    parked = []
    state = dict(next=0, m0=None, soff=None, lds=False)

    def issue_kv(upto, k, win):
        state["m0"] = state["soff"] = None
        while state["next"] < upto:
            stage, isv, tile, p = kv[state["next"]]
            state["next"] += 1
            vo, sr = (LV(p & 1), sV) if isv else (LK(p), sK)
            if stage <= k + 2 and state["m0"] != (stage, isv):
                A(f"s_add_u32 m0, s{S_LWW}, {(VRING if isv else KRING) + (tile % 3) * ASLOT}")
                state["m0"] = (stage, isv)
            if state["soff"] != tile:
                if cfg.krot:
                    A(f"s_add_u32 s{S_T0}, s{S_KR}, {tile * 8192}\ns_and_b32 s{S_T0}, s{S_T0}, 0x1e000")
                else:
                    A(f"s_mov_b32 s{S_T0}, {tile * 8192}")
                state["soff"] = tile
            if stage <= k + 2:
                dma(vo, sr, f"s{S_T0}", p * 1024, cfg.pol_kv, stage, win)
            else:
                if not pool:
                    unpark(k, 2)
                r = pool.pop(0)
                throttle(win)
                A(f"buffer_load_dwordx4 {v4(r)}, v{vo}, {srd(sr)}, s{S_T0} offen offset:{p * 1024} {cfg.pol_kv}")
                q.append(("r", r))
                parked.append((stage, isv, tile, p, r))
            if cfg.lazyp:
                unpark(k, cfg.lazyp, True)

    def unpark(k, most=99, landed=False):
        while parked and parked[0][0] <= k + 2 and most and not (landed and ("r", parked[0][4]) in q):
            most -= 1
            stage, isv, tile, p, r = parked.pop(0)
            wait(("r", r))
            A(f"ds_write_b128 v{LDSW(isv)}, {v4(r)} offset:{(tile % 3) * ASLOT + p * 1024}")
            pool.append(r)
            state["lds"] = True

    def o_index(m):
        if cfg.order:
            return f"s_add_u32 s{S_T0}, s{S_J2}, {o_rel(cfg)[m]}"
        if cfg.par:
            if m < 8:
                return f"s_add_u32 s{S_T0}, s{S_J2}, {4 * (m >> 1) + (m & 1)}"
            if cfg.par == 1:
                return f"s_add_u32 s{S_T0}, s{S_J2}, {4 * ((m - 8) >> 1) + (m & 1) + 2}"
            return f"s_lshl_b32 s{S_T0}, s{S_NU}, 1\ns_add_u32 s{S_T0}, s{S_T0}, {4 * ((m - 8) >> 1) + (m & 1) + 2}"
        if m < 2 or not cfg.oord:
            return f"s_add_u32 s{S_T0}, s{S_J2}, {m}"
        return f"""s_cmp_gt_u32 s{S_T3}, {(m - 2) // 2}
        s_cselect_b32 s{S_T0}, {m - 2}, {m}
        s_add_u32 s{S_T0}, s{S_T0}, s{S_T2}"""

    def issue_ow(m, tag, win=0):
        A(f"""{o_index(m)}
        s_add_u32 m0, s{S_LWW}, {WRING + (m % 4) * WSLOT}
        s_and_b32 s{S_T0}, s{S_T0}, 15
        s_lshl_b32 s{S_T1}, s{S_T0}, 17""")
        first = cfg.promote & 2 and m < 4
        for p in range(4):
            dma(LWO(p), sWO, f"s{S_T1}", p * 1024, "nt" if first else cfg.pol_wo, tag, 0 if first else win)
        if first:
            A(f"buffer_load_dword v{LPOLL}, v{LTO}, {srd(sWO)}, s{S_T1} offen")
            q.append("t")

    def touch_w(b):
        A(f"""s_lshl_b32 s{S_T0}, s{S_BP}, 17
        s_add_u32 s{S_T0}, s{S_T0}, {b << 19}
        buffer_load_dword v{LPOLL}, v{LTO}, {srd(sWO)}, s{S_T0} offen""")
        q.append("t")

    def touch_b(b):
        A(f"s_mov_b32 s{S_T0}, {b * 98304}\nbuffer_load_dword v{LPOLL}, v{LTB}, {srd(sWS)}, s{S_T0} offen sc1")
        q.append("t")

    coop = [int(x) for x in str(cfg.coop).split(".")] if cfg.coop else []
    spre = [int(x) for x in str(cfg.spre).split(".")] if cfg.spre else []
    sdone = [0]

    def scalar_pre():
        for _ in range(spre.pop(0) if spre else 0):
            n, r = divmod(sdone[0], 32)
            if n > 3:
                break
            if r == 0:
                A(f"""s_add_u32 s{S_T0}, s{S_NU}, {2 * n + 1}
                s_and_b32 s{S_T0}, s{S_T0}, 7
                s_lshl_b32 s{S_T0}, s{S_T0}, 18
                s_add_u32 s{S_T0}, s{S_T0}, s{S_DW}
                s_add_u32 s{S_SB + 2 * (n & 1)}, s12, s{S_T0}
                s_addc_u32 s{S_SB + 2 * (n & 1) + 1}, s13, 0""")
            A(f"s_load_dword s{S_SB + 4}, s[{S_SB + 2 * (n & 1)}:{S_SB + 2 * (n & 1) + 1}], {(r >> 2) * 2048 + (r & 3) * 64}")
            sdone[0] += 1

    def coop_after(m):
        for b, mm in enumerate(coop):
            if mm == m:
                touch_b(b + 1)
                touch_w(b + 1)

    def issue_ob(m, tag):
        A(f"""{o_index(m)}
        s_add_u32 m0, s{S_LWB}, {BRING + ((m - 2) % 4) * BSLOT}
        s_and_b32 s{S_T0}, s{S_T0}, 15
        s_mul_i32 s{S_T0}, s{S_T0}, 24576""")
        for p in range(4):
            dma(LOB, sWS, f"s{S_T0}", p * 1024, cfg.pol_ob, tag)
        A(f"s_add_u32 m0, s{S_LWB}, {BRING + ((m - 2) % 4) * BSLOT + 4096}\ns_add_u32 s{S_T1}, s{S_T0}, 4096")
        for p in range(2):
            dma(LOB, sWS, f"s{S_T1}", p * 1024, cfg.pol_ob, tag)

    nst = [1]

    def stamp():
        if cfg.stamps:
            A(loader_stamp(nst[0]))
            nst[0] += 1

    def barrier():
        if state["lds"]:
            A("s_waitcnt lgkmcnt(0)")
            state["lds"] = False
        A("s_barrier")
        stamp()

    end = lambda n: 0 if n < 16 else min(128, 4 + 8 * (n - 16))
    pre = [int(x) for x in str(pre).split(".")] if pre else []
    pre = [0] * (17 - len(pre)) + pre
    wo_at = [int(x) for x in str(cfg.wo_at).split(".")]
    wtag = lambda m: 33 if m < 2 else 33 + m
    if role == 1:
        A(f"""
        s_lshr_b32 s{S_T0}, s2, 3
        s_and_b32 s{S_T0}, s{S_T0}, 15
        s_lshl_b32 s{S_T0}, s{S_T0}, 2
        s_add_u32 s{S_T0}, s{S_T0}, s{S_W}
        s_lshl_b32 s{S_T1}, s{S_T0}, 13
        s_lshl_b32 s{S_T2}, s{S_HG}, 11
        s_add_u32 s{S_T1}, s{S_T1}, s{S_T2}
        v_lshrrev_b32 v3, 4, v0
        v_and_b32 v4, 15, v0
        v_lshl_add_u32 v5, v3, 19, s{S_T1}
        v_lshl_add_u32 v5, v4, 7, v5
        s_mul_i32 s{S_T1}, s{S_T0}, {6 * 2048}
        v_lshrrev_b32 v3, 3, v0
        v_min_u32 v3, 5, v3
        v_and_b32 v4, 7, v0
        v_lshl_add_u32 v6, v3, 11, s{S_T1}
        v_lshl_add_u32 v6, v4, 7, v6
        """)
        for qt in range(4):
            if qt % 2 == 0:
                A(f"buffer_load_dword v{LPOLL}, v6, {srd(sX)}, 0 offen offset:{(qt // 2) * 1024}")
                q.append("t")
            A(f"s_mov_b32 s{S_T0}, {qt << 21}\nbuffer_load_dword v{LPOLL}, v5, {srd(sWQ)}, s{S_T0} offen")
            q.append("t")
        A(f"s_mov_b32 s{S_T0}, {384 * 2048}")
        for h in range(2):
            A(f"buffer_load_dword v{LPOLL}, v6, {srd(sX)}, s{S_T0} offen offset:{h * 1024}")
            q.append("t")
        pre[0] = cfg.s1pre
        issue_kv(pre[0], -1, cfg.s1win)
    if cfg.afirst and sfx == "a":
        pre[0] = cfg.afirst
        issue_kv(pre[0], -1, cfg.bwin or 8)
    if cfg.stag or (cfg.afirst and sfx == "a"):
        issue_q(0)
        issue_q(1)
    base = sum(pre)
    issue_kv(pre[0], -1, 0)
    nq = 2
    for k in range(0, 33):
        wait(k)
        barrier()
        if not cfg.lazyp:
            unpark(k)
        while nq <= min(15, k + 1 + cfg.qd):
            issue_q(nq)
            nq += 1
        w = ((cfg.winb or cfg.win) if sfx == 'b' else cfg.win) if role is None else (cfg.s1win if role else (cfg.s0win if k < cfg.s0sw else cfg.s0late))
        if cfg.winlate and k >= cfg.late and sfx != 'b':
            w = cfg.winlate
        win = 0 if k < 16 else (cfg.win16 if k == 16 else w)
        lead = min(128, end(k + 1) + ((win + 5) // 10 if win in (45, 55) else win or 8)) if k >= 14 else 0
        if k <= 15:
            ramp = sum(pre[:k + 2]) + (4 * max(0, k - 13) if role == 1 else 0)
        else:
            b0 = base + cfg.win16 + (8 if role == 1 else 0)
            last = (cfg.lastb or cfg.last) if sfx == 'b' else cfg.last
            ramp = min(128, b0 + ((128 - b0) * (k - 16)) // (last - 16))
        issue_kv(max(lead, ramp if base else 0), k, win or cfg.bwin)
        if cfg.lazyp:
            unpark(k, 99, True)
            unpark(k - 1)
        if k == 20 and cfg.oord:
            A(f"""s_add_u32 s{S_T2}, s{S_BP}, s{S_J}
            s_and_b32 s{S_T2}, s{S_T2}, {cfg.oord - 1}
            s_mul_i32 s{S_T2}, s{S_T2}, {8 // cfg.oord}
            s_sub_u32 s{S_T3}, s{S_J}, s{S_T2}
            s_and_b32 s{S_T3}, s{S_T3}, 7
            s_lshl_b32 s{S_T2}, s{S_T2}, 1""")
        for h, tk in enumerate(str(cfg.ptouch).split(".") if cfg.ptouch else []):
            if int(tk) == k:
                throttle(win)
                A(f"""s_mul_i32 s{S_T0}, s{S_J}, 49152
                s_add_u32 s{S_T0}, s{S_T0}, {h * 24576}
                v_mul_u32_u24 v3, 0x70, v0
                v_add_u32 v3, v3, v{LOB}
                s_mov_b32 exec_hi, 0xffff
                buffer_load_dword v{LPOLL}, v3, {srd(sWS)}, s{S_T0} offen
                s_mov_b64 exec, -1""")
                q.append("t")
        if k == 26:
            A(f"buffer_load_dword v{LPOLL}, v{LFLAG}, {srd(sWS)}, 0 offen sc1")
            q.append("t")
        for m in range(4):
            if wo_at[m] == k and not (m < 2 and m >= 2 - cfg.w1late):
                issue_ow(m, wtag(m), win if state["next"] < 128 else (cfg.wwin if k == 32 else 0))
        if coop and k == cfg.coopw0:
            touch_w(0)
    assert state["next"] == 128 and not parked
    if spre:
        A(f"""s_lshl_b32 s{S_DW}, s{S_HG}, 21
        s_lshl_b32 s{S_T0}, s{S_BP}, 16
        s_add_u32 s{S_DW}, s{S_DW}, s{S_T0}
        s_lshl_b32 s{S_T0}, s{S_W}, 14
        s_add_u32 s{S_DW}, s{S_DW}, s{S_T0}
        s_lshl_b32 s{S_T0}, s{S_NU}, 8
        s_add_u32 s{S_DW}, s{S_DW}, s{S_T0}""")
    if cfg.w1late:
        A("s_barrier")
        if cfg.w1late == 2:
            issue_ow(0, 33)
        issue_ow(1, 34)
    wait(33)
    barrier()
    if cfg.w1late:
        wait(34)
        A("s_barrier")
    def finish():
        if cfg.stamps:
            A(f"""s_lshl_b32 s{S_T0}, s2, 3
            s_add_u32 s{S_T0}, s{S_T0}, s{S_WAVE}
            s_lshl_b32 s{S_T0}, s{S_T0}, 8
            s_add_u32 s{S_T0}, s{S_T0}, {WS_STAMP}
            v_lshl_add_u32 v1, v0, 2, s{S_T0}
            buffer_store_dword v{LSTAMP}, v1, {srd(sWS)}, 0 offen""")
        A("s_endpgm")
        return tr

    def need_head(m):
        A(f"""{o_index(m)}
        s_bfe_u32 s{S_T1}, s{S_T0}, 0x30001
        s_mov_b32 s{S_SPIN}, 0""")
        n = f"L_need{m}{sfx}"
        loop = P.add(f"""{n}:
        s_bitcmp1_b32 s{S_MASK}, s{S_T1}
        s_cbranch_scc1 {n}_done
        buffer_load_dword v{LPOLL}, v{LFLAG}, {srd(sWS)}, 0 offen sc1
        s_add_u32 s{S_SPIN}, s{S_SPIN}, 1
        s_waitcnt vmcnt(0)
        v_cmp_eq_u32 vcc, 1, v{LPOLL}
        s_mov_b32 s{S_MASK}, vcc_lo
        s_cmp_lt_u32 s{S_SPIN}, {SPIN_MAX}
        s_cbranch_scc1 {n}""")
        tr.extend(loop + loop)
        A(f"{n}_done:")

    if cfg.bdirect:
        for m in (2, 3):
            if wo_at[m] == 33:
                issue_ow(m, 33 + m)
        A(f"s_mov_b32 s{S_MASK}, 0")
        seen = {0}

        def need_new(m):
            if o_rel(cfg)[m] >> 1 not in seen:
                seen.add(o_rel(cfg)[m] >> 1)
                need_head(m)

        need_new(2)
        need_new(3)
        A("s_barrier")
        stamp()
        for m in (2, 3):
            if wo_at[m] == 34:
                issue_ow(m, 33 + m)
        nm = 4
        for k in range(35, 49):
            if k - 31 <= 15:
                need_new(k - 31)
            wait(k)
            barrier()
            while nm <= min(15, k + 1 + cfg.od - 33):
                issue_ow(nm, nm + 33)
                nm += 1
        return finish()
    if wo_at[2] == 33:
        issue_ow(2, 35)
    if cfg.prog:
        A(f"s_mov_b32 s{S_MASK}, 0")
        need_head(2)
    else:
        poll_loop(P, tr, "poll1" + sfx, LPOLL, LFLAG)
        del q[:]
        q.append("poll")
    stamp()
    if coop:
        touch_b(0)
    issue_ob(2, 35)
    if wo_at[2] == 34:
        issue_ow(2, 35)
    coop_after(2)
    if wo_at[3] == 33:
        issue_ow(3, 36)
    issue_ob(3, 36)
    if wo_at[3] == 34:
        issue_ow(3, 36)
    coop_after(3)
    scalar_pre()
    nm = 4
    for k in range(35, 49):
        wait(k)
        barrier()
        while nm <= min(15, k + 1 + cfg.od - 33):
            issue_ow(nm, nm + 33)
            if cfg.prog and nm % 2 == 0:
                need_head(nm)
            issue_ob(nm, nm + 33)
            coop_after(nm)
            nm += 1
        scalar_pre()
    return finish()


def order(n, snake):
    return [(T, t) for T in range(n) for t in (reversed(T3) if snake and T & 1 else T3)]


def gemm_reads(b, s, kind, with_b=True):
    r = []
    if with_b:
        for t in T3:
            if kind == "q":
                r.append(f"ds_read_b128 {v4(FB(b, t))}, v{AB(s)} offset:{t * 2048}")
            else:
                r.append(f"ds_read_b128 {v4(FB(b, t))}, v{AB(0)} offset:{s * 3072 + t * 1024}")
    for T in range(8):
        for u in range(2):
            off = s * 8192 + u * (1024 if kind == "q" else 4096)
            r.append(f"ds_read_b64_tr_b16 {v2(FA(b, T) + 2 * u)}, v{AW(T)} offset:{off}")
    return r


def gemm_mfma(cfg, b, bsrc=None, zero=False):
    return [f"{MFMA} {v4(ACC(T, t))}, {v4(FA(b, T))}, {v4(bsrc(t) if bsrc else FB(b, t))}, {'0' if zero else v4(ACC(T, t))}"
            for T, t in order(8, cfg.snake)]


def gemm_loop(P, tr, cfg, kind, label, iters):
    sal = [f"s_add_u32 s{S_SLOT}, s{S_SLOT}, 1", f"s_and_b32 s{S_SLOT}, s{S_SLOT}, 3", f"s_cselect_b32 s{S_DW}, {WSLOT}, s{S_T2}"]
    if kind == "o":
        sal.append(f"s_cmp_lg_u32 s{S_SLOT}, 2")
    sal.append(f"s_cselect_b32 s{S_DB}, {BSLOT}, s{S_T3}")
    val = [f"v_add_u32 v{AB(s)}, s{S_DB}, v{AB(s)}" for s in range(2 if kind == "q" else 1)]
    val += [f"v_add_u32 v{AW(T)}, s{S_DW}, v{AW(T)}" for T in range(8)]
    nb = len(val) - 8
    hook = [(18, f"s_cmp_eq_u32 s{S_CNT}, s{S_FLAG}"), (19, "s_cbranch_scc1 L_count"), (19, "L_counted:")] if kind == "q" else []
    if kind == "o" and cfg.wb:
        hook = [(18, f"s_cmp_eq_u32 s{S_CNT}, s{S_FLAG}"), (19, "s_cbranch_scc1 L_wb"), (19, "L_wbdone:")]
    h0 = weave(gemm_mfma(cfg, 0), spread(gemm_reads(1, 1, kind), 0, 18) + spread(sal, 0, 4) + spread(val[:nb + 6], 12, 19)
               + spread(val[nb + 6:], 20, 21) + [(22, "s_waitcnt lgkmcnt(0)"), (22, "s_barrier")])
    h1 = weave(gemm_mfma(cfg, 1), spread(gemm_reads(0, 0, kind), -1, 17)
               + hook + [(20, f"s_sub_u32 s{S_CNT}, s{S_CNT}, 1"), (20, f"s_cmp_lg_u32 s{S_CNT}, 0")])
    tr.extend(P.add(f"s_mov_b32 s{S_CNT}, {iters}\ns_waitcnt lgkmcnt(0)"))
    if kind == "q":
        tr.extend(P.add(".p2align 3"))
        body = P.add([label + ":"] + h0 + h1 + ["s_waitcnt lgkmcnt(0)", f"s_cbranch_scc1 {label}"])
        tr.extend(body + body)
        return
    h0 = weave(gemm_mfma(cfg, 0), spread(gemm_reads(1, 1, kind), 0, 18) + spread(sal, 0, 4) + spread(val[:nb + 6], 11, 18)
               + spread(val[nb + 6:], 19, 19) + [(6, f"s_sub_u32 s{S_CNT}, s{S_CNT}, 1"), (7, f"s_cmp_eq_u32 s{S_CNT}, 0"),
                                                  (20, f"s_cbranch_scc1 {label}_out"), (22, "s_waitcnt lgkmcnt(0)"), (22, "s_barrier")])
    h1 = weave(gemm_mfma(cfg, 1), spread(gemm_reads(0, 0, kind), -1, 17) + hook)
    cut = h0.index(f"s_cbranch_scc1 {label}_out") + 1
    tr.extend(P.add(".p2align 3"))
    first = P.add([label + ":"] + h0[:cut])
    rest = P.add(h0[cut:] + h1 + ["s_waitcnt lgkmcnt(0)", f"s_branch {label}"])
    tr.extend(first + rest + first + P.add([label + "_out:"] + gemm_mfma(cfg, 0)[21:]))


def k_reads(tile):
    return [f"ds_read_b128 {v4(FR(kt * 4 + s))}, v{AK(s)} offset:{(tile % 3) * ASLOT + kt * 4096}" for kt in range(2) for s in range(4)]


def v_reads(T, tile):
    return [f"ds_read_b64_tr_b16 {v2(FR(T) + 2 * u)}, v{AV(T)} offset:{(tile % 3) * ASLOT + u * 4096}" for u in range(2)]


def qk_mfma(first=False):
    c0 = lambda t: "0" if first else v4(NM(t))
    return [f"{MFMA} {v4(SS(kt, t))}, {v4(FR(kt * 4 + s))}, {v4(QF(s, t))}, {c0(t) if s == 0 else v4(SS(kt, t))}"
            for kt in range(2) for s in range(4) for t in T3]


def pv_mfma(cfg):
    return [f"{MFMA} {v4(ACC(T, t))}, {v4(FR(T))}, {v4(PP(t))}, {v4(ACC(T, t))}" for T, t in order(8, cfg.snake)]


def xlane(op, regs, tmps):
    out = []
    for sw in ("v_permlane32_swap_b32", "v_permlane16_swap_b32"):
        out += [f"v_mov_b32 v{x}, v{r}" for r, x in zip(regs, tmps)]
        out += [f"{sw} v{r}, v{x}" for r, x in zip(regs, tmps)]
        out += [f"{op} v{r}, v{r}, v{x}" for r, x in zip(regs, tmps)]
    return out


def row_max():
    o = [f"v_max3_f32 v{VD(t)}, v{SS(0, t)}, v{SS(0, t) + 1}, v{SS(0, t) + 2}" for t in T3]
    o += [f"v_max3_f32 v{VD(t)}, v{SS(0, t) + 3}, v{SS(1, t)}, v{VD(t)}" for t in T3]
    o += [f"v_max3_f32 v{VD(t)}, v{SS(1, t) + 1}, v{SS(1, t) + 2}, v{VD(t)}" for t in T3]
    o += [f"v_max_f32 v{VD(t)}, v{SS(1, t) + 3}, v{VD(t)}" for t in T3]
    return o + xlane("v_max_f32", [VD(t) for t in T3], [VT(t) for t in T3])


def shift_scores():
    return [f"v_sub_f32 v{SS(kt, t) + r}, v{SS(kt, t) + r}, v{VD(t)}" for kt in range(2) for t in T3 for r in range(4)]


def guard_max(kt):
    r = [SS(kt, t) + k for t in T3 for k in range(4)]
    if kt == 0:
        o = [f"v_max3_f32 v{VX}, v{r[0]}, v{r[1]}, v{r[2]}"]
        o += [f"v_max3_f32 v{VX}, v{r[k]}, v{r[k + 1]}, v{VX}" for k in range(3, 11, 2)]
        return o + [f"v_max_f32 v{VX}, v{r[11]}, v{VX}"]
    return [f"v_max3_f32 v{VX}, v{r[k]}, v{r[k + 1]}, v{VX}" for k in range(0, 12, 2)]


def p_cvt(kt, h=None):
    return [f"v_cvt_pk_bf16_f32 v{PP(t) + 2 * kt + hh}, v{SS(kt, t) + 2 * hh}, v{SS(kt, t) + 2 * hh + 1}"
            for hh in ((0, 1) if h is None else (h,)) for t in T3]


def exp_sum(cfg, kt, h):
    o = [f"v_exp_f32 v{SS(kt, t) + 2 * h + r}, v{SS(kt, t) + 2 * h + r}" for t in T3 for r in range(2)]
    if cfg.pk:
        o += [f"v_pk_add_f32 {v2(VL(t))}, {v2(VL(t))}, {v2(SS(kt, t) + 2 * h)}" for t in T3]
    else:
        o += [f"v_add_f32 v{VL(t) + r}, v{VL(t) + r}, v{SS(kt, t) + 2 * h + r}" for t in T3 for r in range(2)]
    return o


def exps(kt, h):
    return [f"v_exp_f32 v{SS(kt, t) + 2 * h + r}, v{SS(kt, t) + 2 * h + r}" for t in T3 for r in range(2)]


def pk_sum(kt, h):
    return [f"v_pk_add_f32 {v2(VL(t))}, {v2(VL(t))}, {v2(SS(kt, t) + 2 * h)}" for t in T3]


def rescale(by):
    return [f"v_mul_f32 v{ACC(T, t) + r}, v{ACC(T, t) + r}, v{by(t)}" for T in range(8) for t in T3 for r in range(4)]


def acc_to_frag(s, QF=QF):
    return [f"v_cvt_pk_bf16_f32 v{QF(s, t) + 2 * u + h}, v{ACC(2 * s + u, t) + 2 * h}, v{ACC(2 * s + u, t) + 2 * h + 1}"
            for u in range(2) for t in T3 for h in range(2)]


def compute(P, cfg):
    tr = []
    A = lambda t: tr.extend(P.add(t))
    nst = [0]

    def stamp():
        if cfg.stamps:
            A(f"s_memrealtime s[{S_ST + 2 * nst[0]}:{S_ST + 2 * nst[0] + 1}]\ns_waitcnt lgkmcnt(0)")
            nst[0] += 1

    A(f"L_compute:\ns_getpc_b64 s[{S_PC}:{S_PC + 1}]\nL_text:\n{late_ids(cfg)}\ns_waitcnt lgkmcnt(0)")
    if cfg.xtouch and not cfg.xtouch & 4:
        A(make_srd(((sX, 4, 768 * 2048),)))
        A(x_touch(cfg, 112, 113))
    A(make_srd(((sOUT, 14, 768 * 4096), (sWS, 18, 256 << 20), (sDBG, 16, 256))))
    if cfg.prio:
        A(f"s_setprio {cfg.prio}")
    A(f"""
    s_getreg_b32 s{S_XCC}, hwreg(HW_REG_XCC_ID, 0, 3)
    s_cmp_lg_u32 s{S_W}, 0
    s_cbranch_scc1 L_noclear
    s_lshl_b32 s{S_T0}, s2, 11
    s_add_u32 s{S_T0}, s{S_T0}, {WS_INBOX}
    v_lshlrev_b32 v1, 4, v0
    v_mov_b64 v[4:5], 0
    v_mov_b64 v[6:7], 0
    buffer_store_dwordx4 v[4:7], v1, {srd(sWS)}, s{S_T0} offen sc1
    buffer_store_dwordx4 v[4:7], v1, {srd(sWS)}, s{S_T0} offen offset:1024 sc1
    {code_touch(0, 110, 111) if cfg.ctouch else ""}
    L_noclear:
    s_lshl_b32 s{S_XCC}, s{S_XCC}, 2
    v_and_b32 v{V_TMP}, 3, v0
    v_xor_b32 v{V_TMP}, s{S_GRP}, v{V_TMP}
    v_lshlrev_b32 v{V_TMP}, 2, v{V_TMP}
    v_lshrrev_b32 v100, 4, v0
    v_and_b32 v101, 15, v0
    v_bfe_u32 v102, v0, 2, 2
    v_bfe_u32 v103, v0, 1, 1
    v_and_b32 v104, 1, v0
    v_lshlrev_b32 v109, 4, v0
    """)
    A(f"""
    v_lshl_add_u32 v105, v100, 3, v102
    v_lshlrev_b32 v105, 8, v105
    v_lshl_add_u32 v105, v104, 3, v105
    v_lshl_add_u32 v105, v103, 4, v105
    v_and_b32 v106, 1, v100
    v_lshl_add_u32 v106, v106, 2, v102
    v_lshl_add_u32 v{AW(0)}, v106, 5, v105
    """)
    for T in range(1, 8):
        A(f"v_xor_b32 v{AW(T)}, {T << 5}, v{AW(0)}")
    A(f"""
    s_add_u32 s{S_T0}, s{S_LWB}, {BRING}
    v_lshl_add_u32 v105, v101, 7, s{S_T0}
    v_lshrrev_b32 v107, 1, v101
    v_xor_b32 v107, v107, v100
    v_lshl_add_u32 v{AB(0)}, v107, 4, v105
    v_xor_b32 v{AB(1)}, 64, v{AB(0)}
    """)
    A(f"""
    s_lshr_b32 s{S_T0}, s{S_W}, 1
    s_lshl_b32 s{S_T0}, s{S_T0}, 13
    s_add_u32 s{S_T0}, s{S_T0}, {KRING}
    v_lshl_add_u32 v105, v101, 8, s{S_T0}
    v_lshrrev_b32 v107, 1, v100
    v_and_b32 v108, 1, v100
    v_lshl_add_u32 v107, v108, 1, v107
    v_xor_b32 v107, v107, v101
    v_lshl_add_u32 v{AK(0)}, v107, 4, v105
    """)
    for s in range(1, 4):
        A(f"v_xor_b32 v{AK(s)}, {s << 6}, v{AK(0)}")
    A(f"""
    s_add_u32 s{S_T0}, s{S_T0}, {VRING - KRING}
    v_lshl_add_u32 v105, v100, 2, v102
    v_lshl_add_u32 v105, v105, 8, s{S_T0}
    v_lshl_add_u32 v105, v104, 3, v105
    v_lshl_add_u32 v105, v103, 4, v105
    v_lshl_add_u32 v{AV(0)}, v106, 5, v105
    """)
    for T in range(1, 8):
        A(f"v_xor_b32 v{AV(T)}, {T << 5}, v{AV(0)}")
    A(f"s_mov_b32 s{S_C}, {f32(1.4426950408889634 / 128 ** 0.5)}\ns_mov_b32 s{S_C + 1}, s{S_C}")
    A(f"s_mov_b32 s{S_T2}, {-3 * WSLOT}\ns_mov_b32 s{S_T3}, {-3 * BSLOT}\ns_mov_b32 s{S_SLOT}, 0")
    A([f"v_pk_mov_b32 {v2(r)}, 0, 0" for r in range(0, 96, 2)])
    if cfg.tag or cfg.oclear:
        A([f"v_mov_b32 v{r}, -1" for r in range(116, 120)])
    xclear = [f"s_mul_i32 s{S_T0}, s{S_W}, 9216", f"s_mul_i32 s{S_T1}, s2, 36864", f"s_add_u32 s{S_T0}, s{S_T0}, s{S_T1}", f"s_add_u32 s{S_T0}, s{S_T0}, {WS_X}"]
    for k in range(9):
        if k and k % 4 == 0:
            xclear.append(f"s_add_u32 s{S_T0}, s{S_T0}, 4096")
        xclear.append(f"buffer_store_dwordx4 v[116:119], v109, {srd(sWS)}, s{S_T0} offen offset:{(k % 4) * 1024} sc1")
    if cfg.tag and not cfg.clear_at:
        A(xclear)
    if cfg.oclear:
        A(f"""s_mul_i32 s{S_T0}, s{S_GRP}, 393216
        s_mul_i32 s{S_T1}, s{S_J}, 49152
        s_add_u32 s{S_T0}, s{S_T0}, s{S_T1}
        s_mul_i32 s{S_T1}, s{S_W}, 12288
        s_add_u32 s{S_T0}, s{S_T0}, s{S_T1}""")
        for k in range(12):
            if k and k % 4 == 0:
                A(f"s_add_u32 s{S_T0}, s{S_T0}, 4096")
            A(f"buffer_store_dwordx4 v[116:119], v109, {srd(sWS)}, s{S_T0} offen offset:{(k % 4) * 1024} sc1")
    count = f"""s_lshl_b32 s{S_T0}, 1, s{S_XCC}
    v_mov_b32 v{V_CHK}, s{S_T0}
    s_mov_b64 exec, 1
    s_waitcnt vmcnt(0)
    buffer_atomic_add v{V_CHK}, v{V_TMP}, {srd(sDBG)}, 0 offen
    s_mov_b64 exec, -1""".split("\n")
    rare = [["L_count:", f"s_cmp_eq_u32 s{S_FLAG}, {cfg.fetch_at}", "s_cbranch_scc1 L_fetch", f"s_mov_b32 s{S_FLAG}, {cfg.fetch_at}",
             "s_waitcnt vmcnt(0)", f"s_cmp_lg_u32 s{S_W}, 0", "s_cbranch_scc1 L_counted"] + count + ["s_branch L_counted",
             "L_fetch:", f"buffer_load_dword v{V_CHK}, v{V_TMP}, {srd(sDBG)}, 0 offen sc1", "s_branch L_counted"]]
    if cfg.clear_at:
        assert cfg.latefetch and cfg.tag and min(cfg.clear_at, cfg.clear_b or 99) > cfg.count_at + 1
        rare = [["L_count:", f"s_cmp_le_u32 s{S_FLAG}, {cfg.count_at + 1}", "s_cbranch_scc1 L_drain"] + xclear
                + [f"s_cmp_eq_u32 s{S_W}, 0", f"s_cselect_b32 s{S_FLAG}, {cfg.count_at}, {cfg.count_at + 1}", "s_branch L_counted",
                   "L_drain:", "s_waitcnt vmcnt(0)", f"s_cmp_lg_u32 s{S_W}, 0", "s_cbranch_scc1 L_counted"] + count + ["s_branch L_counted"]]
        A(f"s_bitcmp{1 - cfg.clsinv}_b32 s2, {cfg.cls}\ns_cselect_b32 s{S_FLAG}, {cfg.clear_b or cfg.clear_at}, {cfg.clear_at}")
    elif cfg.latefetch:
        assert not (cfg.tag or cfg.oclear or cfg.stag)
        rare = [["L_count:"] + count + ["s_branch L_counted"]]
        A(f"""s_lshr_b32 s{S_T0}, s2, {cfg.spreadsh}
        s_and_b32 s{S_T0}, s{S_T0}, {cfg.spreadc}
        s_sub_u32 s{S_T0}, {cfg.count_at}, s{S_T0}
        s_cmp_eq_u32 s{S_W}, {4 if cfg.nocount else 0}
        s_cselect_b32 s{S_FLAG}, s{S_T0}, 0""")
    else:
        A(f"s_cmp_eq_u32 s{S_W}, 0\ns_cselect_b32 s{S_FLAG}, {cfg.count_at}, {cfg.count_at + 1}")
    assert not (cfg.stag and (cfg.tag or cfg.oclear))
    if cfg.stag:
        A([f"s_cmp_ge_u32 s{S_BP}, 2", f"s_cselect_b32 s{S_T1}, s{S_FLAG}, 0", f"s_cmp_lg_u32 s{S_T1}, {cfg.count_at}", "s_cbranch_scc1 L_nocount"]
          + count + [f"s_mov_b32 s{S_FLAG}, {cfg.fetch_at}", "L_nocount:"])
    A("s_barrier")
    A(gemm_reads(0, 0, "q"))
    gemm_loop(P, tr, cfg, "q", "L_qloop", 16)
    A(k_reads(0))
    def judge(v):
        return f"""v_lshrrev_b32 v{VT(0)}, 4, v{v}
        v_and_b32 v{VT(0)}, 0x0f0f0f0f, v{VT(0)}
        v_and_b32 v{VT(1)}, 0x0f0f0f0f, v{v}
        v_add_u32 v{VT(0)}, v{VT(0)}, v{VT(1)}
        v_sad_u8 v{VT(0)}, v{VT(0)}, 0, 0
        v_readfirstlane_b32 s{S_T1}, v{v}
        v_cmp_ne_u32 vcc, 8, v{VT(0)}
        s_lshl_b32 s{S_T0}, 8, s{S_XCC}
        s_cmp_eq_u32 s{S_T0}, s{S_T1}
        s_cselect_b32 s{S_FLAG}, {cfg.local}, 0
        s_cmp_eq_u64 vcc, 0
        s_cselect_b32 s{S_FLAG}, s{S_FLAG}, 2""".split("\n")

    dbgaddr = lambda v: [f"v_and_b32 v{v}, 3, v{V_TMP}", f"v_xor_b32 v{v}, s{S_GRP}, v{v}", f"v_lshlrev_b32 v{v}, 2, v{v}"]
    ahook = []
    if cfg.latefetch:
        ahook = [f"s_cmp_le_u32 s{S_CNT}, 2", "s_cbranch_scc1 L_ahook", "L_ahooked:"]
        rare.append(["L_ahook:", f"s_cmp_eq_u32 s{S_CNT}, 1", "s_cbranch_scc1 L_judge"] + dbgaddr(VT(0))
                    + [f"buffer_load_dword v{V_CHK}, v{VT(0)}, {srd(sDBG)}, 0 offen sc1", "s_branch L_ahooked", "L_judge:", "s_waitcnt vmcnt(0)"]
                    + judge(V_CHK) + ([f"s_mov_b32 s{S_FLAG}, 1"] if cfg.nocount else []) + [f"v_mov_b32 v{V_CHK}, 1", "s_branch L_ahooked"])
    else:
        A(["s_waitcnt vmcnt(0)"] + judge(V_CHK))
    A([f"v_pk_mul_f32 {v2(r)}, {v2(r)}, s[{S_C}:{S_C + 1}]" for r in range(0, 96, 2)])

    def q_frag(s):
        return acc_to_frag(s) + [f"v_permlane16_swap_b32 v{QF(s, t) + h}, v{QF(s, t) + 2 + h}" for t in T3 for h in range(2)]

    qk0 = qk_mfma(True)
    qk0 = [qk0[kt * 12 + s * 3 + t] for s in range(4) for kt in range(2) for t in T3]
    zero = [f"v_mov_b64 {v2(r)}, 0" for r in range(0, 96, 2)]
    addr = f"""{lane_id(V_TMP)}
    s_mul_i32 s{S_T0}, s{S_GRP}, 393216
    s_mul_i32 s{S_T1}, s{S_J}, 49152
    s_add_u32 s{S_T0}, s{S_T0}, s{S_T1}
    s_add_u32 s{S_T0}, s{S_T0}, s{S_LWB}
    v_lshl_add_u32 v{V_OST}, v{V_TMP}, 4, s{S_T0}
    s_andn2_b32 s{S_T0}, s2, 0x38
    s_lshl_b32 s{S_T0}, s{S_T0}, 11
    s_lshl_b32 s{S_T1}, s{S_J}, 2
    s_add_u32 s{S_T0}, s{S_T0}, s{S_T1}
    s_lshl_b32 s{S_T1}, s{S_W}, 9
    s_add_u32 s{S_T0}, s{S_T0}, s{S_T1}
    s_add_u32 s{S_T0}, s{S_T0}, {WS_INBOX}
    v_lshl_add_u32 v{V_FLG}, v{V_TMP}, 14, s{S_T0}
    v_mov_b32 v{V_CHK}, 1""".split("\n")
    A(q_frag(0))
    A(weave(qk0, spread(addr, 0, 20) + [(6 * s - 6 + k // 3, x) for s in range(1, 4) for k, x in enumerate(q_frag(s))] + spread(zero[:12], 18, 23)))
    A(zero[12:20])
    A(row_max())
    A([f"v_pk_add_f32 {v2(SS(kt, t) + r)}, {v2(SS(kt, t) + r)}, {v2(VD(t) & ~1)} op_sel:[0,{VD(t) & 1}] op_sel_hi:[1,{VD(t) & 1}] neg_lo:[0,1] neg_hi:[0,1]"
       for kt in range(2) for t in T3 for r in (0, 2)])
    A([f"v_sub_f32 v{NM(t) + r}, 0, v{VD(t)}" for t in T3 for r in range(4)])
    A([f"v_mov_b64 {v2(VL(t))}, 0" for t in T3])
    A(exps(0, 0) + exps(0, 1) + exps(1, 0))
    A(zero[20:])
    A("s_barrier")
    A(k_reads(1))

    def iteration(i):
        pre = pk_sum(0, 0) + pk_sum(0, 1) + pk_sum(1, 0) + p_cvt(0) + p_cvt(1, 0)
        vr = [x for T in range(8) for x in v_reads(T, i)]
        vgap = list(range(8, 22)) + [23, 24]
        add11 = [f"v_add_f32 v{VL(t) + r}, v{VL(t) + r}, v{SS(1, t) + 2 + r}" for t in T3 for r in range(2)]
        early = exps(0, 0) + exps(0, 1) + exps(1, 0)
        fill = ([(5, "s_waitcnt lgkmcnt(0)"), (22, "s_waitcnt lgkmcnt(4)"), (35, "s_waitcnt lgkmcnt(0)")]
                + ([(12, f"s_sub_u32 s{S_CNT}, s{S_CNT}, 1"), (40, f"s_cmp_lg_u32 s{S_CNT}, 0")] if i == 2 else [])
                + list(zip(vgap, vr)) + list(zip(range(6), exps(1, 1))) + list(zip((6, 6, 7, 7, 8, 9), add11)) + list(zip((10, 11, 11), p_cvt(1, 1)))
                + list(zip(range(16, 22), guard_max(0))) + list(zip((25, 25, 26, 26, 27, 27), guard_max(1)))
                + [(28, f"v_cmp_lt_f32 vcc, s{S_C}, v{VX}"), (29, f"s_cbranch_vccnz L_up_{i}")] + list(zip(range(30, 48), early)))
        mf = qk_mfma() + pv_mfma(cfg)
        rare.append([f"L_up_{i}:", "s_waitcnt lgkmcnt(0)"] + mf[30:] + row_max() + [f"v_max_f32 v{VD(t)}, 0, v{VD(t)}" for t in T3] + shift_scores()
                    + [f"v_exp_f32 v{VA(t)}, -v{VD(t)}" for t in T3]
                    + [f"v_sub_f32 v{NM(t) + r}, v{NM(t) + r}, v{VD(t)}" for t in T3 for r in range(4)]
                    + [f"v_mul_f32 v{VL(t) + r}, v{VL(t) + r}, v{VA(t)}" for t in T3 for r in range(2)]
                    + rescale(VA) + early + [f"s_cmp_lg_u32 s{S_CNT}, 0", f"s_branch L_back_{i}"])
        return pre + ["s_waitcnt lgkmcnt(6)"] + weave(mf, fill) + [f"L_back_{i}:"]

    A(f"s_mov_b32 s{S_C}, {f32(cfg.thr)}\ns_mov_b32 s{S_CNT}, 5\ns_branch L_aenter\n.p2align 3")
    top = P.add(["L_aloop:"] + ahook + ["s_barrier"] + k_reads(1) + ["L_aenter:"])
    body = P.add(iteration(0) + ["s_barrier"] + k_reads(2) + iteration(1) + ["s_barrier"] + k_reads(0) + iteration(2)
                 + ["s_cbranch_scc1 L_aloop"])
    tr.extend(body + top + body)
    A(exps(1, 1) + pk_sum(0, 0) + pk_sum(0, 1) + pk_sum(1, 0) + pk_sum(1, 1))
    A([f"v_add_f32 v{VL(t)}, v{VL(t)}, v{VL(t) + 1}" for t in T3])
    A(xlane("v_add_f32", [VL(t) for t in T3], [VT(t) for t in T3]))
    A([f"v_rcp_f32 v{VL(t)}, v{VL(t)}" for t in T3])
    bc = "op_sel_hi:[1,0]"
    A([f"v_pk_mul_f32 {v2(SS(kt, t) + r)}, {v2(SS(kt, t) + r)}, {v2(VL(t))} {bc}" for kt in range(2) for t in T3 for r in (0, 2)])
    A(p_cvt(0) + p_cvt(1))
    oscale = [f"v_pk_mul_f32 {v2(ACC(T, t) + r)}, {v2(ACC(T, t) + r)}, {v2(VL(t))} {bc}" for T in range(8) for t in T3 for r in (0, 2)]
    A(oscale[:24])
    A("s_barrier")
    A([x for T in range(8) for x in v_reads(T, 15)])
    A(oscale[24:])

    def last_pv(pol):
        def o_out(s):
            return (acc_to_frag(s) + [f"s_mov_b32 s{S_T0}, {(s >> 1) * 24576 + (s & 1) * 3072}"]
                    + [f"buffer_store_dwordx4 {v4(QF(s, t))}, v{V_OST}, {srd(sWS)}, s{S_T0} offen offset:{t * 1024} {pol}" for t in T3])
        fill = []
        for s in range(3):
            o = o_out(s)
            fill += [(6 * s + 12, x) for x in o[12:]] if s < 2 else []
            fill += spread(o[:12], 6 * s + 6, 6 * s + 11)
        return weave(pv_mfma(cfg), fill) + o_out(2)[12:] + o_out(3)

    A([f"s_cmp_lg_u32 s{S_FLAG}, 1", "s_cbranch_scc1 L_far"] + last_pv("") + ["L_near:"])
    rare.append(["L_far:"] + last_pv("sc1")
                + [f"v_and_b32 v{VA(0)}, 3, v{V_TMP}", f"v_xor_b32 v{VA(0)}, s{S_GRP}, v{VA(0)}", f"v_lshlrev_b32 v{VA(0)}, 2, v{VA(0)}",
                   f"s_mov_b32 s{S_SPIN}, 0", "L_rechk:", f"s_cmp_lg_u32 s{S_FLAG}, 2", "s_cbranch_scc1 L_rechk_done",
                   f"buffer_load_dword v{VA(1)}, v{VA(0)}, {srd(sDBG)}, 0 offen sc1", "s_waitcnt vmcnt(0)"] + judge(VA(1))
                + [f"s_add_u32 s{S_SPIN}, s{S_SPIN}, 1", f"s_cmp_lt_u32 s{S_SPIN}, {cfg.chk_max}", "s_cbranch_scc1 L_rechk",
                   "L_rechk_done:", f"s_mov_b32 s{S_FLAG}, 0", "s_branch L_near"])
    stamp()
    if cfg.w1late:
        A("s_barrier")
    fst = f"buffer_store_dword v{V_CHK}, v{V_FLG}, {srd(sWS)}, 0 offen"
    flag = [f"s_cmp_eq_u32 s{S_FLAG}, 0", "s_mov_b64 exec, 0xff", "s_waitcnt vmcnt(0)", "s_cbranch_scc1 L_farflag", fst, "L_flagged:", "s_mov_b64 exec, -1"]
    rare.append(["L_farflag:", fst + " sc1", "s_branch L_flagged"])
    A(f"""
    s_lshl_b32 s{S_T0}, s{S_HG}, 6
    v_and_b32 v{AW(0)}, 0xfff, v{AV(0)}
    v_xor_b32 v{AW(0)}, s{S_T0}, v{AW(0)}
    """)
    for T in range(1, 8):
        A(f"v_xor_b32 v{AW(T)}, {T << 5}, v{AW(0)}")
    A(f"""
    s_add_u32 s{S_T0}, s{S_LWB}, {BRING}
    v_lshl_add_u32 v{AB(0)}, v{V_TMP}, 4, s{S_T0}
    v_mov_b32 v{AK(1)}, 1
    """)
    if cfg.flag_after < 0:
        A(flag)
        stamp()
    A("s_barrier")
    A(gemm_reads(0, 0, "o", with_b=False))
    wstep = [f"v_add_u32 v{AW(T)}, {WSLOT}, v{AW(T)}" for T in range(8)]
    for hs in range(0 if cfg.bdirect else 4):
        if hs == cfg.flag_after:
            A(flag)
            stamp()
        fill = []
        if hs < 3:
            fill += spread(gemm_reads((hs + 1) & 1, (hs + 1) & 1, "o", with_b=False), 0, 15)
        if hs in (0, 2):
            fill += spread(wstep, 16, 23)
        A(weave(gemm_mfma(cfg, hs & 1, bsrc=lambda t: QF(hs, t), zero=(hs == 0)), fill))
    xaddr = (f"""
    s_mul_i32 s{S_T0}, s{S_W}, 9216
    s_add_u32 s{S_T0}, s{S_T0}, {WS_X}
    v_lshl_add_u32 v{AB(1)}, v{V_TMP}, 4, s{S_T0}
    v_and_b32 v{AK(3)}, 3, v{V_TMP}
    s_lshl_b32 s{S_T0}, s{S_W}, 9
    s_add_u32 s{S_T0}, s{S_T0}, {WS_INBOX}
    v_lshl_add_u32 v{AK(2)}, v{AK(3)}, 7, s{S_T0}
    v_xor_b32 v{AK(0)}, s2, v{AK(3)}
    v_lshl_add_u32 v{AK(0)}, v{AK(0)}, 11, v{AK(2)}
    v_max_u32 v{AK(3)}, 1, v{AK(3)}
    s_lshl_b32 s{S_T1}, s2, 11
    s_add_u32 s{S_T0}, s{S_T0}, s{S_T1}
    v_lshl_add_u32 v{AK(2)}, v{AK(3)}, 7, s{S_T0}
    v_and_b32 v{AV(0)}, 15, v{V_TMP}
    v_bfe_u32 v{AV(1)}, v{V_TMP}, 4, 1
    v_bfe_u32 v{AV(2)}, v{V_TMP}, 5, 1
    s_mul_i32 s{S_T0}, s{S_BP}, 192
    s_mul_i32 s{S_T1}, s{S_W}, 48
    s_add_u32 s{S_T0}, s{S_T0}, s{S_T1}
    s_lshl_b32 s{S_T0}, s{S_T0}, 12
    s_lshl_b32 s{S_T1}, s{S_BLK}, 11
    s_add_u32 s{S_T0}, s{S_T0}, s{S_T1}
    s_lshl_b32 s{S_T1}, s{S_NU}, 8
    s_add_u32 s{S_T0}, s{S_T0}, s{S_T1}
    s_lshl_b32 s{S_T1}, s{S_HG}, 6
    s_add_u32 s{S_T0}, s{S_T0}, s{S_T1}
    v_lshl_add_u32 v{AV(0)}, v{AV(0)}, 12, s{S_T0}
    v_lshl_add_u32 v{AV(0)}, v{AV(1)}, 5, v{AV(0)}
    v_lshl_add_u32 v{AV(0)}, v{AV(2)}, 4, v{AV(0)}
    """)
    if not cfg.bdirect:
        A(xaddr + f"s_mov_b32 s{S_SLOT}, 2")
    if cfg.wb:
        A(f"""s_and_b32 s{S_T0}, s2, {cfg.wbmask}
        s_or_b32 s{S_T0}, s{S_T0}, s{S_W}
        s_cselect_b32 s{S_FLAG}, 0, {cfg.wb}""")
        rare.append(["L_wb:", "buffer_wbl2 sc1", "s_branch L_wbdone"])
    XF = QF
    after = []
    mf = gemm_mfma(cfg, 1)
    if cfg.bdirect:
        assert cfg.par in (0, 1) and not cfg.oord and cfg.flag_after in (-1, 1)
        ring = [FB(0, 0), FB(1, 0)] + [QF(s, 0) for s in range(4)]
        BR = lambda h: (lambda t: ring[(h - 4) % 6] + 4 * t)
        rel = o_rel(cfg)[2:]
        tbl = sum(r << (4 * n) for n, r in enumerate(rel))
        nxt = [f"s_add_u32 s{S_BO}, s{S_TBL}, s{S_J2}", f"s_and_b32 s{S_BO}, s{S_BO}, 15", f"s_mul_i32 s{S_BO}, s{S_BO}, 24576",
               f"s_lshr_b64 s[{S_TBL}:{S_TBL + 1}], s[{S_TBL}:{S_TBL + 1}], 4"]
        bload = lambda h: [f"buffer_load_dwordx4 {v4(BR(h)(t))}, v{AV(3) if h & 1 else AB(0)}, {srd(sWS)}, s{S_BO} offen offset:{t * 1024} {cfg.pol_ob}" for t in T3]
        bgaps = [int(x) for x in cfg.bgaps.split(".")]
        sal = [f"s_add_u32 s{S_SLOT}, s{S_SLOT}, 1", f"s_and_b32 s{S_SLOT}, s{S_SLOT}, 3", f"s_cselect_b32 s{S_DW}, {WSLOT}, s{S_T2}"]
        val = [f"v_add_u32 v{AW(T)}, s{S_DW}, v{AW(T)}" for T in range(8)]

        def half(h, extra=()):
            b = h & 1
            fill = []
            if 2 <= h <= 26:
                fill += (list(zip(range(4, 8), nxt)) if b else []) + list(zip(bgaps, bload(h + 5)))
            if b:
                fill += spread(gemm_reads(0, 0, "o", with_b=False), -1, 14) + [(22, "s_waitcnt lgkmcnt(0)")]
            else:
                fill += spread(gemm_reads(1, 1, "o", with_b=False), 0, 15) + list(zip(range(3), sal)) + list(zip((8, 9, 10, 11, 12, 13, 14, 16), val))
                fill += [(22, "s_waitcnt lgkmcnt(0)")] + ([(22, "s_barrier")] if 2 <= h <= 28 or (h == 0 and cfg.w1late) else [])
            if 3 <= h <= 30:
                fill += [(23, f"s_waitcnt vmcnt({3 * min(4, 30 - h)})")]
            return weave(gemm_mfma(cfg, b, bsrc=BR(h), zero=(h == 0)), fill + list(extra))

        A(f"""s_mul_i32 s{S_T0}, s{S_GRP}, 393216
        s_add_u32 s{S_T0}, s{S_T0}, s{S_LWB}
        v_lshl_add_u32 v{AB(0)}, v{V_TMP}, 4, s{S_T0}
        v_add_u32 v{AV(3)}, 3072, v{AB(0)}
        s_mov_b32 s{S_TBL}, {tbl & 0xffffffff}
        s_mov_b32 s{S_TBL + 1}, {tbl >> 32}
        s_lshl_b32 s{S_J2}, s{S_J}, 1
        s_mov_b32 s{S_SLOT}, 0""")
        xa = [x.strip() for x in xaddr.split("\n") if x.strip()]
        A(half(0))
        if cfg.flag_after == 1:
            A(flag)
            stamp()
        A(half(1, spread(xa, 0, 21)))
        A(["s_barrier"] + nxt + bload(4) + bload(5) + nxt + bload(6))
        A(half(2))
        A(f"s_mov_b32 s{S_CNT}, 4\n.p2align 3")
        body = P.add(["L_oloop:"] + half(3) + half(4) + half(5) + half(6) + half(7)
                     + half(8, [(5, f"s_sub_u32 s{S_CNT}, s{S_CNT}, 1"), (6, f"s_cmp_lg_u32 s{S_CNT}, 0")]) + ["s_cbranch_scc1 L_oloop"])
        tr.extend(body + body)
        XF = lambda i, t: QF(0, t) if i == 0 else 144 + ((i - 1) * 3 + t) * 4
        mf = gemm_mfma(cfg, 1, bsrc=BR(31))
        if not cfg.defer:
            for h in range(27, 31):
                A(half(h))
        else:
            rd = lambda h, T, reg: [f"ds_read_b64_tr_b16 {v2(reg + 2 * u)}, v{AW(T)} offset:{(h - 28) * 8192 + u * 4096}" for u in range(2)]
            own = lambda h, T: {27: FA(1, T), 28: FA(0, T), 29: QF(2, 0) + 4 * T, 30: FA(1, T), 31: FA(0, T)}[h]
            ownrd = lambda h: [x for T in range(2) for x in rd(h, T, own(h, T))]
            for h in range(27, 31):
                b = h & 1
                reads = [x for T in range(2, 8) for x in rd(h + 1, T, FA(1 - b, T))] + ownrd(28 + (h - 27) // 2)[2 * (1 - b):2 * (1 - b) + 2]
                fill = spread(reads, -1 if b else 0, 12 if b else 13)
                fill += [(16, "s_waitcnt lgkmcnt(2)")] + ([(16, "s_barrier")] if h == 28 else []) + [(17, f"s_waitcnt vmcnt({3 * (30 - h)})")]
                A(weave(gemm_mfma(cfg, b, bsrc=BR(h))[6:], fill))
            XF = lambda i, t: {0: QF(0, t), 1: FA(0, 2 + t), 2: FA(0, 5 + t), 3: FA(1, 2 + t)}[i]
            late = [f"{MFMA} {v4(ACC(T, t))}, {v4(own(h, T))}, {v4(BR(h)(t))}, {v4(ACC(T, t))}" for h in range(27, 32) for T, t in order(2, cfg.snake)]
            mf = late[:6] + mf[6:]
            after = weave(late[6:], list(zip(range(0, 4), ownrd(30))) + list(zip(range(6, 10), ownrd(31))))
    else:
        A("s_barrier")
        A(gemm_reads(0, 0, "o"))
        gemm_loop(P, tr, cfg, "o", "L_oloop", 14)
    fill = []
    for i in range(1, 4):
        so = [f"s_xor_b32 s{S_T0}, s2, {i}", f"s_mul_i32 s{S_T0}, s{S_T0}, 36864", f"s_add_u32 s{S_T0}, s{S_T0}, {(i - 1) * 3072}"]
        st = [f"buffer_store_dwordx4 {v4(XF(i, t))}, v{AB(1)}, {srd(sWS)}, s{S_T0} offen offset:{t * 1024} sc1" for t in T3]
        fill += [(6 * i + 6, x) for x in st] + list(zip(range(6 * i + 1, 6 * i + 4), so)) + spread(acc_to_frag(i, XF), 6 * i, 6 * i + 5)
    last = [x for g, x in fill if g == 24]
    A(weave(mf[6:] + mf[:6], [(g, x) for g, x in fill if g < 24]) + last)
    stamp()
    A(after)
    xload = lambda k, so: f"buffer_load_dwordx4 {v4(24 + 4 * k)}, v{AB(1)}, {srd(sWS)}, s{so} offen offset:{(k % 3) * 1024} sc1"

    def xadd(i):
        for k in range(3 * i, 3 * i + 3):
            for d in range(4):
                src, dst = 24 + 4 * k + d, ACC(d >> 1, k % 3) + 2 * (d & 1)
                A(f"""v_lshlrev_b32 v64, 16, v{src}
                v_and_b32 v65, 0xffff0000, v{src}
                v_pk_add_f32 {v2(dst)}, {v2(dst)}, v[64:65]""")

    so = (S_T0, S_T1, S_T2)
    xbase = f"s_mul_i32 s{S_T0}, s2, 36864\ns_add_u32 s{S_T1}, s{S_T0}, 3072\ns_add_u32 s{S_T2}, s{S_T0}, 6144"
    if not cfg.tag:
        A(["s_waitcnt vmcnt(0)", "s_mov_b64 exec, 14", f"buffer_store_dword v{AK(1)}, v{AK(0)}, {srd(sWS)}, 0 offen sc1", "s_mov_b64 exec, -1"])
        stamp()
        poll_loop(P, tr, "poll2", V_CHK, AK(2))
        stamp()
        A(xbase)
        A([xload(k, so[k // 3]) for k in range(9)])
        for i in range(3):
            xadd(i)
    else:
        stamp()
        A(xbase)
        A(f"s_mov_b32 s{S_SPIN}, 0")
        if cfg.tag == 2:
            probe = P.add(["L_probe:"] + [xload(3 * i + 2, so[i]) for i in range(3)] + f"""s_add_u32 s{S_SPIN}, s{S_SPIN}, 1
            s_cmp_ge_u32 s{S_SPIN}, {SPIN_MAX}
            s_cbranch_scc1 L_probed
            s_waitcnt vmcnt(0)
            v_max3_u32 v64, v35, v47, v59
            v_cmp_eq_u32 vcc, -1, v64
            s_cbranch_vccnz L_probe""".split("\n"))
            tr.extend(probe + probe)
            A("L_probed:")
        first = [xload(k, so[k // 3]) for k in range(9) if cfg.tag == 1 or k % 3 != 2]
        A(first)
        for i in range(3):
            b = 24 + 12 * i
            chk2 = ([f"v_max3_u32 v64, v{b}, v{b + 1}, v{b + 2}"] + [f"v_max3_u32 v64, v{b + k}, v{b + k + 1}, v64" for k in range(3, 11, 2)]
                    + [f"v_max_u32 v64, v{b + 11}, v64", "v_cmp_eq_u32 vcc, -1, v64"])
            A([f"L_x{i}:"] + chk2 + [f"s_cbranch_vccnz L_xr{i}", f"L_xok{i}:"])
            rare.append([f"L_xr{i}:"] + [xload(k, so[i]) for k in range(3 * i, 3 * i + 3)]
                        + [f"s_add_u32 s{S_SPIN}, s{S_SPIN}, 1", f"s_cmp_lt_u32 s{S_SPIN}, {SPIN_MAX}", "s_waitcnt vmcnt(0)",
                           f"s_cbranch_scc1 L_x{i}", f"s_branch L_xok{i}"])
            if i == 2:
                stamp()
            xadd(i)
    A(acc_to_frag(0))
    A([f"v_permlane16_swap_b32 v{QF(0, t) + h}, v{QF(0, t) + 2 + h}" for t in T3 for h in range(2)])
    if cfg.linout:
        A(f"s_lshl_b32 s{S_T0}, s2, 2\ns_add_u32 s{S_T0}, s{S_T0}, s{S_W}\ns_mul_i32 s{S_T0}, s{S_T0}, 3072\nv_lshl_add_u32 v{AV(0)}, v{V_TMP}, 4, s{S_T0}")
    for t in T3:
        A(f"s_mov_b32 s{S_T0}, {t * (1024 if cfg.linout else 65536)}\nbuffer_store_dwordx4 {v4(QF(0, t))}, v{AV(0)}, {srd(sOUT)}, s{S_T0} offen {cfg.pol_out}")
    if cfg.stamps:
        A("s_waitcnt vmcnt(0)")
        stamp()
        A(f"v_mov_b32 v1, 0")
        for k in range(nst[0]):
            A(f"v_writelane_b32 v1, s{S_ST + 2 * k}, {k}")
        A(f"""s_lshl_b32 s{S_T0}, s2, 3
        s_add_u32 s{S_T0}, s{S_T0}, s{S_WAVE}
        s_lshl_b32 s{S_T0}, s{S_T0}, 8
        s_add_u32 s{S_T0}, s{S_T0}, {WS_STAMP}
        v_lshl_add_u32 v2, v{V_TMP}, 2, s{S_T0}
        buffer_store_dword v1, v2, {srd(sWS)}, 0 offen""")
    A("L_exit:\ns_endpgm")
    blocks = {}
    for blk in rare:
        blocks[blk[0][:-1]] = P.add(blk)
    tr2 = []
    skip = None
    for ins in tr:
        if skip:
            if ins.text == skip + ":":
                skip = None
            else:
                continue
        tr2.append(ins)
        if ins.op.startswith("s_cbranch") and ins.text.split()[1] in blocks:
            blk = blocks[ins.text.split()[1]]
            tr2 += blk
            skip = blk[-1].text.split()[1]
    assert skip is None
    return tr, tr2


def generate(cfg):
    P = Prog()
    pre = P.add(("s_memrealtime s[96:97]\n" if cfg.stamps else "") + "s_cmp_ge_u32 s2, 256\ns_cbranch_scc1 L_exit")
    if cfg.remap:
        pre += P.add("""s_bfe_u32 s4, s2, 0x20003
        s_lshr_b32 s5, s2, 5
        s_and_b32 s2, s2, 7
        s_lshl_b32 s4, s4, 6
        s_lshl_b32 s5, s5, 3
        s_or_b32 s2, s2, s4
        s_or_b32 s2, s2, s5""")
    pre += prologue(P, cfg)
    tl = loader(P, cfg)
    tc, tc2 = compute(P, cfg)
    body = P.finish([pre + tc, pre + tc2] + [pre + t for t in tl])
    if cfg.align:
        body = align8(body)
    return (HEADER + "; @launch grid=(256,1,1) block=(512,1,1) lds=163840\n"
            + '.amdgcn_target "amdgcn-amd-amdhsa--gfx950"\n.text\n'
            + f".globl {NAME}_kernel\n.p2align 8\n.type {NAME}_kernel,@function\n{NAME}_kernel:\n" + body
            + f"""L_text_end:
.section .rodata,"a"
.p2align 6
.amdhsa_kernel {NAME}_kernel
  .amdhsa_next_free_vgpr 256
  .amdhsa_next_free_sgpr 102
  .amdhsa_accum_offset 256
  .amdhsa_group_segment_fixed_size 0
  .amdhsa_kernarg_size 104
  .amdhsa_user_sgpr_count 2
  .amdhsa_user_sgpr_kernarg_segment_ptr 1
  .amdhsa_system_sgpr_workgroup_id_x 1
  .amdhsa_float_denorm_mode_32 3
.end_amdhsa_kernel
""")


def parse(args):
    kw = {}
    for a in args:
        k, v = a.split("=")
        kw[k] = float(v) if k == "thr" else (int(v) if v.lstrip("-").isdigit() and not k.startswith(("pre", "ptouch", "spre", "bgaps", "order")) else v.replace("+", " "))
    return Cfg(**kw)


if __name__ == "__main__":
    open(sys.argv[1], "w").write(generate(parse(sys.argv[2:])))
```

```python
import struct, sys
from asmlib import Prog, weave, spread, balance, align8

NAME = "concat_heads__mha_block_cached__gqa_block_cached__near_ridge"
HEADER = open("cdna_kernels/" + NAME + ".s.ref").read().split("; Override launch")[0]

WS_O, WS_X, WS_INBOX, WS_STAMP, WS_DUMP = 0, 16 << 20, 48 << 20, 200 << 20, 64 << 20
WRING, BRING, KRING, VRING = 0, 65536, 65536, 114688
WSLOT, BSLOT, ASLOT = 16384, 24576, 16384
SPIN_MAX = 400000
T3 = range(3)

S_WAVE, sX, sK, sV, sWQ, sWO, sOUT, sWS, sDBG = 3, 20, 24, 28, 32, 36, 40, 44, 48
S_BLK, S_HG, S_J, S_BP, S_NU, S_W, S_H, S_DB = 52, 53, 54, 55, 56, 57, 58, 59
S_T0, S_T1, S_T2, S_T3, S_CNT, S_DW, S_C, S_SLOT = 60, 61, 62, 63, 64, 65, 66, 68
S_LWB, S_LWW, S_ROT, S_J2, S_SPIN, S_FLAG, S_XCC, S_GRP = 69, 70, 71, 72, 73, 74, 75, 76
S_MASK, S_PC = 77, 78
S_SB = 94
S_TBL, S_BO = 92, 94
S_KR = 67
S_ST = 80
srd = lambda r: f"s[{r}:{r+3}]"
v4 = lambda r: f"v[{r}:{r+3}]"
v2 = lambda r: f"v[{r}:{r+1}]"
f32 = lambda x: "0x%08x" % struct.unpack("<I", struct.pack("<f", x))[0]
MFMA = "v_mfma_f32_16x16x32_bf16"

ACC = lambda T, t: (T * 3 + t) * 4
QF = lambda s, t: 96 + (s * 3 + t) * 4
FA = lambda b, T: 144 + 44 * b + 4 * T
FB = lambda b, t: 144 + 44 * b + 32 + 4 * t
AW = lambda T: 232 + T
AB = lambda s: 240 + s
V_CHK, V_TMP = 242, 243
FR = lambda f: 144 + 4 * f
SS = lambda kt, t: 176 + (kt * 3 + t) * 4
PP = lambda t: 200 + 4 * t
NM = lambda t: 212 + 4 * t
VL = lambda t: 224 + 2 * t
VX = 230
V_OST, V_FLG = 241, 231
VD = lambda t: 232 + t
VT = lambda k: 235 + k
VA = lambda t: 238 + t
AK = lambda s: 244 + s
AV = lambda T: 248 + T


class Cfg:
    def __init__(self, **kw):
        self.pol_x = ""
        self.pol_wq = ""
        self.pol_kv = "nt"
        self.pol_wo = ""
        self.pol_ob = "sc1"
        self.rot = 7
        self.stamps = 0
        self.flag_after = 1
        self.pre = "40.0.0.0.0.0.0.0.0.0.0.4.4"
        self.last = 30
        self.win = 5
        self.win16 = 10
        self.wo_at = "31.31.33.33"
        self.qd = 2
        self.thr = 8.0
        self.local = 1
        self.pk = 0
        self.snake = 1
        self.align = 1
        self.prio = 0
        self.remap = 0
        self.nurot = 1
        self.otouch = 0
        self.stag = 0
        self.s1pre = 36
        self.s1win = 8
        self.s0win = 8
        self.s0late = 8
        self.s0sw = 28
        self.prog = 1
        self.pre1 = '0.0.0.0.0.0.0.0.20.0.12.8.8'
        self.tag = 0
        self.oclear = 0
        self.kbits = '10.11.12.13.14.15.16'
        self.hmap = 3
        self.pol_t = 'sc1'
        self.order = '48c59d26ae37bf'
        self.clear_at = 0
        self.clear_b = 0
        self.krot = 0
        self.ksh = 0
        self.sigma = 5
        self.xtouch = 1
        self.hgrot = 3
        self.lazyp = 2
        self.w1late = 0
        self.linout = 0
        self.spreadc = 0
        self.latefetch = 0
        self.spreadsh = 4
        self.nocount = 0
        self.cls = 3
        self.clsinv = 1
        self.winlate = 0
        self.late = 27
        self.wwin = 0
        self.defer = 1
        self.bdirect = 1
        self.bgaps = '17.19.21'
        self.bwin = 0
        self.afirst = 0
        self.winb = 0
        self.lastb = 0
        self.par = 1
        self.spre = ''
        self.coop = ''
        self.coopw0 = 31
        self.promote = 0
        self.pol_out = ''
        self.ptouch = ''
        self.wb = 0
        self.wbmask = 0xf8
        self.oord = 0
        self.od = 2
        self.ctouch = 1
        self.count_at = 13
        self.fetch_at = 3
        self.chk_max = 50000
        self.__dict__.update(kw)


def o_rel(cfg):
    if cfg.order:
        r = [0, 1] + [int(c, 16) for c in cfg.order]
        assert sorted(r) == list(range(16))
        return r
    return [m if not cfg.par else (4 * (m >> 1) + (m & 1) if m < 8 else 4 * ((m - 8) >> 1) + (m & 1) + 2) for m in range(16)]


def head_of(cfg, dst, j, tmp):
    if cfg.hmap == 0:
        return f"s_lshl_b32 s{dst}, s{S_HG}, 3\ns_add_u32 s{dst}, s{dst}, s{j}"
    if cfg.hmap == 1:
        return f"s_lshl_b32 s{dst}, s{j}, 2\ns_add_u32 s{dst}, s{dst}, s{S_HG}"
    if cfg.hmap in (2, 3):
        g = f"s_and_b32 s{dst}, s{j}, 3" if cfg.hmap == 2 else f"s_lshr_b32 s{dst}, s{j}, 1"
        return f"{g}\ns_xor_b32 s{dst}, s{dst}, s{S_HG}\ns_lshl_b32 s{dst}, s{dst}, 3\ns_add_u32 s{dst}, s{dst}, s{j}"
    lo = cfg.hmap - 3
    return (f"s_lshr_b32 s{dst}, s{j}, {lo}\ns_lshl_b32 s{dst}, s{dst}, 2\ns_add_u32 s{dst}, s{dst}, s{S_HG}\ns_lshl_b32 s{dst}, s{dst}, {lo}\n"
            f"s_and_b32 s{tmp}, s{j}, {(1 << lo) - 1}\ns_add_u32 s{dst}, s{dst}, s{tmp}")


def lane_id(v):
    return f"v_mbcnt_lo_u32_b32 v{v}, -1, 0\nv_mbcnt_hi_u32_b32 v{v}, -1, v{v}"


def make_srd(items):
    return "\n".join(f"s_mov_b32 s{r}, s{p}\ns_mov_b32 s{r+1}, s{p+1}\ns_mov_b32 s{r+2}, {n}\ns_mov_b32 s{r+3}, 0x20000" for r, p, n in items)


def prologue(P, cfg):
    return P.add(f"""
    s_bfe_u32 s{S_BLK}, s2, 0x10002
    s_mul_i32 s{S_T0}, s{S_BLK}, 40
    s_load_dwordx8 s[4:11], s[0:1], s{S_T0}
    s_add_u32 s{S_T1}, s{S_T0}, 32
    s_load_dwordx2 s[12:13], s[0:1], s{S_T1}
    s_load_dwordx4 s[16:19], s[0:1], 88
    s_load_dwordx2 s[14:15], s[0:1], 80
    v_lshrrev_b32 v1, 6, v0
    v_and_b32 v0, 63, v0
    s_and_b32 s{S_HG}, s2, 3
    v_readfirstlane_b32 s{S_WAVE}, v1
    s_bfe_u32 s{S_J}, s2, 0x30003
    s_lshr_b32 s{S_BP}, s2, 6
    {head_of(cfg, S_H, S_J, S_T2)}
    s_and_b32 s{S_W}, s{S_WAVE}, 3
    s_mul_i32 s{S_LWB}, s{S_W}, 6144
    s_lshl_b32 s{S_LWW}, s{S_W}, 12
    s_cmp_lt_u32 s{S_WAVE}, 4
    s_cbranch_scc1 L_compute
    """)


def late_ids(cfg):
    return f"""s_mul_i32 s{S_NU}, s{S_BP}, {2 * cfg.nurot}
    s_add_u32 s{S_NU}, s{S_NU}, s{S_J}
    s_and_b32 s{S_NU}, s{S_NU}, 7
    {f"s_xor_b32 s{S_NU}, s{S_NU}, s{S_BLK}" if cfg.sigma & 4 else ""}
    {f"s_lshl_b32 s{S_NU}, s{S_NU}, 2" if cfg.sigma & 3 else ""}
    {f"s_lshr_b32 s{S_NU}, {[0, 0x73625140, 0x75643120][cfg.sigma & 3]}, s{S_NU}" if cfg.sigma & 3 else ""}
    {f"s_and_b32 s{S_NU}, s{S_NU}, 7" if cfg.sigma & 3 else ""}
    s_and_b32 s{S_GRP}, s2, 7
    s_lshl_b32 s{S_T1}, s{S_BP}, 3
    s_add_u32 s{S_GRP}, s{S_GRP}, s{S_T1}"""


def x_touch(cfg, vaddr, vdst):
    if cfg.xtouch & 3 == 1:
        return [f"""s_lshr_b32 s{S_T0}, s2, 3
        s_lshl_b32 s{S_T0}, s{S_T0}, 2
        s_add_u32 s{S_T0}, s{S_T0}, s{S_HG}
        s_lshl_b32 s{S_T0}, s{S_T0}, 2
        s_add_u32 s{S_T0}, s{S_T0}, s{S_W}
        s_mul_i32 s{S_T0}, s{S_T0}, 3072
        v_min_u32 v{vaddr}, 23, v0
        v_lshlrev_b32 v{vaddr}, 7, v{vaddr}""", f"buffer_load_dword v{vdst}, v{vaddr}, {srd(sX)}, s{S_T0} offen"]
    return [f"""s_lshr_b32 s{S_T0}, s2, 3
    s_lshl_b32 s{S_T0}, s{S_T0}, 2
    s_add_u32 s{S_T0}, s{S_T0}, s{S_W}
    s_mul_i32 s{S_T0}, s{S_T0}, 12288
    s_add_u32 s{S_T1}, s{S_T0}, 6144
    v_min_u32 v{vaddr}, 47, v0
    v_lshlrev_b32 v{vaddr}, 7, v{vaddr}""", f"buffer_load_dword v{vdst}, v{vaddr}, {srd(sX)}, s{S_T0} offen",
            f"buffer_load_dword v{vdst}, v{vaddr}, {srd(sX)}, s{S_T1} offen"]


def code_touch(lane, vaddr, vdst):
    return f"""s_lshr_b32 s{S_T0}, s2, 3
    s_lshl_b32 s{S_T0}, s{S_T0}, 10
    v_and_b32 v{vaddr}, 7, v{lane}
    v_lshl_add_u32 v{vaddr}, v{vaddr}, 7, s{S_T0}
    v_min_u32 v{vaddr}, L_text_end-L_text-4, v{vaddr}
    global_load_dword v{vdst}, v{vaddr}, s[{S_PC}:{S_PC + 1}]"""


def poll_loop(P, tr, name, vdst, vaddr):
    tr.extend(P.add(f"s_mov_b32 s{S_SPIN}, 0"))
    loop = P.add(f"""L_{name}:
    buffer_load_dword v{vdst}, v{vaddr}, {srd(sWS)}, 0 offen sc1
    s_add_u32 s{S_SPIN}, s{S_SPIN}, 1
    s_cmp_ge_u32 s{S_SPIN}, {SPIN_MAX}
    s_cbranch_scc1 L_{name}_done
    s_waitcnt vmcnt(0)
    v_cmp_ne_u32 vcc, 1, v{vdst}
    s_cbranch_vccnz L_{name}""")
    tr.extend(loop + loop)
    tr.extend(P.add(f"L_{name}_done:"))


LX = lambda p: 8 + p
LW = lambda p: 14 + p
LK = lambda p: 18 + p
LV = lambda p: (22, 23, 34, 35)[p]
LWO = lambda p: 24 + p
LOB, LFLAG, LSTAMP, LPOLL = 28, 29, 30, 31
LDSW = lambda h: 1 + h
LTQ, LTO, LTB = 32, 33, 32
LPOOL = 36


def late_setup(A, cfg):
    kb = [int(x) for x in cfg.kbits.split(".")]
    padj = lambda p: ((p & 1) << kb[0]) + ((p >> 1) << kb[1]) - p * 1024
    assert min(padj(p) for p in range(4)) >= 0 and sorted(kb) == list(range(10, 17))
    A(f"""
    s_lshr_b32 s{S_T0}, s{S_W}, 1
    s_lshl_b32 s{S_T1}, s{S_BP}, 1
    s_add_u32 s{S_T0}, s{S_T0}, s{S_T1}
    s_lshl_b32 s{S_T0}, s{S_T0}, 5
    s_add_u32 s{S_T0}, s{S_T0}, s{S_H}
    s_lshl_b32 s{S_T0}, s{S_T0}, 17
    s_and_b32 s{S_T1}, s{S_W}, 1
    s_lshl_b32 s{S_T1}, s{S_T1}, {kb[2]}
    s_add_u32 s{S_T0}, s{S_T0}, s{S_T1}
    v_lshl_add_u32 v5, v1, 8, s{S_T0}
    v_xor_b32 v7, v2, v1
    """)
    for p in range(4):
        A(f"v_xor_b32 v3, {4 * p}, v7\nv_lshl_add_u32 v{LK(p)}, v3, 4, v5")
        if padj(p):
            A(f"v_add_u32 v{LK(p)}, {padj(p)}, v{LK(p)}")
    A(f"""
    v_lshl_add_u32 v{LV(0)}, v6, 4, v5
    v_xor_b32 v7, 8, v6
    v_lshl_add_u32 v{LV(1)}, v7, 4, v5
    v_add_u32 v{LV(2)}, {padj(2)}, v{LV(0)}
    v_add_u32 v{LV(3)}, {padj(3)}, v{LV(1)}
    v_add_u32 v{LV(1)}, {padj(1)}, v{LV(1)}
    {f"s_mov_b32 s{S_T0}, 0" if cfg.hmap else f"s_lshl_b32 s{S_T0}, s{S_HG}, 21"}
    s_lshl_b32 s{S_T1}, s{S_W}, 15
    s_add_u32 s{S_T0}, s{S_T0}, s{S_T1}
    s_lshl_b32 s{S_T1}, s{S_NU}, 8
    s_add_u32 s{S_T0}, s{S_T0}, s{S_T1}
    v_lshl_add_u32 v5, v1, 11, s{S_T0}
    v_add_u32 v{LTO}, s{S_T0}, v{LTO}
    v_lshl_add_u32 v{LWO(0)}, v6, 4, v5
    v_lshl_add_u32 v7, v7, 4, v5
    v_add_u32 v{LWO(1)}, {8192 - 1024}, v7
    v_add_u32 v{LWO(2)}, {2 * 8192 - 2048}, v{LWO(0)}
    v_add_u32 v{LWO(3)}, {3 * 8192 - 3072}, v7
    s_mul_i32 s{S_T0}, s{S_GRP}, 393216
    s_add_u32 s{S_T0}, s{S_T0}, s{S_LWB}
    v_lshl_add_u32 v{LOB}, v0, 4, s{S_T0}
    s_lshl_b32 s{S_T0}, s2, 11
    s_lshl_b32 s{S_T1}, s{S_W}, 9
    s_add_u32 s{S_T0}, s{S_T0}, s{S_T1}
    s_add_u32 s{S_T0}, s{S_T0}, {WS_INBOX}
    v_lshl_add_u32 v{LFLAG}, v4, 2, s{S_T0}
    s_lshl_b32 s{S_J2}, s{S_J}, 1
    s_add_u32 s{S_T0}, s{S_LWW}, {KRING}
    v_lshl_add_u32 v{LDSW(0)}, v0, 4, s{S_T0}
    v_add_u32 v{LDSW(1)}, {VRING - KRING}, v{LDSW(0)}
    """)


def loader(P, cfg):
    tr = []
    A = lambda t: tr.extend(P.add(t))
    A(f"""
    v_lshrrev_b32 v1, 4, v0
    v_and_b32 v2, 15, v0
    v_lshrrev_b32 v3, 3, v0
    v_and_b32 v4, 7, v0
    s_mul_i32 s{S_T0}, s{S_BP}, 192
    s_mul_i32 s{S_T1}, s{S_W}, 48
    s_add_u32 s{S_T0}, s{S_T0}, s{S_T1}
    s_lshl_b32 s{S_T0}, s{S_T0}, 11
    v_lshl_add_u32 v5, v3, 11, s{S_T0}
    v_xor_b32 v6, v4, v1
    v_lshl_add_u32 v{LX(0)}, v6, 4, v5
    v_xor_b32 v6, 4, v6
    v_lshl_add_u32 v7, v6, 4, v5
    """)
    for p in range(1, 6):
        A(f"v_add_u32 v{LX(p)}, {p * 16384 - (p % 4) * 1024}, v{7 if p & 1 else LX(0)}")
    A(f"""
    s_lshl_b32 s{S_T0}, s{S_W}, 17
    s_lshl_b32 s{S_T1}, s{S_H}, 8
    s_add_u32 s{S_T0}, s{S_T0}, s{S_T1}
    v_lshl_add_u32 v5, v1, 13, s{S_T0}
    v_lshlrev_b32 v6, 1, v1
    v_xor_b32 v6, v6, v2
    v_lshl_add_u32 v{LW(0)}, v6, 4, v5
    v_xor_b32 v7, 8, v6
    v_lshl_add_u32 v7, v7, 4, v5
    v_add_u32 v{LW(1)}, {32768 - 1024}, v{LW(0)}
    v_add_u32 v{LW(2)}, {2 * 32768 - 2048}, v7
    v_add_u32 v{LW(3)}, {3 * 32768 - 3072}, v7
    """)
    if cfg.rot == 1:
        A(f"s_add_u32 s{S_ROT}, s{S_BP}, s{S_J}\ns_and_b32 s{S_ROT}, s{S_ROT}, 3\ns_lshl_b32 s{S_ROT}, s{S_ROT}, 2")
    elif cfg.rot == 2:
        A(f"s_add_u32 s{S_ROT}, s{S_BP}, s{S_J}\ns_and_b32 s{S_ROT}, s{S_ROT}, 1\ns_lshl_b32 s{S_ROT}, s{S_ROT}, 3")
    elif cfg.rot == 3:
        A(f"s_lshl_b32 s{S_ROT}, s{S_HG}, 2")
    elif cfg.rot == 4:
        A(f"s_lshl_b32 s{S_ROT}, s{S_BP}, 2")
    elif cfg.rot == 5:
        A(f"s_lshl_b32 s{S_ROT}, s{S_J}, 1")
    elif cfg.rot in (7, 8, 9):
        A(f"s_lshr_b32 s{S_ROT}, s{S_J}, 1\ns_add_u32 s{S_ROT}, s{S_ROT}, s{S_BP}\ns_and_b32 s{S_ROT}, s{S_ROT}, 3\ns_lshl_b32 s{S_ROT}, s{S_ROT}, {9 - cfg.rot}")
    elif cfg.rot == 6:
        A(f"s_and_b32 s{S_ROT}, s{S_J}, 3\ns_lshl_b32 s{S_ROT}, s{S_ROT}, 2")
    else:
        A(f"s_mov_b32 s{S_ROT}, 0")
    A(f"""
    v_bfe_u32 v7, v0, 1, 4
    v_and_b32 v5, 1, v0
    v_lshlrev_b32 v5, 7, v5
    v_lshl_add_u32 v{LTO}, v7, 11, v5
    v_lshl_add_u32 v{LTQ}, v7, 13, v5
    v_add_u32 v{LTQ}, s{S_T0}, v{LTQ}
    """)
    A("s_waitcnt lgkmcnt(0)")
    A(make_srd(((sWQ, 10, 8 << 20), (sX, 4, 768 * 2048))))
    q0 = []
    if cfg.stamps:
        A(f"v_mov_b32 v{LSTAMP}, 0")
        A(loader_stamp(0))
        A(f"v_writelane_b32 v{LSTAMP}, s96, 63")
    if cfg.xtouch & 4:
        xt = x_touch(cfg, 3, LPOLL)
        A(xt)
        q0 += ["t"] * (len(xt) - 1)
    if cfg.afirst:
        A(f"s_bitcmp{1 - cfg.clsinv}_b32 s2, {cfg.cls}\ns_cbranch_scc1 L_bstart")
        for n in range(4 if cfg.cls == 6 else 0):
            A(f"""s_add_u32 s{S_T1}, s{S_ROT}, {n}
            s_lshl_b32 s{S_T1}, s{S_T1}, 19
            buffer_load_dword v{LPOLL}, v{LTQ}, {srd(sWQ)}, s{S_T1} offen""")
        A("s_branch L_started\nL_bstart:")
    if not cfg.stag:
        for n in range(2):
            for text, isload in q_stage(cfg, n):
                A(text)
                if isload:
                    q0.append(n)
    if cfg.afirst:
        A("L_started:")
    A(make_srd(((sK, 6, 32 << 20), (sV, 8, 32 << 20), (sWO, 12, 8 << 20), (sWS, 18, 256 << 20))))
    A(late_ids(cfg))
    late_setup(A, cfg)
    if cfg.krot:
        A(f"s_mul_i32 s{S_KR}, s2, {cfg.krot}\ns_lshr_b32 s{S_KR}, s{S_KR}, {cfg.ksh}\ns_lshl_b32 s{S_KR}, s{S_KR}, 13")
    if cfg.pre1:
        A(f"s_bitcmp{1 - cfg.clsinv}_b32 s2, {cfg.cls}\ns_cbranch_scc1 L_late")
        t0 = loader_role(P, cfg, list(tr), ["t"] * (4 if cfg.cls == 6 else 0) if cfg.afirst else q0, None, cfg.pre, "a")
        return [t0, loader_role(P, cfg, list(tr) + P.add("L_late:"), q0, None, cfg.pre1, "b")]
    if not cfg.stag:
        return [loader_role(P, cfg, tr, q0, None, cfg.pre)]
    A(f"s_cmp_ge_u32 s{S_BP}, 2\ns_cbranch_scc1 L_late")
    t0 = loader_role(P, cfg, list(tr), q0, 0)
    return [t0, loader_role(P, cfg, list(tr) + P.add("L_late:"), q0, 1)]


def loader_stamp(n):
    return (f"s_memrealtime s[{S_ST}:{S_ST+1}]\ns_memtime s[{S_ST+2}:{S_ST+3}]\ns_cmp_eq_u32 s{S_W}, 1\ns_waitcnt lgkmcnt(0)\n"
            f"s_cselect_b32 s{S_ST+4}, s{S_ST+2}, s{S_ST}\nv_writelane_b32 v{LSTAMP}, s{S_ST+4}, {n}")


def q_stage(cfg, n):
    dma = lambda vreg, sr, so, imm, pol: (f"buffer_load_dwordx4 v{vreg}, {srd(sr)}, s{so} offen offset:{imm} {pol} lds", True)
    first = cfg.promote & 1 and n < 4
    mask = {8: 7, 9: 3}.get(cfg.rot, 15)
    hgr = ""
    if cfg.hgrot == 1:
        hgr = f"s_add_u32 s{S_T1}, s{S_HG}, {n}\ns_and_b32 s{S_T1}, s{S_T1}, 3\ns_or_b32 s{S_T0}, s{S_T0}, s{S_T1}"
    if cfg.hgrot == 3:
        hgr = f"s_lshr_b32 s{S_T1}, s{S_T0}, 2\ns_xor_b32 s{S_T0}, s{S_T0}, s{S_T1}"
    if cfg.hgrot == 4:
        hgr = f"s_lshr_b32 s{S_T1}, s{S_T0}, 2\ns_and_b32 s{S_T1}, s{S_T1}, 2\ns_xor_b32 s{S_T0}, s{S_T0}, s{S_T1}"
    if cfg.hgrot == 5:
        hgr = f"s_lshr_b32 s{S_T1}, s{S_T0}, 1\ns_and_b32 s{S_T1}, s{S_T1}, 2\ns_xor_b32 s{S_T0}, s{S_T0}, s{S_T1}"
    if cfg.hgrot == 6:
        hgr = f"s_lshr_b32 s{S_T1}, s{S_T0}, 2\ns_lshl_b32 s{S_T0}, s{S_T0}, 2\ns_and_b32 s{S_T0}, s{S_T0}, 12\ns_or_b32 s{S_T0}, s{S_T0}, s{S_T1}"
    if cfg.hgrot == 7:
        hgr = f"s_lshl_b32 s{S_T1}, s{S_BLK}, 1\ns_xor_b32 s{S_T0}, s{S_T0}, s{S_T1}"
    if cfg.hgrot == 2:
        hgr = f"s_xor_b32 s{S_T1}, s{S_HG}, {n & 3}\ns_or_b32 s{S_T0}, s{S_T0}, s{S_T1}"
    o = [(f"""s_add_u32 s{S_T0}, s{S_ROT}, {n}
    s_add_u32 m0, s{S_LWW}, {WRING + (n % 4) * WSLOT}
    s_and_b32 s{S_T0}, s{S_T0}, {12 if cfg.hgrot in (1, 2) else mask}
    {hgr}
    {f"s_or_b32 s{S_T0}, s{S_T0}, {n & ~mask}" if n & ~mask else ""}
    s_lshl_b32 s{S_T1}, s{S_T0}, 19""", False)]
    o += [dma(LW(p), sWQ, S_T1, p * 1024, "nt" if first else cfg.pol_wq) for p in range(4)]
    if first:
        o.append((f"buffer_load_dword v{LPOLL}, v{LTQ}, {srd(sWQ)}, s{S_T1} offen {cfg.pol_t}", True))
    o.append((f"s_add_u32 m0, s{S_LWB}, {BRING + (n % 4) * BSLOT}\ns_lshl_b32 s{S_T0}, s{S_T0}, 7", False))
    o += [dma(LX(p), sX, S_T0, p * 1024, cfg.pol_x) for p in range(4)]
    o.append((f"s_add_u32 m0, s{S_LWB}, {BRING + (n % 4) * BSLOT + 4096}", False))
    o += [dma(LX(p), sX, S_T0, (p - 4) * 1024, cfg.pol_x) for p in range(4, 6)]
    return o


def loader_role(P, cfg, tr, q0, role, pre="", sfx=""):
    A = lambda t: tr.extend(P.add(t))
    sfx += "" if role is None else str(role)
    q = list(q0)

    flip = [0]

    def throttle(win):
        if win in (45, 55):
            flip[0] ^= 1
            win = win // 10 + flip[0]
        win = win or 56
        if win and len(q) >= win:
            A(f"s_waitcnt vmcnt({win - 1})")
            del q[:len(q) - (win - 1)]

    def dma(vreg, s, soff, imm, pol, tag, win=0):
        throttle(win)
        A(f"buffer_load_dwordx4 v{vreg}, {srd(s)}, {soff} offen offset:{imm} {pol} lds")
        q.append(tag)

    def wait(tag):
        if tag in q:
            idx = max(k for k, x in enumerate(q) if x == tag)
            A(f"s_waitcnt vmcnt({len(q) - 1 - idx})")
            del q[:idx + 1]

    def issue_q(n):
        for text, isload in q_stage(cfg, n):
            if isload:
                throttle(0)
                q.append(n)
            A(text)

    kv = []
    for e in range(17):
        if e <= 15:
            kv += [(16 + e, 0, e, p) for p in range(4)]
        if e >= 1:
            kv += [(16 + e, 1, e - 1, p) for p in range(4)]
    pool = list(range(LPOOL, 256, 4))
    parked = []
    state = dict(next=0, m0=None, soff=None, lds=False)

    def issue_kv(upto, k, win):
        state["m0"] = state["soff"] = None
        while state["next"] < upto:
            stage, isv, tile, p = kv[state["next"]]
            state["next"] += 1
            vo, sr = (LV(p), sV) if isv else (LK(p), sK)
            if stage <= k + 2 and state["m0"] != (stage, isv):
                A(f"s_add_u32 m0, s{S_LWW}, {(VRING if isv else KRING) + (tile % 3) * ASLOT}")
                state["m0"] = (stage, isv)
            if state["soff"] != tile:
                if cfg.krot:
                    A(f"s_add_u32 s{S_T0}, s{S_KR}, {tile * 8192}\ns_and_b32 s{S_T0}, s{S_T0}, 0x1e000")
                else:
                    A(f"s_mov_b32 s{S_T0}, {sum(((tile >> i) & 1) << int(b) for i, b in enumerate(cfg.kbits.split('.')[3:]))}")
                state["soff"] = tile
            if stage <= k + 2:
                dma(vo, sr, f"s{S_T0}", p * 1024, cfg.pol_kv, stage, win)
            else:
                if not pool:
                    unpark(k, 2)
                r = pool.pop(0)
                throttle(win)
                A(f"buffer_load_dwordx4 {v4(r)}, v{vo}, {srd(sr)}, s{S_T0} offen offset:{p * 1024} {cfg.pol_kv}")
                q.append(("r", r))
                parked.append((stage, isv, tile, p, r))
            if cfg.lazyp:
                unpark(k, cfg.lazyp, True)

    def unpark(k, most=99, landed=False):
        while parked and parked[0][0] <= k + 2 and most and not (landed and ("r", parked[0][4]) in q):
            most -= 1
            stage, isv, tile, p, r = parked.pop(0)
            wait(("r", r))
            A(f"ds_write_b128 v{LDSW(isv)}, {v4(r)} offset:{(tile % 3) * ASLOT + p * 1024}")
            pool.append(r)
            state["lds"] = True

    def o_index(m):
        if cfg.order:
            return f"s_add_u32 s{S_T0}, s{S_J2}, {o_rel(cfg)[m]}"
        if cfg.par:
            if m < 8:
                return f"s_add_u32 s{S_T0}, s{S_J2}, {4 * (m >> 1) + (m & 1)}"
            if cfg.par == 1:
                return f"s_add_u32 s{S_T0}, s{S_J2}, {4 * ((m - 8) >> 1) + (m & 1) + 2}"
            return f"s_lshl_b32 s{S_T0}, s{S_NU}, 1\ns_add_u32 s{S_T0}, s{S_T0}, {4 * ((m - 8) >> 1) + (m & 1) + 2}"
        if m < 2 or not cfg.oord:
            return f"s_add_u32 s{S_T0}, s{S_J2}, {m}"
        return f"""s_cmp_gt_u32 s{S_T3}, {(m - 2) // 2}
        s_cselect_b32 s{S_T0}, {m - 2}, {m}
        s_add_u32 s{S_T0}, s{S_T0}, s{S_T2}"""

    def issue_ow(m, tag, win=0):
        A(f"""{o_index(m)}
        s_add_u32 m0, s{S_LWW}, {WRING + (m % 4) * WSLOT}
        s_and_b32 s{S_T0}, s{S_T0}, 15
        s_lshl_b32 s{S_T1}, s{S_T0}, 17""")
        if cfg.hmap:
            A(f"""s_lshr_b32 s{S_T0}, s{S_T0}, 1
            {head_of(cfg, S_T2, S_T0, S_T3)}
            s_lshl_b32 s{S_T2}, s{S_T2}, 18
            s_and_b32 s{S_T1}, s{S_T1}, 0x20000
            s_add_u32 s{S_T1}, s{S_T1}, s{S_T2}""")
        first = cfg.promote & 2 and o_rel(cfg)[m] < 4
        for p in range(4):
            dma(LWO(p), sWO, f"s{S_T1}", p * 1024, "nt" if first else cfg.pol_wo, tag, 0 if first else win)
        if first:
            A(f"buffer_load_dword v{LPOLL}, v{LTO}, {srd(sWO)}, s{S_T1} offen {cfg.pol_t}")
            q.append("t")

    def touch_w(b):
        A(f"""s_lshl_b32 s{S_T0}, s{S_BP}, 17
        s_add_u32 s{S_T0}, s{S_T0}, {b << 19}
        buffer_load_dword v{LPOLL}, v{LTO}, {srd(sWO)}, s{S_T0} offen""")
        q.append("t")

    def touch_b(b):
        A(f"s_mov_b32 s{S_T0}, {b * 98304}\nbuffer_load_dword v{LPOLL}, v{LTB}, {srd(sWS)}, s{S_T0} offen sc1")
        q.append("t")

    coop = []
    spre = [int(x) for x in str(cfg.spre).split(".")] if cfg.spre else []
    sdone = [0]

    def scalar_pre():
        for _ in range(spre.pop(0) if spre else 0):
            n, r = divmod(sdone[0], 32)
            if n > 3:
                break
            if r == 0:
                A(f"""s_add_u32 s{S_T0}, s{S_NU}, {2 * n + 1}
                s_and_b32 s{S_T0}, s{S_T0}, 7
                s_lshl_b32 s{S_T0}, s{S_T0}, 18
                s_add_u32 s{S_T0}, s{S_T0}, s{S_DW}
                s_add_u32 s{S_SB + 2 * (n & 1)}, s12, s{S_T0}
                s_addc_u32 s{S_SB + 2 * (n & 1) + 1}, s13, 0""")
            A(f"s_load_dword s{S_SB + 4}, s[{S_SB + 2 * (n & 1)}:{S_SB + 2 * (n & 1) + 1}], {(r >> 2) * 2048 + (r & 3) * 64}")
            sdone[0] += 1

    def coop_after(m):
        for b, mm in enumerate(coop):
            if mm == m:
                touch_b(b + 1)
                touch_w(b + 1)

    def issue_ob(m, tag):
        A(f"""{o_index(m)}
        s_add_u32 m0, s{S_LWB}, {BRING + ((m - 2) % 4) * BSLOT}
        s_and_b32 s{S_T0}, s{S_T0}, 15
        s_mul_i32 s{S_T0}, s{S_T0}, 24576""")
        for p in range(4):
            dma(LOB, sWS, f"s{S_T0}", p * 1024, cfg.pol_ob, tag)
        A(f"s_add_u32 m0, s{S_LWB}, {BRING + ((m - 2) % 4) * BSLOT + 4096}\ns_add_u32 s{S_T1}, s{S_T0}, 4096")
        for p in range(2):
            dma(LOB, sWS, f"s{S_T1}", p * 1024, cfg.pol_ob, tag)

    nst = [1]

    def stamp():
        if cfg.stamps:
            A(loader_stamp(nst[0]))
            nst[0] += 1

    def barrier():
        if state["lds"]:
            A("s_waitcnt lgkmcnt(0)")
            state["lds"] = False
        A("s_barrier")
        stamp()

    end = lambda n: 0 if n < 16 else min(128, 4 + 8 * (n - 16))
    pre = [int(x) for x in str(pre).split(".")] if pre else []
    pre = [0] * (17 - len(pre)) + pre
    wo_at = [int(x) for x in str(cfg.wo_at).split(".")]
    wtag = lambda m: 33 if m < 2 else 33 + m
    if role == 1:
        A(f"""
        s_lshr_b32 s{S_T0}, s2, 3
        s_and_b32 s{S_T0}, s{S_T0}, 15
        s_lshl_b32 s{S_T0}, s{S_T0}, 2
        s_add_u32 s{S_T0}, s{S_T0}, s{S_W}
        s_lshl_b32 s{S_T1}, s{S_T0}, 13
        s_lshl_b32 s{S_T2}, s{S_HG}, 11
        s_add_u32 s{S_T1}, s{S_T1}, s{S_T2}
        v_lshrrev_b32 v3, 4, v0
        v_and_b32 v4, 15, v0
        v_lshl_add_u32 v5, v3, 19, s{S_T1}
        v_lshl_add_u32 v5, v4, 7, v5
        s_mul_i32 s{S_T1}, s{S_T0}, {6 * 2048}
        v_lshrrev_b32 v3, 3, v0
        v_min_u32 v3, 5, v3
        v_and_b32 v4, 7, v0
        v_lshl_add_u32 v6, v3, 11, s{S_T1}
        v_lshl_add_u32 v6, v4, 7, v6
        """)
        for qt in range(4):
            if qt % 2 == 0:
                A(f"buffer_load_dword v{LPOLL}, v6, {srd(sX)}, 0 offen offset:{(qt // 2) * 1024}")
                q.append("t")
            A(f"s_mov_b32 s{S_T0}, {qt << 21}\nbuffer_load_dword v{LPOLL}, v5, {srd(sWQ)}, s{S_T0} offen")
            q.append("t")
        A(f"s_mov_b32 s{S_T0}, {384 * 2048}")
        for h in range(2):
            A(f"buffer_load_dword v{LPOLL}, v6, {srd(sX)}, s{S_T0} offen offset:{h * 1024}")
            q.append("t")
        pre[0] = cfg.s1pre
        issue_kv(pre[0], -1, cfg.s1win)
    if cfg.afirst and sfx == "a":
        pre[0] = cfg.afirst
        issue_kv(pre[0], -1, cfg.bwin or 8)
    if cfg.stag or (cfg.afirst and sfx == "a"):
        issue_q(0)
        issue_q(1)
    base = sum(pre)
    issue_kv(pre[0], -1, 0)
    nq = 2
    for k in range(0, 33):
        wait(k)
        barrier()
        if not cfg.lazyp:
            unpark(k)
        while nq <= min(15, k + 1 + cfg.qd):
            issue_q(nq)
            nq += 1
        w = ((cfg.winb or cfg.win) if sfx == 'b' else cfg.win) if role is None else (cfg.s1win if role else (cfg.s0win if k < cfg.s0sw else cfg.s0late))
        if cfg.winlate and k >= cfg.late and sfx != 'b':
            w = cfg.winlate
        win = 0 if k < 16 else (cfg.win16 if k == 16 else w)
        lead = min(128, end(k + 1) + ((win + 5) // 10 if win in (45, 55) else win or 8)) if k >= 14 else 0
        if k <= 15:
            ramp = sum(pre[:k + 2]) + (4 * max(0, k - 13) if role == 1 else 0)
        else:
            b0 = base + cfg.win16 + (8 if role == 1 else 0)
            last = (cfg.lastb or cfg.last) if sfx == 'b' else cfg.last
            ramp = min(128, b0 + ((128 - b0) * (k - 16)) // (last - 16))
        issue_kv(max(lead, ramp if base else 0), k, win or cfg.bwin)
        if cfg.lazyp:
            unpark(k, 99, True)
            unpark(k - 1)
        if k == 20 and cfg.oord:
            A(f"""s_add_u32 s{S_T2}, s{S_BP}, s{S_J}
            s_and_b32 s{S_T2}, s{S_T2}, {cfg.oord - 1}
            s_mul_i32 s{S_T2}, s{S_T2}, {8 // cfg.oord}
            s_sub_u32 s{S_T3}, s{S_J}, s{S_T2}
            s_and_b32 s{S_T3}, s{S_T3}, 7
            s_lshl_b32 s{S_T2}, s{S_T2}, 1""")
        for h, tk in enumerate(str(cfg.ptouch).split(".") if cfg.ptouch else []):
            if int(tk) == k:
                throttle(win)
                A(f"""s_mul_i32 s{S_T0}, s{S_J}, 49152
                s_add_u32 s{S_T0}, s{S_T0}, {h * 24576}
                v_mul_u32_u24 v3, 0x70, v0
                v_add_u32 v3, v3, v{LOB}
                s_mov_b32 exec_hi, 0xffff
                buffer_load_dword v{LPOLL}, v3, {srd(sWS)}, s{S_T0} offen
                s_mov_b64 exec, -1""")
                q.append("t")
        if k == 26:
            A(f"buffer_load_dword v{LPOLL}, v{LFLAG}, {srd(sWS)}, 0 offen sc1")
            q.append("t")
        for m in range(4):
            if wo_at[m] == k and not (m < 2 and m >= 2 - cfg.w1late):
                issue_ow(m, wtag(m), win if state["next"] < 128 else (cfg.wwin if k == 32 else 0))
        if coop and k == cfg.coopw0:
            touch_w(0)
    assert state["next"] == 128 and not parked
    if spre:
        A(f"""s_lshl_b32 s{S_DW}, s{S_HG}, 21
        s_lshl_b32 s{S_T0}, s{S_BP}, 16
        s_add_u32 s{S_DW}, s{S_DW}, s{S_T0}
        s_lshl_b32 s{S_T0}, s{S_W}, 14
        s_add_u32 s{S_DW}, s{S_DW}, s{S_T0}
        s_lshl_b32 s{S_T0}, s{S_NU}, 8
        s_add_u32 s{S_DW}, s{S_DW}, s{S_T0}""")
    if cfg.w1late:
        A("s_barrier")
        if cfg.w1late == 2:
            issue_ow(0, 33)
        issue_ow(1, 34)
    wait(33)
    barrier()
    if cfg.w1late:
        wait(34)
        A("s_barrier")
    def finish():
        if cfg.stamps:
            A(f"""s_lshl_b32 s{S_T0}, s2, 3
            s_add_u32 s{S_T0}, s{S_T0}, s{S_WAVE}
            s_lshl_b32 s{S_T0}, s{S_T0}, 8
            s_add_u32 s{S_T0}, s{S_T0}, {WS_STAMP}
            v_lshl_add_u32 v1, v0, 2, s{S_T0}
            buffer_store_dword v{LSTAMP}, v1, {srd(sWS)}, 0 offen""")
        A("s_endpgm")
        return tr

    def need_head(m):
        A(f"""{o_index(m)}
        s_bfe_u32 s{S_T1}, s{S_T0}, 0x30001
        s_mov_b32 s{S_SPIN}, 0""")
        n = f"L_need{m}{sfx}"
        loop = P.add(f"""{n}:
        s_bitcmp1_b32 s{S_MASK}, s{S_T1}
        s_cbranch_scc1 {n}_done
        buffer_load_dword v{LPOLL}, v{LFLAG}, {srd(sWS)}, 0 offen sc1
        s_add_u32 s{S_SPIN}, s{S_SPIN}, 1
        s_waitcnt vmcnt(0)
        v_cmp_eq_u32 vcc, 1, v{LPOLL}
        s_mov_b32 s{S_MASK}, vcc_lo
        s_cmp_lt_u32 s{S_SPIN}, {SPIN_MAX}
        s_cbranch_scc1 {n}""")
        tr.extend(loop + loop)
        A(f"{n}_done:")

    if cfg.bdirect:
        for m in (2, 3):
            if wo_at[m] == 33:
                issue_ow(m, 33 + m)
        A(f"s_mov_b32 s{S_MASK}, 0")
        seen = {0}

        def need_new(m):
            if o_rel(cfg)[m] >> 1 not in seen:
                seen.add(o_rel(cfg)[m] >> 1)
                need_head(m)

        need_new(2)
        need_new(3)
        A("s_barrier")
        stamp()
        for m in (2, 3):
            if wo_at[m] == 34:
                issue_ow(m, 33 + m)
        nm = 4
        for k in range(35, 49):
            if k - 31 <= 15:
                need_new(k - 31)
            wait(k)
            barrier()
            while nm <= min(15, k + 1 + cfg.od - 33):
                issue_ow(nm, nm + 33)
                nm += 1
        return finish()
    if wo_at[2] == 33:
        issue_ow(2, 35)
    if cfg.prog:
        A(f"s_mov_b32 s{S_MASK}, 0")
        need_head(2)
    else:
        poll_loop(P, tr, "poll1" + sfx, LPOLL, LFLAG)
        del q[:]
        q.append("poll")
    stamp()
    if coop:
        touch_b(0)
    issue_ob(2, 35)
    if wo_at[2] == 34:
        issue_ow(2, 35)
    coop_after(2)
    if wo_at[3] == 33:
        issue_ow(3, 36)
    issue_ob(3, 36)
    if wo_at[3] == 34:
        issue_ow(3, 36)
    coop_after(3)
    scalar_pre()
    nm = 4
    for k in range(35, 49):
        wait(k)
        barrier()
        while nm <= min(15, k + 1 + cfg.od - 33):
            issue_ow(nm, nm + 33)
            if cfg.prog and nm % 2 == 0:
                need_head(nm)
            issue_ob(nm, nm + 33)
            coop_after(nm)
            nm += 1
        scalar_pre()
    return finish()


def order(n, snake):
    return [(T, t) for T in range(n) for t in (reversed(T3) if snake and T & 1 else T3)]


def gemm_reads(b, s, kind, with_b=True):
    r = []
    if with_b:
        for t in T3:
            if kind == "q":
                r.append(f"ds_read_b128 {v4(FB(b, t))}, v{AB(s)} offset:{t * 2048}")
            else:
                r.append(f"ds_read_b128 {v4(FB(b, t))}, v{AB(0)} offset:{s * 3072 + t * 1024}")
    for T in range(8):
        for u in range(2):
            off = s * 8192 + u * (1024 if kind == "q" else 4096)
            r.append(f"ds_read_b64_tr_b16 {v2(FA(b, T) + 2 * u)}, v{AW(T)} offset:{off}")
    return r


def gemm_mfma(cfg, b, bsrc=None, zero=False):
    return [f"{MFMA} {v4(ACC(T, t))}, {v4(FA(b, T))}, {v4(bsrc(t) if bsrc else FB(b, t))}, {'0' if zero else v4(ACC(T, t))}"
            for T, t in order(8, cfg.snake)]


def gemm_loop(P, tr, cfg, kind, label, iters):
    sal = [f"s_add_u32 s{S_SLOT}, s{S_SLOT}, 1", f"s_and_b32 s{S_SLOT}, s{S_SLOT}, 3", f"s_cselect_b32 s{S_DW}, {WSLOT}, s{S_T2}"]
    if kind == "o":
        sal.append(f"s_cmp_lg_u32 s{S_SLOT}, 2")
    sal.append(f"s_cselect_b32 s{S_DB}, {BSLOT}, s{S_T3}")
    val = [f"v_add_u32 v{AB(s)}, s{S_DB}, v{AB(s)}" for s in range(2 if kind == "q" else 1)]
    val += [f"v_add_u32 v{AW(T)}, s{S_DW}, v{AW(T)}" for T in range(8)]
    nb = len(val) - 8
    hook = [(18, f"s_cmp_eq_u32 s{S_CNT}, s{S_FLAG}"), (19, "s_cbranch_scc1 L_count"), (19, "L_counted:")] if kind == "q" else []
    if kind == "o" and cfg.wb:
        hook = [(18, f"s_cmp_eq_u32 s{S_CNT}, s{S_FLAG}"), (19, "s_cbranch_scc1 L_wb"), (19, "L_wbdone:")]
    h0 = weave(gemm_mfma(cfg, 0), spread(gemm_reads(1, 1, kind), 0, 18) + spread(sal, 0, 4) + spread(val[:nb + 6], 12, 19)
               + spread(val[nb + 6:], 20, 21) + [(22, "s_waitcnt lgkmcnt(0)"), (22, "s_barrier")])
    h1 = weave(gemm_mfma(cfg, 1), spread(gemm_reads(0, 0, kind), -1, 17)
               + hook + [(20, f"s_sub_u32 s{S_CNT}, s{S_CNT}, 1"), (20, f"s_cmp_lg_u32 s{S_CNT}, 0")])
    tr.extend(P.add(f"s_mov_b32 s{S_CNT}, {iters}\ns_waitcnt lgkmcnt(0)"))
    if kind == "q":
        tr.extend(P.add(".p2align 3"))
        body = P.add([label + ":"] + h0 + h1 + ["s_waitcnt lgkmcnt(0)", f"s_cbranch_scc1 {label}"])
        tr.extend(body + body)
        return
    h0 = weave(gemm_mfma(cfg, 0), spread(gemm_reads(1, 1, kind), 0, 18) + spread(sal, 0, 4) + spread(val[:nb + 6], 11, 18)
               + spread(val[nb + 6:], 19, 19) + [(6, f"s_sub_u32 s{S_CNT}, s{S_CNT}, 1"), (7, f"s_cmp_eq_u32 s{S_CNT}, 0"),
                                                  (20, f"s_cbranch_scc1 {label}_out"), (22, "s_waitcnt lgkmcnt(0)"), (22, "s_barrier")])
    h1 = weave(gemm_mfma(cfg, 1), spread(gemm_reads(0, 0, kind), -1, 17) + hook)
    cut = h0.index(f"s_cbranch_scc1 {label}_out") + 1
    tr.extend(P.add(".p2align 3"))
    first = P.add([label + ":"] + h0[:cut])
    rest = P.add(h0[cut:] + h1 + ["s_waitcnt lgkmcnt(0)", f"s_branch {label}"])
    tr.extend(first + rest + first + P.add([label + "_out:"] + gemm_mfma(cfg, 0)[21:]))


def k_reads(tile):
    return [f"ds_read_b128 {v4(FR(kt * 4 + s))}, v{AK(s)} offset:{(tile % 3) * ASLOT + kt * 4096}" for kt in range(2) for s in range(4)]


def v_reads(T, tile):
    return [f"ds_read_b64_tr_b16 {v2(FR(T) + 2 * u)}, v{AV(T)} offset:{(tile % 3) * ASLOT + u * 4096}" for u in range(2)]


def qk_mfma(first=False):
    c0 = lambda t: "0" if first else v4(NM(t))
    return [f"{MFMA} {v4(SS(kt, t))}, {v4(FR(kt * 4 + s))}, {v4(QF(s, t))}, {c0(t) if s == 0 else v4(SS(kt, t))}"
            for kt in range(2) for s in range(4) for t in T3]


def pv_mfma(cfg):
    return [f"{MFMA} {v4(ACC(T, t))}, {v4(FR(T))}, {v4(PP(t))}, {v4(ACC(T, t))}" for T, t in order(8, cfg.snake)]


def xlane(op, regs, tmps):
    out = []
    for sw in ("v_permlane32_swap_b32", "v_permlane16_swap_b32"):
        out += [f"v_mov_b32 v{x}, v{r}" for r, x in zip(regs, tmps)]
        out += [f"{sw} v{r}, v{x}" for r, x in zip(regs, tmps)]
        out += [f"{op} v{r}, v{r}, v{x}" for r, x in zip(regs, tmps)]
    return out


def row_max():
    o = [f"v_max3_f32 v{VD(t)}, v{SS(0, t)}, v{SS(0, t) + 1}, v{SS(0, t) + 2}" for t in T3]
    o += [f"v_max3_f32 v{VD(t)}, v{SS(0, t) + 3}, v{SS(1, t)}, v{VD(t)}" for t in T3]
    o += [f"v_max3_f32 v{VD(t)}, v{SS(1, t) + 1}, v{SS(1, t) + 2}, v{VD(t)}" for t in T3]
    o += [f"v_max_f32 v{VD(t)}, v{SS(1, t) + 3}, v{VD(t)}" for t in T3]
    return o + xlane("v_max_f32", [VD(t) for t in T3], [VT(t) for t in T3])


def shift_scores():
    return [f"v_sub_f32 v{SS(kt, t) + r}, v{SS(kt, t) + r}, v{VD(t)}" for kt in range(2) for t in T3 for r in range(4)]


def guard_max(kt):
    r = [SS(kt, t) + k for t in T3 for k in range(4)]
    if kt == 0:
        o = [f"v_max3_f32 v{VX}, v{r[0]}, v{r[1]}, v{r[2]}"]
        o += [f"v_max3_f32 v{VX}, v{r[k]}, v{r[k + 1]}, v{VX}" for k in range(3, 11, 2)]
        return o + [f"v_max_f32 v{VX}, v{r[11]}, v{VX}"]
    return [f"v_max3_f32 v{VX}, v{r[k]}, v{r[k + 1]}, v{VX}" for k in range(0, 12, 2)]


def p_cvt(kt, h=None):
    return [f"v_cvt_pk_bf16_f32 v{PP(t) + 2 * kt + hh}, v{SS(kt, t) + 2 * hh}, v{SS(kt, t) + 2 * hh + 1}"
            for hh in ((0, 1) if h is None else (h,)) for t in T3]


def exp_sum(cfg, kt, h):
    o = [f"v_exp_f32 v{SS(kt, t) + 2 * h + r}, v{SS(kt, t) + 2 * h + r}" for t in T3 for r in range(2)]
    if cfg.pk:
        o += [f"v_pk_add_f32 {v2(VL(t))}, {v2(VL(t))}, {v2(SS(kt, t) + 2 * h)}" for t in T3]
    else:
        o += [f"v_add_f32 v{VL(t) + r}, v{VL(t) + r}, v{SS(kt, t) + 2 * h + r}" for t in T3 for r in range(2)]
    return o


def exps(kt, h):
    return [f"v_exp_f32 v{SS(kt, t) + 2 * h + r}, v{SS(kt, t) + 2 * h + r}" for t in T3 for r in range(2)]


def pk_sum(kt, h):
    return [f"v_pk_add_f32 {v2(VL(t))}, {v2(VL(t))}, {v2(SS(kt, t) + 2 * h)}" for t in T3]


def rescale(by):
    return [f"v_mul_f32 v{ACC(T, t) + r}, v{ACC(T, t) + r}, v{by(t)}" for T in range(8) for t in T3 for r in range(4)]


def acc_to_frag(s, QF=QF):
    return [f"v_cvt_pk_bf16_f32 v{QF(s, t) + 2 * u + h}, v{ACC(2 * s + u, t) + 2 * h}, v{ACC(2 * s + u, t) + 2 * h + 1}"
            for u in range(2) for t in T3 for h in range(2)]


def compute(P, cfg):
    tr = []
    A = lambda t: tr.extend(P.add(t))
    nst = [0]

    def stamp():
        if cfg.stamps:
            A(f"s_memrealtime s[{S_ST + 2 * nst[0]}:{S_ST + 2 * nst[0] + 1}]\ns_waitcnt lgkmcnt(0)")
            nst[0] += 1

    A(f"L_compute:\ns_getpc_b64 s[{S_PC}:{S_PC + 1}]\nL_text:\n{late_ids(cfg)}\ns_waitcnt lgkmcnt(0)")
    if cfg.xtouch and not cfg.xtouch & 4:
        A(make_srd(((sX, 4, 768 * 2048),)))
        A(x_touch(cfg, 112, 113))
    A(make_srd(((sOUT, 14, 768 * 4096), (sWS, 18, 256 << 20), (sDBG, 16, 256))))
    if cfg.prio:
        A(f"s_setprio {cfg.prio}")
    A(f"""
    s_getreg_b32 s{S_XCC}, hwreg(HW_REG_XCC_ID, 0, 3)
    s_cmp_lg_u32 s{S_W}, 0
    s_cbranch_scc1 L_noclear
    s_lshl_b32 s{S_T0}, s2, 11
    s_add_u32 s{S_T0}, s{S_T0}, {WS_INBOX}
    v_lshlrev_b32 v1, 4, v0
    v_mov_b64 v[4:5], 0
    v_mov_b64 v[6:7], 0
    buffer_store_dwordx4 v[4:7], v1, {srd(sWS)}, s{S_T0} offen sc1
    buffer_store_dwordx4 v[4:7], v1, {srd(sWS)}, s{S_T0} offen offset:1024 sc1
    {code_touch(0, 110, 111) if cfg.ctouch else ""}
    L_noclear:
    s_lshl_b32 s{S_XCC}, s{S_XCC}, 2
    v_and_b32 v{V_TMP}, 3, v0
    v_xor_b32 v{V_TMP}, s{S_GRP}, v{V_TMP}
    v_lshlrev_b32 v{V_TMP}, 2, v{V_TMP}
    v_lshrrev_b32 v100, 4, v0
    v_and_b32 v101, 15, v0
    v_bfe_u32 v102, v0, 2, 2
    v_bfe_u32 v103, v0, 1, 1
    v_and_b32 v104, 1, v0
    v_lshlrev_b32 v109, 4, v0
    """)
    A(f"""
    v_lshl_add_u32 v105, v100, 3, v102
    v_lshlrev_b32 v105, 8, v105
    v_lshl_add_u32 v105, v104, 3, v105
    v_lshl_add_u32 v105, v103, 4, v105
    v_and_b32 v106, 1, v100
    v_lshl_add_u32 v106, v106, 2, v102
    v_lshl_add_u32 v{AW(0)}, v106, 5, v105
    """)
    for T in range(1, 8):
        A(f"v_xor_b32 v{AW(T)}, {T << 5}, v{AW(0)}")
    A(f"""
    s_add_u32 s{S_T0}, s{S_LWB}, {BRING}
    v_lshl_add_u32 v105, v101, 7, s{S_T0}
    v_lshrrev_b32 v107, 1, v101
    v_xor_b32 v107, v107, v100
    v_lshl_add_u32 v{AB(0)}, v107, 4, v105
    v_xor_b32 v{AB(1)}, 64, v{AB(0)}
    """)
    A(f"""
    s_lshr_b32 s{S_T0}, s{S_W}, 1
    s_lshl_b32 s{S_T0}, s{S_T0}, 13
    s_add_u32 s{S_T0}, s{S_T0}, {KRING}
    v_lshl_add_u32 v105, v101, 8, s{S_T0}
    v_lshrrev_b32 v107, 1, v100
    v_and_b32 v108, 1, v100
    v_lshl_add_u32 v107, v108, 1, v107
    v_xor_b32 v107, v107, v101
    v_lshl_add_u32 v{AK(0)}, v107, 4, v105
    """)
    for s in range(1, 4):
        A(f"v_xor_b32 v{AK(s)}, {s << 6}, v{AK(0)}")
    A(f"""
    s_add_u32 s{S_T0}, s{S_T0}, {VRING - KRING}
    v_lshl_add_u32 v105, v100, 2, v102
    v_lshl_add_u32 v105, v105, 8, s{S_T0}
    v_lshl_add_u32 v105, v104, 3, v105
    v_lshl_add_u32 v105, v103, 4, v105
    v_lshl_add_u32 v{AV(0)}, v106, 5, v105
    """)
    for T in range(1, 8):
        A(f"v_xor_b32 v{AV(T)}, {T << 5}, v{AV(0)}")
    A(f"s_mov_b32 s{S_C}, {f32(1.4426950408889634 / 128 ** 0.5)}\ns_mov_b32 s{S_C + 1}, s{S_C}")
    A(f"s_mov_b32 s{S_T2}, {-3 * WSLOT}\ns_mov_b32 s{S_T3}, {-3 * BSLOT}\ns_mov_b32 s{S_SLOT}, 0")
    A([f"v_pk_mov_b32 {v2(r)}, 0, 0" for r in range(0, 96, 2)])
    if cfg.tag or cfg.oclear:
        A([f"v_mov_b32 v{r}, -1" for r in range(116, 120)])
    xclear = [f"s_mul_i32 s{S_T0}, s{S_W}, 9216", f"s_mul_i32 s{S_T1}, s2, 36864", f"s_add_u32 s{S_T0}, s{S_T0}, s{S_T1}", f"s_add_u32 s{S_T0}, s{S_T0}, {WS_X}"]
    for k in range(9):
        if k and k % 4 == 0:
            xclear.append(f"s_add_u32 s{S_T0}, s{S_T0}, 4096")
        xclear.append(f"buffer_store_dwordx4 v[116:119], v109, {srd(sWS)}, s{S_T0} offen offset:{(k % 4) * 1024} sc1")
    if cfg.tag and not cfg.clear_at:
        A(xclear)
    if cfg.oclear:
        A(f"""s_mul_i32 s{S_T0}, s{S_GRP}, 393216
        s_mul_i32 s{S_T1}, s{S_J}, 49152
        s_add_u32 s{S_T0}, s{S_T0}, s{S_T1}
        s_mul_i32 s{S_T1}, s{S_W}, 12288
        s_add_u32 s{S_T0}, s{S_T0}, s{S_T1}""")
        for k in range(12):
            if k and k % 4 == 0:
                A(f"s_add_u32 s{S_T0}, s{S_T0}, 4096")
            A(f"buffer_store_dwordx4 v[116:119], v109, {srd(sWS)}, s{S_T0} offen offset:{(k % 4) * 1024} sc1")
    count = f"""s_lshl_b32 s{S_T0}, 1, s{S_XCC}
    v_mov_b32 v{V_CHK}, s{S_T0}
    s_mov_b64 exec, 1
    s_waitcnt vmcnt(0)
    buffer_atomic_add v{V_CHK}, v{V_TMP}, {srd(sDBG)}, 0 offen
    s_mov_b64 exec, -1""".split("\n")
    rare = [["L_count:", f"s_cmp_eq_u32 s{S_FLAG}, {cfg.fetch_at}", "s_cbranch_scc1 L_fetch", f"s_mov_b32 s{S_FLAG}, {cfg.fetch_at}",
             "s_waitcnt vmcnt(0)", f"s_cmp_lg_u32 s{S_W}, 0", "s_cbranch_scc1 L_counted"] + count + ["s_branch L_counted",
             "L_fetch:", f"buffer_load_dword v{V_CHK}, v{V_TMP}, {srd(sDBG)}, 0 offen sc1", "s_branch L_counted"]]
    if cfg.clear_at:
        assert cfg.latefetch and cfg.tag and min(cfg.clear_at, cfg.clear_b or 99) > cfg.count_at + 1
        rare = [["L_count:", f"s_cmp_le_u32 s{S_FLAG}, {cfg.count_at + 1}", "s_cbranch_scc1 L_drain"] + xclear
                + [f"s_cmp_eq_u32 s{S_W}, 0", f"s_cselect_b32 s{S_FLAG}, {cfg.count_at}, {cfg.count_at + 1}", "s_branch L_counted",
                   "L_drain:", "s_waitcnt vmcnt(0)", f"s_cmp_lg_u32 s{S_W}, 0", "s_cbranch_scc1 L_counted"] + count + ["s_branch L_counted"]]
        A(f"s_bitcmp{1 - cfg.clsinv}_b32 s2, {cfg.cls}\ns_cselect_b32 s{S_FLAG}, {cfg.clear_b or cfg.clear_at}, {cfg.clear_at}")
    elif cfg.latefetch:
        assert not (cfg.tag or cfg.oclear or cfg.stag)
        rare = [["L_count:"] + count + ["s_branch L_counted"]]
        A(f"""s_lshr_b32 s{S_T0}, s2, {cfg.spreadsh}
        s_and_b32 s{S_T0}, s{S_T0}, {cfg.spreadc}
        s_sub_u32 s{S_T0}, {cfg.count_at}, s{S_T0}
        s_cmp_eq_u32 s{S_W}, {4 if cfg.nocount else 0}
        s_cselect_b32 s{S_FLAG}, s{S_T0}, 0""")
    else:
        A(f"s_cmp_eq_u32 s{S_W}, 0\ns_cselect_b32 s{S_FLAG}, {cfg.count_at}, {cfg.count_at + 1}")
    assert not (cfg.stag and (cfg.tag or cfg.oclear))
    if cfg.stag:
        A([f"s_cmp_ge_u32 s{S_BP}, 2", f"s_cselect_b32 s{S_T1}, s{S_FLAG}, 0", f"s_cmp_lg_u32 s{S_T1}, {cfg.count_at}", "s_cbranch_scc1 L_nocount"]
          + count + [f"s_mov_b32 s{S_FLAG}, {cfg.fetch_at}", "L_nocount:"])
    A("s_barrier")
    A(gemm_reads(0, 0, "q"))
    gemm_loop(P, tr, cfg, "q", "L_qloop", 16)
    A(k_reads(0))
    def judge(v):
        return f"""v_lshrrev_b32 v{VT(0)}, 4, v{v}
        v_and_b32 v{VT(0)}, 0x0f0f0f0f, v{VT(0)}
        v_and_b32 v{VT(1)}, 0x0f0f0f0f, v{v}
        v_add_u32 v{VT(0)}, v{VT(0)}, v{VT(1)}
        v_sad_u8 v{VT(0)}, v{VT(0)}, 0, 0
        v_readfirstlane_b32 s{S_T1}, v{v}
        v_cmp_ne_u32 vcc, 8, v{VT(0)}
        s_lshl_b32 s{S_T0}, 8, s{S_XCC}
        s_cmp_eq_u32 s{S_T0}, s{S_T1}
        s_cselect_b32 s{S_FLAG}, {cfg.local}, 0
        s_cmp_eq_u64 vcc, 0
        s_cselect_b32 s{S_FLAG}, s{S_FLAG}, 2""".split("\n")

    dbgaddr = lambda v: [f"v_and_b32 v{v}, 3, v{V_TMP}", f"v_xor_b32 v{v}, s{S_GRP}, v{v}", f"v_lshlrev_b32 v{v}, 2, v{v}"]
    ahook = []
    if cfg.latefetch:
        ahook = [f"s_cmp_le_u32 s{S_CNT}, 2", "s_cbranch_scc1 L_ahook", "L_ahooked:"]
        rare.append(["L_ahook:", f"s_cmp_eq_u32 s{S_CNT}, 1", "s_cbranch_scc1 L_judge"] + dbgaddr(VT(0))
                    + [f"buffer_load_dword v{V_CHK}, v{VT(0)}, {srd(sDBG)}, 0 offen sc1", "s_branch L_ahooked", "L_judge:", "s_waitcnt vmcnt(0)"]
                    + judge(V_CHK) + ([f"s_mov_b32 s{S_FLAG}, 1"] if cfg.nocount else []) + [f"v_mov_b32 v{V_CHK}, 1", "s_branch L_ahooked"])
    else:
        A(["s_waitcnt vmcnt(0)"] + judge(V_CHK))
    A([f"v_pk_mul_f32 {v2(r)}, {v2(r)}, s[{S_C}:{S_C + 1}]" for r in range(0, 96, 2)])

    def q_frag(s):
        return acc_to_frag(s) + [f"v_permlane16_swap_b32 v{QF(s, t) + h}, v{QF(s, t) + 2 + h}" for t in T3 for h in range(2)]

    qk0 = qk_mfma(True)
    qk0 = [qk0[kt * 12 + s * 3 + t] for s in range(4) for kt in range(2) for t in T3]
    zero = [f"v_mov_b64 {v2(r)}, 0" for r in range(0, 96, 2)]
    addr = f"""{lane_id(V_TMP)}
    s_mul_i32 s{S_T0}, s{S_GRP}, 393216
    s_mul_i32 s{S_T1}, s{S_J}, 49152
    s_add_u32 s{S_T0}, s{S_T0}, s{S_T1}
    s_add_u32 s{S_T0}, s{S_T0}, s{S_LWB}
    v_lshl_add_u32 v{V_OST}, v{V_TMP}, 4, s{S_T0}
    s_andn2_b32 s{S_T0}, s2, 0x38
    s_lshl_b32 s{S_T0}, s{S_T0}, 11
    s_lshl_b32 s{S_T1}, s{S_J}, 2
    s_add_u32 s{S_T0}, s{S_T0}, s{S_T1}
    s_lshl_b32 s{S_T1}, s{S_W}, 9
    s_add_u32 s{S_T0}, s{S_T0}, s{S_T1}
    s_add_u32 s{S_T0}, s{S_T0}, {WS_INBOX}
    v_lshl_add_u32 v{V_FLG}, v{V_TMP}, 14, s{S_T0}
    v_mov_b32 v{V_CHK}, 1""".split("\n")
    A(q_frag(0))
    A(weave(qk0, spread(addr, 0, 20) + [(6 * s - 6 + k // 3, x) for s in range(1, 4) for k, x in enumerate(q_frag(s))] + spread(zero[:12], 18, 23)))
    A(zero[12:20])
    A(row_max())
    A([f"v_pk_add_f32 {v2(SS(kt, t) + r)}, {v2(SS(kt, t) + r)}, {v2(VD(t) & ~1)} op_sel:[0,{VD(t) & 1}] op_sel_hi:[1,{VD(t) & 1}] neg_lo:[0,1] neg_hi:[0,1]"
       for kt in range(2) for t in T3 for r in (0, 2)])
    A([f"v_sub_f32 v{NM(t) + r}, 0, v{VD(t)}" for t in T3 for r in range(4)])
    A([f"v_mov_b64 {v2(VL(t))}, 0" for t in T3])
    A(exps(0, 0) + exps(0, 1) + exps(1, 0))
    A(zero[20:])
    A("s_barrier")
    A(k_reads(1))

    def iteration(i):
        pre = pk_sum(0, 0) + pk_sum(0, 1) + pk_sum(1, 0) + p_cvt(0) + p_cvt(1, 0)
        vr = [x for T in range(8) for x in v_reads(T, i)]
        vgap = list(range(8, 22)) + [23, 24]
        add11 = [f"v_add_f32 v{VL(t) + r}, v{VL(t) + r}, v{SS(1, t) + 2 + r}" for t in T3 for r in range(2)]
        early = exps(0, 0) + exps(0, 1) + exps(1, 0)
        fill = ([(5, "s_waitcnt lgkmcnt(0)"), (22, "s_waitcnt lgkmcnt(4)"), (35, "s_waitcnt lgkmcnt(0)")]
                + ([(12, f"s_sub_u32 s{S_CNT}, s{S_CNT}, 1"), (40, f"s_cmp_lg_u32 s{S_CNT}, 0")] if i == 2 else [])
                + list(zip(vgap, vr)) + list(zip(range(6), exps(1, 1))) + list(zip((6, 6, 7, 7, 8, 9), add11)) + list(zip((10, 11, 11), p_cvt(1, 1)))
                + list(zip(range(16, 22), guard_max(0))) + list(zip((25, 25, 26, 26, 27, 27), guard_max(1)))
                + [(28, f"v_cmp_lt_f32 vcc, s{S_C}, v{VX}"), (29, f"s_cbranch_vccnz L_up_{i}")] + list(zip(range(30, 48), early)))
        mf = qk_mfma() + pv_mfma(cfg)
        rare.append([f"L_up_{i}:", "s_waitcnt lgkmcnt(0)"] + mf[30:] + row_max() + [f"v_max_f32 v{VD(t)}, 0, v{VD(t)}" for t in T3] + shift_scores()
                    + [f"v_exp_f32 v{VA(t)}, -v{VD(t)}" for t in T3]
                    + [f"v_sub_f32 v{NM(t) + r}, v{NM(t) + r}, v{VD(t)}" for t in T3 for r in range(4)]
                    + [f"v_mul_f32 v{VL(t) + r}, v{VL(t) + r}, v{VA(t)}" for t in T3 for r in range(2)]
                    + rescale(VA) + early + [f"s_cmp_lg_u32 s{S_CNT}, 0", f"s_branch L_back_{i}"])
        return pre + ["s_waitcnt lgkmcnt(6)"] + weave(mf, fill) + [f"L_back_{i}:"]

    A(f"s_mov_b32 s{S_C}, {f32(cfg.thr)}\ns_mov_b32 s{S_CNT}, 5\ns_branch L_aenter\n.p2align 3")
    top = P.add(["L_aloop:"] + ahook + ["s_barrier"] + k_reads(1) + ["L_aenter:"])
    body = P.add(iteration(0) + ["s_barrier"] + k_reads(2) + iteration(1) + ["s_barrier"] + k_reads(0) + iteration(2)
                 + ["s_cbranch_scc1 L_aloop"])
    tr.extend(body + top + body)
    A(exps(1, 1) + pk_sum(0, 0) + pk_sum(0, 1) + pk_sum(1, 0) + pk_sum(1, 1))
    A([f"v_add_f32 v{VL(t)}, v{VL(t)}, v{VL(t) + 1}" for t in T3])
    A(xlane("v_add_f32", [VL(t) for t in T3], [VT(t) for t in T3]))
    A([f"v_rcp_f32 v{VL(t)}, v{VL(t)}" for t in T3])
    bc = "op_sel_hi:[1,0]"
    A([f"v_pk_mul_f32 {v2(SS(kt, t) + r)}, {v2(SS(kt, t) + r)}, {v2(VL(t))} {bc}" for kt in range(2) for t in T3 for r in (0, 2)])
    A(p_cvt(0) + p_cvt(1))
    oscale = [f"v_pk_mul_f32 {v2(ACC(T, t) + r)}, {v2(ACC(T, t) + r)}, {v2(VL(t))} {bc}" for T in range(8) for t in T3 for r in (0, 2)]
    A(oscale[:24])
    A("s_barrier")
    A([x for T in range(8) for x in v_reads(T, 15)])
    A(oscale[24:])

    def last_pv(pol):
        def o_out(s):
            return (acc_to_frag(s) + [f"s_mov_b32 s{S_T0}, {(s >> 1) * 24576 + (s & 1) * 3072}"]
                    + [f"buffer_store_dwordx4 {v4(QF(s, t))}, v{V_OST}, {srd(sWS)}, s{S_T0} offen offset:{t * 1024} {pol}" for t in T3])
        fill = []
        for s in range(3):
            o = o_out(s)
            fill += [(6 * s + 12, x) for x in o[12:]] if s < 2 else []
            fill += spread(o[:12], 6 * s + 6, 6 * s + 11)
        return weave(pv_mfma(cfg), fill) + o_out(2)[12:] + o_out(3)

    A([f"s_cmp_lg_u32 s{S_FLAG}, 1", "s_cbranch_scc1 L_far"] + last_pv("") + ["L_near:"])
    rare.append(["L_far:"] + last_pv("sc1")
                + [f"v_and_b32 v{VA(0)}, 3, v{V_TMP}", f"v_xor_b32 v{VA(0)}, s{S_GRP}, v{VA(0)}", f"v_lshlrev_b32 v{VA(0)}, 2, v{VA(0)}",
                   f"s_mov_b32 s{S_SPIN}, 0", "L_rechk:", f"s_cmp_lg_u32 s{S_FLAG}, 2", "s_cbranch_scc1 L_rechk_done",
                   f"buffer_load_dword v{VA(1)}, v{VA(0)}, {srd(sDBG)}, 0 offen sc1", "s_waitcnt vmcnt(0)"] + judge(VA(1))
                + [f"s_add_u32 s{S_SPIN}, s{S_SPIN}, 1", f"s_cmp_lt_u32 s{S_SPIN}, {cfg.chk_max}", "s_cbranch_scc1 L_rechk",
                   "L_rechk_done:", f"s_mov_b32 s{S_FLAG}, 0", "s_branch L_near"])
    stamp()
    if cfg.w1late:
        A("s_barrier")
    fst = f"buffer_store_dword v{V_CHK}, v{V_FLG}, {srd(sWS)}, 0 offen"
    flag = [f"s_cmp_eq_u32 s{S_FLAG}, 0", "s_mov_b64 exec, 0xff", "s_waitcnt vmcnt(0)", "s_cbranch_scc1 L_farflag", fst, "L_flagged:", "s_mov_b64 exec, -1"]
    rare.append(["L_farflag:", fst + " sc1", "s_branch L_flagged"])
    A(f"""
    s_lshl_b32 s{S_T0}, s{S_HG}, 6
    v_and_b32 v{AW(0)}, 0xfff, v{AV(0)}
    v_xor_b32 v{AW(0)}, s{S_T0}, v{AW(0)}
    """)
    for T in range(1, 8):
        A(f"v_xor_b32 v{AW(T)}, {T << 5}, v{AW(0)}")
    A(f"""
    s_add_u32 s{S_T0}, s{S_LWB}, {BRING}
    v_lshl_add_u32 v{AB(0)}, v{V_TMP}, 4, s{S_T0}
    v_mov_b32 v{AK(1)}, 1
    """)
    if cfg.flag_after < 0:
        A(flag)
        stamp()
    A("s_barrier")
    A(gemm_reads(0, 0, "o", with_b=False))
    wstep = [f"v_add_u32 v{AW(T)}, {WSLOT}, v{AW(T)}" for T in range(8)]
    for hs in range(0 if cfg.bdirect else 4):
        if hs == cfg.flag_after:
            A(flag)
            stamp()
        fill = []
        if hs < 3:
            fill += spread(gemm_reads((hs + 1) & 1, (hs + 1) & 1, "o", with_b=False), 0, 15)
        if hs in (0, 2):
            fill += spread(wstep, 16, 23)
        A(weave(gemm_mfma(cfg, hs & 1, bsrc=lambda t: QF(hs, t), zero=(hs == 0)), fill))
    xaddr = (f"""
    s_mul_i32 s{S_T0}, s{S_W}, 9216
    s_add_u32 s{S_T0}, s{S_T0}, {WS_X}
    v_lshl_add_u32 v{AB(1)}, v{V_TMP}, 4, s{S_T0}
    v_and_b32 v{AK(3)}, 3, v{V_TMP}
    s_lshl_b32 s{S_T0}, s{S_W}, 9
    s_add_u32 s{S_T0}, s{S_T0}, {WS_INBOX}
    v_lshl_add_u32 v{AK(2)}, v{AK(3)}, 7, s{S_T0}
    v_xor_b32 v{AK(0)}, s2, v{AK(3)}
    v_lshl_add_u32 v{AK(0)}, v{AK(0)}, 11, v{AK(2)}
    v_max_u32 v{AK(3)}, 1, v{AK(3)}
    s_lshl_b32 s{S_T1}, s2, 11
    s_add_u32 s{S_T0}, s{S_T0}, s{S_T1}
    v_lshl_add_u32 v{AK(2)}, v{AK(3)}, 7, s{S_T0}
    v_and_b32 v{AV(0)}, 15, v{V_TMP}
    v_bfe_u32 v{AV(1)}, v{V_TMP}, 4, 1
    v_bfe_u32 v{AV(2)}, v{V_TMP}, 5, 1
    s_mul_i32 s{S_T0}, s{S_BP}, 192
    s_mul_i32 s{S_T1}, s{S_W}, 48
    s_add_u32 s{S_T0}, s{S_T0}, s{S_T1}
    s_lshl_b32 s{S_T0}, s{S_T0}, 12
    s_lshl_b32 s{S_T1}, s{S_BLK}, 11
    s_add_u32 s{S_T0}, s{S_T0}, s{S_T1}
    s_lshl_b32 s{S_T1}, s{S_NU}, 8
    s_add_u32 s{S_T0}, s{S_T0}, s{S_T1}
    s_lshl_b32 s{S_T1}, s{S_HG}, 6
    s_add_u32 s{S_T0}, s{S_T0}, s{S_T1}
    v_lshl_add_u32 v{AV(0)}, v{AV(0)}, 12, s{S_T0}
    v_lshl_add_u32 v{AV(0)}, v{AV(1)}, 5, v{AV(0)}
    v_lshl_add_u32 v{AV(0)}, v{AV(2)}, 4, v{AV(0)}
    """)
    if not cfg.bdirect:
        A(xaddr + f"s_mov_b32 s{S_SLOT}, 2")
    if cfg.wb:
        A(f"""s_and_b32 s{S_T0}, s2, {cfg.wbmask}
        s_or_b32 s{S_T0}, s{S_T0}, s{S_W}
        s_cselect_b32 s{S_FLAG}, 0, {cfg.wb}""")
        rare.append(["L_wb:", "buffer_wbl2 sc1", "s_branch L_wbdone"])
    XF = QF
    after = []
    mf = gemm_mfma(cfg, 1)
    if cfg.bdirect:
        assert cfg.par in (0, 1) and not cfg.oord and cfg.flag_after in (-1, 1)
        ring = [FB(0, 0), FB(1, 0)] + [QF(s, 0) for s in range(4)]
        BR = lambda h: (lambda t: ring[(h - 4) % 6] + 4 * t)
        rel = o_rel(cfg)[2:]
        tbl = sum(r << (4 * n) for n, r in enumerate(rel))
        nxt = [f"s_add_u32 s{S_BO}, s{S_TBL}, s{S_J2}", f"s_and_b32 s{S_BO}, s{S_BO}, 15", f"s_mul_i32 s{S_BO}, s{S_BO}, 24576",
               f"s_lshr_b64 s[{S_TBL}:{S_TBL + 1}], s[{S_TBL}:{S_TBL + 1}], 4"]
        bload = lambda h: [f"buffer_load_dwordx4 {v4(BR(h)(t))}, v{AV(3) if h & 1 else AB(0)}, {srd(sWS)}, s{S_BO} offen offset:{t * 1024} {cfg.pol_ob}" for t in T3]
        bgaps = [int(x) for x in cfg.bgaps.split(".")]
        sal = [f"s_add_u32 s{S_SLOT}, s{S_SLOT}, 1", f"s_and_b32 s{S_SLOT}, s{S_SLOT}, 3", f"s_cselect_b32 s{S_DW}, {WSLOT}, s{S_T2}"]
        val = [f"v_add_u32 v{AW(T)}, s{S_DW}, v{AW(T)}" for T in range(8)]

        def half(h, extra=()):
            b = h & 1
            fill = []
            if 2 <= h <= 26:
                fill += (list(zip(range(4, 8), nxt)) if b else []) + list(zip(bgaps, bload(h + 5)))
            if b:
                fill += spread(gemm_reads(0, 0, "o", with_b=False), -1, 14) + [(22, "s_waitcnt lgkmcnt(0)")]
            else:
                fill += spread(gemm_reads(1, 1, "o", with_b=False), 0, 15) + list(zip(range(3), sal)) + list(zip((8, 9, 10, 11, 12, 13, 14, 16), val))
                fill += [(22, "s_waitcnt lgkmcnt(0)")] + ([(22, "s_barrier")] if 2 <= h <= 28 or (h == 0 and cfg.w1late) else [])
            if 3 <= h <= 30:
                fill += [(23, f"s_waitcnt vmcnt({3 * min(4, 30 - h)})")]
            return weave(gemm_mfma(cfg, b, bsrc=BR(h), zero=(h == 0)), fill + list(extra))

        A(f"""s_mul_i32 s{S_T0}, s{S_GRP}, 393216
        s_add_u32 s{S_T0}, s{S_T0}, s{S_LWB}
        v_lshl_add_u32 v{AB(0)}, v{V_TMP}, 4, s{S_T0}
        v_add_u32 v{AV(3)}, 3072, v{AB(0)}
        s_mov_b32 s{S_TBL}, {tbl & 0xffffffff}
        s_mov_b32 s{S_TBL + 1}, {tbl >> 32}
        s_lshl_b32 s{S_J2}, s{S_J}, 1
        s_mov_b32 s{S_SLOT}, 0""")
        xa = [x.strip() for x in xaddr.split("\n") if x.strip()]
        A(half(0))
        if cfg.flag_after == 1:
            A(flag)
            stamp()
        A(half(1, spread(xa, 0, 21)))
        A(["s_barrier"] + nxt + bload(4) + bload(5) + nxt + bload(6))
        A(half(2))
        A(f"s_mov_b32 s{S_CNT}, 4\n.p2align 3")
        body = P.add(["L_oloop:"] + half(3) + half(4) + half(5) + half(6) + half(7)
                     + half(8, [(5, f"s_sub_u32 s{S_CNT}, s{S_CNT}, 1"), (6, f"s_cmp_lg_u32 s{S_CNT}, 0")]) + ["s_cbranch_scc1 L_oloop"])
        tr.extend(body + body)
        XF = lambda i, t: QF(0, t) if i == 0 else 144 + ((i - 1) * 3 + t) * 4
        mf = gemm_mfma(cfg, 1, bsrc=BR(31))
        if not cfg.defer:
            for h in range(27, 31):
                A(half(h))
        else:
            rd = lambda h, T, reg: [f"ds_read_b64_tr_b16 {v2(reg + 2 * u)}, v{AW(T)} offset:{(h - 28) * 8192 + u * 4096}" for u in range(2)]
            own = lambda h, T: {27: FA(1, T), 28: FA(0, T), 29: QF(2, 0) + 4 * T, 30: FA(1, T), 31: FA(0, T)}[h]
            ownrd = lambda h: [x for T in range(2) for x in rd(h, T, own(h, T))]
            for h in range(27, 31):
                b = h & 1
                reads = [x for T in range(2, 8) for x in rd(h + 1, T, FA(1 - b, T))] + ownrd(28 + (h - 27) // 2)[2 * (1 - b):2 * (1 - b) + 2]
                fill = spread(reads, -1 if b else 0, 12 if b else 13)
                fill += [(16, "s_waitcnt lgkmcnt(2)")] + ([(16, "s_barrier")] if h == 28 else []) + [(17, f"s_waitcnt vmcnt({3 * (30 - h)})")]
                A(weave(gemm_mfma(cfg, b, bsrc=BR(h))[6:], fill))
            XF = lambda i, t: {0: QF(0, t), 1: FA(0, 2 + t), 2: FA(0, 5 + t), 3: FA(1, 2 + t)}[i]
            late = [f"{MFMA} {v4(ACC(T, t))}, {v4(own(h, T))}, {v4(BR(h)(t))}, {v4(ACC(T, t))}" for h in range(27, 32) for T, t in order(2, cfg.snake)]
            mf = late[:6] + mf[6:]
            after = weave(late[6:], list(zip(range(0, 4), ownrd(30))) + list(zip(range(6, 10), ownrd(31))))
    else:
        A("s_barrier")
        A(gemm_reads(0, 0, "o"))
        gemm_loop(P, tr, cfg, "o", "L_oloop", 14)
    fill = []
    for i in range(1, 4):
        so = [f"s_xor_b32 s{S_T0}, s2, {i}", f"s_mul_i32 s{S_T0}, s{S_T0}, 36864", f"s_add_u32 s{S_T0}, s{S_T0}, {(i - 1) * 3072}"]
        st = [f"buffer_store_dwordx4 {v4(XF(i, t))}, v{AB(1)}, {srd(sWS)}, s{S_T0} offen offset:{t * 1024} sc1" for t in T3]
        fill += [(6 * i + 6, x) for x in st] + list(zip(range(6 * i + 1, 6 * i + 4), so)) + spread(acc_to_frag(i, XF), 6 * i, 6 * i + 5)
    last = [x for g, x in fill if g == 24]
    A(weave(mf[6:] + mf[:6], [(g, x) for g, x in fill if g < 24]) + last)
    stamp()
    A(after)
    xload = lambda k, so: f"buffer_load_dwordx4 {v4(24 + 4 * k)}, v{AB(1)}, {srd(sWS)}, s{so} offen offset:{(k % 3) * 1024} sc1"

    def xadd(i):
        for k in range(3 * i, 3 * i + 3):
            for d in range(4):
                src, dst = 24 + 4 * k + d, ACC(d >> 1, k % 3) + 2 * (d & 1)
                A(f"""v_lshlrev_b32 v64, 16, v{src}
                v_and_b32 v65, 0xffff0000, v{src}
                v_pk_add_f32 {v2(dst)}, {v2(dst)}, v[64:65]""")

    so = (S_T0, S_T1, S_T2)
    xbase = f"s_mul_i32 s{S_T0}, s2, 36864\ns_add_u32 s{S_T1}, s{S_T0}, 3072\ns_add_u32 s{S_T2}, s{S_T0}, 6144"
    if not cfg.tag:
        A(["s_waitcnt vmcnt(0)", "s_mov_b64 exec, 14", f"buffer_store_dword v{AK(1)}, v{AK(0)}, {srd(sWS)}, 0 offen sc1", "s_mov_b64 exec, -1"])
        stamp()
        poll_loop(P, tr, "poll2", V_CHK, AK(2))
        stamp()
        A(xbase)
        A([xload(k, so[k // 3]) for k in range(9)])
        for i in range(3):
            xadd(i)
    else:
        stamp()
        A(xbase)
        A(f"s_mov_b32 s{S_SPIN}, 0")
        if cfg.tag == 2:
            probe = P.add(["L_probe:"] + [xload(3 * i + 2, so[i]) for i in range(3)] + f"""s_add_u32 s{S_SPIN}, s{S_SPIN}, 1
            s_cmp_ge_u32 s{S_SPIN}, {SPIN_MAX}
            s_cbranch_scc1 L_probed
            s_waitcnt vmcnt(0)
            v_max3_u32 v64, v35, v47, v59
            v_cmp_eq_u32 vcc, -1, v64
            s_cbranch_vccnz L_probe""".split("\n"))
            tr.extend(probe + probe)
            A("L_probed:")
        first = [xload(k, so[k // 3]) for k in range(9) if cfg.tag == 1 or k % 3 != 2]
        A(first)
        for i in range(3):
            b = 24 + 12 * i
            chk2 = ([f"v_max3_u32 v64, v{b}, v{b + 1}, v{b + 2}"] + [f"v_max3_u32 v64, v{b + k}, v{b + k + 1}, v64" for k in range(3, 11, 2)]
                    + [f"v_max_u32 v64, v{b + 11}, v64", "v_cmp_eq_u32 vcc, -1, v64"])
            A([f"L_x{i}:"] + chk2 + [f"s_cbranch_vccnz L_xr{i}", f"L_xok{i}:"])
            rare.append([f"L_xr{i}:"] + [xload(k, so[i]) for k in range(3 * i, 3 * i + 3)]
                        + [f"s_add_u32 s{S_SPIN}, s{S_SPIN}, 1", f"s_cmp_lt_u32 s{S_SPIN}, {SPIN_MAX}", "s_waitcnt vmcnt(0)",
                           f"s_cbranch_scc1 L_x{i}", f"s_branch L_xok{i}"])
            if i == 2:
                stamp()
            xadd(i)
    A(acc_to_frag(0))
    A([f"v_permlane16_swap_b32 v{QF(0, t) + h}, v{QF(0, t) + 2 + h}" for t in T3 for h in range(2)])
    if cfg.linout:
        A(f"s_lshl_b32 s{S_T0}, s2, 2\ns_add_u32 s{S_T0}, s{S_T0}, s{S_W}\ns_mul_i32 s{S_T0}, s{S_T0}, 3072\nv_lshl_add_u32 v{AV(0)}, v{V_TMP}, 4, s{S_T0}")
    for t in T3:
        A(f"s_mov_b32 s{S_T0}, {t * (1024 if cfg.linout else 65536)}\nbuffer_store_dwordx4 {v4(QF(0, t))}, v{AV(0)}, {srd(sOUT)}, s{S_T0} offen {cfg.pol_out}")
    if cfg.stamps:
        A("s_waitcnt vmcnt(0)")
        stamp()
        A(f"v_mov_b32 v1, 0")
        for k in range(nst[0]):
            A(f"v_writelane_b32 v1, s{S_ST + 2 * k}, {k}")
        A(f"""s_lshl_b32 s{S_T0}, s2, 3
        s_add_u32 s{S_T0}, s{S_T0}, s{S_WAVE}
        s_lshl_b32 s{S_T0}, s{S_T0}, 8
        s_add_u32 s{S_T0}, s{S_T0}, {WS_STAMP}
        v_lshl_add_u32 v2, v{V_TMP}, 2, s{S_T0}
        buffer_store_dword v1, v2, {srd(sWS)}, 0 offen""")
    A("L_exit:\ns_endpgm")
    blocks = {}
    for blk in rare:
        blocks[blk[0][:-1]] = P.add(blk)
    tr2 = []
    skip = None
    for ins in tr:
        if skip:
            if ins.text == skip + ":":
                skip = None
            else:
                continue
        tr2.append(ins)
        if ins.op.startswith("s_cbranch") and ins.text.split()[1] in blocks:
            blk = blocks[ins.text.split()[1]]
            tr2 += blk
            skip = blk[-1].text.split()[1]
    assert skip is None
    return tr, tr2


def generate(cfg):
    P = Prog()
    pre = P.add(("s_memrealtime s[96:97]\n" if cfg.stamps else "") + "s_cmp_ge_u32 s2, 256\ns_cbranch_scc1 L_exit")
    if cfg.remap:
        pre += P.add("""s_bfe_u32 s4, s2, 0x20003
        s_lshr_b32 s5, s2, 5
        s_and_b32 s2, s2, 7
        s_lshl_b32 s4, s4, 6
        s_lshl_b32 s5, s5, 3
        s_or_b32 s2, s2, s4
        s_or_b32 s2, s2, s5""")
    pre += prologue(P, cfg)
    tl = loader(P, cfg)
    tc, tc2 = compute(P, cfg)
    body = P.finish([pre + tc, pre + tc2] + [pre + t for t in tl])
    if cfg.align:
        body = align8(body)
    return (HEADER + "; @launch grid=(256,1,1) block=(512,1,1) lds=163840\n"
            + '.amdgcn_target "amdgcn-amd-amdhsa--gfx950"\n.text\n'
            + f".globl {NAME}_kernel\n.p2align 8\n.type {NAME}_kernel,@function\n{NAME}_kernel:\n" + body
            + f"""L_text_end:
.section .rodata,"a"
.p2align 6
.amdhsa_kernel {NAME}_kernel
  .amdhsa_next_free_vgpr 256
  .amdhsa_next_free_sgpr 102
  .amdhsa_accum_offset 256
  .amdhsa_group_segment_fixed_size 0
  .amdhsa_kernarg_size 104
  .amdhsa_user_sgpr_count 2
  .amdhsa_user_sgpr_kernarg_segment_ptr 1
  .amdhsa_system_sgpr_workgroup_id_x 1
  .amdhsa_float_denorm_mode_32 3
.end_amdhsa_kernel
""")


def parse(args):
    kw = {}
    for a in args:
        k, v = a.split("=")
        kw[k] = float(v) if k == "thr" else (int(v) if v.lstrip("-").isdigit() and not k.startswith(("pre", "ptouch", "spre", "bgaps", "order", "kbits")) else v.replace("+", " "))
    return Cfg(**kw)


if __name__ == "__main__":
    open(sys.argv[1], "w").write(generate(parse(sys.argv[2:])))
```

```python
import struct, sys
from asmlib import Prog, weave, spread, balance, align8

NAME = "concat_heads__mha_block_cached__gqa_block_cached__near_ridge"
HEADER = open("cdna_kernels/" + NAME + ".s.ref").read().split("; Override launch")[0]

WS_O, WS_X, WS_INBOX, WS_STAMP, WS_DUMP = 0, 16 << 20, 48 << 20, 200 << 20, 64 << 20
WRING, BRING, KRING, VRING = 0, 65536, 65536, 114688
WSLOT, BSLOT, ASLOT = 16384, 24576, 16384
SPIN_MAX = 400000
T3 = range(3)

S_WAVE, sX, sK, sV, sWQ, sWO, sOUT, sWS, sDBG = 3, 20, 24, 28, 32, 36, 40, 44, 48
S_BLK, S_HG, S_J, S_BP, S_NU, S_W, S_H, S_DB = 52, 53, 54, 55, 56, 57, 58, 59
S_T0, S_T1, S_T2, S_T3, S_CNT, S_DW, S_C, S_SLOT = 60, 61, 62, 63, 64, 65, 66, 68
S_LWB, S_LWW, S_ROT, S_J2, S_SPIN, S_FLAG, S_XCC, S_GRP = 69, 70, 71, 72, 73, 74, 75, 76
S_MASK, S_PC = 77, 78
S_SB = 94
S_TBL, S_BO = 92, 94
S_KR = 67
S_ST = 80
srd = lambda r: f"s[{r}:{r+3}]"
v4 = lambda r: f"v[{r}:{r+3}]"
v2 = lambda r: f"v[{r}:{r+1}]"
f32 = lambda x: "0x%08x" % struct.unpack("<I", struct.pack("<f", x))[0]
MFMA = "v_mfma_f32_16x16x32_bf16"

ACC = lambda T, t: (T * 3 + t) * 4
QF = lambda s, t: 96 + (s * 3 + t) * 4
FA = lambda b, T: 144 + 44 * b + 4 * T
FB = lambda b, t: 144 + 44 * b + 32 + 4 * t
AW = lambda T: 232 + T
AB = lambda s: 240 + s
V_CHK, V_TMP = 242, 243
FR = lambda f: 144 + 4 * f
SS = lambda kt, t: 176 + (kt * 3 + t) * 4
PP = lambda t: 200 + 4 * t
NM = lambda t: 212 + 4 * t
VL = lambda t: 224 + 2 * t
VX = 230
V_OST, V_FLG = 241, 231
VD = lambda t: 232 + t
VT = lambda k: 235 + k
VA = lambda t: 238 + t
AK = lambda s: 244 + s
AV = lambda T: 248 + T


class Cfg:
    def __init__(self, **kw):
        self.pol_x = ""
        self.pol_wq = ""
        self.pol_kv = "nt"
        self.pol_wo = ""
        self.pol_ob = "sc1"
        self.rot = 7
        self.stamps = 0
        self.flag_after = 1
        self.pre = "40.0.0.0.0.0.0.0.0.0.0.4.4"
        self.last = 30
        self.win = 5
        self.win16 = 10
        self.wo_at = "31.31.33.33"
        self.qd = 2
        self.thr = 8.0
        self.local = 1
        self.pk = 0
        self.snake = 1
        self.align = 1
        self.prio = 0
        self.remap = 0
        self.nurot = 1
        self.otouch = 0
        self.stag = 0
        self.s1pre = 36
        self.s1win = 8
        self.s0win = 8
        self.s0late = 8
        self.s0sw = 28
        self.prog = 1
        self.pre1 = '0.0.0.0.0.0.0.0.20.0.12.8.8'
        self.tag = 0
        self.oclear = 0
        self.hmap = 3
        self.pol_t = 'sc1'
        self.order = '48c59d26ae37bf'
        self.clear_at = 0
        self.clear_b = 0
        self.krot = 0
        self.ksh = 0
        self.sigma = 5
        self.xtouch = 1
        self.hgrot = 3
        self.lazyp = 2
        self.w1late = 0
        self.linout = 0
        self.spreadc = 0
        self.latefetch = 0
        self.spreadsh = 4
        self.nocount = 0
        self.cls = 3
        self.clsinv = 1
        self.winlate = 0
        self.late = 27
        self.wwin = 0
        self.defer = 1
        self.bdirect = 1
        self.bgaps = '17.19.21'
        self.bwin = 0
        self.afirst = 0
        self.winb = 0
        self.lastb = 0
        self.par = 1
        self.spre = ''
        self.coop = ''
        self.coopw0 = 31
        self.promote = 0
        self.pol_out = ''
        self.ptouch = ''
        self.wb = 0
        self.wbmask = 0xf8
        self.oord = 0
        self.od = 2
        self.ctouch = 1
        self.count_at = 13
        self.fetch_at = 3
        self.chk_max = 50000
        self.__dict__.update(kw)


def o_rel(cfg):
    if cfg.order:
        r = [0, 1] + [int(c, 16) for c in cfg.order]
        assert sorted(r) == list(range(16))
        return r
    return [m if not cfg.par else (4 * (m >> 1) + (m & 1) if m < 8 else 4 * ((m - 8) >> 1) + (m & 1) + 2) for m in range(16)]


def head_of(cfg, dst, j, tmp):
    if cfg.hmap == 0:
        return f"s_lshl_b32 s{dst}, s{S_HG}, 3\ns_add_u32 s{dst}, s{dst}, s{j}"
    if cfg.hmap == 1:
        return f"s_lshl_b32 s{dst}, s{j}, 2\ns_add_u32 s{dst}, s{dst}, s{S_HG}"
    if cfg.hmap in (2, 3):
        g = f"s_and_b32 s{dst}, s{j}, 3" if cfg.hmap == 2 else f"s_lshr_b32 s{dst}, s{j}, 1"
        return f"{g}\ns_xor_b32 s{dst}, s{dst}, s{S_HG}\ns_lshl_b32 s{dst}, s{dst}, 3\ns_add_u32 s{dst}, s{dst}, s{j}"
    lo = cfg.hmap - 3
    return (f"s_lshr_b32 s{dst}, s{j}, {lo}\ns_lshl_b32 s{dst}, s{dst}, 2\ns_add_u32 s{dst}, s{dst}, s{S_HG}\ns_lshl_b32 s{dst}, s{dst}, {lo}\n"
            f"s_and_b32 s{tmp}, s{j}, {(1 << lo) - 1}\ns_add_u32 s{dst}, s{dst}, s{tmp}")


def lane_id(v):
    return f"v_mbcnt_lo_u32_b32 v{v}, -1, 0\nv_mbcnt_hi_u32_b32 v{v}, -1, v{v}"


def make_srd(items):
    return "\n".join(f"s_mov_b32 s{r}, s{p}\ns_mov_b32 s{r+1}, s{p+1}\ns_mov_b32 s{r+2}, {n}\ns_mov_b32 s{r+3}, 0x20000" for r, p, n in items)


def prologue(P, cfg):
    return P.add(f"""
    s_bfe_u32 s{S_BLK}, s2, 0x10002
    s_mul_i32 s{S_T0}, s{S_BLK}, 40
    s_load_dwordx8 s[4:11], s[0:1], s{S_T0}
    s_add_u32 s{S_T1}, s{S_T0}, 32
    s_load_dwordx2 s[12:13], s[0:1], s{S_T1}
    s_load_dwordx4 s[16:19], s[0:1], 88
    s_load_dwordx2 s[14:15], s[0:1], 80
    v_lshrrev_b32 v1, 6, v0
    v_and_b32 v0, 63, v0
    s_and_b32 s{S_HG}, s2, 3
    v_readfirstlane_b32 s{S_WAVE}, v1
    s_bfe_u32 s{S_J}, s2, 0x30003
    s_lshr_b32 s{S_BP}, s2, 6
    {head_of(cfg, S_H, S_J, S_T2)}
    s_and_b32 s{S_W}, s{S_WAVE}, 3
    s_mul_i32 s{S_LWB}, s{S_W}, 6144
    s_lshl_b32 s{S_LWW}, s{S_W}, 12
    s_cmp_lt_u32 s{S_WAVE}, 4
    s_cbranch_scc1 L_compute
    """)


def late_ids(cfg):
    return f"""s_mul_i32 s{S_NU}, s{S_BP}, {2 * cfg.nurot}
    s_add_u32 s{S_NU}, s{S_NU}, s{S_J}
    s_and_b32 s{S_NU}, s{S_NU}, 7
    {f"s_xor_b32 s{S_NU}, s{S_NU}, s{S_BLK}" if cfg.sigma & 4 else ""}
    {f"s_lshl_b32 s{S_NU}, s{S_NU}, 2" if cfg.sigma & 3 else ""}
    {f"s_lshr_b32 s{S_NU}, {[0, 0x73625140, 0x75643120][cfg.sigma & 3]}, s{S_NU}" if cfg.sigma & 3 else ""}
    {f"s_and_b32 s{S_NU}, s{S_NU}, 7" if cfg.sigma & 3 else ""}
    s_and_b32 s{S_GRP}, s2, 7
    s_lshl_b32 s{S_T1}, s{S_BP}, 3
    s_add_u32 s{S_GRP}, s{S_GRP}, s{S_T1}"""


def x_touch(cfg, vaddr, vdst):
    if cfg.xtouch & 3 == 1:
        return [f"""s_lshr_b32 s{S_T0}, s2, 3
        s_lshl_b32 s{S_T0}, s{S_T0}, 2
        s_add_u32 s{S_T0}, s{S_T0}, s{S_HG}
        s_lshl_b32 s{S_T0}, s{S_T0}, 2
        s_add_u32 s{S_T0}, s{S_T0}, s{S_W}
        s_mul_i32 s{S_T0}, s{S_T0}, 3072
        v_min_u32 v{vaddr}, 23, v0
        v_lshlrev_b32 v{vaddr}, 7, v{vaddr}""", f"buffer_load_dword v{vdst}, v{vaddr}, {srd(sX)}, s{S_T0} offen"]
    return [f"""s_lshr_b32 s{S_T0}, s2, 3
    s_lshl_b32 s{S_T0}, s{S_T0}, 2
    s_add_u32 s{S_T0}, s{S_T0}, s{S_W}
    s_mul_i32 s{S_T0}, s{S_T0}, 12288
    s_add_u32 s{S_T1}, s{S_T0}, 6144
    v_min_u32 v{vaddr}, 47, v0
    v_lshlrev_b32 v{vaddr}, 7, v{vaddr}""", f"buffer_load_dword v{vdst}, v{vaddr}, {srd(sX)}, s{S_T0} offen",
            f"buffer_load_dword v{vdst}, v{vaddr}, {srd(sX)}, s{S_T1} offen"]


def code_touch(lane, vaddr, vdst):
    return f"""s_lshr_b32 s{S_T0}, s2, 3
    s_lshl_b32 s{S_T0}, s{S_T0}, 10
    v_and_b32 v{vaddr}, 7, v{lane}
    v_lshl_add_u32 v{vaddr}, v{vaddr}, 7, s{S_T0}
    v_min_u32 v{vaddr}, L_text_end-L_text-4, v{vaddr}
    global_load_dword v{vdst}, v{vaddr}, s[{S_PC}:{S_PC + 1}]"""


def poll_loop(P, tr, name, vdst, vaddr):
    tr.extend(P.add(f"s_mov_b32 s{S_SPIN}, 0"))
    loop = P.add(f"""L_{name}:
    buffer_load_dword v{vdst}, v{vaddr}, {srd(sWS)}, 0 offen sc1
    s_add_u32 s{S_SPIN}, s{S_SPIN}, 1
    s_cmp_ge_u32 s{S_SPIN}, {SPIN_MAX}
    s_cbranch_scc1 L_{name}_done
    s_waitcnt vmcnt(0)
    v_cmp_ne_u32 vcc, 1, v{vdst}
    s_cbranch_vccnz L_{name}""")
    tr.extend(loop + loop)
    tr.extend(P.add(f"L_{name}_done:"))


LX = lambda p: 8 + p
LW = lambda p: 14 + p
LK = lambda p: 18 + p
LV = lambda p: 22 + p
LWO = lambda p: 24 + p
LOB, LFLAG, LSTAMP, LPOLL = 28, 29, 30, 31
LDSW = lambda h: 1 + h
LTQ, LTO, LTB = 32, 33, 34
LPOOL = 36


def late_setup(A, cfg):
    A(f"""
    s_lshr_b32 s{S_T0}, s{S_W}, 1
    s_lshl_b32 s{S_T1}, s{S_BP}, 1
    s_add_u32 s{S_T0}, s{S_T0}, s{S_T1}
    s_lshl_b32 s{S_T0}, s{S_T0}, 5
    s_add_u32 s{S_T0}, s{S_T0}, s{S_H}
    s_lshl_b32 s{S_T0}, s{S_T0}, 17
    s_and_b32 s{S_T1}, s{S_W}, 1
    s_lshl_b32 s{S_T1}, s{S_T1}, 12
    s_add_u32 s{S_T0}, s{S_T0}, s{S_T1}
    v_lshl_add_u32 v5, v1, 8, s{S_T0}
    v_xor_b32 v7, v2, v1
    """)
    for p in range(4):
        A(f"v_xor_b32 v3, {4 * p}, v7\nv_lshl_add_u32 v{LK(p)}, v3, 4, v5")
    A(f"""
    v_lshl_add_u32 v{LV(0)}, v6, 4, v5
    v_xor_b32 v7, 8, v6
    v_lshl_add_u32 v{LV(1)}, v7, 4, v5
    {f"s_mov_b32 s{S_T0}, 0" if cfg.hmap else f"s_lshl_b32 s{S_T0}, s{S_HG}, 21"}
    s_lshl_b32 s{S_T1}, s{S_W}, 15
    s_add_u32 s{S_T0}, s{S_T0}, s{S_T1}
    s_lshl_b32 s{S_T1}, s{S_NU}, 8
    s_add_u32 s{S_T0}, s{S_T0}, s{S_T1}
    v_lshl_add_u32 v5, v1, 11, s{S_T0}
    v_add_u32 v{LTO}, s{S_T0}, v{LTO}
    v_lshl_add_u32 v{LWO(0)}, v6, 4, v5
    v_lshl_add_u32 v7, v7, 4, v5
    v_add_u32 v{LWO(1)}, {8192 - 1024}, v7
    v_add_u32 v{LWO(2)}, {2 * 8192 - 2048}, v{LWO(0)}
    v_add_u32 v{LWO(3)}, {3 * 8192 - 3072}, v7
    s_mul_i32 s{S_T0}, s{S_GRP}, 393216
    s_add_u32 s{S_T0}, s{S_T0}, s{S_LWB}
    v_lshl_add_u32 v{LOB}, v0, 4, s{S_T0}
    s_lshl_b32 s{S_T1}, s{S_J}, 2
    s_add_u32 s{S_T1}, s{S_T1}, s{S_W}
    s_mul_i32 s{S_T1}, s{S_T1}, 3072
    s_mul_i32 s{S_T0}, s{S_GRP}, 393216
    s_add_u32 s{S_T0}, s{S_T0}, s{S_T1}
    v_min_u32 v{LTB}, 23, v0
    v_lshl_add_u32 v{LTB}, v{LTB}, 7, s{S_T0}
    s_lshl_b32 s{S_T0}, s2, 11
    s_lshl_b32 s{S_T1}, s{S_W}, 9
    s_add_u32 s{S_T0}, s{S_T0}, s{S_T1}
    s_add_u32 s{S_T0}, s{S_T0}, {WS_INBOX}
    v_lshl_add_u32 v{LFLAG}, v4, 2, s{S_T0}
    s_lshl_b32 s{S_J2}, s{S_J}, 1
    s_add_u32 s{S_T0}, s{S_LWW}, {KRING}
    v_lshl_add_u32 v{LDSW(0)}, v0, 4, s{S_T0}
    v_add_u32 v{LDSW(1)}, {VRING - KRING}, v{LDSW(0)}
    """)


def loader(P, cfg):
    tr = []
    A = lambda t: tr.extend(P.add(t))
    A(f"""
    v_lshrrev_b32 v1, 4, v0
    v_and_b32 v2, 15, v0
    v_lshrrev_b32 v3, 3, v0
    v_and_b32 v4, 7, v0
    s_mul_i32 s{S_T0}, s{S_BP}, 192
    s_mul_i32 s{S_T1}, s{S_W}, 48
    s_add_u32 s{S_T0}, s{S_T0}, s{S_T1}
    s_lshl_b32 s{S_T0}, s{S_T0}, 11
    v_lshl_add_u32 v5, v3, 11, s{S_T0}
    v_xor_b32 v6, v4, v1
    v_lshl_add_u32 v{LX(0)}, v6, 4, v5
    v_xor_b32 v6, 4, v6
    v_lshl_add_u32 v7, v6, 4, v5
    """)
    for p in range(1, 6):
        A(f"v_add_u32 v{LX(p)}, {p * 16384 - (p % 4) * 1024}, v{7 if p & 1 else LX(0)}")
    A(f"""
    s_lshl_b32 s{S_T0}, s{S_W}, 17
    s_lshl_b32 s{S_T1}, s{S_H}, 8
    s_add_u32 s{S_T0}, s{S_T0}, s{S_T1}
    v_lshl_add_u32 v5, v1, 13, s{S_T0}
    v_lshlrev_b32 v6, 1, v1
    v_xor_b32 v6, v6, v2
    v_lshl_add_u32 v{LW(0)}, v6, 4, v5
    v_xor_b32 v7, 8, v6
    v_lshl_add_u32 v7, v7, 4, v5
    v_add_u32 v{LW(1)}, {32768 - 1024}, v{LW(0)}
    v_add_u32 v{LW(2)}, {2 * 32768 - 2048}, v7
    v_add_u32 v{LW(3)}, {3 * 32768 - 3072}, v7
    """)
    if cfg.rot == 1:
        A(f"s_add_u32 s{S_ROT}, s{S_BP}, s{S_J}\ns_and_b32 s{S_ROT}, s{S_ROT}, 3\ns_lshl_b32 s{S_ROT}, s{S_ROT}, 2")
    elif cfg.rot == 2:
        A(f"s_add_u32 s{S_ROT}, s{S_BP}, s{S_J}\ns_and_b32 s{S_ROT}, s{S_ROT}, 1\ns_lshl_b32 s{S_ROT}, s{S_ROT}, 3")
    elif cfg.rot == 3:
        A(f"s_lshl_b32 s{S_ROT}, s{S_HG}, 2")
    elif cfg.rot == 4:
        A(f"s_lshl_b32 s{S_ROT}, s{S_BP}, 2")
    elif cfg.rot == 5:
        A(f"s_lshl_b32 s{S_ROT}, s{S_J}, 1")
    elif cfg.rot in (7, 8, 9):
        A(f"s_lshr_b32 s{S_ROT}, s{S_J}, 1\ns_add_u32 s{S_ROT}, s{S_ROT}, s{S_BP}\ns_and_b32 s{S_ROT}, s{S_ROT}, 3\ns_lshl_b32 s{S_ROT}, s{S_ROT}, {9 - cfg.rot}")
    elif cfg.rot == 6:
        A(f"s_and_b32 s{S_ROT}, s{S_J}, 3\ns_lshl_b32 s{S_ROT}, s{S_ROT}, 2")
    else:
        A(f"s_mov_b32 s{S_ROT}, 0")
    A(f"""
    v_bfe_u32 v7, v0, 1, 4
    v_and_b32 v5, 1, v0
    v_lshlrev_b32 v5, 7, v5
    v_lshl_add_u32 v{LTO}, v7, 11, v5
    v_lshl_add_u32 v{LTQ}, v7, 13, v5
    v_add_u32 v{LTQ}, s{S_T0}, v{LTQ}
    """)
    A("s_waitcnt lgkmcnt(0)")
    A(make_srd(((sWQ, 10, 8 << 20), (sX, 4, 768 * 2048))))
    q0 = []
    if cfg.stamps:
        A(f"v_mov_b32 v{LSTAMP}, 0")
        A(loader_stamp(0))
        A(f"v_writelane_b32 v{LSTAMP}, s96, 63")
    if cfg.xtouch & 4:
        xt = x_touch(cfg, 3, LPOLL)
        A(xt)
        q0 += ["t"] * (len(xt) - 1)
    if cfg.afirst:
        A(f"s_bitcmp{1 - cfg.clsinv}_b32 s2, {cfg.cls}\ns_cbranch_scc1 L_bstart")
        for n in range(4 if cfg.cls == 6 else 0):
            A(f"""s_add_u32 s{S_T1}, s{S_ROT}, {n}
            s_lshl_b32 s{S_T1}, s{S_T1}, 19
            buffer_load_dword v{LPOLL}, v{LTQ}, {srd(sWQ)}, s{S_T1} offen""")
        A("s_branch L_started\nL_bstart:")
    if not cfg.stag:
        for n in range(2):
            for text, isload in q_stage(cfg, n):
                A(text)
                if isload:
                    q0.append(n)
    if cfg.afirst:
        A("L_started:")
    A(make_srd(((sK, 6, 32 << 20), (sV, 8, 32 << 20), (sWO, 12, 8 << 20), (sWS, 18, 256 << 20))))
    A(late_ids(cfg))
    late_setup(A, cfg)
    if cfg.krot:
        A(f"s_mul_i32 s{S_KR}, s2, {cfg.krot}\ns_lshr_b32 s{S_KR}, s{S_KR}, {cfg.ksh}\ns_lshl_b32 s{S_KR}, s{S_KR}, 13")
    if cfg.pre1:
        A(f"s_bitcmp{1 - cfg.clsinv}_b32 s2, {cfg.cls}\ns_cbranch_scc1 L_late")
        t0 = loader_role(P, cfg, list(tr), ["t"] * (4 if cfg.cls == 6 else 0) if cfg.afirst else q0, None, cfg.pre, "a")
        return [t0, loader_role(P, cfg, list(tr) + P.add("L_late:"), q0, None, cfg.pre1, "b")]
    if not cfg.stag:
        return [loader_role(P, cfg, tr, q0, None, cfg.pre)]
    A(f"s_cmp_ge_u32 s{S_BP}, 2\ns_cbranch_scc1 L_late")
    t0 = loader_role(P, cfg, list(tr), q0, 0)
    return [t0, loader_role(P, cfg, list(tr) + P.add("L_late:"), q0, 1)]


def loader_stamp(n):
    return (f"s_memrealtime s[{S_ST}:{S_ST+1}]\ns_memtime s[{S_ST+2}:{S_ST+3}]\ns_cmp_eq_u32 s{S_W}, 1\ns_waitcnt lgkmcnt(0)\n"
            f"s_cselect_b32 s{S_ST+4}, s{S_ST+2}, s{S_ST}\nv_writelane_b32 v{LSTAMP}, s{S_ST+4}, {n}")


def q_stage(cfg, n):
    dma = lambda vreg, sr, so, imm, pol: (f"buffer_load_dwordx4 v{vreg}, {srd(sr)}, s{so} offen offset:{imm} {pol} lds", True)
    first = cfg.promote & 1 and n < 4
    mask = {8: 7, 9: 3}.get(cfg.rot, 15)
    hgr = ""
    if cfg.hgrot == 1:
        hgr = f"s_add_u32 s{S_T1}, s{S_HG}, {n}\ns_and_b32 s{S_T1}, s{S_T1}, 3\ns_or_b32 s{S_T0}, s{S_T0}, s{S_T1}"
    if cfg.hgrot == 3:
        hgr = f"s_lshr_b32 s{S_T1}, s{S_T0}, 2\ns_xor_b32 s{S_T0}, s{S_T0}, s{S_T1}"
    if cfg.hgrot == 4:
        hgr = f"s_lshr_b32 s{S_T1}, s{S_T0}, 2\ns_and_b32 s{S_T1}, s{S_T1}, 2\ns_xor_b32 s{S_T0}, s{S_T0}, s{S_T1}"
    if cfg.hgrot == 5:
        hgr = f"s_lshr_b32 s{S_T1}, s{S_T0}, 1\ns_and_b32 s{S_T1}, s{S_T1}, 2\ns_xor_b32 s{S_T0}, s{S_T0}, s{S_T1}"
    if cfg.hgrot == 6:
        hgr = f"s_lshr_b32 s{S_T1}, s{S_T0}, 2\ns_lshl_b32 s{S_T0}, s{S_T0}, 2\ns_and_b32 s{S_T0}, s{S_T0}, 12\ns_or_b32 s{S_T0}, s{S_T0}, s{S_T1}"
    if cfg.hgrot == 7:
        hgr = f"s_lshl_b32 s{S_T1}, s{S_BLK}, 1\ns_xor_b32 s{S_T0}, s{S_T0}, s{S_T1}"
    if cfg.hgrot == 2:
        hgr = f"s_xor_b32 s{S_T1}, s{S_HG}, {n & 3}\ns_or_b32 s{S_T0}, s{S_T0}, s{S_T1}"
    o = [(f"""s_add_u32 s{S_T0}, s{S_ROT}, {n}
    s_add_u32 m0, s{S_LWW}, {WRING + (n % 4) * WSLOT}
    s_and_b32 s{S_T0}, s{S_T0}, {12 if cfg.hgrot in (1, 2) else mask}
    {hgr}
    {f"s_or_b32 s{S_T0}, s{S_T0}, {n & ~mask}" if n & ~mask else ""}
    s_lshl_b32 s{S_T1}, s{S_T0}, 19""", False)]
    o += [dma(LW(p), sWQ, S_T1, p * 1024, "nt" if first else cfg.pol_wq) for p in range(4)]
    if first:
        o.append((f"buffer_load_dword v{LPOLL}, v{LTQ}, {srd(sWQ)}, s{S_T1} offen {cfg.pol_t}", True))
    o.append((f"s_add_u32 m0, s{S_LWB}, {BRING + (n % 4) * BSLOT}\ns_lshl_b32 s{S_T0}, s{S_T0}, 7", False))
    o += [dma(LX(p), sX, S_T0, p * 1024, cfg.pol_x) for p in range(4)]
    o.append((f"s_add_u32 m0, s{S_LWB}, {BRING + (n % 4) * BSLOT + 4096}", False))
    o += [dma(LX(p), sX, S_T0, (p - 4) * 1024, cfg.pol_x) for p in range(4, 6)]
    return o


def loader_role(P, cfg, tr, q0, role, pre="", sfx=""):
    A = lambda t: tr.extend(P.add(t))
    sfx += "" if role is None else str(role)
    q = list(q0)

    flip = [0]

    def throttle(win):
        if win in (45, 55):
            flip[0] ^= 1
            win = win // 10 + flip[0]
        win = win or 56
        if win and len(q) >= win:
            A(f"s_waitcnt vmcnt({win - 1})")
            del q[:len(q) - (win - 1)]

    def dma(vreg, s, soff, imm, pol, tag, win=0):
        throttle(win)
        A(f"buffer_load_dwordx4 v{vreg}, {srd(s)}, {soff} offen offset:{imm} {pol} lds")
        q.append(tag)

    def wait(tag):
        if tag in q:
            idx = max(k for k, x in enumerate(q) if x == tag)
            A(f"s_waitcnt vmcnt({len(q) - 1 - idx})")
            del q[:idx + 1]

    def issue_q(n):
        for text, isload in q_stage(cfg, n):
            if isload:
                throttle(0)
                q.append(n)
            A(text)

    kv = []
    for e in range(17):
        if e <= 15:
            kv += [(16 + e, 0, e, p) for p in range(4)]
        if e >= 1:
            kv += [(16 + e, 1, e - 1, p) for p in range(4)]
    pool = list(range(LPOOL, 256, 4))
    parked = []
    state = dict(next=0, m0=None, soff=None, lds=False)

    def issue_kv(upto, k, win):
        state["m0"] = state["soff"] = None
        while state["next"] < upto:
            stage, isv, tile, p = kv[state["next"]]
            state["next"] += 1
            vo, sr = (LV(p & 1), sV) if isv else (LK(p), sK)
            if stage <= k + 2 and state["m0"] != (stage, isv):
                A(f"s_add_u32 m0, s{S_LWW}, {(VRING if isv else KRING) + (tile % 3) * ASLOT}")
                state["m0"] = (stage, isv)
            if state["soff"] != tile:
                if cfg.krot:
                    A(f"s_add_u32 s{S_T0}, s{S_KR}, {tile * 8192}\ns_and_b32 s{S_T0}, s{S_T0}, 0x1e000")
                else:
                    A(f"s_mov_b32 s{S_T0}, {tile * 8192}")
                state["soff"] = tile
            if stage <= k + 2:
                dma(vo, sr, f"s{S_T0}", p * 1024, cfg.pol_kv, stage, win)
            else:
                if not pool:
                    unpark(k, 2)
                r = pool.pop(0)
                throttle(win)
                A(f"buffer_load_dwordx4 {v4(r)}, v{vo}, {srd(sr)}, s{S_T0} offen offset:{p * 1024} {cfg.pol_kv}")
                q.append(("r", r))
                parked.append((stage, isv, tile, p, r))
            if cfg.lazyp:
                unpark(k, cfg.lazyp, True)

    def unpark(k, most=99, landed=False):
        while parked and parked[0][0] <= k + 2 and most and not (landed and ("r", parked[0][4]) in q):
            most -= 1
            stage, isv, tile, p, r = parked.pop(0)
            wait(("r", r))
            A(f"ds_write_b128 v{LDSW(isv)}, {v4(r)} offset:{(tile % 3) * ASLOT + p * 1024}")
            pool.append(r)
            state["lds"] = True

    def o_index(m):
        if cfg.order:
            return f"s_add_u32 s{S_T0}, s{S_J2}, {o_rel(cfg)[m]}"
        if cfg.par:
            if m < 8:
                return f"s_add_u32 s{S_T0}, s{S_J2}, {4 * (m >> 1) + (m & 1)}"
            if cfg.par == 1:
                return f"s_add_u32 s{S_T0}, s{S_J2}, {4 * ((m - 8) >> 1) + (m & 1) + 2}"
            return f"s_lshl_b32 s{S_T0}, s{S_NU}, 1\ns_add_u32 s{S_T0}, s{S_T0}, {4 * ((m - 8) >> 1) + (m & 1) + 2}"
        if m < 2 or not cfg.oord:
            return f"s_add_u32 s{S_T0}, s{S_J2}, {m}"
        return f"""s_cmp_gt_u32 s{S_T3}, {(m - 2) // 2}
        s_cselect_b32 s{S_T0}, {m - 2}, {m}
        s_add_u32 s{S_T0}, s{S_T0}, s{S_T2}"""

    def issue_ow(m, tag, win=0):
        A(f"""{o_index(m)}
        s_add_u32 m0, s{S_LWW}, {WRING + (m % 4) * WSLOT}
        s_and_b32 s{S_T0}, s{S_T0}, 15
        s_lshl_b32 s{S_T1}, s{S_T0}, 17""")
        if cfg.hmap:
            A(f"""s_lshr_b32 s{S_T0}, s{S_T0}, 1
            {head_of(cfg, S_T2, S_T0, S_T3)}
            s_lshl_b32 s{S_T2}, s{S_T2}, 18
            s_and_b32 s{S_T1}, s{S_T1}, 0x20000
            s_add_u32 s{S_T1}, s{S_T1}, s{S_T2}""")
        first = cfg.promote & 2 and o_rel(cfg)[m] < 4
        for p in range(4):
            dma(LWO(p), sWO, f"s{S_T1}", p * 1024, "nt" if first else cfg.pol_wo, tag, 0 if first else win)
        if first:
            A(f"buffer_load_dword v{LPOLL}, v{LTO}, {srd(sWO)}, s{S_T1} offen {cfg.pol_t}")
            q.append("t")

    def touch_w(b):
        A(f"""s_lshl_b32 s{S_T0}, s{S_BP}, 17
        s_add_u32 s{S_T0}, s{S_T0}, {b << 19}
        buffer_load_dword v{LPOLL}, v{LTO}, {srd(sWO)}, s{S_T0} offen""")
        q.append("t")

    def touch_b(b):
        A(f"s_mov_b32 s{S_T0}, {b * 98304}\nbuffer_load_dword v{LPOLL}, v{LTB}, {srd(sWS)}, s{S_T0} offen sc1")
        q.append("t")

    coop = [int(x) for x in str(cfg.coop).split(".")] if cfg.coop else []
    spre = [int(x) for x in str(cfg.spre).split(".")] if cfg.spre else []
    sdone = [0]

    def scalar_pre():
        for _ in range(spre.pop(0) if spre else 0):
            n, r = divmod(sdone[0], 32)
            if n > 3:
                break
            if r == 0:
                A(f"""s_add_u32 s{S_T0}, s{S_NU}, {2 * n + 1}
                s_and_b32 s{S_T0}, s{S_T0}, 7
                s_lshl_b32 s{S_T0}, s{S_T0}, 18
                s_add_u32 s{S_T0}, s{S_T0}, s{S_DW}
                s_add_u32 s{S_SB + 2 * (n & 1)}, s12, s{S_T0}
                s_addc_u32 s{S_SB + 2 * (n & 1) + 1}, s13, 0""")
            A(f"s_load_dword s{S_SB + 4}, s[{S_SB + 2 * (n & 1)}:{S_SB + 2 * (n & 1) + 1}], {(r >> 2) * 2048 + (r & 3) * 64}")
            sdone[0] += 1

    def coop_after(m):
        for b, mm in enumerate(coop):
            if mm == m:
                touch_b(b + 1)
                touch_w(b + 1)

    def issue_ob(m, tag):
        A(f"""{o_index(m)}
        s_add_u32 m0, s{S_LWB}, {BRING + ((m - 2) % 4) * BSLOT}
        s_and_b32 s{S_T0}, s{S_T0}, 15
        s_mul_i32 s{S_T0}, s{S_T0}, 24576""")
        for p in range(4):
            dma(LOB, sWS, f"s{S_T0}", p * 1024, cfg.pol_ob, tag)
        A(f"s_add_u32 m0, s{S_LWB}, {BRING + ((m - 2) % 4) * BSLOT + 4096}\ns_add_u32 s{S_T1}, s{S_T0}, 4096")
        for p in range(2):
            dma(LOB, sWS, f"s{S_T1}", p * 1024, cfg.pol_ob, tag)

    nst = [1]

    def stamp():
        if cfg.stamps:
            A(loader_stamp(nst[0]))
            nst[0] += 1

    def barrier():
        if state["lds"]:
            A("s_waitcnt lgkmcnt(0)")
            state["lds"] = False
        A("s_barrier")
        stamp()

    end = lambda n: 0 if n < 16 else min(128, 4 + 8 * (n - 16))
    pre = [int(x) for x in str(pre).split(".")] if pre else []
    pre = [0] * (17 - len(pre)) + pre
    wo_at = [int(x) for x in str(cfg.wo_at).split(".")]
    wtag = lambda m: 33 if m < 2 else 33 + m
    if role == 1:
        A(f"""
        s_lshr_b32 s{S_T0}, s2, 3
        s_and_b32 s{S_T0}, s{S_T0}, 15
        s_lshl_b32 s{S_T0}, s{S_T0}, 2
        s_add_u32 s{S_T0}, s{S_T0}, s{S_W}
        s_lshl_b32 s{S_T1}, s{S_T0}, 13
        s_lshl_b32 s{S_T2}, s{S_HG}, 11
        s_add_u32 s{S_T1}, s{S_T1}, s{S_T2}
        v_lshrrev_b32 v3, 4, v0
        v_and_b32 v4, 15, v0
        v_lshl_add_u32 v5, v3, 19, s{S_T1}
        v_lshl_add_u32 v5, v4, 7, v5
        s_mul_i32 s{S_T1}, s{S_T0}, {6 * 2048}
        v_lshrrev_b32 v3, 3, v0
        v_min_u32 v3, 5, v3
        v_and_b32 v4, 7, v0
        v_lshl_add_u32 v6, v3, 11, s{S_T1}
        v_lshl_add_u32 v6, v4, 7, v6
        """)
        for qt in range(4):
            if qt % 2 == 0:
                A(f"buffer_load_dword v{LPOLL}, v6, {srd(sX)}, 0 offen offset:{(qt // 2) * 1024}")
                q.append("t")
            A(f"s_mov_b32 s{S_T0}, {qt << 21}\nbuffer_load_dword v{LPOLL}, v5, {srd(sWQ)}, s{S_T0} offen")
            q.append("t")
        A(f"s_mov_b32 s{S_T0}, {384 * 2048}")
        for h in range(2):
            A(f"buffer_load_dword v{LPOLL}, v6, {srd(sX)}, s{S_T0} offen offset:{h * 1024}")
            q.append("t")
        pre[0] = cfg.s1pre
        issue_kv(pre[0], -1, cfg.s1win)
    if cfg.afirst and sfx == "a":
        pre[0] = cfg.afirst
        issue_kv(pre[0], -1, cfg.bwin or 8)
    if cfg.stag or (cfg.afirst and sfx == "a"):
        issue_q(0)
        issue_q(1)
    base = sum(pre)
    issue_kv(pre[0], -1, 0)
    nq = 2
    for k in range(0, 33):
        wait(k)
        barrier()
        if not cfg.lazyp:
            unpark(k)
        while nq <= min(15, k + 1 + cfg.qd):
            issue_q(nq)
            nq += 1
        w = ((cfg.winb or cfg.win) if sfx == 'b' else cfg.win) if role is None else (cfg.s1win if role else (cfg.s0win if k < cfg.s0sw else cfg.s0late))
        if cfg.winlate and k >= cfg.late and sfx != 'b':
            w = cfg.winlate
        win = 0 if k < 16 else (cfg.win16 if k == 16 else w)
        lead = min(128, end(k + 1) + ((win + 5) // 10 if win in (45, 55) else win or 8)) if k >= 14 else 0
        if k <= 15:
            ramp = sum(pre[:k + 2]) + (4 * max(0, k - 13) if role == 1 else 0)
        else:
            b0 = base + cfg.win16 + (8 if role == 1 else 0)
            last = (cfg.lastb or cfg.last) if sfx == 'b' else cfg.last
            ramp = min(128, b0 + ((128 - b0) * (k - 16)) // (last - 16))
        issue_kv(max(lead, ramp if base else 0), k, win or cfg.bwin)
        if cfg.lazyp:
            unpark(k, 99, True)
            unpark(k - 1)
        if k == 20 and cfg.oord:
            A(f"""s_add_u32 s{S_T2}, s{S_BP}, s{S_J}
            s_and_b32 s{S_T2}, s{S_T2}, {cfg.oord - 1}
            s_mul_i32 s{S_T2}, s{S_T2}, {8 // cfg.oord}
            s_sub_u32 s{S_T3}, s{S_J}, s{S_T2}
            s_and_b32 s{S_T3}, s{S_T3}, 7
            s_lshl_b32 s{S_T2}, s{S_T2}, 1""")
        for h, tk in enumerate(str(cfg.ptouch).split(".") if cfg.ptouch else []):
            if int(tk) == k:
                throttle(win)
                A(f"""s_mul_i32 s{S_T0}, s{S_J}, 49152
                s_add_u32 s{S_T0}, s{S_T0}, {h * 24576}
                v_mul_u32_u24 v3, 0x70, v0
                v_add_u32 v3, v3, v{LOB}
                s_mov_b32 exec_hi, 0xffff
                buffer_load_dword v{LPOLL}, v3, {srd(sWS)}, s{S_T0} offen
                s_mov_b64 exec, -1""")
                q.append("t")
        if k == 26:
            A(f"buffer_load_dword v{LPOLL}, v{LFLAG}, {srd(sWS)}, 0 offen sc1")
            q.append("t")
        for m in range(4):
            if wo_at[m] == k and not (m < 2 and m >= 2 - cfg.w1late):
                issue_ow(m, wtag(m), win if state["next"] < 128 else (cfg.wwin if k == 32 else 0))
        if coop and k == cfg.coopw0:
            touch_w(0)
    assert state["next"] == 128 and not parked
    if spre:
        A(f"""s_lshl_b32 s{S_DW}, s{S_HG}, 21
        s_lshl_b32 s{S_T0}, s{S_BP}, 16
        s_add_u32 s{S_DW}, s{S_DW}, s{S_T0}
        s_lshl_b32 s{S_T0}, s{S_W}, 14
        s_add_u32 s{S_DW}, s{S_DW}, s{S_T0}
        s_lshl_b32 s{S_T0}, s{S_NU}, 8
        s_add_u32 s{S_DW}, s{S_DW}, s{S_T0}""")
    if cfg.w1late:
        A("s_barrier")
        if cfg.w1late == 2:
            issue_ow(0, 33)
        issue_ow(1, 34)
    wait(33)
    barrier()
    if cfg.w1late:
        wait(34)
        A("s_barrier")
    def finish():
        if cfg.stamps:
            A(f"""s_lshl_b32 s{S_T0}, s2, 3
            s_add_u32 s{S_T0}, s{S_T0}, s{S_WAVE}
            s_lshl_b32 s{S_T0}, s{S_T0}, 8
            s_add_u32 s{S_T0}, s{S_T0}, {WS_STAMP}
            v_lshl_add_u32 v1, v0, 2, s{S_T0}
            buffer_store_dword v{LSTAMP}, v1, {srd(sWS)}, 0 offen""")
        A("s_endpgm")
        return tr

    def need_head(m):
        A(f"""{o_index(m)}
        s_bfe_u32 s{S_T1}, s{S_T0}, 0x30001
        s_mov_b32 s{S_SPIN}, 0""")
        n = f"L_need{m}{sfx}"
        loop = P.add(f"""{n}:
        s_bitcmp1_b32 s{S_MASK}, s{S_T1}
        s_cbranch_scc1 {n}_done
        buffer_load_dword v{LPOLL}, v{LFLAG}, {srd(sWS)}, 0 offen sc1
        s_add_u32 s{S_SPIN}, s{S_SPIN}, 1
        s_waitcnt vmcnt(0)
        v_cmp_eq_u32 vcc, 1, v{LPOLL}
        s_mov_b32 s{S_MASK}, vcc_lo
        s_cmp_lt_u32 s{S_SPIN}, {SPIN_MAX}
        s_cbranch_scc1 {n}""")
        tr.extend(loop + loop)
        A(f"{n}_done:")

    if cfg.bdirect:
        for m in (2, 3):
            if wo_at[m] == 33:
                issue_ow(m, 33 + m)
        A(f"s_mov_b32 s{S_MASK}, 0")
        seen = {0}

        def need_new(m):
            if o_rel(cfg)[m] >> 1 not in seen:
                seen.add(o_rel(cfg)[m] >> 1)
                need_head(m)

        need_new(2)
        need_new(3)
        A("s_barrier")
        stamp()
        for m in (2, 3):
            if wo_at[m] == 34:
                issue_ow(m, 33 + m)
        nm = 4
        for k in range(35, 49):
            if k - 31 <= 15:
                need_new(k - 31)
            wait(k)
            barrier()
            while nm <= min(15, k + 1 + cfg.od - 33):
                issue_ow(nm, nm + 33)
                nm += 1
        return finish()
    if wo_at[2] == 33:
        issue_ow(2, 35)
    if cfg.prog:
        A(f"s_mov_b32 s{S_MASK}, 0")
        need_head(2)
    else:
        poll_loop(P, tr, "poll1" + sfx, LPOLL, LFLAG)
        del q[:]
        q.append("poll")
    stamp()
    if coop:
        touch_b(0)
    issue_ob(2, 35)
    if wo_at[2] == 34:
        issue_ow(2, 35)
    coop_after(2)
    if wo_at[3] == 33:
        issue_ow(3, 36)
    issue_ob(3, 36)
    if wo_at[3] == 34:
        issue_ow(3, 36)
    coop_after(3)
    scalar_pre()
    nm = 4
    for k in range(35, 49):
        wait(k)
        barrier()
        while nm <= min(15, k + 1 + cfg.od - 33):
            issue_ow(nm, nm + 33)
            if cfg.prog and nm % 2 == 0:
                need_head(nm)
            issue_ob(nm, nm + 33)
            coop_after(nm)
            nm += 1
        scalar_pre()
    return finish()


def order(n, snake):
    return [(T, t) for T in range(n) for t in (reversed(T3) if snake and T & 1 else T3)]


def gemm_reads(b, s, kind, with_b=True):
    r = []
    if with_b:
        for t in T3:
            if kind == "q":
                r.append(f"ds_read_b128 {v4(FB(b, t))}, v{AB(s)} offset:{t * 2048}")
            else:
                r.append(f"ds_read_b128 {v4(FB(b, t))}, v{AB(0)} offset:{s * 3072 + t * 1024}")
    for T in range(8):
        for u in range(2):
            off = s * 8192 + u * (1024 if kind == "q" else 4096)
            r.append(f"ds_read_b64_tr_b16 {v2(FA(b, T) + 2 * u)}, v{AW(T)} offset:{off}")
    return r


def gemm_mfma(cfg, b, bsrc=None, zero=False):
    return [f"{MFMA} {v4(ACC(T, t))}, {v4(FA(b, T))}, {v4(bsrc(t) if bsrc else FB(b, t))}, {'0' if zero else v4(ACC(T, t))}"
            for T, t in order(8, cfg.snake)]


def gemm_loop(P, tr, cfg, kind, label, iters):
    sal = [f"s_add_u32 s{S_SLOT}, s{S_SLOT}, 1", f"s_and_b32 s{S_SLOT}, s{S_SLOT}, 3", f"s_cselect_b32 s{S_DW}, {WSLOT}, s{S_T2}"]
    if kind == "o":
        sal.append(f"s_cmp_lg_u32 s{S_SLOT}, 2")
    sal.append(f"s_cselect_b32 s{S_DB}, {BSLOT}, s{S_T3}")
    val = [f"v_add_u32 v{AB(s)}, s{S_DB}, v{AB(s)}" for s in range(2 if kind == "q" else 1)]
    val += [f"v_add_u32 v{AW(T)}, s{S_DW}, v{AW(T)}" for T in range(8)]
    nb = len(val) - 8
    hook = [(18, f"s_cmp_eq_u32 s{S_CNT}, s{S_FLAG}"), (19, "s_cbranch_scc1 L_count"), (19, "L_counted:")] if kind == "q" else []
    if kind == "o" and cfg.wb:
        hook = [(18, f"s_cmp_eq_u32 s{S_CNT}, s{S_FLAG}"), (19, "s_cbranch_scc1 L_wb"), (19, "L_wbdone:")]
    h0 = weave(gemm_mfma(cfg, 0), spread(gemm_reads(1, 1, kind), 0, 18) + spread(sal, 0, 4) + spread(val[:nb + 6], 12, 19)
               + spread(val[nb + 6:], 20, 21) + [(22, "s_waitcnt lgkmcnt(0)"), (22, "s_barrier")])
    h1 = weave(gemm_mfma(cfg, 1), spread(gemm_reads(0, 0, kind), -1, 17)
               + hook + [(20, f"s_sub_u32 s{S_CNT}, s{S_CNT}, 1"), (20, f"s_cmp_lg_u32 s{S_CNT}, 0")])
    tr.extend(P.add(f"s_mov_b32 s{S_CNT}, {iters}\ns_waitcnt lgkmcnt(0)"))
    if kind == "q":
        tr.extend(P.add(".p2align 3"))
        body = P.add([label + ":"] + h0 + h1 + ["s_waitcnt lgkmcnt(0)", f"s_cbranch_scc1 {label}"])
        tr.extend(body + body)
        return
    h0 = weave(gemm_mfma(cfg, 0), spread(gemm_reads(1, 1, kind), 0, 18) + spread(sal, 0, 4) + spread(val[:nb + 6], 11, 18)
               + spread(val[nb + 6:], 19, 19) + [(6, f"s_sub_u32 s{S_CNT}, s{S_CNT}, 1"), (7, f"s_cmp_eq_u32 s{S_CNT}, 0"),
                                                  (20, f"s_cbranch_scc1 {label}_out"), (22, "s_waitcnt lgkmcnt(0)"), (22, "s_barrier")])
    h1 = weave(gemm_mfma(cfg, 1), spread(gemm_reads(0, 0, kind), -1, 17) + hook)
    cut = h0.index(f"s_cbranch_scc1 {label}_out") + 1
    tr.extend(P.add(".p2align 3"))
    first = P.add([label + ":"] + h0[:cut])
    rest = P.add(h0[cut:] + h1 + ["s_waitcnt lgkmcnt(0)", f"s_branch {label}"])
    tr.extend(first + rest + first + P.add([label + "_out:"] + gemm_mfma(cfg, 0)[21:]))


def k_reads(tile):
    return [f"ds_read_b128 {v4(FR(kt * 4 + s))}, v{AK(s)} offset:{(tile % 3) * ASLOT + kt * 4096}" for kt in range(2) for s in range(4)]


def v_reads(T, tile):
    return [f"ds_read_b64_tr_b16 {v2(FR(T) + 2 * u)}, v{AV(T)} offset:{(tile % 3) * ASLOT + u * 4096}" for u in range(2)]


def qk_mfma(first=False):
    c0 = lambda t: "0" if first else v4(NM(t))
    return [f"{MFMA} {v4(SS(kt, t))}, {v4(FR(kt * 4 + s))}, {v4(QF(s, t))}, {c0(t) if s == 0 else v4(SS(kt, t))}"
            for kt in range(2) for s in range(4) for t in T3]


def pv_mfma(cfg):
    return [f"{MFMA} {v4(ACC(T, t))}, {v4(FR(T))}, {v4(PP(t))}, {v4(ACC(T, t))}" for T, t in order(8, cfg.snake)]


def xlane(op, regs, tmps):
    out = []
    for sw in ("v_permlane32_swap_b32", "v_permlane16_swap_b32"):
        out += [f"v_mov_b32 v{x}, v{r}" for r, x in zip(regs, tmps)]
        out += [f"{sw} v{r}, v{x}" for r, x in zip(regs, tmps)]
        out += [f"{op} v{r}, v{r}, v{x}" for r, x in zip(regs, tmps)]
    return out


def row_max():
    o = [f"v_max3_f32 v{VD(t)}, v{SS(0, t)}, v{SS(0, t) + 1}, v{SS(0, t) + 2}" for t in T3]
    o += [f"v_max3_f32 v{VD(t)}, v{SS(0, t) + 3}, v{SS(1, t)}, v{VD(t)}" for t in T3]
    o += [f"v_max3_f32 v{VD(t)}, v{SS(1, t) + 1}, v{SS(1, t) + 2}, v{VD(t)}" for t in T3]
    o += [f"v_max_f32 v{VD(t)}, v{SS(1, t) + 3}, v{VD(t)}" for t in T3]
    return o + xlane("v_max_f32", [VD(t) for t in T3], [VT(t) for t in T3])


def shift_scores():
    return [f"v_sub_f32 v{SS(kt, t) + r}, v{SS(kt, t) + r}, v{VD(t)}" for kt in range(2) for t in T3 for r in range(4)]


def guard_max(kt):
    r = [SS(kt, t) + k for t in T3 for k in range(4)]
    if kt == 0:
        o = [f"v_max3_f32 v{VX}, v{r[0]}, v{r[1]}, v{r[2]}"]
        o += [f"v_max3_f32 v{VX}, v{r[k]}, v{r[k + 1]}, v{VX}" for k in range(3, 11, 2)]
        return o + [f"v_max_f32 v{VX}, v{r[11]}, v{VX}"]
    return [f"v_max3_f32 v{VX}, v{r[k]}, v{r[k + 1]}, v{VX}" for k in range(0, 12, 2)]


def p_cvt(kt, h=None):
    return [f"v_cvt_pk_bf16_f32 v{PP(t) + 2 * kt + hh}, v{SS(kt, t) + 2 * hh}, v{SS(kt, t) + 2 * hh + 1}"
            for hh in ((0, 1) if h is None else (h,)) for t in T3]


def exp_sum(cfg, kt, h):
    o = [f"v_exp_f32 v{SS(kt, t) + 2 * h + r}, v{SS(kt, t) + 2 * h + r}" for t in T3 for r in range(2)]
    if cfg.pk:
        o += [f"v_pk_add_f32 {v2(VL(t))}, {v2(VL(t))}, {v2(SS(kt, t) + 2 * h)}" for t in T3]
    else:
        o += [f"v_add_f32 v{VL(t) + r}, v{VL(t) + r}, v{SS(kt, t) + 2 * h + r}" for t in T3 for r in range(2)]
    return o


def exps(kt, h):
    return [f"v_exp_f32 v{SS(kt, t) + 2 * h + r}, v{SS(kt, t) + 2 * h + r}" for t in T3 for r in range(2)]


def pk_sum(kt, h):
    return [f"v_pk_add_f32 {v2(VL(t))}, {v2(VL(t))}, {v2(SS(kt, t) + 2 * h)}" for t in T3]


def rescale(by):
    return [f"v_mul_f32 v{ACC(T, t) + r}, v{ACC(T, t) + r}, v{by(t)}" for T in range(8) for t in T3 for r in range(4)]


def acc_to_frag(s, QF=QF):
    return [f"v_cvt_pk_bf16_f32 v{QF(s, t) + 2 * u + h}, v{ACC(2 * s + u, t) + 2 * h}, v{ACC(2 * s + u, t) + 2 * h + 1}"
            for u in range(2) for t in T3 for h in range(2)]


def compute(P, cfg):
    tr = []
    A = lambda t: tr.extend(P.add(t))
    nst = [0]

    def stamp():
        if cfg.stamps:
            A(f"s_memrealtime s[{S_ST + 2 * nst[0]}:{S_ST + 2 * nst[0] + 1}]\ns_waitcnt lgkmcnt(0)")
            nst[0] += 1

    A(f"L_compute:\ns_getpc_b64 s[{S_PC}:{S_PC + 1}]\nL_text:\n{late_ids(cfg)}\ns_waitcnt lgkmcnt(0)")
    if cfg.xtouch and not cfg.xtouch & 4:
        A(make_srd(((sX, 4, 768 * 2048),)))
        A(x_touch(cfg, 112, 113))
    A(make_srd(((sOUT, 14, 768 * 4096), (sWS, 18, 256 << 20), (sDBG, 16, 256))))
    if cfg.prio:
        A(f"s_setprio {cfg.prio}")
    A(f"""
    s_getreg_b32 s{S_XCC}, hwreg(HW_REG_XCC_ID, 0, 3)
    s_cmp_lg_u32 s{S_W}, 0
    s_cbranch_scc1 L_noclear
    s_lshl_b32 s{S_T0}, s2, 11
    s_add_u32 s{S_T0}, s{S_T0}, {WS_INBOX}
    v_lshlrev_b32 v1, 4, v0
    v_mov_b64 v[4:5], 0
    v_mov_b64 v[6:7], 0
    buffer_store_dwordx4 v[4:7], v1, {srd(sWS)}, s{S_T0} offen sc1
    buffer_store_dwordx4 v[4:7], v1, {srd(sWS)}, s{S_T0} offen offset:1024 sc1
    {code_touch(0, 110, 111) if cfg.ctouch else ""}
    L_noclear:
    s_lshl_b32 s{S_XCC}, s{S_XCC}, 2
    v_and_b32 v{V_TMP}, 3, v0
    v_xor_b32 v{V_TMP}, s{S_GRP}, v{V_TMP}
    v_lshlrev_b32 v{V_TMP}, 2, v{V_TMP}
    v_lshrrev_b32 v100, 4, v0
    v_and_b32 v101, 15, v0
    v_bfe_u32 v102, v0, 2, 2
    v_bfe_u32 v103, v0, 1, 1
    v_and_b32 v104, 1, v0
    v_lshlrev_b32 v109, 4, v0
    """)
    A(f"""
    v_lshl_add_u32 v105, v100, 3, v102
    v_lshlrev_b32 v105, 8, v105
    v_lshl_add_u32 v105, v104, 3, v105
    v_lshl_add_u32 v105, v103, 4, v105
    v_and_b32 v106, 1, v100
    v_lshl_add_u32 v106, v106, 2, v102
    v_lshl_add_u32 v{AW(0)}, v106, 5, v105
    """)
    for T in range(1, 8):
        A(f"v_xor_b32 v{AW(T)}, {T << 5}, v{AW(0)}")
    A(f"""
    s_add_u32 s{S_T0}, s{S_LWB}, {BRING}
    v_lshl_add_u32 v105, v101, 7, s{S_T0}
    v_lshrrev_b32 v107, 1, v101
    v_xor_b32 v107, v107, v100
    v_lshl_add_u32 v{AB(0)}, v107, 4, v105
    v_xor_b32 v{AB(1)}, 64, v{AB(0)}
    """)
    A(f"""
    s_lshr_b32 s{S_T0}, s{S_W}, 1
    s_lshl_b32 s{S_T0}, s{S_T0}, 13
    s_add_u32 s{S_T0}, s{S_T0}, {KRING}
    v_lshl_add_u32 v105, v101, 8, s{S_T0}
    v_lshrrev_b32 v107, 1, v100
    v_and_b32 v108, 1, v100
    v_lshl_add_u32 v107, v108, 1, v107
    v_xor_b32 v107, v107, v101
    v_lshl_add_u32 v{AK(0)}, v107, 4, v105
    """)
    for s in range(1, 4):
        A(f"v_xor_b32 v{AK(s)}, {s << 6}, v{AK(0)}")
    A(f"""
    s_add_u32 s{S_T0}, s{S_T0}, {VRING - KRING}
    v_lshl_add_u32 v105, v100, 2, v102
    v_lshl_add_u32 v105, v105, 8, s{S_T0}
    v_lshl_add_u32 v105, v104, 3, v105
    v_lshl_add_u32 v105, v103, 4, v105
    v_lshl_add_u32 v{AV(0)}, v106, 5, v105
    """)
    for T in range(1, 8):
        A(f"v_xor_b32 v{AV(T)}, {T << 5}, v{AV(0)}")
    A(f"s_mov_b32 s{S_C}, {f32(1.4426950408889634 / 128 ** 0.5)}\ns_mov_b32 s{S_C + 1}, s{S_C}")
    A(f"s_mov_b32 s{S_T2}, {-3 * WSLOT}\ns_mov_b32 s{S_T3}, {-3 * BSLOT}\ns_mov_b32 s{S_SLOT}, 0")
    A([f"v_pk_mov_b32 {v2(r)}, 0, 0" for r in range(0, 96, 2)])
    if cfg.tag or cfg.oclear:
        A([f"v_mov_b32 v{r}, -1" for r in range(116, 120)])
    xclear = [f"s_mul_i32 s{S_T0}, s{S_W}, 9216", f"s_mul_i32 s{S_T1}, s2, 36864", f"s_add_u32 s{S_T0}, s{S_T0}, s{S_T1}", f"s_add_u32 s{S_T0}, s{S_T0}, {WS_X}"]
    for k in range(9):
        if k and k % 4 == 0:
            xclear.append(f"s_add_u32 s{S_T0}, s{S_T0}, 4096")
        xclear.append(f"buffer_store_dwordx4 v[116:119], v109, {srd(sWS)}, s{S_T0} offen offset:{(k % 4) * 1024} sc1")
    if cfg.tag and not cfg.clear_at:
        A(xclear)
    if cfg.oclear:
        A(f"""s_mul_i32 s{S_T0}, s{S_GRP}, 393216
        s_mul_i32 s{S_T1}, s{S_J}, 49152
        s_add_u32 s{S_T0}, s{S_T0}, s{S_T1}
        s_mul_i32 s{S_T1}, s{S_W}, 12288
        s_add_u32 s{S_T0}, s{S_T0}, s{S_T1}""")
        for k in range(12):
            if k and k % 4 == 0:
                A(f"s_add_u32 s{S_T0}, s{S_T0}, 4096")
            A(f"buffer_store_dwordx4 v[116:119], v109, {srd(sWS)}, s{S_T0} offen offset:{(k % 4) * 1024} sc1")
    count = f"""s_lshl_b32 s{S_T0}, 1, s{S_XCC}
    v_mov_b32 v{V_CHK}, s{S_T0}
    s_mov_b64 exec, 1
    s_waitcnt vmcnt(0)
    buffer_atomic_add v{V_CHK}, v{V_TMP}, {srd(sDBG)}, 0 offen
    s_mov_b64 exec, -1""".split("\n")
    rare = [["L_count:", f"s_cmp_eq_u32 s{S_FLAG}, {cfg.fetch_at}", "s_cbranch_scc1 L_fetch", f"s_mov_b32 s{S_FLAG}, {cfg.fetch_at}",
             "s_waitcnt vmcnt(0)", f"s_cmp_lg_u32 s{S_W}, 0", "s_cbranch_scc1 L_counted"] + count + ["s_branch L_counted",
             "L_fetch:", f"buffer_load_dword v{V_CHK}, v{V_TMP}, {srd(sDBG)}, 0 offen sc1", "s_branch L_counted"]]
    if cfg.clear_at:
        assert cfg.latefetch and cfg.tag and min(cfg.clear_at, cfg.clear_b or 99) > cfg.count_at + 1
        rare = [["L_count:", f"s_cmp_le_u32 s{S_FLAG}, {cfg.count_at + 1}", "s_cbranch_scc1 L_drain"] + xclear
                + [f"s_cmp_eq_u32 s{S_W}, 0", f"s_cselect_b32 s{S_FLAG}, {cfg.count_at}, {cfg.count_at + 1}", "s_branch L_counted",
                   "L_drain:", "s_waitcnt vmcnt(0)", f"s_cmp_lg_u32 s{S_W}, 0", "s_cbranch_scc1 L_counted"] + count + ["s_branch L_counted"]]
        A(f"s_bitcmp{1 - cfg.clsinv}_b32 s2, {cfg.cls}\ns_cselect_b32 s{S_FLAG}, {cfg.clear_b or cfg.clear_at}, {cfg.clear_at}")
    elif cfg.latefetch:
        assert not (cfg.tag or cfg.oclear or cfg.stag)
        rare = [["L_count:"] + count + ["s_branch L_counted"]]
        A(f"""s_lshr_b32 s{S_T0}, s2, {cfg.spreadsh}
        s_and_b32 s{S_T0}, s{S_T0}, {cfg.spreadc}
        s_sub_u32 s{S_T0}, {cfg.count_at}, s{S_T0}
        s_cmp_eq_u32 s{S_W}, {4 if cfg.nocount else 0}
        s_cselect_b32 s{S_FLAG}, s{S_T0}, 0""")
    else:
        A(f"s_cmp_eq_u32 s{S_W}, 0\ns_cselect_b32 s{S_FLAG}, {cfg.count_at}, {cfg.count_at + 1}")
    assert not (cfg.stag and (cfg.tag or cfg.oclear))
    if cfg.stag:
        A([f"s_cmp_ge_u32 s{S_BP}, 2", f"s_cselect_b32 s{S_T1}, s{S_FLAG}, 0", f"s_cmp_lg_u32 s{S_T1}, {cfg.count_at}", "s_cbranch_scc1 L_nocount"]
          + count + [f"s_mov_b32 s{S_FLAG}, {cfg.fetch_at}", "L_nocount:"])
    A("s_barrier")
    A(gemm_reads(0, 0, "q"))
    gemm_loop(P, tr, cfg, "q", "L_qloop", 16)
    A(k_reads(0))
    def judge(v):
        return f"""v_lshrrev_b32 v{VT(0)}, 4, v{v}
        v_and_b32 v{VT(0)}, 0x0f0f0f0f, v{VT(0)}
        v_and_b32 v{VT(1)}, 0x0f0f0f0f, v{v}
        v_add_u32 v{VT(0)}, v{VT(0)}, v{VT(1)}
        v_sad_u8 v{VT(0)}, v{VT(0)}, 0, 0
        v_readfirstlane_b32 s{S_T1}, v{v}
        v_cmp_ne_u32 vcc, 8, v{VT(0)}
        s_lshl_b32 s{S_T0}, 8, s{S_XCC}
        s_cmp_eq_u32 s{S_T0}, s{S_T1}
        s_cselect_b32 s{S_FLAG}, {cfg.local}, 0
        s_cmp_eq_u64 vcc, 0
        s_cselect_b32 s{S_FLAG}, s{S_FLAG}, 2""".split("\n")

    dbgaddr = lambda v: [f"v_and_b32 v{v}, 3, v{V_TMP}", f"v_xor_b32 v{v}, s{S_GRP}, v{v}", f"v_lshlrev_b32 v{v}, 2, v{v}"]
    ahook = []
    if cfg.latefetch:
        ahook = [f"s_cmp_le_u32 s{S_CNT}, 2", "s_cbranch_scc1 L_ahook", "L_ahooked:"]
        rare.append(["L_ahook:", f"s_cmp_eq_u32 s{S_CNT}, 1", "s_cbranch_scc1 L_judge"] + dbgaddr(VT(0))
                    + [f"buffer_load_dword v{V_CHK}, v{VT(0)}, {srd(sDBG)}, 0 offen sc1", "s_branch L_ahooked", "L_judge:", "s_waitcnt vmcnt(0)"]
                    + judge(V_CHK) + ([f"s_mov_b32 s{S_FLAG}, 1"] if cfg.nocount else []) + [f"v_mov_b32 v{V_CHK}, 1", "s_branch L_ahooked"])
    else:
        A(["s_waitcnt vmcnt(0)"] + judge(V_CHK))
    A([f"v_pk_mul_f32 {v2(r)}, {v2(r)}, s[{S_C}:{S_C + 1}]" for r in range(0, 96, 2)])

    def q_frag(s):
        return acc_to_frag(s) + [f"v_permlane16_swap_b32 v{QF(s, t) + h}, v{QF(s, t) + 2 + h}" for t in T3 for h in range(2)]

    qk0 = qk_mfma(True)
    qk0 = [qk0[kt * 12 + s * 3 + t] for s in range(4) for kt in range(2) for t in T3]
    zero = [f"v_mov_b64 {v2(r)}, 0" for r in range(0, 96, 2)]
    addr = f"""{lane_id(V_TMP)}
    s_mul_i32 s{S_T0}, s{S_GRP}, 393216
    s_mul_i32 s{S_T1}, s{S_J}, 49152
    s_add_u32 s{S_T0}, s{S_T0}, s{S_T1}
    s_add_u32 s{S_T0}, s{S_T0}, s{S_LWB}
    v_lshl_add_u32 v{V_OST}, v{V_TMP}, 4, s{S_T0}
    s_andn2_b32 s{S_T0}, s2, 0x38
    s_lshl_b32 s{S_T0}, s{S_T0}, 11
    s_lshl_b32 s{S_T1}, s{S_J}, 2
    s_add_u32 s{S_T0}, s{S_T0}, s{S_T1}
    s_lshl_b32 s{S_T1}, s{S_W}, 9
    s_add_u32 s{S_T0}, s{S_T0}, s{S_T1}
    s_add_u32 s{S_T0}, s{S_T0}, {WS_INBOX}
    v_lshl_add_u32 v{V_FLG}, v{V_TMP}, 14, s{S_T0}
    v_mov_b32 v{V_CHK}, 1""".split("\n")
    A(q_frag(0))
    A(weave(qk0, spread(addr, 0, 20) + [(6 * s - 6 + k // 3, x) for s in range(1, 4) for k, x in enumerate(q_frag(s))] + spread(zero[:12], 18, 23)))
    A(zero[12:20])
    A(row_max())
    A([f"v_pk_add_f32 {v2(SS(kt, t) + r)}, {v2(SS(kt, t) + r)}, {v2(VD(t) & ~1)} op_sel:[0,{VD(t) & 1}] op_sel_hi:[1,{VD(t) & 1}] neg_lo:[0,1] neg_hi:[0,1]"
       for kt in range(2) for t in T3 for r in (0, 2)])
    A([f"v_sub_f32 v{NM(t) + r}, 0, v{VD(t)}" for t in T3 for r in range(4)])
    A([f"v_mov_b64 {v2(VL(t))}, 0" for t in T3])
    A(exps(0, 0) + exps(0, 1) + exps(1, 0))
    A(zero[20:])
    A("s_barrier")
    A(k_reads(1))

    def iteration(i):
        pre = pk_sum(0, 0) + pk_sum(0, 1) + pk_sum(1, 0) + p_cvt(0) + p_cvt(1, 0)
        vr = [x for T in range(8) for x in v_reads(T, i)]
        vgap = list(range(8, 22)) + [23, 24]
        add11 = [f"v_add_f32 v{VL(t) + r}, v{VL(t) + r}, v{SS(1, t) + 2 + r}" for t in T3 for r in range(2)]
        early = exps(0, 0) + exps(0, 1) + exps(1, 0)
        fill = ([(5, "s_waitcnt lgkmcnt(0)"), (22, "s_waitcnt lgkmcnt(4)"), (35, "s_waitcnt lgkmcnt(0)")]
                + ([(12, f"s_sub_u32 s{S_CNT}, s{S_CNT}, 1"), (40, f"s_cmp_lg_u32 s{S_CNT}, 0")] if i == 2 else [])
                + list(zip(vgap, vr)) + list(zip(range(6), exps(1, 1))) + list(zip((6, 6, 7, 7, 8, 9), add11)) + list(zip((10, 11, 11), p_cvt(1, 1)))
                + list(zip(range(16, 22), guard_max(0))) + list(zip((25, 25, 26, 26, 27, 27), guard_max(1)))
                + [(28, f"v_cmp_lt_f32 vcc, s{S_C}, v{VX}"), (29, f"s_cbranch_vccnz L_up_{i}")] + list(zip(range(30, 48), early)))
        mf = qk_mfma() + pv_mfma(cfg)
        rare.append([f"L_up_{i}:", "s_waitcnt lgkmcnt(0)"] + mf[30:] + row_max() + [f"v_max_f32 v{VD(t)}, 0, v{VD(t)}" for t in T3] + shift_scores()
                    + [f"v_exp_f32 v{VA(t)}, -v{VD(t)}" for t in T3]
                    + [f"v_sub_f32 v{NM(t) + r}, v{NM(t) + r}, v{VD(t)}" for t in T3 for r in range(4)]
                    + [f"v_mul_f32 v{VL(t) + r}, v{VL(t) + r}, v{VA(t)}" for t in T3 for r in range(2)]
                    + rescale(VA) + early + [f"s_cmp_lg_u32 s{S_CNT}, 0", f"s_branch L_back_{i}"])
        return pre + ["s_waitcnt lgkmcnt(6)"] + weave(mf, fill) + [f"L_back_{i}:"]

    A(f"s_mov_b32 s{S_C}, {f32(cfg.thr)}\ns_mov_b32 s{S_CNT}, 5\ns_branch L_aenter\n.p2align 3")
    top = P.add(["L_aloop:"] + ahook + ["s_barrier"] + k_reads(1) + ["L_aenter:"])
    body = P.add(iteration(0) + ["s_barrier"] + k_reads(2) + iteration(1) + ["s_barrier"] + k_reads(0) + iteration(2)
                 + ["s_cbranch_scc1 L_aloop"])
    tr.extend(body + top + body)
    A(exps(1, 1) + pk_sum(0, 0) + pk_sum(0, 1) + pk_sum(1, 0) + pk_sum(1, 1))
    A([f"v_add_f32 v{VL(t)}, v{VL(t)}, v{VL(t) + 1}" for t in T3])
    A(xlane("v_add_f32", [VL(t) for t in T3], [VT(t) for t in T3]))
    A([f"v_rcp_f32 v{VL(t)}, v{VL(t)}" for t in T3])
    bc = "op_sel_hi:[1,0]"
    A([f"v_pk_mul_f32 {v2(SS(kt, t) + r)}, {v2(SS(kt, t) + r)}, {v2(VL(t))} {bc}" for kt in range(2) for t in T3 for r in (0, 2)])
    A(p_cvt(0) + p_cvt(1))
    oscale = [f"v_pk_mul_f32 {v2(ACC(T, t) + r)}, {v2(ACC(T, t) + r)}, {v2(VL(t))} {bc}" for T in range(8) for t in T3 for r in (0, 2)]
    A(oscale[:24])
    A("s_barrier")
    A([x for T in range(8) for x in v_reads(T, 15)])
    A(oscale[24:])

    def last_pv(pol):
        def o_out(s):
            return (acc_to_frag(s) + [f"s_mov_b32 s{S_T0}, {(s >> 1) * 24576 + (s & 1) * 3072}"]
                    + [f"buffer_store_dwordx4 {v4(QF(s, t))}, v{V_OST}, {srd(sWS)}, s{S_T0} offen offset:{t * 1024} {pol}" for t in T3])
        fill = []
        for s in range(3):
            o = o_out(s)
            fill += [(6 * s + 12, x) for x in o[12:]] if s < 2 else []
            fill += spread(o[:12], 6 * s + 6, 6 * s + 11)
        return weave(pv_mfma(cfg), fill) + o_out(2)[12:] + o_out(3)

    A([f"s_cmp_lg_u32 s{S_FLAG}, 1", "s_cbranch_scc1 L_far"] + last_pv("") + ["L_near:"])
    rare.append(["L_far:"] + last_pv("sc1")
                + [f"v_and_b32 v{VA(0)}, 3, v{V_TMP}", f"v_xor_b32 v{VA(0)}, s{S_GRP}, v{VA(0)}", f"v_lshlrev_b32 v{VA(0)}, 2, v{VA(0)}",
                   f"s_mov_b32 s{S_SPIN}, 0", "L_rechk:", f"s_cmp_lg_u32 s{S_FLAG}, 2", "s_cbranch_scc1 L_rechk_done",
                   f"buffer_load_dword v{VA(1)}, v{VA(0)}, {srd(sDBG)}, 0 offen sc1", "s_waitcnt vmcnt(0)"] + judge(VA(1))
                + [f"s_add_u32 s{S_SPIN}, s{S_SPIN}, 1", f"s_cmp_lt_u32 s{S_SPIN}, {cfg.chk_max}", "s_cbranch_scc1 L_rechk",
                   "L_rechk_done:", f"s_mov_b32 s{S_FLAG}, 0", "s_branch L_near"])
    stamp()
    if cfg.w1late:
        A("s_barrier")
    fst = f"buffer_store_dword v{V_CHK}, v{V_FLG}, {srd(sWS)}, 0 offen"
    flag = [f"s_cmp_eq_u32 s{S_FLAG}, 0", "s_mov_b64 exec, 0xff", "s_waitcnt vmcnt(0)", "s_cbranch_scc1 L_farflag", fst, "L_flagged:", "s_mov_b64 exec, -1"]
    rare.append(["L_farflag:", fst + " sc1", "s_branch L_flagged"])
    A(f"""
    s_lshl_b32 s{S_T0}, s{S_HG}, 6
    v_and_b32 v{AW(0)}, 0xfff, v{AV(0)}
    v_xor_b32 v{AW(0)}, s{S_T0}, v{AW(0)}
    """)
    for T in range(1, 8):
        A(f"v_xor_b32 v{AW(T)}, {T << 5}, v{AW(0)}")
    A(f"""
    s_add_u32 s{S_T0}, s{S_LWB}, {BRING}
    v_lshl_add_u32 v{AB(0)}, v{V_TMP}, 4, s{S_T0}
    v_mov_b32 v{AK(1)}, 1
    """)
    if cfg.flag_after < 0:
        A(flag)
        stamp()
    A("s_barrier")
    A(gemm_reads(0, 0, "o", with_b=False))
    wstep = [f"v_add_u32 v{AW(T)}, {WSLOT}, v{AW(T)}" for T in range(8)]
    for hs in range(0 if cfg.bdirect else 4):
        if hs == cfg.flag_after:
            A(flag)
            stamp()
        fill = []
        if hs < 3:
            fill += spread(gemm_reads((hs + 1) & 1, (hs + 1) & 1, "o", with_b=False), 0, 15)
        if hs in (0, 2):
            fill += spread(wstep, 16, 23)
        A(weave(gemm_mfma(cfg, hs & 1, bsrc=lambda t: QF(hs, t), zero=(hs == 0)), fill))
    xaddr = (f"""
    s_mul_i32 s{S_T0}, s{S_W}, 9216
    s_add_u32 s{S_T0}, s{S_T0}, {WS_X}
    v_lshl_add_u32 v{AB(1)}, v{V_TMP}, 4, s{S_T0}
    v_and_b32 v{AK(3)}, 3, v{V_TMP}
    s_lshl_b32 s{S_T0}, s{S_W}, 9
    s_add_u32 s{S_T0}, s{S_T0}, {WS_INBOX}
    v_lshl_add_u32 v{AK(2)}, v{AK(3)}, 7, s{S_T0}
    v_xor_b32 v{AK(0)}, s2, v{AK(3)}
    v_lshl_add_u32 v{AK(0)}, v{AK(0)}, 11, v{AK(2)}
    v_max_u32 v{AK(3)}, 1, v{AK(3)}
    s_lshl_b32 s{S_T1}, s2, 11
    s_add_u32 s{S_T0}, s{S_T0}, s{S_T1}
    v_lshl_add_u32 v{AK(2)}, v{AK(3)}, 7, s{S_T0}
    v_and_b32 v{AV(0)}, 15, v{V_TMP}
    v_bfe_u32 v{AV(1)}, v{V_TMP}, 4, 1
    v_bfe_u32 v{AV(2)}, v{V_TMP}, 5, 1
    s_mul_i32 s{S_T0}, s{S_BP}, 192
    s_mul_i32 s{S_T1}, s{S_W}, 48
    s_add_u32 s{S_T0}, s{S_T0}, s{S_T1}
    s_lshl_b32 s{S_T0}, s{S_T0}, 12
    s_lshl_b32 s{S_T1}, s{S_BLK}, 11
    s_add_u32 s{S_T0}, s{S_T0}, s{S_T1}
    s_lshl_b32 s{S_T1}, s{S_NU}, 8
    s_add_u32 s{S_T0}, s{S_T0}, s{S_T1}
    s_lshl_b32 s{S_T1}, s{S_HG}, 6
    s_add_u32 s{S_T0}, s{S_T0}, s{S_T1}
    v_lshl_add_u32 v{AV(0)}, v{AV(0)}, 12, s{S_T0}
    v_lshl_add_u32 v{AV(0)}, v{AV(1)}, 5, v{AV(0)}
    v_lshl_add_u32 v{AV(0)}, v{AV(2)}, 4, v{AV(0)}
    """)
    if not cfg.bdirect:
        A(xaddr + f"s_mov_b32 s{S_SLOT}, 2")
    if cfg.wb:
        A(f"""s_and_b32 s{S_T0}, s2, {cfg.wbmask}
        s_or_b32 s{S_T0}, s{S_T0}, s{S_W}
        s_cselect_b32 s{S_FLAG}, 0, {cfg.wb}""")
        rare.append(["L_wb:", "buffer_wbl2 sc1", "s_branch L_wbdone"])
    XF = QF
    after = []
    mf = gemm_mfma(cfg, 1)
    if cfg.bdirect:
        assert cfg.par in (0, 1) and not cfg.oord and cfg.flag_after in (-1, 1)
        ring = [FB(0, 0), FB(1, 0)] + [QF(s, 0) for s in range(4)]
        BR = lambda h: (lambda t: ring[(h - 4) % 6] + 4 * t)
        rel = o_rel(cfg)[2:]
        tbl = sum(r << (4 * n) for n, r in enumerate(rel))
        nxt = [f"s_add_u32 s{S_BO}, s{S_TBL}, s{S_J2}", f"s_and_b32 s{S_BO}, s{S_BO}, 15", f"s_mul_i32 s{S_BO}, s{S_BO}, 24576",
               f"s_lshr_b64 s[{S_TBL}:{S_TBL + 1}], s[{S_TBL}:{S_TBL + 1}], 4"]
        bload = lambda h: [f"buffer_load_dwordx4 {v4(BR(h)(t))}, v{AV(3) if h & 1 else AB(0)}, {srd(sWS)}, s{S_BO} offen offset:{t * 1024} {cfg.pol_ob}" for t in T3]
        bgaps = [int(x) for x in cfg.bgaps.split(".")]
        sal = [f"s_add_u32 s{S_SLOT}, s{S_SLOT}, 1", f"s_and_b32 s{S_SLOT}, s{S_SLOT}, 3", f"s_cselect_b32 s{S_DW}, {WSLOT}, s{S_T2}"]
        val = [f"v_add_u32 v{AW(T)}, s{S_DW}, v{AW(T)}" for T in range(8)]

        def half(h, extra=()):
            b = h & 1
            fill = []
            if 2 <= h <= 26:
                fill += (list(zip(range(4, 8), nxt)) if b else []) + list(zip(bgaps, bload(h + 5)))
            if b:
                fill += spread(gemm_reads(0, 0, "o", with_b=False), -1, 14) + [(22, "s_waitcnt lgkmcnt(0)")]
            else:
                fill += spread(gemm_reads(1, 1, "o", with_b=False), 0, 15) + list(zip(range(3), sal)) + list(zip((8, 9, 10, 11, 12, 13, 14, 16), val))
                fill += [(22, "s_waitcnt lgkmcnt(0)")] + ([(22, "s_barrier")] if 2 <= h <= 28 or (h == 0 and cfg.w1late) else [])
            if 3 <= h <= 30:
                fill += [(23, f"s_waitcnt vmcnt({3 * min(4, 30 - h)})")]
            return weave(gemm_mfma(cfg, b, bsrc=BR(h), zero=(h == 0)), fill + list(extra))

        A(f"""s_mul_i32 s{S_T0}, s{S_GRP}, 393216
        s_add_u32 s{S_T0}, s{S_T0}, s{S_LWB}
        v_lshl_add_u32 v{AB(0)}, v{V_TMP}, 4, s{S_T0}
        v_add_u32 v{AV(3)}, 3072, v{AB(0)}
        s_mov_b32 s{S_TBL}, {tbl & 0xffffffff}
        s_mov_b32 s{S_TBL + 1}, {tbl >> 32}
        s_lshl_b32 s{S_J2}, s{S_J}, 1
        s_mov_b32 s{S_SLOT}, 0""")
        xa = [x.strip() for x in xaddr.split("\n") if x.strip()]
        A(half(0))
        if cfg.flag_after == 1:
            A(flag)
            stamp()
        A(half(1, spread(xa, 0, 21)))
        A(["s_barrier"] + nxt + bload(4) + bload(5) + nxt + bload(6))
        A(half(2))
        A(f"s_mov_b32 s{S_CNT}, 4\n.p2align 3")
        body = P.add(["L_oloop:"] + half(3) + half(4) + half(5) + half(6) + half(7)
                     + half(8, [(5, f"s_sub_u32 s{S_CNT}, s{S_CNT}, 1"), (6, f"s_cmp_lg_u32 s{S_CNT}, 0")]) + ["s_cbranch_scc1 L_oloop"])
        tr.extend(body + body)
        XF = lambda i, t: QF(0, t) if i == 0 else 144 + ((i - 1) * 3 + t) * 4
        mf = gemm_mfma(cfg, 1, bsrc=BR(31))
        if not cfg.defer:
            for h in range(27, 31):
                A(half(h))
        else:
            rd = lambda h, T, reg: [f"ds_read_b64_tr_b16 {v2(reg + 2 * u)}, v{AW(T)} offset:{(h - 28) * 8192 + u * 4096}" for u in range(2)]
            own = lambda h, T: {27: FA(1, T), 28: FA(0, T), 29: QF(2, 0) + 4 * T, 30: FA(1, T), 31: FA(0, T)}[h]
            ownrd = lambda h: [x for T in range(2) for x in rd(h, T, own(h, T))]
            for h in range(27, 31):
                b = h & 1
                reads = [x for T in range(2, 8) for x in rd(h + 1, T, FA(1 - b, T))] + ownrd(28 + (h - 27) // 2)[2 * (1 - b):2 * (1 - b) + 2]
                fill = spread(reads, -1 if b else 0, 12 if b else 13)
                fill += [(16, "s_waitcnt lgkmcnt(2)")] + ([(16, "s_barrier")] if h == 28 else []) + [(17, f"s_waitcnt vmcnt({3 * (30 - h)})")]
                A(weave(gemm_mfma(cfg, b, bsrc=BR(h))[6:], fill))
            XF = lambda i, t: {0: QF(0, t), 1: FA(0, 2 + t), 2: FA(0, 5 + t), 3: FA(1, 2 + t)}[i]
            late = [f"{MFMA} {v4(ACC(T, t))}, {v4(own(h, T))}, {v4(BR(h)(t))}, {v4(ACC(T, t))}" for h in range(27, 32) for T, t in order(2, cfg.snake)]
            mf = late[:6] + mf[6:]
            after = weave(late[6:], list(zip(range(0, 4), ownrd(30))) + list(zip(range(6, 10), ownrd(31))))
    else:
        A("s_barrier")
        A(gemm_reads(0, 0, "o"))
        gemm_loop(P, tr, cfg, "o", "L_oloop", 14)
    fill = []
    for i in range(1, 4):
        so = [f"s_xor_b32 s{S_T0}, s2, {i}", f"s_mul_i32 s{S_T0}, s{S_T0}, 36864", f"s_add_u32 s{S_T0}, s{S_T0}, {(i - 1) * 3072}"]
        st = [f"buffer_store_dwordx4 {v4(XF(i, t))}, v{AB(1)}, {srd(sWS)}, s{S_T0} offen offset:{t * 1024} sc1" for t in T3]
        fill += [(6 * i + 6, x) for x in st] + list(zip(range(6 * i + 1, 6 * i + 4), so)) + spread(acc_to_frag(i, XF), 6 * i, 6 * i + 5)
    last = [x for g, x in fill if g == 24]
    A(weave(mf[6:] + mf[:6], [(g, x) for g, x in fill if g < 24]) + last)
    stamp()
    A(after)
    xload = lambda k, so: f"buffer_load_dwordx4 {v4(24 + 4 * k)}, v{AB(1)}, {srd(sWS)}, s{so} offen offset:{(k % 3) * 1024} sc1"

    def xadd(i):
        for k in range(3 * i, 3 * i + 3):
            for d in range(4):
                src, dst = 24 + 4 * k + d, ACC(d >> 1, k % 3) + 2 * (d & 1)
                A(f"""v_lshlrev_b32 v64, 16, v{src}
                v_and_b32 v65, 0xffff0000, v{src}
                v_pk_add_f32 {v2(dst)}, {v2(dst)}, v[64:65]""")

    so = (S_T0, S_T1, S_T2)
    xbase = f"s_mul_i32 s{S_T0}, s2, 36864\ns_add_u32 s{S_T1}, s{S_T0}, 3072\ns_add_u32 s{S_T2}, s{S_T0}, 6144"
    if not cfg.tag:
        A(["s_waitcnt vmcnt(0)", "s_mov_b64 exec, 14", f"buffer_store_dword v{AK(1)}, v{AK(0)}, {srd(sWS)}, 0 offen sc1", "s_mov_b64 exec, -1"])
        stamp()
        poll_loop(P, tr, "poll2", V_CHK, AK(2))
        stamp()
        A(xbase)
        A([xload(k, so[k // 3]) for k in range(9)])
        for i in range(3):
            xadd(i)
    else:
        stamp()
        A(xbase)
        A(f"s_mov_b32 s{S_SPIN}, 0")
        if cfg.tag == 2:
            probe = P.add(["L_probe:"] + [xload(3 * i + 2, so[i]) for i in range(3)] + f"""s_add_u32 s{S_SPIN}, s{S_SPIN}, 1
            s_cmp_ge_u32 s{S_SPIN}, {SPIN_MAX}
            s_cbranch_scc1 L_probed
            s_waitcnt vmcnt(0)
            v_max3_u32 v64, v35, v47, v59
            v_cmp_eq_u32 vcc, -1, v64
            s_cbranch_vccnz L_probe""".split("\n"))
            tr.extend(probe + probe)
            A("L_probed:")
        first = [xload(k, so[k // 3]) for k in range(9) if cfg.tag == 1 or k % 3 != 2]
        A(first)
        for i in range(3):
            b = 24 + 12 * i
            chk2 = ([f"v_max3_u32 v64, v{b}, v{b + 1}, v{b + 2}"] + [f"v_max3_u32 v64, v{b + k}, v{b + k + 1}, v64" for k in range(3, 11, 2)]
                    + [f"v_max_u32 v64, v{b + 11}, v64", "v_cmp_eq_u32 vcc, -1, v64"])
            A([f"L_x{i}:"] + chk2 + [f"s_cbranch_vccnz L_xr{i}", f"L_xok{i}:"])
            rare.append([f"L_xr{i}:"] + [xload(k, so[i]) for k in range(3 * i, 3 * i + 3)]
                        + [f"s_add_u32 s{S_SPIN}, s{S_SPIN}, 1", f"s_cmp_lt_u32 s{S_SPIN}, {SPIN_MAX}", "s_waitcnt vmcnt(0)",
                           f"s_cbranch_scc1 L_x{i}", f"s_branch L_xok{i}"])
            if i == 2:
                stamp()
            xadd(i)
    A(acc_to_frag(0))
    A([f"v_permlane16_swap_b32 v{QF(0, t) + h}, v{QF(0, t) + 2 + h}" for t in T3 for h in range(2)])
    if cfg.linout:
        A(f"s_lshl_b32 s{S_T0}, s2, 2\ns_add_u32 s{S_T0}, s{S_T0}, s{S_W}\ns_mul_i32 s{S_T0}, s{S_T0}, 3072\nv_lshl_add_u32 v{AV(0)}, v{V_TMP}, 4, s{S_T0}")
    for t in T3:
        A(f"s_mov_b32 s{S_T0}, {t * (1024 if cfg.linout else 65536)}\nbuffer_store_dwordx4 {v4(QF(0, t))}, v{AV(0)}, {srd(sOUT)}, s{S_T0} offen {cfg.pol_out}")
    if cfg.stamps:
        A("s_waitcnt vmcnt(0)")
        stamp()
        A(f"v_mov_b32 v1, 0")
        for k in range(nst[0]):
            A(f"v_writelane_b32 v1, s{S_ST + 2 * k}, {k}")
        A(f"""s_lshl_b32 s{S_T0}, s2, 3
        s_add_u32 s{S_T0}, s{S_T0}, s{S_WAVE}
        s_lshl_b32 s{S_T0}, s{S_T0}, 8
        s_add_u32 s{S_T0}, s{S_T0}, {WS_STAMP}
        v_lshl_add_u32 v2, v{V_TMP}, 2, s{S_T0}
        buffer_store_dword v1, v2, {srd(sWS)}, 0 offen""")
    A("L_exit:\ns_endpgm")
    blocks = {}
    for blk in rare:
        blocks[blk[0][:-1]] = P.add(blk)
    tr2 = []
    skip = None
    for ins in tr:
        if skip:
            if ins.text == skip + ":":
                skip = None
            else:
                continue
        tr2.append(ins)
        if ins.op.startswith("s_cbranch") and ins.text.split()[1] in blocks:
            blk = blocks[ins.text.split()[1]]
            tr2 += blk
            skip = blk[-1].text.split()[1]
    assert skip is None
    return tr, tr2


def generate(cfg):
    P = Prog()
    pre = P.add(("s_memrealtime s[96:97]\n" if cfg.stamps else "") + "s_cmp_ge_u32 s2, 256\ns_cbranch_scc1 L_exit")
    if cfg.remap:
        pre += P.add("""s_bfe_u32 s4, s2, 0x20003
        s_lshr_b32 s5, s2, 5
        s_and_b32 s2, s2, 7
        s_lshl_b32 s4, s4, 6
        s_lshl_b32 s5, s5, 3
        s_or_b32 s2, s2, s4
        s_or_b32 s2, s2, s5""")
    pre += prologue(P, cfg)
    tl = loader(P, cfg)
    tc, tc2 = compute(P, cfg)
    body = P.finish([pre + tc, pre + tc2] + [pre + t for t in tl])
    if cfg.align:
        body = align8(body)
    return (HEADER + "; @launch grid=(256,1,1) block=(512,1,1) lds=163840\n"
            + '.amdgcn_target "amdgcn-amd-amdhsa--gfx950"\n.text\n'
            + f".globl {NAME}_kernel\n.p2align 8\n.type {NAME}_kernel,@function\n{NAME}_kernel:\n" + body
            + f"""L_text_end:
.section .rodata,"a"
.p2align 6
.amdhsa_kernel {NAME}_kernel
  .amdhsa_next_free_vgpr 256
  .amdhsa_next_free_sgpr 102
  .amdhsa_accum_offset 256
  .amdhsa_group_segment_fixed_size 0
  .amdhsa_kernarg_size 104
  .amdhsa_user_sgpr_count 2
  .amdhsa_user_sgpr_kernarg_segment_ptr 1
  .amdhsa_system_sgpr_workgroup_id_x 1
  .amdhsa_float_denorm_mode_32 3
.end_amdhsa_kernel
""")


def parse(args):
    kw = {}
    for a in args:
        k, v = a.split("=")
        kw[k] = float(v) if k == "thr" else (int(v) if v.lstrip("-").isdigit() and not k.startswith(("pre", "ptouch", "spre", "bgaps", "order")) else v.replace("+", " "))
    return Cfg(**kw)


if __name__ == "__main__":
    open(sys.argv[1], "w").write(generate(parse(sys.argv[2:])))
```

```python
import struct, sys
from asmlib import Prog, weave, spread, balance, align8

NAME = "concat_heads__mha_block_cached__gqa_block_cached__near_ridge"
HEADER = open("cdna_kernels/" + NAME + ".s.ref").read().split("; Override launch")[0]

WS_O, WS_X, WS_INBOX, WS_STAMP, WS_DUMP = 0, 16 << 20, 48 << 20, 200 << 20, 64 << 20
WRING, BRING, KRING, VRING = 0, 65536, 65536, 114688
WSLOT, BSLOT, ASLOT = 16384, 24576, 16384
SPIN_MAX = 400000
T3 = range(3)

S_WAVE, sX, sK, sV, sWQ, sWO, sOUT, sWS, sDBG = 3, 20, 24, 28, 32, 36, 40, 44, 48
S_BLK, S_HG, S_J, S_BP, S_NU, S_W, S_H, S_DB = 52, 53, 54, 55, 56, 57, 58, 59
S_T0, S_T1, S_T2, S_T3, S_CNT, S_DW, S_C, S_SLOT = 60, 61, 62, 63, 64, 65, 66, 68
S_LWB, S_LWW, S_ROT, S_J2, S_SPIN, S_FLAG, S_XCC, S_GRP = 69, 70, 71, 72, 73, 74, 75, 76
S_MASK, S_PC = 77, 78
S_SB = 94
S_TBL, S_BO = 92, 94
S_KR = 67
S_ST = 80
srd = lambda r: f"s[{r}:{r+3}]"
v4 = lambda r: f"v[{r}:{r+3}]"
v2 = lambda r: f"v[{r}:{r+1}]"
f32 = lambda x: "0x%08x" % struct.unpack("<I", struct.pack("<f", x))[0]
MFMA = "v_mfma_f32_16x16x32_bf16"

ACC = lambda T, t: (T * 3 + t) * 4
QF = lambda s, t: 96 + (s * 3 + t) * 4
FA = lambda b, T: 144 + 44 * b + 4 * T
FB = lambda b, t: 144 + 44 * b + 32 + 4 * t
AW = lambda T: 232 + T
AB = lambda s: 240 + s
V_CHK, V_TMP = 242, 243
FR = lambda f: 144 + 4 * f
SS = lambda kt, t: 176 + (kt * 3 + t) * 4
PP = lambda t: 200 + 4 * t
NM = lambda t: 212 + 4 * t
VL = lambda t: 224 + 2 * t
VX = 230
V_OST, V_FLG = 241, 231
VD = lambda t: 232 + t
VT = lambda k: 235 + k
VA = lambda t: 238 + t
AK = lambda s: 244 + s
AV = lambda T: 248 + T


class Cfg:
    def __init__(self, **kw):
        self.pol_x = ""
        self.pol_wq = ""
        self.pol_kv = "nt"
        self.pol_wo = ""
        self.pol_ob = "sc1"
        self.rot = 7
        self.stamps = 0
        self.flag_after = 1
        self.pre = "40.0.0.0.0.0.0.0.0.0.0.4.4"
        self.last = 30
        self.win = 5
        self.win16 = 10
        self.wo_at = "31.31.33.33"
        self.qd = 2
        self.thr = 8.0
        self.local = 1
        self.pk = 0
        self.snake = 1
        self.align = 1
        self.prio = 0
        self.remap = 0
        self.nurot = 1
        self.otouch = 0
        self.stag = 0
        self.s1pre = 36
        self.s1win = 8
        self.s0win = 8
        self.s0late = 8
        self.s0sw = 28
        self.prog = 1
        self.pre1 = '0.0.0.0.0.0.0.0.20.0.12.8.8'
        self.tag = 0
        self.oclear = 0
        self.wideflag = 0
        self.psleep = 0
        self.kbits = '13.14.11.12.10.15.16'
        self.hmap = 3
        self.pol_t = 'sc1'
        self.order = '48c59d26ae37bf'
        self.clear_at = 0
        self.clear_b = 0
        self.krot = 0
        self.ksh = 0
        self.sigma = 5
        self.xtouch = 1
        self.hgrot = 3
        self.lazyp = 2
        self.w1late = 0
        self.linout = 0
        self.spreadc = 0
        self.latefetch = 0
        self.spreadsh = 4
        self.nocount = 0
        self.cls = 3
        self.clsinv = 1
        self.winlate = 0
        self.late = 27
        self.wwin = 0
        self.defer = 1
        self.bdirect = 1
        self.bgaps = '17.19.21'
        self.bwin = 0
        self.afirst = 0
        self.winb = 0
        self.lastb = 0
        self.par = 1
        self.spre = ''
        self.coop = ''
        self.coopw0 = 31
        self.promote = 0
        self.pol_out = 'sc0 sc1'
        self.ptouch = ''
        self.wb = 0
        self.wbmask = 0xf8
        self.oord = 0
        self.od = 2
        self.ctouch = 1
        self.count_at = 13
        self.fetch_at = 3
        self.chk_max = 50000
        self.__dict__.update(kw)


def o_rel(cfg):
    if cfg.order:
        r = [0, 1] + [int(c, 16) for c in cfg.order]
        assert sorted(r) == list(range(16))
        return r
    return [m if not cfg.par else (4 * (m >> 1) + (m & 1) if m < 8 else 4 * ((m - 8) >> 1) + (m & 1) + 2) for m in range(16)]


def head_of(cfg, dst, j, tmp):
    if cfg.hmap == 0:
        return f"s_lshl_b32 s{dst}, s{S_HG}, 3\ns_add_u32 s{dst}, s{dst}, s{j}"
    if cfg.hmap == 1:
        return f"s_lshl_b32 s{dst}, s{j}, 2\ns_add_u32 s{dst}, s{dst}, s{S_HG}"
    if cfg.hmap in (2, 3):
        g = f"s_and_b32 s{dst}, s{j}, 3" if cfg.hmap == 2 else f"s_lshr_b32 s{dst}, s{j}, 1"
        return f"{g}\ns_xor_b32 s{dst}, s{dst}, s{S_HG}\ns_lshl_b32 s{dst}, s{dst}, 3\ns_add_u32 s{dst}, s{dst}, s{j}"
    lo = cfg.hmap - 3
    return (f"s_lshr_b32 s{dst}, s{j}, {lo}\ns_lshl_b32 s{dst}, s{dst}, 2\ns_add_u32 s{dst}, s{dst}, s{S_HG}\ns_lshl_b32 s{dst}, s{dst}, {lo}\n"
            f"s_and_b32 s{tmp}, s{j}, {(1 << lo) - 1}\ns_add_u32 s{dst}, s{dst}, s{tmp}")


def lane_id(v):
    return f"v_mbcnt_lo_u32_b32 v{v}, -1, 0\nv_mbcnt_hi_u32_b32 v{v}, -1, v{v}"


def make_srd(items):
    return "\n".join(f"s_mov_b32 s{r}, s{p}\ns_mov_b32 s{r+1}, s{p+1}\ns_mov_b32 s{r+2}, {n}\ns_mov_b32 s{r+3}, 0x20000" for r, p, n in items)


def prologue(P, cfg):
    return P.add(f"""
    s_bfe_u32 s{S_BLK}, s2, 0x10002
    s_mul_i32 s{S_T0}, s{S_BLK}, 40
    s_load_dwordx8 s[4:11], s[0:1], s{S_T0}
    s_add_u32 s{S_T1}, s{S_T0}, 32
    s_load_dwordx2 s[12:13], s[0:1], s{S_T1}
    s_load_dwordx4 s[16:19], s[0:1], 88
    s_load_dwordx2 s[14:15], s[0:1], 80
    v_lshrrev_b32 v1, 6, v0
    v_and_b32 v0, 63, v0
    s_and_b32 s{S_HG}, s2, 3
    v_readfirstlane_b32 s{S_WAVE}, v1
    s_bfe_u32 s{S_J}, s2, 0x30003
    s_lshr_b32 s{S_BP}, s2, 6
    {head_of(cfg, S_H, S_J, S_T2)}
    s_and_b32 s{S_W}, s{S_WAVE}, 3
    s_mul_i32 s{S_LWB}, s{S_W}, 6144
    s_lshl_b32 s{S_LWW}, s{S_W}, 12
    s_cmp_lt_u32 s{S_WAVE}, 4
    s_cbranch_scc1 L_compute
    """)


def late_ids(cfg):
    return f"""s_mul_i32 s{S_NU}, s{S_BP}, {2 * cfg.nurot}
    s_add_u32 s{S_NU}, s{S_NU}, s{S_J}
    s_and_b32 s{S_NU}, s{S_NU}, 7
    {f"s_xor_b32 s{S_NU}, s{S_NU}, s{S_BLK}" if cfg.sigma & 4 else ""}
    {f"s_lshl_b32 s{S_NU}, s{S_NU}, 2" if cfg.sigma & 3 else ""}
    {f"s_lshr_b32 s{S_NU}, {[0, 0x73625140, 0x75643120][cfg.sigma & 3]}, s{S_NU}" if cfg.sigma & 3 else ""}
    {f"s_and_b32 s{S_NU}, s{S_NU}, 7" if cfg.sigma & 3 else ""}
    s_and_b32 s{S_GRP}, s2, 7
    s_lshl_b32 s{S_T1}, s{S_BP}, 3
    s_add_u32 s{S_GRP}, s{S_GRP}, s{S_T1}"""


def x_touch(cfg, vaddr, vdst):
    if cfg.xtouch & 3 == 1:
        return [f"""s_lshr_b32 s{S_T0}, s2, 3
        s_lshl_b32 s{S_T0}, s{S_T0}, 2
        s_add_u32 s{S_T0}, s{S_T0}, s{S_HG}
        s_lshl_b32 s{S_T0}, s{S_T0}, 2
        s_add_u32 s{S_T0}, s{S_T0}, s{S_W}
        s_mul_i32 s{S_T0}, s{S_T0}, 3072
        v_min_u32 v{vaddr}, 23, v0
        v_lshlrev_b32 v{vaddr}, 7, v{vaddr}""", f"buffer_load_dword v{vdst}, v{vaddr}, {srd(sX)}, s{S_T0} offen"]
    return [f"""s_lshr_b32 s{S_T0}, s2, 3
    s_lshl_b32 s{S_T0}, s{S_T0}, 2
    s_add_u32 s{S_T0}, s{S_T0}, s{S_W}
    s_mul_i32 s{S_T0}, s{S_T0}, 12288
    s_add_u32 s{S_T1}, s{S_T0}, 6144
    v_min_u32 v{vaddr}, 47, v0
    v_lshlrev_b32 v{vaddr}, 7, v{vaddr}""", f"buffer_load_dword v{vdst}, v{vaddr}, {srd(sX)}, s{S_T0} offen",
            f"buffer_load_dword v{vdst}, v{vaddr}, {srd(sX)}, s{S_T1} offen"]


def code_touch(lane, vaddr, vdst):
    return f"""s_lshr_b32 s{S_T0}, s2, 3
    s_lshl_b32 s{S_T0}, s{S_T0}, 10
    v_and_b32 v{vaddr}, 7, v{lane}
    v_lshl_add_u32 v{vaddr}, v{vaddr}, 7, s{S_T0}
    v_min_u32 v{vaddr}, L_text_end-L_text-4, v{vaddr}
    global_load_dword v{vdst}, v{vaddr}, s[{S_PC}:{S_PC + 1}]"""


def poll_loop(P, tr, name, vdst, vaddr):
    tr.extend(P.add(f"s_mov_b32 s{S_SPIN}, 0"))
    loop = P.add(f"""L_{name}:
    buffer_load_dword v{vdst}, v{vaddr}, {srd(sWS)}, 0 offen sc1
    s_add_u32 s{S_SPIN}, s{S_SPIN}, 1
    s_cmp_ge_u32 s{S_SPIN}, {SPIN_MAX}
    s_cbranch_scc1 L_{name}_done
    s_waitcnt vmcnt(0)
    v_cmp_ne_u32 vcc, 1, v{vdst}
    s_cbranch_vccnz L_{name}""")
    tr.extend(loop + loop)
    tr.extend(P.add(f"L_{name}_done:"))


LX = lambda p: 8 + p
LW = lambda p: 14 + p
LK = lambda p: 18 + p
LV = lambda p: (22, 23, 34, 35)[p]
LWO = lambda p: 24 + p
LOB, LFLAG, LSTAMP, LPOLL = 28, 29, 30, 31
LDSW = lambda h: 1 + h
LTQ, LTO, LTB = 32, 33, 32
LPOOL = 36


def late_setup(A, cfg):
    kb = [int(x) for x in cfg.kbits.split(".")]
    padj = lambda p: ((p & 1) << kb[0]) + ((p >> 1) << kb[1]) - p * 1024
    assert min(padj(p) for p in range(4)) >= 0 and sorted(kb) == list(range(10, 17))
    A(f"""
    s_lshr_b32 s{S_T0}, s{S_W}, 1
    s_lshl_b32 s{S_T1}, s{S_BP}, 1
    s_add_u32 s{S_T0}, s{S_T0}, s{S_T1}
    s_lshl_b32 s{S_T0}, s{S_T0}, 5
    s_add_u32 s{S_T0}, s{S_T0}, s{S_H}
    s_lshl_b32 s{S_T0}, s{S_T0}, 17
    s_and_b32 s{S_T1}, s{S_W}, 1
    s_lshl_b32 s{S_T1}, s{S_T1}, {kb[2]}
    s_add_u32 s{S_T0}, s{S_T0}, s{S_T1}
    v_lshl_add_u32 v5, v1, 8, s{S_T0}
    v_xor_b32 v7, v2, v1
    """)
    for p in range(4):
        A(f"v_xor_b32 v3, {4 * p}, v7\nv_lshl_add_u32 v{LK(p)}, v3, 4, v5")
        if padj(p):
            A(f"v_add_u32 v{LK(p)}, {padj(p)}, v{LK(p)}")
    A(f"""
    v_lshl_add_u32 v{LV(0)}, v6, 4, v5
    v_xor_b32 v7, 8, v6
    v_lshl_add_u32 v{LV(1)}, v7, 4, v5
    v_add_u32 v{LV(2)}, {padj(2)}, v{LV(0)}
    v_add_u32 v{LV(3)}, {padj(3)}, v{LV(1)}
    v_add_u32 v{LV(1)}, {padj(1)}, v{LV(1)}
    {f"s_mov_b32 s{S_T0}, 0" if cfg.hmap else f"s_lshl_b32 s{S_T0}, s{S_HG}, 21"}
    s_lshl_b32 s{S_T1}, s{S_W}, 15
    s_add_u32 s{S_T0}, s{S_T0}, s{S_T1}
    s_lshl_b32 s{S_T1}, s{S_NU}, 8
    s_add_u32 s{S_T0}, s{S_T0}, s{S_T1}
    v_lshl_add_u32 v5, v1, 11, s{S_T0}
    v_add_u32 v{LTO}, s{S_T0}, v{LTO}
    v_lshl_add_u32 v{LWO(0)}, v6, 4, v5
    v_lshl_add_u32 v7, v7, 4, v5
    v_add_u32 v{LWO(1)}, {8192 - 1024}, v7
    v_add_u32 v{LWO(2)}, {2 * 8192 - 2048}, v{LWO(0)}
    v_add_u32 v{LWO(3)}, {3 * 8192 - 3072}, v7
    s_mul_i32 s{S_T0}, s{S_GRP}, 393216
    s_add_u32 s{S_T0}, s{S_T0}, s{S_LWB}
    v_lshl_add_u32 v{LOB}, v0, 4, s{S_T0}
    s_lshl_b32 s{S_T0}, s2, 11
    s_lshl_b32 s{S_T1}, s{S_W}, 9
    s_add_u32 s{S_T0}, s{S_T0}, s{S_T1}
    s_add_u32 s{S_T0}, s{S_T0}, {WS_INBOX}
    v_lshl_add_u32 v{LFLAG}, v4, 2, s{S_T0}
    s_lshl_b32 s{S_J2}, s{S_J}, 1
    s_add_u32 s{S_T0}, s{S_LWW}, {KRING}
    v_lshl_add_u32 v{LDSW(0)}, v0, 4, s{S_T0}
    v_add_u32 v{LDSW(1)}, {VRING - KRING}, v{LDSW(0)}
    """)


def loader(P, cfg):
    tr = []
    A = lambda t: tr.extend(P.add(t))
    A(f"""
    v_lshrrev_b32 v1, 4, v0
    v_and_b32 v2, 15, v0
    v_lshrrev_b32 v3, 3, v0
    v_and_b32 v4, 7, v0
    s_mul_i32 s{S_T0}, s{S_BP}, 192
    s_mul_i32 s{S_T1}, s{S_W}, 48
    s_add_u32 s{S_T0}, s{S_T0}, s{S_T1}
    s_lshl_b32 s{S_T0}, s{S_T0}, 11
    v_lshl_add_u32 v5, v3, 11, s{S_T0}
    v_xor_b32 v6, v4, v1
    v_lshl_add_u32 v{LX(0)}, v6, 4, v5
    v_xor_b32 v6, 4, v6
    v_lshl_add_u32 v7, v6, 4, v5
    """)
    for p in range(1, 6):
        A(f"v_add_u32 v{LX(p)}, {p * 16384 - (p % 4) * 1024}, v{7 if p & 1 else LX(0)}")
    A(f"""
    s_lshl_b32 s{S_T0}, s{S_W}, 17
    s_lshl_b32 s{S_T1}, s{S_H}, 8
    s_add_u32 s{S_T0}, s{S_T0}, s{S_T1}
    v_lshl_add_u32 v5, v1, 13, s{S_T0}
    v_lshlrev_b32 v6, 1, v1
    v_xor_b32 v6, v6, v2
    v_lshl_add_u32 v{LW(0)}, v6, 4, v5
    v_xor_b32 v7, 8, v6
    v_lshl_add_u32 v7, v7, 4, v5
    v_add_u32 v{LW(1)}, {32768 - 1024}, v{LW(0)}
    v_add_u32 v{LW(2)}, {2 * 32768 - 2048}, v7
    v_add_u32 v{LW(3)}, {3 * 32768 - 3072}, v7
    """)
    if cfg.rot == 1:
        A(f"s_add_u32 s{S_ROT}, s{S_BP}, s{S_J}\ns_and_b32 s{S_ROT}, s{S_ROT}, 3\ns_lshl_b32 s{S_ROT}, s{S_ROT}, 2")
    elif cfg.rot == 2:
        A(f"s_add_u32 s{S_ROT}, s{S_BP}, s{S_J}\ns_and_b32 s{S_ROT}, s{S_ROT}, 1\ns_lshl_b32 s{S_ROT}, s{S_ROT}, 3")
    elif cfg.rot == 3:
        A(f"s_lshl_b32 s{S_ROT}, s{S_HG}, 2")
    elif cfg.rot == 4:
        A(f"s_lshl_b32 s{S_ROT}, s{S_BP}, 2")
    elif cfg.rot == 5:
        A(f"s_lshl_b32 s{S_ROT}, s{S_J}, 1")
    elif cfg.rot in (7, 8, 9):
        A(f"s_lshr_b32 s{S_ROT}, s{S_J}, 1\ns_add_u32 s{S_ROT}, s{S_ROT}, s{S_BP}\ns_and_b32 s{S_ROT}, s{S_ROT}, 3\ns_lshl_b32 s{S_ROT}, s{S_ROT}, {9 - cfg.rot}")
    elif cfg.rot == 6:
        A(f"s_and_b32 s{S_ROT}, s{S_J}, 3\ns_lshl_b32 s{S_ROT}, s{S_ROT}, 2")
    else:
        A(f"s_mov_b32 s{S_ROT}, 0")
    A(f"""
    v_bfe_u32 v7, v0, 1, 4
    v_and_b32 v5, 1, v0
    v_lshlrev_b32 v5, 7, v5
    v_lshl_add_u32 v{LTO}, v7, 11, v5
    v_lshl_add_u32 v{LTQ}, v7, 13, v5
    v_add_u32 v{LTQ}, s{S_T0}, v{LTQ}
    """)
    A("s_waitcnt lgkmcnt(0)")
    A(make_srd(((sWQ, 10, 8 << 20), (sX, 4, 768 * 2048))))
    q0 = []
    if cfg.stamps:
        A(f"v_mov_b32 v{LSTAMP}, 0")
        A(loader_stamp(0))
        A(f"v_writelane_b32 v{LSTAMP}, s96, 63")
    if cfg.xtouch & 4:
        xt = x_touch(cfg, 3, LPOLL)
        A(xt)
        q0 += ["t"] * (len(xt) - 1)
    if cfg.afirst:
        A(f"s_bitcmp{1 - cfg.clsinv}_b32 s2, {cfg.cls}\ns_cbranch_scc1 L_bstart")
        for n in range(4 if cfg.cls == 6 else 0):
            A(f"""s_add_u32 s{S_T1}, s{S_ROT}, {n}
            s_lshl_b32 s{S_T1}, s{S_T1}, 19
            buffer_load_dword v{LPOLL}, v{LTQ}, {srd(sWQ)}, s{S_T1} offen""")
        A("s_branch L_started\nL_bstart:")
    if not cfg.stag:
        for n in range(2):
            for text, isload in q_stage(cfg, n):
                A(text)
                if isload:
                    q0.append(n)
    if cfg.afirst:
        A("L_started:")
    A(make_srd(((sK, 6, 32 << 20), (sV, 8, 32 << 20), (sWO, 12, 8 << 20), (sWS, 18, 256 << 20))))
    A(late_ids(cfg))
    late_setup(A, cfg)
    if cfg.krot:
        A(f"s_mul_i32 s{S_KR}, s2, {cfg.krot}\ns_lshr_b32 s{S_KR}, s{S_KR}, {cfg.ksh}\ns_lshl_b32 s{S_KR}, s{S_KR}, 13")
    if cfg.pre1:
        A(f"s_bitcmp{1 - cfg.clsinv}_b32 s2, {cfg.cls}\ns_cbranch_scc1 L_late")
        t0 = loader_role(P, cfg, list(tr), ["t"] * (4 if cfg.cls == 6 else 0) if cfg.afirst else q0, None, cfg.pre, "a")
        return [t0, loader_role(P, cfg, list(tr) + P.add("L_late:"), q0, None, cfg.pre1, "b")]
    if not cfg.stag:
        return [loader_role(P, cfg, tr, q0, None, cfg.pre)]
    A(f"s_cmp_ge_u32 s{S_BP}, 2\ns_cbranch_scc1 L_late")
    t0 = loader_role(P, cfg, list(tr), q0, 0)
    return [t0, loader_role(P, cfg, list(tr) + P.add("L_late:"), q0, 1)]


def loader_stamp(n):
    return (f"s_memrealtime s[{S_ST}:{S_ST+1}]\ns_memtime s[{S_ST+2}:{S_ST+3}]\ns_cmp_eq_u32 s{S_W}, 1\ns_waitcnt lgkmcnt(0)\n"
            f"s_cselect_b32 s{S_ST+4}, s{S_ST+2}, s{S_ST}\nv_writelane_b32 v{LSTAMP}, s{S_ST+4}, {n}")


def q_stage(cfg, n):
    dma = lambda vreg, sr, so, imm, pol: (f"buffer_load_dwordx4 v{vreg}, {srd(sr)}, s{so} offen offset:{imm} {pol} lds", True)
    first = cfg.promote & 1 and n < 4
    mask = {8: 7, 9: 3}.get(cfg.rot, 15)
    hgr = ""
    if cfg.hgrot == 1:
        hgr = f"s_add_u32 s{S_T1}, s{S_HG}, {n}\ns_and_b32 s{S_T1}, s{S_T1}, 3\ns_or_b32 s{S_T0}, s{S_T0}, s{S_T1}"
    if cfg.hgrot == 3:
        hgr = f"s_lshr_b32 s{S_T1}, s{S_T0}, 2\ns_xor_b32 s{S_T0}, s{S_T0}, s{S_T1}"
    if cfg.hgrot == 4:
        hgr = f"s_lshr_b32 s{S_T1}, s{S_T0}, 2\ns_and_b32 s{S_T1}, s{S_T1}, 2\ns_xor_b32 s{S_T0}, s{S_T0}, s{S_T1}"
    if cfg.hgrot == 5:
        hgr = f"s_lshr_b32 s{S_T1}, s{S_T0}, 1\ns_and_b32 s{S_T1}, s{S_T1}, 2\ns_xor_b32 s{S_T0}, s{S_T0}, s{S_T1}"
    if cfg.hgrot == 6:
        hgr = f"s_lshr_b32 s{S_T1}, s{S_T0}, 2\ns_lshl_b32 s{S_T0}, s{S_T0}, 2\ns_and_b32 s{S_T0}, s{S_T0}, 12\ns_or_b32 s{S_T0}, s{S_T0}, s{S_T1}"
    if cfg.hgrot == 7:
        hgr = f"s_lshl_b32 s{S_T1}, s{S_BLK}, 1\ns_xor_b32 s{S_T0}, s{S_T0}, s{S_T1}"
    if cfg.hgrot == 2:
        hgr = f"s_xor_b32 s{S_T1}, s{S_HG}, {n & 3}\ns_or_b32 s{S_T0}, s{S_T0}, s{S_T1}"
    o = [(f"""s_add_u32 s{S_T0}, s{S_ROT}, {n}
    s_add_u32 m0, s{S_LWW}, {WRING + (n % 4) * WSLOT}
    s_and_b32 s{S_T0}, s{S_T0}, {12 if cfg.hgrot in (1, 2) else mask}
    {hgr}
    {f"s_or_b32 s{S_T0}, s{S_T0}, {n & ~mask}" if n & ~mask else ""}
    s_lshl_b32 s{S_T1}, s{S_T0}, 19""", False)]
    o += [dma(LW(p), sWQ, S_T1, p * 1024, "nt" if first else cfg.pol_wq) for p in range(4)]
    if first:
        o.append((f"buffer_load_dword v{LPOLL}, v{LTQ}, {srd(sWQ)}, s{S_T1} offen {cfg.pol_t}", True))
    o.append((f"s_add_u32 m0, s{S_LWB}, {BRING + (n % 4) * BSLOT}\ns_lshl_b32 s{S_T0}, s{S_T0}, 7", False))
    o += [dma(LX(p), sX, S_T0, p * 1024, cfg.pol_x) for p in range(4)]
    o.append((f"s_add_u32 m0, s{S_LWB}, {BRING + (n % 4) * BSLOT + 4096}", False))
    o += [dma(LX(p), sX, S_T0, (p - 4) * 1024, cfg.pol_x) for p in range(4, 6)]
    return o


def loader_role(P, cfg, tr, q0, role, pre="", sfx=""):
    A = lambda t: tr.extend(P.add(t))
    sfx += "" if role is None else str(role)
    q = list(q0)

    flip = [0]

    def throttle(win):
        if win in (45, 55):
            flip[0] ^= 1
            win = win // 10 + flip[0]
        win = win or 56
        if win and len(q) >= win:
            A(f"s_waitcnt vmcnt({win - 1})")
            del q[:len(q) - (win - 1)]

    def dma(vreg, s, soff, imm, pol, tag, win=0):
        throttle(win)
        A(f"buffer_load_dwordx4 v{vreg}, {srd(s)}, {soff} offen offset:{imm} {pol} lds")
        q.append(tag)

    def wait(tag):
        if tag in q:
            idx = max(k for k, x in enumerate(q) if x == tag)
            A(f"s_waitcnt vmcnt({len(q) - 1 - idx})")
            del q[:idx + 1]

    def issue_q(n):
        for text, isload in q_stage(cfg, n):
            if isload:
                throttle(0)
                q.append(n)
            A(text)

    kv = []
    for e in range(17):
        if e <= 15:
            kv += [(16 + e, 0, e, p) for p in range(4)]
        if e >= 1:
            kv += [(16 + e, 1, e - 1, p) for p in range(4)]
    pool = list(range(LPOOL, 256, 4))
    parked = []
    state = dict(next=0, m0=None, soff=None, lds=False)

    def issue_kv(upto, k, win):
        state["m0"] = state["soff"] = None
        while state["next"] < upto:
            stage, isv, tile, p = kv[state["next"]]
            state["next"] += 1
            vo, sr = (LV(p), sV) if isv else (LK(p), sK)
            if stage <= k + 2 and state["m0"] != (stage, isv):
                A(f"s_add_u32 m0, s{S_LWW}, {(VRING if isv else KRING) + (tile % 3) * ASLOT}")
                state["m0"] = (stage, isv)
            if state["soff"] != tile:
                if cfg.krot:
                    A(f"s_add_u32 s{S_T0}, s{S_KR}, {tile * 8192}\ns_and_b32 s{S_T0}, s{S_T0}, 0x1e000")
                else:
                    A(f"s_mov_b32 s{S_T0}, {sum(((tile >> i) & 1) << int(b) for i, b in enumerate(cfg.kbits.split('.')[3:]))}")
                state["soff"] = tile
            if stage <= k + 2:
                dma(vo, sr, f"s{S_T0}", p * 1024, cfg.pol_kv, stage, win)
            else:
                if not pool:
                    unpark(k, 2)
                r = pool.pop(0)
                throttle(win)
                A(f"buffer_load_dwordx4 {v4(r)}, v{vo}, {srd(sr)}, s{S_T0} offen offset:{p * 1024} {cfg.pol_kv}")
                q.append(("r", r))
                parked.append((stage, isv, tile, p, r))
            if cfg.lazyp:
                unpark(k, cfg.lazyp, True)

    def unpark(k, most=99, landed=False):
        while parked and parked[0][0] <= k + 2 and most and not (landed and ("r", parked[0][4]) in q):
            most -= 1
            stage, isv, tile, p, r = parked.pop(0)
            wait(("r", r))
            A(f"ds_write_b128 v{LDSW(isv)}, {v4(r)} offset:{(tile % 3) * ASLOT + p * 1024}")
            pool.append(r)
            state["lds"] = True

    def o_index(m):
        if cfg.order:
            return f"s_add_u32 s{S_T0}, s{S_J2}, {o_rel(cfg)[m]}"
        if cfg.par:
            if m < 8:
                return f"s_add_u32 s{S_T0}, s{S_J2}, {4 * (m >> 1) + (m & 1)}"
            if cfg.par == 1:
                return f"s_add_u32 s{S_T0}, s{S_J2}, {4 * ((m - 8) >> 1) + (m & 1) + 2}"
            return f"s_lshl_b32 s{S_T0}, s{S_NU}, 1\ns_add_u32 s{S_T0}, s{S_T0}, {4 * ((m - 8) >> 1) + (m & 1) + 2}"
        if m < 2 or not cfg.oord:
            return f"s_add_u32 s{S_T0}, s{S_J2}, {m}"
        return f"""s_cmp_gt_u32 s{S_T3}, {(m - 2) // 2}
        s_cselect_b32 s{S_T0}, {m - 2}, {m}
        s_add_u32 s{S_T0}, s{S_T0}, s{S_T2}"""

    def issue_ow(m, tag, win=0):
        A(f"""{o_index(m)}
        s_add_u32 m0, s{S_LWW}, {WRING + (m % 4) * WSLOT}
        s_and_b32 s{S_T0}, s{S_T0}, 15
        s_lshl_b32 s{S_T1}, s{S_T0}, 17""")
        if cfg.hmap:
            A(f"""s_lshr_b32 s{S_T0}, s{S_T0}, 1
            {head_of(cfg, S_T2, S_T0, S_T3)}
            s_lshl_b32 s{S_T2}, s{S_T2}, 18
            s_and_b32 s{S_T1}, s{S_T1}, 0x20000
            s_add_u32 s{S_T1}, s{S_T1}, s{S_T2}""")
        first = cfg.promote & 2 and o_rel(cfg)[m] < 4
        for p in range(4):
            dma(LWO(p), sWO, f"s{S_T1}", p * 1024, "nt" if first else cfg.pol_wo, tag, 0 if first else win)
        if first:
            A(f"buffer_load_dword v{LPOLL}, v{LTO}, {srd(sWO)}, s{S_T1} offen {cfg.pol_t}")
            q.append("t")

    def touch_w(b):
        A(f"""s_lshl_b32 s{S_T0}, s{S_BP}, 17
        s_add_u32 s{S_T0}, s{S_T0}, {b << 19}
        buffer_load_dword v{LPOLL}, v{LTO}, {srd(sWO)}, s{S_T0} offen""")
        q.append("t")

    def touch_b(b):
        A(f"s_mov_b32 s{S_T0}, {b * 98304}\nbuffer_load_dword v{LPOLL}, v{LTB}, {srd(sWS)}, s{S_T0} offen sc1")
        q.append("t")

    coop = []
    spre = [int(x) for x in str(cfg.spre).split(".")] if cfg.spre else []
    sdone = [0]

    def scalar_pre():
        for _ in range(spre.pop(0) if spre else 0):
            n, r = divmod(sdone[0], 32)
            if n > 3:
                break
            if r == 0:
                A(f"""s_add_u32 s{S_T0}, s{S_NU}, {2 * n + 1}
                s_and_b32 s{S_T0}, s{S_T0}, 7
                s_lshl_b32 s{S_T0}, s{S_T0}, 18
                s_add_u32 s{S_T0}, s{S_T0}, s{S_DW}
                s_add_u32 s{S_SB + 2 * (n & 1)}, s12, s{S_T0}
                s_addc_u32 s{S_SB + 2 * (n & 1) + 1}, s13, 0""")
            A(f"s_load_dword s{S_SB + 4}, s[{S_SB + 2 * (n & 1)}:{S_SB + 2 * (n & 1) + 1}], {(r >> 2) * 2048 + (r & 3) * 64}")
            sdone[0] += 1

    def coop_after(m):
        for b, mm in enumerate(coop):
            if mm == m:
                touch_b(b + 1)
                touch_w(b + 1)

    def issue_ob(m, tag):
        A(f"""{o_index(m)}
        s_add_u32 m0, s{S_LWB}, {BRING + ((m - 2) % 4) * BSLOT}
        s_and_b32 s{S_T0}, s{S_T0}, 15
        s_mul_i32 s{S_T0}, s{S_T0}, 24576""")
        for p in range(4):
            dma(LOB, sWS, f"s{S_T0}", p * 1024, cfg.pol_ob, tag)
        A(f"s_add_u32 m0, s{S_LWB}, {BRING + ((m - 2) % 4) * BSLOT + 4096}\ns_add_u32 s{S_T1}, s{S_T0}, 4096")
        for p in range(2):
            dma(LOB, sWS, f"s{S_T1}", p * 1024, cfg.pol_ob, tag)

    nst = [1]

    def stamp():
        if cfg.stamps:
            A(loader_stamp(nst[0]))
            nst[0] += 1

    def barrier():
        if state["lds"]:
            A("s_waitcnt lgkmcnt(0)")
            state["lds"] = False
        A("s_barrier")
        stamp()

    end = lambda n: 0 if n < 16 else min(128, 4 + 8 * (n - 16))
    pre = [int(x) for x in str(pre).split(".")] if pre else []
    pre = [0] * (17 - len(pre)) + pre
    wo_at = [int(x) for x in str(cfg.wo_at).split(".")]
    wtag = lambda m: 33 if m < 2 else 33 + m
    if role == 1:
        A(f"""
        s_lshr_b32 s{S_T0}, s2, 3
        s_and_b32 s{S_T0}, s{S_T0}, 15
        s_lshl_b32 s{S_T0}, s{S_T0}, 2
        s_add_u32 s{S_T0}, s{S_T0}, s{S_W}
        s_lshl_b32 s{S_T1}, s{S_T0}, 13
        s_lshl_b32 s{S_T2}, s{S_HG}, 11
        s_add_u32 s{S_T1}, s{S_T1}, s{S_T2}
        v_lshrrev_b32 v3, 4, v0
        v_and_b32 v4, 15, v0
        v_lshl_add_u32 v5, v3, 19, s{S_T1}
        v_lshl_add_u32 v5, v4, 7, v5
        s_mul_i32 s{S_T1}, s{S_T0}, {6 * 2048}
        v_lshrrev_b32 v3, 3, v0
        v_min_u32 v3, 5, v3
        v_and_b32 v4, 7, v0
        v_lshl_add_u32 v6, v3, 11, s{S_T1}
        v_lshl_add_u32 v6, v4, 7, v6
        """)
        for qt in range(4):
            if qt % 2 == 0:
                A(f"buffer_load_dword v{LPOLL}, v6, {srd(sX)}, 0 offen offset:{(qt // 2) * 1024}")
                q.append("t")
            A(f"s_mov_b32 s{S_T0}, {qt << 21}\nbuffer_load_dword v{LPOLL}, v5, {srd(sWQ)}, s{S_T0} offen")
            q.append("t")
        A(f"s_mov_b32 s{S_T0}, {384 * 2048}")
        for h in range(2):
            A(f"buffer_load_dword v{LPOLL}, v6, {srd(sX)}, s{S_T0} offen offset:{h * 1024}")
            q.append("t")
        pre[0] = cfg.s1pre
        issue_kv(pre[0], -1, cfg.s1win)
    if cfg.afirst and sfx == "a":
        pre[0] = cfg.afirst
        issue_kv(pre[0], -1, cfg.bwin or 8)
    if cfg.stag or (cfg.afirst and sfx == "a"):
        issue_q(0)
        issue_q(1)
    base = sum(pre)
    issue_kv(pre[0], -1, 0)
    nq = 2
    for k in range(0, 33):
        wait(k)
        barrier()
        if not cfg.lazyp:
            unpark(k)
        while nq <= min(15, k + 1 + cfg.qd):
            issue_q(nq)
            nq += 1
        w = ((cfg.winb or cfg.win) if sfx == 'b' else cfg.win) if role is None else (cfg.s1win if role else (cfg.s0win if k < cfg.s0sw else cfg.s0late))
        if cfg.winlate and k >= cfg.late and sfx != 'b':
            w = cfg.winlate
        win = 0 if k < 16 else (cfg.win16 if k == 16 else w)
        lead = min(128, end(k + 1) + ((win + 5) // 10 if win in (45, 55) else win or 8)) if k >= 14 else 0
        if k <= 15:
            ramp = sum(pre[:k + 2]) + (4 * max(0, k - 13) if role == 1 else 0)
        else:
            b0 = base + cfg.win16 + (8 if role == 1 else 0)
            last = (cfg.lastb or cfg.last) if sfx == 'b' else cfg.last
            ramp = min(128, b0 + ((128 - b0) * (k - 16)) // (last - 16))
        issue_kv(max(lead, ramp if base else 0), k, win or cfg.bwin)
        if cfg.lazyp:
            unpark(k, 99, True)
            unpark(k - 1)
        if k == 20 and cfg.oord:
            A(f"""s_add_u32 s{S_T2}, s{S_BP}, s{S_J}
            s_and_b32 s{S_T2}, s{S_T2}, {cfg.oord - 1}
            s_mul_i32 s{S_T2}, s{S_T2}, {8 // cfg.oord}
            s_sub_u32 s{S_T3}, s{S_J}, s{S_T2}
            s_and_b32 s{S_T3}, s{S_T3}, 7
            s_lshl_b32 s{S_T2}, s{S_T2}, 1""")
        for h, tk in enumerate(str(cfg.ptouch).split(".") if cfg.ptouch else []):
            if int(tk) == k:
                throttle(win)
                A(f"""s_mul_i32 s{S_T0}, s{S_J}, 49152
                s_add_u32 s{S_T0}, s{S_T0}, {h * 24576}
                v_mul_u32_u24 v3, 0x70, v0
                v_add_u32 v3, v3, v{LOB}
                s_mov_b32 exec_hi, 0xffff
                buffer_load_dword v{LPOLL}, v3, {srd(sWS)}, s{S_T0} offen
                s_mov_b64 exec, -1""")
                q.append("t")
        if k == 26:
            A(f"buffer_load_dword v{LPOLL}, v{LFLAG}, {srd(sWS)}, 0 offen sc1")
            q.append("t")
        for m in range(4):
            if wo_at[m] == k and not (m < 2 and m >= 2 - cfg.w1late):
                issue_ow(m, wtag(m), win if state["next"] < 128 else (cfg.wwin if k == 32 else 0))
        if coop and k == cfg.coopw0:
            touch_w(0)
    assert state["next"] == 128 and not parked
    if spre:
        A(f"""s_lshl_b32 s{S_DW}, s{S_HG}, 21
        s_lshl_b32 s{S_T0}, s{S_BP}, 16
        s_add_u32 s{S_DW}, s{S_DW}, s{S_T0}
        s_lshl_b32 s{S_T0}, s{S_W}, 14
        s_add_u32 s{S_DW}, s{S_DW}, s{S_T0}
        s_lshl_b32 s{S_T0}, s{S_NU}, 8
        s_add_u32 s{S_DW}, s{S_DW}, s{S_T0}""")
    if cfg.w1late:
        A("s_barrier")
        if cfg.w1late == 2:
            issue_ow(0, 33)
        issue_ow(1, 34)
    wait(33)
    barrier()
    if cfg.w1late:
        wait(34)
        A("s_barrier")
    def finish():
        if cfg.stamps:
            A(f"""s_lshl_b32 s{S_T0}, s2, 3
            s_add_u32 s{S_T0}, s{S_T0}, s{S_WAVE}
            s_lshl_b32 s{S_T0}, s{S_T0}, 8
            s_add_u32 s{S_T0}, s{S_T0}, {WS_STAMP}
            v_lshl_add_u32 v1, v0, 2, s{S_T0}
            buffer_store_dword v{LSTAMP}, v1, {srd(sWS)}, 0 offen""")
        A("s_endpgm")
        return tr

    def need_head(m):
        A(f"""{o_index(m)}
        s_bfe_u32 s{S_T1}, s{S_T0}, 0x30001
        s_mov_b32 s{S_SPIN}, 0""")
        n = f"L_need{m}{sfx}"
        loop = P.add(f"""{n}:
        s_bitcmp1_b32 s{S_MASK}, s{S_T1}
        s_cbranch_scc1 {n}_done
        buffer_load_dword v{LPOLL}, v{LFLAG}, {srd(sWS)}, 0 offen sc1
        s_add_u32 s{S_SPIN}, s{S_SPIN}, 1
        s_waitcnt vmcnt(0)
        v_cmp_eq_u32 vcc, 1, v{LPOLL}
        s_mov_b32 s{S_MASK}, vcc_lo
        s_cmp_lt_u32 s{S_SPIN}, {SPIN_MAX}
        s_cbranch_scc1 {n}""")
        tr.extend(loop + loop)
        A(f"{n}_done:")

    if cfg.bdirect:
        for m in (2, 3):
            if wo_at[m] == 33:
                issue_ow(m, 33 + m)
        A(f"s_mov_b32 s{S_MASK}, 0")
        seen = {0}

        def need_new(m):
            if o_rel(cfg)[m] >> 1 not in seen:
                seen.add(o_rel(cfg)[m] >> 1)
                need_head(m)

        need_new(2)
        need_new(3)
        A("s_barrier")
        stamp()
        for m in (2, 3):
            if wo_at[m] == 34:
                issue_ow(m, 33 + m)
        nm = 4
        for k in range(35, 49):
            if k - 31 <= 15:
                need_new(k - 31)
            wait(k)
            barrier()
            while nm <= min(15, k + 1 + cfg.od - 33):
                issue_ow(nm, nm + 33)
                nm += 1
        return finish()
    if wo_at[2] == 33:
        issue_ow(2, 35)
    if cfg.prog:
        A(f"s_mov_b32 s{S_MASK}, 0")
        need_head(2)
    else:
        poll_loop(P, tr, "poll1" + sfx, LPOLL, LFLAG)
        del q[:]
        q.append("poll")
    stamp()
    if coop:
        touch_b(0)
    issue_ob(2, 35)
    if wo_at[2] == 34:
        issue_ow(2, 35)
    coop_after(2)
    if wo_at[3] == 33:
        issue_ow(3, 36)
    issue_ob(3, 36)
    if wo_at[3] == 34:
        issue_ow(3, 36)
    coop_after(3)
    scalar_pre()
    nm = 4
    for k in range(35, 49):
        wait(k)
        barrier()
        while nm <= min(15, k + 1 + cfg.od - 33):
            issue_ow(nm, nm + 33)
            if cfg.prog and nm % 2 == 0:
                need_head(nm)
            issue_ob(nm, nm + 33)
            coop_after(nm)
            nm += 1
        scalar_pre()
    return finish()


def order(n, snake):
    return [(T, t) for T in range(n) for t in (reversed(T3) if snake and T & 1 else T3)]


def gemm_reads(b, s, kind, with_b=True):
    r = []
    if with_b:
        for t in T3:
            if kind == "q":
                r.append(f"ds_read_b128 {v4(FB(b, t))}, v{AB(s)} offset:{t * 2048}")
            else:
                r.append(f"ds_read_b128 {v4(FB(b, t))}, v{AB(0)} offset:{s * 3072 + t * 1024}")
    for T in range(8):
        for u in range(2):
            off = s * 8192 + u * (1024 if kind == "q" else 4096)
            r.append(f"ds_read_b64_tr_b16 {v2(FA(b, T) + 2 * u)}, v{AW(T)} offset:{off}")
    return r


def gemm_mfma(cfg, b, bsrc=None, zero=False):
    return [f"{MFMA} {v4(ACC(T, t))}, {v4(FA(b, T))}, {v4(bsrc(t) if bsrc else FB(b, t))}, {'0' if zero else v4(ACC(T, t))}"
            for T, t in order(8, cfg.snake)]


def gemm_loop(P, tr, cfg, kind, label, iters):
    sal = [f"s_add_u32 s{S_SLOT}, s{S_SLOT}, 1", f"s_and_b32 s{S_SLOT}, s{S_SLOT}, 3", f"s_cselect_b32 s{S_DW}, {WSLOT}, s{S_T2}"]
    if kind == "o":
        sal.append(f"s_cmp_lg_u32 s{S_SLOT}, 2")
    sal.append(f"s_cselect_b32 s{S_DB}, {BSLOT}, s{S_T3}")
    val = [f"v_add_u32 v{AB(s)}, s{S_DB}, v{AB(s)}" for s in range(2 if kind == "q" else 1)]
    val += [f"v_add_u32 v{AW(T)}, s{S_DW}, v{AW(T)}" for T in range(8)]
    nb = len(val) - 8
    hook = [(18, f"s_cmp_eq_u32 s{S_CNT}, s{S_FLAG}"), (19, "s_cbranch_scc1 L_count"), (19, "L_counted:")] if kind == "q" else []
    if kind == "o" and cfg.wb:
        hook = [(18, f"s_cmp_eq_u32 s{S_CNT}, s{S_FLAG}"), (19, "s_cbranch_scc1 L_wb"), (19, "L_wbdone:")]
    h0 = weave(gemm_mfma(cfg, 0), spread(gemm_reads(1, 1, kind), 0, 18) + spread(sal, 0, 4) + spread(val[:nb + 6], 12, 19)
               + spread(val[nb + 6:], 20, 21) + [(22, "s_waitcnt lgkmcnt(0)"), (22, "s_barrier")])
    h1 = weave(gemm_mfma(cfg, 1), spread(gemm_reads(0, 0, kind), -1, 17)
               + hook + [(20, f"s_sub_u32 s{S_CNT}, s{S_CNT}, 1"), (20, f"s_cmp_lg_u32 s{S_CNT}, 0")])
    tr.extend(P.add(f"s_mov_b32 s{S_CNT}, {iters}\ns_waitcnt lgkmcnt(0)"))
    if kind == "q":
        tr.extend(P.add(".p2align 3"))
        body = P.add([label + ":"] + h0 + h1 + ["s_waitcnt lgkmcnt(0)", f"s_cbranch_scc1 {label}"])
        tr.extend(body + body)
        return
    h0 = weave(gemm_mfma(cfg, 0), spread(gemm_reads(1, 1, kind), 0, 18) + spread(sal, 0, 4) + spread(val[:nb + 6], 11, 18)
               + spread(val[nb + 6:], 19, 19) + [(6, f"s_sub_u32 s{S_CNT}, s{S_CNT}, 1"), (7, f"s_cmp_eq_u32 s{S_CNT}, 0"),
                                                  (20, f"s_cbranch_scc1 {label}_out"), (22, "s_waitcnt lgkmcnt(0)"), (22, "s_barrier")])
    h1 = weave(gemm_mfma(cfg, 1), spread(gemm_reads(0, 0, kind), -1, 17) + hook)
    cut = h0.index(f"s_cbranch_scc1 {label}_out") + 1
    tr.extend(P.add(".p2align 3"))
    first = P.add([label + ":"] + h0[:cut])
    rest = P.add(h0[cut:] + h1 + ["s_waitcnt lgkmcnt(0)", f"s_branch {label}"])
    tr.extend(first + rest + first + P.add([label + "_out:"] + gemm_mfma(cfg, 0)[21:]))


def k_reads(tile):
    return [f"ds_read_b128 {v4(FR(kt * 4 + s))}, v{AK(s)} offset:{(tile % 3) * ASLOT + kt * 4096}" for kt in range(2) for s in range(4)]


def v_reads(T, tile):
    return [f"ds_read_b64_tr_b16 {v2(FR(T) + 2 * u)}, v{AV(T)} offset:{(tile % 3) * ASLOT + u * 4096}" for u in range(2)]


def qk_mfma(first=False):
    c0 = lambda t: "0" if first else v4(NM(t))
    return [f"{MFMA} {v4(SS(kt, t))}, {v4(FR(kt * 4 + s))}, {v4(QF(s, t))}, {c0(t) if s == 0 else v4(SS(kt, t))}"
            for kt in range(2) for s in range(4) for t in T3]


def pv_mfma(cfg):
    return [f"{MFMA} {v4(ACC(T, t))}, {v4(FR(T))}, {v4(PP(t))}, {v4(ACC(T, t))}" for T, t in order(8, cfg.snake)]


def xlane(op, regs, tmps):
    out = []
    for sw in ("v_permlane32_swap_b32", "v_permlane16_swap_b32"):
        out += [f"v_mov_b32 v{x}, v{r}" for r, x in zip(regs, tmps)]
        out += [f"{sw} v{r}, v{x}" for r, x in zip(regs, tmps)]
        out += [f"{op} v{r}, v{r}, v{x}" for r, x in zip(regs, tmps)]
    return out


def row_max():
    o = [f"v_max3_f32 v{VD(t)}, v{SS(0, t)}, v{SS(0, t) + 1}, v{SS(0, t) + 2}" for t in T3]
    o += [f"v_max3_f32 v{VD(t)}, v{SS(0, t) + 3}, v{SS(1, t)}, v{VD(t)}" for t in T3]
    o += [f"v_max3_f32 v{VD(t)}, v{SS(1, t) + 1}, v{SS(1, t) + 2}, v{VD(t)}" for t in T3]
    o += [f"v_max_f32 v{VD(t)}, v{SS(1, t) + 3}, v{VD(t)}" for t in T3]
    return o + xlane("v_max_f32", [VD(t) for t in T3], [VT(t) for t in T3])


def shift_scores():
    return [f"v_sub_f32 v{SS(kt, t) + r}, v{SS(kt, t) + r}, v{VD(t)}" for kt in range(2) for t in T3 for r in range(4)]


def guard_max(kt):
    r = [SS(kt, t) + k for t in T3 for k in range(4)]
    if kt == 0:
        o = [f"v_max3_f32 v{VX}, v{r[0]}, v{r[1]}, v{r[2]}"]
        o += [f"v_max3_f32 v{VX}, v{r[k]}, v{r[k + 1]}, v{VX}" for k in range(3, 11, 2)]
        return o + [f"v_max_f32 v{VX}, v{r[11]}, v{VX}"]
    return [f"v_max3_f32 v{VX}, v{r[k]}, v{r[k + 1]}, v{VX}" for k in range(0, 12, 2)]


def p_cvt(kt, h=None):
    return [f"v_cvt_pk_bf16_f32 v{PP(t) + 2 * kt + hh}, v{SS(kt, t) + 2 * hh}, v{SS(kt, t) + 2 * hh + 1}"
            for hh in ((0, 1) if h is None else (h,)) for t in T3]


def exp_sum(cfg, kt, h):
    o = [f"v_exp_f32 v{SS(kt, t) + 2 * h + r}, v{SS(kt, t) + 2 * h + r}" for t in T3 for r in range(2)]
    if cfg.pk:
        o += [f"v_pk_add_f32 {v2(VL(t))}, {v2(VL(t))}, {v2(SS(kt, t) + 2 * h)}" for t in T3]
    else:
        o += [f"v_add_f32 v{VL(t) + r}, v{VL(t) + r}, v{SS(kt, t) + 2 * h + r}" for t in T3 for r in range(2)]
    return o


def exps(kt, h):
    return [f"v_exp_f32 v{SS(kt, t) + 2 * h + r}, v{SS(kt, t) + 2 * h + r}" for t in T3 for r in range(2)]


def pk_sum(kt, h):
    return [f"v_pk_add_f32 {v2(VL(t))}, {v2(VL(t))}, {v2(SS(kt, t) + 2 * h)}" for t in T3]


def rescale(by):
    return [f"v_mul_f32 v{ACC(T, t) + r}, v{ACC(T, t) + r}, v{by(t)}" for T in range(8) for t in T3 for r in range(4)]


def acc_to_frag(s, QF=QF):
    return [f"v_cvt_pk_bf16_f32 v{QF(s, t) + 2 * u + h}, v{ACC(2 * s + u, t) + 2 * h}, v{ACC(2 * s + u, t) + 2 * h + 1}"
            for u in range(2) for t in T3 for h in range(2)]


def compute(P, cfg):
    tr = []
    A = lambda t: tr.extend(P.add(t))
    nst = [0]

    def stamp():
        if cfg.stamps:
            A(f"s_memrealtime s[{S_ST + 2 * nst[0]}:{S_ST + 2 * nst[0] + 1}]\ns_waitcnt lgkmcnt(0)")
            nst[0] += 1

    A(f"L_compute:\ns_getpc_b64 s[{S_PC}:{S_PC + 1}]\nL_text:\n{late_ids(cfg)}\ns_waitcnt lgkmcnt(0)")
    if cfg.xtouch and not cfg.xtouch & 4:
        A(make_srd(((sX, 4, 768 * 2048),)))
        A(x_touch(cfg, 112, 113))
    A(make_srd(((sOUT, 14, 768 * 4096), (sWS, 18, 256 << 20), (sDBG, 16, 256))))
    if cfg.prio:
        A(f"s_setprio {cfg.prio}")
    A(f"""
    s_getreg_b32 s{S_XCC}, hwreg(HW_REG_XCC_ID, 0, 3)
    s_cmp_lg_u32 s{S_W}, 0
    s_cbranch_scc1 L_noclear
    s_lshl_b32 s{S_T0}, s2, 11
    s_add_u32 s{S_T0}, s{S_T0}, {WS_INBOX}
    v_lshlrev_b32 v1, 4, v0
    v_mov_b64 v[4:5], 0
    v_mov_b64 v[6:7], 0
    buffer_store_dwordx4 v[4:7], v1, {srd(sWS)}, s{S_T0} offen sc1
    buffer_store_dwordx4 v[4:7], v1, {srd(sWS)}, s{S_T0} offen offset:1024 sc1
    {code_touch(0, 110, 111) if cfg.ctouch else ""}
    L_noclear:
    s_lshl_b32 s{S_XCC}, s{S_XCC}, 2
    v_and_b32 v{V_TMP}, 3, v0
    v_xor_b32 v{V_TMP}, s{S_GRP}, v{V_TMP}
    v_lshlrev_b32 v{V_TMP}, 2, v{V_TMP}
    v_lshrrev_b32 v100, 4, v0
    v_and_b32 v101, 15, v0
    v_bfe_u32 v102, v0, 2, 2
    v_bfe_u32 v103, v0, 1, 1
    v_and_b32 v104, 1, v0
    v_lshlrev_b32 v109, 4, v0
    """)
    A(f"""
    v_lshl_add_u32 v105, v100, 3, v102
    v_lshlrev_b32 v105, 8, v105
    v_lshl_add_u32 v105, v104, 3, v105
    v_lshl_add_u32 v105, v103, 4, v105
    v_and_b32 v106, 1, v100
    v_lshl_add_u32 v106, v106, 2, v102
    v_lshl_add_u32 v{AW(0)}, v106, 5, v105
    """)
    for T in range(1, 8):
        A(f"v_xor_b32 v{AW(T)}, {T << 5}, v{AW(0)}")
    A(f"""
    s_add_u32 s{S_T0}, s{S_LWB}, {BRING}
    v_lshl_add_u32 v105, v101, 7, s{S_T0}
    v_lshrrev_b32 v107, 1, v101
    v_xor_b32 v107, v107, v100
    v_lshl_add_u32 v{AB(0)}, v107, 4, v105
    v_xor_b32 v{AB(1)}, 64, v{AB(0)}
    """)
    A(f"""
    s_lshr_b32 s{S_T0}, s{S_W}, 1
    s_lshl_b32 s{S_T0}, s{S_T0}, 13
    s_add_u32 s{S_T0}, s{S_T0}, {KRING}
    v_lshl_add_u32 v105, v101, 8, s{S_T0}
    v_lshrrev_b32 v107, 1, v100
    v_and_b32 v108, 1, v100
    v_lshl_add_u32 v107, v108, 1, v107
    v_xor_b32 v107, v107, v101
    v_lshl_add_u32 v{AK(0)}, v107, 4, v105
    """)
    for s in range(1, 4):
        A(f"v_xor_b32 v{AK(s)}, {s << 6}, v{AK(0)}")
    A(f"""
    s_add_u32 s{S_T0}, s{S_T0}, {VRING - KRING}
    v_lshl_add_u32 v105, v100, 2, v102
    v_lshl_add_u32 v105, v105, 8, s{S_T0}
    v_lshl_add_u32 v105, v104, 3, v105
    v_lshl_add_u32 v105, v103, 4, v105
    v_lshl_add_u32 v{AV(0)}, v106, 5, v105
    """)
    for T in range(1, 8):
        A(f"v_xor_b32 v{AV(T)}, {T << 5}, v{AV(0)}")
    A(f"s_mov_b32 s{S_C}, {f32(1.4426950408889634 / 128 ** 0.5)}\ns_mov_b32 s{S_C + 1}, s{S_C}")
    A(f"s_mov_b32 s{S_T2}, {-3 * WSLOT}\ns_mov_b32 s{S_T3}, {-3 * BSLOT}\ns_mov_b32 s{S_SLOT}, 0")
    A([f"v_pk_mov_b32 {v2(r)}, 0, 0" for r in range(0, 96, 2)])
    if cfg.tag or cfg.oclear:
        A([f"v_mov_b32 v{r}, -1" for r in range(116, 120)])
    xclear = [f"s_mul_i32 s{S_T0}, s{S_W}, 9216", f"s_mul_i32 s{S_T1}, s2, 36864", f"s_add_u32 s{S_T0}, s{S_T0}, s{S_T1}", f"s_add_u32 s{S_T0}, s{S_T0}, {WS_X}"]
    for k in range(9):
        if k and k % 4 == 0:
            xclear.append(f"s_add_u32 s{S_T0}, s{S_T0}, 4096")
        xclear.append(f"buffer_store_dwordx4 v[116:119], v109, {srd(sWS)}, s{S_T0} offen offset:{(k % 4) * 1024} sc1")
    if cfg.tag and not cfg.clear_at:
        A(xclear)
    if cfg.oclear:
        A(f"""s_mul_i32 s{S_T0}, s{S_GRP}, 393216
        s_mul_i32 s{S_T1}, s{S_J}, 49152
        s_add_u32 s{S_T0}, s{S_T0}, s{S_T1}
        s_mul_i32 s{S_T1}, s{S_W}, 12288
        s_add_u32 s{S_T0}, s{S_T0}, s{S_T1}""")
        for k in range(12):
            if k and k % 4 == 0:
                A(f"s_add_u32 s{S_T0}, s{S_T0}, 4096")
            A(f"buffer_store_dwordx4 v[116:119], v109, {srd(sWS)}, s{S_T0} offen offset:{(k % 4) * 1024} sc1")
    count = f"""s_lshl_b32 s{S_T0}, 1, s{S_XCC}
    v_mov_b32 v{V_CHK}, s{S_T0}
    s_mov_b64 exec, 1
    s_waitcnt vmcnt(0)
    buffer_atomic_add v{V_CHK}, v{V_TMP}, {srd(sDBG)}, 0 offen
    s_mov_b64 exec, -1""".split("\n")
    rare = [["L_count:", f"s_cmp_eq_u32 s{S_FLAG}, {cfg.fetch_at}", "s_cbranch_scc1 L_fetch", f"s_mov_b32 s{S_FLAG}, {cfg.fetch_at}",
             "s_waitcnt vmcnt(0)", f"s_cmp_lg_u32 s{S_W}, 0", "s_cbranch_scc1 L_counted"] + count + ["s_branch L_counted",
             "L_fetch:", f"buffer_load_dword v{V_CHK}, v{V_TMP}, {srd(sDBG)}, 0 offen sc1", "s_branch L_counted"]]
    if cfg.clear_at:
        assert cfg.latefetch and cfg.tag and min(cfg.clear_at, cfg.clear_b or 99) > cfg.count_at + 1
        rare = [["L_count:", f"s_cmp_le_u32 s{S_FLAG}, {cfg.count_at + 1}", "s_cbranch_scc1 L_drain"] + xclear
                + [f"s_cmp_eq_u32 s{S_W}, 0", f"s_cselect_b32 s{S_FLAG}, {cfg.count_at}, {cfg.count_at + 1}", "s_branch L_counted",
                   "L_drain:", "s_waitcnt vmcnt(0)", f"s_cmp_lg_u32 s{S_W}, 0", "s_cbranch_scc1 L_counted"] + count + ["s_branch L_counted"]]
        A(f"s_bitcmp{1 - cfg.clsinv}_b32 s2, {cfg.cls}\ns_cselect_b32 s{S_FLAG}, {cfg.clear_b or cfg.clear_at}, {cfg.clear_at}")
    elif cfg.latefetch:
        assert not (cfg.tag or cfg.oclear or cfg.stag)
        rare = [["L_count:"] + count + ["s_branch L_counted"]]
        A(f"""s_lshr_b32 s{S_T0}, s2, {cfg.spreadsh}
        s_and_b32 s{S_T0}, s{S_T0}, {cfg.spreadc}
        s_sub_u32 s{S_T0}, {cfg.count_at}, s{S_T0}
        s_cmp_eq_u32 s{S_W}, {4 if cfg.nocount else 0}
        s_cselect_b32 s{S_FLAG}, s{S_T0}, 0""")
    else:
        A(f"s_cmp_eq_u32 s{S_W}, 0\ns_cselect_b32 s{S_FLAG}, {cfg.count_at}, {cfg.count_at + 1}")
    assert not (cfg.stag and (cfg.tag or cfg.oclear))
    if cfg.stag:
        A([f"s_cmp_ge_u32 s{S_BP}, 2", f"s_cselect_b32 s{S_T1}, s{S_FLAG}, 0", f"s_cmp_lg_u32 s{S_T1}, {cfg.count_at}", "s_cbranch_scc1 L_nocount"]
          + count + [f"s_mov_b32 s{S_FLAG}, {cfg.fetch_at}", "L_nocount:"])
    A("s_barrier")
    A(gemm_reads(0, 0, "q"))
    gemm_loop(P, tr, cfg, "q", "L_qloop", 16)
    A(k_reads(0))
    def judge(v):
        return f"""v_lshrrev_b32 v{VT(0)}, 4, v{v}
        v_and_b32 v{VT(0)}, 0x0f0f0f0f, v{VT(0)}
        v_and_b32 v{VT(1)}, 0x0f0f0f0f, v{v}
        v_add_u32 v{VT(0)}, v{VT(0)}, v{VT(1)}
        v_sad_u8 v{VT(0)}, v{VT(0)}, 0, 0
        v_readfirstlane_b32 s{S_T1}, v{v}
        v_cmp_ne_u32 vcc, 8, v{VT(0)}
        s_lshl_b32 s{S_T0}, 8, s{S_XCC}
        s_cmp_eq_u32 s{S_T0}, s{S_T1}
        s_cselect_b32 s{S_FLAG}, {cfg.local}, 0
        s_cmp_eq_u64 vcc, 0
        s_cselect_b32 s{S_FLAG}, s{S_FLAG}, 2""".split("\n")

    dbgaddr = lambda v: [f"v_and_b32 v{v}, 3, v{V_TMP}", f"v_xor_b32 v{v}, s{S_GRP}, v{v}", f"v_lshlrev_b32 v{v}, 2, v{v}"]
    ahook = []
    if cfg.latefetch:
        ahook = [f"s_cmp_le_u32 s{S_CNT}, 2", "s_cbranch_scc1 L_ahook", "L_ahooked:"]
        rare.append(["L_ahook:", f"s_cmp_eq_u32 s{S_CNT}, 1", "s_cbranch_scc1 L_judge"] + dbgaddr(VT(0))
                    + [f"buffer_load_dword v{V_CHK}, v{VT(0)}, {srd(sDBG)}, 0 offen sc1", "s_branch L_ahooked", "L_judge:", "s_waitcnt vmcnt(0)"]
                    + judge(V_CHK) + ([f"s_mov_b32 s{S_FLAG}, 1"] if cfg.nocount else []) + [f"v_mov_b32 v{V_CHK}, 1", "s_branch L_ahooked"])
    else:
        A(["s_waitcnt vmcnt(0)"] + judge(V_CHK))
    A([f"v_pk_mul_f32 {v2(r)}, {v2(r)}, s[{S_C}:{S_C + 1}]" for r in range(0, 96, 2)])

    def q_frag(s):
        return acc_to_frag(s) + [f"v_permlane16_swap_b32 v{QF(s, t) + h}, v{QF(s, t) + 2 + h}" for t in T3 for h in range(2)]

    qk0 = qk_mfma(True)
    qk0 = [qk0[kt * 12 + s * 3 + t] for s in range(4) for kt in range(2) for t in T3]
    zero = [f"v_mov_b64 {v2(r)}, 0" for r in range(0, 96, 2)]
    addr = f"""{lane_id(V_TMP)}
    s_mul_i32 s{S_T0}, s{S_GRP}, 393216
    s_mul_i32 s{S_T1}, s{S_J}, 49152
    s_add_u32 s{S_T0}, s{S_T0}, s{S_T1}
    s_add_u32 s{S_T0}, s{S_T0}, s{S_LWB}
    v_lshl_add_u32 v{V_OST}, v{V_TMP}, 4, s{S_T0}
    s_andn2_b32 s{S_T0}, s2, 0x38
    s_lshl_b32 s{S_T0}, s{S_T0}, 11
    s_lshl_b32 s{S_T1}, s{S_J}, 2
    s_add_u32 s{S_T0}, s{S_T0}, s{S_T1}
    s_lshl_b32 s{S_T1}, s{S_W}, 9
    s_add_u32 s{S_T0}, s{S_T0}, s{S_T1}
    s_add_u32 s{S_T0}, s{S_T0}, {WS_INBOX}
    v_lshl_add_u32 v{V_FLG}, v{V_TMP}, 14, s{S_T0}
    v_mov_b32 v{V_CHK}, 1""".split("\n")
    A(q_frag(0))
    A(weave(qk0, spread(addr, 0, 20) + [(6 * s - 6 + k // 3, x) for s in range(1, 4) for k, x in enumerate(q_frag(s))] + spread(zero[:12], 18, 23)))
    A(zero[12:20])
    A(row_max())
    A([f"v_pk_add_f32 {v2(SS(kt, t) + r)}, {v2(SS(kt, t) + r)}, {v2(VD(t) & ~1)} op_sel:[0,{VD(t) & 1}] op_sel_hi:[1,{VD(t) & 1}] neg_lo:[0,1] neg_hi:[0,1]"
       for kt in range(2) for t in T3 for r in (0, 2)])
    A([f"v_sub_f32 v{NM(t) + r}, 0, v{VD(t)}" for t in T3 for r in range(4)])
    A([f"v_mov_b64 {v2(VL(t))}, 0" for t in T3])
    A(exps(0, 0) + exps(0, 1) + exps(1, 0))
    A(zero[20:])
    A("s_barrier")
    A(k_reads(1))

    def iteration(i):
        pre = pk_sum(0, 0) + pk_sum(0, 1) + pk_sum(1, 0) + p_cvt(0) + p_cvt(1, 0)
        vr = [x for T in range(8) for x in v_reads(T, i)]
        vgap = list(range(8, 22)) + [23, 24]
        add11 = [f"v_add_f32 v{VL(t) + r}, v{VL(t) + r}, v{SS(1, t) + 2 + r}" for t in T3 for r in range(2)]
        early = exps(0, 0) + exps(0, 1) + exps(1, 0)
        fill = ([(5, "s_waitcnt lgkmcnt(0)"), (22, "s_waitcnt lgkmcnt(4)"), (35, "s_waitcnt lgkmcnt(0)")]
                + ([(12, f"s_sub_u32 s{S_CNT}, s{S_CNT}, 1"), (40, f"s_cmp_lg_u32 s{S_CNT}, 0")] if i == 2 else [])
                + list(zip(vgap, vr)) + list(zip(range(6), exps(1, 1))) + list(zip((6, 6, 7, 7, 8, 9), add11)) + list(zip((10, 11, 11), p_cvt(1, 1)))
                + list(zip(range(16, 22), guard_max(0))) + list(zip((25, 25, 26, 26, 27, 27), guard_max(1)))
                + [(28, f"v_cmp_lt_f32 vcc, s{S_C}, v{VX}"), (29, f"s_cbranch_vccnz L_up_{i}")] + list(zip(range(30, 48), early)))
        mf = qk_mfma() + pv_mfma(cfg)
        rare.append([f"L_up_{i}:", "s_waitcnt lgkmcnt(0)"] + mf[30:] + row_max() + [f"v_max_f32 v{VD(t)}, 0, v{VD(t)}" for t in T3] + shift_scores()
                    + [f"v_exp_f32 v{VA(t)}, -v{VD(t)}" for t in T3]
                    + [f"v_sub_f32 v{NM(t) + r}, v{NM(t) + r}, v{VD(t)}" for t in T3 for r in range(4)]
                    + [f"v_mul_f32 v{VL(t) + r}, v{VL(t) + r}, v{VA(t)}" for t in T3 for r in range(2)]
                    + rescale(VA) + early + [f"s_cmp_lg_u32 s{S_CNT}, 0", f"s_branch L_back_{i}"])
        return pre + ["s_waitcnt lgkmcnt(6)"] + weave(mf, fill) + [f"L_back_{i}:"]

    A(f"s_mov_b32 s{S_C}, {f32(cfg.thr)}\ns_mov_b32 s{S_CNT}, 5\ns_branch L_aenter\n.p2align 3")
    top = P.add(["L_aloop:"] + ahook + ["s_barrier"] + k_reads(1) + ["L_aenter:"])
    body = P.add(iteration(0) + ["s_barrier"] + k_reads(2) + iteration(1) + ["s_barrier"] + k_reads(0) + iteration(2)
                 + ["s_cbranch_scc1 L_aloop"])
    tr.extend(body + top + body)
    A(exps(1, 1) + pk_sum(0, 0) + pk_sum(0, 1) + pk_sum(1, 0) + pk_sum(1, 1))
    A([f"v_add_f32 v{VL(t)}, v{VL(t)}, v{VL(t) + 1}" for t in T3])
    A(xlane("v_add_f32", [VL(t) for t in T3], [VT(t) for t in T3]))
    A([f"v_rcp_f32 v{VL(t)}, v{VL(t)}" for t in T3])
    bc = "op_sel_hi:[1,0]"
    A([f"v_pk_mul_f32 {v2(SS(kt, t) + r)}, {v2(SS(kt, t) + r)}, {v2(VL(t))} {bc}" for kt in range(2) for t in T3 for r in (0, 2)])
    A(p_cvt(0) + p_cvt(1))
    oscale = [f"v_pk_mul_f32 {v2(ACC(T, t) + r)}, {v2(ACC(T, t) + r)}, {v2(VL(t))} {bc}" for T in range(8) for t in T3 for r in (0, 2)]
    A(oscale[:24])
    A("s_barrier")
    A([x for T in range(8) for x in v_reads(T, 15)])
    A(oscale[24:])

    def last_pv(pol):
        def o_out(s):
            return (acc_to_frag(s) + [f"s_mov_b32 s{S_T0}, {(s >> 1) * 24576 + (s & 1) * 3072}"]
                    + [f"buffer_store_dwordx4 {v4(QF(s, t))}, v{V_OST}, {srd(sWS)}, s{S_T0} offen offset:{t * 1024} {pol}" for t in T3])
        fill = []
        for s in range(3):
            o = o_out(s)
            fill += [(6 * s + 12, x) for x in o[12:]] if s < 2 else []
            fill += spread(o[:12], 6 * s + 6, 6 * s + 11)
        return weave(pv_mfma(cfg), fill) + o_out(2)[12:] + o_out(3)

    A([f"s_cmp_lg_u32 s{S_FLAG}, 1", "s_cbranch_scc1 L_far"] + last_pv("") + ["L_near:"])
    rare.append(["L_far:"] + last_pv("sc1")
                + [f"v_and_b32 v{VA(0)}, 3, v{V_TMP}", f"v_xor_b32 v{VA(0)}, s{S_GRP}, v{VA(0)}", f"v_lshlrev_b32 v{VA(0)}, 2, v{VA(0)}",
                   f"s_mov_b32 s{S_SPIN}, 0", "L_rechk:", f"s_cmp_lg_u32 s{S_FLAG}, 2", "s_cbranch_scc1 L_rechk_done",
                   f"buffer_load_dword v{VA(1)}, v{VA(0)}, {srd(sDBG)}, 0 offen sc1", "s_waitcnt vmcnt(0)"] + judge(VA(1))
                + [f"s_add_u32 s{S_SPIN}, s{S_SPIN}, 1", f"s_cmp_lt_u32 s{S_SPIN}, {cfg.chk_max}", "s_cbranch_scc1 L_rechk",
                   "L_rechk_done:", f"s_mov_b32 s{S_FLAG}, 0", "s_branch L_near"])
    stamp()
    if cfg.w1late:
        A("s_barrier")
    fst = f"buffer_store_dword v{V_CHK}, v{V_FLG}, {srd(sWS)}, 0 offen"
    flag = [f"s_cmp_eq_u32 s{S_FLAG}, 0", "s_mov_b64 exec, 0xff", "s_waitcnt vmcnt(0)", "s_cbranch_scc1 L_farflag", fst, "L_flagged:", "s_mov_b64 exec, -1"]
    rare.append(["L_farflag:", fst + " sc1", "s_branch L_flagged"])
    A(f"""
    s_lshl_b32 s{S_T0}, s{S_HG}, 6
    v_and_b32 v{AW(0)}, 0xfff, v{AV(0)}
    v_xor_b32 v{AW(0)}, s{S_T0}, v{AW(0)}
    """)
    for T in range(1, 8):
        A(f"v_xor_b32 v{AW(T)}, {T << 5}, v{AW(0)}")
    A(f"""
    s_add_u32 s{S_T0}, s{S_LWB}, {BRING}
    v_lshl_add_u32 v{AB(0)}, v{V_TMP}, 4, s{S_T0}
    v_mov_b32 v{AK(1)}, 1
    """)
    if cfg.flag_after < 0:
        A(flag)
        stamp()
    A("s_barrier")
    A(gemm_reads(0, 0, "o", with_b=False))
    wstep = [f"v_add_u32 v{AW(T)}, {WSLOT}, v{AW(T)}" for T in range(8)]
    for hs in range(0 if cfg.bdirect else 4):
        if hs == cfg.flag_after:
            A(flag)
            stamp()
        fill = []
        if hs < 3:
            fill += spread(gemm_reads((hs + 1) & 1, (hs + 1) & 1, "o", with_b=False), 0, 15)
        if hs in (0, 2):
            fill += spread(wstep, 16, 23)
        A(weave(gemm_mfma(cfg, hs & 1, bsrc=lambda t: QF(hs, t), zero=(hs == 0)), fill))
    xaddr = (f"""
    s_mul_i32 s{S_T0}, s{S_W}, 9216
    s_add_u32 s{S_T0}, s{S_T0}, {WS_X}
    v_lshl_add_u32 v{AB(1)}, v{V_TMP}, 4, s{S_T0}
    v_and_b32 v{AK(3)}, 3, v{V_TMP}
    s_lshl_b32 s{S_T0}, s{S_W}, 9
    s_add_u32 s{S_T0}, s{S_T0}, {WS_INBOX}
    v_lshl_add_u32 v{AK(2)}, v{AK(3)}, 7, s{S_T0}
    v_xor_b32 v{AK(0)}, s2, v{AK(3)}
    v_lshl_add_u32 v{AK(0)}, v{AK(0)}, 11, v{AK(2)}
    v_max_u32 v{AK(3)}, 1, v{AK(3)}
    s_lshl_b32 s{S_T1}, s2, 11
    s_add_u32 s{S_T0}, s{S_T0}, s{S_T1}
    v_lshl_add_u32 v{AK(2)}, v{AK(3)}, 7, s{S_T0}
    v_and_b32 v{AV(0)}, 15, v{V_TMP}
    v_bfe_u32 v{AV(1)}, v{V_TMP}, 4, 1
    v_bfe_u32 v{AV(2)}, v{V_TMP}, 5, 1
    s_mul_i32 s{S_T0}, s{S_BP}, 192
    s_mul_i32 s{S_T1}, s{S_W}, 48
    s_add_u32 s{S_T0}, s{S_T0}, s{S_T1}
    s_lshl_b32 s{S_T0}, s{S_T0}, 12
    s_lshl_b32 s{S_T1}, s{S_BLK}, 11
    s_add_u32 s{S_T0}, s{S_T0}, s{S_T1}
    s_lshl_b32 s{S_T1}, s{S_NU}, 8
    s_add_u32 s{S_T0}, s{S_T0}, s{S_T1}
    s_lshl_b32 s{S_T1}, s{S_HG}, 6
    s_add_u32 s{S_T0}, s{S_T0}, s{S_T1}
    v_lshl_add_u32 v{AV(0)}, v{AV(0)}, 12, s{S_T0}
    v_lshl_add_u32 v{AV(0)}, v{AV(1)}, 5, v{AV(0)}
    v_lshl_add_u32 v{AV(0)}, v{AV(2)}, 4, v{AV(0)}
    """)
    if cfg.wideflag:
        xaddr += f"""v_bfe_u32 v{AK(3)}, v{V_TMP}, 3, 2
        v_xor_b32 v{AK(0)}, s2, v{AK(3)}
        v_lshlrev_b32 v{AK(0)}, 11, v{AK(0)}
        v_lshl_add_u32 v{AK(0)}, v{AK(3)}, 7, v{AK(0)}
        v_and_b32 v{AK(3)}, 7, v{V_TMP}
        v_lshl_add_u32 v{AK(0)}, v{AK(3)}, 4, v{AK(0)}
        s_lshl_b32 s{S_T0}, s{S_W}, 9
        s_add_u32 s{S_T0}, s{S_T0}, {WS_INBOX}
        v_add_u32 v{AK(0)}, s{S_T0}, v{AK(0)}
        """ + "".join(f"v_mov_b32 v{AV(4) + k}, 1\n" for k in range(4))
    if not cfg.bdirect:
        A(xaddr + f"s_mov_b32 s{S_SLOT}, 2")
    if cfg.wb:
        A(f"""s_and_b32 s{S_T0}, s2, {cfg.wbmask}
        s_or_b32 s{S_T0}, s{S_T0}, s{S_W}
        s_cselect_b32 s{S_FLAG}, 0, {cfg.wb}""")
        rare.append(["L_wb:", "buffer_wbl2 sc1", "s_branch L_wbdone"])
    XF = QF
    after = []
    mf = gemm_mfma(cfg, 1)
    if cfg.bdirect:
        assert cfg.par in (0, 1) and not cfg.oord and cfg.flag_after in (-1, 1)
        ring = [FB(0, 0), FB(1, 0)] + [QF(s, 0) for s in range(4)]
        BR = lambda h: (lambda t: ring[(h - 4) % 6] + 4 * t)
        rel = o_rel(cfg)[2:]
        tbl = sum(r << (4 * n) for n, r in enumerate(rel))
        nxt = [f"s_add_u32 s{S_BO}, s{S_TBL}, s{S_J2}", f"s_and_b32 s{S_BO}, s{S_BO}, 15", f"s_mul_i32 s{S_BO}, s{S_BO}, 24576",
               f"s_lshr_b64 s[{S_TBL}:{S_TBL + 1}], s[{S_TBL}:{S_TBL + 1}], 4"]
        bload = lambda h: [f"buffer_load_dwordx4 {v4(BR(h)(t))}, v{AV(3) if h & 1 else AB(0)}, {srd(sWS)}, s{S_BO} offen offset:{t * 1024} {cfg.pol_ob}" for t in T3]
        bgaps = [int(x) for x in cfg.bgaps.split(".")]
        sal = [f"s_add_u32 s{S_SLOT}, s{S_SLOT}, 1", f"s_and_b32 s{S_SLOT}, s{S_SLOT}, 3", f"s_cselect_b32 s{S_DW}, {WSLOT}, s{S_T2}"]
        val = [f"v_add_u32 v{AW(T)}, s{S_DW}, v{AW(T)}" for T in range(8)]

        def half(h, extra=()):
            b = h & 1
            fill = []
            if 2 <= h <= 26:
                fill += (list(zip(range(4, 8), nxt)) if b else []) + list(zip(bgaps, bload(h + 5)))
            if b:
                fill += spread(gemm_reads(0, 0, "o", with_b=False), -1, 14) + [(22, "s_waitcnt lgkmcnt(0)")]
            else:
                fill += spread(gemm_reads(1, 1, "o", with_b=False), 0, 15) + list(zip(range(3), sal)) + list(zip((8, 9, 10, 11, 12, 13, 14, 16), val))
                fill += [(22, "s_waitcnt lgkmcnt(0)")] + ([(22, "s_barrier")] if 2 <= h <= 28 or (h == 0 and cfg.w1late) else [])
            if 3 <= h <= 30:
                fill += [(23, f"s_waitcnt vmcnt({3 * min(4, 30 - h)})")]
            return weave(gemm_mfma(cfg, b, bsrc=BR(h), zero=(h == 0)), fill + list(extra))

        A(f"""s_mul_i32 s{S_T0}, s{S_GRP}, 393216
        s_add_u32 s{S_T0}, s{S_T0}, s{S_LWB}
        v_lshl_add_u32 v{AB(0)}, v{V_TMP}, 4, s{S_T0}
        v_add_u32 v{AV(3)}, 3072, v{AB(0)}
        s_mov_b32 s{S_TBL}, {tbl & 0xffffffff}
        s_mov_b32 s{S_TBL + 1}, {tbl >> 32}
        s_lshl_b32 s{S_J2}, s{S_J}, 1
        s_mov_b32 s{S_SLOT}, 0""")
        xa = [x.strip() for x in xaddr.split("\n") if x.strip()]
        A(half(0))
        if cfg.flag_after == 1:
            A(flag)
            stamp()
        A(half(1, spread(xa, 0, 21)))
        A(["s_barrier"] + nxt + bload(4) + bload(5) + nxt + bload(6))
        A(half(2))
        A(f"s_mov_b32 s{S_CNT}, 4\n.p2align 3")
        body = P.add(["L_oloop:"] + half(3) + half(4) + half(5) + half(6) + half(7)
                     + half(8, [(5, f"s_sub_u32 s{S_CNT}, s{S_CNT}, 1"), (6, f"s_cmp_lg_u32 s{S_CNT}, 0")]) + ["s_cbranch_scc1 L_oloop"])
        tr.extend(body + body)
        XF = lambda i, t: QF(0, t) if i == 0 else 144 + ((i - 1) * 3 + t) * 4
        mf = gemm_mfma(cfg, 1, bsrc=BR(31))
        if not cfg.defer:
            for h in range(27, 31):
                A(half(h))
        else:
            rd = lambda h, T, reg: [f"ds_read_b64_tr_b16 {v2(reg + 2 * u)}, v{AW(T)} offset:{(h - 28) * 8192 + u * 4096}" for u in range(2)]
            own = lambda h, T: {27: FA(1, T), 28: FA(0, T), 29: QF(2, 0) + 4 * T, 30: FA(1, T), 31: FA(0, T)}[h]
            ownrd = lambda h: [x for T in range(2) for x in rd(h, T, own(h, T))]
            for h in range(27, 31):
                b = h & 1
                reads = [x for T in range(2, 8) for x in rd(h + 1, T, FA(1 - b, T))] + ownrd(28 + (h - 27) // 2)[2 * (1 - b):2 * (1 - b) + 2]
                fill = spread(reads, -1 if b else 0, 12 if b else 13)
                fill += [(16, "s_waitcnt lgkmcnt(2)")] + ([(16, "s_barrier")] if h == 28 else []) + [(17, f"s_waitcnt vmcnt({3 * (30 - h)})")]
                A(weave(gemm_mfma(cfg, b, bsrc=BR(h))[6:], fill))
            XF = lambda i, t: {0: QF(0, t), 1: FA(0, 2 + t), 2: FA(0, 5 + t), 3: FA(1, 2 + t)}[i]
            late = [f"{MFMA} {v4(ACC(T, t))}, {v4(own(h, T))}, {v4(BR(h)(t))}, {v4(ACC(T, t))}" for h in range(27, 32) for T, t in order(2, cfg.snake)]
            mf = late[:6] + mf[6:]
            after = weave(late[6:], list(zip(range(0, 4), ownrd(30))) + list(zip(range(6, 10), ownrd(31))))
    else:
        A("s_barrier")
        A(gemm_reads(0, 0, "o"))
        gemm_loop(P, tr, cfg, "o", "L_oloop", 14)
    fill = []
    for i in range(1, 4):
        so = [f"s_xor_b32 s{S_T0}, s2, {i}", f"s_mul_i32 s{S_T0}, s{S_T0}, 36864", f"s_add_u32 s{S_T0}, s{S_T0}, {(i - 1) * 3072}"]
        st = [f"buffer_store_dwordx4 {v4(XF(i, t))}, v{AB(1)}, {srd(sWS)}, s{S_T0} offen offset:{t * 1024} sc1" for t in T3]
        fill += [(6 * i + 6, x) for x in st] + list(zip(range(6 * i + 1, 6 * i + 4), so)) + spread(acc_to_frag(i, XF), 6 * i, 6 * i + 5)
    last = [x for g, x in fill if g == 24]
    A(weave(mf[6:] + mf[:6], [(g, x) for g, x in fill if g < 24]) + last)
    stamp()
    A(after)
    xload = lambda k, so: f"buffer_load_dwordx4 {v4(24 + 4 * k)}, v{AB(1)}, {srd(sWS)}, s{so} offen offset:{(k % 3) * 1024} sc1"

    def xadd(i):
        for k in range(3 * i, 3 * i + 3):
            for d in range(4):
                src, dst = 24 + 4 * k + d, ACC(d >> 1, k % 3) + 2 * (d & 1)
                A(f"""v_lshlrev_b32 v64, 16, v{src}
                v_and_b32 v65, 0xffff0000, v{src}
                v_pk_add_f32 {v2(dst)}, {v2(dst)}, v[64:65]""")

    so = (S_T0, S_T1, S_T2)
    xbase = f"s_mul_i32 s{S_T0}, s2, 36864\ns_add_u32 s{S_T1}, s{S_T0}, 3072\ns_add_u32 s{S_T2}, s{S_T0}, 6144"
    if not cfg.tag:
        if cfg.wideflag:
            A(["s_mov_b32 exec_lo, 0xffffff00", "s_mov_b32 exec_hi, 0", "s_waitcnt vmcnt(0)",
               f"buffer_store_dwordx4 {v4(AV(4))}, v{AK(0)}, {srd(sWS)}, 0 offen sc1", "s_mov_b64 exec, -1"])
        else:
            A(["s_waitcnt vmcnt(0)", "s_mov_b64 exec, 14", f"buffer_store_dword v{AK(1)}, v{AK(0)}, {srd(sWS)}, 0 offen sc1", "s_mov_b64 exec, -1"])
        stamp()
        poll_loop(P, tr, "poll2", V_CHK, AK(2))
        stamp()
        A(xbase)
        A([xload(k, so[k // 3]) for k in range(9)])
        for i in range(3):
            xadd(i)
    else:
        stamp()
        A(xbase)
        A(f"s_mov_b32 s{S_SPIN}, 0")
        if cfg.tag == 2:
            probe = P.add(["L_probe:"] + [xload(3 * i + 2, so[i]) for i in range(3)] + f"""s_add_u32 s{S_SPIN}, s{S_SPIN}, 1
            s_cmp_ge_u32 s{S_SPIN}, {SPIN_MAX}
            s_cbranch_scc1 L_probed
            s_waitcnt vmcnt(0)
            v_max3_u32 v64, v35, v47, v59
            v_cmp_eq_u32 vcc, -1, v64
            s_cbranch_vccnz L_probe""".split("\n"))
            tr.extend(probe + probe)
            A("L_probed:")
        first = [xload(k, so[k // 3]) for k in range(9) if cfg.tag == 1 or k % 3 != 2]
        A(first)
        for i in range(3):
            b = 24 + 12 * i
            chk2 = ([f"v_max3_u32 v64, v{b}, v{b + 1}, v{b + 2}"] + [f"v_max3_u32 v64, v{b + k}, v{b + k + 1}, v64" for k in range(3, 11, 2)]
                    + [f"v_max_u32 v64, v{b + 11}, v64", "v_cmp_eq_u32 vcc, -1, v64"])
            A([f"L_x{i}:"] + chk2 + [f"s_cbranch_vccnz L_xr{i}", f"L_xok{i}:"])
            rare.append([f"L_xr{i}:"] + [xload(k, so[i]) for k in range(3 * i, 3 * i + 3)]
                        + [f"s_add_u32 s{S_SPIN}, s{S_SPIN}, 1", f"s_cmp_lt_u32 s{S_SPIN}, {SPIN_MAX}", "s_waitcnt vmcnt(0)",
                           f"s_cbranch_scc1 L_x{i}", f"s_branch L_xok{i}"])
            if i == 2:
                stamp()
            xadd(i)
    A(acc_to_frag(0))
    A([f"v_permlane16_swap_b32 v{QF(0, t) + h}, v{QF(0, t) + 2 + h}" for t in T3 for h in range(2)])
    if cfg.linout:
        A(f"s_lshl_b32 s{S_T0}, s2, 2\ns_add_u32 s{S_T0}, s{S_T0}, s{S_W}\ns_mul_i32 s{S_T0}, s{S_T0}, 3072\nv_lshl_add_u32 v{AV(0)}, v{V_TMP}, 4, s{S_T0}")
    for t in T3:
        A(f"s_mov_b32 s{S_T0}, {t * (1024 if cfg.linout else 65536)}\nbuffer_store_dwordx4 {v4(QF(0, t))}, v{AV(0)}, {srd(sOUT)}, s{S_T0} offen {cfg.pol_out}")
    if cfg.stamps:
        A("s_waitcnt vmcnt(0)")
        stamp()
        A(f"v_mov_b32 v1, 0")
        for k in range(nst[0]):
            A(f"v_writelane_b32 v1, s{S_ST + 2 * k}, {k}")
        A(f"""s_lshl_b32 s{S_T0}, s2, 3
        s_add_u32 s{S_T0}, s{S_T0}, s{S_WAVE}
        s_lshl_b32 s{S_T0}, s{S_T0}, 8
        s_add_u32 s{S_T0}, s{S_T0}, {WS_STAMP}
        v_lshl_add_u32 v2, v{V_TMP}, 2, s{S_T0}
        buffer_store_dword v1, v2, {srd(sWS)}, 0 offen""")
    A("L_exit:\ns_endpgm")
    blocks = {}
    for blk in rare:
        blocks[blk[0][:-1]] = P.add(blk)
    tr2 = []
    skip = None
    for ins in tr:
        if skip:
            if ins.text == skip + ":":
                skip = None
            else:
                continue
        tr2.append(ins)
        if ins.op.startswith("s_cbranch") and ins.text.split()[1] in blocks:
            blk = blocks[ins.text.split()[1]]
            tr2 += blk
            skip = blk[-1].text.split()[1]
    assert skip is None
    return tr, tr2


def generate(cfg):
    P = Prog()
    pre = P.add(("s_memrealtime s[96:97]\n" if cfg.stamps else "") + "s_cmp_ge_u32 s2, 256\ns_cbranch_scc1 L_exit")
    if cfg.remap:
        pre += P.add("""s_bfe_u32 s4, s2, 0x20003
        s_lshr_b32 s5, s2, 5
        s_and_b32 s2, s2, 7
        s_lshl_b32 s4, s4, 6
        s_lshl_b32 s5, s5, 3
        s_or_b32 s2, s2, s4
        s_or_b32 s2, s2, s5""")
    pre += prologue(P, cfg)
    tl = loader(P, cfg)
    tc, tc2 = compute(P, cfg)
    body = P.finish([pre + tc, pre + tc2] + [pre + t for t in tl])
    if cfg.align:
        body = align8(body)
    return (HEADER + "; @launch grid=(256,1,1) block=(512,1,1) lds=163840\n"
            + '.amdgcn_target "amdgcn-amd-amdhsa--gfx950"\n.text\n'
            + f".globl {NAME}_kernel\n.p2align 8\n.type {NAME}_kernel,@function\n{NAME}_kernel:\n" + body
            + f"""L_text_end:
.section .rodata,"a"
.p2align 6
.amdhsa_kernel {NAME}_kernel
  .amdhsa_next_free_vgpr 256
  .amdhsa_next_free_sgpr 102
  .amdhsa_accum_offset 256
  .amdhsa_group_segment_fixed_size 0
  .amdhsa_kernarg_size 104
  .amdhsa_user_sgpr_count 2
  .amdhsa_user_sgpr_kernarg_segment_ptr 1
  .amdhsa_system_sgpr_workgroup_id_x 1
  .amdhsa_float_denorm_mode_32 3
.end_amdhsa_kernel
""")


def parse(args):
    kw = {}
    for a in args:
        k, v = a.split("=")
        kw[k] = float(v) if k == "thr" else (int(v) if v.lstrip("-").isdigit() and not k.startswith(("pre", "ptouch", "spre", "bgaps", "order", "kbits")) else v.replace("+", " "))
    return Cfg(**kw)


if __name__ == "__main__":
    open(sys.argv[1], "w").write(generate(parse(sys.argv[2:])))
```

```python
import struct, sys
from asmlib import Prog, weave, spread, balance, align8

NAME = "concat_heads__mha_block_cached__gqa_block_cached__near_ridge"
HEADER = open("cdna_kernels/" + NAME + ".s.ref").read().split("; Override launch")[0]

DOC = """; One launch, 256 workgroups (one per CU) of 4 compute waves + 4 loader waves, all MFMA work in 16x16x32 bf16.
;   1. Q^T = Wq^T x^T      16 stages of K=64 through an LDS ring (LDS-DMA, XOR-swizzled, transposing LDS reads)
;   3. out^T = Wo^T O^T    the eight members of a head group exchange O through d_ws; each computes 128 columns over
;   4. reduction           the four head groups exchange partial tiles through d_ws; each finishes 32 columns.
; only after those reports are seen. Stores are write-through unless the reports show the whole group on one die.
"""

WS_O, WS_X, WS_INBOX, WS_STAMP, WS_DUMP = 0, 16 << 20, 48 << 20, 200 << 20, 64 << 20
WRING, BRING, KRING, VRING = 0, 65536, 65536, 114688
WSLOT, BSLOT, ASLOT = 16384, 24576, 16384
SPIN_MAX = 400000
T3 = range(3)

S_WAVE, sX, sK, sV, sWQ, sWO, sOUT, sWS, sDBG = 3, 20, 24, 28, 32, 36, 40, 44, 48
S_BLK, S_HG, S_J, S_BP, S_NU, S_W, S_H, S_DB = 52, 53, 54, 55, 56, 57, 58, 59
S_T0, S_T1, S_T2, S_T3, S_CNT, S_DW, S_C, S_SLOT = 60, 61, 62, 63, 64, 65, 66, 68
S_LWB, S_LWW, S_ROT, S_J2, S_SPIN, S_FLAG, S_XCC, S_GRP = 69, 70, 71, 72, 73, 74, 75, 76
S_MASK, S_PC = 77, 78
S_SB = 94
S_TBL, S_BO = 92, 94
S_KR = 67
S_ST = 80
srd = lambda r: f"s[{r}:{r+3}]"
v4 = lambda r: f"v[{r}:{r+3}]"
v2 = lambda r: f"v[{r}:{r+1}]"
f32 = lambda x: "0x%08x" % struct.unpack("<I", struct.pack("<f", x))[0]
MFMA = "v_mfma_f32_16x16x32_bf16"

ACC = lambda T, t: (T * 3 + t) * 4
QF = lambda s, t: 96 + (s * 3 + t) * 4
FA = lambda b, T: 144 + 44 * b + 4 * T
FB = lambda b, t: 144 + 44 * b + 32 + 4 * t
AW = lambda T: 232 + T
AB = lambda s: 240 + s
V_CHK, V_TMP = 242, 243
FR = lambda f: 144 + 4 * f
SS = lambda kt, t: 176 + (kt * 3 + t) * 4
PP = lambda t: 200 + 4 * t
NM = lambda t: 212 + 4 * t
VL = lambda t: 224 + 2 * t
VX = 230
V_OST, V_FLG = 241, 231
VD = lambda t: 232 + t
VT = lambda k: 235 + k
VA = lambda t: 238 + t
AK = lambda s: 244 + s
AV = lambda T: 248 + T


class Cfg:
    def __init__(self, **kw):
        self.pol_x = ""
        self.pol_wq = ""
        self.pol_kv = "nt"
        self.pol_wo = ""
        self.pol_ob = "sc1"
        self.rot = 7
        self.stamps = 0
        self.flag_after = 1
        self.pre = "40.0.0.0.0.0.0.0.0.0.0.0.4.4"
        self.last = 29
        self.win = 5
        self.win16 = 8
        self.wo_at = "31.31.33.33"
        self.qd = 2
        self.thr = 8.0
        self.local = 1
        self.pk = 0
        self.snake = 1
        self.align = 1
        self.prio = 0
        self.remap = 0
        self.nurot = 1
        self.otouch = 0
        self.stag = 0
        self.s1pre = 36
        self.s1win = 8
        self.s0win = 8
        self.s0late = 8
        self.s0sw = 28
        self.prog = 1
        self.pre1 = '20.12.8.8'
        self.tag = 0
        self.oclear = 0
        self.wideflag = 0
        self.psleep = 0
        self.kbits = '13.14.11.12.10.15.16'
        self.hmap = 3
        self.pol_t = 'sc1'
        self.order = '48c59d26ae37bf'
        self.clear_at = 0
        self.clear_b = 0
        self.krot = 0
        self.ksh = 0
        self.sigma = 5
        self.xtouch = 1
        self.hgrot = 3
        self.lazyp = 2
        self.w1late = 0
        self.linout = 0
        self.spreadc = 0
        self.latefetch = 0
        self.spreadsh = 4
        self.nocount = 0
        self.cls = 3
        self.clsinv = 1
        self.winlate = 0
        self.late = 27
        self.wwin = 0
        self.defer = 1
        self.bdirect = 1
        self.bgaps = '17.19.21'
        self.bwin = 0
        self.afirst = 0
        self.winb = 0
        self.lastb = 0
        self.par = 1
        self.spre = ''
        self.coop = ''
        self.coopw0 = 31
        self.promote = 0
        self.pol_out = 'sc0 sc1'
        self.ptouch = ''
        self.wb = 0
        self.wbmask = 0xf8
        self.oord = 0
        self.od = 2
        self.ctouch = 1
        self.count_at = 13
        self.fetch_at = 3
        self.chk_max = 50000
        self.__dict__.update(kw)


def o_rel(cfg):
    if cfg.order:
        r = [0, 1] + [int(c, 16) for c in cfg.order]
        assert sorted(r) == list(range(16))
        return r
    return [m if not cfg.par else (4 * (m >> 1) + (m & 1) if m < 8 else 4 * ((m - 8) >> 1) + (m & 1) + 2) for m in range(16)]


def head_of(cfg, dst, j, tmp):
    if cfg.hmap == 0:
        return f"s_lshl_b32 s{dst}, s{S_HG}, 3\ns_add_u32 s{dst}, s{dst}, s{j}"
    if cfg.hmap == 1:
        return f"s_lshl_b32 s{dst}, s{j}, 2\ns_add_u32 s{dst}, s{dst}, s{S_HG}"
    if cfg.hmap in (2, 3):
        g = f"s_and_b32 s{dst}, s{j}, 3" if cfg.hmap == 2 else f"s_lshr_b32 s{dst}, s{j}, 1"
        return f"{g}\ns_xor_b32 s{dst}, s{dst}, s{S_HG}\ns_lshl_b32 s{dst}, s{dst}, 3\ns_add_u32 s{dst}, s{dst}, s{j}"
    lo = cfg.hmap - 3
    return (f"s_lshr_b32 s{dst}, s{j}, {lo}\ns_lshl_b32 s{dst}, s{dst}, 2\ns_add_u32 s{dst}, s{dst}, s{S_HG}\ns_lshl_b32 s{dst}, s{dst}, {lo}\n"
            f"s_and_b32 s{tmp}, s{j}, {(1 << lo) - 1}\ns_add_u32 s{dst}, s{dst}, s{tmp}")


def lane_id(v):
    return f"v_mbcnt_lo_u32_b32 v{v}, -1, 0\nv_mbcnt_hi_u32_b32 v{v}, -1, v{v}"


def make_srd(items):
    return "\n".join(f"s_mov_b32 s{r}, s{p}\ns_mov_b32 s{r+1}, s{p+1}\ns_mov_b32 s{r+2}, {n}\ns_mov_b32 s{r+3}, 0x20000" for r, p, n in items)


def prologue(P, cfg):
    return P.add(f"""
    s_bfe_u32 s{S_BLK}, s2, 0x10002
    s_mul_i32 s{S_T0}, s{S_BLK}, 40
    s_load_dwordx8 s[4:11], s[0:1], s{S_T0}
    s_add_u32 s{S_T1}, s{S_T0}, 32
    s_load_dwordx2 s[12:13], s[0:1], s{S_T1}
    s_load_dwordx4 s[16:19], s[0:1], 88
    s_load_dwordx2 s[14:15], s[0:1], 80
    v_lshrrev_b32 v1, 6, v0
    v_and_b32 v0, 63, v0
    s_and_b32 s{S_HG}, s2, 3
    v_readfirstlane_b32 s{S_WAVE}, v1
    s_bfe_u32 s{S_J}, s2, 0x30003
    s_lshr_b32 s{S_BP}, s2, 6
    {head_of(cfg, S_H, S_J, S_T2)}
    s_and_b32 s{S_W}, s{S_WAVE}, 3
    s_mul_i32 s{S_LWB}, s{S_W}, 6144
    s_lshl_b32 s{S_LWW}, s{S_W}, 12
    s_cmp_lt_u32 s{S_WAVE}, 4
    s_cbranch_scc1 L_compute
    """)


def late_ids(cfg):
    return f"""s_mul_i32 s{S_NU}, s{S_BP}, {2 * cfg.nurot}
    s_add_u32 s{S_NU}, s{S_NU}, s{S_J}
    s_and_b32 s{S_NU}, s{S_NU}, 7
    {f"s_xor_b32 s{S_NU}, s{S_NU}, s{S_BLK}" if cfg.sigma & 4 else ""}
    {f"s_lshl_b32 s{S_NU}, s{S_NU}, 2" if cfg.sigma & 3 else ""}
    {f"s_lshr_b32 s{S_NU}, {[0, 0x73625140, 0x75643120][cfg.sigma & 3]}, s{S_NU}" if cfg.sigma & 3 else ""}
    {f"s_and_b32 s{S_NU}, s{S_NU}, 7" if cfg.sigma & 3 else ""}
    s_and_b32 s{S_GRP}, s2, 7
    s_lshl_b32 s{S_T1}, s{S_BP}, 3
    s_add_u32 s{S_GRP}, s{S_GRP}, s{S_T1}"""


def x_touch(cfg, vaddr, vdst):
    if cfg.xtouch & 3 == 1:
        return [f"""s_lshr_b32 s{S_T0}, s2, 3
        s_lshl_b32 s{S_T0}, s{S_T0}, 2
        s_add_u32 s{S_T0}, s{S_T0}, s{S_HG}
        s_lshl_b32 s{S_T0}, s{S_T0}, 2
        s_add_u32 s{S_T0}, s{S_T0}, s{S_W}
        s_mul_i32 s{S_T0}, s{S_T0}, 3072
        v_min_u32 v{vaddr}, 23, v0
        v_lshlrev_b32 v{vaddr}, 7, v{vaddr}""", f"buffer_load_dword v{vdst}, v{vaddr}, {srd(sX)}, s{S_T0} offen"]
    return [f"""s_lshr_b32 s{S_T0}, s2, 3
    s_lshl_b32 s{S_T0}, s{S_T0}, 2
    s_add_u32 s{S_T0}, s{S_T0}, s{S_W}
    s_mul_i32 s{S_T0}, s{S_T0}, 12288
    s_add_u32 s{S_T1}, s{S_T0}, 6144
    v_min_u32 v{vaddr}, 47, v0
    v_lshlrev_b32 v{vaddr}, 7, v{vaddr}""", f"buffer_load_dword v{vdst}, v{vaddr}, {srd(sX)}, s{S_T0} offen",
            f"buffer_load_dword v{vdst}, v{vaddr}, {srd(sX)}, s{S_T1} offen"]


def code_touch(lane, vaddr, vdst):
    return f"""s_lshr_b32 s{S_T0}, s2, 3
    s_lshl_b32 s{S_T0}, s{S_T0}, 10
    v_and_b32 v{vaddr}, 7, v{lane}
    v_lshl_add_u32 v{vaddr}, v{vaddr}, 7, s{S_T0}
    v_min_u32 v{vaddr}, L_text_end-L_text-4, v{vaddr}
    global_load_dword v{vdst}, v{vaddr}, s[{S_PC}:{S_PC + 1}]"""


def poll_loop(P, tr, name, vdst, vaddr):
    tr.extend(P.add(f"s_mov_b32 s{S_SPIN}, 0"))
    loop = P.add(f"""L_{name}:
    buffer_load_dword v{vdst}, v{vaddr}, {srd(sWS)}, 0 offen sc1
    s_add_u32 s{S_SPIN}, s{S_SPIN}, 1
    s_cmp_ge_u32 s{S_SPIN}, {SPIN_MAX}
    s_cbranch_scc1 L_{name}_done
    s_waitcnt vmcnt(0)
    v_cmp_ne_u32 vcc, 1, v{vdst}
    s_cbranch_vccnz L_{name}""")
    tr.extend(loop + loop)
    tr.extend(P.add(f"L_{name}_done:"))


LX = lambda p: 8 + p
LW = lambda p: 14 + p
LK = lambda p: 18 + p
LV = lambda p: (22, 23, 34, 35)[p]
LWO = lambda p: 24 + p
LOB, LFLAG, LSTAMP, LPOLL = 28, 29, 30, 31
LDSW = lambda h: 1 + h
LTQ, LTO, LTB = 32, 33, 32
LPOOL = 36


def late_setup(A, cfg):
    kb = [int(x) for x in cfg.kbits.split(".")]
    padj = lambda p: ((p & 1) << kb[0]) + ((p >> 1) << kb[1]) - p * 1024
    assert min(padj(p) for p in range(4)) >= 0 and sorted(kb) == list(range(10, 17))
    A(f"""
    s_lshr_b32 s{S_T0}, s{S_W}, 1
    s_lshl_b32 s{S_T1}, s{S_BP}, 1
    s_add_u32 s{S_T0}, s{S_T0}, s{S_T1}
    s_lshl_b32 s{S_T0}, s{S_T0}, 5
    s_add_u32 s{S_T0}, s{S_T0}, s{S_H}
    s_lshl_b32 s{S_T0}, s{S_T0}, 17
    s_and_b32 s{S_T1}, s{S_W}, 1
    s_lshl_b32 s{S_T1}, s{S_T1}, {kb[2]}
    s_add_u32 s{S_T0}, s{S_T0}, s{S_T1}
    v_lshl_add_u32 v5, v1, 8, s{S_T0}
    v_xor_b32 v7, v2, v1
    """)
    for p in range(4):
        A(f"v_xor_b32 v3, {4 * p}, v7\nv_lshl_add_u32 v{LK(p)}, v3, 4, v5")
        if padj(p):
            A(f"v_add_u32 v{LK(p)}, {padj(p)}, v{LK(p)}")
    A(f"""
    v_lshl_add_u32 v{LV(0)}, v6, 4, v5
    v_xor_b32 v7, 8, v6
    v_lshl_add_u32 v{LV(1)}, v7, 4, v5
    v_add_u32 v{LV(2)}, {padj(2)}, v{LV(0)}
    v_add_u32 v{LV(3)}, {padj(3)}, v{LV(1)}
    v_add_u32 v{LV(1)}, {padj(1)}, v{LV(1)}
    {f"s_mov_b32 s{S_T0}, 0" if cfg.hmap else f"s_lshl_b32 s{S_T0}, s{S_HG}, 21"}
    s_lshl_b32 s{S_T1}, s{S_W}, 15
    s_add_u32 s{S_T0}, s{S_T0}, s{S_T1}
    s_lshl_b32 s{S_T1}, s{S_NU}, 8
    s_add_u32 s{S_T0}, s{S_T0}, s{S_T1}
    v_lshl_add_u32 v5, v1, 11, s{S_T0}
    v_add_u32 v{LTO}, s{S_T0}, v{LTO}
    v_lshl_add_u32 v{LWO(0)}, v6, 4, v5
    v_lshl_add_u32 v7, v7, 4, v5
    v_add_u32 v{LWO(1)}, {8192 - 1024}, v7
    v_add_u32 v{LWO(2)}, {2 * 8192 - 2048}, v{LWO(0)}
    v_add_u32 v{LWO(3)}, {3 * 8192 - 3072}, v7
    s_mul_i32 s{S_T0}, s{S_GRP}, 393216
    s_add_u32 s{S_T0}, s{S_T0}, s{S_LWB}
    v_lshl_add_u32 v{LOB}, v0, 4, s{S_T0}
    s_lshl_b32 s{S_T0}, s2, 11
    s_lshl_b32 s{S_T1}, s{S_W}, 9
    s_add_u32 s{S_T0}, s{S_T0}, s{S_T1}
    s_add_u32 s{S_T0}, s{S_T0}, {WS_INBOX}
    v_lshl_add_u32 v{LFLAG}, v4, 2, s{S_T0}
    s_lshl_b32 s{S_J2}, s{S_J}, 1
    s_add_u32 s{S_T0}, s{S_LWW}, {KRING}
    v_lshl_add_u32 v{LDSW(0)}, v0, 4, s{S_T0}
    v_add_u32 v{LDSW(1)}, {VRING - KRING}, v{LDSW(0)}
    """)


def loader(P, cfg):
    tr = []
    A = lambda t: tr.extend(P.add(t))
    A(f"""
    v_lshrrev_b32 v1, 4, v0
    v_and_b32 v2, 15, v0
    v_lshrrev_b32 v3, 3, v0
    v_and_b32 v4, 7, v0
    s_mul_i32 s{S_T0}, s{S_BP}, 192
    s_mul_i32 s{S_T1}, s{S_W}, 48
    s_add_u32 s{S_T0}, s{S_T0}, s{S_T1}
    s_lshl_b32 s{S_T0}, s{S_T0}, 11
    v_lshl_add_u32 v5, v3, 11, s{S_T0}
    v_xor_b32 v6, v4, v1
    v_lshl_add_u32 v{LX(0)}, v6, 4, v5
    v_xor_b32 v6, 4, v6
    v_lshl_add_u32 v7, v6, 4, v5
    """)
    for p in range(1, 6):
        A(f"v_add_u32 v{LX(p)}, {p * 16384 - (p % 4) * 1024}, v{7 if p & 1 else LX(0)}")
    A(f"""
    s_lshl_b32 s{S_T0}, s{S_W}, 17
    s_lshl_b32 s{S_T1}, s{S_H}, 8
    s_add_u32 s{S_T0}, s{S_T0}, s{S_T1}
    v_lshl_add_u32 v5, v1, 13, s{S_T0}
    v_lshlrev_b32 v6, 1, v1
    v_xor_b32 v6, v6, v2
    v_lshl_add_u32 v{LW(0)}, v6, 4, v5
    v_xor_b32 v7, 8, v6
    v_lshl_add_u32 v7, v7, 4, v5
    v_add_u32 v{LW(1)}, {32768 - 1024}, v{LW(0)}
    v_add_u32 v{LW(2)}, {2 * 32768 - 2048}, v7
    v_add_u32 v{LW(3)}, {3 * 32768 - 3072}, v7
    """)
    if cfg.rot == 1:
        A(f"s_add_u32 s{S_ROT}, s{S_BP}, s{S_J}\ns_and_b32 s{S_ROT}, s{S_ROT}, 3\ns_lshl_b32 s{S_ROT}, s{S_ROT}, 2")
    elif cfg.rot == 2:
        A(f"s_add_u32 s{S_ROT}, s{S_BP}, s{S_J}\ns_and_b32 s{S_ROT}, s{S_ROT}, 1\ns_lshl_b32 s{S_ROT}, s{S_ROT}, 3")
    elif cfg.rot == 3:
        A(f"s_lshl_b32 s{S_ROT}, s{S_HG}, 2")
    elif cfg.rot == 4:
        A(f"s_lshl_b32 s{S_ROT}, s{S_BP}, 2")
    elif cfg.rot == 5:
        A(f"s_lshl_b32 s{S_ROT}, s{S_J}, 1")
    elif cfg.rot in (7, 8, 9):
        A(f"s_lshr_b32 s{S_ROT}, s{S_J}, 1\ns_add_u32 s{S_ROT}, s{S_ROT}, s{S_BP}\ns_and_b32 s{S_ROT}, s{S_ROT}, 3\ns_lshl_b32 s{S_ROT}, s{S_ROT}, {9 - cfg.rot}")
    elif cfg.rot == 6:
        A(f"s_and_b32 s{S_ROT}, s{S_J}, 3\ns_lshl_b32 s{S_ROT}, s{S_ROT}, 2")
    else:
        A(f"s_mov_b32 s{S_ROT}, 0")
    A(f"""
    v_bfe_u32 v7, v0, 1, 4
    v_and_b32 v5, 1, v0
    v_lshlrev_b32 v5, 7, v5
    v_lshl_add_u32 v{LTO}, v7, 11, v5
    v_lshl_add_u32 v{LTQ}, v7, 13, v5
    v_add_u32 v{LTQ}, s{S_T0}, v{LTQ}
    """)
    A("s_waitcnt lgkmcnt(0)")
    A(make_srd(((sWQ, 10, 8 << 20), (sX, 4, 768 * 2048))))
    q0 = []
    if cfg.stamps:
        A(f"v_mov_b32 v{LSTAMP}, 0")
        A(loader_stamp(0))
        A(f"v_writelane_b32 v{LSTAMP}, s96, 63")
    if cfg.xtouch & 4:
        xt = x_touch(cfg, 3, LPOLL)
        A(xt)
        q0 += ["t"] * (len(xt) - 1)
    if cfg.afirst:
        A(f"s_bitcmp{1 - cfg.clsinv}_b32 s2, {cfg.cls}\ns_cbranch_scc1 L_bstart")
        for n in range(4 if cfg.cls == 6 else 0):
            A(f"""s_add_u32 s{S_T1}, s{S_ROT}, {n}
            s_lshl_b32 s{S_T1}, s{S_T1}, 19
            buffer_load_dword v{LPOLL}, v{LTQ}, {srd(sWQ)}, s{S_T1} offen""")
        A("s_branch L_started\nL_bstart:")
    if not cfg.stag:
        for n in range(2):
            for text, isload in q_stage(cfg, n):
                A(text)
                if isload:
                    q0.append(n)
    if cfg.afirst:
        A("L_started:")
    A(make_srd(((sK, 6, 32 << 20), (sV, 8, 32 << 20), (sWO, 12, 8 << 20), (sWS, 18, 256 << 20))))
    A(late_ids(cfg))
    late_setup(A, cfg)
    if cfg.krot:
        A(f"s_mul_i32 s{S_KR}, s2, {cfg.krot}\ns_lshr_b32 s{S_KR}, s{S_KR}, {cfg.ksh}\ns_lshl_b32 s{S_KR}, s{S_KR}, 13")
    if cfg.pre1:
        A(f"s_bitcmp{1 - cfg.clsinv}_b32 s2, {cfg.cls}\ns_cbranch_scc1 L_late")
        t0 = loader_role(P, cfg, list(tr), ["t"] * (4 if cfg.cls == 6 else 0) if cfg.afirst else q0, None, cfg.pre, "a")
        return [t0, loader_role(P, cfg, list(tr) + P.add("L_late:"), q0, None, cfg.pre1, "b")]
    if not cfg.stag:
        return [loader_role(P, cfg, tr, q0, None, cfg.pre)]
    A(f"s_cmp_ge_u32 s{S_BP}, 2\ns_cbranch_scc1 L_late")
    t0 = loader_role(P, cfg, list(tr), q0, 0)
    return [t0, loader_role(P, cfg, list(tr) + P.add("L_late:"), q0, 1)]


def loader_stamp(n):
    return (f"s_memrealtime s[{S_ST}:{S_ST+1}]\ns_memtime s[{S_ST+2}:{S_ST+3}]\ns_cmp_eq_u32 s{S_W}, 1\ns_waitcnt lgkmcnt(0)\n"
            f"s_cselect_b32 s{S_ST+4}, s{S_ST+2}, s{S_ST}\nv_writelane_b32 v{LSTAMP}, s{S_ST+4}, {n}")


def q_stage(cfg, n):
    dma = lambda vreg, sr, so, imm, pol: (f"buffer_load_dwordx4 v{vreg}, {srd(sr)}, s{so} offen offset:{imm} {pol} lds", True)
    first = cfg.promote & 1 and n < 4
    mask = {8: 7, 9: 3}.get(cfg.rot, 15)
    hgr = ""
    if cfg.hgrot == 1:
        hgr = f"s_add_u32 s{S_T1}, s{S_HG}, {n}\ns_and_b32 s{S_T1}, s{S_T1}, 3\ns_or_b32 s{S_T0}, s{S_T0}, s{S_T1}"
    if cfg.hgrot == 3:
        hgr = f"s_lshr_b32 s{S_T1}, s{S_T0}, 2\ns_xor_b32 s{S_T0}, s{S_T0}, s{S_T1}"
    if cfg.hgrot == 4:
        hgr = f"s_lshr_b32 s{S_T1}, s{S_T0}, 2\ns_and_b32 s{S_T1}, s{S_T1}, 2\ns_xor_b32 s{S_T0}, s{S_T0}, s{S_T1}"
    if cfg.hgrot == 5:
        hgr = f"s_lshr_b32 s{S_T1}, s{S_T0}, 1\ns_and_b32 s{S_T1}, s{S_T1}, 2\ns_xor_b32 s{S_T0}, s{S_T0}, s{S_T1}"
    if cfg.hgrot == 6:
        hgr = f"s_lshr_b32 s{S_T1}, s{S_T0}, 2\ns_lshl_b32 s{S_T0}, s{S_T0}, 2\ns_and_b32 s{S_T0}, s{S_T0}, 12\ns_or_b32 s{S_T0}, s{S_T0}, s{S_T1}"
    if cfg.hgrot == 7:
        hgr = f"s_lshl_b32 s{S_T1}, s{S_BLK}, 1\ns_xor_b32 s{S_T0}, s{S_T0}, s{S_T1}"
    if cfg.hgrot == 2:
        hgr = f"s_xor_b32 s{S_T1}, s{S_HG}, {n & 3}\ns_or_b32 s{S_T0}, s{S_T0}, s{S_T1}"
    o = [(f"""s_add_u32 s{S_T0}, s{S_ROT}, {n}
    s_add_u32 m0, s{S_LWW}, {WRING + (n % 4) * WSLOT}
    s_and_b32 s{S_T0}, s{S_T0}, {12 if cfg.hgrot in (1, 2) else mask}
    {hgr}
    {f"s_or_b32 s{S_T0}, s{S_T0}, {n & ~mask}" if n & ~mask else ""}
    s_lshl_b32 s{S_T1}, s{S_T0}, 19""", False)]
    o += [dma(LW(p), sWQ, S_T1, p * 1024, "nt" if first else cfg.pol_wq) for p in range(4)]
    if first:
        o.append((f"buffer_load_dword v{LPOLL}, v{LTQ}, {srd(sWQ)}, s{S_T1} offen {cfg.pol_t}", True))
    o.append((f"s_add_u32 m0, s{S_LWB}, {BRING + (n % 4) * BSLOT}\ns_lshl_b32 s{S_T0}, s{S_T0}, 7", False))
    o += [dma(LX(p), sX, S_T0, p * 1024, cfg.pol_x) for p in range(4)]
    o.append((f"s_add_u32 m0, s{S_LWB}, {BRING + (n % 4) * BSLOT + 4096}", False))
    o += [dma(LX(p), sX, S_T0, (p - 4) * 1024, cfg.pol_x) for p in range(4, 6)]
    return o


def loader_role(P, cfg, tr, q0, role, pre="", sfx=""):
    A = lambda t: tr.extend(P.add(t))
    sfx += "" if role is None else str(role)
    q = list(q0)

    flip = [0]

    def throttle(win):
        if win in (45, 55):
            flip[0] ^= 1
            win = win // 10 + flip[0]
        win = win or 56
        if win and len(q) >= win:
            A(f"s_waitcnt vmcnt({win - 1})")
            del q[:len(q) - (win - 1)]

    def dma(vreg, s, soff, imm, pol, tag, win=0):
        throttle(win)
        A(f"buffer_load_dwordx4 v{vreg}, {srd(s)}, {soff} offen offset:{imm} {pol} lds")
        q.append(tag)

    def wait(tag):
        if tag in q:
            idx = max(k for k, x in enumerate(q) if x == tag)
            A(f"s_waitcnt vmcnt({len(q) - 1 - idx})")
            del q[:idx + 1]

    def issue_q(n):
        for text, isload in q_stage(cfg, n):
            if isload:
                throttle(0)
                q.append(n)
            A(text)

    kv = []
    for e in range(17):
        if e <= 15:
            kv += [(16 + e, 0, e, p) for p in range(4)]
        if e >= 1:
            kv += [(16 + e, 1, e - 1, p) for p in range(4)]
    pool = list(range(LPOOL, 256, 4))
    parked = []
    state = dict(next=0, m0=None, soff=None, lds=False)

    def issue_kv(upto, k, win):
        state["m0"] = state["soff"] = None
        while state["next"] < upto:
            stage, isv, tile, p = kv[state["next"]]
            state["next"] += 1
            vo, sr = (LV(p), sV) if isv else (LK(p), sK)
            if stage <= k + 2 and state["m0"] != (stage, isv):
                A(f"s_add_u32 m0, s{S_LWW}, {(VRING if isv else KRING) + (tile % 3) * ASLOT}")
                state["m0"] = (stage, isv)
            if state["soff"] != tile:
                if cfg.krot:
                    A(f"s_add_u32 s{S_T0}, s{S_KR}, {tile * 8192}\ns_and_b32 s{S_T0}, s{S_T0}, 0x1e000")
                else:
                    A(f"s_mov_b32 s{S_T0}, {sum(((tile >> i) & 1) << int(b) for i, b in enumerate(cfg.kbits.split('.')[3:]))}")
                state["soff"] = tile
            if stage <= k + 2:
                dma(vo, sr, f"s{S_T0}", p * 1024, cfg.pol_kv, stage, win)
            else:
                if not pool:
                    unpark(k, 2)
                r = pool.pop(0)
                throttle(win)
                A(f"buffer_load_dwordx4 {v4(r)}, v{vo}, {srd(sr)}, s{S_T0} offen offset:{p * 1024} {cfg.pol_kv}")
                q.append(("r", r))
                parked.append((stage, isv, tile, p, r))
            if cfg.lazyp:
                unpark(k, cfg.lazyp, True)

    def unpark(k, most=99, landed=False):
        while parked and parked[0][0] <= k + 2 and most and not (landed and ("r", parked[0][4]) in q):
            most -= 1
            stage, isv, tile, p, r = parked.pop(0)
            wait(("r", r))
            A(f"ds_write_b128 v{LDSW(isv)}, {v4(r)} offset:{(tile % 3) * ASLOT + p * 1024}")
            pool.append(r)
            state["lds"] = True

    def o_index(m):
        if cfg.order:
            return f"s_add_u32 s{S_T0}, s{S_J2}, {o_rel(cfg)[m]}"
        if cfg.par:
            if m < 8:
                return f"s_add_u32 s{S_T0}, s{S_J2}, {4 * (m >> 1) + (m & 1)}"
            if cfg.par == 1:
                return f"s_add_u32 s{S_T0}, s{S_J2}, {4 * ((m - 8) >> 1) + (m & 1) + 2}"
            return f"s_lshl_b32 s{S_T0}, s{S_NU}, 1\ns_add_u32 s{S_T0}, s{S_T0}, {4 * ((m - 8) >> 1) + (m & 1) + 2}"
        if m < 2 or not cfg.oord:
            return f"s_add_u32 s{S_T0}, s{S_J2}, {m}"
        return f"""s_cmp_gt_u32 s{S_T3}, {(m - 2) // 2}
        s_cselect_b32 s{S_T0}, {m - 2}, {m}
        s_add_u32 s{S_T0}, s{S_T0}, s{S_T2}"""

    def issue_ow(m, tag, win=0):
        A(f"""{o_index(m)}
        s_add_u32 m0, s{S_LWW}, {WRING + (m % 4) * WSLOT}
        s_and_b32 s{S_T0}, s{S_T0}, 15
        s_lshl_b32 s{S_T1}, s{S_T0}, 17""")
        if cfg.hmap:
            A(f"""s_lshr_b32 s{S_T0}, s{S_T0}, 1
            {head_of(cfg, S_T2, S_T0, S_T3)}
            s_lshl_b32 s{S_T2}, s{S_T2}, 18
            s_and_b32 s{S_T1}, s{S_T1}, 0x20000
            s_add_u32 s{S_T1}, s{S_T1}, s{S_T2}""")
        first = cfg.promote & 2 and o_rel(cfg)[m] < 4
        for p in range(4):
            dma(LWO(p), sWO, f"s{S_T1}", p * 1024, "nt" if first else cfg.pol_wo, tag, 0 if first else win)
        if first:
            A(f"buffer_load_dword v{LPOLL}, v{LTO}, {srd(sWO)}, s{S_T1} offen {cfg.pol_t}")
            q.append("t")

    def touch_w(b):
        A(f"""s_lshl_b32 s{S_T0}, s{S_BP}, 17
        s_add_u32 s{S_T0}, s{S_T0}, {b << 19}
        buffer_load_dword v{LPOLL}, v{LTO}, {srd(sWO)}, s{S_T0} offen""")
        q.append("t")

    def touch_b(b):
        A(f"s_mov_b32 s{S_T0}, {b * 98304}\nbuffer_load_dword v{LPOLL}, v{LTB}, {srd(sWS)}, s{S_T0} offen sc1")
        q.append("t")

    coop = []
    spre = [int(x) for x in str(cfg.spre).split(".")] if cfg.spre else []
    sdone = [0]

    def scalar_pre():
        for _ in range(spre.pop(0) if spre else 0):
            n, r = divmod(sdone[0], 32)
            if n > 3:
                break
            if r == 0:
                A(f"""s_add_u32 s{S_T0}, s{S_NU}, {2 * n + 1}
                s_and_b32 s{S_T0}, s{S_T0}, 7
                s_lshl_b32 s{S_T0}, s{S_T0}, 18
                s_add_u32 s{S_T0}, s{S_T0}, s{S_DW}
                s_add_u32 s{S_SB + 2 * (n & 1)}, s12, s{S_T0}
                s_addc_u32 s{S_SB + 2 * (n & 1) + 1}, s13, 0""")
            A(f"s_load_dword s{S_SB + 4}, s[{S_SB + 2 * (n & 1)}:{S_SB + 2 * (n & 1) + 1}], {(r >> 2) * 2048 + (r & 3) * 64}")
            sdone[0] += 1

    def coop_after(m):
        for b, mm in enumerate(coop):
            if mm == m:
                touch_b(b + 1)
                touch_w(b + 1)

    def issue_ob(m, tag):
        A(f"""{o_index(m)}
        s_add_u32 m0, s{S_LWB}, {BRING + ((m - 2) % 4) * BSLOT}
        s_and_b32 s{S_T0}, s{S_T0}, 15
        s_mul_i32 s{S_T0}, s{S_T0}, 24576""")
        for p in range(4):
            dma(LOB, sWS, f"s{S_T0}", p * 1024, cfg.pol_ob, tag)
        A(f"s_add_u32 m0, s{S_LWB}, {BRING + ((m - 2) % 4) * BSLOT + 4096}\ns_add_u32 s{S_T1}, s{S_T0}, 4096")
        for p in range(2):
            dma(LOB, sWS, f"s{S_T1}", p * 1024, cfg.pol_ob, tag)

    nst = [1]

    def stamp():
        if cfg.stamps:
            A(loader_stamp(nst[0]))
            nst[0] += 1

    def barrier():
        if state["lds"]:
            A("s_waitcnt lgkmcnt(0)")
            state["lds"] = False
        A("s_barrier")
        stamp()

    A("; loader schedule: one barrier per stage; two variants differ only in when K/V is preloaded")
    end = lambda n: 0 if n < 16 else min(128, 4 + 8 * (n - 16))
    pre = [int(x) for x in str(pre).split(".")] if pre else []
    pre = [0] * (17 - len(pre)) + pre
    wo_at = [int(x) for x in str(cfg.wo_at).split(".")]
    wtag = lambda m: 33 if m < 2 else 33 + m
    if role == 1:
        A(f"""
        s_lshr_b32 s{S_T0}, s2, 3
        s_and_b32 s{S_T0}, s{S_T0}, 15
        s_lshl_b32 s{S_T0}, s{S_T0}, 2
        s_add_u32 s{S_T0}, s{S_T0}, s{S_W}
        s_lshl_b32 s{S_T1}, s{S_T0}, 13
        s_lshl_b32 s{S_T2}, s{S_HG}, 11
        s_add_u32 s{S_T1}, s{S_T1}, s{S_T2}
        v_lshrrev_b32 v3, 4, v0
        v_and_b32 v4, 15, v0
        v_lshl_add_u32 v5, v3, 19, s{S_T1}
        v_lshl_add_u32 v5, v4, 7, v5
        s_mul_i32 s{S_T1}, s{S_T0}, {6 * 2048}
        v_lshrrev_b32 v3, 3, v0
        v_min_u32 v3, 5, v3
        v_and_b32 v4, 7, v0
        v_lshl_add_u32 v6, v3, 11, s{S_T1}
        v_lshl_add_u32 v6, v4, 7, v6
        """)
        for qt in range(4):
            if qt % 2 == 0:
                A(f"buffer_load_dword v{LPOLL}, v6, {srd(sX)}, 0 offen offset:{(qt // 2) * 1024}")
                q.append("t")
            A(f"s_mov_b32 s{S_T0}, {qt << 21}\nbuffer_load_dword v{LPOLL}, v5, {srd(sWQ)}, s{S_T0} offen")
            q.append("t")
        A(f"s_mov_b32 s{S_T0}, {384 * 2048}")
        for h in range(2):
            A(f"buffer_load_dword v{LPOLL}, v6, {srd(sX)}, s{S_T0} offen offset:{h * 1024}")
            q.append("t")
        pre[0] = cfg.s1pre
        issue_kv(pre[0], -1, cfg.s1win)
    if cfg.afirst and sfx == "a":
        pre[0] = cfg.afirst
        issue_kv(pre[0], -1, cfg.bwin or 8)
    if cfg.stag or (cfg.afirst and sfx == "a"):
        issue_q(0)
        issue_q(1)
    base = sum(pre)
    issue_kv(pre[0], -1, 0)
    nq = 2
    for k in range(0, 33):
        wait(k)
        barrier()
        if not cfg.lazyp:
            unpark(k)
        while nq <= min(15, k + 1 + cfg.qd):
            issue_q(nq)
            nq += 1
        w = ((cfg.winb or cfg.win) if sfx == 'b' else cfg.win) if role is None else (cfg.s1win if role else (cfg.s0win if k < cfg.s0sw else cfg.s0late))
        if cfg.winlate and k >= cfg.late and sfx != 'b':
            w = cfg.winlate
        win = 0 if k < 16 else (cfg.win16 if k == 16 else w)
        lead = min(128, end(k + 1) + ((win + 5) // 10 if win in (45, 55) else win or 8)) if k >= 14 else 0
        if k <= 15:
            ramp = sum(pre[:k + 2]) + (4 * max(0, k - 13) if role == 1 else 0)
        else:
            b0 = base + cfg.win16 + (8 if role == 1 else 0)
            last = (cfg.lastb or cfg.last) if sfx == 'b' else cfg.last
            ramp = min(128, b0 + ((128 - b0) * (k - 16)) // (last - 16))
        issue_kv(max(lead, ramp if base else 0), k, win or cfg.bwin)
        if cfg.lazyp:
            unpark(k, 99, True)
            unpark(k - 1)
        if k == 20 and cfg.oord:
            A(f"""s_add_u32 s{S_T2}, s{S_BP}, s{S_J}
            s_and_b32 s{S_T2}, s{S_T2}, {cfg.oord - 1}
            s_mul_i32 s{S_T2}, s{S_T2}, {8 // cfg.oord}
            s_sub_u32 s{S_T3}, s{S_J}, s{S_T2}
            s_and_b32 s{S_T3}, s{S_T3}, 7
            s_lshl_b32 s{S_T2}, s{S_T2}, 1""")
        for h, tk in enumerate(str(cfg.ptouch).split(".") if cfg.ptouch else []):
            if int(tk) == k:
                throttle(win)
                A(f"""s_mul_i32 s{S_T0}, s{S_J}, 49152
                s_add_u32 s{S_T0}, s{S_T0}, {h * 24576}
                v_mul_u32_u24 v3, 0x70, v0
                v_add_u32 v3, v3, v{LOB}
                s_mov_b32 exec_hi, 0xffff
                buffer_load_dword v{LPOLL}, v3, {srd(sWS)}, s{S_T0} offen
                s_mov_b64 exec, -1""")
                q.append("t")
        if k == 26:
            A(f"buffer_load_dword v{LPOLL}, v{LFLAG}, {srd(sWS)}, 0 offen sc1")
            q.append("t")
        for m in range(4):
            if wo_at[m] == k and not (m < 2 and m >= 2 - cfg.w1late):
                issue_ow(m, wtag(m), win if state["next"] < 128 else (cfg.wwin if k == 32 else 0))
        if coop and k == cfg.coopw0:
            touch_w(0)
    assert state["next"] == 128 and not parked
    if spre:
        A(f"""s_lshl_b32 s{S_DW}, s{S_HG}, 21
        s_lshl_b32 s{S_T0}, s{S_BP}, 16
        s_add_u32 s{S_DW}, s{S_DW}, s{S_T0}
        s_lshl_b32 s{S_T0}, s{S_W}, 14
        s_add_u32 s{S_DW}, s{S_DW}, s{S_T0}
        s_lshl_b32 s{S_T0}, s{S_NU}, 8
        s_add_u32 s{S_DW}, s{S_DW}, s{S_T0}""")
    A("; output projection: wo stages, waits for the producers of the next operand blocks")
    if cfg.w1late:
        A("s_barrier")
        if cfg.w1late == 2:
            issue_ow(0, 33)
        issue_ow(1, 34)
    wait(33)
    barrier()
    if cfg.w1late:
        wait(34)
        A("s_barrier")
    def finish():
        if cfg.stamps:
            A(f"""s_lshl_b32 s{S_T0}, s2, 3
            s_add_u32 s{S_T0}, s{S_T0}, s{S_WAVE}
            s_lshl_b32 s{S_T0}, s{S_T0}, 8
            s_add_u32 s{S_T0}, s{S_T0}, {WS_STAMP}
            v_lshl_add_u32 v1, v0, 2, s{S_T0}
            buffer_store_dword v{LSTAMP}, v1, {srd(sWS)}, 0 offen""")
        A("s_endpgm")
        return tr

    def need_head(m):
        A(f"""{o_index(m)}
        s_bfe_u32 s{S_T1}, s{S_T0}, 0x30001
        s_mov_b32 s{S_SPIN}, 0""")
        n = f"L_need{m}{sfx}"
        loop = P.add(f"""{n}:
        s_bitcmp1_b32 s{S_MASK}, s{S_T1}
        s_cbranch_scc1 {n}_done
        buffer_load_dword v{LPOLL}, v{LFLAG}, {srd(sWS)}, 0 offen sc1
        s_add_u32 s{S_SPIN}, s{S_SPIN}, 1
        s_waitcnt vmcnt(0)
        v_cmp_eq_u32 vcc, 1, v{LPOLL}
        s_mov_b32 s{S_MASK}, vcc_lo
        s_cmp_lt_u32 s{S_SPIN}, {SPIN_MAX}
        s_cbranch_scc1 {n}""")
        tr.extend(loop + loop)
        A(f"{n}_done:")

    if cfg.bdirect:
        for m in (2, 3):
            if wo_at[m] == 33:
                issue_ow(m, 33 + m)
        A(f"s_mov_b32 s{S_MASK}, 0")
        seen = {0}

        def need_new(m):
            if o_rel(cfg)[m] >> 1 not in seen:
                seen.add(o_rel(cfg)[m] >> 1)
                need_head(m)

        need_new(2)
        need_new(3)
        A("s_barrier")
        stamp()
        for m in (2, 3):
            if wo_at[m] == 34:
                issue_ow(m, 33 + m)
        nm = 4
        for k in range(35, 49):
            if k - 31 <= 15:
                need_new(k - 31)
            wait(k)
            barrier()
            while nm <= min(15, k + 1 + cfg.od - 33):
                issue_ow(nm, nm + 33)
                nm += 1
        return finish()
    if wo_at[2] == 33:
        issue_ow(2, 35)
    if cfg.prog:
        A(f"s_mov_b32 s{S_MASK}, 0")
        need_head(2)
    else:
        poll_loop(P, tr, "poll1" + sfx, LPOLL, LFLAG)
        del q[:]
        q.append("poll")
    stamp()
    if coop:
        touch_b(0)
    issue_ob(2, 35)
    if wo_at[2] == 34:
        issue_ow(2, 35)
    coop_after(2)
    if wo_at[3] == 33:
        issue_ow(3, 36)
    issue_ob(3, 36)
    if wo_at[3] == 34:
        issue_ow(3, 36)
    coop_after(3)
    scalar_pre()
    nm = 4
    for k in range(35, 49):
        wait(k)
        barrier()
        while nm <= min(15, k + 1 + cfg.od - 33):
            issue_ow(nm, nm + 33)
            if cfg.prog and nm % 2 == 0:
                need_head(nm)
            issue_ob(nm, nm + 33)
            coop_after(nm)
            nm += 1
        scalar_pre()
    return finish()


def order(n, snake):
    return [(T, t) for T in range(n) for t in (reversed(T3) if snake and T & 1 else T3)]


def gemm_reads(b, s, kind, with_b=True):
    r = []
    if with_b:
        for t in T3:
            if kind == "q":
                r.append(f"ds_read_b128 {v4(FB(b, t))}, v{AB(s)} offset:{t * 2048}")
            else:
                r.append(f"ds_read_b128 {v4(FB(b, t))}, v{AB(0)} offset:{s * 3072 + t * 1024}")
    for T in range(8):
        for u in range(2):
            off = s * 8192 + u * (1024 if kind == "q" else 4096)
            r.append(f"ds_read_b64_tr_b16 {v2(FA(b, T) + 2 * u)}, v{AW(T)} offset:{off}")
    return r


def gemm_mfma(cfg, b, bsrc=None, zero=False):
    return [f"{MFMA} {v4(ACC(T, t))}, {v4(FA(b, T))}, {v4(bsrc(t) if bsrc else FB(b, t))}, {'0' if zero else v4(ACC(T, t))}"
            for T, t in order(8, cfg.snake)]


def gemm_loop(P, tr, cfg, kind, label, iters):
    sal = [f"s_add_u32 s{S_SLOT}, s{S_SLOT}, 1", f"s_and_b32 s{S_SLOT}, s{S_SLOT}, 3", f"s_cselect_b32 s{S_DW}, {WSLOT}, s{S_T2}"]
    if kind == "o":
        sal.append(f"s_cmp_lg_u32 s{S_SLOT}, 2")
    sal.append(f"s_cselect_b32 s{S_DB}, {BSLOT}, s{S_T3}")
    val = [f"v_add_u32 v{AB(s)}, s{S_DB}, v{AB(s)}" for s in range(2 if kind == "q" else 1)]
    val += [f"v_add_u32 v{AW(T)}, s{S_DW}, v{AW(T)}" for T in range(8)]
    nb = len(val) - 8
    hook = [(18, f"s_cmp_eq_u32 s{S_CNT}, s{S_FLAG}"), (19, "s_cbranch_scc1 L_count"), (19, "L_counted:")] if kind == "q" else []
    if kind == "o" and cfg.wb:
        hook = [(18, f"s_cmp_eq_u32 s{S_CNT}, s{S_FLAG}"), (19, "s_cbranch_scc1 L_wb"), (19, "L_wbdone:")]
    h0 = weave(gemm_mfma(cfg, 0), spread(gemm_reads(1, 1, kind), 0, 18) + spread(sal, 0, 4) + spread(val[:nb + 6], 12, 19)
               + spread(val[nb + 6:], 20, 21) + [(22, "s_waitcnt lgkmcnt(0)"), (22, "s_barrier")])
    h1 = weave(gemm_mfma(cfg, 1), spread(gemm_reads(0, 0, kind), -1, 17)
               + hook + [(20, f"s_sub_u32 s{S_CNT}, s{S_CNT}, 1"), (20, f"s_cmp_lg_u32 s{S_CNT}, 0")])
    tr.extend(P.add(f"s_mov_b32 s{S_CNT}, {iters}\ns_waitcnt lgkmcnt(0)"))
    if kind == "q":
        tr.extend(P.add(".p2align 3"))
        body = P.add([label + ":"] + h0 + h1 + ["s_waitcnt lgkmcnt(0)", f"s_cbranch_scc1 {label}"])
        tr.extend(body + body)
        return
    h0 = weave(gemm_mfma(cfg, 0), spread(gemm_reads(1, 1, kind), 0, 18) + spread(sal, 0, 4) + spread(val[:nb + 6], 11, 18)
               + spread(val[nb + 6:], 19, 19) + [(6, f"s_sub_u32 s{S_CNT}, s{S_CNT}, 1"), (7, f"s_cmp_eq_u32 s{S_CNT}, 0"),
                                                  (20, f"s_cbranch_scc1 {label}_out"), (22, "s_waitcnt lgkmcnt(0)"), (22, "s_barrier")])
    h1 = weave(gemm_mfma(cfg, 1), spread(gemm_reads(0, 0, kind), -1, 17) + hook)
    cut = h0.index(f"s_cbranch_scc1 {label}_out") + 1
    tr.extend(P.add(".p2align 3"))
    first = P.add([label + ":"] + h0[:cut])
    rest = P.add(h0[cut:] + h1 + ["s_waitcnt lgkmcnt(0)", f"s_branch {label}"])
    tr.extend(first + rest + first + P.add([label + "_out:"] + gemm_mfma(cfg, 0)[21:]))


def k_reads(tile):
    return [f"ds_read_b128 {v4(FR(kt * 4 + s))}, v{AK(s)} offset:{(tile % 3) * ASLOT + kt * 4096}" for kt in range(2) for s in range(4)]


def v_reads(T, tile):
    return [f"ds_read_b64_tr_b16 {v2(FR(T) + 2 * u)}, v{AV(T)} offset:{(tile % 3) * ASLOT + u * 4096}" for u in range(2)]


def qk_mfma(first=False):
    c0 = lambda t: "0" if first else v4(NM(t))
    return [f"{MFMA} {v4(SS(kt, t))}, {v4(FR(kt * 4 + s))}, {v4(QF(s, t))}, {c0(t) if s == 0 else v4(SS(kt, t))}"
            for kt in range(2) for s in range(4) for t in T3]


def pv_mfma(cfg):
    return [f"{MFMA} {v4(ACC(T, t))}, {v4(FR(T))}, {v4(PP(t))}, {v4(ACC(T, t))}" for T, t in order(8, cfg.snake)]


def xlane(op, regs, tmps):
    out = []
    for sw in ("v_permlane32_swap_b32", "v_permlane16_swap_b32"):
        out += [f"v_mov_b32 v{x}, v{r}" for r, x in zip(regs, tmps)]
        out += [f"{sw} v{r}, v{x}" for r, x in zip(regs, tmps)]
        out += [f"{op} v{r}, v{r}, v{x}" for r, x in zip(regs, tmps)]
    return out


def row_max():
    o = [f"v_max3_f32 v{VD(t)}, v{SS(0, t)}, v{SS(0, t) + 1}, v{SS(0, t) + 2}" for t in T3]
    o += [f"v_max3_f32 v{VD(t)}, v{SS(0, t) + 3}, v{SS(1, t)}, v{VD(t)}" for t in T3]
    o += [f"v_max3_f32 v{VD(t)}, v{SS(1, t) + 1}, v{SS(1, t) + 2}, v{VD(t)}" for t in T3]
    o += [f"v_max_f32 v{VD(t)}, v{SS(1, t) + 3}, v{VD(t)}" for t in T3]
    return o + xlane("v_max_f32", [VD(t) for t in T3], [VT(t) for t in T3])


def shift_scores():
    return [f"v_sub_f32 v{SS(kt, t) + r}, v{SS(kt, t) + r}, v{VD(t)}" for kt in range(2) for t in T3 for r in range(4)]


def guard_max(kt):
    r = [SS(kt, t) + k for t in T3 for k in range(4)]
    if kt == 0:
        o = [f"v_max3_f32 v{VX}, v{r[0]}, v{r[1]}, v{r[2]}"]
        o += [f"v_max3_f32 v{VX}, v{r[k]}, v{r[k + 1]}, v{VX}" for k in range(3, 11, 2)]
        return o + [f"v_max_f32 v{VX}, v{r[11]}, v{VX}"]
    return [f"v_max3_f32 v{VX}, v{r[k]}, v{r[k + 1]}, v{VX}" for k in range(0, 12, 2)]


def p_cvt(kt, h=None):
    return [f"v_cvt_pk_bf16_f32 v{PP(t) + 2 * kt + hh}, v{SS(kt, t) + 2 * hh}, v{SS(kt, t) + 2 * hh + 1}"
            for hh in ((0, 1) if h is None else (h,)) for t in T3]


def exp_sum(cfg, kt, h):
    o = [f"v_exp_f32 v{SS(kt, t) + 2 * h + r}, v{SS(kt, t) + 2 * h + r}" for t in T3 for r in range(2)]
    if cfg.pk:
        o += [f"v_pk_add_f32 {v2(VL(t))}, {v2(VL(t))}, {v2(SS(kt, t) + 2 * h)}" for t in T3]
    else:
        o += [f"v_add_f32 v{VL(t) + r}, v{VL(t) + r}, v{SS(kt, t) + 2 * h + r}" for t in T3 for r in range(2)]
    return o


def exps(kt, h):
    return [f"v_exp_f32 v{SS(kt, t) + 2 * h + r}, v{SS(kt, t) + 2 * h + r}" for t in T3 for r in range(2)]


def pk_sum(kt, h):
    return [f"v_pk_add_f32 {v2(VL(t))}, {v2(VL(t))}, {v2(SS(kt, t) + 2 * h)}" for t in T3]


def rescale(by):
    return [f"v_mul_f32 v{ACC(T, t) + r}, v{ACC(T, t) + r}, v{by(t)}" for T in range(8) for t in T3 for r in range(4)]


def acc_to_frag(s, QF=QF):
    return [f"v_cvt_pk_bf16_f32 v{QF(s, t) + 2 * u + h}, v{ACC(2 * s + u, t) + 2 * h}, v{ACC(2 * s + u, t) + 2 * h + 1}"
            for u in range(2) for t in T3 for h in range(2)]


def compute(P, cfg):
    tr = []
    A = lambda t: tr.extend(P.add(t))
    nst = [0]

    def stamp():
        if cfg.stamps:
            A(f"s_memrealtime s[{S_ST + 2 * nst[0]}:{S_ST + 2 * nst[0] + 1}]\ns_waitcnt lgkmcnt(0)")
            nst[0] += 1

    A("; ---- compute waves: first read of x, inbox clear, code prefetch")
    A(f"L_compute:\ns_getpc_b64 s[{S_PC}:{S_PC + 1}]\nL_text:\n{late_ids(cfg)}\ns_waitcnt lgkmcnt(0)")
    if cfg.xtouch and not cfg.xtouch & 4:
        A(make_srd(((sX, 4, 768 * 2048),)))
        A(x_touch(cfg, 112, 113))
    A(make_srd(((sOUT, 14, 768 * 4096), (sWS, 18, 256 << 20), (sDBG, 16, 256))))
    if cfg.prio:
        A(f"s_setprio {cfg.prio}")
    A(f"""
    s_getreg_b32 s{S_XCC}, hwreg(HW_REG_XCC_ID, 0, 3)
    s_cmp_lg_u32 s{S_W}, 0
    s_cbranch_scc1 L_noclear
    s_lshl_b32 s{S_T0}, s2, 11
    s_add_u32 s{S_T0}, s{S_T0}, {WS_INBOX}
    v_lshlrev_b32 v1, 4, v0
    v_mov_b64 v[4:5], 0
    v_mov_b64 v[6:7], 0
    buffer_store_dwordx4 v[4:7], v1, {srd(sWS)}, s{S_T0} offen sc1
    buffer_store_dwordx4 v[4:7], v1, {srd(sWS)}, s{S_T0} offen offset:1024 sc1
    {code_touch(0, 110, 111) if cfg.ctouch else ""}
    L_noclear:
    s_lshl_b32 s{S_XCC}, s{S_XCC}, 2
    v_and_b32 v{V_TMP}, 3, v0
    v_xor_b32 v{V_TMP}, s{S_GRP}, v{V_TMP}
    v_lshlrev_b32 v{V_TMP}, 2, v{V_TMP}
    v_lshrrev_b32 v100, 4, v0
    v_and_b32 v101, 15, v0
    v_bfe_u32 v102, v0, 2, 2
    v_bfe_u32 v103, v0, 1, 1
    v_and_b32 v104, 1, v0
    v_lshlrev_b32 v109, 4, v0
    """)
    A(f"""
    v_lshl_add_u32 v105, v100, 3, v102
    v_lshlrev_b32 v105, 8, v105
    v_lshl_add_u32 v105, v104, 3, v105
    v_lshl_add_u32 v105, v103, 4, v105
    v_and_b32 v106, 1, v100
    v_lshl_add_u32 v106, v106, 2, v102
    v_lshl_add_u32 v{AW(0)}, v106, 5, v105
    """)
    for T in range(1, 8):
        A(f"v_xor_b32 v{AW(T)}, {T << 5}, v{AW(0)}")
    A(f"""
    s_add_u32 s{S_T0}, s{S_LWB}, {BRING}
    v_lshl_add_u32 v105, v101, 7, s{S_T0}
    v_lshrrev_b32 v107, 1, v101
    v_xor_b32 v107, v107, v100
    v_lshl_add_u32 v{AB(0)}, v107, 4, v105
    v_xor_b32 v{AB(1)}, 64, v{AB(0)}
    """)
    A(f"""
    s_lshr_b32 s{S_T0}, s{S_W}, 1
    s_lshl_b32 s{S_T0}, s{S_T0}, 13
    s_add_u32 s{S_T0}, s{S_T0}, {KRING}
    v_lshl_add_u32 v105, v101, 8, s{S_T0}
    v_lshrrev_b32 v107, 1, v100
    v_and_b32 v108, 1, v100
    v_lshl_add_u32 v107, v108, 1, v107
    v_xor_b32 v107, v107, v101
    v_lshl_add_u32 v{AK(0)}, v107, 4, v105
    """)
    for s in range(1, 4):
        A(f"v_xor_b32 v{AK(s)}, {s << 6}, v{AK(0)}")
    A(f"""
    s_add_u32 s{S_T0}, s{S_T0}, {VRING - KRING}
    v_lshl_add_u32 v105, v100, 2, v102
    v_lshl_add_u32 v105, v105, 8, s{S_T0}
    v_lshl_add_u32 v105, v104, 3, v105
    v_lshl_add_u32 v105, v103, 4, v105
    v_lshl_add_u32 v{AV(0)}, v106, 5, v105
    """)
    for T in range(1, 8):
        A(f"v_xor_b32 v{AV(T)}, {T << 5}, v{AV(0)}")
    A(f"s_mov_b32 s{S_C}, {f32(1.4426950408889634 / 128 ** 0.5)}\ns_mov_b32 s{S_C + 1}, s{S_C}")
    A(f"s_mov_b32 s{S_T2}, {-3 * WSLOT}\ns_mov_b32 s{S_T3}, {-3 * BSLOT}\ns_mov_b32 s{S_SLOT}, 0")
    A([f"v_pk_mov_b32 {v2(r)}, 0, 0" for r in range(0, 96, 2)])
    if cfg.tag or cfg.oclear:
        A([f"v_mov_b32 v{r}, -1" for r in range(116, 120)])
    xclear = [f"s_mul_i32 s{S_T0}, s{S_W}, 9216", f"s_mul_i32 s{S_T1}, s2, 36864", f"s_add_u32 s{S_T0}, s{S_T0}, s{S_T1}", f"s_add_u32 s{S_T0}, s{S_T0}, {WS_X}"]
    for k in range(9):
        if k and k % 4 == 0:
            xclear.append(f"s_add_u32 s{S_T0}, s{S_T0}, 4096")
        xclear.append(f"buffer_store_dwordx4 v[116:119], v109, {srd(sWS)}, s{S_T0} offen offset:{(k % 4) * 1024} sc1")
    if cfg.tag and not cfg.clear_at:
        A(xclear)
    if cfg.oclear:
        A(f"""s_mul_i32 s{S_T0}, s{S_GRP}, 393216
        s_mul_i32 s{S_T1}, s{S_J}, 49152
        s_add_u32 s{S_T0}, s{S_T0}, s{S_T1}
        s_mul_i32 s{S_T1}, s{S_W}, 12288
        s_add_u32 s{S_T0}, s{S_T0}, s{S_T1}""")
        for k in range(12):
            if k and k % 4 == 0:
                A(f"s_add_u32 s{S_T0}, s{S_T0}, 4096")
            A(f"buffer_store_dwordx4 v[116:119], v109, {srd(sWS)}, s{S_T0} offen offset:{(k % 4) * 1024} sc1")
    count = f"""s_lshl_b32 s{S_T0}, 1, s{S_XCC}
    v_mov_b32 v{V_CHK}, s{S_T0}
    s_mov_b64 exec, 1
    s_waitcnt vmcnt(0)
    buffer_atomic_add v{V_CHK}, v{V_TMP}, {srd(sDBG)}, 0 offen
    s_mov_b64 exec, -1""".split("\n")
    rare = [["L_count:", f"s_cmp_eq_u32 s{S_FLAG}, {cfg.fetch_at}", "s_cbranch_scc1 L_fetch", f"s_mov_b32 s{S_FLAG}, {cfg.fetch_at}",
             "s_waitcnt vmcnt(0)", f"s_cmp_lg_u32 s{S_W}, 0", "s_cbranch_scc1 L_counted"] + count + ["s_branch L_counted",
             "L_fetch:", f"buffer_load_dword v{V_CHK}, v{V_TMP}, {srd(sDBG)}, 0 offen sc1", "s_branch L_counted"]]
    if cfg.clear_at:
        assert cfg.latefetch and cfg.tag and min(cfg.clear_at, cfg.clear_b or 99) > cfg.count_at + 1
        rare = [["L_count:", f"s_cmp_le_u32 s{S_FLAG}, {cfg.count_at + 1}", "s_cbranch_scc1 L_drain"] + xclear
                + [f"s_cmp_eq_u32 s{S_W}, 0", f"s_cselect_b32 s{S_FLAG}, {cfg.count_at}, {cfg.count_at + 1}", "s_branch L_counted",
                   "L_drain:", "s_waitcnt vmcnt(0)", f"s_cmp_lg_u32 s{S_W}, 0", "s_cbranch_scc1 L_counted"] + count + ["s_branch L_counted"]]
        A(f"s_bitcmp{1 - cfg.clsinv}_b32 s2, {cfg.cls}\ns_cselect_b32 s{S_FLAG}, {cfg.clear_b or cfg.clear_at}, {cfg.clear_at}")
    elif cfg.latefetch:
        assert not (cfg.tag or cfg.oclear or cfg.stag)
        rare = [["L_count:"] + count + ["s_branch L_counted"]]
        A(f"""s_lshr_b32 s{S_T0}, s2, {cfg.spreadsh}
        s_and_b32 s{S_T0}, s{S_T0}, {cfg.spreadc}
        s_sub_u32 s{S_T0}, {cfg.count_at}, s{S_T0}
        s_cmp_eq_u32 s{S_W}, {4 if cfg.nocount else 0}
        s_cselect_b32 s{S_FLAG}, s{S_T0}, 0""")
    else:
        A(f"s_cmp_eq_u32 s{S_W}, 0\ns_cselect_b32 s{S_FLAG}, {cfg.count_at}, {cfg.count_at + 1}")
    assert not (cfg.stag and (cfg.tag or cfg.oclear))
    if cfg.stag:
        A([f"s_cmp_ge_u32 s{S_BP}, 2", f"s_cselect_b32 s{S_T1}, s{S_FLAG}, 0", f"s_cmp_lg_u32 s{S_T1}, {cfg.count_at}", "s_cbranch_scc1 L_nocount"]
          + count + [f"s_mov_b32 s{S_FLAG}, {cfg.fetch_at}", "L_nocount:"])
    A("; ---- Q projection")
    A("s_barrier")
    A(gemm_reads(0, 0, "q"))
    gemm_loop(P, tr, cfg, "q", "L_qloop", 16)
    A(k_reads(0))
    def judge(v):
        return f"""v_lshrrev_b32 v{VT(0)}, 4, v{v}
        v_and_b32 v{VT(0)}, 0x0f0f0f0f, v{VT(0)}
        v_and_b32 v{VT(1)}, 0x0f0f0f0f, v{v}
        v_add_u32 v{VT(0)}, v{VT(0)}, v{VT(1)}
        v_sad_u8 v{VT(0)}, v{VT(0)}, 0, 0
        v_readfirstlane_b32 s{S_T1}, v{v}
        v_cmp_ne_u32 vcc, 8, v{VT(0)}
        s_lshl_b32 s{S_T0}, 8, s{S_XCC}
        s_cmp_eq_u32 s{S_T0}, s{S_T1}
        s_cselect_b32 s{S_FLAG}, {cfg.local}, 0
        s_cmp_eq_u64 vcc, 0
        s_cselect_b32 s{S_FLAG}, s{S_FLAG}, 2""".split("\n")

    dbgaddr = lambda v: [f"v_and_b32 v{v}, 3, v{V_TMP}", f"v_xor_b32 v{v}, s{S_GRP}, v{v}", f"v_lshlrev_b32 v{v}, 2, v{v}"]
    ahook = []
    if cfg.latefetch:
        ahook = [f"s_cmp_le_u32 s{S_CNT}, 2", "s_cbranch_scc1 L_ahook", "L_ahooked:"]
        rare.append(["L_ahook:", f"s_cmp_eq_u32 s{S_CNT}, 1", "s_cbranch_scc1 L_judge"] + dbgaddr(VT(0))
                    + [f"buffer_load_dword v{V_CHK}, v{VT(0)}, {srd(sDBG)}, 0 offen sc1", "s_branch L_ahooked", "L_judge:", "s_waitcnt vmcnt(0)"]
                    + judge(V_CHK) + ([f"s_mov_b32 s{S_FLAG}, 1"] if cfg.nocount else []) + [f"v_mov_b32 v{V_CHK}, 1", "s_branch L_ahooked"])
    else:
        A(["s_waitcnt vmcnt(0)"] + judge(V_CHK))
    A([f"v_pk_mul_f32 {v2(r)}, {v2(r)}, s[{S_C}:{S_C + 1}]" for r in range(0, 96, 2)])

    def q_frag(s):
        return acc_to_frag(s) + [f"v_permlane16_swap_b32 v{QF(s, t) + h}, v{QF(s, t) + 2 + h}" for t in T3 for h in range(2)]

    qk0 = qk_mfma(True)
    qk0 = [qk0[kt * 12 + s * 3 + t] for s in range(4) for kt in range(2) for t in T3]
    zero = [f"v_mov_b64 {v2(r)}, 0" for r in range(0, 96, 2)]
    addr = f"""{lane_id(V_TMP)}
    s_mul_i32 s{S_T0}, s{S_GRP}, 393216
    s_mul_i32 s{S_T1}, s{S_J}, 49152
    s_add_u32 s{S_T0}, s{S_T0}, s{S_T1}
    s_add_u32 s{S_T0}, s{S_T0}, s{S_LWB}
    v_lshl_add_u32 v{V_OST}, v{V_TMP}, 4, s{S_T0}
    s_andn2_b32 s{S_T0}, s2, 0x38
    s_lshl_b32 s{S_T0}, s{S_T0}, 11
    s_lshl_b32 s{S_T1}, s{S_J}, 2
    s_add_u32 s{S_T0}, s{S_T0}, s{S_T1}
    s_lshl_b32 s{S_T1}, s{S_W}, 9
    s_add_u32 s{S_T0}, s{S_T0}, s{S_T1}
    s_add_u32 s{S_T0}, s{S_T0}, {WS_INBOX}
    v_lshl_add_u32 v{V_FLG}, v{V_TMP}, 14, s{S_T0}
    v_mov_b32 v{V_CHK}, 1""".split("\n")
    A(q_frag(0))
    A(weave(qk0, spread(addr, 0, 20) + [(6 * s - 6 + k // 3, x) for s in range(1, 4) for k, x in enumerate(q_frag(s))] + spread(zero[:12], 18, 23)))
    A(zero[12:20])
    A(row_max())
    A([f"v_pk_add_f32 {v2(SS(kt, t) + r)}, {v2(SS(kt, t) + r)}, {v2(VD(t) & ~1)} op_sel:[0,{VD(t) & 1}] op_sel_hi:[1,{VD(t) & 1}] neg_lo:[0,1] neg_hi:[0,1]"
       for kt in range(2) for t in T3 for r in (0, 2)])
    A([f"v_sub_f32 v{NM(t) + r}, 0, v{VD(t)}" for t in T3 for r in range(4)])
    A([f"v_mov_b64 {v2(VL(t))}, 0" for t in T3])
    A(exps(0, 0) + exps(0, 1) + exps(1, 0))
    A(zero[20:])
    A("s_barrier")
    A(k_reads(1))

    def iteration(i):
        pre = pk_sum(0, 0) + pk_sum(0, 1) + pk_sum(1, 0) + p_cvt(0) + p_cvt(1, 0)
        vr = [x for T in range(8) for x in v_reads(T, i)]
        vgap = list(range(8, 22)) + [23, 24]
        add11 = [f"v_add_f32 v{VL(t) + r}, v{VL(t) + r}, v{SS(1, t) + 2 + r}" for t in T3 for r in range(2)]
        early = exps(0, 0) + exps(0, 1) + exps(1, 0)
        fill = ([(5, "s_waitcnt lgkmcnt(0)"), (22, "s_waitcnt lgkmcnt(4)"), (35, "s_waitcnt lgkmcnt(0)")]
                + ([(12, f"s_sub_u32 s{S_CNT}, s{S_CNT}, 1"), (40, f"s_cmp_lg_u32 s{S_CNT}, 0")] if i == 2 else [])
                + list(zip(vgap, vr)) + list(zip(range(6), exps(1, 1))) + list(zip((6, 6, 7, 7, 8, 9), add11)) + list(zip((10, 11, 11), p_cvt(1, 1)))
                + list(zip(range(16, 22), guard_max(0))) + list(zip((25, 25, 26, 26, 27, 27), guard_max(1)))
                + [(28, f"v_cmp_lt_f32 vcc, s{S_C}, v{VX}"), (29, f"s_cbranch_vccnz L_up_{i}")] + list(zip(range(30, 48), early)))
        mf = qk_mfma() + pv_mfma(cfg)
        rare.append([f"L_up_{i}:", "s_waitcnt lgkmcnt(0)"] + mf[30:] + row_max() + [f"v_max_f32 v{VD(t)}, 0, v{VD(t)}" for t in T3] + shift_scores()
                    + [f"v_exp_f32 v{VA(t)}, -v{VD(t)}" for t in T3]
                    + [f"v_sub_f32 v{NM(t) + r}, v{NM(t) + r}, v{VD(t)}" for t in T3 for r in range(4)]
                    + [f"v_mul_f32 v{VL(t) + r}, v{VL(t) + r}, v{VA(t)}" for t in T3 for r in range(2)]
                    + rescale(VA) + early + [f"s_cmp_lg_u32 s{S_CNT}, 0", f"s_branch L_back_{i}"])
        return pre + ["s_waitcnt lgkmcnt(6)"] + weave(mf, fill) + [f"L_back_{i}:"]

    A("; ---- attention loop, three key tiles per trip")
    A(f"s_mov_b32 s{S_C}, {f32(cfg.thr)}\ns_mov_b32 s{S_CNT}, 5\ns_branch L_aenter\n.p2align 3")
    top = P.add(["L_aloop:"] + ahook + ["s_barrier"] + k_reads(1) + ["L_aenter:"])
    body = P.add(iteration(0) + ["s_barrier"] + k_reads(2) + iteration(1) + ["s_barrier"] + k_reads(0) + iteration(2)
                 + ["s_cbranch_scc1 L_aloop"])
    tr.extend(body + top + body)
    A(exps(1, 1) + pk_sum(0, 0) + pk_sum(0, 1) + pk_sum(1, 0) + pk_sum(1, 1))
    A([f"v_add_f32 v{VL(t)}, v{VL(t)}, v{VL(t) + 1}" for t in T3])
    A(xlane("v_add_f32", [VL(t) for t in T3], [VT(t) for t in T3]))
    A([f"v_rcp_f32 v{VL(t)}, v{VL(t)}" for t in T3])
    bc = "op_sel_hi:[1,0]"
    A([f"v_pk_mul_f32 {v2(SS(kt, t) + r)}, {v2(SS(kt, t) + r)}, {v2(VL(t))} {bc}" for kt in range(2) for t in T3 for r in (0, 2)])
    A(p_cvt(0) + p_cvt(1))
    oscale = [f"v_pk_mul_f32 {v2(ACC(T, t) + r)}, {v2(ACC(T, t) + r)}, {v2(VL(t))} {bc}" for T in range(8) for t in T3 for r in (0, 2)]
    A(oscale[:24])
    A("s_barrier")
    A([x for T in range(8) for x in v_reads(T, 15)])
    A(oscale[24:])

    def last_pv(pol):
        def o_out(s):
            return (acc_to_frag(s) + [f"s_mov_b32 s{S_T0}, {(s >> 1) * 24576 + (s & 1) * 3072}"]
                    + [f"buffer_store_dwordx4 {v4(QF(s, t))}, v{V_OST}, {srd(sWS)}, s{S_T0} offen offset:{t * 1024} {pol}" for t in T3])
        fill = []
        for s in range(3):
            o = o_out(s)
            fill += [(6 * s + 12, x) for x in o[12:]] if s < 2 else []
            fill += spread(o[:12], 6 * s + 6, 6 * s + 11)
        return weave(pv_mfma(cfg), fill) + o_out(2)[12:] + o_out(3)

    A([f"s_cmp_lg_u32 s{S_FLAG}, 1", "s_cbranch_scc1 L_far"] + last_pv("") + ["L_near:"])
    rare.append(["L_far:"] + last_pv("sc1")
                + [f"v_and_b32 v{VA(0)}, 3, v{V_TMP}", f"v_xor_b32 v{VA(0)}, s{S_GRP}, v{VA(0)}", f"v_lshlrev_b32 v{VA(0)}, 2, v{VA(0)}",
                   f"s_mov_b32 s{S_SPIN}, 0", "L_rechk:", f"s_cmp_lg_u32 s{S_FLAG}, 2", "s_cbranch_scc1 L_rechk_done",
                   f"buffer_load_dword v{VA(1)}, v{VA(0)}, {srd(sDBG)}, 0 offen sc1", "s_waitcnt vmcnt(0)"] + judge(VA(1))
                + [f"s_add_u32 s{S_SPIN}, s{S_SPIN}, 1", f"s_cmp_lt_u32 s{S_SPIN}, {cfg.chk_max}", "s_cbranch_scc1 L_rechk",
                   "L_rechk_done:", f"s_mov_b32 s{S_FLAG}, 0", "s_branch L_near"])
    stamp()
    if cfg.w1late:
        A("s_barrier")
    fst = f"buffer_store_dword v{V_CHK}, v{V_FLG}, {srd(sWS)}, 0 offen"
    flag = [f"s_cmp_eq_u32 s{S_FLAG}, 0", "s_mov_b64 exec, 0xff", "s_waitcnt vmcnt(0)", "s_cbranch_scc1 L_farflag", fst, "L_flagged:", "s_mov_b64 exec, -1"]
    rare.append(["L_farflag:", fst + " sc1", "s_branch L_flagged"])
    A(f"""
    s_lshl_b32 s{S_T0}, s{S_HG}, 6
    v_and_b32 v{AW(0)}, 0xfff, v{AV(0)}
    v_xor_b32 v{AW(0)}, s{S_T0}, v{AW(0)}
    """)
    for T in range(1, 8):
        A(f"v_xor_b32 v{AW(T)}, {T << 5}, v{AW(0)}")
    A(f"""
    s_add_u32 s{S_T0}, s{S_LWB}, {BRING}
    v_lshl_add_u32 v{AB(0)}, v{V_TMP}, 4, s{S_T0}
    v_mov_b32 v{AK(1)}, 1
    """)
    if cfg.flag_after < 0:
        A(flag)
        stamp()
    A("s_barrier")
    A(gemm_reads(0, 0, "o", with_b=False))
    wstep = [f"v_add_u32 v{AW(T)}, {WSLOT}, v{AW(T)}" for T in range(8)]
    for hs in range(0 if cfg.bdirect else 4):
        if hs == cfg.flag_after:
            A(flag)
            stamp()
        fill = []
        if hs < 3:
            fill += spread(gemm_reads((hs + 1) & 1, (hs + 1) & 1, "o", with_b=False), 0, 15)
        if hs in (0, 2):
            fill += spread(wstep, 16, 23)
        A(weave(gemm_mfma(cfg, hs & 1, bsrc=lambda t: QF(hs, t), zero=(hs == 0)), fill))
    xaddr = (f"""
    s_mul_i32 s{S_T0}, s{S_W}, 9216
    s_add_u32 s{S_T0}, s{S_T0}, {WS_X}
    v_lshl_add_u32 v{AB(1)}, v{V_TMP}, 4, s{S_T0}
    v_and_b32 v{AK(3)}, 3, v{V_TMP}
    s_lshl_b32 s{S_T0}, s{S_W}, 9
    s_add_u32 s{S_T0}, s{S_T0}, {WS_INBOX}
    v_lshl_add_u32 v{AK(2)}, v{AK(3)}, 7, s{S_T0}
    v_xor_b32 v{AK(0)}, s2, v{AK(3)}
    v_lshl_add_u32 v{AK(0)}, v{AK(0)}, 11, v{AK(2)}
    v_max_u32 v{AK(3)}, 1, v{AK(3)}
    s_lshl_b32 s{S_T1}, s2, 11
    s_add_u32 s{S_T0}, s{S_T0}, s{S_T1}
    v_lshl_add_u32 v{AK(2)}, v{AK(3)}, 7, s{S_T0}
    v_and_b32 v{AV(0)}, 15, v{V_TMP}
    v_bfe_u32 v{AV(1)}, v{V_TMP}, 4, 1
    v_bfe_u32 v{AV(2)}, v{V_TMP}, 5, 1
    s_mul_i32 s{S_T0}, s{S_BP}, 192
    s_mul_i32 s{S_T1}, s{S_W}, 48
    s_add_u32 s{S_T0}, s{S_T0}, s{S_T1}
    s_lshl_b32 s{S_T0}, s{S_T0}, 12
    s_lshl_b32 s{S_T1}, s{S_BLK}, 11
    s_add_u32 s{S_T0}, s{S_T0}, s{S_T1}
    s_lshl_b32 s{S_T1}, s{S_NU}, 8
    s_add_u32 s{S_T0}, s{S_T0}, s{S_T1}
    s_lshl_b32 s{S_T1}, s{S_HG}, 6
    s_add_u32 s{S_T0}, s{S_T0}, s{S_T1}
    v_lshl_add_u32 v{AV(0)}, v{AV(0)}, 12, s{S_T0}
    v_lshl_add_u32 v{AV(0)}, v{AV(1)}, 5, v{AV(0)}
    v_lshl_add_u32 v{AV(0)}, v{AV(2)}, 4, v{AV(0)}
    """)
    if cfg.wideflag:
        xaddr += f"""v_bfe_u32 v{AK(3)}, v{V_TMP}, 3, 2
        v_xor_b32 v{AK(0)}, s2, v{AK(3)}
        v_lshlrev_b32 v{AK(0)}, 11, v{AK(0)}
        v_lshl_add_u32 v{AK(0)}, v{AK(3)}, 7, v{AK(0)}
        v_and_b32 v{AK(3)}, 7, v{V_TMP}
        v_lshl_add_u32 v{AK(0)}, v{AK(3)}, 4, v{AK(0)}
        s_lshl_b32 s{S_T0}, s{S_W}, 9
        s_add_u32 s{S_T0}, s{S_T0}, {WS_INBOX}
        v_add_u32 v{AK(0)}, s{S_T0}, v{AK(0)}
        """ + "".join(f"v_mov_b32 v{AV(4) + k}, 1\n" for k in range(4))
    if not cfg.bdirect:
        A(xaddr + f"s_mov_b32 s{S_SLOT}, 2")
    if cfg.wb:
        A(f"""s_and_b32 s{S_T0}, s2, {cfg.wbmask}
        s_or_b32 s{S_T0}, s{S_T0}, s{S_W}
        s_cselect_b32 s{S_FLAG}, 0, {cfg.wb}""")
        rare.append(["L_wb:", "buffer_wbl2 sc1", "s_branch L_wbdone"])
    XF = QF
    after = []
    mf = gemm_mfma(cfg, 1)
    if cfg.bdirect:
        assert cfg.par in (0, 1) and not cfg.oord and cfg.flag_after in (-1, 1)
        ring = [FB(0, 0), FB(1, 0)] + [QF(s, 0) for s in range(4)]
        BR = lambda h: (lambda t: ring[(h - 4) % 6] + 4 * t)
        rel = o_rel(cfg)[2:]
        tbl = sum(r << (4 * n) for n, r in enumerate(rel))
        nxt = [f"s_add_u32 s{S_BO}, s{S_TBL}, s{S_J2}", f"s_and_b32 s{S_BO}, s{S_BO}, 15", f"s_mul_i32 s{S_BO}, s{S_BO}, 24576",
               f"s_lshr_b64 s[{S_TBL}:{S_TBL + 1}], s[{S_TBL}:{S_TBL + 1}], 4"]
        bload = lambda h: [f"buffer_load_dwordx4 {v4(BR(h)(t))}, v{AV(3) if h & 1 else AB(0)}, {srd(sWS)}, s{S_BO} offen offset:{t * 1024} {cfg.pol_ob}" for t in T3]
        bgaps = [int(x) for x in cfg.bgaps.split(".")]
        sal = [f"s_add_u32 s{S_SLOT}, s{S_SLOT}, 1", f"s_and_b32 s{S_SLOT}, s{S_SLOT}, 3", f"s_cselect_b32 s{S_DW}, {WSLOT}, s{S_T2}"]
        val = [f"v_add_u32 v{AW(T)}, s{S_DW}, v{AW(T)}" for T in range(8)]

        def half(h, extra=()):
            b = h & 1
            fill = []
            if 2 <= h <= 26:
                fill += (list(zip(range(4, 8), nxt)) if b else []) + list(zip(bgaps, bload(h + 5)))
            if b:
                fill += spread(gemm_reads(0, 0, "o", with_b=False), -1, 14) + [(22, "s_waitcnt lgkmcnt(0)")]
            else:
                fill += spread(gemm_reads(1, 1, "o", with_b=False), 0, 15) + list(zip(range(3), sal)) + list(zip((8, 9, 10, 11, 12, 13, 14, 16), val))
                fill += [(22, "s_waitcnt lgkmcnt(0)")] + ([(22, "s_barrier")] if 2 <= h <= 28 or (h == 0 and cfg.w1late) else [])
            if 3 <= h <= 30:
                fill += [(23, f"s_waitcnt vmcnt({3 * min(4, 30 - h)})")]
            return weave(gemm_mfma(cfg, b, bsrc=BR(h), zero=(h == 0)), fill + list(extra))

        A(f"""s_mul_i32 s{S_T0}, s{S_GRP}, 393216
        s_add_u32 s{S_T0}, s{S_T0}, s{S_LWB}
        v_lshl_add_u32 v{AB(0)}, v{V_TMP}, 4, s{S_T0}
        v_add_u32 v{AV(3)}, 3072, v{AB(0)}
        s_mov_b32 s{S_TBL}, {tbl & 0xffffffff}
        s_mov_b32 s{S_TBL + 1}, {tbl >> 32}
        s_lshl_b32 s{S_J2}, s{S_J}, 1
        s_mov_b32 s{S_SLOT}, 0""")
        xa = [x.strip() for x in xaddr.split("\n") if x.strip()]
        A(half(0))
        if cfg.flag_after == 1:
            A(flag)
            stamp()
        A(half(1, spread(xa, 0, 21)))
        A(["s_barrier"] + nxt + bload(4) + bload(5) + nxt + bload(6))
        A(half(2))
        A(f"s_mov_b32 s{S_CNT}, 4\n.p2align 3")
        body = P.add(["L_oloop:"] + half(3) + half(4) + half(5) + half(6) + half(7)
                     + half(8, [(5, f"s_sub_u32 s{S_CNT}, s{S_CNT}, 1"), (6, f"s_cmp_lg_u32 s{S_CNT}, 0")]) + ["s_cbranch_scc1 L_oloop"])
        tr.extend(body + body)
        XF = lambda i, t: QF(0, t) if i == 0 else 144 + ((i - 1) * 3 + t) * 4
        mf = gemm_mfma(cfg, 1, bsrc=BR(31))
        if not cfg.defer:
            for h in range(27, 31):
                A(half(h))
        else:
            rd = lambda h, T, reg: [f"ds_read_b64_tr_b16 {v2(reg + 2 * u)}, v{AW(T)} offset:{(h - 28) * 8192 + u * 4096}" for u in range(2)]
            own = lambda h, T: {27: FA(1, T), 28: FA(0, T), 29: QF(2, 0) + 4 * T, 30: FA(1, T), 31: FA(0, T)}[h]
            ownrd = lambda h: [x for T in range(2) for x in rd(h, T, own(h, T))]
            for h in range(27, 31):
                b = h & 1
                reads = [x for T in range(2, 8) for x in rd(h + 1, T, FA(1 - b, T))] + ownrd(28 + (h - 27) // 2)[2 * (1 - b):2 * (1 - b) + 2]
                fill = spread(reads, -1 if b else 0, 12 if b else 13)
                fill += [(16, "s_waitcnt lgkmcnt(2)")] + ([(16, "s_barrier")] if h == 28 else []) + [(17, f"s_waitcnt vmcnt({3 * (30 - h)})")]
                A(weave(gemm_mfma(cfg, b, bsrc=BR(h))[6:], fill))
            XF = lambda i, t: {0: QF(0, t), 1: FA(0, 2 + t), 2: FA(0, 5 + t), 3: FA(1, 2 + t)}[i]
            late = [f"{MFMA} {v4(ACC(T, t))}, {v4(own(h, T))}, {v4(BR(h)(t))}, {v4(ACC(T, t))}" for h in range(27, 32) for T, t in order(2, cfg.snake)]
            mf = late[:6] + mf[6:]
            after = weave(late[6:], list(zip(range(0, 4), ownrd(30))) + list(zip(range(6, 10), ownrd(31))))
    else:
        A("s_barrier")
        A(gemm_reads(0, 0, "o"))
        gemm_loop(P, tr, cfg, "o", "L_oloop", 14)
    fill = []
    for i in range(1, 4):
        so = [f"s_xor_b32 s{S_T0}, s2, {i}", f"s_mul_i32 s{S_T0}, s{S_T0}, 36864", f"s_add_u32 s{S_T0}, s{S_T0}, {(i - 1) * 3072}"]
        st = [f"buffer_store_dwordx4 {v4(XF(i, t))}, v{AB(1)}, {srd(sWS)}, s{S_T0} offen offset:{t * 1024} sc1" for t in T3]
        fill += [(6 * i + 6, x) for x in st] + list(zip(range(6 * i + 1, 6 * i + 4), so)) + spread(acc_to_frag(i, XF), 6 * i, 6 * i + 5)
    last = [x for g, x in fill if g == 24]
    A(weave(mf[6:] + mf[:6], [(g, x) for g, x in fill if g < 24]) + last)
    stamp()
    A(after)
    xload = lambda k, so: f"buffer_load_dwordx4 {v4(24 + 4 * k)}, v{AB(1)}, {srd(sWS)}, s{so} offen offset:{(k % 3) * 1024} sc1"

    def xadd(i):
        for k in range(3 * i, 3 * i + 3):
            for d in range(4):
                src, dst = 24 + 4 * k + d, ACC(d >> 1, k % 3) + 2 * (d & 1)
                A(f"""v_lshlrev_b32 v64, 16, v{src}
                v_and_b32 v65, 0xffff0000, v{src}
                v_pk_add_f32 {v2(dst)}, {v2(dst)}, v[64:65]""")

    so = (S_T0, S_T1, S_T2)
    xbase = f"s_mul_i32 s{S_T0}, s2, 36864\ns_add_u32 s{S_T1}, s{S_T0}, 3072\ns_add_u32 s{S_T2}, s{S_T0}, 6144"
    if not cfg.tag:
        if cfg.wideflag:
            A(["s_mov_b32 exec_lo, 0xffffff00", "s_mov_b32 exec_hi, 0", "s_waitcnt vmcnt(0)",
               f"buffer_store_dwordx4 {v4(AV(4))}, v{AK(0)}, {srd(sWS)}, 0 offen sc1", "s_mov_b64 exec, -1"])
        else:
            A(["s_waitcnt vmcnt(0)", "s_mov_b64 exec, 14", f"buffer_store_dword v{AK(1)}, v{AK(0)}, {srd(sWS)}, 0 offen sc1", "s_mov_b64 exec, -1"])
        stamp()
        poll_loop(P, tr, "poll2", V_CHK, AK(2))
        stamp()
        A(xbase)
        A([xload(k, so[k // 3]) for k in range(9)])
        for i in range(3):
            xadd(i)
    else:
        stamp()
        A(xbase)
        A(f"s_mov_b32 s{S_SPIN}, 0")
        if cfg.tag == 2:
            probe = P.add(["L_probe:"] + [xload(3 * i + 2, so[i]) for i in range(3)] + f"""s_add_u32 s{S_SPIN}, s{S_SPIN}, 1
            s_cmp_ge_u32 s{S_SPIN}, {SPIN_MAX}
            s_cbranch_scc1 L_probed
            s_waitcnt vmcnt(0)
            v_max3_u32 v64, v35, v47, v59
            v_cmp_eq_u32 vcc, -1, v64
            s_cbranch_vccnz L_probe""".split("\n"))
            tr.extend(probe + probe)
            A("L_probed:")
        first = [xload(k, so[k // 3]) for k in range(9) if cfg.tag == 1 or k % 3 != 2]
        A(first)
        for i in range(3):
            b = 24 + 12 * i
            chk2 = ([f"v_max3_u32 v64, v{b}, v{b + 1}, v{b + 2}"] + [f"v_max3_u32 v64, v{b + k}, v{b + k + 1}, v64" for k in range(3, 11, 2)]
                    + [f"v_max_u32 v64, v{b + 11}, v64", "v_cmp_eq_u32 vcc, -1, v64"])
            A([f"L_x{i}:"] + chk2 + [f"s_cbranch_vccnz L_xr{i}", f"L_xok{i}:"])
            rare.append([f"L_xr{i}:"] + [xload(k, so[i]) for k in range(3 * i, 3 * i + 3)]
                        + [f"s_add_u32 s{S_SPIN}, s{S_SPIN}, 1", f"s_cmp_lt_u32 s{S_SPIN}, {SPIN_MAX}", "s_waitcnt vmcnt(0)",
                           f"s_cbranch_scc1 L_x{i}", f"s_branch L_xok{i}"])
            if i == 2:
                stamp()
            xadd(i)
    A(acc_to_frag(0))
    A([f"v_permlane16_swap_b32 v{QF(0, t) + h}, v{QF(0, t) + 2 + h}" for t in T3 for h in range(2)])
    if cfg.linout:
        A(f"s_lshl_b32 s{S_T0}, s2, 2\ns_add_u32 s{S_T0}, s{S_T0}, s{S_W}\ns_mul_i32 s{S_T0}, s{S_T0}, 3072\nv_lshl_add_u32 v{AV(0)}, v{V_TMP}, 4, s{S_T0}")
    for t in T3:
        A(f"s_mov_b32 s{S_T0}, {t * (1024 if cfg.linout else 65536)}\nbuffer_store_dwordx4 {v4(QF(0, t))}, v{AV(0)}, {srd(sOUT)}, s{S_T0} offen {cfg.pol_out}")
    if cfg.stamps:
        A("s_waitcnt vmcnt(0)")
        stamp()
        A(f"v_mov_b32 v1, 0")
        for k in range(nst[0]):
            A(f"v_writelane_b32 v1, s{S_ST + 2 * k}, {k}")
        A(f"""s_lshl_b32 s{S_T0}, s2, 3
        s_add_u32 s{S_T0}, s{S_T0}, s{S_WAVE}
        s_lshl_b32 s{S_T0}, s{S_T0}, 8
        s_add_u32 s{S_T0}, s{S_T0}, {WS_STAMP}
        v_lshl_add_u32 v2, v{V_TMP}, 2, s{S_T0}
        buffer_store_dword v1, v2, {srd(sWS)}, 0 offen""")
    A("L_exit:\ns_endpgm")
    blocks = {}
    for blk in rare:
        blocks[blk[0][:-1]] = P.add(blk)
    tr2 = []
    skip = None
    for ins in tr:
        if skip:
            if ins.text == skip + ":":
                skip = None
            else:
                continue
        tr2.append(ins)
        if ins.op.startswith("s_cbranch") and ins.text.split()[1] in blocks:
            blk = blocks[ins.text.split()[1]]
            tr2 += blk
            skip = blk[-1].text.split()[1]
    assert skip is None
    return tr, tr2


def generate(cfg):
    P = Prog()
    pre = P.add(("s_memrealtime s[96:97]\n" if cfg.stamps else "") + "s_cmp_ge_u32 s2, 256\ns_cbranch_scc1 L_exit")
    if cfg.remap:
        pre += P.add("""s_bfe_u32 s4, s2, 0x20003
        s_lshr_b32 s5, s2, 5
        s_and_b32 s2, s2, 7
        s_lshl_b32 s4, s4, 6
        s_lshl_b32 s5, s5, 3
        s_or_b32 s2, s2, s4
        s_or_b32 s2, s2, s5""")
    pre += prologue(P, cfg)
    tl = loader(P, cfg)
    tc, tc2 = compute(P, cfg)
    body = P.finish([pre + tc, pre + tc2] + [pre + t for t in tl])
    if cfg.align:
        body = align8(body)
    return (HEADER + DOC + "; @launch grid=(256,1,1) block=(512,1,1) lds=163840\n"
            + '.amdgcn_target "amdgcn-amd-amdhsa--gfx950"\n.text\n'
            + f".globl {NAME}_kernel\n.p2align 8\n.type {NAME}_kernel,@function\n{NAME}_kernel:\n" + body
            + f"""L_text_end:
.section .rodata,"a"
.p2align 6
.amdhsa_kernel {NAME}_kernel
  .amdhsa_next_free_vgpr 256
  .amdhsa_next_free_sgpr 102
  .amdhsa_accum_offset 256
  .amdhsa_group_segment_fixed_size 0
  .amdhsa_kernarg_size 104
  .amdhsa_user_sgpr_count 2
  .amdhsa_user_sgpr_kernarg_segment_ptr 1
  .amdhsa_system_sgpr_workgroup_id_x 1
  .amdhsa_float_denorm_mode_32 3
.end_amdhsa_kernel
""")


def parse(args):
    kw = {}
    for a in args:
        k, v = a.split("=")
        kw[k] = float(v) if k == "thr" else (int(v) if v.lstrip("-").isdigit() and not k.startswith(("pre", "ptouch", "spre", "bgaps", "order", "kbits")) else v.replace("+", " "))
    return Cfg(**kw)


if __name__ == "__main__":
    open(sys.argv[1], "w").write(generate(parse(sys.argv[2:])))
```

```python
import re

TRANS = ("v_exp_f32", "v_log_f32", "v_rcp_f32", "v_rsq_f32", "v_sqrt_f32")


def regs(tok):
    tok = tok.strip()
    tok = re.sub(r"^-|^abs\(|\)$", "", tok)
    m = re.fullmatch(r"([vsa])(\d+)", tok)
    if m:
        return [(m.group(1), int(m.group(2)))]
    m = re.fullmatch(r"([vsa])\[(\d+):(\d+)\]", tok)
    if m:
        return [(m.group(1), i) for i in range(int(m.group(2)), int(m.group(3)) + 1)]
    if tok == "vcc":
        return [("s", 106), ("s", 107)]
    if tok == "m0":
        return [("s", 124)]
    if tok == "exec":
        return [("s", 126), ("s", 127)]
    return []


class I:
    def __init__(self, text):
        self.text = text
        self.nop = 0
        self.lgkm = None
        self.vm = None
        t = text.split(";")[0].strip()
        self.label = t.endswith(":") or t.startswith(".") or not t
        self.op = t.split()[0] if t else ""
        rest = re.sub(r"\s(op_sel|op_sel_hi|neg_lo|neg_hi):\[[^\]]*\]", "", t[len(self.op):]).strip()
        ops = [o.strip() for o in rest.split(",")] if rest else []
        if ops:
            last = ops[-1].split()
            self.mods = last[1:]
            ops[-1] = last[0]
        else:
            self.mods = []
        R = [regs(o) for o in ops]
        flat = lambda xs: [r for x in xs for r in x]
        op = self.op
        self.rd, self.wr, self.srcc, self.srcab, self.sdata = [], [], [], [], []
        self.kind = "other"
        if self.label:
            self.kind = "label"
        elif op.startswith("v_mfma"):
            self.kind = "mfma"
            self.wr, self.srcab, self.srcc = R[0], R[1] + R[2], R[3]
            self.rd = self.srcab + self.srcc
            self.passes = 4 if "16x16" in op else 8
        elif op.startswith(("ds_read", "ds_bpermute")):
            self.kind = "ds"
            self.wr, self.rd = R[0], flat(R[1:])
        elif op.startswith("ds_write"):
            self.kind = "ds"
            self.rd = flat(R)
        elif op.startswith("buffer_load"):
            self.kind = "vmem"
            if "lds" in self.mods:
                self.rd = flat(R) + [("s", 124)]
            else:
                self.wr, self.rd = R[0], flat(R[1:])
        elif op.startswith("buffer_store") or op.startswith("buffer_atomic"):
            self.kind = "vmem"
            self.rd = flat(R)
            if op.endswith("x4") or op.endswith("x3"):
                self.sdata = R[0]
        elif op.startswith("global_load"):
            self.kind = "vmem"
            self.wr, self.rd = R[0], flat(R[1:])
        elif op.startswith("v_"):
            self.kind = "valu"
            if op.startswith("v_permlane"):
                self.wr = self.rd = flat(R)
            else:
                self.wr, self.rd = R[0], flat(R[1:])
                if op.startswith(("v_fmac", "v_writelane")):
                    self.rd = self.rd + R[0]
        elif op.startswith("s_"):
            self.kind = "salu"
            if op.startswith(("s_cmp", "s_bitcmp")):
                self.rd = flat(R)
            elif op.startswith(("s_waitcnt", "s_barrier", "s_nop", "s_branch", "s_cbranch", "s_endpgm", "s_setprio", "s_sleep")):
                pass
            else:
                self.wr, self.rd = (R[0] if R else []), flat(R[1:])
                if "saveexec" in op:
                    self.wr = self.wr + regs("exec")
            if op.startswith(("s_load", "s_memtime", "s_memrealtime")):
                self.kind = "smem"
        self.trans = op.startswith(TRANS)

    def states(self):
        if self.kind == "label":
            return 0
        if self.op == "s_nop":
            return int(self.text.split()[1]) + 1
        return 1

    def lines(self):
        out = []
        w = []
        if self.vm is not None:
            w.append(f"vmcnt({self.vm})")
        if self.lgkm is not None:
            w.append(f"lgkmcnt({self.lgkm})")
        if w:
            out.append("    s_waitcnt " + " ".join(w))
        n = self.nop
        while n > 0:
            k = min(n, 16)
            out.append(f"    s_nop {k - 1}")
            n -= k
        out.append(self.text if self.kind == "label" else "    " + self.text)
        return out


def need(p, c):
    n = 0
    pw, cr, cw = set(p.wr), set(c.rd), set(c.wr)
    pv = {r for r in pw if r[0] != "s"}
    ps = {r for r in pw if r[0] == "s"}
    if p.kind == "valu":
        if c.kind == "mfma" and pv & cr:
            n = max(n, 2)
        if c.op.startswith("v_permlane") and pv & cr:
            n = max(n, 2)
        if "dpp" in c.op and pv & cr:
            n = max(n, 2)
        if c.op.startswith(("v_readfirstlane", "v_readlane")) and pv & cr:
            n = max(n, 1)
        if p.trans and c.kind == "valu" and not c.trans and pv & cr:
            n = max(n, 1)
        if c.kind == "valu" and ps & cr:
            n = max(n, 2)
        if c.kind == "vmem" and ps & cr:
            n = max(n, 5)
        if c.kind == "salu" and ps & cr:
            n = max(n, 1)
    if p.kind == "mfma":
        big = {4: 8, 8: 12}[p.passes]
        if c.kind == "mfma":
            if pv & set(c.srcab):
                n = max(n, big)
            if pv & set(c.srcc) and c.srcc != p.wr:
                n = max(n, big - 2)
        elif c.kind in ("valu", "vmem", "ds") and pv & (cr | cw):
            n = max(n, big)
        if c.kind == "valu" and set(p.srcc) & cw:
            n = max(n, {4: 3, 8: 7}[p.passes])
    if p.kind == "salu" and ("s", 124) in pw and c.kind == "vmem" and ("s", 124) in cr:
        n = max(n, 1)
    if p.sdata and set(p.sdata) & cw:
        n = max(n, 2)
    return n


def fix_trace(trace):
    changed = False
    lds, vm = [], []
    for ins in trace:
        touch = set(ins.rd) | (set() if ins.kind == "vmem" else set(ins.wr))
        for q, attr, cap in ((lds, "lgkm", 12), (vm, "vm", 60)):
            idx = max((k for k, o in enumerate(q) if set(o.wr) & touch), default=None)
            if idx is not None:
                n = min(len(q) - 1 - idx, cap)
                cur = getattr(ins, attr)
                if cur is None or n < cur:
                    setattr(ins, attr, n)
                    changed = True
            cur = getattr(ins, attr)
            if cur is not None:
                del q[: max(0, len(q) - cur)]
        if ins.op == "s_waitcnt":
            m = re.search(r"lgkmcnt\((\d+)\)", ins.text)
            if m:
                del lds[: max(0, len(lds) - int(m.group(1)))]
            m = re.search(r"vmcnt\((\d+)\)", ins.text)
            if m:
                del vm[: max(0, len(vm) - int(m.group(1)))]
        if ins.kind == "ds":
            lds.append(ins)
        if ins.kind == "vmem":
            vm.append(ins)
    for k, c in enumerate(trace):
        if c.kind == "label":
            continue
        dist = c.nop + (1 if (c.lgkm is not None or c.vm is not None) else 0)
        j = k - 1
        while j >= 0 and dist < 13:
            p = trace[j]
            n = need(p, c)
            if n > dist:
                c.nop += n - dist
                dist = n
                changed = True
            dist += p.states() + p.nop + (1 if (p.lgkm is not None or p.vm is not None) else 0)
            j -= 1
    return changed


class Prog:
    def __init__(self):
        self.code = []

    def add(self, text):
        out = []
        if isinstance(text, (list, tuple)):
            for t in text:
                out += self.add(t)
            return out
        for ln in text.split("\n"):
            ln = ln.strip()
            if ln:
                ins = I(ln)
                self.code.append(ins)
                out.append(ins)
        return out

    def finish(self, traces):
        for _ in range(50):
            if not any([fix_trace(t) for t in traces]):
                break
        else:
            raise RuntimeError("no fixpoint")
        seen = {id(i) for t in traces for i in t}
        missing = [i.text for i in self.code if id(i) not in seen and i.kind != "label"]
        assert not missing, missing[:5]
        return "\n".join(l for i in self.code for l in i.lines()) + "\n"


def weave(main, fillers):
    out = []
    by = {}
    for s, t in fillers:
        by.setdefault(min(s, len(main) - 1), []).append(t)
    out += by.get(-1, [])
    for k, m in enumerate(main):
        out.append(m)
        out += by.get(k, [])
    return out


def spread(items, lo, hi):
    n = len(items)
    return [(lo + (k * (hi - lo + 1)) // n, it) for k, it in enumerate(items)]


def cost(text):
    op = text.split()[0]
    if op.endswith(":"):
        return 0
    return 8 if op.startswith(TRANS) else 4


def balance(main, fixed, streams, head=0):
    n = len(main)
    gaps = {g: [] for g in range(-1, n)}
    for g, t in fixed:
        gaps[g].append(t)
    pos = [0] * len(streams)
    left = sum(cost(t) for _, t in fixed if _ >= 0) + sum(cost(t) for st, _, _ in streams for t in st) - head
    for g in range(-1, n):
        fx = sum(cost(t) for t in gaps[g])
        target = head if g < 0 else left / (n - g)
        have = fx
        while True:
            cand = [k for k, (st, lo, hi) in enumerate(streams) if pos[k] < len(st) and lo <= g]
            if not cand:
                break
            press = lambda k: sum(cost(t) for t in streams[k][0][pos[k]:]) / (streams[k][2] - g + 1e-3)
            k = max(cand, key=press)
            t = streams[k][0][pos[k]]
            if have + cost(t) / 2 > target and press(k) <= max(target, 8):
                break
            gaps[g].append(t)
            have += cost(t)
            pos[k] += 1
        if g >= 0:
            left -= have
        else:
            left += head - (have - fx)
    assert all(pos[k] == len(streams[k][0]) for k in range(len(streams)))
    out = list(gaps[-1])
    for g in range(n):
        out.append(main[g])
        out += gaps[g]
    return out


VOP12 = ("v_exp_f32", "v_add_f32", "v_sub_f32", "v_mul_f32", "v_max_f32", "v_mov_b32", "v_add_u32", "v_rcp_f32",
         "v_lshlrev_b32", "v_and_b32", "v_xor_b32", "v_cmp_lt_f32", "v_lshrrev_b32", "v_min_u32", "v_max_u32", "v_mul_u32_u24", "v_or_b32")
INLINE = {str(i) for i in range(-16, 65)} | {"0.5", "1.0", "2.0", "4.0"}


def size_of(line):
    t = line.strip()
    op = t.split()[0]
    ops = [o.strip().split()[0] for o in t[len(op):].split(",") if o.strip()]
    lit = any((re.fullmatch(r"-?\d+|0x[0-9a-f]+", o) and str(int(o, 0)) not in INLINE) or (o.startswith("L_") and op.startswith("v_")) for o in ops)
    if op.startswith("s_"):
        if op.startswith(("s_load", "s_mem")):
            return 8, False
        if op.startswith(("s_waitcnt", "s_nop", "s_barrier", "s_branch", "s_cbranch", "s_endpgm", "s_setprio", "s_sleep", "s_getreg")):
            return 4, False
        return (8 if lit else 4), False
    if op in VOP12:
        if lit or "-v" in t or "-s" in t or (len(ops) == 3 and not ops[2].startswith("v")):
            return 8, False
        return 4, True
    if op.startswith(("v_permlane", "v_readfirstlane", "v_cmp", "v_cndmask", "v_mov_b64")):
        return (8 if lit else 4), False
    return 8, False


def align8(text):
    lines = text.split("\n")
    off = 0
    cand = None
    for k, ln in enumerate(lines):
        t = ln.strip()
        if not t or t.endswith(":") or t.startswith(";"):
            continue
        if t.startswith(".p2align"):
            off, cand = 0, None
            continue
        sz, wide = size_of(t)
        if sz == 8:
            if off and cand is not None:
                op = lines[cand].split()[0]
                lines[cand] = lines[cand].replace(op, op + "_e64", 1)
                off = 0
            elif off:
                run = [x.strip() for x in lines[k:k + 8]]
                if all(x.startswith("v_") and not x.startswith("v_mfma") and size_of(x)[0] == 8 for x in run):
                    lines[k] = "    s_nop 0\n" + lines[k]
                    off = 0
            cand = None
        else:
            off ^= 4
            if wide:
                cand = k
    return "\n".join(lines)
```

```python
import struct, sys
from asmlib import Prog, weave, spread, balance, align8

NAME = "concat_heads__mha_block_cached__gqa_block_cached__near_ridge"
HEADER = open("cdna_kernels/" + NAME + ".s.ref").read().split("; Override launch")[0]

DOC = """; One launch, 256 workgroups (one per CU) of 4 compute waves + 4 loader waves, all MFMA work in 16x16x32 bf16.
;   1. Q^T = Wq^T x^T      16 stages of K=64 through an LDS ring (LDS-DMA, XOR-swizzled, transposing LDS reads)
;   3. out^T = Wo^T O^T    the eight members of a head group exchange O through d_ws; each computes 128 columns over
;   4. reduction           the four head groups exchange partial tiles through d_ws; each finishes 32 columns.
; only after those reports are seen. Stores are write-through unless the reports show the whole group on one die.
"""

WS_O, WS_X, WS_INBOX, WS_STAMP, WS_DUMP = 0, 16 << 20, 48 << 20, 200 << 20, 64 << 20
WRING, BRING, KRING, VRING = 0, 65536, 65536, 114688
WSLOT, BSLOT, ASLOT = 16384, 24576, 16384
SPIN_MAX = 400000
T3 = range(3)

S_WAVE, sX, sK, sV, sWQ, sWO, sOUT, sWS, sDBG = 3, 20, 24, 28, 32, 36, 40, 44, 48
S_BLK, S_HG, S_J, S_BP, S_NU, S_W, S_H, S_DB = 52, 53, 54, 55, 56, 57, 58, 59
S_T0, S_T1, S_T2, S_T3, S_CNT, S_DW, S_C, S_SLOT = 60, 61, 62, 63, 64, 65, 66, 68
S_LWB, S_LWW, S_ROT, S_J2, S_SPIN, S_FLAG, S_XCC, S_GRP = 69, 70, 71, 72, 73, 74, 75, 76
S_MASK, S_PC = 77, 78
S_SB = 94
S_TBL, S_BO = 92, 94
S_KR = 67
S_ST = 80
srd = lambda r: f"s[{r}:{r+3}]"
v4 = lambda r: f"v[{r}:{r+3}]"
v2 = lambda r: f"v[{r}:{r+1}]"
f32 = lambda x: "0x%08x" % struct.unpack("<I", struct.pack("<f", x))[0]
MFMA = "v_mfma_f32_16x16x32_bf16"

ACC = lambda T, t: (T * 3 + t) * 4
QF = lambda s, t: 96 + (s * 3 + t) * 4
FA = lambda b, T: 144 + 44 * b + 4 * T
FB = lambda b, t: 144 + 44 * b + 32 + 4 * t
AW = lambda T: 232 + T
AB = lambda s: 240 + s
V_CHK, V_TMP = 242, 243
FR = lambda f: 144 + 4 * f
SS = lambda kt, t: 176 + (kt * 3 + t) * 4
PP = lambda t: 200 + 4 * t
NM = lambda t: 212 + 4 * t
VL = lambda t: 224 + 2 * t
VX = 230
V_OST, V_FLG = 241, 231
VD = lambda t: 232 + t
VT = lambda k: 235 + k
VA = lambda t: 238 + t
AK = lambda s: 244 + s
AV = lambda T: 248 + T


class Cfg:
    def __init__(self, **kw):
        self.pol_x = ""
        self.pol_wq = ""
        self.pol_kv = "nt"
        self.pol_wo = ""
        self.pol_ob = "sc1"
        self.rot = 7
        self.stamps = 0
        self.flag_after = 1
        self.pre = "16.16.16.0.0.0.0.0.0.0.0.0.4.4"
        self.last = 29
        self.win = 5
        self.win16 = 8
        self.wo_at = "31.31.33.33"
        self.qd = 2
        self.thr = 8.0
        self.local = 1
        self.pk = 0
        self.snake = 1
        self.align = 1
        self.prio = 0
        self.remap = 0
        self.nurot = 1
        self.otouch = 0
        self.stag = 0
        self.s1pre = 36
        self.s1win = 8
        self.s0win = 8
        self.s0late = 8
        self.s0sw = 28
        self.prog = 1
        self.pre1 = '16.14.12.10'
        self.tag = 0
        self.oclear = 0
        self.qres = 2
        self.qskipb = ''
        self.qskip = '3.4'
        self.earlyb = 0
        self.lalign = 6
        self.lpad = 0
        self.xprog = 0
        self.apoll = 0
        self.split = 0
        self.fgap = 12
        self.wideflag = 0
        self.psleep = 0
        self.kbits = '13.14.11.12.10.15.16'
        self.hmap = 3
        self.pol_t = 'sc1'
        self.order = '48c59d26ae37bf'
        self.clear_at = 0
        self.clear_b = 0
        self.krot = 0
        self.ksh = 0
        self.sigma = 5
        self.xtouch = 1
        self.hgrot = 3
        self.lazyp = 2
        self.w1late = 0
        self.linout = 0
        self.spreadc = 0
        self.latefetch = 0
        self.spreadsh = 4
        self.nocount = 0
        self.cls = 3
        self.clsinv = 1
        self.winlate = 0
        self.late = 27
        self.wwin = 0
        self.defer = 2
        self.bdirect = 1
        self.bgaps = '17.19.21'
        self.bwin = 0
        self.afirst = 0
        self.winb = 0
        self.lastb = 0
        self.par = 1
        self.spre = ''
        self.coop = ''
        self.coopw0 = 31
        self.promote = 0
        self.pol_out = ''
        self.ptouch = ''
        self.wb = 0
        self.wbmask = 0xf8
        self.oord = 0
        self.od = 2
        self.ctouch = 1
        self.count_at = 13
        self.fetch_at = 3
        self.chk_max = 50000
        self.__dict__.update(kw)


def o_rel(cfg):
    if cfg.order:
        r = [0, 1] + [int(c, 16) for c in cfg.order]
        assert sorted(r) == list(range(16))
        return r
    return [m if not cfg.par else (4 * (m >> 1) + (m & 1) if m < 8 else 4 * ((m - 8) >> 1) + (m & 1) + 2) for m in range(16)]


def head_of(cfg, dst, j, tmp):
    if cfg.hmap == 0:
        return f"s_lshl_b32 s{dst}, s{S_HG}, 3\ns_add_u32 s{dst}, s{dst}, s{j}"
    if cfg.hmap == 1:
        return f"s_lshl_b32 s{dst}, s{j}, 2\ns_add_u32 s{dst}, s{dst}, s{S_HG}"
    if cfg.hmap in (2, 3):
        g = f"s_and_b32 s{dst}, s{j}, 3" if cfg.hmap == 2 else f"s_lshr_b32 s{dst}, s{j}, 1"
        return f"{g}\ns_xor_b32 s{dst}, s{dst}, s{S_HG}\ns_lshl_b32 s{dst}, s{dst}, 3\ns_add_u32 s{dst}, s{dst}, s{j}"
    lo = cfg.hmap - 3
    return (f"s_lshr_b32 s{dst}, s{j}, {lo}\ns_lshl_b32 s{dst}, s{dst}, 2\ns_add_u32 s{dst}, s{dst}, s{S_HG}\ns_lshl_b32 s{dst}, s{dst}, {lo}\n"
            f"s_and_b32 s{tmp}, s{j}, {(1 << lo) - 1}\ns_add_u32 s{dst}, s{dst}, s{tmp}")


def lane_id(v):
    return f"v_mbcnt_lo_u32_b32 v{v}, -1, 0\nv_mbcnt_hi_u32_b32 v{v}, -1, v{v}"


def make_srd(items):
    return "\n".join(f"s_mov_b32 s{r}, s{p}\ns_mov_b32 s{r+1}, s{p+1}\ns_mov_b32 s{r+2}, {n}\ns_mov_b32 s{r+3}, 0x20000" for r, p, n in items)


def prologue(P, cfg):
    return P.add(f"""
    s_bfe_u32 s{S_BLK}, s2, 0x10002
    s_mul_i32 s{S_T0}, s{S_BLK}, 40
    s_load_dwordx8 s[4:11], s[0:1], s{S_T0}
    s_add_u32 s{S_T1}, s{S_T0}, 32
    s_load_dwordx2 s[12:13], s[0:1], s{S_T1}
    s_load_dwordx4 s[16:19], s[0:1], 88
    s_load_dwordx2 s[14:15], s[0:1], 80
    v_lshrrev_b32 v1, 6, v0
    v_and_b32 v0, 63, v0
    s_and_b32 s{S_HG}, s2, 3
    v_readfirstlane_b32 s{S_WAVE}, v1
    s_bfe_u32 s{S_J}, s2, 0x30003
    s_lshr_b32 s{S_BP}, s2, 6
    {head_of(cfg, S_H, S_J, S_T2)}
    s_and_b32 s{S_W}, s{S_WAVE}, 3
    s_mul_i32 s{S_LWB}, s{S_W}, 6144
    s_lshl_b32 s{S_LWW}, s{S_W}, 12
    s_cmp_lt_u32 s{S_WAVE}, 4
    s_cbranch_scc1 L_compute
    """)


def late_ids(cfg):
    return f"""s_mul_i32 s{S_NU}, s{S_BP}, {2 * cfg.nurot}
    s_add_u32 s{S_NU}, s{S_NU}, s{S_J}
    s_and_b32 s{S_NU}, s{S_NU}, 7
    {f"s_xor_b32 s{S_NU}, s{S_NU}, s{S_BLK}" if cfg.sigma & 4 else ""}
    {f"s_lshl_b32 s{S_NU}, s{S_NU}, 2" if cfg.sigma & 3 else ""}
    {f"s_lshr_b32 s{S_NU}, {[0, 0x73625140, 0x75643120][cfg.sigma & 3]}, s{S_NU}" if cfg.sigma & 3 else ""}
    {f"s_and_b32 s{S_NU}, s{S_NU}, 7" if cfg.sigma & 3 else ""}
    s_and_b32 s{S_GRP}, s2, 7
    s_lshl_b32 s{S_T1}, s{S_BP}, 3
    s_add_u32 s{S_GRP}, s{S_GRP}, s{S_T1}"""


def x_touch(cfg, vaddr, vdst):
    if cfg.xtouch & 3 == 1:
        return [f"""s_lshr_b32 s{S_T0}, s2, 3
        s_lshl_b32 s{S_T0}, s{S_T0}, 2
        s_add_u32 s{S_T0}, s{S_T0}, s{S_HG}
        s_lshl_b32 s{S_T0}, s{S_T0}, 2
        s_add_u32 s{S_T0}, s{S_T0}, s{S_W}
        s_mul_i32 s{S_T0}, s{S_T0}, 3072
        v_min_u32 v{vaddr}, 23, v0
        v_lshlrev_b32 v{vaddr}, 7, v{vaddr}""", f"buffer_load_dword v{vdst}, v{vaddr}, {srd(sX)}, s{S_T0} offen"]
    return [f"""s_lshr_b32 s{S_T0}, s2, 3
    s_lshl_b32 s{S_T0}, s{S_T0}, 2
    s_add_u32 s{S_T0}, s{S_T0}, s{S_W}
    s_mul_i32 s{S_T0}, s{S_T0}, 12288
    s_add_u32 s{S_T1}, s{S_T0}, 6144
    v_min_u32 v{vaddr}, 47, v0
    v_lshlrev_b32 v{vaddr}, 7, v{vaddr}""", f"buffer_load_dword v{vdst}, v{vaddr}, {srd(sX)}, s{S_T0} offen",
            f"buffer_load_dword v{vdst}, v{vaddr}, {srd(sX)}, s{S_T1} offen"]


def code_touch(lane, vaddr, vdst):
    return f"""s_lshr_b32 s{S_T0}, s2, 3
    s_lshl_b32 s{S_T0}, s{S_T0}, 10
    v_and_b32 v{vaddr}, 7, v{lane}
    v_lshl_add_u32 v{vaddr}, v{vaddr}, 7, s{S_T0}
    v_min_u32 v{vaddr}, L_text_end-L_text-4, v{vaddr}
    global_load_dword v{vdst}, v{vaddr}, s[{S_PC}:{S_PC + 1}]"""


def poll_loop(P, tr, name, vdst, vaddr, mode=0):
    tr.extend(P.add(f"s_mov_b32 s{S_SPIN}, 0"))
    ld = f"buffer_load_dword v{vdst}, v{vaddr}, {srd(sWS)}, 0 offen sc1"
    if mode == 1:
        ld = f"v_mov_b32 v{vdst}, 0\nbuffer_atomic_or v{vdst}, v{vaddr}, {srd(sWS)}, 0 offen sc0"
    if mode == 2:
        ld += " nt"
    loop = P.add(f"""L_{name}:
    {ld}
    s_add_u32 s{S_SPIN}, s{S_SPIN}, 1
    s_cmp_ge_u32 s{S_SPIN}, {SPIN_MAX}
    s_cbranch_scc1 L_{name}_done
    s_waitcnt vmcnt(0)
    v_cmp_ne_u32 vcc, 1, v{vdst}
    s_cbranch_vccnz L_{name}""")
    tr.extend(loop + loop)
    tr.extend(P.add(f"L_{name}_done:"))


LX = lambda p: 8 + p
LW = lambda p: 14 + p
LK = lambda p: 18 + p
LV = lambda p: (22, 23, 34, 35)[p]
LWO = lambda p: 24 + p
LOB, LFLAG, LSTAMP, LPOLL = 28, 29, 30, 31
LDSW = lambda h: 1 + h
LTQ, LTO, LTB = 32, 33, 32
LPOOL = 36


def late_setup(A, cfg):
    kb = [int(x) for x in cfg.kbits.split(".")]
    padj = lambda p: ((p & 1) << kb[0]) + ((p >> 1) << kb[1]) - p * 1024
    assert min(padj(p) for p in range(4)) >= 0 and sorted(kb) == list(range(10, 17))
    A(f"""
    s_lshr_b32 s{S_T0}, s{S_W}, 1
    s_lshl_b32 s{S_T1}, s{S_BP}, 1
    s_add_u32 s{S_T0}, s{S_T0}, s{S_T1}
    s_lshl_b32 s{S_T0}, s{S_T0}, 5
    s_add_u32 s{S_T0}, s{S_T0}, s{S_H}
    s_lshl_b32 s{S_T0}, s{S_T0}, 17
    s_and_b32 s{S_T1}, s{S_W}, 1
    s_lshl_b32 s{S_T1}, s{S_T1}, {kb[2]}
    s_add_u32 s{S_T0}, s{S_T0}, s{S_T1}
    v_lshl_add_u32 v5, v1, 8, s{S_T0}
    v_xor_b32 v7, v2, v1
    """)
    for p in range(4):
        A(f"v_xor_b32 v3, {4 * p}, v7\nv_lshl_add_u32 v{LK(p)}, v3, 4, v5")
        if padj(p):
            A(f"v_add_u32 v{LK(p)}, {padj(p)}, v{LK(p)}")
    A(f"""
    v_lshl_add_u32 v{LV(0)}, v6, 4, v5
    v_xor_b32 v7, 8, v6
    v_lshl_add_u32 v{LV(1)}, v7, 4, v5
    v_add_u32 v{LV(2)}, {padj(2)}, v{LV(0)}
    v_add_u32 v{LV(3)}, {padj(3)}, v{LV(1)}
    v_add_u32 v{LV(1)}, {padj(1)}, v{LV(1)}
    {f"s_mov_b32 s{S_T0}, 0" if cfg.hmap else f"s_lshl_b32 s{S_T0}, s{S_HG}, 21"}
    s_lshl_b32 s{S_T1}, s{S_W}, 15
    s_add_u32 s{S_T0}, s{S_T0}, s{S_T1}
    s_lshl_b32 s{S_T1}, s{S_NU}, 8
    s_add_u32 s{S_T0}, s{S_T0}, s{S_T1}
    v_lshl_add_u32 v5, v1, 11, s{S_T0}
    v_add_u32 v{LTO}, s{S_T0}, v{LTO}
    v_lshl_add_u32 v{LWO(0)}, v6, 4, v5
    v_lshl_add_u32 v7, v7, 4, v5
    v_add_u32 v{LWO(1)}, {8192 - 1024}, v7
    v_add_u32 v{LWO(2)}, {2 * 8192 - 2048}, v{LWO(0)}
    v_add_u32 v{LWO(3)}, {3 * 8192 - 3072}, v7
    s_mul_i32 s{S_T0}, s{S_GRP}, 393216
    s_add_u32 s{S_T0}, s{S_T0}, s{S_LWB}
    v_lshl_add_u32 v{LOB}, v0, 4, s{S_T0}
    s_lshl_b32 s{S_T0}, s2, 11
    s_lshl_b32 s{S_T1}, s{S_W}, 9
    s_add_u32 s{S_T0}, s{S_T0}, s{S_T1}
    s_add_u32 s{S_T0}, s{S_T0}, {WS_INBOX}
    v_lshl_add_u32 v{LFLAG}, v4, 2, s{S_T0}
    s_lshl_b32 s{S_J2}, s{S_J}, 1
    s_add_u32 s{S_T0}, s{S_LWW}, {KRING}
    v_lshl_add_u32 v{LDSW(0)}, v0, 4, s{S_T0}
    v_add_u32 v{LDSW(1)}, {VRING - KRING}, v{LDSW(0)}
    """)


def loader(P, cfg):
    tr = []
    A = lambda t: tr.extend(P.add(t))
    A(f"""
    v_lshrrev_b32 v1, 4, v0
    v_and_b32 v2, 15, v0
    v_lshrrev_b32 v3, 3, v0
    v_and_b32 v4, 7, v0
    s_mul_i32 s{S_T0}, s{S_BP}, 192
    s_mul_i32 s{S_T1}, s{S_W}, 48
    s_add_u32 s{S_T0}, s{S_T0}, s{S_T1}
    s_lshl_b32 s{S_T0}, s{S_T0}, 11
    v_lshl_add_u32 v5, v3, 11, s{S_T0}
    v_xor_b32 v6, v4, v1
    v_lshl_add_u32 v{LX(0)}, v6, 4, v5
    v_xor_b32 v6, 4, v6
    v_lshl_add_u32 v7, v6, 4, v5
    """)
    for p in range(1, 6):
        A(f"v_add_u32 v{LX(p)}, {p * 16384 - (p % 4) * 1024}, v{7 if p & 1 else LX(0)}")
    A(f"""
    s_lshl_b32 s{S_T0}, s{S_W}, 17
    s_lshl_b32 s{S_T1}, s{S_H}, 8
    s_add_u32 s{S_T0}, s{S_T0}, s{S_T1}
    v_lshl_add_u32 v5, v1, 13, s{S_T0}
    v_lshlrev_b32 v6, 1, v1
    v_xor_b32 v6, v6, v2
    v_lshl_add_u32 v{LW(0)}, v6, 4, v5
    v_xor_b32 v7, 8, v6
    v_lshl_add_u32 v7, v7, 4, v5
    v_add_u32 v{LW(1)}, {32768 - 1024}, v{LW(0)}
    v_add_u32 v{LW(2)}, {2 * 32768 - 2048}, v7
    v_add_u32 v{LW(3)}, {3 * 32768 - 3072}, v7
    """)
    if cfg.rot == 1:
        A(f"s_add_u32 s{S_ROT}, s{S_BP}, s{S_J}\ns_and_b32 s{S_ROT}, s{S_ROT}, 3\ns_lshl_b32 s{S_ROT}, s{S_ROT}, 2")
    elif cfg.rot == 2:
        A(f"s_add_u32 s{S_ROT}, s{S_BP}, s{S_J}\ns_and_b32 s{S_ROT}, s{S_ROT}, 1\ns_lshl_b32 s{S_ROT}, s{S_ROT}, 3")
    elif cfg.rot == 3:
        A(f"s_lshl_b32 s{S_ROT}, s{S_HG}, 2")
    elif cfg.rot == 4:
        A(f"s_lshl_b32 s{S_ROT}, s{S_BP}, 2")
    elif cfg.rot == 5:
        A(f"s_lshl_b32 s{S_ROT}, s{S_J}, 1")
    elif cfg.rot in (7, 8, 9):
        A(f"s_lshr_b32 s{S_ROT}, s{S_J}, 1\ns_add_u32 s{S_ROT}, s{S_ROT}, s{S_BP}\ns_and_b32 s{S_ROT}, s{S_ROT}, 3\ns_lshl_b32 s{S_ROT}, s{S_ROT}, {9 - cfg.rot}")
    elif cfg.rot == 6:
        A(f"s_and_b32 s{S_ROT}, s{S_J}, 3\ns_lshl_b32 s{S_ROT}, s{S_ROT}, 2")
    else:
        A(f"s_mov_b32 s{S_ROT}, 0")
    A(f"""
    v_bfe_u32 v7, v0, 1, 4
    v_and_b32 v5, 1, v0
    v_lshlrev_b32 v5, 7, v5
    v_lshl_add_u32 v{LTO}, v7, 11, v5
    v_lshl_add_u32 v{LTQ}, v7, 13, v5
    v_add_u32 v{LTQ}, s{S_T0}, v{LTQ}
    """)
    A("s_waitcnt lgkmcnt(0)")
    A(make_srd(((sWQ, 10, 8 << 20), (sX, 4, 768 * 2048))))
    q0 = []
    if cfg.stamps:
        A(f"v_mov_b32 v{LSTAMP}, 0")
        A(loader_stamp(0))
        A(f"v_writelane_b32 v{LSTAMP}, s96, 63")
    if cfg.xtouch & 4:
        xt = x_touch(cfg, 3, LPOLL)
        A(xt)
        q0 += ["t"] * (len(xt) - 1)
    if cfg.afirst:
        A(f"s_bitcmp{1 - cfg.clsinv}_b32 s2, {cfg.cls}\ns_cbranch_scc1 L_bstart")
        for n in range(4 if cfg.cls == 6 else 0):
            A(f"""s_add_u32 s{S_T1}, s{S_ROT}, {n}
            s_lshl_b32 s{S_T1}, s{S_T1}, 19
            buffer_load_dword v{LPOLL}, v{LTQ}, {srd(sWQ)}, s{S_T1} offen""")
        A("s_branch L_started\nL_bstart:")
    if not cfg.stag:
        for n in range(2):
            for text, isload in q_stage(cfg, n):
                A(text)
                if isload:
                    q0.append(n)
    if cfg.afirst:
        A("L_started:")
    A(make_srd(((sK, 6, 32 << 20), (sV, 8, 32 << 20), (sWO, 12, 8 << 20), (sWS, 18, 256 << 20))))
    A(late_ids(cfg))
    late_setup(A, cfg)
    if cfg.krot:
        A(f"s_mul_i32 s{S_KR}, s2, {cfg.krot}\ns_lshr_b32 s{S_KR}, s{S_KR}, {cfg.ksh}\ns_lshl_b32 s{S_KR}, s{S_KR}, 13")
    if cfg.pre1:
        A(f"s_bitcmp{1 - cfg.clsinv}_b32 s2, {cfg.cls}\ns_cbranch_scc1 L_late")
        t0 = loader_role(P, cfg, list(tr), ["t"] * (4 if cfg.cls == 6 else 0) if cfg.afirst else q0, None, cfg.pre, "a")
        return [t0, loader_role(P, cfg, list(tr) + P.add("L_late:"), q0, None, cfg.pre1, "b")]
    if not cfg.stag:
        return [loader_role(P, cfg, tr, q0, None, cfg.pre)]
    A(f"s_cmp_ge_u32 s{S_BP}, 2\ns_cbranch_scc1 L_late")
    t0 = loader_role(P, cfg, list(tr), q0, 0)
    return [t0, loader_role(P, cfg, list(tr) + P.add("L_late:"), q0, 1)]


def loader_stamp(n):
    return (f"s_memrealtime s[{S_ST}:{S_ST+1}]\ns_memtime s[{S_ST+2}:{S_ST+3}]\ns_cmp_eq_u32 s{S_W}, 1\ns_waitcnt lgkmcnt(0)\n"
            f"s_cselect_b32 s{S_ST+4}, s{S_ST+2}, s{S_ST}\nv_writelane_b32 v{LSTAMP}, s{S_ST+4}, {n}")


def q_stage(cfg, n):
    dma = lambda vreg, sr, so, imm, pol: (f"buffer_load_dwordx4 v{vreg}, {srd(sr)}, s{so} offen offset:{imm} {pol} lds", True)
    first = cfg.promote & 1 and n < 4
    mask = {8: 7, 9: 3}.get(cfg.rot, 15)
    hgr = ""
    if cfg.hgrot == 1:
        hgr = f"s_add_u32 s{S_T1}, s{S_HG}, {n}\ns_and_b32 s{S_T1}, s{S_T1}, 3\ns_or_b32 s{S_T0}, s{S_T0}, s{S_T1}"
    if cfg.hgrot == 3:
        hgr = f"s_lshr_b32 s{S_T1}, s{S_T0}, 2\ns_xor_b32 s{S_T0}, s{S_T0}, s{S_T1}"
    if cfg.hgrot == 4:
        hgr = f"s_lshr_b32 s{S_T1}, s{S_T0}, 2\ns_and_b32 s{S_T1}, s{S_T1}, 2\ns_xor_b32 s{S_T0}, s{S_T0}, s{S_T1}"
    if cfg.hgrot == 5:
        hgr = f"s_lshr_b32 s{S_T1}, s{S_T0}, 1\ns_and_b32 s{S_T1}, s{S_T1}, 2\ns_xor_b32 s{S_T0}, s{S_T0}, s{S_T1}"
    if cfg.hgrot == 6:
        hgr = f"s_lshr_b32 s{S_T1}, s{S_T0}, 2\ns_lshl_b32 s{S_T0}, s{S_T0}, 2\ns_and_b32 s{S_T0}, s{S_T0}, 12\ns_or_b32 s{S_T0}, s{S_T0}, s{S_T1}"
    if cfg.hgrot == 7:
        hgr = f"s_lshl_b32 s{S_T1}, s{S_BLK}, 1\ns_xor_b32 s{S_T0}, s{S_T0}, s{S_T1}"
    if cfg.hgrot == 2:
        hgr = f"s_xor_b32 s{S_T1}, s{S_HG}, {n & 3}\ns_or_b32 s{S_T0}, s{S_T0}, s{S_T1}"
    o = [(f"""s_add_u32 s{S_T0}, s{S_ROT}, {n}
    s_add_u32 m0, s{S_LWW}, {WRING + (n % 4) * WSLOT}
    s_and_b32 s{S_T0}, s{S_T0}, {12 if cfg.hgrot in (1, 2) else mask}
    {hgr}
    {f"s_or_b32 s{S_T0}, s{S_T0}, {n & ~mask}" if n & ~mask else ""}
    s_lshl_b32 s{S_T1}, s{S_T0}, 19""", False)]
    o += [dma(LW(p), sWQ, S_T1, p * 1024, "nt" if first else cfg.pol_wq) for p in range(4)]
    if first:
        o.append((f"buffer_load_dword v{LPOLL}, v{LTQ}, {srd(sWQ)}, s{S_T1} offen {cfg.pol_t}", True))
    o.append((f"s_add_u32 m0, s{S_LWB}, {BRING + (n % 4) * BSLOT}\ns_lshl_b32 s{S_T0}, s{S_T0}, 7", False))
    o += [dma(LX(p), sX, S_T0, p * 1024, cfg.pol_x) for p in range(4)]
    o.append((f"s_add_u32 m0, s{S_LWB}, {BRING + (n % 4) * BSLOT + 4096}", False))
    o += [dma(LX(p), sX, S_T0, (p - 4) * 1024, cfg.pol_x) for p in range(4, 6)]
    return o


def loader_role(P, cfg, tr, q0, role, pre="", sfx=""):
    A = lambda t: tr.extend(P.add(t))
    sfx += "" if role is None else str(role)
    q = list(q0)

    flip = [0]

    def throttle(win):
        if win in (45, 55):
            flip[0] ^= 1
            win = win // 10 + flip[0]
        win = win or 56
        if win and len(q) >= win:
            A(f"s_waitcnt vmcnt({win - 1})")
            del q[:len(q) - (win - 1)]

    def dma(vreg, s, soff, imm, pol, tag, win=0):
        throttle(win)
        A(f"buffer_load_dwordx4 v{vreg}, {srd(s)}, {soff} offen offset:{imm} {pol} lds")
        q.append(tag)

    def wait(tag):
        if tag in q:
            idx = max(k for k, x in enumerate(q) if x == tag)
            A(f"s_waitcnt vmcnt({len(q) - 1 - idx})")
            del q[:idx + 1]

    def issue_q(n):
        for text, isload in q_stage(cfg, n):
            if isload:
                throttle(0)
                q.append(n)
            A(text)

    kv = []
    for e in range(17):
        if e <= 15:
            kv += [(16 + e, 0, e, p) for p in range(4)]
        if e >= 1:
            kv += [(16 + e, 1, e - 1, p) for p in range(4)]
    pool = list(range(LPOOL, 256, 4))
    parked = []
    state = dict(next=0, m0=None, soff=None, lds=False)

    def issue_kv(upto, k, win):
        state["m0"] = state["soff"] = None
        while state["next"] < upto:
            stage, isv, tile, p = kv[state["next"]]
            state["next"] += 1
            vo, sr = (LV(p), sV) if isv else (LK(p), sK)
            if stage <= k + 2 and state["m0"] != (stage, isv):
                A(f"s_add_u32 m0, s{S_LWW}, {(VRING if isv else KRING) + (tile % 3) * ASLOT}")
                state["m0"] = (stage, isv)
            if state["soff"] != tile:
                if cfg.krot:
                    A(f"s_add_u32 s{S_T0}, s{S_KR}, {tile * 8192}\ns_and_b32 s{S_T0}, s{S_T0}, 0x1e000")
                else:
                    A(f"s_mov_b32 s{S_T0}, {sum(((tile >> i) & 1) << int(b) for i, b in enumerate(cfg.kbits.split('.')[3:]))}")
                state["soff"] = tile
            if stage <= k + 2:
                dma(vo, sr, f"s{S_T0}", p * 1024, cfg.pol_kv, stage, win)
            else:
                if not pool:
                    unpark(k, 2)
                r = pool.pop(0)
                throttle(win)
                A(f"buffer_load_dwordx4 {v4(r)}, v{vo}, {srd(sr)}, s{S_T0} offen offset:{p * 1024} {cfg.pol_kv}")
                q.append(("r", r))
                parked.append((stage, isv, tile, p, r))
            if cfg.lazyp:
                unpark(k, cfg.lazyp, True)

    def unpark(k, most=99, landed=False):
        while parked and parked[0][0] <= k + 2 and most and not (landed and ("r", parked[0][4]) in q):
            most -= 1
            stage, isv, tile, p, r = parked.pop(0)
            wait(("r", r))
            A(f"ds_write_b128 v{LDSW(isv)}, {v4(r)} offset:{(tile % 3) * ASLOT + p * 1024}")
            pool.append(r)
            state["lds"] = True

    def o_index(m):
        if cfg.order:
            return f"s_add_u32 s{S_T0}, s{S_J2}, {o_rel(cfg)[m]}"
        if cfg.par:
            if m < 8:
                return f"s_add_u32 s{S_T0}, s{S_J2}, {4 * (m >> 1) + (m & 1)}"
            if cfg.par == 1:
                return f"s_add_u32 s{S_T0}, s{S_J2}, {4 * ((m - 8) >> 1) + (m & 1) + 2}"
            return f"s_lshl_b32 s{S_T0}, s{S_NU}, 1\ns_add_u32 s{S_T0}, s{S_T0}, {4 * ((m - 8) >> 1) + (m & 1) + 2}"
        if m < 2 or not cfg.oord:
            return f"s_add_u32 s{S_T0}, s{S_J2}, {m}"
        return f"""s_cmp_gt_u32 s{S_T3}, {(m - 2) // 2}
        s_cselect_b32 s{S_T0}, {m - 2}, {m}
        s_add_u32 s{S_T0}, s{S_T0}, s{S_T2}"""

    def issue_ow(m, tag, win=0):
        A(f"""{o_index(m)}
        s_add_u32 m0, s{S_LWW}, {WRING + (m % 4) * WSLOT}
        s_and_b32 s{S_T0}, s{S_T0}, 15
        s_lshl_b32 s{S_T1}, s{S_T0}, 17""")
        if cfg.hmap:
            A(f"""s_lshr_b32 s{S_T0}, s{S_T0}, 1
            {head_of(cfg, S_T2, S_T0, S_T3)}
            s_lshl_b32 s{S_T2}, s{S_T2}, 18
            s_and_b32 s{S_T1}, s{S_T1}, 0x20000
            s_add_u32 s{S_T1}, s{S_T1}, s{S_T2}""")
        first = cfg.promote & 2 and o_rel(cfg)[m] < 4
        for p in range(4):
            dma(LWO(p), sWO, f"s{S_T1}", p * 1024, "nt" if first else cfg.pol_wo, tag, 0 if first else win)
        if first:
            A(f"buffer_load_dword v{LPOLL}, v{LTO}, {srd(sWO)}, s{S_T1} offen {cfg.pol_t}")
            q.append("t")

    def touch_w(b):
        A(f"""s_lshl_b32 s{S_T0}, s{S_BP}, 17
        s_add_u32 s{S_T0}, s{S_T0}, {b << 19}
        buffer_load_dword v{LPOLL}, v{LTO}, {srd(sWO)}, s{S_T0} offen""")
        q.append("t")

    def touch_b(b):
        A(f"s_mov_b32 s{S_T0}, {b * 98304}\nbuffer_load_dword v{LPOLL}, v{LTB}, {srd(sWS)}, s{S_T0} offen sc1")
        q.append("t")

    coop = []
    spre = [int(x) for x in str(cfg.spre).split(".")] if cfg.spre else []
    sdone = [0]

    def scalar_pre():
        for _ in range(spre.pop(0) if spre else 0):
            n, r = divmod(sdone[0], 32)
            if n > 3:
                break
            if r == 0:
                A(f"""s_add_u32 s{S_T0}, s{S_NU}, {2 * n + 1}
                s_and_b32 s{S_T0}, s{S_T0}, 7
                s_lshl_b32 s{S_T0}, s{S_T0}, 18
                s_add_u32 s{S_T0}, s{S_T0}, s{S_DW}
                s_add_u32 s{S_SB + 2 * (n & 1)}, s12, s{S_T0}
                s_addc_u32 s{S_SB + 2 * (n & 1) + 1}, s13, 0""")
            A(f"s_load_dword s{S_SB + 4}, s[{S_SB + 2 * (n & 1)}:{S_SB + 2 * (n & 1) + 1}], {(r >> 2) * 2048 + (r & 3) * 64}")
            sdone[0] += 1

    def coop_after(m):
        for b, mm in enumerate(coop):
            if mm == m:
                touch_b(b + 1)
                touch_w(b + 1)

    def issue_ob(m, tag):
        A(f"""{o_index(m)}
        s_add_u32 m0, s{S_LWB}, {BRING + ((m - 2) % 4) * BSLOT}
        s_and_b32 s{S_T0}, s{S_T0}, 15
        s_mul_i32 s{S_T0}, s{S_T0}, 24576""")
        for p in range(4):
            dma(LOB, sWS, f"s{S_T0}", p * 1024, cfg.pol_ob, tag)
        A(f"s_add_u32 m0, s{S_LWB}, {BRING + ((m - 2) % 4) * BSLOT + 4096}\ns_add_u32 s{S_T1}, s{S_T0}, 4096")
        for p in range(2):
            dma(LOB, sWS, f"s{S_T1}", p * 1024, cfg.pol_ob, tag)

    nst = [1]

    def stamp():
        if cfg.stamps:
            A(loader_stamp(nst[0]))
            nst[0] += 1

    def barrier():
        if state["lds"]:
            A("s_waitcnt lgkmcnt(0)")
            state["lds"] = False
        A("s_barrier")
        stamp()

    A("; loader schedule: one barrier per stage; two variants differ only in when K/V is preloaded")
    end = lambda n: 0 if n < 16 else min(128, 4 + 8 * (n - 16))
    pre = [int(x) for x in str(pre).split(".")] if pre else []
    pre = [0] * (17 - len(pre)) + pre
    wo_at = [int(x) for x in str(cfg.wo_at).split(".")]
    wtag = lambda m: 33 if m < 2 else 33 + m
    if role == 1:
        A(f"""
        s_lshr_b32 s{S_T0}, s2, 3
        s_and_b32 s{S_T0}, s{S_T0}, 15
        s_lshl_b32 s{S_T0}, s{S_T0}, 2
        s_add_u32 s{S_T0}, s{S_T0}, s{S_W}
        s_lshl_b32 s{S_T1}, s{S_T0}, 13
        s_lshl_b32 s{S_T2}, s{S_HG}, 11
        s_add_u32 s{S_T1}, s{S_T1}, s{S_T2}
        v_lshrrev_b32 v3, 4, v0
        v_and_b32 v4, 15, v0
        v_lshl_add_u32 v5, v3, 19, s{S_T1}
        v_lshl_add_u32 v5, v4, 7, v5
        s_mul_i32 s{S_T1}, s{S_T0}, {6 * 2048}
        v_lshrrev_b32 v3, 3, v0
        v_min_u32 v3, 5, v3
        v_and_b32 v4, 7, v0
        v_lshl_add_u32 v6, v3, 11, s{S_T1}
        v_lshl_add_u32 v6, v4, 7, v6
        """)
        for qt in range(4):
            if qt % 2 == 0:
                A(f"buffer_load_dword v{LPOLL}, v6, {srd(sX)}, 0 offen offset:{(qt // 2) * 1024}")
                q.append("t")
            A(f"s_mov_b32 s{S_T0}, {qt << 21}\nbuffer_load_dword v{LPOLL}, v5, {srd(sWQ)}, s{S_T0} offen")
            q.append("t")
        A(f"s_mov_b32 s{S_T0}, {384 * 2048}")
        for h in range(2):
            A(f"buffer_load_dword v{LPOLL}, v6, {srd(sX)}, s{S_T0} offen offset:{h * 1024}")
            q.append("t")
        pre[0] = cfg.s1pre
        issue_kv(pre[0], -1, cfg.s1win)
    if cfg.afirst and sfx == "a":
        pre[0] = cfg.afirst
        issue_kv(pre[0], -1, cfg.bwin or 8)
    if cfg.stag or (cfg.afirst and sfx == "a"):
        issue_q(0)
        issue_q(1)
    base = sum(pre)
    issue_kv(pre[0], -1, 0)
    nq = 2
    qskip = cfg.qskip if sfx == 'a' else cfg.qskipb
    qskip = [int(x) for x in str(qskip).split('.')] if qskip else []
    for k in range(0, 33):
        wait(k)
        barrier()
        if not cfg.lazyp:
            unpark(k)
        while nq <= min(15, k + 1 + cfg.qd) and k not in qskip:
            issue_q(nq)
            nq += 1
        w = ((cfg.winb or cfg.win) if sfx == 'b' else cfg.win) if role is None else (cfg.s1win if role else (cfg.s0win if k < cfg.s0sw else cfg.s0late))
        if cfg.winlate and k >= cfg.late and sfx != 'b':
            w = cfg.winlate
        win = 0 if k < 16 else (cfg.win16 if k == 16 else w)
        lead = min(128, end(k + 1) + ((win + 5) // 10 if win in (45, 55) else win or 8)) if k >= 14 else 0
        if k <= 15:
            ramp = sum(pre[:k + 2]) + (4 * max(0, k - 13) if role == 1 else 0)
        else:
            b0 = base + cfg.win16 + (8 if role == 1 else 0)
            last = (cfg.lastb or cfg.last) if sfx == 'b' else cfg.last
            ramp = min(128, b0 + ((128 - b0) * (k - 16)) // (last - 16))
        issue_kv(max(lead, ramp if base else 0), k, win or cfg.bwin)
        while qskip and k == qskip[-1] and nq <= min(15, k + cfg.qres):
            issue_q(nq)
            nq += 1
        assert nq > min(15, k + 1)
        if cfg.lazyp:
            unpark(k, 99, True)
            unpark(k - 1)
        if k == 20 and cfg.oord:
            A(f"""s_add_u32 s{S_T2}, s{S_BP}, s{S_J}
            s_and_b32 s{S_T2}, s{S_T2}, {cfg.oord - 1}
            s_mul_i32 s{S_T2}, s{S_T2}, {8 // cfg.oord}
            s_sub_u32 s{S_T3}, s{S_J}, s{S_T2}
            s_and_b32 s{S_T3}, s{S_T3}, 7
            s_lshl_b32 s{S_T2}, s{S_T2}, 1""")
        for h, tk in enumerate(str(cfg.ptouch).split(".") if cfg.ptouch else []):
            if int(tk) == k:
                throttle(win)
                A(f"""s_mul_i32 s{S_T0}, s{S_J}, 49152
                s_add_u32 s{S_T0}, s{S_T0}, {h * 24576}
                v_mul_u32_u24 v3, 0x70, v0
                v_add_u32 v3, v3, v{LOB}
                s_mov_b32 exec_hi, 0xffff
                buffer_load_dword v{LPOLL}, v3, {srd(sWS)}, s{S_T0} offen
                s_mov_b64 exec, -1""")
                q.append("t")
        if k == 26:
            A(f"buffer_load_dword v{LPOLL}, v{LFLAG}, {srd(sWS)}, 0 offen sc1")
            q.append("t")
        for m in range(4):
            if wo_at[m] == k and not (m < 2 and m >= 2 - cfg.w1late):
                issue_ow(m, wtag(m), win if state["next"] < 128 else (cfg.wwin if k == 32 else 0))
        if coop and k == cfg.coopw0:
            touch_w(0)
    assert state["next"] == 128 and not parked
    if spre:
        A(f"""s_lshl_b32 s{S_DW}, s{S_HG}, 21
        s_lshl_b32 s{S_T0}, s{S_BP}, 16
        s_add_u32 s{S_DW}, s{S_DW}, s{S_T0}
        s_lshl_b32 s{S_T0}, s{S_W}, 14
        s_add_u32 s{S_DW}, s{S_DW}, s{S_T0}
        s_lshl_b32 s{S_T0}, s{S_NU}, 8
        s_add_u32 s{S_DW}, s{S_DW}, s{S_T0}""")
    A("; output projection: wo stages, waits for the producers of the next operand blocks")
    if cfg.w1late:
        A("s_barrier")
        if cfg.w1late == 2:
            issue_ow(0, 33)
        issue_ow(1, 34)
    wait(33)
    barrier()
    if cfg.w1late:
        wait(34)
        A("s_barrier")
    def finish():
        if cfg.stamps:
            A(f"""s_lshl_b32 s{S_T0}, s2, 3
            s_add_u32 s{S_T0}, s{S_T0}, s{S_WAVE}
            s_lshl_b32 s{S_T0}, s{S_T0}, 8
            s_add_u32 s{S_T0}, s{S_T0}, {WS_STAMP}
            v_lshl_add_u32 v1, v0, 2, s{S_T0}
            buffer_store_dword v{LSTAMP}, v1, {srd(sWS)}, 0 offen""")
        A("s_endpgm")
        return tr

    def need_head(m):
        A(f"""{o_index(m)}
        s_bfe_u32 s{S_T1}, s{S_T0}, 0x30001
        {f"s_add_u32 s{S_T1}, s{S_T1}, 8" if cfg.split and o_rel(cfg)[m] & 1 else ""}
        s_mov_b32 s{S_SPIN}, 0""")
        n = f"L_need{m}{sfx}"
        loop = P.add(f"""{n}:
        s_bitcmp1_b32 s{S_MASK}, s{S_T1}
        s_cbranch_scc1 {n}_done
        buffer_load_dword v{LPOLL}, v{LFLAG}, {srd(sWS)}, 0 offen sc1
        s_add_u32 s{S_SPIN}, s{S_SPIN}, 1
        s_waitcnt vmcnt(0)
        {f"v_cmp_le_u32 vcc, v{LTQ}, v{LPOLL}" if cfg.split else f"v_cmp_eq_u32 vcc, 1, v{LPOLL}"}
        s_mov_b32 s{S_MASK}, vcc_lo
        s_cmp_lt_u32 s{S_SPIN}, {SPIN_MAX}
        s_cbranch_scc1 {n}""")
        tr.extend(loop + loop)
        A(f"{n}_done:")

    if cfg.bdirect:
        for m in (2, 3):
            if wo_at[m] == 33:
                issue_ow(m, 33 + m)
        A(f"s_mov_b32 s{S_MASK}, 0")
        seen = set()
        if cfg.split:
            A(f"v_bfe_u32 v{LTQ}, v0, 3, 1\nv_add_u32 v{LTQ}, 1, v{LTQ}")

        def need_new(m):
            key = o_rel(cfg)[m] >> (0 if cfg.split else 1)
            if key not in seen:
                seen.add(key)
                need_head(m)

        need_new(2)
        need_new(3)
        A("s_barrier")
        stamp()
        for m in (2, 3):
            if wo_at[m] == 34:
                issue_ow(m, 33 + m)
        nm = 4
        for k in range(35, 49):
            if k - 31 <= 15:
                need_new(k - 31)
            wait(k)
            barrier()
            while nm <= min(15, k + 1 + cfg.od - 33):
                issue_ow(nm, nm + 33)
                nm += 1
        return finish()
    if wo_at[2] == 33:
        issue_ow(2, 35)
    if cfg.prog:
        A(f"s_mov_b32 s{S_MASK}, 0")
        need_head(2)
    else:
        poll_loop(P, tr, "poll1" + sfx, LPOLL, LFLAG)
        del q[:]
        q.append("poll")
    stamp()
    if coop:
        touch_b(0)
    issue_ob(2, 35)
    if wo_at[2] == 34:
        issue_ow(2, 35)
    coop_after(2)
    if wo_at[3] == 33:
        issue_ow(3, 36)
    issue_ob(3, 36)
    if wo_at[3] == 34:
        issue_ow(3, 36)
    coop_after(3)
    scalar_pre()
    nm = 4
    for k in range(35, 49):
        wait(k)
        barrier()
        while nm <= min(15, k + 1 + cfg.od - 33):
            issue_ow(nm, nm + 33)
            if cfg.prog and nm % 2 == 0:
                need_head(nm)
            issue_ob(nm, nm + 33)
            coop_after(nm)
            nm += 1
        scalar_pre()
    return finish()


def order(n, snake):
    return [(T, t) for T in range(n) for t in (reversed(T3) if snake and T & 1 else T3)]


def gemm_reads(b, s, kind, with_b=True):
    r = []
    if with_b:
        for t in T3:
            if kind == "q":
                r.append(f"ds_read_b128 {v4(FB(b, t))}, v{AB(s)} offset:{t * 2048}")
            else:
                r.append(f"ds_read_b128 {v4(FB(b, t))}, v{AB(0)} offset:{s * 3072 + t * 1024}")
    for T in range(8):
        for u in range(2):
            off = s * 8192 + u * (1024 if kind == "q" else 4096)
            r.append(f"ds_read_b64_tr_b16 {v2(FA(b, T) + 2 * u)}, v{AW(T)} offset:{off}")
    return r


def gemm_mfma(cfg, b, bsrc=None, zero=False):
    return [f"{MFMA} {v4(ACC(T, t))}, {v4(FA(b, T))}, {v4(bsrc(t) if bsrc else FB(b, t))}, {'0' if zero else v4(ACC(T, t))}"
            for T, t in order(8, cfg.snake)]


def gemm_loop(P, tr, cfg, kind, label, iters):
    sal = [f"s_add_u32 s{S_SLOT}, s{S_SLOT}, 1", f"s_and_b32 s{S_SLOT}, s{S_SLOT}, 3", f"s_cselect_b32 s{S_DW}, {WSLOT}, s{S_T2}"]
    if kind == "o":
        sal.append(f"s_cmp_lg_u32 s{S_SLOT}, 2")
    sal.append(f"s_cselect_b32 s{S_DB}, {BSLOT}, s{S_T3}")
    val = [f"v_add_u32 v{AB(s)}, s{S_DB}, v{AB(s)}" for s in range(2 if kind == "q" else 1)]
    val += [f"v_add_u32 v{AW(T)}, s{S_DW}, v{AW(T)}" for T in range(8)]
    nb = len(val) - 8
    hook = [(18, f"s_cmp_eq_u32 s{S_CNT}, s{S_FLAG}"), (19, "s_cbranch_scc1 L_count"), (19, "L_counted:")] if kind == "q" else []
    if kind == "o" and cfg.wb:
        hook = [(18, f"s_cmp_eq_u32 s{S_CNT}, s{S_FLAG}"), (19, "s_cbranch_scc1 L_wb"), (19, "L_wbdone:")]
    h0 = weave(gemm_mfma(cfg, 0), spread(gemm_reads(1, 1, kind), 0, 18) + spread(sal, 0, 4) + spread(val[:nb + 6], 12, 19)
               + spread(val[nb + 6:], 20, 21) + [(22, "s_waitcnt lgkmcnt(0)"), (22, "s_barrier")])
    h1 = weave(gemm_mfma(cfg, 1), spread(gemm_reads(0, 0, kind), -1, 17)
               + hook + [(20, f"s_sub_u32 s{S_CNT}, s{S_CNT}, 1"), (20, f"s_cmp_lg_u32 s{S_CNT}, 0")])
    tr.extend(P.add(f"s_mov_b32 s{S_CNT}, {iters}\ns_waitcnt lgkmcnt(0)"))
    if kind == "q":
        tr.extend(P.add(".p2align 3"))
        body = P.add([label + ":"] + h0 + h1 + ["s_waitcnt lgkmcnt(0)", f"s_cbranch_scc1 {label}"])
        tr.extend(body + body)
        return
    h0 = weave(gemm_mfma(cfg, 0), spread(gemm_reads(1, 1, kind), 0, 18) + spread(sal, 0, 4) + spread(val[:nb + 6], 11, 18)
               + spread(val[nb + 6:], 19, 19) + [(6, f"s_sub_u32 s{S_CNT}, s{S_CNT}, 1"), (7, f"s_cmp_eq_u32 s{S_CNT}, 0"),
                                                  (20, f"s_cbranch_scc1 {label}_out"), (22, "s_waitcnt lgkmcnt(0)"), (22, "s_barrier")])
    h1 = weave(gemm_mfma(cfg, 1), spread(gemm_reads(0, 0, kind), -1, 17) + hook)
    cut = h0.index(f"s_cbranch_scc1 {label}_out") + 1
    tr.extend(P.add(".p2align 3"))
    first = P.add([label + ":"] + h0[:cut])
    rest = P.add(h0[cut:] + h1 + ["s_waitcnt lgkmcnt(0)", f"s_branch {label}"])
    tr.extend(first + rest + first + P.add([label + "_out:"] + gemm_mfma(cfg, 0)[21:]))


def k_reads(tile):
    return [f"ds_read_b128 {v4(FR(kt * 4 + s))}, v{AK(s)} offset:{(tile % 3) * ASLOT + kt * 4096}" for kt in range(2) for s in range(4)]


def v_reads(T, tile):
    return [f"ds_read_b64_tr_b16 {v2(FR(T) + 2 * u)}, v{AV(T)} offset:{(tile % 3) * ASLOT + u * 4096}" for u in range(2)]


def qk_mfma(first=False):
    c0 = lambda t: "0" if first else v4(NM(t))
    return [f"{MFMA} {v4(SS(kt, t))}, {v4(FR(kt * 4 + s))}, {v4(QF(s, t))}, {c0(t) if s == 0 else v4(SS(kt, t))}"
            for kt in range(2) for s in range(4) for t in T3]


def pv_mfma(cfg):
    return [f"{MFMA} {v4(ACC(T, t))}, {v4(FR(T))}, {v4(PP(t))}, {v4(ACC(T, t))}" for T, t in order(8, cfg.snake)]


def xlane(op, regs, tmps):
    out = []
    for sw in ("v_permlane32_swap_b32", "v_permlane16_swap_b32"):
        out += [f"v_mov_b32 v{x}, v{r}" for r, x in zip(regs, tmps)]
        out += [f"{sw} v{r}, v{x}" for r, x in zip(regs, tmps)]
        out += [f"{op} v{r}, v{r}, v{x}" for r, x in zip(regs, tmps)]
    return out


def row_max():
    o = [f"v_max3_f32 v{VD(t)}, v{SS(0, t)}, v{SS(0, t) + 1}, v{SS(0, t) + 2}" for t in T3]
    o += [f"v_max3_f32 v{VD(t)}, v{SS(0, t) + 3}, v{SS(1, t)}, v{VD(t)}" for t in T3]
    o += [f"v_max3_f32 v{VD(t)}, v{SS(1, t) + 1}, v{SS(1, t) + 2}, v{VD(t)}" for t in T3]
    o += [f"v_max_f32 v{VD(t)}, v{SS(1, t) + 3}, v{VD(t)}" for t in T3]
    return o + xlane("v_max_f32", [VD(t) for t in T3], [VT(t) for t in T3])


def shift_scores():
    return [f"v_sub_f32 v{SS(kt, t) + r}, v{SS(kt, t) + r}, v{VD(t)}" for kt in range(2) for t in T3 for r in range(4)]


def guard_max(kt):
    r = [SS(kt, t) + k for t in T3 for k in range(4)]
    if kt == 0:
        o = [f"v_max3_f32 v{VX}, v{r[0]}, v{r[1]}, v{r[2]}"]
        o += [f"v_max3_f32 v{VX}, v{r[k]}, v{r[k + 1]}, v{VX}" for k in range(3, 11, 2)]
        return o + [f"v_max_f32 v{VX}, v{r[11]}, v{VX}"]
    return [f"v_max3_f32 v{VX}, v{r[k]}, v{r[k + 1]}, v{VX}" for k in range(0, 12, 2)]


def p_cvt(kt, h=None):
    return [f"v_cvt_pk_bf16_f32 v{PP(t) + 2 * kt + hh}, v{SS(kt, t) + 2 * hh}, v{SS(kt, t) + 2 * hh + 1}"
            for hh in ((0, 1) if h is None else (h,)) for t in T3]


def exp_sum(cfg, kt, h):
    o = [f"v_exp_f32 v{SS(kt, t) + 2 * h + r}, v{SS(kt, t) + 2 * h + r}" for t in T3 for r in range(2)]
    if cfg.pk:
        o += [f"v_pk_add_f32 {v2(VL(t))}, {v2(VL(t))}, {v2(SS(kt, t) + 2 * h)}" for t in T3]
    else:
        o += [f"v_add_f32 v{VL(t) + r}, v{VL(t) + r}, v{SS(kt, t) + 2 * h + r}" for t in T3 for r in range(2)]
    return o


def exps(kt, h):
    return [f"v_exp_f32 v{SS(kt, t) + 2 * h + r}, v{SS(kt, t) + 2 * h + r}" for t in T3 for r in range(2)]


def pk_sum(kt, h):
    return [f"v_pk_add_f32 {v2(VL(t))}, {v2(VL(t))}, {v2(SS(kt, t) + 2 * h)}" for t in T3]


def rescale(by):
    return [f"v_mul_f32 v{ACC(T, t) + r}, v{ACC(T, t) + r}, v{by(t)}" for T in range(8) for t in T3 for r in range(4)]


def acc_to_frag(s, QF=QF):
    return [f"v_cvt_pk_bf16_f32 v{QF(s, t) + 2 * u + h}, v{ACC(2 * s + u, t) + 2 * h}, v{ACC(2 * s + u, t) + 2 * h + 1}"
            for u in range(2) for t in T3 for h in range(2)]


def compute(P, cfg):
    tr = []
    side = []
    A = lambda t: tr.extend(P.add(t))
    nst = [0]

    def stamp():
        if cfg.stamps:
            A(f"s_memrealtime s[{S_ST + 2 * nst[0]}:{S_ST + 2 * nst[0] + 1}]\ns_waitcnt lgkmcnt(0)")
            nst[0] += 1

    A("; ---- compute waves: first read of x, inbox clear, code prefetch")
    A(f"L_compute:\ns_getpc_b64 s[{S_PC}:{S_PC + 1}]\nL_text:\n{late_ids(cfg)}\ns_waitcnt lgkmcnt(0)")
    if cfg.xtouch and not cfg.xtouch & 4:
        A(make_srd(((sX, 4, 768 * 2048),)))
        A(x_touch(cfg, 112, 113))
    A(make_srd(((sOUT, 14, 768 * 4096), (sWS, 18, 256 << 20), (sDBG, 16, 256))))
    if cfg.prio:
        A(f"s_setprio {cfg.prio}")
    A(f"""
    s_getreg_b32 s{S_XCC}, hwreg(HW_REG_XCC_ID, 0, 3)
    s_cmp_lg_u32 s{S_W}, 0
    s_cbranch_scc1 L_noclear
    s_lshl_b32 s{S_T0}, s2, 11
    s_add_u32 s{S_T0}, s{S_T0}, {WS_INBOX}
    v_lshlrev_b32 v1, 4, v0
    v_mov_b64 v[4:5], 0
    v_mov_b64 v[6:7], 0
    buffer_store_dwordx4 v[4:7], v1, {srd(sWS)}, s{S_T0} offen sc1
    buffer_store_dwordx4 v[4:7], v1, {srd(sWS)}, s{S_T0} offen offset:1024 sc1
    {code_touch(0, 110, 111) if cfg.ctouch else ""}
    L_noclear:
    s_lshl_b32 s{S_XCC}, s{S_XCC}, 2
    v_and_b32 v{V_TMP}, 3, v0
    v_xor_b32 v{V_TMP}, s{S_GRP}, v{V_TMP}
    v_lshlrev_b32 v{V_TMP}, 2, v{V_TMP}
    v_lshrrev_b32 v100, 4, v0
    v_and_b32 v101, 15, v0
    v_bfe_u32 v102, v0, 2, 2
    v_bfe_u32 v103, v0, 1, 1
    v_and_b32 v104, 1, v0
    v_lshlrev_b32 v109, 4, v0
    """)
    A(f"""
    v_lshl_add_u32 v105, v100, 3, v102
    v_lshlrev_b32 v105, 8, v105
    v_lshl_add_u32 v105, v104, 3, v105
    v_lshl_add_u32 v105, v103, 4, v105
    v_and_b32 v106, 1, v100
    v_lshl_add_u32 v106, v106, 2, v102
    v_lshl_add_u32 v{AW(0)}, v106, 5, v105
    """)
    for T in range(1, 8):
        A(f"v_xor_b32 v{AW(T)}, {T << 5}, v{AW(0)}")
    A(f"""
    s_add_u32 s{S_T0}, s{S_LWB}, {BRING}
    v_lshl_add_u32 v105, v101, 7, s{S_T0}
    v_lshrrev_b32 v107, 1, v101
    v_xor_b32 v107, v107, v100
    v_lshl_add_u32 v{AB(0)}, v107, 4, v105
    v_xor_b32 v{AB(1)}, 64, v{AB(0)}
    """)
    A(f"""
    s_lshr_b32 s{S_T0}, s{S_W}, 1
    s_lshl_b32 s{S_T0}, s{S_T0}, 13
    s_add_u32 s{S_T0}, s{S_T0}, {KRING}
    v_lshl_add_u32 v105, v101, 8, s{S_T0}
    v_lshrrev_b32 v107, 1, v100
    v_and_b32 v108, 1, v100
    v_lshl_add_u32 v107, v108, 1, v107
    v_xor_b32 v107, v107, v101
    v_lshl_add_u32 v{AK(0)}, v107, 4, v105
    """)
    for s in range(1, 4):
        A(f"v_xor_b32 v{AK(s)}, {s << 6}, v{AK(0)}")
    A(f"""
    s_add_u32 s{S_T0}, s{S_T0}, {VRING - KRING}
    v_lshl_add_u32 v105, v100, 2, v102
    v_lshl_add_u32 v105, v105, 8, s{S_T0}
    v_lshl_add_u32 v105, v104, 3, v105
    v_lshl_add_u32 v105, v103, 4, v105
    v_lshl_add_u32 v{AV(0)}, v106, 5, v105
    """)
    for T in range(1, 8):
        A(f"v_xor_b32 v{AV(T)}, {T << 5}, v{AV(0)}")
    A(f"s_mov_b32 s{S_C}, {f32(1.4426950408889634 / 128 ** 0.5)}\ns_mov_b32 s{S_C + 1}, s{S_C}")
    A(f"s_mov_b32 s{S_T2}, {-3 * WSLOT}\ns_mov_b32 s{S_T3}, {-3 * BSLOT}\ns_mov_b32 s{S_SLOT}, 0")
    A([f"v_pk_mov_b32 {v2(r)}, 0, 0" for r in range(0, 96, 2)])
    if cfg.tag or cfg.oclear:
        A([f"v_mov_b32 v{r}, -1" for r in range(116, 120)])
    xclear = [f"s_mul_i32 s{S_T0}, s{S_W}, 9216", f"s_mul_i32 s{S_T1}, s2, 36864", f"s_add_u32 s{S_T0}, s{S_T0}, s{S_T1}", f"s_add_u32 s{S_T0}, s{S_T0}, {WS_X}"]
    for k in range(9):
        if k and k % 4 == 0:
            xclear.append(f"s_add_u32 s{S_T0}, s{S_T0}, 4096")
        xclear.append(f"buffer_store_dwordx4 v[116:119], v109, {srd(sWS)}, s{S_T0} offen offset:{(k % 4) * 1024} sc1")
    if cfg.tag and not cfg.clear_at:
        A(xclear)
    if cfg.oclear:
        A(f"""s_mul_i32 s{S_T0}, s{S_GRP}, 393216
        s_mul_i32 s{S_T1}, s{S_J}, 49152
        s_add_u32 s{S_T0}, s{S_T0}, s{S_T1}
        s_mul_i32 s{S_T1}, s{S_W}, 12288
        s_add_u32 s{S_T0}, s{S_T0}, s{S_T1}""")
        for k in range(12):
            if k and k % 4 == 0:
                A(f"s_add_u32 s{S_T0}, s{S_T0}, 4096")
            A(f"buffer_store_dwordx4 v[116:119], v109, {srd(sWS)}, s{S_T0} offen offset:{(k % 4) * 1024} sc1")
    count = f"""s_lshl_b32 s{S_T0}, 1, s{S_XCC}
    v_mov_b32 v{V_CHK}, s{S_T0}
    s_mov_b64 exec, 1
    s_waitcnt vmcnt(0)
    buffer_atomic_add v{V_CHK}, v{V_TMP}, {srd(sDBG)}, 0 offen
    s_mov_b64 exec, -1""".split("\n")
    rare = [["L_count:", f"s_cmp_eq_u32 s{S_FLAG}, {cfg.fetch_at}", "s_cbranch_scc1 L_fetch", f"s_mov_b32 s{S_FLAG}, {cfg.fetch_at}",
             "s_waitcnt vmcnt(0)", f"s_cmp_lg_u32 s{S_W}, 0", "s_cbranch_scc1 L_counted"] + count + ["s_branch L_counted",
             "L_fetch:", f"buffer_load_dword v{V_CHK}, v{V_TMP}, {srd(sDBG)}, 0 offen sc1", "s_branch L_counted"]]
    if cfg.clear_at:
        assert cfg.latefetch and cfg.tag and min(cfg.clear_at, cfg.clear_b or 99) > cfg.count_at + 1
        rare = [["L_count:", f"s_cmp_le_u32 s{S_FLAG}, {cfg.count_at + 1}", "s_cbranch_scc1 L_drain"] + xclear
                + [f"s_cmp_eq_u32 s{S_W}, 0", f"s_cselect_b32 s{S_FLAG}, {cfg.count_at}, {cfg.count_at + 1}", "s_branch L_counted",
                   "L_drain:", "s_waitcnt vmcnt(0)", f"s_cmp_lg_u32 s{S_W}, 0", "s_cbranch_scc1 L_counted"] + count + ["s_branch L_counted"]]
        A(f"s_bitcmp{1 - cfg.clsinv}_b32 s2, {cfg.cls}\ns_cselect_b32 s{S_FLAG}, {cfg.clear_b or cfg.clear_at}, {cfg.clear_at}")
    elif cfg.latefetch:
        assert not (cfg.tag or cfg.oclear or cfg.stag)
        rare = [["L_count:"] + count + ["s_branch L_counted"]]
        A(f"""s_lshr_b32 s{S_T0}, s2, {cfg.spreadsh}
        s_and_b32 s{S_T0}, s{S_T0}, {cfg.spreadc}
        s_sub_u32 s{S_T0}, {cfg.count_at}, s{S_T0}
        s_cmp_eq_u32 s{S_W}, {4 if cfg.nocount else 0}
        s_cselect_b32 s{S_FLAG}, s{S_T0}, 0""")
    else:
        A(f"s_cmp_eq_u32 s{S_W}, 0\ns_cselect_b32 s{S_FLAG}, {cfg.count_at}, {cfg.count_at + 1}")
    assert not (cfg.stag and (cfg.tag or cfg.oclear))
    if cfg.stag:
        A([f"s_cmp_ge_u32 s{S_BP}, 2", f"s_cselect_b32 s{S_T1}, s{S_FLAG}, 0", f"s_cmp_lg_u32 s{S_T1}, {cfg.count_at}", "s_cbranch_scc1 L_nocount"]
          + count + [f"s_mov_b32 s{S_FLAG}, {cfg.fetch_at}", "L_nocount:"])
    A("; ---- Q projection")
    A("s_barrier")
    A(gemm_reads(0, 0, "q"))
    gemm_loop(P, tr, cfg, "q", "L_qloop", 16)
    A(k_reads(0))
    def judge(v):
        return f"""v_lshrrev_b32 v{VT(0)}, 4, v{v}
        v_and_b32 v{VT(0)}, 0x0f0f0f0f, v{VT(0)}
        v_and_b32 v{VT(1)}, 0x0f0f0f0f, v{v}
        v_add_u32 v{VT(0)}, v{VT(0)}, v{VT(1)}
        v_sad_u8 v{VT(0)}, v{VT(0)}, 0, 0
        v_readfirstlane_b32 s{S_T1}, v{v}
        v_cmp_ne_u32 vcc, 8, v{VT(0)}
        s_lshl_b32 s{S_T0}, 8, s{S_XCC}
        s_cmp_eq_u32 s{S_T0}, s{S_T1}
        s_cselect_b32 s{S_FLAG}, {cfg.local}, 0
        s_cmp_eq_u64 vcc, 0
        s_cselect_b32 s{S_FLAG}, s{S_FLAG}, 2""".split("\n")

    dbgaddr = lambda v: [f"v_and_b32 v{v}, 3, v{V_TMP}", f"v_xor_b32 v{v}, s{S_GRP}, v{v}", f"v_lshlrev_b32 v{v}, 2, v{v}"]
    ahook = []
    if cfg.latefetch:
        ahook = [f"s_cmp_le_u32 s{S_CNT}, 2", "s_cbranch_scc1 L_ahook", "L_ahooked:"]
        rare.append(["L_ahook:", f"s_cmp_eq_u32 s{S_CNT}, 1", "s_cbranch_scc1 L_judge"] + dbgaddr(VT(0))
                    + [f"buffer_load_dword v{V_CHK}, v{VT(0)}, {srd(sDBG)}, 0 offen sc1", "s_branch L_ahooked", "L_judge:", "s_waitcnt vmcnt(0)"]
                    + judge(V_CHK) + ([f"s_mov_b32 s{S_FLAG}, 1"] if cfg.nocount else []) + [f"v_mov_b32 v{V_CHK}, 1", "s_branch L_ahooked"])
    else:
        A(["s_waitcnt vmcnt(0)"] + judge(V_CHK))
    A([f"v_pk_mul_f32 {v2(r)}, {v2(r)}, s[{S_C}:{S_C + 1}]" for r in range(0, 96, 2)])

    def q_frag(s):
        return acc_to_frag(s) + [f"v_permlane16_swap_b32 v{QF(s, t) + h}, v{QF(s, t) + 2 + h}" for t in T3 for h in range(2)]

    qk0 = qk_mfma(True)
    qk0 = [qk0[kt * 12 + s * 3 + t] for s in range(4) for kt in range(2) for t in T3]
    zero = [f"v_mov_b64 {v2(r)}, 0" for r in range(0, 96, 2)]
    addr = f"""{lane_id(V_TMP)}
    s_mul_i32 s{S_T0}, s{S_GRP}, 393216
    s_mul_i32 s{S_T1}, s{S_J}, 49152
    s_add_u32 s{S_T0}, s{S_T0}, s{S_T1}
    s_add_u32 s{S_T0}, s{S_T0}, s{S_LWB}
    v_lshl_add_u32 v{V_OST}, v{V_TMP}, 4, s{S_T0}
    s_andn2_b32 s{S_T0}, s2, 0x38
    s_lshl_b32 s{S_T0}, s{S_T0}, 11
    s_lshl_b32 s{S_T1}, s{S_J}, 2
    s_add_u32 s{S_T0}, s{S_T0}, s{S_T1}
    s_lshl_b32 s{S_T1}, s{S_W}, 9
    s_add_u32 s{S_T0}, s{S_T0}, s{S_T1}
    s_add_u32 s{S_T0}, s{S_T0}, {WS_INBOX}
    v_lshl_add_u32 v{V_FLG}, v{V_TMP}, 14, s{S_T0}
    v_mov_b32 v{V_CHK}, 1""".split("\n")
    A(q_frag(0))
    A(weave(qk0, spread(addr, 0, 20) + [(6 * s - 6 + k // 3, x) for s in range(1, 4) for k, x in enumerate(q_frag(s))] + spread(zero[:12], 18, 23)))
    A(zero[12:20])
    if cfg.earlyb:
        A("s_barrier")
    A(row_max())
    A([f"v_pk_add_f32 {v2(SS(kt, t) + r)}, {v2(SS(kt, t) + r)}, {v2(VD(t) & ~1)} op_sel:[0,{VD(t) & 1}] op_sel_hi:[1,{VD(t) & 1}] neg_lo:[0,1] neg_hi:[0,1]"
       for kt in range(2) for t in T3 for r in (0, 2)])
    A([f"v_sub_f32 v{NM(t) + r}, 0, v{VD(t)}" for t in T3 for r in range(4)])
    A([f"v_mov_b64 {v2(VL(t))}, 0" for t in T3])
    A(exps(0, 0) + exps(0, 1) + exps(1, 0))
    if cfg.earlyb:
        A(k_reads(1))
        A(zero[20:])
    else:
        A("s_barrier")
        A(k_reads(1))
        A(zero[20:])

    def iteration(i):
        pre = pk_sum(0, 0) + pk_sum(0, 1) + pk_sum(1, 0) + p_cvt(0) + p_cvt(1, 0)
        vr = [x for T in range(8) for x in v_reads(T, i)]
        vgap = list(range(8, 22)) + [23, 24]
        add11 = [f"v_add_f32 v{VL(t) + r}, v{VL(t) + r}, v{SS(1, t) + 2 + r}" for t in T3 for r in range(2)]
        early = exps(0, 0) + exps(0, 1) + exps(1, 0)
        fill = ([(5, "s_waitcnt lgkmcnt(0)"), (22, "s_waitcnt lgkmcnt(4)"), (35, "s_waitcnt lgkmcnt(0)")]
                + ([(12, f"s_sub_u32 s{S_CNT}, s{S_CNT}, 1"), (40, f"s_cmp_lg_u32 s{S_CNT}, 0")] if i == 2 else [])
                + list(zip(vgap, vr)) + list(zip(range(6), exps(1, 1))) + list(zip((6, 6, 7, 7, 8, 9), add11)) + list(zip((10, 11, 11), p_cvt(1, 1)))
                + list(zip(range(16, 22), guard_max(0))) + list(zip((25, 25, 26, 26, 27, 27), guard_max(1)))
                + [(28, f"v_cmp_lt_f32 vcc, s{S_C}, v{VX}"), (29, f"s_cbranch_vccnz L_up_{i}")] + list(zip(range(30, 48), early)))
        mf = qk_mfma() + pv_mfma(cfg)
        rare.append([f"L_up_{i}:", "s_waitcnt lgkmcnt(0)"] + mf[30:] + row_max() + [f"v_max_f32 v{VD(t)}, 0, v{VD(t)}" for t in T3] + shift_scores()
                    + [f"v_exp_f32 v{VA(t)}, -v{VD(t)}" for t in T3]
                    + [f"v_sub_f32 v{NM(t) + r}, v{NM(t) + r}, v{VD(t)}" for t in T3 for r in range(4)]
                    + [f"v_mul_f32 v{VL(t) + r}, v{VL(t) + r}, v{VA(t)}" for t in T3 for r in range(2)]
                    + rescale(VA) + early + [f"s_cmp_lg_u32 s{S_CNT}, 0", f"s_branch L_back_{i}"])
        return pre + ["s_waitcnt lgkmcnt(6)"] + weave(mf, fill) + [f"L_back_{i}:"]

    A("; ---- attention loop, three key tiles per trip")
    A(f"s_mov_b32 s{S_C}, {f32(cfg.thr)}\ns_mov_b32 s{S_CNT}, 5\ns_branch L_aenter\n.p2align 3")
    top = P.add(["L_aloop:"] + ahook + ["s_barrier"] + k_reads(1) + ["L_aenter:"])
    body = P.add(iteration(0) + ["s_barrier"] + k_reads(2) + iteration(1) + ["s_barrier"] + k_reads(0) + iteration(2)
                 + ["s_cbranch_scc1 L_aloop"])
    tr.extend(body + top + body)
    A(exps(1, 1) + pk_sum(0, 0) + pk_sum(0, 1) + pk_sum(1, 0) + pk_sum(1, 1))
    A([f"v_add_f32 v{VL(t)}, v{VL(t)}, v{VL(t) + 1}" for t in T3])
    A(xlane("v_add_f32", [VL(t) for t in T3], [VT(t) for t in T3]))
    A([f"v_rcp_f32 v{VL(t)}, v{VL(t)}" for t in T3])
    bc = "op_sel_hi:[1,0]"
    A([f"v_pk_mul_f32 {v2(SS(kt, t) + r)}, {v2(SS(kt, t) + r)}, {v2(VL(t))} {bc}" for kt in range(2) for t in T3 for r in (0, 2)])
    A(p_cvt(0) + p_cvt(1))
    oscale = [f"v_pk_mul_f32 {v2(ACC(T, t) + r)}, {v2(ACC(T, t) + r)}, {v2(VL(t))} {bc}" for T in range(8) for t in T3 for r in (0, 2)]
    A(oscale[:24])
    A("s_barrier")
    A([x for T in range(8) for x in v_reads(T, 15)])
    A(oscale[24:])

    def last_pv(pol, hold=False):
        def o_out(s):
            return (acc_to_frag(s) + [f"s_mov_b32 s{S_T0}, {(s >> 1) * 24576 + (s & 1) * 3072}"]
                    + [f"buffer_store_dwordx4 {v4(QF(s, t))}, v{V_OST}, {srd(sWS)}, s{S_T0} offen offset:{t * 1024} {pol}" for t in T3])
        fill = []
        for s in range(3):
            o = o_out(s)
            fill += [(6 * s + 12, x) for x in o[12:]] if s < 2 else []
            fill += spread(o[:12], 6 * s + 6, 6 * s + 11)
        if hold:
            return weave(pv_mfma(cfg), fill) + o_out(3)[:12], o_out(2)[12:] + o_out(3)[12:]
        return weave(pv_mfma(cfg), fill) + o_out(2)[12:] + o_out(3)

    near, held = last_pv("", True) if cfg.split else (last_pv(""), [])
    A([f"s_cmp_lg_u32 s{S_FLAG}, 1", "s_cbranch_scc1 L_far"] + near + ["L_near:"])
    rare.append(["L_far:"] + last_pv("sc1")
                + [f"v_and_b32 v{VA(0)}, 3, v{V_TMP}", f"v_xor_b32 v{VA(0)}, s{S_GRP}, v{VA(0)}", f"v_lshlrev_b32 v{VA(0)}, 2, v{VA(0)}",
                   f"s_mov_b32 s{S_SPIN}, 0", "L_rechk:", f"s_cmp_lg_u32 s{S_FLAG}, 2", "s_cbranch_scc1 L_rechk_done",
                   f"buffer_load_dword v{VA(1)}, v{VA(0)}, {srd(sDBG)}, 0 offen sc1", "s_waitcnt vmcnt(0)"] + judge(VA(1))
                + [f"s_add_u32 s{S_SPIN}, s{S_SPIN}, 1", f"s_cmp_lt_u32 s{S_SPIN}, {cfg.chk_max}", "s_cbranch_scc1 L_rechk",
                   "L_rechk_done:", f"s_mov_b32 s{S_FLAG}, 0"]
                + ([f"v_mov_b32 v{V_CHK}, 2", f"v_mov_b32 v{V_OST}, 0x40000000"] if cfg.split else []) + ["s_branch L_near"])
    stamp()
    if cfg.w1late:
        A("s_barrier")
    fst = f"buffer_store_dword v{V_CHK}, v{V_FLG}, {srd(sWS)}, 0 offen"
    flag = [f"s_cmp_eq_u32 s{S_FLAG}, 0", "s_mov_b64 exec, 0xff", "s_waitcnt vmcnt(0)", "s_cbranch_scc1 L_farflag", fst, "L_flagged:", "s_mov_b64 exec, -1"]
    rare.append(["L_farflag:", fst + " sc1", "s_branch L_flagged"])
    A(f"""
    s_lshl_b32 s{S_T0}, s{S_HG}, 6
    v_and_b32 v{AW(0)}, 0xfff, v{AV(0)}
    v_xor_b32 v{AW(0)}, s{S_T0}, v{AW(0)}
    """)
    for T in range(1, 8):
        A(f"v_xor_b32 v{AW(T)}, {T << 5}, v{AW(0)}")
    A(f"""
    s_add_u32 s{S_T0}, s{S_LWB}, {BRING}
    v_lshl_add_u32 v{AB(0)}, v{V_TMP}, 4, s{S_T0}
    v_mov_b32 v{AK(1)}, 1
    """)
    if cfg.flag_after < 0:
        A(flag)
        stamp()
    A("s_barrier")
    A(gemm_reads(0, 0, "o", with_b=False))
    wstep = [f"v_add_u32 v{AW(T)}, {WSLOT}, v{AW(T)}" for T in range(8)]
    for hs in range(0 if cfg.bdirect else 4):
        if hs == cfg.flag_after:
            A(flag)
            stamp()
        fill = []
        if hs < 3:
            fill += spread(gemm_reads((hs + 1) & 1, (hs + 1) & 1, "o", with_b=False), 0, 15)
        if hs in (0, 2):
            fill += spread(wstep, 16, 23)
        A(weave(gemm_mfma(cfg, hs & 1, bsrc=lambda t: QF(hs, t), zero=(hs == 0)), fill))
    xaddr = (f"""
    s_mul_i32 s{S_T0}, s{S_W}, 9216
    s_add_u32 s{S_T0}, s{S_T0}, {WS_X}
    v_lshl_add_u32 v{AB(1)}, v{V_TMP}, 4, s{S_T0}
    v_and_b32 v{AK(3)}, 3, v{V_TMP}
    s_lshl_b32 s{S_T0}, s{S_W}, 9
    s_add_u32 s{S_T0}, s{S_T0}, {WS_INBOX}
    v_lshl_add_u32 v{AK(2)}, v{AK(3)}, 7, s{S_T0}
    v_xor_b32 v{AK(0)}, s2, v{AK(3)}
    v_lshl_add_u32 v{AK(0)}, v{AK(0)}, 11, v{AK(2)}
    v_max_u32 v{AK(3)}, 1, v{AK(3)}
    s_lshl_b32 s{S_T1}, s2, 11
    s_add_u32 s{S_T0}, s{S_T0}, s{S_T1}
    v_lshl_add_u32 v{AK(2)}, v{AK(3)}, 7, s{S_T0}
    v_and_b32 v{AV(0)}, 15, v{V_TMP}
    v_bfe_u32 v{AV(1)}, v{V_TMP}, 4, 1
    v_bfe_u32 v{AV(2)}, v{V_TMP}, 5, 1
    s_mul_i32 s{S_T0}, s{S_BP}, 192
    s_mul_i32 s{S_T1}, s{S_W}, 48
    s_add_u32 s{S_T0}, s{S_T0}, s{S_T1}
    s_lshl_b32 s{S_T0}, s{S_T0}, 12
    s_lshl_b32 s{S_T1}, s{S_BLK}, 11
    s_add_u32 s{S_T0}, s{S_T0}, s{S_T1}
    s_lshl_b32 s{S_T1}, s{S_NU}, 8
    s_add_u32 s{S_T0}, s{S_T0}, s{S_T1}
    s_lshl_b32 s{S_T1}, s{S_HG}, 6
    s_add_u32 s{S_T0}, s{S_T0}, s{S_T1}
    v_lshl_add_u32 v{AV(0)}, v{AV(0)}, 12, s{S_T0}
    v_lshl_add_u32 v{AV(0)}, v{AV(1)}, 5, v{AV(0)}
    v_lshl_add_u32 v{AV(0)}, v{AV(2)}, 4, v{AV(0)}
    """)
    if cfg.wideflag:
        xaddr += f"""v_bfe_u32 v{AK(3)}, v{V_TMP}, 3, 2
        v_xor_b32 v{AK(0)}, s2, v{AK(3)}
        v_lshlrev_b32 v{AK(0)}, 11, v{AK(0)}
        v_lshl_add_u32 v{AK(0)}, v{AK(3)}, 7, v{AK(0)}
        v_and_b32 v{AK(3)}, 7, v{V_TMP}
        v_lshl_add_u32 v{AK(0)}, v{AK(3)}, 4, v{AK(0)}
        s_lshl_b32 s{S_T0}, s{S_W}, 9
        s_add_u32 s{S_T0}, s{S_T0}, {WS_INBOX}
        v_add_u32 v{AK(0)}, s{S_T0}, v{AK(0)}
        """ + "".join(f"v_mov_b32 v{AV(4) + k}, 1\n" for k in range(4))
    if not cfg.bdirect:
        A(xaddr + f"s_mov_b32 s{S_SLOT}, 2")
    if cfg.wb:
        A(f"""s_and_b32 s{S_T0}, s2, {cfg.wbmask}
        s_or_b32 s{S_T0}, s{S_T0}, s{S_W}
        s_cselect_b32 s{S_FLAG}, 0, {cfg.wb}""")
        rare.append(["L_wb:", "buffer_wbl2 sc1", "s_branch L_wbdone"])
    XF = QF
    after = []
    mf = gemm_mfma(cfg, 1)
    if cfg.bdirect:
        assert cfg.par in (0, 1) and not cfg.oord and cfg.flag_after in (-1, 1)
        ring = [FB(0, 0), FB(1, 0)] + [QF(s, 0) for s in range(4)]
        BR = lambda h: (lambda t: ring[(h - 4) % 6] + 4 * t)
        rel = o_rel(cfg)[2:]
        tbl = sum(r << (4 * n) for n, r in enumerate(rel))
        nxt = [f"s_add_u32 s{S_BO}, s{S_TBL}, s{S_J2}", f"s_and_b32 s{S_BO}, s{S_BO}, 15", f"s_mul_i32 s{S_BO}, s{S_BO}, 24576",
               f"s_lshr_b64 s[{S_TBL}:{S_TBL + 1}], s[{S_TBL}:{S_TBL + 1}], 4"]
        bload = lambda h: [f"buffer_load_dwordx4 {v4(BR(h)(t))}, v{AV(3) if h & 1 else AB(0)}, {srd(sWS)}, s{S_BO} offen offset:{t * 1024} {cfg.pol_ob}" for t in T3]
        bgaps = [int(x) for x in cfg.bgaps.split(".")]
        sal = [f"s_add_u32 s{S_SLOT}, s{S_SLOT}, 1", f"s_and_b32 s{S_SLOT}, s{S_SLOT}, 3", f"s_cselect_b32 s{S_DW}, {WSLOT}, s{S_T2}"]
        val = [f"v_add_u32 v{AW(T)}, s{S_DW}, v{AW(T)}" for T in range(8)]

        def half(h, extra=()):
            b = h & 1
            fill = []
            if 2 <= h <= 26:
                fill += (list(zip(range(4, 8), nxt)) if b else []) + list(zip(bgaps, bload(h + 5)))
            if b:
                fill += spread(gemm_reads(0, 0, "o", with_b=False), -1, 14) + [(22, "s_waitcnt lgkmcnt(0)")]
            else:
                fill += spread(gemm_reads(1, 1, "o", with_b=False), 0, 15) + list(zip(range(3), sal)) + list(zip((8, 9, 10, 11, 12, 13, 14, 16), val))
                fill += [(22, "s_waitcnt lgkmcnt(0)")] + ([(22, "s_barrier")] if 2 <= h <= 28 or (h == 0 and cfg.w1late) else [])
            if 3 <= h <= 30:
                fill += [(23, f"s_waitcnt vmcnt({3 * min(4, 30 - h)})")]
            return weave(gemm_mfma(cfg, b, bsrc=BR(h), zero=(h == 0)), fill + list(extra))

        A(f"""s_mul_i32 s{S_T0}, s{S_GRP}, 393216
        s_add_u32 s{S_T0}, s{S_T0}, s{S_LWB}
        v_lshl_add_u32 v{AB(0)}, v{V_TMP}, 4, s{S_T0}
        v_add_u32 v{AV(3)}, 3072, v{AB(0)}
        s_mov_b32 s{S_TBL}, {tbl & 0xffffffff}
        s_mov_b32 s{S_TBL + 1}, {tbl >> 32}
        s_lshl_b32 s{S_J2}, s{S_J}, 1
        s_mov_b32 s{S_SLOT}, 0""")
        xa = [x.strip() for x in xaddr.split("\n") if x.strip()]
        if cfg.split:
            if cfg.flag_after < 0:
                A(half(0, list(zip((3, 4, 8, 12, 15, 16, 19, 22), held))))
                A(half(1, [(0, f"v_mov_b32 v{V_CHK}, 2")] + spread(xa, 1, 21)))
            else:
                h0 = half(0, list(zip((16, 17, 20, 23), held[:4])))
                cut = [k for k, x in enumerate(h0) if x.startswith("v_mfma")][cfg.fgap]
                A(h0[:cut] + flag + h0[cut:])
                stamp()
                A(half(1, list(zip((1, 2, 5, 8), held[4:])) + [(9, f"v_mov_b32 v{V_CHK}, 2")] + spread(xa, 10, 21)))
            A([f"s_cmp_eq_u32 s{S_FLAG}, 0", "s_cbranch_scc1 L_flagged2", "s_mov_b64 exec, 0xff", "s_waitcnt vmcnt(0)", fst, "s_mov_b64 exec, -1", "L_flagged2:"])
        else:
            A(half(0))
            if cfg.flag_after == 1:
                A(flag)
                stamp()
            A(half(1, spread(xa, 0, 21)))
        A(["s_barrier"] + nxt + bload(4) + bload(5) + nxt + bload(6))
        A(half(2))
        A(f"s_mov_b32 s{S_CNT}, 4\n.p2align 3")
        body = P.add(["L_oloop:"] + half(3) + half(4) + half(5) + half(6) + half(7)
                     + half(8, [(5, f"s_sub_u32 s{S_CNT}, s{S_CNT}, 1"), (6, f"s_cmp_lg_u32 s{S_CNT}, 0")]) + ["s_cbranch_scc1 L_oloop"])
        tr.extend(body + body)
        XF = lambda i, t: QF(0, t) if i == 0 else 144 + ((i - 1) * 3 + t) * 4
        mf = gemm_mfma(cfg, 1, bsrc=BR(31))
        if not cfg.defer:
            for h in range(27, 31):
                A(half(h))
        elif cfg.defer == 2:
            rd = lambda h, T, reg: [f"ds_read_b64_tr_b16 {v2(reg + 2 * u)}, v{AW(T)} offset:{(h - 28) * 8192 + u * 4096}" for u in range(2)]
            seq = [(27, 1), (27, 2), (27, 3), (28, 1), (28, 2), (29, 1), (30, 1), (31, 1), (29, 2), (30, 2), (31, 2),
                   (28, 3), (29, 3), (30, 3), (31, 3), (27, 0), (28, 0), (29, 0), (30, 0), (31, 0)]
            XF = lambda i, t: {0: QF(0, t), 1: QF(2, t), 2: FA(1, 2 + t), 3: FA(1, 5 + t)}[i]
            main, fill, k = [], [(17, "s_barrier")], 0
            prev = [-1] * 4
            for n, (h, g) in enumerate(seq):
                if h == 27:
                    a = FA(1, 2 * g)
                else:
                    a = FA(0, 2 * (k % 4))
                    at = max(prev[k % 4] + 1, n - 3, 3 if h >= 30 else 0)
                    fill += list(zip(range(6 * at, 6 * at + 4), [x for u in range(2) for x in rd(h, 2 * g + u, a + 4 * u)]))
                    prev[k % 4] = n
                    k += 1
                main += [f"{MFMA} {v4(ACC(2 * g + T, t))}, {v4(a + 4 * T)}, {v4(BR(h)(t))}, {v4(ACC(2 * g + T, t))}" for T, t in order(2, cfg.snake)]
                if g == 1 and h > 27:
                    fill.append((6 * n - 1, f"s_waitcnt vmcnt({3 * (31 - h)})"))
            for i in range(1, 4):
                n = seq.index((31, i)) + 1
                so = [f"s_xor_b32 s{S_T0}, s2, {i}", f"s_mul_i32 s{S_T0}, s{S_T0}, 36864", f"s_add_u32 s{S_T0}, s{S_T0}, {(i - 1) * 3072}"]
                st = [f"buffer_store_dwordx4 {v4(XF(i, t))}, v{AB(1)}, {srd(sWS)}, s{S_T0} offen offset:{t * 1024} sc1" for t in T3]
                cv = acc_to_frag(i, XF)
                cv = [cv[6 * u + 2 * t + hh] for t in (2, 1, 0) for u in range(2) for hh in range(2)]
                fill = list(zip(range(6 * n, 6 * n + 3), so)) + list(zip((6 * n + 4, 6 * n + 6, 6 * n + 8), reversed(st))) + fill
                fill += spread(cv, 6 * n + 2, 6 * n + 7)
            xflag = lambda i, n: [f"s_waitcnt vmcnt({n})", f"s_mov_b64 exec, {1 << i}", f"buffer_store_dword v{AK(1)}, v{AK(0)}, {srd(sWS)}, 0 offen sc1", "s_mov_b64 exec, -1"]
            if cfg.xprog:
                assert cfg.xprog > 98
                fill += [(cfg.xprog, x) for x in xflag(1, 6)]
            A(weave(main, fill))
            stamp()
        else:
            rd = lambda h, T, reg: [f"ds_read_b64_tr_b16 {v2(reg + 2 * u)}, v{AW(T)} offset:{(h - 28) * 8192 + u * 4096}" for u in range(2)]
            own = lambda h, T: {27: FA(1, T), 28: FA(0, T), 29: QF(2, 0) + 4 * T, 30: FA(1, T), 31: FA(0, T)}[h]
            ownrd = lambda h: [x for T in range(2) for x in rd(h, T, own(h, T))]
            for h in range(27, 31):
                b = h & 1
                reads = [x for T in range(2, 8) for x in rd(h + 1, T, FA(1 - b, T))] + ownrd(28 + (h - 27) // 2)[2 * (1 - b):2 * (1 - b) + 2]
                fill = spread(reads, -1 if b else 0, 12 if b else 13)
                fill += [(16, "s_waitcnt lgkmcnt(2)")] + ([(16, "s_barrier")] if h == 28 else []) + [(17, f"s_waitcnt vmcnt({3 * (30 - h)})")]
                A(weave(gemm_mfma(cfg, b, bsrc=BR(h))[6:], fill))
            XF = lambda i, t: {0: QF(0, t), 1: FA(0, 2 + t), 2: FA(0, 5 + t), 3: FA(1, 2 + t)}[i]
            late = [f"{MFMA} {v4(ACC(T, t))}, {v4(own(h, T))}, {v4(BR(h)(t))}, {v4(ACC(T, t))}" for h in range(27, 32) for T, t in order(2, cfg.snake)]
            mf = late[:6] + mf[6:]
            after = weave(late[6:], list(zip(range(0, 4), ownrd(30))) + list(zip(range(6, 10), ownrd(31))))
    else:
        A("s_barrier")
        A(gemm_reads(0, 0, "o"))
        gemm_loop(P, tr, cfg, "o", "L_oloop", 14)
    fill = []
    for i in range(1, 4):
        so = [f"s_xor_b32 s{S_T0}, s2, {i}", f"s_mul_i32 s{S_T0}, s{S_T0}, 36864", f"s_add_u32 s{S_T0}, s{S_T0}, {(i - 1) * 3072}"]
        st = [f"buffer_store_dwordx4 {v4(XF(i, t))}, v{AB(1)}, {srd(sWS)}, s{S_T0} offen offset:{t * 1024} sc1" for t in T3]
        fill += [(6 * i + 6, x) for x in st] + list(zip(range(6 * i + 1, 6 * i + 4), so)) + spread(acc_to_frag(i, XF), 6 * i, 6 * i + 5)
    if cfg.defer != 2:
        A("; ---- partner tiles leave first, the own tiles finish meanwhile")
        last = [x for g, x in fill if g == 24]
        A(weave(mf[6:] + mf[:6], [(g, x) for g, x in fill if g < 24]) + last)
        stamp()
        A(after)
    xload = lambda k, so: f"buffer_load_dwordx4 {v4(24 + 4 * k)}, v{AB(1)}, {srd(sWS)}, s{so} offen offset:{(k % 3) * 1024} sc1"

    def xadd(i):
        for k in range(3 * i, 3 * i + 3):
            for d in range(4):
                src, dst = 24 + 4 * k + d, ACC(d >> 1, k % 3) + 2 * (d & 1)
                A(f"""v_lshlrev_b32 v64, 16, v{src}
                v_and_b32 v65, s{S_C}, v{src}
                v_pk_add_f32 {v2(dst)}, {v2(dst)}, v[64:65]""")

    so = (S_T0, S_T1, S_T2)
    xbase = f"s_mul_i32 s{S_T0}, s2, 36864\ns_add_u32 s{S_T1}, s{S_T0}, 3072\ns_add_u32 s{S_T2}, s{S_T0}, 6144\ns_mov_b32 s{S_C}, 0xffff0000"
    if cfg.xprog:
        A(xflag(2, 4))
        A(xbase + f"\ns_mov_b32 s{S_MASK}, 0\ns_mov_b32 s{S_SPIN}, 0")
        A(xflag(3, 2))
        stamp()
        for i in range(3):
            loop = P.add(f"""L_x{i}:
            s_bitcmp1_b32 s{S_MASK}, {i + 1}
            s_cbranch_scc1 L_x{i}_done
            buffer_load_dword v{V_CHK}, v{AK(2)}, {srd(sWS)}, 0 offen sc1
            s_add_u32 s{S_SPIN}, s{S_SPIN}, 1
            s_waitcnt vmcnt(0)
            v_cmp_eq_u32 vcc, 1, v{V_CHK}
            s_mov_b32 s{S_MASK}, vcc_lo
            s_cmp_lt_u32 s{S_SPIN}, {SPIN_MAX}
            s_cbranch_scc1 L_x{i}""")
            tr.extend(loop[:3])
            side.append(loop + loop)
            A(f"L_x{i}_done:")
            if i == 2:
                stamp()
            A([xload(k, so[i]) for k in range(3 * i, 3 * i + 3)])
        for i in range(3):
            xadd(i)
    elif not cfg.tag:
        if cfg.wideflag:
            A(["s_mov_b32 exec_lo, 0xffffff00", "s_mov_b32 exec_hi, 0", "s_waitcnt vmcnt(0)",
               f"buffer_store_dwordx4 {v4(AV(4))}, v{AK(0)}, {srd(sWS)}, 0 offen sc1", "s_mov_b64 exec, -1"])
        else:
            A(["s_waitcnt vmcnt(0)", "s_mov_b64 exec, 14", f"buffer_store_dword v{AK(1)}, v{AK(0)}, {srd(sWS)}, 0 offen sc1", "s_mov_b64 exec, -1"])
        stamp()
        if cfg.apoll:
            A("s_mov_b64 exec, 14")
        poll_loop(P, tr, "poll2", V_CHK, AK(2), cfg.apoll)
        if cfg.apoll:
            A("s_mov_b64 exec, -1")
        stamp()
        A(xbase)
        A([xload(k, so[k // 3]) for k in range(9)])
        for i in range(3):
            xadd(i)
    else:
        stamp()
        A(xbase)
        A(f"s_mov_b32 s{S_SPIN}, 0")
        if cfg.tag == 2:
            probe = P.add(["L_probe:"] + [xload(3 * i + 2, so[i]) for i in range(3)] + f"""s_add_u32 s{S_SPIN}, s{S_SPIN}, 1
            s_cmp_ge_u32 s{S_SPIN}, {SPIN_MAX}
            s_cbranch_scc1 L_probed
            s_waitcnt vmcnt(0)
            v_max3_u32 v64, v35, v47, v59
            v_cmp_eq_u32 vcc, -1, v64
            s_cbranch_vccnz L_probe""".split("\n"))
            tr.extend(probe + probe)
            A("L_probed:")
        first = [xload(k, so[k // 3]) for k in range(9) if cfg.tag == 1 or k % 3 != 2]
        A(first)
        for i in range(3):
            b = 24 + 12 * i
            chk2 = ([f"v_max3_u32 v64, v{b}, v{b + 1}, v{b + 2}"] + [f"v_max3_u32 v64, v{b + k}, v{b + k + 1}, v64" for k in range(3, 11, 2)]
                    + [f"v_max_u32 v64, v{b + 11}, v64", "v_cmp_eq_u32 vcc, -1, v64"])
            A([f"L_x{i}:"] + chk2 + [f"s_cbranch_vccnz L_xr{i}", f"L_xok{i}:"])
            rare.append([f"L_xr{i}:"] + [xload(k, so[i]) for k in range(3 * i, 3 * i + 3)]
                        + [f"s_add_u32 s{S_SPIN}, s{S_SPIN}, 1", f"s_cmp_lt_u32 s{S_SPIN}, {SPIN_MAX}", "s_waitcnt vmcnt(0)",
                           f"s_cbranch_scc1 L_x{i}", f"s_branch L_xok{i}"])
            if i == 2:
                stamp()
            xadd(i)
    A(acc_to_frag(0))
    A([f"v_permlane16_swap_b32 v{QF(0, t) + h}, v{QF(0, t) + 2 + h}" for t in T3 for h in range(2)])
    if cfg.linout:
        A(f"s_lshl_b32 s{S_T0}, s2, 2\ns_add_u32 s{S_T0}, s{S_T0}, s{S_W}\ns_mul_i32 s{S_T0}, s{S_T0}, 3072\nv_lshl_add_u32 v{AV(0)}, v{V_TMP}, 4, s{S_T0}")
    for t in T3:
        A(f"s_mov_b32 s{S_T0}, {t * (1024 if cfg.linout else 65536)}\nbuffer_store_dwordx4 {v4(QF(0, t))}, v{AV(0)}, {srd(sOUT)}, s{S_T0} offen {cfg.pol_out}")
    if cfg.stamps:
        A("s_waitcnt vmcnt(0)")
        stamp()
        A(f"v_mov_b32 v1, 0")
        for k in range(nst[0]):
            A(f"v_writelane_b32 v1, s{S_ST + 2 * k}, {k}")
        A(f"""s_lshl_b32 s{S_T0}, s2, 3
        s_add_u32 s{S_T0}, s{S_T0}, s{S_WAVE}
        s_lshl_b32 s{S_T0}, s{S_T0}, 8
        s_add_u32 s{S_T0}, s{S_T0}, {WS_STAMP}
        v_lshl_add_u32 v2, v{V_TMP}, 2, s{S_T0}
        buffer_store_dword v1, v2, {srd(sWS)}, 0 offen""")
    A("L_exit:\ns_endpgm")
    blocks = {}
    for blk in rare:
        blocks[blk[0][:-1]] = P.add(blk)
    tr2 = []
    skip = None
    for ins in tr:
        if skip:
            if ins.text == skip + ":":
                skip = None
            else:
                continue
        tr2.append(ins)
        if ins.op.startswith("s_cbranch") and ins.text.split()[1] in blocks:
            blk = blocks[ins.text.split()[1]]
            tr2 += blk
            skip = blk[-1].text.split()[1]
    assert skip is None
    return [tr, tr2], side


def generate(cfg):
    P = Prog()
    pre = P.add(("s_memrealtime s[96:97]\n" if cfg.stamps else "") + "s_cmp_ge_u32 s2, 256\ns_cbranch_scc1 L_exit")
    if cfg.remap:
        pre += P.add("""s_bfe_u32 s4, s2, 0x20003
        s_lshr_b32 s5, s2, 5
        s_and_b32 s2, s2, 7
        s_lshl_b32 s4, s4, 6
        s_lshl_b32 s5, s5, 3
        s_or_b32 s2, s2, s4
        s_or_b32 s2, s2, s5""")
    pre += prologue(P, cfg)
    tl = loader(P, cfg)
    tc, side = compute(P, cfg)
    body = P.finish([pre + t for t in tc + tl] + side)
    if cfg.align:
        body = align8(body)
    body = body.replace(".p2align 3", f".p2align {cfg.lalign}" + "\n    s_nop 0" * cfg.lpad)
    return (HEADER + DOC + "; @launch grid=(256,1,1) block=(512,1,1) lds=163840\n"
            + '.amdgcn_target "amdgcn-amd-amdhsa--gfx950"\n.text\n'
            + f".globl {NAME}_kernel\n.p2align 8\n.type {NAME}_kernel,@function\n{NAME}_kernel:\n" + body
            + f"""L_text_end:
.section .rodata,"a"
.p2align 6
.amdhsa_kernel {NAME}_kernel
  .amdhsa_next_free_vgpr 256
  .amdhsa_next_free_sgpr 102
  .amdhsa_accum_offset 256
  .amdhsa_group_segment_fixed_size 0
  .amdhsa_kernarg_size 104
  .amdhsa_user_sgpr_count 2
  .amdhsa_user_sgpr_kernarg_segment_ptr 1
  .amdhsa_system_sgpr_workgroup_id_x 1
  .amdhsa_float_denorm_mode_32 3
.end_amdhsa_kernel
""")


def parse(args):
    kw = {}
    for a in args:
        k, v = a.split("=")
        kw[k] = float(v) if k == "thr" else (int(v) if v.lstrip("-").isdigit() and not k.startswith(("pre", "ptouch", "spre", "bgaps", "order", "kbits", "qskip")) else v.replace("+", " "))
    return Cfg(**kw)


if __name__ == "__main__":
    open(sys.argv[1], "w").write(generate(parse(sys.argv[2:])))
```

```python
import gen, calib2, sys
KW = dict()
S = (4, 0, "min")


def b(path, a, c, zero=False, mul=1):
    calib2.build(path, a, c, zero=zero, **KW)
    s = open(path).read().replace("s_sub_u32 s22, s21, s20\n", f"s_sub_u32 s22, s21, s20\ns_mul_i32 s22, s22, {mul}\n")
    open(path, "w").write(s)


b("d_zero.s", S, (0, 5, "max"), zero=True)
b("d_b17.s", S, (4, 18, "max"))
b("d_b32.s", S, (4, 33, "max"))
b("d_b36.s", S, (4, 37, "max"))
b("d_b48.s", S, (4, 49, "max"))
b("d_end.s", S, (0, 5, "max"))
```

```python
import struct, sys
from asmlib import Prog, weave, spread, balance, align8

NAME = "concat_heads__mha_block_cached__gqa_block_cached__near_ridge"
HEADER = open("cdna_kernels/" + NAME + ".s.ref").read().split("; Override launch")[0]

DOC = """; One launch, 256 workgroups (one per CU) of 4 compute waves + 4 loader waves, all MFMA work in 16x16x32 bf16.
;   1. Q^T = Wq^T x^T      16 stages of K=64 through an LDS ring (LDS-DMA, XOR-swizzled, transposing LDS reads)
;   3. out^T = Wo^T O^T    the eight members of a head group exchange O through d_ws; each computes 128 columns over
;   4. reduction           the four head groups exchange partial tiles through d_ws; each finishes 32 columns.
; only after those reports are seen. Stores are write-through unless the reports show the whole group on one die.
"""

WS_O, WS_X, WS_INBOX, WS_STAMP, WS_DUMP = 0, 16 << 20, 48 << 20, 200 << 20, 64 << 20
WRING, BRING, KRING, VRING = 0, 65536, 65536, 114688
WSLOT, BSLOT, ASLOT = 16384, 24576, 16384
SPIN_MAX = 400000
T3 = range(3)

S_WAVE, sX, sK, sV, sWQ, sWO, sOUT, sWS, sDBG = 3, 20, 24, 28, 32, 36, 40, 44, 48
S_BLK, S_HG, S_J, S_BP, S_NU, S_W, S_H, S_DB = 52, 53, 54, 55, 56, 57, 58, 59
S_T0, S_T1, S_T2, S_T3, S_CNT, S_DW, S_C, S_SLOT = 60, 61, 62, 63, 64, 65, 66, 68
S_LWB, S_LWW, S_ROT, S_J2, S_SPIN, S_FLAG, S_XCC, S_GRP = 69, 70, 71, 72, 73, 74, 75, 76
S_MASK, S_PC = 77, 78
S_SB = 94
S_TBL, S_BO = 92, 94
S_KR = 67
S_ST = 80
srd = lambda r: f"s[{r}:{r+3}]"
v4 = lambda r: f"v[{r}:{r+3}]"
v2 = lambda r: f"v[{r}:{r+1}]"
f32 = lambda x: "0x%08x" % struct.unpack("<I", struct.pack("<f", x))[0]
MFMA = "v_mfma_f32_16x16x32_bf16"

ACC = lambda T, t: (T * 3 + t) * 4
QF = lambda s, t: 96 + (s * 3 + t) * 4
FA = lambda b, T: 144 + 44 * b + 4 * T
FB = lambda b, t: 144 + 44 * b + 32 + 4 * t
AW = lambda T: 232 + T
AB = lambda s: 240 + s
V_CHK, V_TMP = 242, 243
FR = lambda f: 144 + 4 * f
SS = lambda kt, t: 176 + (kt * 3 + t) * 4
PP = lambda t: 200 + 4 * t
NM = lambda t: 212 + 4 * t
VL = lambda t: 224 + 2 * t
VX = 230
V_OST, V_FLG = 241, 231
VD = lambda t: 232 + t
VT = lambda k: 235 + k
VA = lambda t: 238 + t
AK = lambda s: 244 + s
AV = lambda T: 248 + T


class Cfg:
    def __init__(self, **kw):
        self.pol_x = ""
        self.pol_wq = ""
        self.pol_kv = "nt"
        self.pol_wo = ""
        self.pol_ob = "sc1"
        self.rot = 7
        self.stamps = 0
        self.flag_after = 1
        self.pre = "16.16.16.0.0.0.0.0.0.0.0.0.4.4"
        self.last = 29
        self.win = 5
        self.win16 = 8
        self.wo_at = "31.31.33.33"
        self.qd = 2
        self.thr = 8.0
        self.local = 1
        self.pk = 0
        self.snake = 1
        self.align = 1
        self.prio = 0
        self.remap = 0
        self.nurot = 1
        self.otouch = 0
        self.stag = 0
        self.s1pre = 36
        self.s1win = 8
        self.s0win = 8
        self.s0late = 8
        self.s0sw = 28
        self.prog = 1
        self.pre1 = '16.14.12.10'
        self.tag = 0
        self.oclear = 0
        self.coal = 1
        self.qres = 2
        self.qskipb = ''
        self.qskip = '3.4'
        self.earlyb = 0
        self.lalign = 6
        self.lpad = 0
        self.xprog = 0
        self.apoll = 0
        self.split = 0
        self.fgap = 12
        self.wideflag = 0
        self.psleep = 0
        self.kbits = '13.14.11.12.10.15.16'
        self.hmap = 3
        self.pol_t = 'sc1'
        self.order = '48c59d26ae37bf'
        self.clear_at = 0
        self.clear_b = 0
        self.krot = 0
        self.ksh = 0
        self.sigma = 5
        self.xtouch = 1
        self.hgrot = 3
        self.lazyp = 2
        self.w1late = 0
        self.linout = 0
        self.spreadc = 0
        self.latefetch = 0
        self.spreadsh = 4
        self.nocount = 0
        self.cls = 3
        self.clsinv = 1
        self.winlate = 0
        self.late = 27
        self.wwin = 0
        self.defer = 2
        self.bdirect = 1
        self.bgaps = '17.19.21'
        self.bwin = 0
        self.afirst = 0
        self.winb = 0
        self.lastb = 0
        self.par = 1
        self.spre = ''
        self.coop = ''
        self.coopw0 = 31
        self.promote = 0
        self.pol_out = 'nt'
        self.ptouch = ''
        self.wb = 0
        self.wbmask = 0xf8
        self.oord = 0
        self.od = 2
        self.ctouch = 1
        self.count_at = 13
        self.fetch_at = 3
        self.chk_max = 50000
        self.__dict__.update(kw)


def o_rel(cfg):
    if cfg.order:
        r = [0, 1] + [int(c, 16) for c in cfg.order]
        assert sorted(r) == list(range(16))
        return r
    return [m if not cfg.par else (4 * (m >> 1) + (m & 1) if m < 8 else 4 * ((m - 8) >> 1) + (m & 1) + 2) for m in range(16)]


def head_of(cfg, dst, j, tmp):
    if cfg.hmap == 0:
        return f"s_lshl_b32 s{dst}, s{S_HG}, 3\ns_add_u32 s{dst}, s{dst}, s{j}"
    if cfg.hmap == 1:
        return f"s_lshl_b32 s{dst}, s{j}, 2\ns_add_u32 s{dst}, s{dst}, s{S_HG}"
    if cfg.hmap in (2, 3):
        g = f"s_and_b32 s{dst}, s{j}, 3" if cfg.hmap == 2 else f"s_lshr_b32 s{dst}, s{j}, 1"
        return f"{g}\ns_xor_b32 s{dst}, s{dst}, s{S_HG}\ns_lshl_b32 s{dst}, s{dst}, 3\ns_add_u32 s{dst}, s{dst}, s{j}"
    lo = cfg.hmap - 3
    return (f"s_lshr_b32 s{dst}, s{j}, {lo}\ns_lshl_b32 s{dst}, s{dst}, 2\ns_add_u32 s{dst}, s{dst}, s{S_HG}\ns_lshl_b32 s{dst}, s{dst}, {lo}\n"
            f"s_and_b32 s{tmp}, s{j}, {(1 << lo) - 1}\ns_add_u32 s{dst}, s{dst}, s{tmp}")


def lane_id(v):
    return f"v_mbcnt_lo_u32_b32 v{v}, -1, 0\nv_mbcnt_hi_u32_b32 v{v}, -1, v{v}"


def make_srd(items):
    return "\n".join(f"s_mov_b32 s{r}, s{p}\ns_mov_b32 s{r+1}, s{p+1}\ns_mov_b32 s{r+2}, {n}\ns_mov_b32 s{r+3}, 0x20000" for r, p, n in items)


def prologue(P, cfg):
    return P.add(f"""
    s_bfe_u32 s{S_BLK}, s2, 0x10002
    s_mul_i32 s{S_T0}, s{S_BLK}, 40
    s_load_dwordx8 s[4:11], s[0:1], s{S_T0}
    s_add_u32 s{S_T1}, s{S_T0}, 32
    s_load_dwordx2 s[12:13], s[0:1], s{S_T1}
    s_load_dwordx4 s[16:19], s[0:1], 88
    s_load_dwordx2 s[14:15], s[0:1], 80
    v_lshrrev_b32 v1, 6, v0
    v_and_b32 v0, 63, v0
    s_and_b32 s{S_HG}, s2, 3
    v_readfirstlane_b32 s{S_WAVE}, v1
    s_bfe_u32 s{S_J}, s2, 0x30003
    s_lshr_b32 s{S_BP}, s2, 6
    {head_of(cfg, S_H, S_J, S_T2)}
    s_and_b32 s{S_W}, s{S_WAVE}, 3
    s_mul_i32 s{S_LWB}, s{S_W}, 6144
    s_lshl_b32 s{S_LWW}, s{S_W}, 12
    s_cmp_lt_u32 s{S_WAVE}, 4
    s_cbranch_scc1 L_compute
    """)


def late_ids(cfg):
    return f"""s_mul_i32 s{S_NU}, s{S_BP}, {2 * cfg.nurot}
    s_add_u32 s{S_NU}, s{S_NU}, s{S_J}
    s_and_b32 s{S_NU}, s{S_NU}, 7
    {f"s_xor_b32 s{S_NU}, s{S_NU}, s{S_BLK}" if cfg.sigma & 4 else ""}
    {f"s_lshl_b32 s{S_NU}, s{S_NU}, 2" if cfg.sigma & 3 else ""}
    {f"s_lshr_b32 s{S_NU}, {[0, 0x73625140, 0x75643120][cfg.sigma & 3]}, s{S_NU}" if cfg.sigma & 3 else ""}
    {f"s_and_b32 s{S_NU}, s{S_NU}, 7" if cfg.sigma & 3 else ""}
    s_and_b32 s{S_GRP}, s2, 7
    s_lshl_b32 s{S_T1}, s{S_BP}, 3
    s_add_u32 s{S_GRP}, s{S_GRP}, s{S_T1}"""


def x_touch(cfg, vaddr, vdst):
    if cfg.xtouch & 3 == 1:
        return [f"""s_lshr_b32 s{S_T0}, s2, 3
        s_lshl_b32 s{S_T0}, s{S_T0}, 2
        s_add_u32 s{S_T0}, s{S_T0}, s{S_HG}
        s_lshl_b32 s{S_T0}, s{S_T0}, 2
        s_add_u32 s{S_T0}, s{S_T0}, s{S_W}
        s_mul_i32 s{S_T0}, s{S_T0}, 3072
        v_min_u32 v{vaddr}, 23, v0
        v_lshlrev_b32 v{vaddr}, 7, v{vaddr}""", f"buffer_load_dword v{vdst}, v{vaddr}, {srd(sX)}, s{S_T0} offen"]
    return [f"""s_lshr_b32 s{S_T0}, s2, 3
    s_lshl_b32 s{S_T0}, s{S_T0}, 2
    s_add_u32 s{S_T0}, s{S_T0}, s{S_W}
    s_mul_i32 s{S_T0}, s{S_T0}, 12288
    s_add_u32 s{S_T1}, s{S_T0}, 6144
    v_min_u32 v{vaddr}, 47, v0
    v_lshlrev_b32 v{vaddr}, 7, v{vaddr}""", f"buffer_load_dword v{vdst}, v{vaddr}, {srd(sX)}, s{S_T0} offen",
            f"buffer_load_dword v{vdst}, v{vaddr}, {srd(sX)}, s{S_T1} offen"]


def code_touch(lane, vaddr, vdst):
    return f"""s_lshr_b32 s{S_T0}, s2, 3
    s_lshl_b32 s{S_T0}, s{S_T0}, 10
    v_and_b32 v{vaddr}, 7, v{lane}
    v_lshl_add_u32 v{vaddr}, v{vaddr}, 7, s{S_T0}
    v_min_u32 v{vaddr}, L_text_end-L_text-4, v{vaddr}
    global_load_dword v{vdst}, v{vaddr}, s[{S_PC}:{S_PC + 1}]"""


def poll_loop(P, tr, name, vdst, vaddr, mode=0):
    tr.extend(P.add(f"s_mov_b32 s{S_SPIN}, 0"))
    ld = f"buffer_load_dword v{vdst}, v{vaddr}, {srd(sWS)}, 0 offen sc1"
    if mode == 1:
        ld = f"v_mov_b32 v{vdst}, 0\nbuffer_atomic_or v{vdst}, v{vaddr}, {srd(sWS)}, 0 offen sc0"
    if mode == 2:
        ld += " nt"
    loop = P.add(f"""L_{name}:
    {ld}
    s_add_u32 s{S_SPIN}, s{S_SPIN}, 1
    s_cmp_ge_u32 s{S_SPIN}, {SPIN_MAX}
    s_cbranch_scc1 L_{name}_done
    s_waitcnt vmcnt(0)
    v_cmp_ne_u32 vcc, 1, v{vdst}
    s_cbranch_vccnz L_{name}""")
    tr.extend(loop + loop)
    tr.extend(P.add(f"L_{name}_done:"))


LX = lambda p: 8 + p
LW = lambda p: 14 + p
LK = lambda p: 18 + p
LV = lambda p: (22, 23, 34, 35)[p]
LWO = lambda p: 24 + p
LOB, LFLAG, LSTAMP, LPOLL = 28, 29, 30, 31
LDSW = lambda h: 1 + h
LTQ, LTO, LTB = 32, 33, 32
LPOOL = 36


def late_setup(A, cfg):
    kb = [int(x) for x in cfg.kbits.split(".")]
    padj = lambda p: ((p & 1) << kb[0]) + ((p >> 1) << kb[1]) - p * 1024
    assert min(padj(p) for p in range(4)) >= 0 and sorted(kb) == list(range(10, 17))
    A(f"""
    s_lshr_b32 s{S_T0}, s{S_W}, 1
    s_lshl_b32 s{S_T1}, s{S_BP}, 1
    s_add_u32 s{S_T0}, s{S_T0}, s{S_T1}
    s_lshl_b32 s{S_T0}, s{S_T0}, 5
    s_add_u32 s{S_T0}, s{S_T0}, s{S_H}
    s_lshl_b32 s{S_T0}, s{S_T0}, 17
    s_and_b32 s{S_T1}, s{S_W}, 1
    s_lshl_b32 s{S_T1}, s{S_T1}, {kb[2]}
    s_add_u32 s{S_T0}, s{S_T0}, s{S_T1}
    v_lshl_add_u32 v5, v1, 8, s{S_T0}
    v_xor_b32 v7, v2, v1
    """)
    for p in range(4):
        A(f"v_xor_b32 v3, {4 * p}, v7\nv_lshl_add_u32 v{LK(p)}, v3, 4, v5")
        if padj(p):
            A(f"v_add_u32 v{LK(p)}, {padj(p)}, v{LK(p)}")
    A(f"""
    v_lshl_add_u32 v{LV(0)}, v6, 4, v5
    v_xor_b32 v7, 8, v6
    v_lshl_add_u32 v{LV(1)}, v7, 4, v5
    v_add_u32 v{LV(2)}, {padj(2)}, v{LV(0)}
    v_add_u32 v{LV(3)}, {padj(3)}, v{LV(1)}
    v_add_u32 v{LV(1)}, {padj(1)}, v{LV(1)}
    {f"s_mov_b32 s{S_T0}, 0" if cfg.hmap else f"s_lshl_b32 s{S_T0}, s{S_HG}, 21"}
    s_lshl_b32 s{S_T1}, s{S_W}, 15
    s_add_u32 s{S_T0}, s{S_T0}, s{S_T1}
    s_lshl_b32 s{S_T1}, s{S_NU}, 8
    s_add_u32 s{S_T0}, s{S_T0}, s{S_T1}
    v_lshl_add_u32 v5, v1, 11, s{S_T0}
    v_add_u32 v{LTO}, s{S_T0}, v{LTO}
    v_lshl_add_u32 v{LWO(0)}, v6, 4, v5
    v_lshl_add_u32 v7, v7, 4, v5
    v_add_u32 v{LWO(1)}, {8192 - 1024}, v7
    v_add_u32 v{LWO(2)}, {2 * 8192 - 2048}, v{LWO(0)}
    v_add_u32 v{LWO(3)}, {3 * 8192 - 3072}, v7
    s_mul_i32 s{S_T0}, s{S_GRP}, 393216
    s_add_u32 s{S_T0}, s{S_T0}, s{S_LWB}
    v_lshl_add_u32 v{LOB}, v0, 4, s{S_T0}
    s_lshl_b32 s{S_T0}, s2, 11
    s_lshl_b32 s{S_T1}, s{S_W}, 9
    s_add_u32 s{S_T0}, s{S_T0}, s{S_T1}
    s_add_u32 s{S_T0}, s{S_T0}, {WS_INBOX}
    v_lshl_add_u32 v{LFLAG}, v4, 2, s{S_T0}
    s_lshl_b32 s{S_J2}, s{S_J}, 1
    s_add_u32 s{S_T0}, s{S_LWW}, {KRING}
    v_lshl_add_u32 v{LDSW(0)}, v0, 4, s{S_T0}
    v_add_u32 v{LDSW(1)}, {VRING - KRING}, v{LDSW(0)}
    """)


def loader(P, cfg):
    tr = []
    A = lambda t: tr.extend(P.add(t))
    A(f"""
    v_lshrrev_b32 v1, 4, v0
    v_and_b32 v2, 15, v0
    v_lshrrev_b32 v3, 3, v0
    v_and_b32 v4, 7, v0
    s_mul_i32 s{S_T0}, s{S_BP}, 192
    s_mul_i32 s{S_T1}, s{S_W}, 48
    s_add_u32 s{S_T0}, s{S_T0}, s{S_T1}
    s_lshl_b32 s{S_T0}, s{S_T0}, 11
    v_lshl_add_u32 v5, v3, 11, s{S_T0}
    v_xor_b32 v6, v4, v1
    v_lshl_add_u32 v{LX(0)}, v6, 4, v5
    v_xor_b32 v6, 4, v6
    v_lshl_add_u32 v7, v6, 4, v5
    """)
    for p in range(1, 6):
        A(f"v_add_u32 v{LX(p)}, {p * 16384 - (p % 4) * 1024}, v{7 if p & 1 else LX(0)}")
    A(f"""
    s_lshl_b32 s{S_T0}, s{S_W}, 17
    s_lshl_b32 s{S_T1}, s{S_H}, 8
    s_add_u32 s{S_T0}, s{S_T0}, s{S_T1}
    v_lshl_add_u32 v5, v1, 13, s{S_T0}
    v_lshlrev_b32 v6, 1, v1
    v_xor_b32 v6, v6, v2
    v_lshl_add_u32 v{LW(0)}, v6, 4, v5
    v_xor_b32 v7, 8, v6
    v_lshl_add_u32 v7, v7, 4, v5
    v_add_u32 v{LW(1)}, {32768 - 1024}, v{LW(0)}
    v_add_u32 v{LW(2)}, {2 * 32768 - 2048}, v7
    v_add_u32 v{LW(3)}, {3 * 32768 - 3072}, v7
    """)
    if cfg.rot == 1:
        A(f"s_add_u32 s{S_ROT}, s{S_BP}, s{S_J}\ns_and_b32 s{S_ROT}, s{S_ROT}, 3\ns_lshl_b32 s{S_ROT}, s{S_ROT}, 2")
    elif cfg.rot == 2:
        A(f"s_add_u32 s{S_ROT}, s{S_BP}, s{S_J}\ns_and_b32 s{S_ROT}, s{S_ROT}, 1\ns_lshl_b32 s{S_ROT}, s{S_ROT}, 3")
    elif cfg.rot == 3:
        A(f"s_lshl_b32 s{S_ROT}, s{S_HG}, 2")
    elif cfg.rot == 4:
        A(f"s_lshl_b32 s{S_ROT}, s{S_BP}, 2")
    elif cfg.rot == 5:
        A(f"s_lshl_b32 s{S_ROT}, s{S_J}, 1")
    elif cfg.rot in (7, 8, 9):
        A(f"s_lshr_b32 s{S_ROT}, s{S_J}, 1\ns_add_u32 s{S_ROT}, s{S_ROT}, s{S_BP}\ns_and_b32 s{S_ROT}, s{S_ROT}, 3\ns_lshl_b32 s{S_ROT}, s{S_ROT}, {9 - cfg.rot}")
    elif cfg.rot == 6:
        A(f"s_and_b32 s{S_ROT}, s{S_J}, 3\ns_lshl_b32 s{S_ROT}, s{S_ROT}, 2")
    else:
        A(f"s_mov_b32 s{S_ROT}, 0")
    A(f"""
    v_bfe_u32 v7, v0, 1, 4
    v_and_b32 v5, 1, v0
    v_lshlrev_b32 v5, 7, v5
    v_lshl_add_u32 v{LTO}, v7, 11, v5
    v_lshl_add_u32 v{LTQ}, v7, 13, v5
    v_add_u32 v{LTQ}, s{S_T0}, v{LTQ}
    """)
    A("s_waitcnt lgkmcnt(0)")
    A(make_srd(((sWQ, 10, 8 << 20), (sX, 4, 768 * 2048))))
    q0 = []
    if cfg.stamps:
        A(f"v_mov_b32 v{LSTAMP}, 0")
        A(loader_stamp(0))
        A(f"v_writelane_b32 v{LSTAMP}, s96, 63")
    if cfg.xtouch & 4:
        xt = x_touch(cfg, 3, LPOLL)
        A(xt)
        q0 += ["t"] * (len(xt) - 1)
    if cfg.afirst:
        A(f"s_bitcmp{1 - cfg.clsinv}_b32 s2, {cfg.cls}\ns_cbranch_scc1 L_bstart")
        for n in range(4 if cfg.cls == 6 else 0):
            A(f"""s_add_u32 s{S_T1}, s{S_ROT}, {n}
            s_lshl_b32 s{S_T1}, s{S_T1}, 19
            buffer_load_dword v{LPOLL}, v{LTQ}, {srd(sWQ)}, s{S_T1} offen""")
        A("s_branch L_started\nL_bstart:")
    if not cfg.stag:
        for n in range(2):
            for text, isload in q_stage(cfg, n):
                A(text)
                if isload:
                    q0.append(n)
    if cfg.afirst:
        A("L_started:")
    A(make_srd(((sK, 6, 32 << 20), (sV, 8, 32 << 20), (sWO, 12, 8 << 20), (sWS, 18, 256 << 20))))
    A(late_ids(cfg))
    late_setup(A, cfg)
    if cfg.krot:
        A(f"s_mul_i32 s{S_KR}, s2, {cfg.krot}\ns_lshr_b32 s{S_KR}, s{S_KR}, {cfg.ksh}\ns_lshl_b32 s{S_KR}, s{S_KR}, 13")
    if cfg.pre1:
        A(f"s_bitcmp{1 - cfg.clsinv}_b32 s2, {cfg.cls}\ns_cbranch_scc1 L_late")
        t0 = loader_role(P, cfg, list(tr), ["t"] * (4 if cfg.cls == 6 else 0) if cfg.afirst else q0, None, cfg.pre, "a")
        return [t0, loader_role(P, cfg, list(tr) + P.add("L_late:"), q0, None, cfg.pre1, "b")]
    if not cfg.stag:
        return [loader_role(P, cfg, tr, q0, None, cfg.pre)]
    A(f"s_cmp_ge_u32 s{S_BP}, 2\ns_cbranch_scc1 L_late")
    t0 = loader_role(P, cfg, list(tr), q0, 0)
    return [t0, loader_role(P, cfg, list(tr) + P.add("L_late:"), q0, 1)]


def loader_stamp(n):
    return (f"s_memrealtime s[{S_ST}:{S_ST+1}]\ns_memtime s[{S_ST+2}:{S_ST+3}]\ns_cmp_eq_u32 s{S_W}, 1\ns_waitcnt lgkmcnt(0)\n"
            f"s_cselect_b32 s{S_ST+4}, s{S_ST+2}, s{S_ST}\nv_writelane_b32 v{LSTAMP}, s{S_ST+4}, {n}")


def q_stage(cfg, n):
    dma = lambda vreg, sr, so, imm, pol: (f"buffer_load_dwordx4 v{vreg}, {srd(sr)}, s{so} offen offset:{imm} {pol} lds", True)
    first = cfg.promote & 1 and n < 4
    mask = {8: 7, 9: 3}.get(cfg.rot, 15)
    hgr = ""
    if cfg.hgrot == 1:
        hgr = f"s_add_u32 s{S_T1}, s{S_HG}, {n}\ns_and_b32 s{S_T1}, s{S_T1}, 3\ns_or_b32 s{S_T0}, s{S_T0}, s{S_T1}"
    if cfg.hgrot == 3:
        hgr = f"s_lshr_b32 s{S_T1}, s{S_T0}, 2\ns_xor_b32 s{S_T0}, s{S_T0}, s{S_T1}"
    if cfg.hgrot == 4:
        hgr = f"s_lshr_b32 s{S_T1}, s{S_T0}, 2\ns_and_b32 s{S_T1}, s{S_T1}, 2\ns_xor_b32 s{S_T0}, s{S_T0}, s{S_T1}"
    if cfg.hgrot == 5:
        hgr = f"s_lshr_b32 s{S_T1}, s{S_T0}, 1\ns_and_b32 s{S_T1}, s{S_T1}, 2\ns_xor_b32 s{S_T0}, s{S_T0}, s{S_T1}"
    if cfg.hgrot == 6:
        hgr = f"s_lshr_b32 s{S_T1}, s{S_T0}, 2\ns_lshl_b32 s{S_T0}, s{S_T0}, 2\ns_and_b32 s{S_T0}, s{S_T0}, 12\ns_or_b32 s{S_T0}, s{S_T0}, s{S_T1}"
    if cfg.hgrot == 7:
        hgr = f"s_lshl_b32 s{S_T1}, s{S_BLK}, 1\ns_xor_b32 s{S_T0}, s{S_T0}, s{S_T1}"
    if cfg.hgrot == 2:
        hgr = f"s_xor_b32 s{S_T1}, s{S_HG}, {n & 3}\ns_or_b32 s{S_T0}, s{S_T0}, s{S_T1}"
    o = [(f"""s_add_u32 s{S_T0}, s{S_ROT}, {n}
    s_add_u32 m0, s{S_LWW}, {WRING + (n % 4) * WSLOT}
    s_and_b32 s{S_T0}, s{S_T0}, {12 if cfg.hgrot in (1, 2) else mask}
    {hgr}
    {f"s_or_b32 s{S_T0}, s{S_T0}, {n & ~mask}" if n & ~mask else ""}
    s_lshl_b32 s{S_T1}, s{S_T0}, 19""", False)]
    o += [dma(LW(p), sWQ, S_T1, p * 1024, "nt" if first else cfg.pol_wq) for p in range(4)]
    if first:
        o.append((f"buffer_load_dword v{LPOLL}, v{LTQ}, {srd(sWQ)}, s{S_T1} offen {cfg.pol_t}", True))
    o.append((f"s_add_u32 m0, s{S_LWB}, {BRING + (n % 4) * BSLOT}\ns_lshl_b32 s{S_T0}, s{S_T0}, 7", False))
    o += [dma(LX(p), sX, S_T0, p * 1024, cfg.pol_x) for p in range(4)]
    o.append((f"s_add_u32 m0, s{S_LWB}, {BRING + (n % 4) * BSLOT + 4096}", False))
    o += [dma(LX(p), sX, S_T0, (p - 4) * 1024, cfg.pol_x) for p in range(4, 6)]
    return o


def loader_role(P, cfg, tr, q0, role, pre="", sfx=""):
    A = lambda t: tr.extend(P.add(t))
    sfx += "" if role is None else str(role)
    q = list(q0)

    flip = [0]

    def throttle(win):
        if win in (45, 55):
            flip[0] ^= 1
            win = win // 10 + flip[0]
        win = win or 56
        if win and len(q) >= win:
            A(f"s_waitcnt vmcnt({win - 1})")
            del q[:len(q) - (win - 1)]

    def dma(vreg, s, soff, imm, pol, tag, win=0):
        throttle(win)
        A(f"buffer_load_dwordx4 v{vreg}, {srd(s)}, {soff} offen offset:{imm} {pol} lds")
        q.append(tag)

    def wait(tag):
        if tag in q:
            idx = max(k for k, x in enumerate(q) if x == tag)
            A(f"s_waitcnt vmcnt({len(q) - 1 - idx})")
            del q[:idx + 1]

    def issue_q(n):
        for text, isload in q_stage(cfg, n):
            if isload:
                throttle(0)
                q.append(n)
            A(text)

    kv = []
    for e in range(17):
        if e <= 15:
            kv += [(16 + e, 0, e, p) for p in range(4)]
        if e >= 1:
            kv += [(16 + e, 1, e - 1, p) for p in range(4)]
    pool = list(range(LPOOL, 256, 4))
    parked = []
    state = dict(next=0, m0=None, soff=None, lds=False)

    def issue_kv(upto, k, win):
        state["m0"] = state["soff"] = None
        while state["next"] < upto:
            stage, isv, tile, p = kv[state["next"]]
            state["next"] += 1
            vo, sr = (LV(p), sV) if isv else (LK(p), sK)
            if stage <= k + 2 and state["m0"] != (stage, isv):
                A(f"s_add_u32 m0, s{S_LWW}, {(VRING if isv else KRING) + (tile % 3) * ASLOT}")
                state["m0"] = (stage, isv)
            if state["soff"] != tile:
                if cfg.krot:
                    A(f"s_add_u32 s{S_T0}, s{S_KR}, {tile * 8192}\ns_and_b32 s{S_T0}, s{S_T0}, 0x1e000")
                else:
                    A(f"s_mov_b32 s{S_T0}, {sum(((tile >> i) & 1) << int(b) for i, b in enumerate(cfg.kbits.split('.')[3:]))}")
                state["soff"] = tile
            if stage <= k + 2:
                dma(vo, sr, f"s{S_T0}", p * 1024, cfg.pol_kv, stage, win)
            else:
                if not pool:
                    unpark(k, 2)
                r = pool.pop(0)
                throttle(win)
                A(f"buffer_load_dwordx4 {v4(r)}, v{vo}, {srd(sr)}, s{S_T0} offen offset:{p * 1024} {cfg.pol_kv}")
                q.append(("r", r))
                parked.append((stage, isv, tile, p, r))
            if cfg.lazyp:
                unpark(k, cfg.lazyp, True)

    def unpark(k, most=99, landed=False):
        while parked and parked[0][0] <= k + 2 and most and not (landed and ("r", parked[0][4]) in q):
            most -= 1
            stage, isv, tile, p, r = parked.pop(0)
            wait(("r", r))
            A(f"ds_write_b128 v{LDSW(isv)}, {v4(r)} offset:{(tile % 3) * ASLOT + p * 1024}")
            pool.append(r)
            state["lds"] = True

    def o_index(m):
        if cfg.order:
            return f"s_add_u32 s{S_T0}, s{S_J2}, {o_rel(cfg)[m]}"
        if cfg.par:
            if m < 8:
                return f"s_add_u32 s{S_T0}, s{S_J2}, {4 * (m >> 1) + (m & 1)}"
            if cfg.par == 1:
                return f"s_add_u32 s{S_T0}, s{S_J2}, {4 * ((m - 8) >> 1) + (m & 1) + 2}"
            return f"s_lshl_b32 s{S_T0}, s{S_NU}, 1\ns_add_u32 s{S_T0}, s{S_T0}, {4 * ((m - 8) >> 1) + (m & 1) + 2}"
        if m < 2 or not cfg.oord:
            return f"s_add_u32 s{S_T0}, s{S_J2}, {m}"
        return f"""s_cmp_gt_u32 s{S_T3}, {(m - 2) // 2}
        s_cselect_b32 s{S_T0}, {m - 2}, {m}
        s_add_u32 s{S_T0}, s{S_T0}, s{S_T2}"""

    def issue_ow(m, tag, win=0):
        A(f"""{o_index(m)}
        s_add_u32 m0, s{S_LWW}, {WRING + (m % 4) * WSLOT}
        s_and_b32 s{S_T0}, s{S_T0}, 15
        s_lshl_b32 s{S_T1}, s{S_T0}, 17""")
        if cfg.hmap:
            A(f"""s_lshr_b32 s{S_T0}, s{S_T0}, 1
            {head_of(cfg, S_T2, S_T0, S_T3)}
            s_lshl_b32 s{S_T2}, s{S_T2}, 18
            s_and_b32 s{S_T1}, s{S_T1}, 0x20000
            s_add_u32 s{S_T1}, s{S_T1}, s{S_T2}""")
        first = cfg.promote & 2 and o_rel(cfg)[m] < 4
        for p in range(4):
            dma(LWO(p), sWO, f"s{S_T1}", p * 1024, "nt" if first else cfg.pol_wo, tag, 0 if first else win)
        if first:
            A(f"buffer_load_dword v{LPOLL}, v{LTO}, {srd(sWO)}, s{S_T1} offen {cfg.pol_t}")
            q.append("t")

    def touch_w(b):
        A(f"""s_lshl_b32 s{S_T0}, s{S_BP}, 17
        s_add_u32 s{S_T0}, s{S_T0}, {b << 19}
        buffer_load_dword v{LPOLL}, v{LTO}, {srd(sWO)}, s{S_T0} offen""")
        q.append("t")

    def touch_b(b):
        A(f"s_mov_b32 s{S_T0}, {b * 98304}\nbuffer_load_dword v{LPOLL}, v{LTB}, {srd(sWS)}, s{S_T0} offen sc1")
        q.append("t")

    coop = []
    spre = [int(x) for x in str(cfg.spre).split(".")] if cfg.spre else []
    sdone = [0]

    def scalar_pre():
        for _ in range(spre.pop(0) if spre else 0):
            n, r = divmod(sdone[0], 32)
            if n > 3:
                break
            if r == 0:
                A(f"""s_add_u32 s{S_T0}, s{S_NU}, {2 * n + 1}
                s_and_b32 s{S_T0}, s{S_T0}, 7
                s_lshl_b32 s{S_T0}, s{S_T0}, 18
                s_add_u32 s{S_T0}, s{S_T0}, s{S_DW}
                s_add_u32 s{S_SB + 2 * (n & 1)}, s12, s{S_T0}
                s_addc_u32 s{S_SB + 2 * (n & 1) + 1}, s13, 0""")
            A(f"s_load_dword s{S_SB + 4}, s[{S_SB + 2 * (n & 1)}:{S_SB + 2 * (n & 1) + 1}], {(r >> 2) * 2048 + (r & 3) * 64}")
            sdone[0] += 1

    def coop_after(m):
        for b, mm in enumerate(coop):
            if mm == m:
                touch_b(b + 1)
                touch_w(b + 1)

    def issue_ob(m, tag):
        A(f"""{o_index(m)}
        s_add_u32 m0, s{S_LWB}, {BRING + ((m - 2) % 4) * BSLOT}
        s_and_b32 s{S_T0}, s{S_T0}, 15
        s_mul_i32 s{S_T0}, s{S_T0}, 24576""")
        for p in range(4):
            dma(LOB, sWS, f"s{S_T0}", p * 1024, cfg.pol_ob, tag)
        A(f"s_add_u32 m0, s{S_LWB}, {BRING + ((m - 2) % 4) * BSLOT + 4096}\ns_add_u32 s{S_T1}, s{S_T0}, 4096")
        for p in range(2):
            dma(LOB, sWS, f"s{S_T1}", p * 1024, cfg.pol_ob, tag)

    nst = [1]

    def stamp():
        if cfg.stamps:
            A(loader_stamp(nst[0]))
            nst[0] += 1

    def barrier():
        if state["lds"]:
            A("s_waitcnt lgkmcnt(0)")
            state["lds"] = False
        A("s_barrier")
        stamp()

    A("; loader schedule: one barrier per stage; two variants differ only in when K/V is preloaded")
    end = lambda n: 0 if n < 16 else min(128, 4 + 8 * (n - 16))
    pre = [int(x) for x in str(pre).split(".")] if pre else []
    pre = [0] * (17 - len(pre)) + pre
    wo_at = [int(x) for x in str(cfg.wo_at).split(".")]
    wtag = lambda m: 33 if m < 2 else 33 + m
    if role == 1:
        A(f"""
        s_lshr_b32 s{S_T0}, s2, 3
        s_and_b32 s{S_T0}, s{S_T0}, 15
        s_lshl_b32 s{S_T0}, s{S_T0}, 2
        s_add_u32 s{S_T0}, s{S_T0}, s{S_W}
        s_lshl_b32 s{S_T1}, s{S_T0}, 13
        s_lshl_b32 s{S_T2}, s{S_HG}, 11
        s_add_u32 s{S_T1}, s{S_T1}, s{S_T2}
        v_lshrrev_b32 v3, 4, v0
        v_and_b32 v4, 15, v0
        v_lshl_add_u32 v5, v3, 19, s{S_T1}
        v_lshl_add_u32 v5, v4, 7, v5
        s_mul_i32 s{S_T1}, s{S_T0}, {6 * 2048}
        v_lshrrev_b32 v3, 3, v0
        v_min_u32 v3, 5, v3
        v_and_b32 v4, 7, v0
        v_lshl_add_u32 v6, v3, 11, s{S_T1}
        v_lshl_add_u32 v6, v4, 7, v6
        """)
        for qt in range(4):
            if qt % 2 == 0:
                A(f"buffer_load_dword v{LPOLL}, v6, {srd(sX)}, 0 offen offset:{(qt // 2) * 1024}")
                q.append("t")
            A(f"s_mov_b32 s{S_T0}, {qt << 21}\nbuffer_load_dword v{LPOLL}, v5, {srd(sWQ)}, s{S_T0} offen")
            q.append("t")
        A(f"s_mov_b32 s{S_T0}, {384 * 2048}")
        for h in range(2):
            A(f"buffer_load_dword v{LPOLL}, v6, {srd(sX)}, s{S_T0} offen offset:{h * 1024}")
            q.append("t")
        pre[0] = cfg.s1pre
        issue_kv(pre[0], -1, cfg.s1win)
    if cfg.afirst and sfx == "a":
        pre[0] = cfg.afirst
        issue_kv(pre[0], -1, cfg.bwin or 8)
    if cfg.stag or (cfg.afirst and sfx == "a"):
        issue_q(0)
        issue_q(1)
    base = sum(pre)
    issue_kv(pre[0], -1, 0)
    nq = 2
    qskip = cfg.qskip if sfx == 'a' else cfg.qskipb
    qskip = [int(x) for x in str(qskip).split('.')] if qskip else []
    for k in range(0, 33):
        wait(k)
        barrier()
        if not cfg.lazyp:
            unpark(k)
        while nq <= min(15, k + 1 + cfg.qd) and k not in qskip:
            issue_q(nq)
            nq += 1
        w = ((cfg.winb or cfg.win) if sfx == 'b' else cfg.win) if role is None else (cfg.s1win if role else (cfg.s0win if k < cfg.s0sw else cfg.s0late))
        if cfg.winlate and k >= cfg.late and sfx != 'b':
            w = cfg.winlate
        win = 0 if k < 16 else (cfg.win16 if k == 16 else w)
        lead = min(128, end(k + 1) + ((win + 5) // 10 if win in (45, 55) else win or 8)) if k >= 14 else 0
        if k <= 15:
            ramp = sum(pre[:k + 2]) + (4 * max(0, k - 13) if role == 1 else 0)
        else:
            b0 = base + cfg.win16 + (8 if role == 1 else 0)
            last = (cfg.lastb or cfg.last) if sfx == 'b' else cfg.last
            ramp = min(128, b0 + ((128 - b0) * (k - 16)) // (last - 16))
        issue_kv(max(lead, ramp if base else 0), k, win or cfg.bwin)
        while qskip and k == qskip[-1] and nq <= min(15, k + cfg.qres):
            issue_q(nq)
            nq += 1
        assert nq > min(15, k + 1)
        if cfg.lazyp:
            unpark(k, 99, True)
            unpark(k - 1)
        if k == 20 and cfg.oord:
            A(f"""s_add_u32 s{S_T2}, s{S_BP}, s{S_J}
            s_and_b32 s{S_T2}, s{S_T2}, {cfg.oord - 1}
            s_mul_i32 s{S_T2}, s{S_T2}, {8 // cfg.oord}
            s_sub_u32 s{S_T3}, s{S_J}, s{S_T2}
            s_and_b32 s{S_T3}, s{S_T3}, 7
            s_lshl_b32 s{S_T2}, s{S_T2}, 1""")
        for h, tk in enumerate(str(cfg.ptouch).split(".") if cfg.ptouch else []):
            if int(tk) == k:
                throttle(win)
                A(f"""s_mul_i32 s{S_T0}, s{S_J}, 49152
                s_add_u32 s{S_T0}, s{S_T0}, {h * 24576}
                v_mul_u32_u24 v3, 0x70, v0
                v_add_u32 v3, v3, v{LOB}
                s_mov_b32 exec_hi, 0xffff
                buffer_load_dword v{LPOLL}, v3, {srd(sWS)}, s{S_T0} offen
                s_mov_b64 exec, -1""")
                q.append("t")
        if k == 26:
            A(f"buffer_load_dword v{LPOLL}, v{LFLAG}, {srd(sWS)}, 0 offen sc1")
            q.append("t")
        for m in range(4):
            if wo_at[m] == k and not (m < 2 and m >= 2 - cfg.w1late):
                issue_ow(m, wtag(m), win if state["next"] < 128 else (cfg.wwin if k == 32 else 0))
        if coop and k == cfg.coopw0:
            touch_w(0)
    assert state["next"] == 128 and not parked
    if spre:
        A(f"""s_lshl_b32 s{S_DW}, s{S_HG}, 21
        s_lshl_b32 s{S_T0}, s{S_BP}, 16
        s_add_u32 s{S_DW}, s{S_DW}, s{S_T0}
        s_lshl_b32 s{S_T0}, s{S_W}, 14
        s_add_u32 s{S_DW}, s{S_DW}, s{S_T0}
        s_lshl_b32 s{S_T0}, s{S_NU}, 8
        s_add_u32 s{S_DW}, s{S_DW}, s{S_T0}""")
    A("; output projection: wo stages, waits for the producers of the next operand blocks")
    if cfg.w1late:
        A("s_barrier")
        if cfg.w1late == 2:
            issue_ow(0, 33)
        issue_ow(1, 34)
    wait(33)
    barrier()
    if cfg.w1late:
        wait(34)
        A("s_barrier")
    def finish():
        if cfg.stamps:
            A(f"""s_lshl_b32 s{S_T0}, s2, 3
            s_add_u32 s{S_T0}, s{S_T0}, s{S_WAVE}
            s_lshl_b32 s{S_T0}, s{S_T0}, 8
            s_add_u32 s{S_T0}, s{S_T0}, {WS_STAMP}
            v_lshl_add_u32 v1, v0, 2, s{S_T0}
            buffer_store_dword v{LSTAMP}, v1, {srd(sWS)}, 0 offen""")
        A("s_endpgm")
        return tr

    def need_head(m):
        A(f"""{o_index(m)}
        s_bfe_u32 s{S_T1}, s{S_T0}, 0x30001
        {f"s_add_u32 s{S_T1}, s{S_T1}, 8" if cfg.split and o_rel(cfg)[m] & 1 else ""}
        s_mov_b32 s{S_SPIN}, 0""")
        n = f"L_need{m}{sfx}"
        loop = P.add(f"""{n}:
        s_bitcmp1_b32 s{S_MASK}, s{S_T1}
        s_cbranch_scc1 {n}_done
        buffer_load_dword v{LPOLL}, v{LFLAG}, {srd(sWS)}, 0 offen sc1
        s_add_u32 s{S_SPIN}, s{S_SPIN}, 1
        s_waitcnt vmcnt(0)
        {f"v_cmp_le_u32 vcc, v{LTQ}, v{LPOLL}" if cfg.split else f"v_cmp_eq_u32 vcc, 1, v{LPOLL}"}
        s_mov_b32 s{S_MASK}, vcc_lo
        s_cmp_lt_u32 s{S_SPIN}, {SPIN_MAX}
        s_cbranch_scc1 {n}""")
        tr.extend(loop + loop)
        A(f"{n}_done:")

    if cfg.bdirect:
        for m in (2, 3):
            if wo_at[m] == 33:
                issue_ow(m, 33 + m)
        A(f"s_mov_b32 s{S_MASK}, 0")
        seen = set()
        if cfg.split:
            A(f"v_bfe_u32 v{LTQ}, v0, 3, 1\nv_add_u32 v{LTQ}, 1, v{LTQ}")

        def need_new(m):
            key = o_rel(cfg)[m] >> (0 if cfg.split else 1)
            if key not in seen:
                seen.add(key)
                need_head(m)

        need_new(2)
        need_new(3)
        A("s_barrier")
        stamp()
        for m in (2, 3):
            if wo_at[m] == 34:
                issue_ow(m, 33 + m)
        nm = 4
        for k in range(35, 49):
            if k - 31 <= 15:
                need_new(k - 31)
            wait(k)
            barrier()
            while nm <= min(15, k + 1 + cfg.od - 33):
                issue_ow(nm, nm + 33)
                nm += 1
        return finish()
    if wo_at[2] == 33:
        issue_ow(2, 35)
    if cfg.prog:
        A(f"s_mov_b32 s{S_MASK}, 0")
        need_head(2)
    else:
        poll_loop(P, tr, "poll1" + sfx, LPOLL, LFLAG)
        del q[:]
        q.append("poll")
    stamp()
    if coop:
        touch_b(0)
    issue_ob(2, 35)
    if wo_at[2] == 34:
        issue_ow(2, 35)
    coop_after(2)
    if wo_at[3] == 33:
        issue_ow(3, 36)
    issue_ob(3, 36)
    if wo_at[3] == 34:
        issue_ow(3, 36)
    coop_after(3)
    scalar_pre()
    nm = 4
    for k in range(35, 49):
        wait(k)
        barrier()
        while nm <= min(15, k + 1 + cfg.od - 33):
            issue_ow(nm, nm + 33)
            if cfg.prog and nm % 2 == 0:
                need_head(nm)
            issue_ob(nm, nm + 33)
            coop_after(nm)
            nm += 1
        scalar_pre()
    return finish()


def order(n, snake):
    return [(T, t) for T in range(n) for t in (reversed(T3) if snake and T & 1 else T3)]


def gemm_reads(b, s, kind, with_b=True):
    r = []
    if with_b:
        for t in T3:
            if kind == "q":
                r.append(f"ds_read_b128 {v4(FB(b, t))}, v{AB(s)} offset:{t * 2048}")
            else:
                r.append(f"ds_read_b128 {v4(FB(b, t))}, v{AB(0)} offset:{s * 3072 + t * 1024}")
    for T in range(8):
        for u in range(2):
            off = s * 8192 + u * (1024 if kind == "q" else 4096)
            r.append(f"ds_read_b64_tr_b16 {v2(FA(b, T) + 2 * u)}, v{AW(T)} offset:{off}")
    return r


def gemm_mfma(cfg, b, bsrc=None, zero=False):
    return [f"{MFMA} {v4(ACC(T, t))}, {v4(FA(b, T))}, {v4(bsrc(t) if bsrc else FB(b, t))}, {'0' if zero else v4(ACC(T, t))}"
            for T, t in order(8, cfg.snake)]


def gemm_loop(P, tr, cfg, kind, label, iters):
    sal = [f"s_add_u32 s{S_SLOT}, s{S_SLOT}, 1", f"s_and_b32 s{S_SLOT}, s{S_SLOT}, 3", f"s_cselect_b32 s{S_DW}, {WSLOT}, s{S_T2}"]
    if kind == "o":
        sal.append(f"s_cmp_lg_u32 s{S_SLOT}, 2")
    sal.append(f"s_cselect_b32 s{S_DB}, {BSLOT}, s{S_T3}")
    val = [f"v_add_u32 v{AB(s)}, s{S_DB}, v{AB(s)}" for s in range(2 if kind == "q" else 1)]
    val += [f"v_add_u32 v{AW(T)}, s{S_DW}, v{AW(T)}" for T in range(8)]
    nb = len(val) - 8
    hook = [(18, f"s_cmp_eq_u32 s{S_CNT}, s{S_FLAG}"), (19, "s_cbranch_scc1 L_count"), (19, "L_counted:")] if kind == "q" else []
    if kind == "o" and cfg.wb:
        hook = [(18, f"s_cmp_eq_u32 s{S_CNT}, s{S_FLAG}"), (19, "s_cbranch_scc1 L_wb"), (19, "L_wbdone:")]
    h0 = weave(gemm_mfma(cfg, 0), spread(gemm_reads(1, 1, kind), 0, 18) + spread(sal, 0, 4) + spread(val[:nb + 6], 12, 19)
               + spread(val[nb + 6:], 20, 21) + [(22, "s_waitcnt lgkmcnt(0)"), (22, "s_barrier")])
    h1 = weave(gemm_mfma(cfg, 1), spread(gemm_reads(0, 0, kind), -1, 17)
               + hook + [(20, f"s_sub_u32 s{S_CNT}, s{S_CNT}, 1"), (20, f"s_cmp_lg_u32 s{S_CNT}, 0")])
    tr.extend(P.add(f"s_mov_b32 s{S_CNT}, {iters}\ns_waitcnt lgkmcnt(0)"))
    if kind == "q":
        tr.extend(P.add(".p2align 3"))
        body = P.add([label + ":"] + h0 + h1 + ["s_waitcnt lgkmcnt(0)", f"s_cbranch_scc1 {label}"])
        tr.extend(body + body)
        return
    h0 = weave(gemm_mfma(cfg, 0), spread(gemm_reads(1, 1, kind), 0, 18) + spread(sal, 0, 4) + spread(val[:nb + 6], 11, 18)
               + spread(val[nb + 6:], 19, 19) + [(6, f"s_sub_u32 s{S_CNT}, s{S_CNT}, 1"), (7, f"s_cmp_eq_u32 s{S_CNT}, 0"),
                                                  (20, f"s_cbranch_scc1 {label}_out"), (22, "s_waitcnt lgkmcnt(0)"), (22, "s_barrier")])
    h1 = weave(gemm_mfma(cfg, 1), spread(gemm_reads(0, 0, kind), -1, 17) + hook)
    cut = h0.index(f"s_cbranch_scc1 {label}_out") + 1
    tr.extend(P.add(".p2align 3"))
    first = P.add([label + ":"] + h0[:cut])
    rest = P.add(h0[cut:] + h1 + ["s_waitcnt lgkmcnt(0)", f"s_branch {label}"])
    tr.extend(first + rest + first + P.add([label + "_out:"] + gemm_mfma(cfg, 0)[21:]))


def k_reads(tile):
    return [f"ds_read_b128 {v4(FR(kt * 4 + s))}, v{AK(s)} offset:{(tile % 3) * ASLOT + kt * 4096}" for kt in range(2) for s in range(4)]


def v_reads(T, tile):
    return [f"ds_read_b64_tr_b16 {v2(FR(T) + 2 * u)}, v{AV(T)} offset:{(tile % 3) * ASLOT + u * 4096}" for u in range(2)]


def qk_mfma(first=False):
    c0 = lambda t: "0" if first else v4(NM(t))
    return [f"{MFMA} {v4(SS(kt, t))}, {v4(FR(kt * 4 + s))}, {v4(QF(s, t))}, {c0(t) if s == 0 else v4(SS(kt, t))}"
            for kt in range(2) for s in range(4) for t in T3]


def pv_mfma(cfg):
    return [f"{MFMA} {v4(ACC(T, t))}, {v4(FR(T))}, {v4(PP(t))}, {v4(ACC(T, t))}" for T, t in order(8, cfg.snake)]


def xlane(op, regs, tmps):
    out = []
    for sw in ("v_permlane32_swap_b32", "v_permlane16_swap_b32"):
        out += [f"v_mov_b32 v{x}, v{r}" for r, x in zip(regs, tmps)]
        out += [f"{sw} v{r}, v{x}" for r, x in zip(regs, tmps)]
        out += [f"{op} v{r}, v{r}, v{x}" for r, x in zip(regs, tmps)]
    return out


def row_max():
    o = [f"v_max3_f32 v{VD(t)}, v{SS(0, t)}, v{SS(0, t) + 1}, v{SS(0, t) + 2}" for t in T3]
    o += [f"v_max3_f32 v{VD(t)}, v{SS(0, t) + 3}, v{SS(1, t)}, v{VD(t)}" for t in T3]
    o += [f"v_max3_f32 v{VD(t)}, v{SS(1, t) + 1}, v{SS(1, t) + 2}, v{VD(t)}" for t in T3]
    o += [f"v_max_f32 v{VD(t)}, v{SS(1, t) + 3}, v{VD(t)}" for t in T3]
    return o + xlane("v_max_f32", [VD(t) for t in T3], [VT(t) for t in T3])


def shift_scores():
    return [f"v_sub_f32 v{SS(kt, t) + r}, v{SS(kt, t) + r}, v{VD(t)}" for kt in range(2) for t in T3 for r in range(4)]


def guard_max(kt):
    r = [SS(kt, t) + k for t in T3 for k in range(4)]
    if kt == 0:
        o = [f"v_max3_f32 v{VX}, v{r[0]}, v{r[1]}, v{r[2]}"]
        o += [f"v_max3_f32 v{VX}, v{r[k]}, v{r[k + 1]}, v{VX}" for k in range(3, 11, 2)]
        return o + [f"v_max_f32 v{VX}, v{r[11]}, v{VX}"]
    return [f"v_max3_f32 v{VX}, v{r[k]}, v{r[k + 1]}, v{VX}" for k in range(0, 12, 2)]


def p_cvt(kt, h=None):
    return [f"v_cvt_pk_bf16_f32 v{PP(t) + 2 * kt + hh}, v{SS(kt, t) + 2 * hh}, v{SS(kt, t) + 2 * hh + 1}"
            for hh in ((0, 1) if h is None else (h,)) for t in T3]


def exp_sum(cfg, kt, h):
    o = [f"v_exp_f32 v{SS(kt, t) + 2 * h + r}, v{SS(kt, t) + 2 * h + r}" for t in T3 for r in range(2)]
    if cfg.pk:
        o += [f"v_pk_add_f32 {v2(VL(t))}, {v2(VL(t))}, {v2(SS(kt, t) + 2 * h)}" for t in T3]
    else:
        o += [f"v_add_f32 v{VL(t) + r}, v{VL(t) + r}, v{SS(kt, t) + 2 * h + r}" for t in T3 for r in range(2)]
    return o


def exps(kt, h):
    return [f"v_exp_f32 v{SS(kt, t) + 2 * h + r}, v{SS(kt, t) + 2 * h + r}" for t in T3 for r in range(2)]


def pk_sum(kt, h):
    return [f"v_pk_add_f32 {v2(VL(t))}, {v2(VL(t))}, {v2(SS(kt, t) + 2 * h)}" for t in T3]


def rescale(by):
    return [f"v_mul_f32 v{ACC(T, t) + r}, v{ACC(T, t) + r}, v{by(t)}" for T in range(8) for t in T3 for r in range(4)]


def acc_to_frag(s, QF=QF):
    return [f"v_cvt_pk_bf16_f32 v{QF(s, t) + 2 * u + h}, v{ACC(2 * s + u, t) + 2 * h}, v{ACC(2 * s + u, t) + 2 * h + 1}"
            for u in range(2) for t in T3 for h in range(2)]


def compute(P, cfg):
    tr = []
    side = []
    A = lambda t: tr.extend(P.add(t))
    nst = [0]

    def stamp():
        if cfg.stamps:
            A(f"s_memrealtime s[{S_ST + 2 * nst[0]}:{S_ST + 2 * nst[0] + 1}]\ns_waitcnt lgkmcnt(0)")
            nst[0] += 1

    A("; ---- compute waves: first read of x, inbox clear, code prefetch")
    A(f"L_compute:\ns_getpc_b64 s[{S_PC}:{S_PC + 1}]\nL_text:\n{late_ids(cfg)}\ns_waitcnt lgkmcnt(0)")
    if cfg.xtouch and not cfg.xtouch & 4:
        A(make_srd(((sX, 4, 768 * 2048),)))
        A(x_touch(cfg, 112, 113))
    A(make_srd(((sOUT, 14, 768 * 4096), (sWS, 18, 256 << 20), (sDBG, 16, 256))))
    if cfg.prio:
        A(f"s_setprio {cfg.prio}")
    A(f"""
    s_getreg_b32 s{S_XCC}, hwreg(HW_REG_XCC_ID, 0, 3)
    s_cmp_lg_u32 s{S_W}, 0
    s_cbranch_scc1 L_noclear
    s_lshl_b32 s{S_T0}, s2, 11
    s_add_u32 s{S_T0}, s{S_T0}, {WS_INBOX}
    v_lshlrev_b32 v1, 4, v0
    v_mov_b64 v[4:5], 0
    v_mov_b64 v[6:7], 0
    buffer_store_dwordx4 v[4:7], v1, {srd(sWS)}, s{S_T0} offen sc1
    buffer_store_dwordx4 v[4:7], v1, {srd(sWS)}, s{S_T0} offen offset:1024 sc1
    {code_touch(0, 110, 111) if cfg.ctouch else ""}
    L_noclear:
    s_lshl_b32 s{S_XCC}, s{S_XCC}, 2
    v_and_b32 v{V_TMP}, 3, v0
    v_xor_b32 v{V_TMP}, s{S_GRP}, v{V_TMP}
    v_lshlrev_b32 v{V_TMP}, 2, v{V_TMP}
    v_lshrrev_b32 v100, 4, v0
    v_and_b32 v101, 15, v0
    v_bfe_u32 v102, v0, 2, 2
    v_bfe_u32 v103, v0, 1, 1
    v_and_b32 v104, 1, v0
    v_lshlrev_b32 v109, 4, v0
    """)
    A(f"""
    v_lshl_add_u32 v105, v100, 3, v102
    v_lshlrev_b32 v105, 8, v105
    v_lshl_add_u32 v105, v104, 3, v105
    v_lshl_add_u32 v105, v103, 4, v105
    v_and_b32 v106, 1, v100
    v_lshl_add_u32 v106, v106, 2, v102
    v_lshl_add_u32 v{AW(0)}, v106, 5, v105
    """)
    for T in range(1, 8):
        A(f"v_xor_b32 v{AW(T)}, {T << 5}, v{AW(0)}")
    A(f"""
    s_add_u32 s{S_T0}, s{S_LWB}, {BRING}
    v_lshl_add_u32 v105, v101, 7, s{S_T0}
    v_lshrrev_b32 v107, 1, v101
    v_xor_b32 v107, v107, v100
    v_lshl_add_u32 v{AB(0)}, v107, 4, v105
    v_xor_b32 v{AB(1)}, 64, v{AB(0)}
    """)
    A(f"""
    s_lshr_b32 s{S_T0}, s{S_W}, 1
    s_lshl_b32 s{S_T0}, s{S_T0}, 13
    s_add_u32 s{S_T0}, s{S_T0}, {KRING}
    v_lshl_add_u32 v105, v101, 8, s{S_T0}
    v_lshrrev_b32 v107, 1, v100
    v_and_b32 v108, 1, v100
    v_lshl_add_u32 v107, v108, 1, v107
    v_xor_b32 v107, v107, v101
    v_lshl_add_u32 v{AK(0)}, v107, 4, v105
    """)
    for s in range(1, 4):
        A(f"v_xor_b32 v{AK(s)}, {s << 6}, v{AK(0)}")
    A(f"""
    s_add_u32 s{S_T0}, s{S_T0}, {VRING - KRING}
    v_lshl_add_u32 v105, v100, 2, v102
    v_lshl_add_u32 v105, v105, 8, s{S_T0}
    v_lshl_add_u32 v105, v104, 3, v105
    v_lshl_add_u32 v105, v103, 4, v105
    v_lshl_add_u32 v{AV(0)}, v106, 5, v105
    """)
    for T in range(1, 8):
        A(f"v_xor_b32 v{AV(T)}, {T << 5}, v{AV(0)}")
    A(f"s_mov_b32 s{S_C}, {f32(1.4426950408889634 / 128 ** 0.5)}\ns_mov_b32 s{S_C + 1}, s{S_C}")
    A(f"s_mov_b32 s{S_T2}, {-3 * WSLOT}\ns_mov_b32 s{S_T3}, {-3 * BSLOT}\ns_mov_b32 s{S_SLOT}, 0")
    A([f"v_pk_mov_b32 {v2(r)}, 0, 0" for r in range(0, 96, 2)])
    if cfg.tag or cfg.oclear:
        A([f"v_mov_b32 v{r}, -1" for r in range(116, 120)])
    xclear = [f"s_mul_i32 s{S_T0}, s{S_W}, 9216", f"s_mul_i32 s{S_T1}, s2, 36864", f"s_add_u32 s{S_T0}, s{S_T0}, s{S_T1}", f"s_add_u32 s{S_T0}, s{S_T0}, {WS_X}"]
    for k in range(9):
        if k and k % 4 == 0:
            xclear.append(f"s_add_u32 s{S_T0}, s{S_T0}, 4096")
        xclear.append(f"buffer_store_dwordx4 v[116:119], v109, {srd(sWS)}, s{S_T0} offen offset:{(k % 4) * 1024} sc1")
    if cfg.tag and not cfg.clear_at:
        A(xclear)
    if cfg.oclear:
        A(f"""s_mul_i32 s{S_T0}, s{S_GRP}, 393216
        s_mul_i32 s{S_T1}, s{S_J}, 49152
        s_add_u32 s{S_T0}, s{S_T0}, s{S_T1}
        s_mul_i32 s{S_T1}, s{S_W}, 12288
        s_add_u32 s{S_T0}, s{S_T0}, s{S_T1}""")
        for k in range(12):
            if k and k % 4 == 0:
                A(f"s_add_u32 s{S_T0}, s{S_T0}, 4096")
            A(f"buffer_store_dwordx4 v[116:119], v109, {srd(sWS)}, s{S_T0} offen offset:{(k % 4) * 1024} sc1")
    count = f"""s_lshl_b32 s{S_T0}, 1, s{S_XCC}
    v_mov_b32 v{V_CHK}, s{S_T0}
    s_mov_b64 exec, 1
    s_waitcnt vmcnt(0)
    buffer_atomic_add v{V_CHK}, v{V_TMP}, {srd(sDBG)}, 0 offen
    s_mov_b64 exec, -1""".split("\n")
    rare = [["L_count:", f"s_cmp_eq_u32 s{S_FLAG}, {cfg.fetch_at}", "s_cbranch_scc1 L_fetch", f"s_mov_b32 s{S_FLAG}, {cfg.fetch_at}",
             "s_waitcnt vmcnt(0)", f"s_cmp_lg_u32 s{S_W}, 0", "s_cbranch_scc1 L_counted"] + count + ["s_branch L_counted",
             "L_fetch:", f"buffer_load_dword v{V_CHK}, v{V_TMP}, {srd(sDBG)}, 0 offen sc1", "s_branch L_counted"]]
    if cfg.clear_at:
        assert cfg.latefetch and cfg.tag and min(cfg.clear_at, cfg.clear_b or 99) > cfg.count_at + 1
        rare = [["L_count:", f"s_cmp_le_u32 s{S_FLAG}, {cfg.count_at + 1}", "s_cbranch_scc1 L_drain"] + xclear
                + [f"s_cmp_eq_u32 s{S_W}, 0", f"s_cselect_b32 s{S_FLAG}, {cfg.count_at}, {cfg.count_at + 1}", "s_branch L_counted",
                   "L_drain:", "s_waitcnt vmcnt(0)", f"s_cmp_lg_u32 s{S_W}, 0", "s_cbranch_scc1 L_counted"] + count + ["s_branch L_counted"]]
        A(f"s_bitcmp{1 - cfg.clsinv}_b32 s2, {cfg.cls}\ns_cselect_b32 s{S_FLAG}, {cfg.clear_b or cfg.clear_at}, {cfg.clear_at}")
    elif cfg.latefetch:
        assert not (cfg.tag or cfg.oclear or cfg.stag)
        rare = [["L_count:"] + count + ["s_branch L_counted"]]
        A(f"""s_lshr_b32 s{S_T0}, s2, {cfg.spreadsh}
        s_and_b32 s{S_T0}, s{S_T0}, {cfg.spreadc}
        s_sub_u32 s{S_T0}, {cfg.count_at}, s{S_T0}
        s_cmp_eq_u32 s{S_W}, {4 if cfg.nocount else 0}
        s_cselect_b32 s{S_FLAG}, s{S_T0}, 0""")
    else:
        A(f"s_cmp_eq_u32 s{S_W}, 0\ns_cselect_b32 s{S_FLAG}, {cfg.count_at}, {cfg.count_at + 1}")
    assert not (cfg.stag and (cfg.tag or cfg.oclear))
    if cfg.stag:
        A([f"s_cmp_ge_u32 s{S_BP}, 2", f"s_cselect_b32 s{S_T1}, s{S_FLAG}, 0", f"s_cmp_lg_u32 s{S_T1}, {cfg.count_at}", "s_cbranch_scc1 L_nocount"]
          + count + [f"s_mov_b32 s{S_FLAG}, {cfg.fetch_at}", "L_nocount:"])
    A("; ---- Q projection")
    A("s_barrier")
    A(gemm_reads(0, 0, "q"))
    gemm_loop(P, tr, cfg, "q", "L_qloop", 16)
    A(k_reads(0))
    def judge(v):
        return f"""v_lshrrev_b32 v{VT(0)}, 4, v{v}
        v_and_b32 v{VT(0)}, 0x0f0f0f0f, v{VT(0)}
        v_and_b32 v{VT(1)}, 0x0f0f0f0f, v{v}
        v_add_u32 v{VT(0)}, v{VT(0)}, v{VT(1)}
        v_sad_u8 v{VT(0)}, v{VT(0)}, 0, 0
        v_readfirstlane_b32 s{S_T1}, v{v}
        v_cmp_ne_u32 vcc, 8, v{VT(0)}
        s_lshl_b32 s{S_T0}, 8, s{S_XCC}
        s_cmp_eq_u32 s{S_T0}, s{S_T1}
        s_cselect_b32 s{S_FLAG}, {cfg.local}, 0
        s_cmp_eq_u64 vcc, 0
        s_cselect_b32 s{S_FLAG}, s{S_FLAG}, 2""".split("\n")

    dbgaddr = lambda v: [f"v_and_b32 v{v}, 3, v{V_TMP}", f"v_xor_b32 v{v}, s{S_GRP}, v{v}", f"v_lshlrev_b32 v{v}, 2, v{v}"]
    ahook = []
    if cfg.latefetch:
        ahook = [f"s_cmp_le_u32 s{S_CNT}, 2", "s_cbranch_scc1 L_ahook", "L_ahooked:"]
        rare.append(["L_ahook:", f"s_cmp_eq_u32 s{S_CNT}, 1", "s_cbranch_scc1 L_judge"] + dbgaddr(VT(0))
                    + [f"buffer_load_dword v{V_CHK}, v{VT(0)}, {srd(sDBG)}, 0 offen sc1", "s_branch L_ahooked", "L_judge:", "s_waitcnt vmcnt(0)"]
                    + judge(V_CHK) + ([f"s_mov_b32 s{S_FLAG}, 1"] if cfg.nocount else []) + [f"v_mov_b32 v{V_CHK}, 1", "s_branch L_ahooked"])
    else:
        A(["s_waitcnt vmcnt(0)"] + judge(V_CHK))
    A([f"v_pk_mul_f32 {v2(r)}, {v2(r)}, s[{S_C}:{S_C + 1}]" for r in range(0, 96, 2)])

    def q_frag(s):
        return acc_to_frag(s) + [f"v_permlane16_swap_b32 v{QF(s, t) + h}, v{QF(s, t) + 2 + h}" for t in T3 for h in range(2)]

    qk0 = qk_mfma(True)
    qk0 = [qk0[kt * 12 + s * 3 + t] for s in range(4) for kt in range(2) for t in T3]
    zero = [f"v_mov_b64 {v2(r)}, 0" for r in range(0, 96, 2)]
    addr = f"""{lane_id(V_TMP)}
    s_mul_i32 s{S_T0}, s{S_GRP}, 393216
    s_mul_i32 s{S_T1}, s{S_J}, 49152
    s_add_u32 s{S_T0}, s{S_T0}, s{S_T1}
    s_add_u32 s{S_T0}, s{S_T0}, s{S_LWB}
    v_lshl_add_u32 v{V_OST}, v{V_TMP}, 4, s{S_T0}
    s_andn2_b32 s{S_T0}, s2, 0x38
    s_lshl_b32 s{S_T0}, s{S_T0}, 11
    s_lshl_b32 s{S_T1}, s{S_J}, 2
    s_add_u32 s{S_T0}, s{S_T0}, s{S_T1}
    s_lshl_b32 s{S_T1}, s{S_W}, 9
    s_add_u32 s{S_T0}, s{S_T0}, s{S_T1}
    s_add_u32 s{S_T0}, s{S_T0}, {WS_INBOX}
    v_lshl_add_u32 v{V_FLG}, v{V_TMP}, 14, s{S_T0}
    v_mov_b32 v{V_CHK}, 1""".split("\n")
    A(q_frag(0))
    A(weave(qk0, spread(addr, 0, 20) + [(6 * s - 6 + k // 3, x) for s in range(1, 4) for k, x in enumerate(q_frag(s))] + spread(zero[:12], 18, 23)))
    A(zero[12:20])
    if cfg.earlyb:
        A("s_barrier")
    A(row_max())
    A([f"v_pk_add_f32 {v2(SS(kt, t) + r)}, {v2(SS(kt, t) + r)}, {v2(VD(t) & ~1)} op_sel:[0,{VD(t) & 1}] op_sel_hi:[1,{VD(t) & 1}] neg_lo:[0,1] neg_hi:[0,1]"
       for kt in range(2) for t in T3 for r in (0, 2)])
    A([f"v_sub_f32 v{NM(t) + r}, 0, v{VD(t)}" for t in T3 for r in range(4)])
    A([f"v_mov_b64 {v2(VL(t))}, 0" for t in T3])
    A(exps(0, 0) + exps(0, 1) + exps(1, 0))
    if cfg.earlyb:
        A(k_reads(1))
        A(zero[20:])
    else:
        A("s_barrier")
        A(k_reads(1))
        A(zero[20:])

    def iteration(i):
        pre = pk_sum(0, 0) + pk_sum(0, 1) + pk_sum(1, 0) + p_cvt(0) + p_cvt(1, 0)
        vr = [x for T in range(8) for x in v_reads(T, i)]
        vgap = list(range(8, 22)) + [23, 24]
        add11 = [f"v_add_f32 v{VL(t) + r}, v{VL(t) + r}, v{SS(1, t) + 2 + r}" for t in T3 for r in range(2)]
        early = exps(0, 0) + exps(0, 1) + exps(1, 0)
        fill = ([(5, "s_waitcnt lgkmcnt(0)"), (22, "s_waitcnt lgkmcnt(4)"), (35, "s_waitcnt lgkmcnt(0)")]
                + ([(12, f"s_sub_u32 s{S_CNT}, s{S_CNT}, 1"), (40, f"s_cmp_lg_u32 s{S_CNT}, 0")] if i == 2 else [])
                + list(zip(vgap, vr)) + list(zip(range(6), exps(1, 1))) + list(zip((6, 6, 7, 7, 8, 9), add11)) + list(zip((10, 11, 11), p_cvt(1, 1)))
                + list(zip(range(16, 22), guard_max(0))) + list(zip((25, 25, 26, 26, 27, 27), guard_max(1)))
                + [(28, f"v_cmp_lt_f32 vcc, s{S_C}, v{VX}"), (29, f"s_cbranch_vccnz L_up_{i}")] + list(zip(range(30, 48), early)))
        mf = qk_mfma() + pv_mfma(cfg)
        rare.append([f"L_up_{i}:", "s_waitcnt lgkmcnt(0)"] + mf[30:] + row_max() + [f"v_max_f32 v{VD(t)}, 0, v{VD(t)}" for t in T3] + shift_scores()
                    + [f"v_exp_f32 v{VA(t)}, -v{VD(t)}" for t in T3]
                    + [f"v_sub_f32 v{NM(t) + r}, v{NM(t) + r}, v{VD(t)}" for t in T3 for r in range(4)]
                    + [f"v_mul_f32 v{VL(t) + r}, v{VL(t) + r}, v{VA(t)}" for t in T3 for r in range(2)]
                    + rescale(VA) + early + [f"s_cmp_lg_u32 s{S_CNT}, 0", f"s_branch L_back_{i}"])
        return pre + ["s_waitcnt lgkmcnt(6)"] + weave(mf, fill) + [f"L_back_{i}:"]

    A("; ---- attention loop, three key tiles per trip")
    A(f"s_mov_b32 s{S_C}, {f32(cfg.thr)}\ns_mov_b32 s{S_CNT}, 5\ns_branch L_aenter\n.p2align 3")
    top = P.add(["L_aloop:"] + ahook + ["s_barrier"] + k_reads(1) + ["L_aenter:"])
    body = P.add(iteration(0) + ["s_barrier"] + k_reads(2) + iteration(1) + ["s_barrier"] + k_reads(0) + iteration(2)
                 + ["s_cbranch_scc1 L_aloop"])
    tr.extend(body + top + body)
    A(exps(1, 1) + pk_sum(0, 0) + pk_sum(0, 1) + pk_sum(1, 0) + pk_sum(1, 1))
    A([f"v_add_f32 v{VL(t)}, v{VL(t)}, v{VL(t) + 1}" for t in T3])
    A(xlane("v_add_f32", [VL(t) for t in T3], [VT(t) for t in T3]))
    A([f"v_rcp_f32 v{VL(t)}, v{VL(t)}" for t in T3])
    bc = "op_sel_hi:[1,0]"
    A([f"v_pk_mul_f32 {v2(SS(kt, t) + r)}, {v2(SS(kt, t) + r)}, {v2(VL(t))} {bc}" for kt in range(2) for t in T3 for r in (0, 2)])
    A(p_cvt(0) + p_cvt(1))
    oscale = [f"v_pk_mul_f32 {v2(ACC(T, t) + r)}, {v2(ACC(T, t) + r)}, {v2(VL(t))} {bc}" for T in range(8) for t in T3 for r in (0, 2)]
    A(oscale[:24])
    A("s_barrier")
    A([x for T in range(8) for x in v_reads(T, 15)])
    A(oscale[24:])

    def last_pv(pol, hold=False):
        def o_out(s):
            return (acc_to_frag(s) + [f"s_mov_b32 s{S_T0}, {(s >> 1) * 24576 + (s & 1) * 3072}"]
                    + [f"buffer_store_dwordx4 {v4(QF(s, t))}, v{V_OST}, {srd(sWS)}, s{S_T0} offen offset:{t * 1024} {pol}" for t in T3])
        fill = []
        for s in range(3):
            o = o_out(s)
            fill += [(6 * s + 12, x) for x in o[12:]] if s < 2 else []
            fill += spread(o[:12], 6 * s + 6, 6 * s + 11)
        if hold:
            return weave(pv_mfma(cfg), fill) + o_out(3)[:12], o_out(2)[12:] + o_out(3)[12:]
        return weave(pv_mfma(cfg), fill) + o_out(2)[12:] + o_out(3)

    near, held = last_pv("", True) if cfg.split else (last_pv(""), [])
    A([f"s_cmp_lg_u32 s{S_FLAG}, 1", "s_cbranch_scc1 L_far"] + near + ["L_near:"])
    rare.append(["L_far:"] + last_pv("sc1")
                + [f"v_and_b32 v{VA(0)}, 3, v{V_TMP}", f"v_xor_b32 v{VA(0)}, s{S_GRP}, v{VA(0)}", f"v_lshlrev_b32 v{VA(0)}, 2, v{VA(0)}",
                   f"s_mov_b32 s{S_SPIN}, 0", "L_rechk:", f"s_cmp_lg_u32 s{S_FLAG}, 2", "s_cbranch_scc1 L_rechk_done",
                   f"buffer_load_dword v{VA(1)}, v{VA(0)}, {srd(sDBG)}, 0 offen sc1", "s_waitcnt vmcnt(0)"] + judge(VA(1))
                + [f"s_add_u32 s{S_SPIN}, s{S_SPIN}, 1", f"s_cmp_lt_u32 s{S_SPIN}, {cfg.chk_max}", "s_cbranch_scc1 L_rechk",
                   "L_rechk_done:", f"s_mov_b32 s{S_FLAG}, 0"]
                + ([f"v_mov_b32 v{V_CHK}, 2", f"v_mov_b32 v{V_OST}, 0x40000000"] if cfg.split else []) + ["s_branch L_near"])
    stamp()
    if cfg.w1late:
        A("s_barrier")
    fst = f"buffer_store_dword v{V_CHK}, v{V_FLG}, {srd(sWS)}, 0 offen"
    flag = [f"s_cmp_eq_u32 s{S_FLAG}, 0", "s_mov_b64 exec, 0xff", "s_waitcnt vmcnt(0)", "s_cbranch_scc1 L_farflag", fst, "L_flagged:", "s_mov_b64 exec, -1"]
    rare.append(["L_farflag:", fst + " sc1", "s_branch L_flagged"])
    A(f"""
    s_lshl_b32 s{S_T0}, s{S_HG}, 6
    v_and_b32 v{AW(0)}, 0xfff, v{AV(0)}
    v_xor_b32 v{AW(0)}, s{S_T0}, v{AW(0)}
    """)
    for T in range(1, 8):
        A(f"v_xor_b32 v{AW(T)}, {T << 5}, v{AW(0)}")
    A(f"""
    s_add_u32 s{S_T0}, s{S_LWB}, {BRING}
    v_lshl_add_u32 v{AB(0)}, v{V_TMP}, 4, s{S_T0}
    v_mov_b32 v{AK(1)}, 1
    """)
    if cfg.flag_after < 0:
        A(flag)
        stamp()
    A("s_barrier")
    A(gemm_reads(0, 0, "o", with_b=False))
    wstep = [f"v_add_u32 v{AW(T)}, {WSLOT}, v{AW(T)}" for T in range(8)]
    for hs in range(0 if cfg.bdirect else 4):
        if hs == cfg.flag_after:
            A(flag)
            stamp()
        fill = []
        if hs < 3:
            fill += spread(gemm_reads((hs + 1) & 1, (hs + 1) & 1, "o", with_b=False), 0, 15)
        if hs in (0, 2):
            fill += spread(wstep, 16, 23)
        A(weave(gemm_mfma(cfg, hs & 1, bsrc=lambda t: QF(hs, t), zero=(hs == 0)), fill))
    SL = AV(4) if cfg.coal else V_TMP
    src_lane = ""
    if cfg.coal:
        src_lane = f"""v_and_b32 v{SL}, 12, v{V_TMP}
        v_lshrrev_b32 v{AV(0)}, 4, v{V_TMP}
        v_or_b32 v{SL}, v{SL}, v{AV(0)}
        v_and_b32 v{AV(0)}, 3, v{V_TMP}
        v_lshl_or_b32 v{SL}, v{AV(0)}, 4, v{SL}"""
    xaddr = (f"""
    s_mul_i32 s{S_T0}, s{S_W}, 9216
    s_add_u32 s{S_T0}, s{S_T0}, {WS_X}
    v_lshl_add_u32 v{AB(1)}, v{V_TMP}, 4, s{S_T0}
    v_and_b32 v{AK(3)}, 3, v{V_TMP}
    s_lshl_b32 s{S_T0}, s{S_W}, 9
    s_add_u32 s{S_T0}, s{S_T0}, {WS_INBOX}
    v_lshl_add_u32 v{AK(2)}, v{AK(3)}, 7, s{S_T0}
    v_xor_b32 v{AK(0)}, s2, v{AK(3)}
    v_lshl_add_u32 v{AK(0)}, v{AK(0)}, 11, v{AK(2)}
    v_max_u32 v{AK(3)}, 1, v{AK(3)}
    s_lshl_b32 s{S_T1}, s2, 11
    s_add_u32 s{S_T0}, s{S_T0}, s{S_T1}
    v_lshl_add_u32 v{AK(2)}, v{AK(3)}, 7, s{S_T0}
    {src_lane}
    v_and_b32 v{AV(0)}, 15, v{SL}
    v_bfe_u32 v{AV(1)}, v{SL}, 4, 1
    v_bfe_u32 v{AV(2)}, v{SL}, 5, 1
    {f"v_lshlrev_b32 v{SL}, 2, v{SL}" if cfg.coal else ""}
    s_mul_i32 s{S_T0}, s{S_BP}, 192
    s_mul_i32 s{S_T1}, s{S_W}, 48
    s_add_u32 s{S_T0}, s{S_T0}, s{S_T1}
    s_lshl_b32 s{S_T0}, s{S_T0}, 12
    s_lshl_b32 s{S_T1}, s{S_BLK}, 11
    s_add_u32 s{S_T0}, s{S_T0}, s{S_T1}
    s_lshl_b32 s{S_T1}, s{S_NU}, 8
    s_add_u32 s{S_T0}, s{S_T0}, s{S_T1}
    s_lshl_b32 s{S_T1}, s{S_HG}, 6
    s_add_u32 s{S_T0}, s{S_T0}, s{S_T1}
    v_lshl_add_u32 v{AV(0)}, v{AV(0)}, 12, s{S_T0}
    v_lshl_add_u32 v{AV(0)}, v{AV(1)}, 5, v{AV(0)}
    v_lshl_add_u32 v{AV(0)}, v{AV(2)}, 4, v{AV(0)}
    """)
    if cfg.wideflag:
        xaddr += f"""v_bfe_u32 v{AK(3)}, v{V_TMP}, 3, 2
        v_xor_b32 v{AK(0)}, s2, v{AK(3)}
        v_lshlrev_b32 v{AK(0)}, 11, v{AK(0)}
        v_lshl_add_u32 v{AK(0)}, v{AK(3)}, 7, v{AK(0)}
        v_and_b32 v{AK(3)}, 7, v{V_TMP}
        v_lshl_add_u32 v{AK(0)}, v{AK(3)}, 4, v{AK(0)}
        s_lshl_b32 s{S_T0}, s{S_W}, 9
        s_add_u32 s{S_T0}, s{S_T0}, {WS_INBOX}
        v_add_u32 v{AK(0)}, s{S_T0}, v{AK(0)}
        """ + "".join(f"v_mov_b32 v{AV(4) + k}, 1\n" for k in range(4))
    if not cfg.bdirect:
        A(xaddr + f"s_mov_b32 s{S_SLOT}, 2")
    if cfg.wb:
        A(f"""s_and_b32 s{S_T0}, s2, {cfg.wbmask}
        s_or_b32 s{S_T0}, s{S_T0}, s{S_W}
        s_cselect_b32 s{S_FLAG}, 0, {cfg.wb}""")
        rare.append(["L_wb:", "buffer_wbl2 sc1", "s_branch L_wbdone"])
    XF = QF
    after = []
    mf = gemm_mfma(cfg, 1)
    if cfg.bdirect:
        assert cfg.par in (0, 1) and not cfg.oord and cfg.flag_after in (-1, 1)
        ring = [FB(0, 0), FB(1, 0)] + [QF(s, 0) for s in range(4)]
        BR = lambda h: (lambda t: ring[(h - 4) % 6] + 4 * t)
        rel = o_rel(cfg)[2:]
        tbl = sum(r << (4 * n) for n, r in enumerate(rel))
        nxt = [f"s_add_u32 s{S_BO}, s{S_TBL}, s{S_J2}", f"s_and_b32 s{S_BO}, s{S_BO}, 15", f"s_mul_i32 s{S_BO}, s{S_BO}, 24576",
               f"s_lshr_b64 s[{S_TBL}:{S_TBL + 1}], s[{S_TBL}:{S_TBL + 1}], 4"]
        bload = lambda h: [f"buffer_load_dwordx4 {v4(BR(h)(t))}, v{AV(3) if h & 1 else AB(0)}, {srd(sWS)}, s{S_BO} offen offset:{t * 1024} {cfg.pol_ob}" for t in T3]
        bgaps = [int(x) for x in cfg.bgaps.split(".")]
        sal = [f"s_add_u32 s{S_SLOT}, s{S_SLOT}, 1", f"s_and_b32 s{S_SLOT}, s{S_SLOT}, 3", f"s_cselect_b32 s{S_DW}, {WSLOT}, s{S_T2}"]
        val = [f"v_add_u32 v{AW(T)}, s{S_DW}, v{AW(T)}" for T in range(8)]

        def half(h, extra=()):
            b = h & 1
            fill = []
            if 2 <= h <= 26:
                fill += (list(zip(range(4, 8), nxt)) if b else []) + list(zip(bgaps, bload(h + 5)))
            if b:
                fill += spread(gemm_reads(0, 0, "o", with_b=False), -1, 14) + [(22, "s_waitcnt lgkmcnt(0)")]
            else:
                fill += spread(gemm_reads(1, 1, "o", with_b=False), 0, 15) + list(zip(range(3), sal)) + list(zip((8, 9, 10, 11, 12, 13, 14, 16), val))
                fill += [(22, "s_waitcnt lgkmcnt(0)")] + ([(22, "s_barrier")] if 2 <= h <= 28 or (h == 0 and cfg.w1late) else [])
            if 3 <= h <= 30:
                fill += [(23, f"s_waitcnt vmcnt({3 * min(4, 30 - h)})")]
            return weave(gemm_mfma(cfg, b, bsrc=BR(h), zero=(h == 0)), fill + list(extra))

        A(f"""s_mul_i32 s{S_T0}, s{S_GRP}, 393216
        s_add_u32 s{S_T0}, s{S_T0}, s{S_LWB}
        v_lshl_add_u32 v{AB(0)}, v{V_TMP}, 4, s{S_T0}
        v_add_u32 v{AV(3)}, 3072, v{AB(0)}
        s_mov_b32 s{S_TBL}, {tbl & 0xffffffff}
        s_mov_b32 s{S_TBL + 1}, {tbl >> 32}
        s_lshl_b32 s{S_J2}, s{S_J}, 1
        s_mov_b32 s{S_SLOT}, 0""")
        xa = [x.strip() for x in xaddr.split("\n") if x.strip()]
        if cfg.split:
            if cfg.flag_after < 0:
                A(half(0, list(zip((3, 4, 8, 12, 15, 16, 19, 22), held))))
                A(half(1, [(0, f"v_mov_b32 v{V_CHK}, 2")] + spread(xa, 1, 21)))
            else:
                h0 = half(0, list(zip((16, 17, 20, 23), held[:4])))
                cut = [k for k, x in enumerate(h0) if x.startswith("v_mfma")][cfg.fgap]
                A(h0[:cut] + flag + h0[cut:])
                stamp()
                A(half(1, list(zip((1, 2, 5, 8), held[4:])) + [(9, f"v_mov_b32 v{V_CHK}, 2")] + spread(xa, 10, 21)))
            A([f"s_cmp_eq_u32 s{S_FLAG}, 0", "s_cbranch_scc1 L_flagged2", "s_mov_b64 exec, 0xff", "s_waitcnt vmcnt(0)", fst, "s_mov_b64 exec, -1", "L_flagged2:"])
        else:
            A(half(0))
            if cfg.flag_after == 1:
                A(flag)
                stamp()
            A(half(1, spread(xa, 0, 21)))
        A(["s_barrier"] + nxt + bload(4) + bload(5) + nxt + bload(6))
        A(half(2))
        A(f"s_mov_b32 s{S_CNT}, 4\n.p2align 3")
        body = P.add(["L_oloop:"] + half(3) + half(4) + half(5) + half(6) + half(7)
                     + half(8, [(5, f"s_sub_u32 s{S_CNT}, s{S_CNT}, 1"), (6, f"s_cmp_lg_u32 s{S_CNT}, 0")]) + ["s_cbranch_scc1 L_oloop"])
        tr.extend(body + body)
        XF = lambda i, t: QF(0, t) if i == 0 else 144 + ((i - 1) * 3 + t) * 4
        mf = gemm_mfma(cfg, 1, bsrc=BR(31))
        if not cfg.defer:
            for h in range(27, 31):
                A(half(h))
        elif cfg.defer == 2:
            rd = lambda h, T, reg: [f"ds_read_b64_tr_b16 {v2(reg + 2 * u)}, v{AW(T)} offset:{(h - 28) * 8192 + u * 4096}" for u in range(2)]
            seq = [(27, 1), (27, 2), (27, 3), (28, 1), (28, 2), (29, 1), (30, 1), (31, 1), (29, 2), (30, 2), (31, 2),
                   (28, 3), (29, 3), (30, 3), (31, 3), (27, 0), (28, 0), (29, 0), (30, 0), (31, 0)]
            XF = lambda i, t: {0: QF(0, t), 1: QF(2, t), 2: FA(1, 2 + t), 3: FA(1, 5 + t)}[i]
            main, fill, k = [], [(17, "s_barrier")], 0
            prev = [-1] * 4
            for n, (h, g) in enumerate(seq):
                if h == 27:
                    a = FA(1, 2 * g)
                else:
                    a = FA(0, 2 * (k % 4))
                    at = max(prev[k % 4] + 1, n - 3, 3 if h >= 30 else 0)
                    fill += list(zip(range(6 * at, 6 * at + 4), [x for u in range(2) for x in rd(h, 2 * g + u, a + 4 * u)]))
                    prev[k % 4] = n
                    k += 1
                main += [f"{MFMA} {v4(ACC(2 * g + T, t))}, {v4(a + 4 * T)}, {v4(BR(h)(t))}, {v4(ACC(2 * g + T, t))}" for T, t in order(2, cfg.snake)]
                if g == 1 and h > 27:
                    fill.append((6 * n - 1, f"s_waitcnt vmcnt({3 * (31 - h)})"))
            for i in range(1, 4):
                n = seq.index((31, i)) + 1
                so = [f"s_xor_b32 s{S_T0}, s2, {i}", f"s_mul_i32 s{S_T0}, s{S_T0}, 36864", f"s_add_u32 s{S_T0}, s{S_T0}, {(i - 1) * 3072}"]
                st = [f"buffer_store_dwordx4 {v4(XF(i, t))}, v{AB(1)}, {srd(sWS)}, s{S_T0} offen offset:{t * 1024} sc1" for t in T3]
                cv = acc_to_frag(i, XF)
                cv = [cv[6 * u + 2 * t + hh] for t in (2, 1, 0) for u in range(2) for hh in range(2)]
                fill = list(zip(range(6 * n, 6 * n + 3), so)) + list(zip((6 * n + 4, 6 * n + 6, 6 * n + 8), reversed(st))) + fill
                fill += spread(cv, 6 * n + 2, 6 * n + 7)
            xflag = lambda i, n: [f"s_waitcnt vmcnt({n})", f"s_mov_b64 exec, {1 << i}", f"buffer_store_dword v{AK(1)}, v{AK(0)}, {srd(sWS)}, 0 offen sc1", "s_mov_b64 exec, -1"]
            if cfg.xprog:
                assert cfg.xprog > 98
                fill += [(cfg.xprog, x) for x in xflag(1, 6)]
            A(weave(main, fill))
            stamp()
        else:
            rd = lambda h, T, reg: [f"ds_read_b64_tr_b16 {v2(reg + 2 * u)}, v{AW(T)} offset:{(h - 28) * 8192 + u * 4096}" for u in range(2)]
            own = lambda h, T: {27: FA(1, T), 28: FA(0, T), 29: QF(2, 0) + 4 * T, 30: FA(1, T), 31: FA(0, T)}[h]
            ownrd = lambda h: [x for T in range(2) for x in rd(h, T, own(h, T))]
            for h in range(27, 31):
                b = h & 1
                reads = [x for T in range(2, 8) for x in rd(h + 1, T, FA(1 - b, T))] + ownrd(28 + (h - 27) // 2)[2 * (1 - b):2 * (1 - b) + 2]
                fill = spread(reads, -1 if b else 0, 12 if b else 13)
                fill += [(16, "s_waitcnt lgkmcnt(2)")] + ([(16, "s_barrier")] if h == 28 else []) + [(17, f"s_waitcnt vmcnt({3 * (30 - h)})")]
                A(weave(gemm_mfma(cfg, b, bsrc=BR(h))[6:], fill))
            XF = lambda i, t: {0: QF(0, t), 1: FA(0, 2 + t), 2: FA(0, 5 + t), 3: FA(1, 2 + t)}[i]
            late = [f"{MFMA} {v4(ACC(T, t))}, {v4(own(h, T))}, {v4(BR(h)(t))}, {v4(ACC(T, t))}" for h in range(27, 32) for T, t in order(2, cfg.snake)]
            mf = late[:6] + mf[6:]
            after = weave(late[6:], list(zip(range(0, 4), ownrd(30))) + list(zip(range(6, 10), ownrd(31))))
    else:
        A("s_barrier")
        A(gemm_reads(0, 0, "o"))
        gemm_loop(P, tr, cfg, "o", "L_oloop", 14)
    fill = []
    for i in range(1, 4):
        so = [f"s_xor_b32 s{S_T0}, s2, {i}", f"s_mul_i32 s{S_T0}, s{S_T0}, 36864", f"s_add_u32 s{S_T0}, s{S_T0}, {(i - 1) * 3072}"]
        st = [f"buffer_store_dwordx4 {v4(XF(i, t))}, v{AB(1)}, {srd(sWS)}, s{S_T0} offen offset:{t * 1024} sc1" for t in T3]
        fill += [(6 * i + 6, x) for x in st] + list(zip(range(6 * i + 1, 6 * i + 4), so)) + spread(acc_to_frag(i, XF), 6 * i, 6 * i + 5)
    if cfg.defer != 2:
        A("; ---- partner tiles leave first, the own tiles finish meanwhile")
        last = [x for g, x in fill if g == 24]
        A(weave(mf[6:] + mf[:6], [(g, x) for g, x in fill if g < 24]) + last)
        stamp()
        A(after)
    xload = lambda k, so: f"buffer_load_dwordx4 {v4(24 + 4 * k)}, v{AB(1)}, {srd(sWS)}, s{so} offen offset:{(k % 3) * 1024} sc1"

    def xadd(i):
        for k in range(3 * i, 3 * i + 3):
            for d in range(4):
                src, dst = 24 + 4 * k + d, ACC(d >> 1, k % 3) + 2 * (d & 1)
                A(f"""v_lshlrev_b32 v64, 16, v{src}
                v_and_b32 v65, s{S_C}, v{src}
                v_pk_add_f32 {v2(dst)}, {v2(dst)}, v[64:65]""")

    so = (S_T0, S_T1, S_T2)
    xbase = f"s_mul_i32 s{S_T0}, s2, 36864\ns_add_u32 s{S_T1}, s{S_T0}, 3072\ns_add_u32 s{S_T2}, s{S_T0}, 6144\ns_mov_b32 s{S_C}, 0xffff0000"
    if cfg.xprog:
        A(xflag(2, 4))
        A(xbase + f"\ns_mov_b32 s{S_MASK}, 0\ns_mov_b32 s{S_SPIN}, 0")
        A(xflag(3, 2))
        stamp()
        for i in range(3):
            loop = P.add(f"""L_x{i}:
            s_bitcmp1_b32 s{S_MASK}, {i + 1}
            s_cbranch_scc1 L_x{i}_done
            buffer_load_dword v{V_CHK}, v{AK(2)}, {srd(sWS)}, 0 offen sc1
            s_add_u32 s{S_SPIN}, s{S_SPIN}, 1
            s_waitcnt vmcnt(0)
            v_cmp_eq_u32 vcc, 1, v{V_CHK}
            s_mov_b32 s{S_MASK}, vcc_lo
            s_cmp_lt_u32 s{S_SPIN}, {SPIN_MAX}
            s_cbranch_scc1 L_x{i}""")
            tr.extend(loop[:3])
            side.append(loop + loop)
            A(f"L_x{i}_done:")
            if i == 2:
                stamp()
            A([xload(k, so[i]) for k in range(3 * i, 3 * i + 3)])
        for i in range(3):
            xadd(i)
    elif not cfg.tag:
        if cfg.wideflag:
            A(["s_mov_b32 exec_lo, 0xffffff00", "s_mov_b32 exec_hi, 0", "s_waitcnt vmcnt(0)",
               f"buffer_store_dwordx4 {v4(AV(4))}, v{AK(0)}, {srd(sWS)}, 0 offen sc1", "s_mov_b64 exec, -1"])
        else:
            A(["s_waitcnt vmcnt(0)", "s_mov_b64 exec, 14", f"buffer_store_dword v{AK(1)}, v{AK(0)}, {srd(sWS)}, 0 offen sc1", "s_mov_b64 exec, -1"])
        stamp()
        if cfg.apoll:
            A("s_mov_b64 exec, 14")
        poll_loop(P, tr, "poll2", V_CHK, AK(2), cfg.apoll)
        if cfg.apoll:
            A("s_mov_b64 exec, -1")
        stamp()
        A(xbase)
        A([xload(k, so[k // 3]) for k in range(9)])
        for i in range(3):
            xadd(i)
    else:
        stamp()
        A(xbase)
        A(f"s_mov_b32 s{S_SPIN}, 0")
        if cfg.tag == 2:
            probe = P.add(["L_probe:"] + [xload(3 * i + 2, so[i]) for i in range(3)] + f"""s_add_u32 s{S_SPIN}, s{S_SPIN}, 1
            s_cmp_ge_u32 s{S_SPIN}, {SPIN_MAX}
            s_cbranch_scc1 L_probed
            s_waitcnt vmcnt(0)
            v_max3_u32 v64, v35, v47, v59
            v_cmp_eq_u32 vcc, -1, v64
            s_cbranch_vccnz L_probe""".split("\n"))
            tr.extend(probe + probe)
            A("L_probed:")
        first = [xload(k, so[k // 3]) for k in range(9) if cfg.tag == 1 or k % 3 != 2]
        A(first)
        for i in range(3):
            b = 24 + 12 * i
            chk2 = ([f"v_max3_u32 v64, v{b}, v{b + 1}, v{b + 2}"] + [f"v_max3_u32 v64, v{b + k}, v{b + k + 1}, v64" for k in range(3, 11, 2)]
                    + [f"v_max_u32 v64, v{b + 11}, v64", "v_cmp_eq_u32 vcc, -1, v64"])
            A([f"L_x{i}:"] + chk2 + [f"s_cbranch_vccnz L_xr{i}", f"L_xok{i}:"])
            rare.append([f"L_xr{i}:"] + [xload(k, so[i]) for k in range(3 * i, 3 * i + 3)]
                        + [f"s_add_u32 s{S_SPIN}, s{S_SPIN}, 1", f"s_cmp_lt_u32 s{S_SPIN}, {SPIN_MAX}", "s_waitcnt vmcnt(0)",
                           f"s_cbranch_scc1 L_x{i}", f"s_branch L_xok{i}"])
            if i == 2:
                stamp()
            xadd(i)
    A(acc_to_frag(0))
    A([f"v_permlane16_swap_b32 v{QF(0, t) + h}, v{QF(0, t) + 2 + h}" for t in T3 for h in range(2)])
    if cfg.coal:
        A([f"ds_bpermute_b32 v{QF(0, t) + r}, v{SL}, v{QF(0, t) + r}" for t in T3 for r in range(4)])
    if cfg.linout:
        A(f"s_lshl_b32 s{S_T0}, s2, 2\ns_add_u32 s{S_T0}, s{S_T0}, s{S_W}\ns_mul_i32 s{S_T0}, s{S_T0}, 3072\nv_lshl_add_u32 v{AV(0)}, v{V_TMP}, 4, s{S_T0}")
    for t in T3:
        A(f"s_mov_b32 s{S_T0}, {t * (1024 if cfg.linout else 65536)}\nbuffer_store_dwordx4 {v4(QF(0, t))}, v{AV(0)}, {srd(sOUT)}, s{S_T0} offen {cfg.pol_out}")
    if cfg.stamps:
        A("s_waitcnt vmcnt(0)")
        stamp()
        A(f"v_mov_b32 v1, 0")
        for k in range(nst[0]):
            A(f"v_writelane_b32 v1, s{S_ST + 2 * k}, {k}")
        A(f"""s_lshl_b32 s{S_T0}, s2, 3
        s_add_u32 s{S_T0}, s{S_T0}, s{S_WAVE}
        s_lshl_b32 s{S_T0}, s{S_T0}, 8
        s_add_u32 s{S_T0}, s{S_T0}, {WS_STAMP}
        v_lshl_add_u32 v2, v{V_TMP}, 2, s{S_T0}
        buffer_store_dword v1, v2, {srd(sWS)}, 0 offen""")
    A("L_exit:\ns_endpgm")
    blocks = {}
    for blk in rare:
        blocks[blk[0][:-1]] = P.add(blk)
    tr2 = []
    skip = None
    for ins in tr:
        if skip:
            if ins.text == skip + ":":
                skip = None
            else:
                continue
        tr2.append(ins)
        if ins.op.startswith("s_cbranch") and ins.text.split()[1] in blocks:
            blk = blocks[ins.text.split()[1]]
            tr2 += blk
            skip = blk[-1].text.split()[1]
    assert skip is None
    return [tr, tr2], side


def generate(cfg):
    P = Prog()
    pre = P.add(("s_memrealtime s[96:97]\n" if cfg.stamps else "") + "s_cmp_ge_u32 s2, 256\ns_cbranch_scc1 L_exit")
    if cfg.remap:
        pre += P.add("""s_bfe_u32 s4, s2, 0x20003
        s_lshr_b32 s5, s2, 5
        s_and_b32 s2, s2, 7
        s_lshl_b32 s4, s4, 6
        s_lshl_b32 s5, s5, 3
        s_or_b32 s2, s2, s4
        s_or_b32 s2, s2, s5""")
    pre += prologue(P, cfg)
    tl = loader(P, cfg)
    tc, side = compute(P, cfg)
    body = P.finish([pre + t for t in tc + tl] + side)
    if cfg.align:
        body = align8(body)
    body = body.replace(".p2align 3", f".p2align {cfg.lalign}" + "\n    s_nop 0" * cfg.lpad)
    return (HEADER + DOC + "; @launch grid=(256,1,1) block=(512,1,1) lds=163840\n"
            + '.amdgcn_target "amdgcn-amd-amdhsa--gfx950"\n.text\n'
            + f".globl {NAME}_kernel\n.p2align 8\n.type {NAME}_kernel,@function\n{NAME}_kernel:\n" + body
            + f"""L_text_end:
.section .rodata,"a"
.p2align 6
.amdhsa_kernel {NAME}_kernel
  .amdhsa_next_free_vgpr 256
  .amdhsa_next_free_sgpr 102
  .amdhsa_accum_offset 256
  .amdhsa_group_segment_fixed_size 0
  .amdhsa_kernarg_size 104
  .amdhsa_user_sgpr_count 2
  .amdhsa_user_sgpr_kernarg_segment_ptr 1
  .amdhsa_system_sgpr_workgroup_id_x 1
  .amdhsa_float_denorm_mode_32 3
.end_amdhsa_kernel
""")


def parse(args):
    kw = {}
    for a in args:
        k, v = a.split("=")
        kw[k] = float(v) if k == "thr" else (int(v) if v.lstrip("-").isdigit() and not k.startswith(("pre", "ptouch", "spre", "bgaps", "order", "kbits", "qskip")) else v.replace("+", " "))
    return Cfg(**kw)


if __name__ == "__main__":
    open(sys.argv[1], "w").write(generate(parse(sys.argv[2:])))
```

```python
import struct, sys
from asmlib import Prog, weave, spread, balance, align8

NAME = "concat_heads__mha_block_cached__gqa_block_cached__near_ridge"
HEADER = open("cdna_kernels/" + NAME + ".s.ref").read().split("; Override launch")[0]

DOC = """; One launch, 256 workgroups (one per CU) of 4 compute waves + 4 loader waves, all MFMA work in 16x16x32 bf16.
;   1. Q^T = Wq^T x^T      16 stages of K=64 through an LDS ring (LDS-DMA, XOR-swizzled, transposing LDS reads)
;   3. out^T = Wo^T O^T    the eight members of a head group exchange O through d_ws; each computes 128 columns over
;   4. reduction           the four head groups exchange partial tiles through d_ws; each finishes 32 columns.
; only after those reports are seen. Stores are write-through unless the reports show the whole group on one die.
"""

WS_O, WS_X, WS_INBOX, WS_STAMP, WS_DUMP = 0, 16 << 20, 48 << 20, 200 << 20, 64 << 20
WRING, BRING, KRING, VRING = 0, 65536, 65536, 114688
WSLOT, BSLOT, ASLOT = 16384, 24576, 16384
SPIN_MAX = 400000
T3 = range(3)

S_WAVE, sX, sK, sV, sWQ, sWO, sOUT, sWS, sDBG = 3, 20, 24, 28, 32, 36, 40, 44, 48
S_BLK, S_HG, S_J, S_BP, S_NU, S_W, S_H, S_DB = 52, 53, 54, 55, 56, 57, 58, 59
S_T0, S_T1, S_T2, S_T3, S_CNT, S_DW, S_C, S_SLOT = 60, 61, 62, 63, 64, 65, 66, 68
S_LWB, S_LWW, S_ROT, S_J2, S_SPIN, S_FLAG, S_XCC, S_GRP = 69, 70, 71, 72, 73, 74, 75, 76
S_MASK, S_PC = 77, 78
S_SB = 94
S_TBL, S_BO = 92, 94
S_KR = 67
S_ST = 80
srd = lambda r: f"s[{r}:{r+3}]"
v4 = lambda r: f"v[{r}:{r+3}]"
v2 = lambda r: f"v[{r}:{r+1}]"
f32 = lambda x: "0x%08x" % struct.unpack("<I", struct.pack("<f", x))[0]
MFMA = "v_mfma_f32_16x16x32_bf16"

ACC = lambda T, t: (T * 3 + t) * 4
QF = lambda s, t: 96 + (s * 3 + t) * 4
FA = lambda b, T: 144 + 44 * b + 4 * T
FB = lambda b, t: 144 + 44 * b + 32 + 4 * t
AW = lambda T: 232 + T
AB = lambda s: 240 + s
V_CHK, V_TMP = 242, 243
FR = lambda f: 144 + 4 * f
SS = lambda kt, t: 176 + (kt * 3 + t) * 4
PP = lambda t: 200 + 4 * t
NM = lambda t: 212 + 4 * t
VL = lambda t: 224 + 2 * t
VX = 230
V_OST, V_FLG = 241, 231
VD = lambda t: 232 + t
VT = lambda k: 235 + k
VA = lambda t: 238 + t
AK = lambda s: 244 + s
AV = lambda T: 248 + T


class Cfg:
    def __init__(self, **kw):
        self.pol_x = ""
        self.pol_wq = ""
        self.pol_kv = "nt"
        self.pol_wo = ""
        self.pol_ob = "sc1"
        self.rot = 7
        self.stamps = 0
        self.flag_after = 1
        self.pre = "44.0.0.0.0.0.0.0.0.0.0.0.4.4"
        self.last = 29
        self.win = 5
        self.win16 = 10
        self.wo_at = "31.31.33.33"
        self.qd = 2
        self.thr = 8.0
        self.local = 1
        self.pk = 0
        self.snake = 1
        self.align = 1
        self.prio = 0
        self.remap = 0
        self.nurot = 1
        self.otouch = 0
        self.stag = 0
        self.s1pre = 36
        self.s1win = 8
        self.s0win = 8
        self.s0late = 8
        self.s0sw = 28
        self.prog = 1
        self.pre1 = '16.14.12.10'
        self.tag = 0
        self.oclear = 0
        self.heat = 0
        self.shape = 0
        self.coal = 1
        self.qres = 2
        self.qskipb = ''
        self.qskip = ''
        self.earlyb = 0
        self.lalign = 6
        self.lpad = 0
        self.xprog = 0
        self.apoll = 0
        self.split = 0
        self.fgap = 12
        self.wideflag = 0
        self.psleep = 0
        self.kbits = '13.14.11.12.10.15.16'
        self.hmap = 3
        self.pol_t = 'sc1'
        self.order = '48c59d26ae37bf'
        self.clear_at = 0
        self.clear_b = 0
        self.krot = 0
        self.ksh = 0
        self.sigma = 5
        self.xtouch = 1
        self.hgrot = 3
        self.lazyp = 2
        self.w1late = 0
        self.linout = 0
        self.spreadc = 0
        self.latefetch = 0
        self.spreadsh = 4
        self.nocount = 0
        self.cls = 3
        self.clsinv = 1
        self.winlate = 0
        self.late = 27
        self.wwin = 0
        self.defer = 2
        self.bdirect = 1
        self.bgaps = '17.19.21'
        self.bwin = 0
        self.afirst = 0
        self.winb = 0
        self.lastb = 0
        self.par = 1
        self.spre = ''
        self.coop = ''
        self.coopw0 = 31
        self.promote = 0
        self.pol_out = ''
        self.ptouch = ''
        self.wb = 0
        self.wbmask = 0xf8
        self.oord = 0
        self.od = 2
        self.ctouch = 1
        self.count_at = 13
        self.fetch_at = 3
        self.chk_max = 50000
        self.__dict__.update(kw)


def o_rel(cfg):
    if cfg.order:
        r = [0, 1] + [int(c, 16) for c in cfg.order]
        assert sorted(r) == list(range(16))
        return r
    return [m if not cfg.par else (4 * (m >> 1) + (m & 1) if m < 8 else 4 * ((m - 8) >> 1) + (m & 1) + 2) for m in range(16)]


def head_of(cfg, dst, j, tmp):
    if cfg.hmap == 0:
        return f"s_lshl_b32 s{dst}, s{S_HG}, 3\ns_add_u32 s{dst}, s{dst}, s{j}"
    if cfg.hmap == 1:
        return f"s_lshl_b32 s{dst}, s{j}, 2\ns_add_u32 s{dst}, s{dst}, s{S_HG}"
    if cfg.hmap in (2, 3):
        g = f"s_and_b32 s{dst}, s{j}, 3" if cfg.hmap == 2 else f"s_lshr_b32 s{dst}, s{j}, 1"
        return f"{g}\ns_xor_b32 s{dst}, s{dst}, s{S_HG}\ns_lshl_b32 s{dst}, s{dst}, 3\ns_add_u32 s{dst}, s{dst}, s{j}"
    lo = cfg.hmap - 3
    return (f"s_lshr_b32 s{dst}, s{j}, {lo}\ns_lshl_b32 s{dst}, s{dst}, 2\ns_add_u32 s{dst}, s{dst}, s{S_HG}\ns_lshl_b32 s{dst}, s{dst}, {lo}\n"
            f"s_and_b32 s{tmp}, s{j}, {(1 << lo) - 1}\ns_add_u32 s{dst}, s{dst}, s{tmp}")


def lane_id(v):
    return f"v_mbcnt_lo_u32_b32 v{v}, -1, 0\nv_mbcnt_hi_u32_b32 v{v}, -1, v{v}"


def make_srd(items):
    return "\n".join(f"s_mov_b32 s{r}, s{p}\ns_mov_b32 s{r+1}, s{p+1}\ns_mov_b32 s{r+2}, {n}\ns_mov_b32 s{r+3}, 0x20000" for r, p, n in items)


def prologue(P, cfg):
    return P.add(f"""
    s_bfe_u32 s{S_BLK}, s2, 0x10002
    s_mul_i32 s{S_T0}, s{S_BLK}, 40
    s_load_dwordx8 s[4:11], s[0:1], s{S_T0}
    s_add_u32 s{S_T1}, s{S_T0}, 32
    s_load_dwordx2 s[12:13], s[0:1], s{S_T1}
    s_load_dwordx4 s[16:19], s[0:1], 88
    s_load_dwordx2 s[14:15], s[0:1], 80
    v_lshrrev_b32 v1, 6, v0
    v_and_b32 v0, 63, v0
    s_and_b32 s{S_HG}, s2, 3
    v_readfirstlane_b32 s{S_WAVE}, v1
    s_bfe_u32 s{S_J}, s2, 0x30003
    s_lshr_b32 s{S_BP}, s2, 6
    {head_of(cfg, S_H, S_J, S_T2)}
    s_and_b32 s{S_W}, s{S_WAVE}, 3
    s_mul_i32 s{S_LWB}, s{S_W}, 6144
    s_lshl_b32 s{S_LWW}, s{S_W}, 12
    s_cmp_lt_u32 s{S_WAVE}, 4
    s_cbranch_scc1 L_compute
    """)


def late_ids(cfg):
    return f"""s_mul_i32 s{S_NU}, s{S_BP}, {2 * cfg.nurot}
    s_add_u32 s{S_NU}, s{S_NU}, s{S_J}
    s_and_b32 s{S_NU}, s{S_NU}, 7
    {f"s_xor_b32 s{S_NU}, s{S_NU}, s{S_BLK}" if cfg.sigma & 4 else ""}
    {f"s_lshl_b32 s{S_NU}, s{S_NU}, 2" if cfg.sigma & 3 else ""}
    {f"s_lshr_b32 s{S_NU}, {[0, 0x73625140, 0x75643120][cfg.sigma & 3]}, s{S_NU}" if cfg.sigma & 3 else ""}
    {f"s_and_b32 s{S_NU}, s{S_NU}, 7" if cfg.sigma & 3 else ""}
    s_and_b32 s{S_GRP}, s2, 7
    s_lshl_b32 s{S_T1}, s{S_BP}, 3
    s_add_u32 s{S_GRP}, s{S_GRP}, s{S_T1}"""


def x_touch(cfg, vaddr, vdst):
    if cfg.xtouch & 3 == 1:
        return [f"""s_lshr_b32 s{S_T0}, s2, 3
        s_lshl_b32 s{S_T0}, s{S_T0}, 2
        s_add_u32 s{S_T0}, s{S_T0}, s{S_HG}
        s_lshl_b32 s{S_T0}, s{S_T0}, 2
        s_add_u32 s{S_T0}, s{S_T0}, s{S_W}
        s_mul_i32 s{S_T0}, s{S_T0}, 3072
        v_min_u32 v{vaddr}, 23, v0
        v_lshlrev_b32 v{vaddr}, 7, v{vaddr}""", f"buffer_load_dword v{vdst}, v{vaddr}, {srd(sX)}, s{S_T0} offen"]
    return [f"""s_lshr_b32 s{S_T0}, s2, 3
    s_lshl_b32 s{S_T0}, s{S_T0}, 2
    s_add_u32 s{S_T0}, s{S_T0}, s{S_W}
    s_mul_i32 s{S_T0}, s{S_T0}, 12288
    s_add_u32 s{S_T1}, s{S_T0}, 6144
    v_min_u32 v{vaddr}, 47, v0
    v_lshlrev_b32 v{vaddr}, 7, v{vaddr}""", f"buffer_load_dword v{vdst}, v{vaddr}, {srd(sX)}, s{S_T0} offen",
            f"buffer_load_dword v{vdst}, v{vaddr}, {srd(sX)}, s{S_T1} offen"]


def code_touch(lane, vaddr, vdst):
    return f"""s_lshr_b32 s{S_T0}, s2, 3
    s_lshl_b32 s{S_T0}, s{S_T0}, 10
    v_and_b32 v{vaddr}, 7, v{lane}
    v_lshl_add_u32 v{vaddr}, v{vaddr}, 7, s{S_T0}
    v_min_u32 v{vaddr}, L_text_end-L_text-4, v{vaddr}
    global_load_dword v{vdst}, v{vaddr}, s[{S_PC}:{S_PC + 1}]"""


def poll_loop(P, tr, name, vdst, vaddr, mode=0):
    tr.extend(P.add(f"s_mov_b32 s{S_SPIN}, 0"))
    ld = f"buffer_load_dword v{vdst}, v{vaddr}, {srd(sWS)}, 0 offen sc1"
    if mode == 1:
        ld = f"v_mov_b32 v{vdst}, 0\nbuffer_atomic_or v{vdst}, v{vaddr}, {srd(sWS)}, 0 offen sc0"
    if mode == 2:
        ld += " nt"
    loop = P.add(f"""L_{name}:
    {ld}
    s_add_u32 s{S_SPIN}, s{S_SPIN}, 1
    s_cmp_ge_u32 s{S_SPIN}, {SPIN_MAX}
    s_cbranch_scc1 L_{name}_done
    s_waitcnt vmcnt(0)
    v_cmp_ne_u32 vcc, 1, v{vdst}
    s_cbranch_vccnz L_{name}""")
    tr.extend(loop + loop)
    tr.extend(P.add(f"L_{name}_done:"))


LX = lambda p: 8 + p
LW = lambda p: 14 + p
LK = lambda p: 18 + p
LV = lambda p: (22, 23, 34, 35)[p]
LWO = lambda p: 24 + p
LOB, LFLAG, LSTAMP, LPOLL = 28, 29, 30, 31
LDSW = lambda h: 1 + h
LTQ, LTO, LTB = 32, 33, 32
LPOOL = 36


def late_setup(A, cfg):
    kb = [int(x) for x in cfg.kbits.split(".")]
    padj = lambda p: ((p & 1) << kb[0]) + ((p >> 1) << kb[1]) - p * 1024
    assert min(padj(p) for p in range(4)) >= 0 and sorted(kb) == list(range(10, 17))
    A(f"""
    s_lshr_b32 s{S_T0}, s{S_W}, 1
    s_lshl_b32 s{S_T1}, s{S_BP}, 1
    s_add_u32 s{S_T0}, s{S_T0}, s{S_T1}
    s_lshl_b32 s{S_T0}, s{S_T0}, 5
    s_add_u32 s{S_T0}, s{S_T0}, s{S_H}
    s_lshl_b32 s{S_T0}, s{S_T0}, 17
    s_and_b32 s{S_T1}, s{S_W}, 1
    s_lshl_b32 s{S_T1}, s{S_T1}, {kb[2]}
    s_add_u32 s{S_T0}, s{S_T0}, s{S_T1}
    v_lshl_add_u32 v5, v1, 8, s{S_T0}
    v_xor_b32 v7, v2, v1
    """)
    for p in range(4):
        A(f"v_xor_b32 v3, {4 * p}, v7\nv_lshl_add_u32 v{LK(p)}, v3, 4, v5")
        if padj(p):
            A(f"v_add_u32 v{LK(p)}, {padj(p)}, v{LK(p)}")
    A(f"""
    v_lshl_add_u32 v{LV(0)}, v6, 4, v5
    v_xor_b32 v7, 8, v6
    v_lshl_add_u32 v{LV(1)}, v7, 4, v5
    v_add_u32 v{LV(2)}, {padj(2)}, v{LV(0)}
    v_add_u32 v{LV(3)}, {padj(3)}, v{LV(1)}
    v_add_u32 v{LV(1)}, {padj(1)}, v{LV(1)}
    {f"s_mov_b32 s{S_T0}, 0" if cfg.hmap else f"s_lshl_b32 s{S_T0}, s{S_HG}, 21"}
    s_lshl_b32 s{S_T1}, s{S_W}, 15
    s_add_u32 s{S_T0}, s{S_T0}, s{S_T1}
    s_lshl_b32 s{S_T1}, s{S_NU}, 8
    s_add_u32 s{S_T0}, s{S_T0}, s{S_T1}
    v_lshl_add_u32 v5, v1, 11, s{S_T0}
    v_add_u32 v{LTO}, s{S_T0}, v{LTO}
    v_lshl_add_u32 v{LWO(0)}, v6, 4, v5
    v_lshl_add_u32 v7, v7, 4, v5
    v_add_u32 v{LWO(1)}, {8192 - 1024}, v7
    v_add_u32 v{LWO(2)}, {2 * 8192 - 2048}, v{LWO(0)}
    v_add_u32 v{LWO(3)}, {3 * 8192 - 3072}, v7
    s_mul_i32 s{S_T0}, s{S_GRP}, 393216
    s_add_u32 s{S_T0}, s{S_T0}, s{S_LWB}
    v_lshl_add_u32 v{LOB}, v0, 4, s{S_T0}
    s_lshl_b32 s{S_T0}, s2, 11
    s_lshl_b32 s{S_T1}, s{S_W}, 9
    s_add_u32 s{S_T0}, s{S_T0}, s{S_T1}
    s_add_u32 s{S_T0}, s{S_T0}, {WS_INBOX}
    v_lshl_add_u32 v{LFLAG}, v4, 2, s{S_T0}
    s_lshl_b32 s{S_J2}, s{S_J}, 1
    s_add_u32 s{S_T0}, s{S_LWW}, {KRING}
    v_lshl_add_u32 v{LDSW(0)}, v0, 4, s{S_T0}
    v_add_u32 v{LDSW(1)}, {VRING - KRING}, v{LDSW(0)}
    """)


def loader(P, cfg):
    tr = []
    A = lambda t: tr.extend(P.add(t))
    A(f"""
    v_lshrrev_b32 v1, 4, v0
    v_and_b32 v2, 15, v0
    v_lshrrev_b32 v3, 3, v0
    v_and_b32 v4, 7, v0
    s_mul_i32 s{S_T0}, s{S_BP}, 192
    s_mul_i32 s{S_T1}, s{S_W}, 48
    s_add_u32 s{S_T0}, s{S_T0}, s{S_T1}
    s_lshl_b32 s{S_T0}, s{S_T0}, 11
    v_lshl_add_u32 v5, v3, 11, s{S_T0}
    v_xor_b32 v6, v4, v1
    v_lshl_add_u32 v{LX(0)}, v6, 4, v5
    v_xor_b32 v6, 4, v6
    v_lshl_add_u32 v7, v6, 4, v5
    """)
    for p in range(1, 6):
        A(f"v_add_u32 v{LX(p)}, {p * 16384 - (p % 4) * 1024}, v{7 if p & 1 else LX(0)}")
    A(f"""
    s_lshl_b32 s{S_T0}, s{S_W}, 17
    s_lshl_b32 s{S_T1}, s{S_H}, 8
    s_add_u32 s{S_T0}, s{S_T0}, s{S_T1}
    v_lshl_add_u32 v5, v1, 13, s{S_T0}
    v_lshlrev_b32 v6, 1, v1
    v_xor_b32 v6, v6, v2
    v_lshl_add_u32 v{LW(0)}, v6, 4, v5
    v_xor_b32 v7, 8, v6
    v_lshl_add_u32 v7, v7, 4, v5
    v_add_u32 v{LW(1)}, {32768 - 1024}, v{LW(0)}
    v_add_u32 v{LW(2)}, {2 * 32768 - 2048}, v7
    v_add_u32 v{LW(3)}, {3 * 32768 - 3072}, v7
    """)
    if cfg.rot == 1:
        A(f"s_add_u32 s{S_ROT}, s{S_BP}, s{S_J}\ns_and_b32 s{S_ROT}, s{S_ROT}, 3\ns_lshl_b32 s{S_ROT}, s{S_ROT}, 2")
    elif cfg.rot == 2:
        A(f"s_add_u32 s{S_ROT}, s{S_BP}, s{S_J}\ns_and_b32 s{S_ROT}, s{S_ROT}, 1\ns_lshl_b32 s{S_ROT}, s{S_ROT}, 3")
    elif cfg.rot == 3:
        A(f"s_lshl_b32 s{S_ROT}, s{S_HG}, 2")
    elif cfg.rot == 4:
        A(f"s_lshl_b32 s{S_ROT}, s{S_BP}, 2")
    elif cfg.rot == 5:
        A(f"s_lshl_b32 s{S_ROT}, s{S_J}, 1")
    elif cfg.rot in (7, 8, 9):
        A(f"s_lshr_b32 s{S_ROT}, s{S_J}, 1\ns_add_u32 s{S_ROT}, s{S_ROT}, s{S_BP}\ns_and_b32 s{S_ROT}, s{S_ROT}, 3\ns_lshl_b32 s{S_ROT}, s{S_ROT}, {9 - cfg.rot}")
    elif cfg.rot == 6:
        A(f"s_and_b32 s{S_ROT}, s{S_J}, 3\ns_lshl_b32 s{S_ROT}, s{S_ROT}, 2")
    else:
        A(f"s_mov_b32 s{S_ROT}, 0")
    A(f"""
    v_bfe_u32 v7, v0, 1, 4
    v_and_b32 v5, 1, v0
    v_lshlrev_b32 v5, 7, v5
    v_lshl_add_u32 v{LTO}, v7, 11, v5
    v_lshl_add_u32 v{LTQ}, v7, 13, v5
    v_add_u32 v{LTQ}, s{S_T0}, v{LTQ}
    """)
    A("s_waitcnt lgkmcnt(0)")
    A(make_srd(((sWQ, 10, 8 << 20), (sX, 4, 768 * 2048))))
    q0 = []
    if cfg.stamps:
        A(f"v_mov_b32 v{LSTAMP}, 0")
        A(loader_stamp(0))
        A(f"v_writelane_b32 v{LSTAMP}, s96, 63")
    if cfg.xtouch & 4:
        xt = x_touch(cfg, 3, LPOLL)
        A(xt)
        q0 += ["t"] * (len(xt) - 1)
    if cfg.afirst:
        A(f"s_bitcmp{1 - cfg.clsinv}_b32 s2, {cfg.cls}\ns_cbranch_scc1 L_bstart")
        for n in range(4 if cfg.cls == 6 else 0):
            A(f"""s_add_u32 s{S_T1}, s{S_ROT}, {n}
            s_lshl_b32 s{S_T1}, s{S_T1}, 19
            buffer_load_dword v{LPOLL}, v{LTQ}, {srd(sWQ)}, s{S_T1} offen""")
        A("s_branch L_started\nL_bstart:")
    if not cfg.stag:
        for n in range(2):
            for text, isload in q_stage(cfg, n):
                A(text)
                if isload:
                    q0.append(n)
    if cfg.afirst:
        A("L_started:")
    A(make_srd(((sK, 6, 32 << 20), (sV, 8, 32 << 20), (sWO, 12, 8 << 20), (sWS, 18, 256 << 20))))
    A(late_ids(cfg))
    late_setup(A, cfg)
    if cfg.krot:
        A(f"s_mul_i32 s{S_KR}, s2, {cfg.krot}\ns_lshr_b32 s{S_KR}, s{S_KR}, {cfg.ksh}\ns_lshl_b32 s{S_KR}, s{S_KR}, 13")
    if cfg.pre1:
        A(f"s_bitcmp{1 - cfg.clsinv}_b32 s2, {cfg.cls}\ns_cbranch_scc1 L_late")
        t0 = loader_role(P, cfg, list(tr), ["t"] * (4 if cfg.cls == 6 else 0) if cfg.afirst else q0, None, cfg.pre, "a")
        return [t0, loader_role(P, cfg, list(tr) + P.add("L_late:"), q0, None, cfg.pre1, "b")]
    if not cfg.stag:
        return [loader_role(P, cfg, tr, q0, None, cfg.pre)]
    A(f"s_cmp_ge_u32 s{S_BP}, 2\ns_cbranch_scc1 L_late")
    t0 = loader_role(P, cfg, list(tr), q0, 0)
    return [t0, loader_role(P, cfg, list(tr) + P.add("L_late:"), q0, 1)]


def loader_stamp(n):
    return (f"s_memrealtime s[{S_ST}:{S_ST+1}]\ns_memtime s[{S_ST+2}:{S_ST+3}]\ns_cmp_eq_u32 s{S_W}, 1\ns_waitcnt lgkmcnt(0)\n"
            f"s_cselect_b32 s{S_ST+4}, s{S_ST+2}, s{S_ST}\nv_writelane_b32 v{LSTAMP}, s{S_ST+4}, {n}")


def q_stage(cfg, n):
    dma = lambda vreg, sr, so, imm, pol: (f"buffer_load_dwordx4 v{vreg}, {srd(sr)}, s{so} offen offset:{imm} {pol} lds", True)
    first = cfg.promote & 1 and n < 4
    mask = {8: 7, 9: 3}.get(cfg.rot, 15)
    hgr = ""
    if cfg.hgrot == 1:
        hgr = f"s_add_u32 s{S_T1}, s{S_HG}, {n}\ns_and_b32 s{S_T1}, s{S_T1}, 3\ns_or_b32 s{S_T0}, s{S_T0}, s{S_T1}"
    if cfg.hgrot == 3:
        hgr = f"s_lshr_b32 s{S_T1}, s{S_T0}, 2\ns_xor_b32 s{S_T0}, s{S_T0}, s{S_T1}"
    if cfg.hgrot == 4:
        hgr = f"s_lshr_b32 s{S_T1}, s{S_T0}, 2\ns_and_b32 s{S_T1}, s{S_T1}, 2\ns_xor_b32 s{S_T0}, s{S_T0}, s{S_T1}"
    if cfg.hgrot == 5:
        hgr = f"s_lshr_b32 s{S_T1}, s{S_T0}, 1\ns_and_b32 s{S_T1}, s{S_T1}, 2\ns_xor_b32 s{S_T0}, s{S_T0}, s{S_T1}"
    if cfg.hgrot == 6:
        hgr = f"s_lshr_b32 s{S_T1}, s{S_T0}, 2\ns_lshl_b32 s{S_T0}, s{S_T0}, 2\ns_and_b32 s{S_T0}, s{S_T0}, 12\ns_or_b32 s{S_T0}, s{S_T0}, s{S_T1}"
    if cfg.hgrot == 7:
        hgr = f"s_lshl_b32 s{S_T1}, s{S_BLK}, 1\ns_xor_b32 s{S_T0}, s{S_T0}, s{S_T1}"
    if cfg.hgrot == 2:
        hgr = f"s_xor_b32 s{S_T1}, s{S_HG}, {n & 3}\ns_or_b32 s{S_T0}, s{S_T0}, s{S_T1}"
    o = [(f"""s_add_u32 s{S_T0}, s{S_ROT}, {n}
    s_add_u32 m0, s{S_LWW}, {WRING + (n % 4) * WSLOT}
    s_and_b32 s{S_T0}, s{S_T0}, {12 if cfg.hgrot in (1, 2) else mask}
    {hgr}
    {f"s_or_b32 s{S_T0}, s{S_T0}, {n & ~mask}" if n & ~mask else ""}
    s_lshl_b32 s{S_T1}, s{S_T0}, 19""", False)]
    o += [dma(LW(p), sWQ, S_T1, p * 1024, "nt" if first else cfg.pol_wq) for p in range(4)]
    if first:
        o.append((f"buffer_load_dword v{LPOLL}, v{LTQ}, {srd(sWQ)}, s{S_T1} offen {cfg.pol_t}", True))
    o.append((f"s_add_u32 m0, s{S_LWB}, {BRING + (n % 4) * BSLOT}\ns_lshl_b32 s{S_T0}, s{S_T0}, 7", False))
    o += [dma(LX(p), sX, S_T0, p * 1024, cfg.pol_x) for p in range(4)]
    o.append((f"s_add_u32 m0, s{S_LWB}, {BRING + (n % 4) * BSLOT + 4096}", False))
    o += [dma(LX(p), sX, S_T0, (p - 4) * 1024, cfg.pol_x) for p in range(4, 6)]
    return o


def loader_role(P, cfg, tr, q0, role, pre="", sfx=""):
    A = lambda t: tr.extend(P.add(t))
    sfx += "" if role is None else str(role)
    q = list(q0)

    flip = [0]

    def throttle(win):
        if win in (45, 55):
            flip[0] ^= 1
            win = win // 10 + flip[0]
        win = win or 56
        if win and len(q) >= win:
            A(f"s_waitcnt vmcnt({win - 1})")
            del q[:len(q) - (win - 1)]

    def dma(vreg, s, soff, imm, pol, tag, win=0):
        throttle(win)
        A(f"buffer_load_dwordx4 v{vreg}, {srd(s)}, {soff} offen offset:{imm} {pol} lds")
        q.append(tag)

    def wait(tag):
        if tag in q:
            idx = max(k for k, x in enumerate(q) if x == tag)
            A(f"s_waitcnt vmcnt({len(q) - 1 - idx})")
            del q[:idx + 1]

    def issue_q(n):
        for text, isload in q_stage(cfg, n):
            if isload:
                throttle(0)
                q.append(n)
            A(text)

    kv = []
    for e in range(17):
        if e <= 15:
            kv += [(16 + e, 0, e, p) for p in range(4)]
        if e >= 1:
            kv += [(16 + e, 1, e - 1, p) for p in range(4)]
    pool = list(range(LPOOL, 256, 4))
    parked = []
    state = dict(next=0, m0=None, soff=None, lds=False)

    def issue_kv(upto, k, win):
        state["m0"] = state["soff"] = None
        while state["next"] < upto:
            stage, isv, tile, p = kv[state["next"]]
            state["next"] += 1
            vo, sr = (LV(p), sV) if isv else (LK(p), sK)
            if stage <= k + 2 and state["m0"] != (stage, isv):
                A(f"s_add_u32 m0, s{S_LWW}, {(VRING if isv else KRING) + (tile % 3) * ASLOT}")
                state["m0"] = (stage, isv)
            if state["soff"] != tile:
                if cfg.krot:
                    A(f"s_add_u32 s{S_T0}, s{S_KR}, {tile * 8192}\ns_and_b32 s{S_T0}, s{S_T0}, 0x1e000")
                else:
                    A(f"s_mov_b32 s{S_T0}, {sum(((tile >> i) & 1) << int(b) for i, b in enumerate(cfg.kbits.split('.')[3:]))}")
                state["soff"] = tile
            if stage <= k + 2:
                dma(vo, sr, f"s{S_T0}", p * 1024, cfg.pol_kv, stage, win)
            else:
                if not pool:
                    unpark(k, 2)
                r = pool.pop(0)
                throttle(win)
                A(f"buffer_load_dwordx4 {v4(r)}, v{vo}, {srd(sr)}, s{S_T0} offen offset:{p * 1024} {cfg.pol_kv}")
                q.append(("r", r))
                parked.append((stage, isv, tile, p, r))
            if cfg.lazyp:
                unpark(k, cfg.lazyp, True)

    def unpark(k, most=99, landed=False):
        while parked and parked[0][0] <= k + 2 and most and not (landed and ("r", parked[0][4]) in q):
            most -= 1
            stage, isv, tile, p, r = parked.pop(0)
            wait(("r", r))
            A(f"ds_write_b128 v{LDSW(isv)}, {v4(r)} offset:{(tile % 3) * ASLOT + p * 1024}")
            pool.append(r)
            state["lds"] = True

    def o_index(m):
        if cfg.order:
            return f"s_add_u32 s{S_T0}, s{S_J2}, {o_rel(cfg)[m]}"
        if cfg.par:
            if m < 8:
                return f"s_add_u32 s{S_T0}, s{S_J2}, {4 * (m >> 1) + (m & 1)}"
            if cfg.par == 1:
                return f"s_add_u32 s{S_T0}, s{S_J2}, {4 * ((m - 8) >> 1) + (m & 1) + 2}"
            return f"s_lshl_b32 s{S_T0}, s{S_NU}, 1\ns_add_u32 s{S_T0}, s{S_T0}, {4 * ((m - 8) >> 1) + (m & 1) + 2}"
        if m < 2 or not cfg.oord:
            return f"s_add_u32 s{S_T0}, s{S_J2}, {m}"
        return f"""s_cmp_gt_u32 s{S_T3}, {(m - 2) // 2}
        s_cselect_b32 s{S_T0}, {m - 2}, {m}
        s_add_u32 s{S_T0}, s{S_T0}, s{S_T2}"""

    def issue_ow(m, tag, win=0):
        A(f"""{o_index(m)}
        s_add_u32 m0, s{S_LWW}, {WRING + (m % 4) * WSLOT}
        s_and_b32 s{S_T0}, s{S_T0}, 15
        s_lshl_b32 s{S_T1}, s{S_T0}, 17""")
        if cfg.hmap:
            A(f"""s_lshr_b32 s{S_T0}, s{S_T0}, 1
            {head_of(cfg, S_T2, S_T0, S_T3)}
            s_lshl_b32 s{S_T2}, s{S_T2}, 18
            s_and_b32 s{S_T1}, s{S_T1}, 0x20000
            s_add_u32 s{S_T1}, s{S_T1}, s{S_T2}""")
        first = cfg.promote & 2 and o_rel(cfg)[m] < 4
        for p in range(4):
            dma(LWO(p), sWO, f"s{S_T1}", p * 1024, "nt" if first else cfg.pol_wo, tag, 0 if first else win)
        if first:
            A(f"buffer_load_dword v{LPOLL}, v{LTO}, {srd(sWO)}, s{S_T1} offen {cfg.pol_t}")
            q.append("t")

    def touch_w(b):
        A(f"""s_lshl_b32 s{S_T0}, s{S_BP}, 17
        s_add_u32 s{S_T0}, s{S_T0}, {b << 19}
        buffer_load_dword v{LPOLL}, v{LTO}, {srd(sWO)}, s{S_T0} offen""")
        q.append("t")

    def touch_b(b):
        A(f"s_mov_b32 s{S_T0}, {b * 98304}\nbuffer_load_dword v{LPOLL}, v{LTB}, {srd(sWS)}, s{S_T0} offen sc1")
        q.append("t")

    coop = []
    spre = [int(x) for x in str(cfg.spre).split(".")] if cfg.spre else []
    sdone = [0]

    def scalar_pre():
        for _ in range(spre.pop(0) if spre else 0):
            n, r = divmod(sdone[0], 32)
            if n > 3:
                break
            if r == 0:
                A(f"""s_add_u32 s{S_T0}, s{S_NU}, {2 * n + 1}
                s_and_b32 s{S_T0}, s{S_T0}, 7
                s_lshl_b32 s{S_T0}, s{S_T0}, 18
                s_add_u32 s{S_T0}, s{S_T0}, s{S_DW}
                s_add_u32 s{S_SB + 2 * (n & 1)}, s12, s{S_T0}
                s_addc_u32 s{S_SB + 2 * (n & 1) + 1}, s13, 0""")
            A(f"s_load_dword s{S_SB + 4}, s[{S_SB + 2 * (n & 1)}:{S_SB + 2 * (n & 1) + 1}], {(r >> 2) * 2048 + (r & 3) * 64}")
            sdone[0] += 1

    def coop_after(m):
        for b, mm in enumerate(coop):
            if mm == m:
                touch_b(b + 1)
                touch_w(b + 1)

    def issue_ob(m, tag):
        A(f"""{o_index(m)}
        s_add_u32 m0, s{S_LWB}, {BRING + ((m - 2) % 4) * BSLOT}
        s_and_b32 s{S_T0}, s{S_T0}, 15
        s_mul_i32 s{S_T0}, s{S_T0}, 24576""")
        for p in range(4):
            dma(LOB, sWS, f"s{S_T0}", p * 1024, cfg.pol_ob, tag)
        A(f"s_add_u32 m0, s{S_LWB}, {BRING + ((m - 2) % 4) * BSLOT + 4096}\ns_add_u32 s{S_T1}, s{S_T0}, 4096")
        for p in range(2):
            dma(LOB, sWS, f"s{S_T1}", p * 1024, cfg.pol_ob, tag)

    nst = [1]

    def stamp():
        if cfg.stamps:
            A(loader_stamp(nst[0]))
            nst[0] += 1

    def barrier():
        if state["lds"]:
            A("s_waitcnt lgkmcnt(0)")
            state["lds"] = False
        A("s_barrier")
        stamp()

    A("; loader schedule: one barrier per stage; two variants differ only in when K/V is preloaded")
    end = lambda n: 0 if n < 16 else min(128, 4 + 8 * (n - 16))
    pre = [int(x) for x in str(pre).split(".")] if pre else []
    pre = [0] * (17 - len(pre)) + pre
    wo_at = [int(x) for x in str(cfg.wo_at).split(".")]
    wtag = lambda m: 33 if m < 2 else 33 + m
    if role == 1:
        A(f"""
        s_lshr_b32 s{S_T0}, s2, 3
        s_and_b32 s{S_T0}, s{S_T0}, 15
        s_lshl_b32 s{S_T0}, s{S_T0}, 2
        s_add_u32 s{S_T0}, s{S_T0}, s{S_W}
        s_lshl_b32 s{S_T1}, s{S_T0}, 13
        s_lshl_b32 s{S_T2}, s{S_HG}, 11
        s_add_u32 s{S_T1}, s{S_T1}, s{S_T2}
        v_lshrrev_b32 v3, 4, v0
        v_and_b32 v4, 15, v0
        v_lshl_add_u32 v5, v3, 19, s{S_T1}
        v_lshl_add_u32 v5, v4, 7, v5
        s_mul_i32 s{S_T1}, s{S_T0}, {6 * 2048}
        v_lshrrev_b32 v3, 3, v0
        v_min_u32 v3, 5, v3
        v_and_b32 v4, 7, v0
        v_lshl_add_u32 v6, v3, 11, s{S_T1}
        v_lshl_add_u32 v6, v4, 7, v6
        """)
        for qt in range(4):
            if qt % 2 == 0:
                A(f"buffer_load_dword v{LPOLL}, v6, {srd(sX)}, 0 offen offset:{(qt // 2) * 1024}")
                q.append("t")
            A(f"s_mov_b32 s{S_T0}, {qt << 21}\nbuffer_load_dword v{LPOLL}, v5, {srd(sWQ)}, s{S_T0} offen")
            q.append("t")
        A(f"s_mov_b32 s{S_T0}, {384 * 2048}")
        for h in range(2):
            A(f"buffer_load_dword v{LPOLL}, v6, {srd(sX)}, s{S_T0} offen offset:{h * 1024}")
            q.append("t")
        pre[0] = cfg.s1pre
        issue_kv(pre[0], -1, cfg.s1win)
    if cfg.afirst and sfx == "a":
        pre[0] = cfg.afirst
        issue_kv(pre[0], -1, cfg.bwin or 8)
    if cfg.stag or (cfg.afirst and sfx == "a"):
        issue_q(0)
        issue_q(1)
    base = sum(pre)
    issue_kv(pre[0], -1, 0)
    nq = 2
    qskip = cfg.qskip if sfx == 'a' else cfg.qskipb
    qskip = [int(x) for x in str(qskip).split('.')] if qskip else []
    for k in range(0, 33):
        wait(k)
        barrier()
        if not cfg.lazyp:
            unpark(k)
        while nq <= min(15, k + 1 + cfg.qd) and k not in qskip:
            issue_q(nq)
            nq += 1
        w = ((cfg.winb or cfg.win) if sfx == 'b' else cfg.win) if role is None else (cfg.s1win if role else (cfg.s0win if k < cfg.s0sw else cfg.s0late))
        if cfg.winlate and k >= cfg.late and sfx != 'b':
            w = cfg.winlate
        win = 0 if k < 16 else (cfg.win16 if k == 16 else w)
        lead = min(128, end(k + 1) + ((win + 5) // 10 if win in (45, 55) else win or 8)) if k >= 14 else 0
        if k <= 15:
            ramp = sum(pre[:k + 2]) + (4 * max(0, k - 13) if role == 1 else 0)
        else:
            b0 = base + cfg.win16 + (8 if role == 1 else 0)
            last = (cfg.lastb or cfg.last) if sfx == 'b' else cfg.last
            ramp = min(128, b0 + ((128 - b0) * (k - 16)) // (last - 16))
            if cfg.shape and k < last:
                u = (k - 16) / (last - 16)
                ramp = int(b0 + (128 - b0) * u + cfg.shape * 4 * u * (1 - u) + 0.5)
        issue_kv(max(lead, ramp if base else 0), k, win or cfg.bwin)
        while qskip and k == qskip[-1] and nq <= min(15, k + cfg.qres):
            issue_q(nq)
            nq += 1
        assert nq > min(15, k + 1)
        if cfg.lazyp:
            unpark(k, 99, True)
            unpark(k - 1)
        if k == 20 and cfg.oord:
            A(f"""s_add_u32 s{S_T2}, s{S_BP}, s{S_J}
            s_and_b32 s{S_T2}, s{S_T2}, {cfg.oord - 1}
            s_mul_i32 s{S_T2}, s{S_T2}, {8 // cfg.oord}
            s_sub_u32 s{S_T3}, s{S_J}, s{S_T2}
            s_and_b32 s{S_T3}, s{S_T3}, 7
            s_lshl_b32 s{S_T2}, s{S_T2}, 1""")
        for h, tk in enumerate(str(cfg.ptouch).split(".") if cfg.ptouch else []):
            if int(tk) == k:
                throttle(win)
                A(f"""s_mul_i32 s{S_T0}, s{S_J}, 49152
                s_add_u32 s{S_T0}, s{S_T0}, {h * 24576}
                v_mul_u32_u24 v3, 0x70, v0
                v_add_u32 v3, v3, v{LOB}
                s_mov_b32 exec_hi, 0xffff
                buffer_load_dword v{LPOLL}, v3, {srd(sWS)}, s{S_T0} offen
                s_mov_b64 exec, -1""")
                q.append("t")
        if k == 26:
            A(f"buffer_load_dword v{LPOLL}, v{LFLAG}, {srd(sWS)}, 0 offen sc1")
            q.append("t")
        for m in range(4):
            if wo_at[m] == k and not (m < 2 and m >= 2 - cfg.w1late):
                issue_ow(m, wtag(m), win if state["next"] < 128 else (cfg.wwin if k == 32 else 0))
        if coop and k == cfg.coopw0:
            touch_w(0)
    assert state["next"] == 128 and not parked
    if spre:
        A(f"""s_lshl_b32 s{S_DW}, s{S_HG}, 21
        s_lshl_b32 s{S_T0}, s{S_BP}, 16
        s_add_u32 s{S_DW}, s{S_DW}, s{S_T0}
        s_lshl_b32 s{S_T0}, s{S_W}, 14
        s_add_u32 s{S_DW}, s{S_DW}, s{S_T0}
        s_lshl_b32 s{S_T0}, s{S_NU}, 8
        s_add_u32 s{S_DW}, s{S_DW}, s{S_T0}""")
    A("; output projection: wo stages, waits for the producers of the next operand blocks")
    if cfg.w1late:
        A("s_barrier")
        if cfg.w1late == 2:
            issue_ow(0, 33)
        issue_ow(1, 34)
    wait(33)
    barrier()
    if cfg.w1late:
        wait(34)
        A("s_barrier")
    def finish():
        if cfg.stamps:
            A(f"""s_lshl_b32 s{S_T0}, s2, 3
            s_add_u32 s{S_T0}, s{S_T0}, s{S_WAVE}
            s_lshl_b32 s{S_T0}, s{S_T0}, 8
            s_add_u32 s{S_T0}, s{S_T0}, {WS_STAMP}
            v_lshl_add_u32 v1, v0, 2, s{S_T0}
            buffer_store_dword v{LSTAMP}, v1, {srd(sWS)}, 0 offen""")
        A("s_endpgm")
        return tr

    def need_head(m):
        A(f"""{o_index(m)}
        s_bfe_u32 s{S_T1}, s{S_T0}, 0x30001
        {f"s_add_u32 s{S_T1}, s{S_T1}, 8" if cfg.split and o_rel(cfg)[m] & 1 else ""}
        s_mov_b32 s{S_SPIN}, 0""")
        n = f"L_need{m}{sfx}"
        loop = P.add(f"""{n}:
        s_bitcmp1_b32 s{S_MASK}, s{S_T1}
        s_cbranch_scc1 {n}_done
        buffer_load_dword v{LPOLL}, v{LFLAG}, {srd(sWS)}, 0 offen sc1
        s_add_u32 s{S_SPIN}, s{S_SPIN}, 1
        s_waitcnt vmcnt(0)
        {f"v_cmp_le_u32 vcc, v{LTQ}, v{LPOLL}" if cfg.split else f"v_cmp_eq_u32 vcc, 1, v{LPOLL}"}
        s_mov_b32 s{S_MASK}, vcc_lo
        s_cmp_lt_u32 s{S_SPIN}, {SPIN_MAX}
        s_cbranch_scc1 {n}""")
        tr.extend(loop + loop)
        A(f"{n}_done:")

    if cfg.bdirect:
        for m in (2, 3):
            if wo_at[m] == 33:
                issue_ow(m, 33 + m)
        A(f"s_mov_b32 s{S_MASK}, 0")
        seen = set()
        if cfg.split:
            A(f"v_bfe_u32 v{LTQ}, v0, 3, 1\nv_add_u32 v{LTQ}, 1, v{LTQ}")

        def need_new(m):
            key = o_rel(cfg)[m] >> (0 if cfg.split else 1)
            if key not in seen:
                seen.add(key)
                need_head(m)

        need_new(2)
        need_new(3)
        A("s_barrier")
        stamp()
        for m in (2, 3):
            if wo_at[m] == 34:
                issue_ow(m, 33 + m)
        nm = 4
        for k in range(35, 49):
            if k - 31 <= 15:
                need_new(k - 31)
            wait(k)
            barrier()
            while nm <= min(15, k + 1 + cfg.od - 33):
                issue_ow(nm, nm + 33)
                nm += 1
        return finish()
    if wo_at[2] == 33:
        issue_ow(2, 35)
    if cfg.prog:
        A(f"s_mov_b32 s{S_MASK}, 0")
        need_head(2)
    else:
        poll_loop(P, tr, "poll1" + sfx, LPOLL, LFLAG)
        del q[:]
        q.append("poll")
    stamp()
    if coop:
        touch_b(0)
    issue_ob(2, 35)
    if wo_at[2] == 34:
        issue_ow(2, 35)
    coop_after(2)
    if wo_at[3] == 33:
        issue_ow(3, 36)
    issue_ob(3, 36)
    if wo_at[3] == 34:
        issue_ow(3, 36)
    coop_after(3)
    scalar_pre()
    nm = 4
    for k in range(35, 49):
        wait(k)
        barrier()
        while nm <= min(15, k + 1 + cfg.od - 33):
            issue_ow(nm, nm + 33)
            if cfg.prog and nm % 2 == 0:
                need_head(nm)
            issue_ob(nm, nm + 33)
            coop_after(nm)
            nm += 1
        scalar_pre()
    return finish()


def order(n, snake):
    return [(T, t) for T in range(n) for t in (reversed(T3) if snake and T & 1 else T3)]


def gemm_reads(b, s, kind, with_b=True):
    r = []
    if with_b:
        for t in T3:
            if kind == "q":
                r.append(f"ds_read_b128 {v4(FB(b, t))}, v{AB(s)} offset:{t * 2048}")
            else:
                r.append(f"ds_read_b128 {v4(FB(b, t))}, v{AB(0)} offset:{s * 3072 + t * 1024}")
    for T in range(8):
        for u in range(2):
            off = s * 8192 + u * (1024 if kind == "q" else 4096)
            r.append(f"ds_read_b64_tr_b16 {v2(FA(b, T) + 2 * u)}, v{AW(T)} offset:{off}")
    return r


def gemm_mfma(cfg, b, bsrc=None, zero=False):
    return [f"{MFMA} {v4(ACC(T, t))}, {v4(FA(b, T))}, {v4(bsrc(t) if bsrc else FB(b, t))}, {'0' if zero else v4(ACC(T, t))}"
            for T, t in order(8, cfg.snake)]


def gemm_loop(P, tr, cfg, kind, label, iters):
    sal = [f"s_add_u32 s{S_SLOT}, s{S_SLOT}, 1", f"s_and_b32 s{S_SLOT}, s{S_SLOT}, 3", f"s_cselect_b32 s{S_DW}, {WSLOT}, s{S_T2}"]
    if kind == "o":
        sal.append(f"s_cmp_lg_u32 s{S_SLOT}, 2")
    sal.append(f"s_cselect_b32 s{S_DB}, {BSLOT}, s{S_T3}")
    val = [f"v_add_u32 v{AB(s)}, s{S_DB}, v{AB(s)}" for s in range(2 if kind == "q" else 1)]
    val += [f"v_add_u32 v{AW(T)}, s{S_DW}, v{AW(T)}" for T in range(8)]
    nb = len(val) - 8
    hook = [(18, f"s_cmp_eq_u32 s{S_CNT}, s{S_FLAG}"), (19, "s_cbranch_scc1 L_count"), (19, "L_counted:")] if kind == "q" else []
    if kind == "o" and cfg.wb:
        hook = [(18, f"s_cmp_eq_u32 s{S_CNT}, s{S_FLAG}"), (19, "s_cbranch_scc1 L_wb"), (19, "L_wbdone:")]
    h0 = weave(gemm_mfma(cfg, 0), spread(gemm_reads(1, 1, kind), 0, 18) + spread(sal, 0, 4) + spread(val[:nb + 6], 12, 19)
               + spread(val[nb + 6:], 20, 21) + [(22, "s_waitcnt lgkmcnt(0)"), (22, "s_barrier")])
    h1 = weave(gemm_mfma(cfg, 1), spread(gemm_reads(0, 0, kind), -1, 17)
               + hook + [(20, f"s_sub_u32 s{S_CNT}, s{S_CNT}, 1"), (20, f"s_cmp_lg_u32 s{S_CNT}, 0")])
    tr.extend(P.add(f"s_mov_b32 s{S_CNT}, {iters}\ns_waitcnt lgkmcnt(0)"))
    if kind == "q":
        tr.extend(P.add(".p2align 3"))
        body = P.add([label + ":"] + h0 + h1 + ["s_waitcnt lgkmcnt(0)", f"s_cbranch_scc1 {label}"])
        tr.extend(body + body)
        return
    h0 = weave(gemm_mfma(cfg, 0), spread(gemm_reads(1, 1, kind), 0, 18) + spread(sal, 0, 4) + spread(val[:nb + 6], 11, 18)
               + spread(val[nb + 6:], 19, 19) + [(6, f"s_sub_u32 s{S_CNT}, s{S_CNT}, 1"), (7, f"s_cmp_eq_u32 s{S_CNT}, 0"),
                                                  (20, f"s_cbranch_scc1 {label}_out"), (22, "s_waitcnt lgkmcnt(0)"), (22, "s_barrier")])
    h1 = weave(gemm_mfma(cfg, 1), spread(gemm_reads(0, 0, kind), -1, 17) + hook)
    cut = h0.index(f"s_cbranch_scc1 {label}_out") + 1
    tr.extend(P.add(".p2align 3"))
    first = P.add([label + ":"] + h0[:cut])
    rest = P.add(h0[cut:] + h1 + ["s_waitcnt lgkmcnt(0)", f"s_branch {label}"])
    tr.extend(first + rest + first + P.add([label + "_out:"] + gemm_mfma(cfg, 0)[21:]))


def k_reads(tile):
    return [f"ds_read_b128 {v4(FR(kt * 4 + s))}, v{AK(s)} offset:{(tile % 3) * ASLOT + kt * 4096}" for kt in range(2) for s in range(4)]


def v_reads(T, tile):
    return [f"ds_read_b64_tr_b16 {v2(FR(T) + 2 * u)}, v{AV(T)} offset:{(tile % 3) * ASLOT + u * 4096}" for u in range(2)]


def qk_mfma(first=False):
    c0 = lambda t: "0" if first else v4(NM(t))
    return [f"{MFMA} {v4(SS(kt, t))}, {v4(FR(kt * 4 + s))}, {v4(QF(s, t))}, {c0(t) if s == 0 else v4(SS(kt, t))}"
            for kt in range(2) for s in range(4) for t in T3]


def pv_mfma(cfg):
    return [f"{MFMA} {v4(ACC(T, t))}, {v4(FR(T))}, {v4(PP(t))}, {v4(ACC(T, t))}" for T, t in order(8, cfg.snake)]


def xlane(op, regs, tmps):
    out = []
    for sw in ("v_permlane32_swap_b32", "v_permlane16_swap_b32"):
        out += [f"v_mov_b32 v{x}, v{r}" for r, x in zip(regs, tmps)]
        out += [f"{sw} v{r}, v{x}" for r, x in zip(regs, tmps)]
        out += [f"{op} v{r}, v{r}, v{x}" for r, x in zip(regs, tmps)]
    return out


def row_max():
    o = [f"v_max3_f32 v{VD(t)}, v{SS(0, t)}, v{SS(0, t) + 1}, v{SS(0, t) + 2}" for t in T3]
    o += [f"v_max3_f32 v{VD(t)}, v{SS(0, t) + 3}, v{SS(1, t)}, v{VD(t)}" for t in T3]
    o += [f"v_max3_f32 v{VD(t)}, v{SS(1, t) + 1}, v{SS(1, t) + 2}, v{VD(t)}" for t in T3]
    o += [f"v_max_f32 v{VD(t)}, v{SS(1, t) + 3}, v{VD(t)}" for t in T3]
    return o + xlane("v_max_f32", [VD(t) for t in T3], [VT(t) for t in T3])


def shift_scores():
    return [f"v_sub_f32 v{SS(kt, t) + r}, v{SS(kt, t) + r}, v{VD(t)}" for kt in range(2) for t in T3 for r in range(4)]


def guard_max(kt):
    r = [SS(kt, t) + k for t in T3 for k in range(4)]
    if kt == 0:
        o = [f"v_max3_f32 v{VX}, v{r[0]}, v{r[1]}, v{r[2]}"]
        o += [f"v_max3_f32 v{VX}, v{r[k]}, v{r[k + 1]}, v{VX}" for k in range(3, 11, 2)]
        return o + [f"v_max_f32 v{VX}, v{r[11]}, v{VX}"]
    return [f"v_max3_f32 v{VX}, v{r[k]}, v{r[k + 1]}, v{VX}" for k in range(0, 12, 2)]


def p_cvt(kt, h=None):
    return [f"v_cvt_pk_bf16_f32 v{PP(t) + 2 * kt + hh}, v{SS(kt, t) + 2 * hh}, v{SS(kt, t) + 2 * hh + 1}"
            for hh in ((0, 1) if h is None else (h,)) for t in T3]


def exp_sum(cfg, kt, h):
    o = [f"v_exp_f32 v{SS(kt, t) + 2 * h + r}, v{SS(kt, t) + 2 * h + r}" for t in T3 for r in range(2)]
    if cfg.pk:
        o += [f"v_pk_add_f32 {v2(VL(t))}, {v2(VL(t))}, {v2(SS(kt, t) + 2 * h)}" for t in T3]
    else:
        o += [f"v_add_f32 v{VL(t) + r}, v{VL(t) + r}, v{SS(kt, t) + 2 * h + r}" for t in T3 for r in range(2)]
    return o


def exps(kt, h):
    return [f"v_exp_f32 v{SS(kt, t) + 2 * h + r}, v{SS(kt, t) + 2 * h + r}" for t in T3 for r in range(2)]


def pk_sum(kt, h):
    return [f"v_pk_add_f32 {v2(VL(t))}, {v2(VL(t))}, {v2(SS(kt, t) + 2 * h)}" for t in T3]


def rescale(by):
    return [f"v_mul_f32 v{ACC(T, t) + r}, v{ACC(T, t) + r}, v{by(t)}" for T in range(8) for t in T3 for r in range(4)]


def acc_to_frag(s, QF=QF):
    return [f"v_cvt_pk_bf16_f32 v{QF(s, t) + 2 * u + h}, v{ACC(2 * s + u, t) + 2 * h}, v{ACC(2 * s + u, t) + 2 * h + 1}"
            for u in range(2) for t in T3 for h in range(2)]


def compute(P, cfg):
    tr = []
    side = []
    A = lambda t: tr.extend(P.add(t))
    nst = [0]

    def stamp():
        if cfg.stamps:
            A(f"s_memrealtime s[{S_ST + 2 * nst[0]}:{S_ST + 2 * nst[0] + 1}]\ns_waitcnt lgkmcnt(0)")
            nst[0] += 1

    A("; ---- compute waves: first read of x, inbox clear, code prefetch")
    A(f"L_compute:\ns_getpc_b64 s[{S_PC}:{S_PC + 1}]\nL_text:\n{late_ids(cfg)}\ns_waitcnt lgkmcnt(0)")
    if cfg.xtouch and not cfg.xtouch & 4:
        A(make_srd(((sX, 4, 768 * 2048),)))
        A(x_touch(cfg, 112, 113))
    A(make_srd(((sOUT, 14, 768 * 4096), (sWS, 18, 256 << 20), (sDBG, 16, 256))))
    if cfg.prio:
        A(f"s_setprio {cfg.prio}")
    A(f"""
    s_getreg_b32 s{S_XCC}, hwreg(HW_REG_XCC_ID, 0, 3)
    s_cmp_lg_u32 s{S_W}, 0
    s_cbranch_scc1 L_noclear
    s_lshl_b32 s{S_T0}, s2, 11
    s_add_u32 s{S_T0}, s{S_T0}, {WS_INBOX}
    v_lshlrev_b32 v1, 4, v0
    v_mov_b64 v[4:5], 0
    v_mov_b64 v[6:7], 0
    buffer_store_dwordx4 v[4:7], v1, {srd(sWS)}, s{S_T0} offen sc1
    buffer_store_dwordx4 v[4:7], v1, {srd(sWS)}, s{S_T0} offen offset:1024 sc1
    {code_touch(0, 110, 111) if cfg.ctouch else ""}
    L_noclear:
    s_lshl_b32 s{S_XCC}, s{S_XCC}, 2
    v_and_b32 v{V_TMP}, 3, v0
    v_xor_b32 v{V_TMP}, s{S_GRP}, v{V_TMP}
    v_lshlrev_b32 v{V_TMP}, 2, v{V_TMP}
    v_lshrrev_b32 v100, 4, v0
    v_and_b32 v101, 15, v0
    v_bfe_u32 v102, v0, 2, 2
    v_bfe_u32 v103, v0, 1, 1
    v_and_b32 v104, 1, v0
    v_lshlrev_b32 v109, 4, v0
    """)
    A(f"""
    v_lshl_add_u32 v105, v100, 3, v102
    v_lshlrev_b32 v105, 8, v105
    v_lshl_add_u32 v105, v104, 3, v105
    v_lshl_add_u32 v105, v103, 4, v105
    v_and_b32 v106, 1, v100
    v_lshl_add_u32 v106, v106, 2, v102
    v_lshl_add_u32 v{AW(0)}, v106, 5, v105
    """)
    for T in range(1, 8):
        A(f"v_xor_b32 v{AW(T)}, {T << 5}, v{AW(0)}")
    A(f"""
    s_add_u32 s{S_T0}, s{S_LWB}, {BRING}
    v_lshl_add_u32 v105, v101, 7, s{S_T0}
    v_lshrrev_b32 v107, 1, v101
    v_xor_b32 v107, v107, v100
    v_lshl_add_u32 v{AB(0)}, v107, 4, v105
    v_xor_b32 v{AB(1)}, 64, v{AB(0)}
    """)
    A(f"""
    s_lshr_b32 s{S_T0}, s{S_W}, 1
    s_lshl_b32 s{S_T0}, s{S_T0}, 13
    s_add_u32 s{S_T0}, s{S_T0}, {KRING}
    v_lshl_add_u32 v105, v101, 8, s{S_T0}
    v_lshrrev_b32 v107, 1, v100
    v_and_b32 v108, 1, v100
    v_lshl_add_u32 v107, v108, 1, v107
    v_xor_b32 v107, v107, v101
    v_lshl_add_u32 v{AK(0)}, v107, 4, v105
    """)
    for s in range(1, 4):
        A(f"v_xor_b32 v{AK(s)}, {s << 6}, v{AK(0)}")
    A(f"""
    s_add_u32 s{S_T0}, s{S_T0}, {VRING - KRING}
    v_lshl_add_u32 v105, v100, 2, v102
    v_lshl_add_u32 v105, v105, 8, s{S_T0}
    v_lshl_add_u32 v105, v104, 3, v105
    v_lshl_add_u32 v105, v103, 4, v105
    v_lshl_add_u32 v{AV(0)}, v106, 5, v105
    """)
    for T in range(1, 8):
        A(f"v_xor_b32 v{AV(T)}, {T << 5}, v{AV(0)}")
    A(f"s_mov_b32 s{S_C}, {f32(1.4426950408889634 / 128 ** 0.5)}\ns_mov_b32 s{S_C + 1}, s{S_C}")
    A(f"s_mov_b32 s{S_T2}, {-3 * WSLOT}\ns_mov_b32 s{S_T3}, {-3 * BSLOT}\ns_mov_b32 s{S_SLOT}, 0")
    A([f"v_pk_mov_b32 {v2(r)}, 0, 0" for r in range(0, 96, 2)])
    if cfg.tag or cfg.oclear:
        A([f"v_mov_b32 v{r}, -1" for r in range(116, 120)])
    xclear = [f"s_mul_i32 s{S_T0}, s{S_W}, 9216", f"s_mul_i32 s{S_T1}, s2, 36864", f"s_add_u32 s{S_T0}, s{S_T0}, s{S_T1}", f"s_add_u32 s{S_T0}, s{S_T0}, {WS_X}"]
    for k in range(9):
        if k and k % 4 == 0:
            xclear.append(f"s_add_u32 s{S_T0}, s{S_T0}, 4096")
        xclear.append(f"buffer_store_dwordx4 v[116:119], v109, {srd(sWS)}, s{S_T0} offen offset:{(k % 4) * 1024} sc1")
    if cfg.tag and not cfg.clear_at:
        A(xclear)
    if cfg.oclear:
        A(f"""s_mul_i32 s{S_T0}, s{S_GRP}, 393216
        s_mul_i32 s{S_T1}, s{S_J}, 49152
        s_add_u32 s{S_T0}, s{S_T0}, s{S_T1}
        s_mul_i32 s{S_T1}, s{S_W}, 12288
        s_add_u32 s{S_T0}, s{S_T0}, s{S_T1}""")
        for k in range(12):
            if k and k % 4 == 0:
                A(f"s_add_u32 s{S_T0}, s{S_T0}, 4096")
            A(f"buffer_store_dwordx4 v[116:119], v109, {srd(sWS)}, s{S_T0} offen offset:{(k % 4) * 1024} sc1")
    count = f"""s_lshl_b32 s{S_T0}, 1, s{S_XCC}
    v_mov_b32 v{V_CHK}, s{S_T0}
    s_mov_b64 exec, 1
    s_waitcnt vmcnt(0)
    buffer_atomic_add v{V_CHK}, v{V_TMP}, {srd(sDBG)}, 0 offen
    s_mov_b64 exec, -1""".split("\n")
    rare = [["L_count:", f"s_cmp_eq_u32 s{S_FLAG}, {cfg.fetch_at}", "s_cbranch_scc1 L_fetch", f"s_mov_b32 s{S_FLAG}, {cfg.fetch_at}",
             "s_waitcnt vmcnt(0)", f"s_cmp_lg_u32 s{S_W}, 0", "s_cbranch_scc1 L_counted"] + count + ["s_branch L_counted",
             "L_fetch:", f"buffer_load_dword v{V_CHK}, v{V_TMP}, {srd(sDBG)}, 0 offen sc1", "s_branch L_counted"]]
    if cfg.clear_at:
        assert cfg.latefetch and cfg.tag and min(cfg.clear_at, cfg.clear_b or 99) > cfg.count_at + 1
        rare = [["L_count:", f"s_cmp_le_u32 s{S_FLAG}, {cfg.count_at + 1}", "s_cbranch_scc1 L_drain"] + xclear
                + [f"s_cmp_eq_u32 s{S_W}, 0", f"s_cselect_b32 s{S_FLAG}, {cfg.count_at}, {cfg.count_at + 1}", "s_branch L_counted",
                   "L_drain:", "s_waitcnt vmcnt(0)", f"s_cmp_lg_u32 s{S_W}, 0", "s_cbranch_scc1 L_counted"] + count + ["s_branch L_counted"]]
        A(f"s_bitcmp{1 - cfg.clsinv}_b32 s2, {cfg.cls}\ns_cselect_b32 s{S_FLAG}, {cfg.clear_b or cfg.clear_at}, {cfg.clear_at}")
    elif cfg.latefetch:
        assert not (cfg.tag or cfg.oclear or cfg.stag)
        rare = [["L_count:"] + count + ["s_branch L_counted"]]
        A(f"""s_lshr_b32 s{S_T0}, s2, {cfg.spreadsh}
        s_and_b32 s{S_T0}, s{S_T0}, {cfg.spreadc}
        s_sub_u32 s{S_T0}, {cfg.count_at}, s{S_T0}
        s_cmp_eq_u32 s{S_W}, {4 if cfg.nocount else 0}
        s_cselect_b32 s{S_FLAG}, s{S_T0}, 0""")
    else:
        A(f"s_cmp_eq_u32 s{S_W}, 0\ns_cselect_b32 s{S_FLAG}, {cfg.count_at}, {cfg.count_at + 1}")
    assert not (cfg.stag and (cfg.tag or cfg.oclear))
    if cfg.stag:
        A([f"s_cmp_ge_u32 s{S_BP}, 2", f"s_cselect_b32 s{S_T1}, s{S_FLAG}, 0", f"s_cmp_lg_u32 s{S_T1}, {cfg.count_at}", "s_cbranch_scc1 L_nocount"]
          + count + [f"s_mov_b32 s{S_FLAG}, {cfg.fetch_at}", "L_nocount:"])
    A("; ---- Q projection")
    A("s_barrier")
    A(gemm_reads(0, 0, "q"))
    gemm_loop(P, tr, cfg, "q", "L_qloop", 16)
    A(k_reads(0))
    def judge(v):
        return f"""v_lshrrev_b32 v{VT(0)}, 4, v{v}
        v_and_b32 v{VT(0)}, 0x0f0f0f0f, v{VT(0)}
        v_and_b32 v{VT(1)}, 0x0f0f0f0f, v{v}
        v_add_u32 v{VT(0)}, v{VT(0)}, v{VT(1)}
        v_sad_u8 v{VT(0)}, v{VT(0)}, 0, 0
        v_readfirstlane_b32 s{S_T1}, v{v}
        v_cmp_ne_u32 vcc, 8, v{VT(0)}
        s_lshl_b32 s{S_T0}, 8, s{S_XCC}
        s_cmp_eq_u32 s{S_T0}, s{S_T1}
        s_cselect_b32 s{S_FLAG}, {cfg.local}, 0
        s_cmp_eq_u64 vcc, 0
        s_cselect_b32 s{S_FLAG}, s{S_FLAG}, 2""".split("\n")

    dbgaddr = lambda v: [f"v_and_b32 v{v}, 3, v{V_TMP}", f"v_xor_b32 v{v}, s{S_GRP}, v{v}", f"v_lshlrev_b32 v{v}, 2, v{v}"]
    ahook = []
    if cfg.latefetch:
        ahook = [f"s_cmp_le_u32 s{S_CNT}, 2", "s_cbranch_scc1 L_ahook", "L_ahooked:"]
        rare.append(["L_ahook:", f"s_cmp_eq_u32 s{S_CNT}, 1", "s_cbranch_scc1 L_judge"] + dbgaddr(VT(0))
                    + [f"buffer_load_dword v{V_CHK}, v{VT(0)}, {srd(sDBG)}, 0 offen sc1", "s_branch L_ahooked", "L_judge:", "s_waitcnt vmcnt(0)"]
                    + judge(V_CHK) + ([f"s_mov_b32 s{S_FLAG}, 1"] if cfg.nocount else []) + [f"v_mov_b32 v{V_CHK}, 1", "s_branch L_ahooked"])
    else:
        A(["s_waitcnt vmcnt(0)"] + judge(V_CHK))
    A([f"v_pk_mul_f32 {v2(r)}, {v2(r)}, s[{S_C}:{S_C + 1}]" for r in range(0, 96, 2)])

    def q_frag(s):
        return acc_to_frag(s) + [f"v_permlane16_swap_b32 v{QF(s, t) + h}, v{QF(s, t) + 2 + h}" for t in T3 for h in range(2)]

    qk0 = qk_mfma(True)
    qk0 = [qk0[kt * 12 + s * 3 + t] for s in range(4) for kt in range(2) for t in T3]
    zero = [f"v_mov_b64 {v2(r)}, 0" for r in range(0, 96, 2)]
    addr = f"""{lane_id(V_TMP)}
    s_mul_i32 s{S_T0}, s{S_GRP}, 393216
    s_mul_i32 s{S_T1}, s{S_J}, 49152
    s_add_u32 s{S_T0}, s{S_T0}, s{S_T1}
    s_add_u32 s{S_T0}, s{S_T0}, s{S_LWB}
    v_lshl_add_u32 v{V_OST}, v{V_TMP}, 4, s{S_T0}
    s_andn2_b32 s{S_T0}, s2, 0x38
    s_lshl_b32 s{S_T0}, s{S_T0}, 11
    s_lshl_b32 s{S_T1}, s{S_J}, 2
    s_add_u32 s{S_T0}, s{S_T0}, s{S_T1}
    s_lshl_b32 s{S_T1}, s{S_W}, 9
    s_add_u32 s{S_T0}, s{S_T0}, s{S_T1}
    s_add_u32 s{S_T0}, s{S_T0}, {WS_INBOX}
    v_lshl_add_u32 v{V_FLG}, v{V_TMP}, 14, s{S_T0}
    v_mov_b32 v{V_CHK}, 1""".split("\n")
    A(q_frag(0))
    A(weave(qk0, spread(addr, 0, 20) + [(6 * s - 6 + k // 3, x) for s in range(1, 4) for k, x in enumerate(q_frag(s))] + spread(zero[:12], 18, 23)))
    A(zero[12:20])
    if cfg.earlyb:
        A("s_barrier")
    A(row_max())
    A([f"v_pk_add_f32 {v2(SS(kt, t) + r)}, {v2(SS(kt, t) + r)}, {v2(VD(t) & ~1)} op_sel:[0,{VD(t) & 1}] op_sel_hi:[1,{VD(t) & 1}] neg_lo:[0,1] neg_hi:[0,1]"
       for kt in range(2) for t in T3 for r in (0, 2)])
    A([f"v_sub_f32 v{NM(t) + r}, 0, v{VD(t)}" for t in T3 for r in range(4)])
    A([f"v_mov_b64 {v2(VL(t))}, 0" for t in T3])
    A(exps(0, 0) + exps(0, 1) + exps(1, 0))
    if cfg.earlyb:
        A(k_reads(1))
        A(zero[20:])
    else:
        A("s_barrier")
        A(k_reads(1))
        A(zero[20:])

    def iteration(i):
        pre = pk_sum(0, 0) + pk_sum(0, 1) + pk_sum(1, 0) + p_cvt(0) + p_cvt(1, 0)
        vr = [x for T in range(8) for x in v_reads(T, i)]
        vgap = list(range(8, 22)) + [23, 24]
        add11 = [f"v_add_f32 v{VL(t) + r}, v{VL(t) + r}, v{SS(1, t) + 2 + r}" for t in T3 for r in range(2)]
        early = exps(0, 0) + exps(0, 1) + exps(1, 0)
        fill = ([(5, "s_waitcnt lgkmcnt(0)"), (22, "s_waitcnt lgkmcnt(4)"), (35, "s_waitcnt lgkmcnt(0)")]
                + ([(12, f"s_sub_u32 s{S_CNT}, s{S_CNT}, 1"), (40, f"s_cmp_lg_u32 s{S_CNT}, 0")] if i == 2 else [])
                + list(zip(vgap, vr)) + list(zip(range(6), exps(1, 1))) + list(zip((6, 6, 7, 7, 8, 9), add11)) + list(zip((10, 11, 11), p_cvt(1, 1)))
                + list(zip(range(16, 22), guard_max(0))) + list(zip((25, 25, 26, 26, 27, 27), guard_max(1)))
                + [(28, f"v_cmp_lt_f32 vcc, s{S_C}, v{VX}"), (29, f"s_cbranch_vccnz L_up_{i}")] + list(zip(range(30, 48), early)))
        mf = qk_mfma() + pv_mfma(cfg)
        if cfg.heat:
            fill += spread([f"v_fma_f32 v{VT(k % 3)}, v{96 + (5 * k) % 48}, v{96 + (7 * k + 3) % 48}, v{96 + (11 * k + 1) % 48}" for k in range(cfg.heat)], 0, 46)
        rare.append([f"L_up_{i}:", "s_waitcnt lgkmcnt(0)"] + mf[30:] + row_max() + [f"v_max_f32 v{VD(t)}, 0, v{VD(t)}" for t in T3] + shift_scores()
                    + [f"v_exp_f32 v{VA(t)}, -v{VD(t)}" for t in T3]
                    + [f"v_sub_f32 v{NM(t) + r}, v{NM(t) + r}, v{VD(t)}" for t in T3 for r in range(4)]
                    + [f"v_mul_f32 v{VL(t) + r}, v{VL(t) + r}, v{VA(t)}" for t in T3 for r in range(2)]
                    + rescale(VA) + early + [f"s_cmp_lg_u32 s{S_CNT}, 0", f"s_branch L_back_{i}"])
        return pre + ["s_waitcnt lgkmcnt(6)"] + weave(mf, fill) + [f"L_back_{i}:"]

    A("; ---- attention loop, three key tiles per trip")
    A(f"s_mov_b32 s{S_C}, {f32(cfg.thr)}\ns_mov_b32 s{S_CNT}, 5\ns_branch L_aenter\n.p2align 3")
    top = P.add(["L_aloop:"] + ahook + ["s_barrier"] + k_reads(1) + ["L_aenter:"])
    body = P.add(iteration(0) + ["s_barrier"] + k_reads(2) + iteration(1) + ["s_barrier"] + k_reads(0) + iteration(2)
                 + ["s_cbranch_scc1 L_aloop"])
    tr.extend(body + top + body)
    A(exps(1, 1) + pk_sum(0, 0) + pk_sum(0, 1) + pk_sum(1, 0) + pk_sum(1, 1))
    A([f"v_add_f32 v{VL(t)}, v{VL(t)}, v{VL(t) + 1}" for t in T3])
    A(xlane("v_add_f32", [VL(t) for t in T3], [VT(t) for t in T3]))
    A([f"v_rcp_f32 v{VL(t)}, v{VL(t)}" for t in T3])
    bc = "op_sel_hi:[1,0]"
    A([f"v_pk_mul_f32 {v2(SS(kt, t) + r)}, {v2(SS(kt, t) + r)}, {v2(VL(t))} {bc}" for kt in range(2) for t in T3 for r in (0, 2)])
    A(p_cvt(0) + p_cvt(1))
    oscale = [f"v_pk_mul_f32 {v2(ACC(T, t) + r)}, {v2(ACC(T, t) + r)}, {v2(VL(t))} {bc}" for T in range(8) for t in T3 for r in (0, 2)]
    A(oscale[:24])
    A("s_barrier")
    A([x for T in range(8) for x in v_reads(T, 15)])
    A(oscale[24:])

    def last_pv(pol, hold=False):
        def o_out(s):
            return (acc_to_frag(s) + [f"s_mov_b32 s{S_T0}, {(s >> 1) * 24576 + (s & 1) * 3072}"]
                    + [f"buffer_store_dwordx4 {v4(QF(s, t))}, v{V_OST}, {srd(sWS)}, s{S_T0} offen offset:{t * 1024} {pol}" for t in T3])
        fill = []
        for s in range(3):
            o = o_out(s)
            fill += [(6 * s + 12, x) for x in o[12:]] if s < 2 else []
            fill += spread(o[:12], 6 * s + 6, 6 * s + 11)
        if hold:
            return weave(pv_mfma(cfg), fill) + o_out(3)[:12], o_out(2)[12:] + o_out(3)[12:]
        return weave(pv_mfma(cfg), fill) + o_out(2)[12:] + o_out(3)

    near, held = last_pv("", True) if cfg.split else (last_pv(""), [])
    A([f"s_cmp_lg_u32 s{S_FLAG}, 1", "s_cbranch_scc1 L_far"] + near + ["L_near:"])
    rare.append(["L_far:"] + last_pv("sc1")
                + [f"v_and_b32 v{VA(0)}, 3, v{V_TMP}", f"v_xor_b32 v{VA(0)}, s{S_GRP}, v{VA(0)}", f"v_lshlrev_b32 v{VA(0)}, 2, v{VA(0)}",
                   f"s_mov_b32 s{S_SPIN}, 0", "L_rechk:", f"s_cmp_lg_u32 s{S_FLAG}, 2", "s_cbranch_scc1 L_rechk_done",
                   f"buffer_load_dword v{VA(1)}, v{VA(0)}, {srd(sDBG)}, 0 offen sc1", "s_waitcnt vmcnt(0)"] + judge(VA(1))
                + [f"s_add_u32 s{S_SPIN}, s{S_SPIN}, 1", f"s_cmp_lt_u32 s{S_SPIN}, {cfg.chk_max}", "s_cbranch_scc1 L_rechk",
                   "L_rechk_done:", f"s_mov_b32 s{S_FLAG}, 0"]
                + ([f"v_mov_b32 v{V_CHK}, 2", f"v_mov_b32 v{V_OST}, 0x40000000"] if cfg.split else []) + ["s_branch L_near"])
    stamp()
    if cfg.w1late:
        A("s_barrier")
    fst = f"buffer_store_dword v{V_CHK}, v{V_FLG}, {srd(sWS)}, 0 offen"
    flag = [f"s_cmp_eq_u32 s{S_FLAG}, 0", "s_mov_b64 exec, 0xff", "s_waitcnt vmcnt(0)", "s_cbranch_scc1 L_farflag", fst, "L_flagged:", "s_mov_b64 exec, -1"]
    rare.append(["L_farflag:", fst + " sc1", "s_branch L_flagged"])
    A(f"""
    s_lshl_b32 s{S_T0}, s{S_HG}, 6
    v_and_b32 v{AW(0)}, 0xfff, v{AV(0)}
    v_xor_b32 v{AW(0)}, s{S_T0}, v{AW(0)}
    """)
    for T in range(1, 8):
        A(f"v_xor_b32 v{AW(T)}, {T << 5}, v{AW(0)}")
    A(f"""
    s_add_u32 s{S_T0}, s{S_LWB}, {BRING}
    v_lshl_add_u32 v{AB(0)}, v{V_TMP}, 4, s{S_T0}
    v_mov_b32 v{AK(1)}, 1
    """)
    if cfg.flag_after < 0:
        A(flag)
        stamp()
    A("s_barrier")
    A(gemm_reads(0, 0, "o", with_b=False))
    wstep = [f"v_add_u32 v{AW(T)}, {WSLOT}, v{AW(T)}" for T in range(8)]
    for hs in range(0 if cfg.bdirect else 4):
        if hs == cfg.flag_after:
            A(flag)
            stamp()
        fill = []
        if hs < 3:
            fill += spread(gemm_reads((hs + 1) & 1, (hs + 1) & 1, "o", with_b=False), 0, 15)
        if hs in (0, 2):
            fill += spread(wstep, 16, 23)
        A(weave(gemm_mfma(cfg, hs & 1, bsrc=lambda t: QF(hs, t), zero=(hs == 0)), fill))
    SL = AV(4) if cfg.coal else V_TMP
    src_lane = ""
    if cfg.coal:
        src_lane = f"""v_and_b32 v{SL}, 12, v{V_TMP}
        v_lshrrev_b32 v{AV(0)}, 4, v{V_TMP}
        v_or_b32 v{SL}, v{SL}, v{AV(0)}
        v_and_b32 v{AV(0)}, 3, v{V_TMP}
        v_lshl_or_b32 v{SL}, v{AV(0)}, 4, v{SL}"""
    xaddr = (f"""
    s_mul_i32 s{S_T0}, s{S_W}, 9216
    s_add_u32 s{S_T0}, s{S_T0}, {WS_X}
    v_lshl_add_u32 v{AB(1)}, v{V_TMP}, 4, s{S_T0}
    v_and_b32 v{AK(3)}, 3, v{V_TMP}
    s_lshl_b32 s{S_T0}, s{S_W}, 9
    s_add_u32 s{S_T0}, s{S_T0}, {WS_INBOX}
    v_lshl_add_u32 v{AK(2)}, v{AK(3)}, 7, s{S_T0}
    v_xor_b32 v{AK(0)}, s2, v{AK(3)}
    v_lshl_add_u32 v{AK(0)}, v{AK(0)}, 11, v{AK(2)}
    v_max_u32 v{AK(3)}, 1, v{AK(3)}
    s_lshl_b32 s{S_T1}, s2, 11
    s_add_u32 s{S_T0}, s{S_T0}, s{S_T1}
    v_lshl_add_u32 v{AK(2)}, v{AK(3)}, 7, s{S_T0}
    {src_lane}
    v_and_b32 v{AV(0)}, 15, v{SL}
    v_bfe_u32 v{AV(1)}, v{SL}, 4, 1
    v_bfe_u32 v{AV(2)}, v{SL}, 5, 1
    {f"v_lshlrev_b32 v{SL}, 2, v{SL}" if cfg.coal else ""}
    s_mul_i32 s{S_T0}, s{S_BP}, 192
    s_mul_i32 s{S_T1}, s{S_W}, 48
    s_add_u32 s{S_T0}, s{S_T0}, s{S_T1}
    s_lshl_b32 s{S_T0}, s{S_T0}, 12
    s_lshl_b32 s{S_T1}, s{S_BLK}, 11
    s_add_u32 s{S_T0}, s{S_T0}, s{S_T1}
    s_lshl_b32 s{S_T1}, s{S_NU}, 8
    s_add_u32 s{S_T0}, s{S_T0}, s{S_T1}
    s_lshl_b32 s{S_T1}, s{S_HG}, 6
    s_add_u32 s{S_T0}, s{S_T0}, s{S_T1}
    v_lshl_add_u32 v{AV(0)}, v{AV(0)}, 12, s{S_T0}
    v_lshl_add_u32 v{AV(0)}, v{AV(1)}, 5, v{AV(0)}
    v_lshl_add_u32 v{AV(0)}, v{AV(2)}, 4, v{AV(0)}
    """)
    if cfg.wideflag:
        xaddr += f"""v_bfe_u32 v{AK(3)}, v{V_TMP}, 3, 2
        v_xor_b32 v{AK(0)}, s2, v{AK(3)}
        v_lshlrev_b32 v{AK(0)}, 11, v{AK(0)}
        v_lshl_add_u32 v{AK(0)}, v{AK(3)}, 7, v{AK(0)}
        v_and_b32 v{AK(3)}, 7, v{V_TMP}
        v_lshl_add_u32 v{AK(0)}, v{AK(3)}, 4, v{AK(0)}
        s_lshl_b32 s{S_T0}, s{S_W}, 9
        s_add_u32 s{S_T0}, s{S_T0}, {WS_INBOX}
        v_add_u32 v{AK(0)}, s{S_T0}, v{AK(0)}
        """ + "".join(f"v_mov_b32 v{AV(4) + k}, 1\n" for k in range(4))
    if not cfg.bdirect:
        A(xaddr + f"s_mov_b32 s{S_SLOT}, 2")
    if cfg.wb:
        A(f"""s_and_b32 s{S_T0}, s2, {cfg.wbmask}
        s_or_b32 s{S_T0}, s{S_T0}, s{S_W}
        s_cselect_b32 s{S_FLAG}, 0, {cfg.wb}""")
        rare.append(["L_wb:", "buffer_wbl2 sc1", "s_branch L_wbdone"])
    XF = QF
    after = []
    mf = gemm_mfma(cfg, 1)
    if cfg.bdirect:
        assert cfg.par in (0, 1) and not cfg.oord and cfg.flag_after in (-1, 1)
        ring = [FB(0, 0), FB(1, 0)] + [QF(s, 0) for s in range(4)]
        BR = lambda h: (lambda t: ring[(h - 4) % 6] + 4 * t)
        rel = o_rel(cfg)[2:]
        tbl = sum(r << (4 * n) for n, r in enumerate(rel))
        nxt = [f"s_add_u32 s{S_BO}, s{S_TBL}, s{S_J2}", f"s_and_b32 s{S_BO}, s{S_BO}, 15", f"s_mul_i32 s{S_BO}, s{S_BO}, 24576",
               f"s_lshr_b64 s[{S_TBL}:{S_TBL + 1}], s[{S_TBL}:{S_TBL + 1}], 4"]
        bload = lambda h: [f"buffer_load_dwordx4 {v4(BR(h)(t))}, v{AV(3) if h & 1 else AB(0)}, {srd(sWS)}, s{S_BO} offen offset:{t * 1024} {cfg.pol_ob}" for t in T3]
        bgaps = [int(x) for x in cfg.bgaps.split(".")]
        sal = [f"s_add_u32 s{S_SLOT}, s{S_SLOT}, 1", f"s_and_b32 s{S_SLOT}, s{S_SLOT}, 3", f"s_cselect_b32 s{S_DW}, {WSLOT}, s{S_T2}"]
        val = [f"v_add_u32 v{AW(T)}, s{S_DW}, v{AW(T)}" for T in range(8)]

        def half(h, extra=()):
            b = h & 1
            fill = []
            if 2 <= h <= 26:
                fill += (list(zip(range(4, 8), nxt)) if b else []) + list(zip(bgaps, bload(h + 5)))
            if b:
                fill += spread(gemm_reads(0, 0, "o", with_b=False), -1, 14) + [(22, "s_waitcnt lgkmcnt(0)")]
            else:
                fill += spread(gemm_reads(1, 1, "o", with_b=False), 0, 15) + list(zip(range(3), sal)) + list(zip((8, 9, 10, 11, 12, 13, 14, 16), val))
                fill += [(22, "s_waitcnt lgkmcnt(0)")] + ([(22, "s_barrier")] if 2 <= h <= 28 or (h == 0 and cfg.w1late) else [])
            if 3 <= h <= 30:
                fill += [(23, f"s_waitcnt vmcnt({3 * min(4, 30 - h)})")]
            return weave(gemm_mfma(cfg, b, bsrc=BR(h), zero=(h == 0)), fill + list(extra))

        A(f"""s_mul_i32 s{S_T0}, s{S_GRP}, 393216
        s_add_u32 s{S_T0}, s{S_T0}, s{S_LWB}
        v_lshl_add_u32 v{AB(0)}, v{V_TMP}, 4, s{S_T0}
        v_add_u32 v{AV(3)}, 3072, v{AB(0)}
        s_mov_b32 s{S_TBL}, {tbl & 0xffffffff}
        s_mov_b32 s{S_TBL + 1}, {tbl >> 32}
        s_lshl_b32 s{S_J2}, s{S_J}, 1
        s_mov_b32 s{S_SLOT}, 0""")
        xa = [x.strip() for x in xaddr.split("\n") if x.strip()]
        if cfg.split:
            if cfg.flag_after < 0:
                A(half(0, list(zip((3, 4, 8, 12, 15, 16, 19, 22), held))))
                A(half(1, [(0, f"v_mov_b32 v{V_CHK}, 2")] + spread(xa, 1, 21)))
            else:
                h0 = half(0, list(zip((16, 17, 20, 23), held[:4])))
                cut = [k for k, x in enumerate(h0) if x.startswith("v_mfma")][cfg.fgap]
                A(h0[:cut] + flag + h0[cut:])
                stamp()
                A(half(1, list(zip((1, 2, 5, 8), held[4:])) + [(9, f"v_mov_b32 v{V_CHK}, 2")] + spread(xa, 10, 21)))
            A([f"s_cmp_eq_u32 s{S_FLAG}, 0", "s_cbranch_scc1 L_flagged2", "s_mov_b64 exec, 0xff", "s_waitcnt vmcnt(0)", fst, "s_mov_b64 exec, -1", "L_flagged2:"])
        else:
            A(half(0))
            if cfg.flag_after == 1:
                A(flag)
                stamp()
            A(half(1, spread(xa, 0, 21)))
        A(["s_barrier"] + nxt + bload(4) + bload(5) + nxt + bload(6))
        A(half(2))
        A(f"s_mov_b32 s{S_CNT}, 4\n.p2align 3")
        body = P.add(["L_oloop:"] + half(3) + half(4) + half(5) + half(6) + half(7)
                     + half(8, [(5, f"s_sub_u32 s{S_CNT}, s{S_CNT}, 1"), (6, f"s_cmp_lg_u32 s{S_CNT}, 0")]) + ["s_cbranch_scc1 L_oloop"])
        tr.extend(body + body)
        XF = lambda i, t: QF(0, t) if i == 0 else 144 + ((i - 1) * 3 + t) * 4
        mf = gemm_mfma(cfg, 1, bsrc=BR(31))
        if not cfg.defer:
            for h in range(27, 31):
                A(half(h))
        elif cfg.defer == 2:
            rd = lambda h, T, reg: [f"ds_read_b64_tr_b16 {v2(reg + 2 * u)}, v{AW(T)} offset:{(h - 28) * 8192 + u * 4096}" for u in range(2)]
            seq = [(27, 1), (27, 2), (27, 3), (28, 1), (28, 2), (29, 1), (30, 1), (31, 1), (29, 2), (30, 2), (31, 2),
                   (28, 3), (29, 3), (30, 3), (31, 3), (27, 0), (28, 0), (29, 0), (30, 0), (31, 0)]
            XF = lambda i, t: {0: QF(0, t), 1: QF(2, t), 2: FA(1, 2 + t), 3: FA(1, 5 + t)}[i]
            main, fill, k = [], [(17, "s_barrier")], 0
            prev = [-1] * 4
            for n, (h, g) in enumerate(seq):
                if h == 27:
                    a = FA(1, 2 * g)
                else:
                    a = FA(0, 2 * (k % 4))
                    at = max(prev[k % 4] + 1, n - 3, 3 if h >= 30 else 0)
                    fill += list(zip(range(6 * at, 6 * at + 4), [x for u in range(2) for x in rd(h, 2 * g + u, a + 4 * u)]))
                    prev[k % 4] = n
                    k += 1
                main += [f"{MFMA} {v4(ACC(2 * g + T, t))}, {v4(a + 4 * T)}, {v4(BR(h)(t))}, {v4(ACC(2 * g + T, t))}" for T, t in order(2, cfg.snake)]
                if g == 1 and h > 27:
                    fill.append((6 * n - 1, f"s_waitcnt vmcnt({3 * (31 - h)})"))
            for i in range(1, 4):
                n = seq.index((31, i)) + 1
                so = [f"s_xor_b32 s{S_T0}, s2, {i}", f"s_mul_i32 s{S_T0}, s{S_T0}, 36864", f"s_add_u32 s{S_T0}, s{S_T0}, {(i - 1) * 3072}"]
                st = [f"buffer_store_dwordx4 {v4(XF(i, t))}, v{AB(1)}, {srd(sWS)}, s{S_T0} offen offset:{t * 1024} sc1" for t in T3]
                cv = acc_to_frag(i, XF)
                cv = [cv[6 * u + 2 * t + hh] for t in (2, 1, 0) for u in range(2) for hh in range(2)]
                fill = list(zip(range(6 * n, 6 * n + 3), so)) + list(zip((6 * n + 4, 6 * n + 6, 6 * n + 8), reversed(st))) + fill
                fill += spread(cv, 6 * n + 2, 6 * n + 7)
            xflag = lambda i, n: [f"s_waitcnt vmcnt({n})", f"s_mov_b64 exec, {1 << i}", f"buffer_store_dword v{AK(1)}, v{AK(0)}, {srd(sWS)}, 0 offen sc1", "s_mov_b64 exec, -1"]
            if cfg.xprog:
                assert cfg.xprog > 98
                fill += [(cfg.xprog, x) for x in xflag(1, 6)]
            A(weave(main, fill))
            stamp()
        else:
            rd = lambda h, T, reg: [f"ds_read_b64_tr_b16 {v2(reg + 2 * u)}, v{AW(T)} offset:{(h - 28) * 8192 + u * 4096}" for u in range(2)]
            own = lambda h, T: {27: FA(1, T), 28: FA(0, T), 29: QF(2, 0) + 4 * T, 30: FA(1, T), 31: FA(0, T)}[h]
            ownrd = lambda h: [x for T in range(2) for x in rd(h, T, own(h, T))]
            for h in range(27, 31):
                b = h & 1
                reads = [x for T in range(2, 8) for x in rd(h + 1, T, FA(1 - b, T))] + ownrd(28 + (h - 27) // 2)[2 * (1 - b):2 * (1 - b) + 2]
                fill = spread(reads, -1 if b else 0, 12 if b else 13)
                fill += [(16, "s_waitcnt lgkmcnt(2)")] + ([(16, "s_barrier")] if h == 28 else []) + [(17, f"s_waitcnt vmcnt({3 * (30 - h)})")]
                A(weave(gemm_mfma(cfg, b, bsrc=BR(h))[6:], fill))
            XF = lambda i, t: {0: QF(0, t), 1: FA(0, 2 + t), 2: FA(0, 5 + t), 3: FA(1, 2 + t)}[i]
            late = [f"{MFMA} {v4(ACC(T, t))}, {v4(own(h, T))}, {v4(BR(h)(t))}, {v4(ACC(T, t))}" for h in range(27, 32) for T, t in order(2, cfg.snake)]
            mf = late[:6] + mf[6:]
            after = weave(late[6:], list(zip(range(0, 4), ownrd(30))) + list(zip(range(6, 10), ownrd(31))))
    else:
        A("s_barrier")
        A(gemm_reads(0, 0, "o"))
        gemm_loop(P, tr, cfg, "o", "L_oloop", 14)
    fill = []
    for i in range(1, 4):
        so = [f"s_xor_b32 s{S_T0}, s2, {i}", f"s_mul_i32 s{S_T0}, s{S_T0}, 36864", f"s_add_u32 s{S_T0}, s{S_T0}, {(i - 1) * 3072}"]
        st = [f"buffer_store_dwordx4 {v4(XF(i, t))}, v{AB(1)}, {srd(sWS)}, s{S_T0} offen offset:{t * 1024} sc1" for t in T3]
        fill += [(6 * i + 6, x) for x in st] + list(zip(range(6 * i + 1, 6 * i + 4), so)) + spread(acc_to_frag(i, XF), 6 * i, 6 * i + 5)
    if cfg.defer != 2:
        A("; ---- partner tiles leave first, the own tiles finish meanwhile")
        last = [x for g, x in fill if g == 24]
        A(weave(mf[6:] + mf[:6], [(g, x) for g, x in fill if g < 24]) + last)
        stamp()
        A(after)
    xload = lambda k, so: f"buffer_load_dwordx4 {v4(24 + 4 * k)}, v{AB(1)}, {srd(sWS)}, s{so} offen offset:{(k % 3) * 1024} sc1"

    def xadd(i):
        for k in range(3 * i, 3 * i + 3):
            for d in range(4):
                src, dst = 24 + 4 * k + d, ACC(d >> 1, k % 3) + 2 * (d & 1)
                A(f"""v_lshlrev_b32 v64, 16, v{src}
                v_and_b32 v65, s{S_C}, v{src}
                v_pk_add_f32 {v2(dst)}, {v2(dst)}, v[64:65]""")

    so = (S_T0, S_T1, S_T2)
    xbase = f"s_mul_i32 s{S_T0}, s2, 36864\ns_add_u32 s{S_T1}, s{S_T0}, 3072\ns_add_u32 s{S_T2}, s{S_T0}, 6144\ns_mov_b32 s{S_C}, 0xffff0000"
    if cfg.xprog:
        A(xflag(2, 4))
        A(xbase + f"\ns_mov_b32 s{S_MASK}, 0\ns_mov_b32 s{S_SPIN}, 0")
        A(xflag(3, 2))
        stamp()
        for i in range(3):
            loop = P.add(f"""L_x{i}:
            s_bitcmp1_b32 s{S_MASK}, {i + 1}
            s_cbranch_scc1 L_x{i}_done
            buffer_load_dword v{V_CHK}, v{AK(2)}, {srd(sWS)}, 0 offen sc1
            s_add_u32 s{S_SPIN}, s{S_SPIN}, 1
            s_waitcnt vmcnt(0)
            v_cmp_eq_u32 vcc, 1, v{V_CHK}
            s_mov_b32 s{S_MASK}, vcc_lo
            s_cmp_lt_u32 s{S_SPIN}, {SPIN_MAX}
            s_cbranch_scc1 L_x{i}""")
            tr.extend(loop[:3])
            side.append(loop + loop)
            A(f"L_x{i}_done:")
            if i == 2:
                stamp()
            A([xload(k, so[i]) for k in range(3 * i, 3 * i + 3)])
        for i in range(3):
            xadd(i)
    elif not cfg.tag:
        if cfg.wideflag:
            A(["s_mov_b32 exec_lo, 0xffffff00", "s_mov_b32 exec_hi, 0", "s_waitcnt vmcnt(0)",
               f"buffer_store_dwordx4 {v4(AV(4))}, v{AK(0)}, {srd(sWS)}, 0 offen sc1", "s_mov_b64 exec, -1"])
        else:
            A(["s_waitcnt vmcnt(0)", "s_mov_b64 exec, 14", f"buffer_store_dword v{AK(1)}, v{AK(0)}, {srd(sWS)}, 0 offen sc1", "s_mov_b64 exec, -1"])
        stamp()
        if cfg.apoll:
            A("s_mov_b64 exec, 14")
        poll_loop(P, tr, "poll2", V_CHK, AK(2), cfg.apoll)
        if cfg.apoll:
            A("s_mov_b64 exec, -1")
        stamp()
        A(xbase)
        A([xload(k, so[k // 3]) for k in range(9)])
        for i in range(3):
            xadd(i)
    else:
        stamp()
        A(xbase)
        A(f"s_mov_b32 s{S_SPIN}, 0")
        if cfg.tag == 2:
            probe = P.add(["L_probe:"] + [xload(3 * i + 2, so[i]) for i in range(3)] + f"""s_add_u32 s{S_SPIN}, s{S_SPIN}, 1
            s_cmp_ge_u32 s{S_SPIN}, {SPIN_MAX}
            s_cbranch_scc1 L_probed
            s_waitcnt vmcnt(0)
            v_max3_u32 v64, v35, v47, v59
            v_cmp_eq_u32 vcc, -1, v64
            s_cbranch_vccnz L_probe""".split("\n"))
            tr.extend(probe + probe)
            A("L_probed:")
        first = [xload(k, so[k // 3]) for k in range(9) if cfg.tag == 1 or k % 3 != 2]
        A(first)
        for i in range(3):
            b = 24 + 12 * i
            chk2 = ([f"v_max3_u32 v64, v{b}, v{b + 1}, v{b + 2}"] + [f"v_max3_u32 v64, v{b + k}, v{b + k + 1}, v64" for k in range(3, 11, 2)]
                    + [f"v_max_u32 v64, v{b + 11}, v64", "v_cmp_eq_u32 vcc, -1, v64"])
            A([f"L_x{i}:"] + chk2 + [f"s_cbranch_vccnz L_xr{i}", f"L_xok{i}:"])
            rare.append([f"L_xr{i}:"] + [xload(k, so[i]) for k in range(3 * i, 3 * i + 3)]
                        + [f"s_add_u32 s{S_SPIN}, s{S_SPIN}, 1", f"s_cmp_lt_u32 s{S_SPIN}, {SPIN_MAX}", "s_waitcnt vmcnt(0)",
                           f"s_cbranch_scc1 L_x{i}", f"s_branch L_xok{i}"])
            if i == 2:
                stamp()
            xadd(i)
    A(acc_to_frag(0))
    A([f"v_permlane16_swap_b32 v{QF(0, t) + h}, v{QF(0, t) + 2 + h}" for t in T3 for h in range(2)])
    if cfg.coal:
        A([f"ds_bpermute_b32 v{QF(0, t) + r}, v{SL}, v{QF(0, t) + r}" for t in T3 for r in range(4)])
    if cfg.linout:
        A(f"s_lshl_b32 s{S_T0}, s2, 2\ns_add_u32 s{S_T0}, s{S_T0}, s{S_W}\ns_mul_i32 s{S_T0}, s{S_T0}, 3072\nv_lshl_add_u32 v{AV(0)}, v{V_TMP}, 4, s{S_T0}")
    for t in T3:
        A(f"s_mov_b32 s{S_T0}, {t * (1024 if cfg.linout else 65536)}\nbuffer_store_dwordx4 {v4(QF(0, t))}, v{AV(0)}, {srd(sOUT)}, s{S_T0} offen {cfg.pol_out}")
    if cfg.stamps:
        A("s_waitcnt vmcnt(0)")
        stamp()
        A(f"v_mov_b32 v1, 0")
        for k in range(nst[0]):
            A(f"v_writelane_b32 v1, s{S_ST + 2 * k}, {k}")
        A(f"""s_lshl_b32 s{S_T0}, s2, 3
        s_add_u32 s{S_T0}, s{S_T0}, s{S_WAVE}
        s_lshl_b32 s{S_T0}, s{S_T0}, 8
        s_add_u32 s{S_T0}, s{S_T0}, {WS_STAMP}
        v_lshl_add_u32 v2, v{V_TMP}, 2, s{S_T0}
        buffer_store_dword v1, v2, {srd(sWS)}, 0 offen""")
    A("L_exit:\ns_endpgm")
    blocks = {}
    for blk in rare:
        blocks[blk[0][:-1]] = P.add(blk)
    tr2 = []
    skip = None
    for ins in tr:
        if skip:
            if ins.text == skip + ":":
                skip = None
            else:
                continue
        tr2.append(ins)
        if ins.op.startswith("s_cbranch") and ins.text.split()[1] in blocks:
            blk = blocks[ins.text.split()[1]]
            tr2 += blk
            skip = blk[-1].text.split()[1]
    assert skip is None
    return [tr, tr2], side


def generate(cfg):
    P = Prog()
    pre = P.add(("s_memrealtime s[96:97]\n" if cfg.stamps else "") + "s_cmp_ge_u32 s2, 256\ns_cbranch_scc1 L_exit")
    if cfg.remap:
        pre += P.add("""s_bfe_u32 s4, s2, 0x20003
        s_lshr_b32 s5, s2, 5
        s_and_b32 s2, s2, 7
        s_lshl_b32 s4, s4, 6
        s_lshl_b32 s5, s5, 3
        s_or_b32 s2, s2, s4
        s_or_b32 s2, s2, s5""")
    pre += prologue(P, cfg)
    tl = loader(P, cfg)
    tc, side = compute(P, cfg)
    body = P.finish([pre + t for t in tc + tl] + side)
    if cfg.align:
        body = align8(body)
    body = body.replace(".p2align 3", f".p2align {cfg.lalign}" + "\n    s_nop 0" * cfg.lpad)
    return (HEADER + DOC + "; @launch grid=(256,1,1) block=(512,1,1) lds=163840\n"
            + '.amdgcn_target "amdgcn-amd-amdhsa--gfx950"\n.text\n'
            + f".globl {NAME}_kernel\n.p2align 8\n.type {NAME}_kernel,@function\n{NAME}_kernel:\n" + body
            + f"""L_text_end:
.section .rodata,"a"
.p2align 6
.amdhsa_kernel {NAME}_kernel
  .amdhsa_next_free_vgpr 256
  .amdhsa_next_free_sgpr 102
  .amdhsa_accum_offset 256
  .amdhsa_group_segment_fixed_size 0
  .amdhsa_kernarg_size 104
  .amdhsa_user_sgpr_count 2
  .amdhsa_user_sgpr_kernarg_segment_ptr 1
  .amdhsa_system_sgpr_workgroup_id_x 1
  .amdhsa_float_denorm_mode_32 3
.end_amdhsa_kernel
""")


def parse(args):
    kw = {}
    for a in args:
        k, v = a.split("=")
        kw[k] = float(v) if k == "thr" else (int(v) if v.lstrip("-").isdigit() and not k.startswith(("pre", "ptouch", "spre", "bgaps", "order", "kbits", "qskip")) else v.replace("+", " "))
    return Cfg(**kw)


if __name__ == "__main__":
    open(sys.argv[1], "w").write(generate(parse(sys.argv[2:])))
```

```python
import struct, sys
from asmlib import Prog, weave, spread, balance, align8

NAME = "concat_heads__mha_block_cached__gqa_block_cached__near_ridge"
HEADER = open("cdna_kernels/" + NAME + ".s.ref").read().split("; Override launch")[0]

DOC = """; One launch, 256 workgroups (one per CU) of 4 compute waves + 4 loader waves, all MFMA work in 16x16x32 bf16.
;   1. Q^T = Wq^T x^T      16 stages of K=64 through an LDS ring (LDS-DMA, XOR-swizzled, transposing LDS reads)
;   3. out^T = Wo^T O^T    the eight members of a head group exchange O through d_ws; each computes 128 columns over
;   4. reduction           the four head groups exchange partial tiles through d_ws; each finishes 32 columns.
; only after those reports are seen. Stores are write-through unless the reports show the whole group on one die.
"""

WS_O, WS_X, WS_INBOX, WS_STAMP, WS_DUMP = 0, 16 << 20, 48 << 20, 200 << 20, 64 << 20
WRING, BRING, KRING, VRING = 0, 65536, 65536, 114688
WSLOT, BSLOT, ASLOT = 16384, 24576, 16384
SPIN_MAX = 400000
T3 = range(3)

S_WAVE, sX, sK, sV, sWQ, sWO, sOUT, sWS, sDBG = 3, 20, 24, 28, 32, 36, 40, 44, 48
S_BLK, S_HG, S_J, S_BP, S_NU, S_W, S_H, S_DB = 52, 53, 54, 55, 56, 57, 58, 59
S_T0, S_T1, S_T2, S_T3, S_CNT, S_DW, S_C, S_SLOT = 60, 61, 62, 63, 64, 65, 66, 68
S_LWB, S_LWW, S_ROT, S_J2, S_SPIN, S_FLAG, S_XCC, S_GRP = 69, 70, 71, 72, 73, 74, 75, 76
S_MASK, S_PC = 77, 78
S_SB = 94
S_TBL, S_BO = 92, 94
S_KR = 67
S_ST = 80
srd = lambda r: f"s[{r}:{r+3}]"
v4 = lambda r: f"v[{r}:{r+3}]"
v2 = lambda r: f"v[{r}:{r+1}]"
f32 = lambda x: "0x%08x" % struct.unpack("<I", struct.pack("<f", x))[0]
MFMA = "v_mfma_f32_16x16x32_bf16"

ACC = lambda T, t: (T * 3 + t) * 4
QF = lambda s, t: 96 + (s * 3 + t) * 4
FA = lambda b, T: 144 + 44 * b + 4 * T
FB = lambda b, t: 144 + 44 * b + 32 + 4 * t
AW = lambda T: 232 + T
AB = lambda s: 240 + s
V_CHK, V_TMP = 242, 243
FR = lambda f: 144 + 4 * f
SS = lambda kt, t: 176 + (kt * 3 + t) * 4
PP = lambda t: 200 + 4 * t
NM = lambda t: 212 + 4 * t
VL = lambda t: 224 + 2 * t
VX = 230
V_OST, V_FLG = 241, 231
VD = lambda t: 232 + t
VT = lambda k: 235 + k
VA = lambda t: 238 + t
AK = lambda s: 244 + s
AV = lambda T: 248 + T


class Cfg:
    def __init__(self, **kw):
        self.pol_x = ""
        self.pol_wq = ""
        self.pol_kv = "nt"
        self.pol_wo = ""
        self.pol_ob = "sc1"
        self.rot = 7
        self.stamps = 0
        self.flag_after = 1
        self.pre = "44.0.0.0.0.0.0.0.0.0.0.0.4.4"
        self.last = 29
        self.win = 5
        self.win16 = 8
        self.wo_at = "31.31.33.33"
        self.qd = 2
        self.thr = 8.0
        self.local = 1
        self.pk = 0
        self.snake = 1
        self.align = 1
        self.prio = 0
        self.remap = 0
        self.nurot = 1
        self.otouch = 0
        self.stag = 0
        self.s1pre = 36
        self.s1win = 8
        self.s0win = 8
        self.s0late = 8
        self.s0sw = 28
        self.prog = 1
        self.pre1 = '16.14.12.10'
        self.tag = 0
        self.oclear = 0
        self.forcepend = 0
        self.heat = 0
        self.shape = 0
        self.coal = 1
        self.qres = 2
        self.qskipb = ''
        self.qskip = ''
        self.earlyb = 0
        self.lalign = 6
        self.lpad = 0
        self.xprog = 0
        self.apoll = 0
        self.split = 0
        self.fgap = 12
        self.wideflag = 0
        self.psleep = 0
        self.kbits = '13.14.11.12.10.15.16'
        self.hmap = 3
        self.pol_t = 'sc1'
        self.order = '48c59d26ae37bf'
        self.clear_at = 0
        self.clear_b = 0
        self.krot = 0
        self.ksh = 0
        self.sigma = 5
        self.xtouch = 1
        self.hgrot = 3
        self.lazyp = 2
        self.w1late = 0
        self.linout = 0
        self.spreadc = 0
        self.latefetch = 1
        self.spreadsh = 4
        self.nocount = 0
        self.cls = 3
        self.clsinv = 1
        self.winlate = 0
        self.late = 27
        self.wwin = 0
        self.defer = 2
        self.bdirect = 1
        self.bgaps = '17.19.21'
        self.bwin = 0
        self.afirst = 0
        self.winb = 0
        self.lastb = 0
        self.par = 1
        self.spre = ''
        self.coop = ''
        self.coopw0 = 31
        self.promote = 0
        self.pol_out = ''
        self.ptouch = ''
        self.wb = 0
        self.wbmask = 0xf8
        self.oord = 0
        self.od = 2
        self.ctouch = 1
        self.count_at = 13
        self.fetch_at = 3
        self.chk_max = 50000
        self.__dict__.update(kw)


def o_rel(cfg):
    if cfg.order:
        r = [0, 1] + [int(c, 16) for c in cfg.order]
        assert sorted(r) == list(range(16))
        return r
    return [m if not cfg.par else (4 * (m >> 1) + (m & 1) if m < 8 else 4 * ((m - 8) >> 1) + (m & 1) + 2) for m in range(16)]


def head_of(cfg, dst, j, tmp):
    if cfg.hmap == 0:
        return f"s_lshl_b32 s{dst}, s{S_HG}, 3\ns_add_u32 s{dst}, s{dst}, s{j}"
    if cfg.hmap == 1:
        return f"s_lshl_b32 s{dst}, s{j}, 2\ns_add_u32 s{dst}, s{dst}, s{S_HG}"
    if cfg.hmap in (2, 3):
        g = f"s_and_b32 s{dst}, s{j}, 3" if cfg.hmap == 2 else f"s_lshr_b32 s{dst}, s{j}, 1"
        return f"{g}\ns_xor_b32 s{dst}, s{dst}, s{S_HG}\ns_lshl_b32 s{dst}, s{dst}, 3\ns_add_u32 s{dst}, s{dst}, s{j}"
    lo = cfg.hmap - 3
    return (f"s_lshr_b32 s{dst}, s{j}, {lo}\ns_lshl_b32 s{dst}, s{dst}, 2\ns_add_u32 s{dst}, s{dst}, s{S_HG}\ns_lshl_b32 s{dst}, s{dst}, {lo}\n"
            f"s_and_b32 s{tmp}, s{j}, {(1 << lo) - 1}\ns_add_u32 s{dst}, s{dst}, s{tmp}")


def lane_id(v):
    return f"v_mbcnt_lo_u32_b32 v{v}, -1, 0\nv_mbcnt_hi_u32_b32 v{v}, -1, v{v}"


def make_srd(items):
    return "\n".join(f"s_mov_b32 s{r}, s{p}\ns_mov_b32 s{r+1}, s{p+1}\ns_mov_b32 s{r+2}, {n}\ns_mov_b32 s{r+3}, 0x20000" for r, p, n in items)


def prologue(P, cfg):
    return P.add(f"""
    s_bfe_u32 s{S_BLK}, s2, 0x10002
    s_mul_i32 s{S_T0}, s{S_BLK}, 40
    s_load_dwordx8 s[4:11], s[0:1], s{S_T0}
    s_add_u32 s{S_T1}, s{S_T0}, 32
    s_load_dwordx2 s[12:13], s[0:1], s{S_T1}
    s_load_dwordx4 s[16:19], s[0:1], 88
    s_load_dwordx2 s[14:15], s[0:1], 80
    v_lshrrev_b32 v1, 6, v0
    v_and_b32 v0, 63, v0
    s_and_b32 s{S_HG}, s2, 3
    v_readfirstlane_b32 s{S_WAVE}, v1
    s_bfe_u32 s{S_J}, s2, 0x30003
    s_lshr_b32 s{S_BP}, s2, 6
    {head_of(cfg, S_H, S_J, S_T2)}
    s_and_b32 s{S_W}, s{S_WAVE}, 3
    s_mul_i32 s{S_LWB}, s{S_W}, 6144
    s_lshl_b32 s{S_LWW}, s{S_W}, 12
    s_cmp_lt_u32 s{S_WAVE}, 4
    s_cbranch_scc1 L_compute
    """)


def late_ids(cfg):
    return f"""s_mul_i32 s{S_NU}, s{S_BP}, {2 * cfg.nurot}
    s_add_u32 s{S_NU}, s{S_NU}, s{S_J}
    s_and_b32 s{S_NU}, s{S_NU}, 7
    {f"s_xor_b32 s{S_NU}, s{S_NU}, s{S_BLK}" if cfg.sigma & 4 else ""}
    {f"s_lshl_b32 s{S_NU}, s{S_NU}, 2" if cfg.sigma & 3 else ""}
    {f"s_lshr_b32 s{S_NU}, {[0, 0x73625140, 0x75643120][cfg.sigma & 3]}, s{S_NU}" if cfg.sigma & 3 else ""}
    {f"s_and_b32 s{S_NU}, s{S_NU}, 7" if cfg.sigma & 3 else ""}
    s_and_b32 s{S_GRP}, s2, 7
    s_lshl_b32 s{S_T1}, s{S_BP}, 3
    s_add_u32 s{S_GRP}, s{S_GRP}, s{S_T1}"""


def x_touch(cfg, vaddr, vdst):
    if cfg.xtouch & 3 == 1:
        return [f"""s_lshr_b32 s{S_T0}, s2, 3
        s_lshl_b32 s{S_T0}, s{S_T0}, 2
        s_add_u32 s{S_T0}, s{S_T0}, s{S_HG}
        s_lshl_b32 s{S_T0}, s{S_T0}, 2
        s_add_u32 s{S_T0}, s{S_T0}, s{S_W}
        s_mul_i32 s{S_T0}, s{S_T0}, 3072
        v_min_u32 v{vaddr}, 23, v0
        v_lshlrev_b32 v{vaddr}, 7, v{vaddr}""", f"buffer_load_dword v{vdst}, v{vaddr}, {srd(sX)}, s{S_T0} offen"]
    return [f"""s_lshr_b32 s{S_T0}, s2, 3
    s_lshl_b32 s{S_T0}, s{S_T0}, 2
    s_add_u32 s{S_T0}, s{S_T0}, s{S_W}
    s_mul_i32 s{S_T0}, s{S_T0}, 12288
    s_add_u32 s{S_T1}, s{S_T0}, 6144
    v_min_u32 v{vaddr}, 47, v0
    v_lshlrev_b32 v{vaddr}, 7, v{vaddr}""", f"buffer_load_dword v{vdst}, v{vaddr}, {srd(sX)}, s{S_T0} offen",
            f"buffer_load_dword v{vdst}, v{vaddr}, {srd(sX)}, s{S_T1} offen"]


def code_touch(lane, vaddr, vdst):
    return f"""s_lshr_b32 s{S_T0}, s2, 3
    s_lshl_b32 s{S_T0}, s{S_T0}, 10
    v_and_b32 v{vaddr}, 7, v{lane}
    v_lshl_add_u32 v{vaddr}, v{vaddr}, 7, s{S_T0}
    v_min_u32 v{vaddr}, L_text_end-L_text-4, v{vaddr}
    global_load_dword v{vdst}, v{vaddr}, s[{S_PC}:{S_PC + 1}]"""


def poll_loop(P, tr, name, vdst, vaddr, mode=0):
    tr.extend(P.add(f"s_mov_b32 s{S_SPIN}, 0"))
    ld = f"buffer_load_dword v{vdst}, v{vaddr}, {srd(sWS)}, 0 offen sc1"
    if mode == 1:
        ld = f"v_mov_b32 v{vdst}, 0\nbuffer_atomic_or v{vdst}, v{vaddr}, {srd(sWS)}, 0 offen sc0"
    if mode == 2:
        ld += " nt"
    loop = P.add(f"""L_{name}:
    {ld}
    s_add_u32 s{S_SPIN}, s{S_SPIN}, 1
    s_cmp_ge_u32 s{S_SPIN}, {SPIN_MAX}
    s_cbranch_scc1 L_{name}_done
    s_waitcnt vmcnt(0)
    v_cmp_ne_u32 vcc, 1, v{vdst}
    s_cbranch_vccnz L_{name}""")
    tr.extend(loop + loop)
    tr.extend(P.add(f"L_{name}_done:"))


LX = lambda p: 8 + p
LW = lambda p: 14 + p
LK = lambda p: 18 + p
LV = lambda p: (22, 23, 34, 35)[p]
LWO = lambda p: 24 + p
LOB, LFLAG, LSTAMP, LPOLL = 28, 29, 30, 31
LDSW = lambda h: 1 + h
LTQ, LTO, LTB = 32, 33, 32
LPOOL = 36


def late_setup(A, cfg):
    kb = [int(x) for x in cfg.kbits.split(".")]
    padj = lambda p: ((p & 1) << kb[0]) + ((p >> 1) << kb[1]) - p * 1024
    assert min(padj(p) for p in range(4)) >= 0 and sorted(kb) == list(range(10, 17))
    A(f"""
    s_lshr_b32 s{S_T0}, s{S_W}, 1
    s_lshl_b32 s{S_T1}, s{S_BP}, 1
    s_add_u32 s{S_T0}, s{S_T0}, s{S_T1}
    s_lshl_b32 s{S_T0}, s{S_T0}, 5
    s_add_u32 s{S_T0}, s{S_T0}, s{S_H}
    s_lshl_b32 s{S_T0}, s{S_T0}, 17
    s_and_b32 s{S_T1}, s{S_W}, 1
    s_lshl_b32 s{S_T1}, s{S_T1}, {kb[2]}
    s_add_u32 s{S_T0}, s{S_T0}, s{S_T1}
    v_lshl_add_u32 v5, v1, 8, s{S_T0}
    v_xor_b32 v7, v2, v1
    """)
    for p in range(4):
        A(f"v_xor_b32 v3, {4 * p}, v7\nv_lshl_add_u32 v{LK(p)}, v3, 4, v5")
        if padj(p):
            A(f"v_add_u32 v{LK(p)}, {padj(p)}, v{LK(p)}")
    A(f"""
    v_lshl_add_u32 v{LV(0)}, v6, 4, v5
    v_xor_b32 v7, 8, v6
    v_lshl_add_u32 v{LV(1)}, v7, 4, v5
    v_add_u32 v{LV(2)}, {padj(2)}, v{LV(0)}
    v_add_u32 v{LV(3)}, {padj(3)}, v{LV(1)}
    v_add_u32 v{LV(1)}, {padj(1)}, v{LV(1)}
    {f"s_mov_b32 s{S_T0}, 0" if cfg.hmap else f"s_lshl_b32 s{S_T0}, s{S_HG}, 21"}
    s_lshl_b32 s{S_T1}, s{S_W}, 15
    s_add_u32 s{S_T0}, s{S_T0}, s{S_T1}
    s_lshl_b32 s{S_T1}, s{S_NU}, 8
    s_add_u32 s{S_T0}, s{S_T0}, s{S_T1}
    v_lshl_add_u32 v5, v1, 11, s{S_T0}
    v_add_u32 v{LTO}, s{S_T0}, v{LTO}
    v_lshl_add_u32 v{LWO(0)}, v6, 4, v5
    v_lshl_add_u32 v7, v7, 4, v5
    v_add_u32 v{LWO(1)}, {8192 - 1024}, v7
    v_add_u32 v{LWO(2)}, {2 * 8192 - 2048}, v{LWO(0)}
    v_add_u32 v{LWO(3)}, {3 * 8192 - 3072}, v7
    s_mul_i32 s{S_T0}, s{S_GRP}, 393216
    s_add_u32 s{S_T0}, s{S_T0}, s{S_LWB}
    v_lshl_add_u32 v{LOB}, v0, 4, s{S_T0}
    s_lshl_b32 s{S_T0}, s2, 11
    s_lshl_b32 s{S_T1}, s{S_W}, 9
    s_add_u32 s{S_T0}, s{S_T0}, s{S_T1}
    s_add_u32 s{S_T0}, s{S_T0}, {WS_INBOX}
    v_lshl_add_u32 v{LFLAG}, v4, 2, s{S_T0}
    s_lshl_b32 s{S_J2}, s{S_J}, 1
    s_add_u32 s{S_T0}, s{S_LWW}, {KRING}
    v_lshl_add_u32 v{LDSW(0)}, v0, 4, s{S_T0}
    v_add_u32 v{LDSW(1)}, {VRING - KRING}, v{LDSW(0)}
    """)


def loader(P, cfg):
    tr = []
    A = lambda t: tr.extend(P.add(t))
    A(f"""
    v_lshrrev_b32 v1, 4, v0
    v_and_b32 v2, 15, v0
    v_lshrrev_b32 v3, 3, v0
    v_and_b32 v4, 7, v0
    s_mul_i32 s{S_T0}, s{S_BP}, 192
    s_mul_i32 s{S_T1}, s{S_W}, 48
    s_add_u32 s{S_T0}, s{S_T0}, s{S_T1}
    s_lshl_b32 s{S_T0}, s{S_T0}, 11
    v_lshl_add_u32 v5, v3, 11, s{S_T0}
    v_xor_b32 v6, v4, v1
    v_lshl_add_u32 v{LX(0)}, v6, 4, v5
    v_xor_b32 v6, 4, v6
    v_lshl_add_u32 v7, v6, 4, v5
    """)
    for p in range(1, 6):
        A(f"v_add_u32 v{LX(p)}, {p * 16384 - (p % 4) * 1024}, v{7 if p & 1 else LX(0)}")
    A(f"""
    s_lshl_b32 s{S_T0}, s{S_W}, 17
    s_lshl_b32 s{S_T1}, s{S_H}, 8
    s_add_u32 s{S_T0}, s{S_T0}, s{S_T1}
    v_lshl_add_u32 v5, v1, 13, s{S_T0}
    v_lshlrev_b32 v6, 1, v1
    v_xor_b32 v6, v6, v2
    v_lshl_add_u32 v{LW(0)}, v6, 4, v5
    v_xor_b32 v7, 8, v6
    v_lshl_add_u32 v7, v7, 4, v5
    v_add_u32 v{LW(1)}, {32768 - 1024}, v{LW(0)}
    v_add_u32 v{LW(2)}, {2 * 32768 - 2048}, v7
    v_add_u32 v{LW(3)}, {3 * 32768 - 3072}, v7
    """)
    if cfg.rot == 1:
        A(f"s_add_u32 s{S_ROT}, s{S_BP}, s{S_J}\ns_and_b32 s{S_ROT}, s{S_ROT}, 3\ns_lshl_b32 s{S_ROT}, s{S_ROT}, 2")
    elif cfg.rot == 2:
        A(f"s_add_u32 s{S_ROT}, s{S_BP}, s{S_J}\ns_and_b32 s{S_ROT}, s{S_ROT}, 1\ns_lshl_b32 s{S_ROT}, s{S_ROT}, 3")
    elif cfg.rot == 3:
        A(f"s_lshl_b32 s{S_ROT}, s{S_HG}, 2")
    elif cfg.rot == 4:
        A(f"s_lshl_b32 s{S_ROT}, s{S_BP}, 2")
    elif cfg.rot == 5:
        A(f"s_lshl_b32 s{S_ROT}, s{S_J}, 1")
    elif cfg.rot in (7, 8, 9):
        A(f"s_lshr_b32 s{S_ROT}, s{S_J}, 1\ns_add_u32 s{S_ROT}, s{S_ROT}, s{S_BP}\ns_and_b32 s{S_ROT}, s{S_ROT}, 3\ns_lshl_b32 s{S_ROT}, s{S_ROT}, {9 - cfg.rot}")
    elif cfg.rot == 6:
        A(f"s_and_b32 s{S_ROT}, s{S_J}, 3\ns_lshl_b32 s{S_ROT}, s{S_ROT}, 2")
    else:
        A(f"s_mov_b32 s{S_ROT}, 0")
    A(f"""
    v_bfe_u32 v7, v0, 1, 4
    v_and_b32 v5, 1, v0
    v_lshlrev_b32 v5, 7, v5
    v_lshl_add_u32 v{LTO}, v7, 11, v5
    v_lshl_add_u32 v{LTQ}, v7, 13, v5
    v_add_u32 v{LTQ}, s{S_T0}, v{LTQ}
    """)
    A("s_waitcnt lgkmcnt(0)")
    A(make_srd(((sWQ, 10, 8 << 20), (sX, 4, 768 * 2048))))
    q0 = []
    if cfg.stamps:
        A(f"v_mov_b32 v{LSTAMP}, 0")
        A(loader_stamp(0))
        A(f"v_writelane_b32 v{LSTAMP}, s96, 63")
    if cfg.xtouch & 4:
        xt = x_touch(cfg, 3, LPOLL)
        A(xt)
        q0 += ["t"] * (len(xt) - 1)
    if cfg.afirst:
        A(f"s_bitcmp{1 - cfg.clsinv}_b32 s2, {cfg.cls}\ns_cbranch_scc1 L_bstart")
        for n in range(4 if cfg.cls == 6 else 0):
            A(f"""s_add_u32 s{S_T1}, s{S_ROT}, {n}
            s_lshl_b32 s{S_T1}, s{S_T1}, 19
            buffer_load_dword v{LPOLL}, v{LTQ}, {srd(sWQ)}, s{S_T1} offen""")
        A("s_branch L_started\nL_bstart:")
    if not cfg.stag:
        for n in range(2):
            for text, isload in q_stage(cfg, n):
                A(text)
                if isload:
                    q0.append(n)
    if cfg.afirst:
        A("L_started:")
    A(make_srd(((sK, 6, 32 << 20), (sV, 8, 32 << 20), (sWO, 12, 8 << 20), (sWS, 18, 256 << 20))))
    A(late_ids(cfg))
    late_setup(A, cfg)
    if cfg.krot:
        A(f"s_mul_i32 s{S_KR}, s2, {cfg.krot}\ns_lshr_b32 s{S_KR}, s{S_KR}, {cfg.ksh}\ns_lshl_b32 s{S_KR}, s{S_KR}, 13")
    if cfg.pre1:
        A(f"s_bitcmp{1 - cfg.clsinv}_b32 s2, {cfg.cls}\ns_cbranch_scc1 L_late")
        t0 = loader_role(P, cfg, list(tr), ["t"] * (4 if cfg.cls == 6 else 0) if cfg.afirst else q0, None, cfg.pre, "a")
        return [t0, loader_role(P, cfg, list(tr) + P.add("L_late:"), q0, None, cfg.pre1, "b")]
    if not cfg.stag:
        return [loader_role(P, cfg, tr, q0, None, cfg.pre)]
    A(f"s_cmp_ge_u32 s{S_BP}, 2\ns_cbranch_scc1 L_late")
    t0 = loader_role(P, cfg, list(tr), q0, 0)
    return [t0, loader_role(P, cfg, list(tr) + P.add("L_late:"), q0, 1)]


def loader_stamp(n):
    return (f"s_memrealtime s[{S_ST}:{S_ST+1}]\ns_memtime s[{S_ST+2}:{S_ST+3}]\ns_cmp_eq_u32 s{S_W}, 1\ns_waitcnt lgkmcnt(0)\n"
            f"s_cselect_b32 s{S_ST+4}, s{S_ST+2}, s{S_ST}\nv_writelane_b32 v{LSTAMP}, s{S_ST+4}, {n}")


def q_stage(cfg, n):
    dma = lambda vreg, sr, so, imm, pol: (f"buffer_load_dwordx4 v{vreg}, {srd(sr)}, s{so} offen offset:{imm} {pol} lds", True)
    first = cfg.promote & 1 and n < 4
    mask = {8: 7, 9: 3}.get(cfg.rot, 15)
    hgr = ""
    if cfg.hgrot == 1:
        hgr = f"s_add_u32 s{S_T1}, s{S_HG}, {n}\ns_and_b32 s{S_T1}, s{S_T1}, 3\ns_or_b32 s{S_T0}, s{S_T0}, s{S_T1}"
    if cfg.hgrot == 3:
        hgr = f"s_lshr_b32 s{S_T1}, s{S_T0}, 2\ns_xor_b32 s{S_T0}, s{S_T0}, s{S_T1}"
    if cfg.hgrot == 4:
        hgr = f"s_lshr_b32 s{S_T1}, s{S_T0}, 2\ns_and_b32 s{S_T1}, s{S_T1}, 2\ns_xor_b32 s{S_T0}, s{S_T0}, s{S_T1}"
    if cfg.hgrot == 5:
        hgr = f"s_lshr_b32 s{S_T1}, s{S_T0}, 1\ns_and_b32 s{S_T1}, s{S_T1}, 2\ns_xor_b32 s{S_T0}, s{S_T0}, s{S_T1}"
    if cfg.hgrot == 6:
        hgr = f"s_lshr_b32 s{S_T1}, s{S_T0}, 2\ns_lshl_b32 s{S_T0}, s{S_T0}, 2\ns_and_b32 s{S_T0}, s{S_T0}, 12\ns_or_b32 s{S_T0}, s{S_T0}, s{S_T1}"
    if cfg.hgrot == 7:
        hgr = f"s_lshl_b32 s{S_T1}, s{S_BLK}, 1\ns_xor_b32 s{S_T0}, s{S_T0}, s{S_T1}"
    if cfg.hgrot == 2:
        hgr = f"s_xor_b32 s{S_T1}, s{S_HG}, {n & 3}\ns_or_b32 s{S_T0}, s{S_T0}, s{S_T1}"
    o = [(f"""s_add_u32 s{S_T0}, s{S_ROT}, {n}
    s_add_u32 m0, s{S_LWW}, {WRING + (n % 4) * WSLOT}
    s_and_b32 s{S_T0}, s{S_T0}, {12 if cfg.hgrot in (1, 2) else mask}
    {hgr}
    {f"s_or_b32 s{S_T0}, s{S_T0}, {n & ~mask}" if n & ~mask else ""}
    s_lshl_b32 s{S_T1}, s{S_T0}, 19""", False)]
    o += [dma(LW(p), sWQ, S_T1, p * 1024, "nt" if first else cfg.pol_wq) for p in range(4)]
    if first:
        o.append((f"buffer_load_dword v{LPOLL}, v{LTQ}, {srd(sWQ)}, s{S_T1} offen {cfg.pol_t}", True))
    o.append((f"s_add_u32 m0, s{S_LWB}, {BRING + (n % 4) * BSLOT}\ns_lshl_b32 s{S_T0}, s{S_T0}, 7", False))
    o += [dma(LX(p), sX, S_T0, p * 1024, cfg.pol_x) for p in range(4)]
    o.append((f"s_add_u32 m0, s{S_LWB}, {BRING + (n % 4) * BSLOT + 4096}", False))
    o += [dma(LX(p), sX, S_T0, (p - 4) * 1024, cfg.pol_x) for p in range(4, 6)]
    return o


def loader_role(P, cfg, tr, q0, role, pre="", sfx=""):
    A = lambda t: tr.extend(P.add(t))
    sfx += "" if role is None else str(role)
    q = list(q0)

    flip = [0]

    def throttle(win):
        if win in (45, 55):
            flip[0] ^= 1
            win = win // 10 + flip[0]
        win = win or 56
        if win and len(q) >= win:
            A(f"s_waitcnt vmcnt({win - 1})")
            del q[:len(q) - (win - 1)]

    def dma(vreg, s, soff, imm, pol, tag, win=0):
        throttle(win)
        A(f"buffer_load_dwordx4 v{vreg}, {srd(s)}, {soff} offen offset:{imm} {pol} lds")
        q.append(tag)

    def wait(tag):
        if tag in q:
            idx = max(k for k, x in enumerate(q) if x == tag)
            A(f"s_waitcnt vmcnt({len(q) - 1 - idx})")
            del q[:idx + 1]

    def issue_q(n):
        for text, isload in q_stage(cfg, n):
            if isload:
                throttle(0)
                q.append(n)
            A(text)

    kv = []
    for e in range(17):
        if e <= 15:
            kv += [(16 + e, 0, e, p) for p in range(4)]
        if e >= 1:
            kv += [(16 + e, 1, e - 1, p) for p in range(4)]
    pool = list(range(LPOOL, 256, 4))
    parked = []
    state = dict(next=0, m0=None, soff=None, lds=False)

    def issue_kv(upto, k, win):
        state["m0"] = state["soff"] = None
        while state["next"] < upto:
            stage, isv, tile, p = kv[state["next"]]
            state["next"] += 1
            vo, sr = (LV(p), sV) if isv else (LK(p), sK)
            if stage <= k + 2 and state["m0"] != (stage, isv):
                A(f"s_add_u32 m0, s{S_LWW}, {(VRING if isv else KRING) + (tile % 3) * ASLOT}")
                state["m0"] = (stage, isv)
            if state["soff"] != tile:
                if cfg.krot:
                    A(f"s_add_u32 s{S_T0}, s{S_KR}, {tile * 8192}\ns_and_b32 s{S_T0}, s{S_T0}, 0x1e000")
                else:
                    A(f"s_mov_b32 s{S_T0}, {sum(((tile >> i) & 1) << int(b) for i, b in enumerate(cfg.kbits.split('.')[3:]))}")
                state["soff"] = tile
            if stage <= k + 2:
                dma(vo, sr, f"s{S_T0}", p * 1024, cfg.pol_kv, stage, win)
            else:
                if not pool:
                    unpark(k, 2)
                r = pool.pop(0)
                throttle(win)
                A(f"buffer_load_dwordx4 {v4(r)}, v{vo}, {srd(sr)}, s{S_T0} offen offset:{p * 1024} {cfg.pol_kv}")
                q.append(("r", r))
                parked.append((stage, isv, tile, p, r))
            if cfg.lazyp:
                unpark(k, cfg.lazyp, True)

    def unpark(k, most=99, landed=False):
        while parked and parked[0][0] <= k + 2 and most and not (landed and ("r", parked[0][4]) in q):
            most -= 1
            stage, isv, tile, p, r = parked.pop(0)
            wait(("r", r))
            A(f"ds_write_b128 v{LDSW(isv)}, {v4(r)} offset:{(tile % 3) * ASLOT + p * 1024}")
            pool.append(r)
            state["lds"] = True

    def o_index(m):
        if cfg.order:
            return f"s_add_u32 s{S_T0}, s{S_J2}, {o_rel(cfg)[m]}"
        if cfg.par:
            if m < 8:
                return f"s_add_u32 s{S_T0}, s{S_J2}, {4 * (m >> 1) + (m & 1)}"
            if cfg.par == 1:
                return f"s_add_u32 s{S_T0}, s{S_J2}, {4 * ((m - 8) >> 1) + (m & 1) + 2}"
            return f"s_lshl_b32 s{S_T0}, s{S_NU}, 1\ns_add_u32 s{S_T0}, s{S_T0}, {4 * ((m - 8) >> 1) + (m & 1) + 2}"
        if m < 2 or not cfg.oord:
            return f"s_add_u32 s{S_T0}, s{S_J2}, {m}"
        return f"""s_cmp_gt_u32 s{S_T3}, {(m - 2) // 2}
        s_cselect_b32 s{S_T0}, {m - 2}, {m}
        s_add_u32 s{S_T0}, s{S_T0}, s{S_T2}"""

    def issue_ow(m, tag, win=0):
        A(f"""{o_index(m)}
        s_add_u32 m0, s{S_LWW}, {WRING + (m % 4) * WSLOT}
        s_and_b32 s{S_T0}, s{S_T0}, 15
        s_lshl_b32 s{S_T1}, s{S_T0}, 17""")
        if cfg.hmap:
            A(f"""s_lshr_b32 s{S_T0}, s{S_T0}, 1
            {head_of(cfg, S_T2, S_T0, S_T3)}
            s_lshl_b32 s{S_T2}, s{S_T2}, 18
            s_and_b32 s{S_T1}, s{S_T1}, 0x20000
            s_add_u32 s{S_T1}, s{S_T1}, s{S_T2}""")
        first = cfg.promote & 2 and o_rel(cfg)[m] < 4
        for p in range(4):
            dma(LWO(p), sWO, f"s{S_T1}", p * 1024, "nt" if first else cfg.pol_wo, tag, 0 if first else win)
        if first:
            A(f"buffer_load_dword v{LPOLL}, v{LTO}, {srd(sWO)}, s{S_T1} offen {cfg.pol_t}")
            q.append("t")

    def touch_w(b):
        A(f"""s_lshl_b32 s{S_T0}, s{S_BP}, 17
        s_add_u32 s{S_T0}, s{S_T0}, {b << 19}
        buffer_load_dword v{LPOLL}, v{LTO}, {srd(sWO)}, s{S_T0} offen""")
        q.append("t")

    def touch_b(b):
        A(f"s_mov_b32 s{S_T0}, {b * 98304}\nbuffer_load_dword v{LPOLL}, v{LTB}, {srd(sWS)}, s{S_T0} offen sc1")
        q.append("t")

    coop = []
    spre = [int(x) for x in str(cfg.spre).split(".")] if cfg.spre else []
    sdone = [0]

    def scalar_pre():
        for _ in range(spre.pop(0) if spre else 0):
            n, r = divmod(sdone[0], 32)
            if n > 3:
                break
            if r == 0:
                A(f"""s_add_u32 s{S_T0}, s{S_NU}, {2 * n + 1}
                s_and_b32 s{S_T0}, s{S_T0}, 7
                s_lshl_b32 s{S_T0}, s{S_T0}, 18
                s_add_u32 s{S_T0}, s{S_T0}, s{S_DW}
                s_add_u32 s{S_SB + 2 * (n & 1)}, s12, s{S_T0}
                s_addc_u32 s{S_SB + 2 * (n & 1) + 1}, s13, 0""")
            A(f"s_load_dword s{S_SB + 4}, s[{S_SB + 2 * (n & 1)}:{S_SB + 2 * (n & 1) + 1}], {(r >> 2) * 2048 + (r & 3) * 64}")
            sdone[0] += 1

    def coop_after(m):
        for b, mm in enumerate(coop):
            if mm == m:
                touch_b(b + 1)
                touch_w(b + 1)

    def issue_ob(m, tag):
        A(f"""{o_index(m)}
        s_add_u32 m0, s{S_LWB}, {BRING + ((m - 2) % 4) * BSLOT}
        s_and_b32 s{S_T0}, s{S_T0}, 15
        s_mul_i32 s{S_T0}, s{S_T0}, 24576""")
        for p in range(4):
            dma(LOB, sWS, f"s{S_T0}", p * 1024, cfg.pol_ob, tag)
        A(f"s_add_u32 m0, s{S_LWB}, {BRING + ((m - 2) % 4) * BSLOT + 4096}\ns_add_u32 s{S_T1}, s{S_T0}, 4096")
        for p in range(2):
            dma(LOB, sWS, f"s{S_T1}", p * 1024, cfg.pol_ob, tag)

    nst = [1]

    def stamp():
        if cfg.stamps:
            A(loader_stamp(nst[0]))
            nst[0] += 1

    def barrier():
        if state["lds"]:
            A("s_waitcnt lgkmcnt(0)")
            state["lds"] = False
        A("s_barrier")
        stamp()

    A("; loader schedule: one barrier per stage; two variants differ only in when K/V is preloaded")
    end = lambda n: 0 if n < 16 else min(128, 4 + 8 * (n - 16))
    pre = [int(x) for x in str(pre).split(".")] if pre else []
    pre = [0] * (17 - len(pre)) + pre
    wo_at = [int(x) for x in str(cfg.wo_at).split(".")]
    wtag = lambda m: 33 if m < 2 else 33 + m
    if role == 1:
        A(f"""
        s_lshr_b32 s{S_T0}, s2, 3
        s_and_b32 s{S_T0}, s{S_T0}, 15
        s_lshl_b32 s{S_T0}, s{S_T0}, 2
        s_add_u32 s{S_T0}, s{S_T0}, s{S_W}
        s_lshl_b32 s{S_T1}, s{S_T0}, 13
        s_lshl_b32 s{S_T2}, s{S_HG}, 11
        s_add_u32 s{S_T1}, s{S_T1}, s{S_T2}
        v_lshrrev_b32 v3, 4, v0
        v_and_b32 v4, 15, v0
        v_lshl_add_u32 v5, v3, 19, s{S_T1}
        v_lshl_add_u32 v5, v4, 7, v5
        s_mul_i32 s{S_T1}, s{S_T0}, {6 * 2048}
        v_lshrrev_b32 v3, 3, v0
        v_min_u32 v3, 5, v3
        v_and_b32 v4, 7, v0
        v_lshl_add_u32 v6, v3, 11, s{S_T1}
        v_lshl_add_u32 v6, v4, 7, v6
        """)
        for qt in range(4):
            if qt % 2 == 0:
                A(f"buffer_load_dword v{LPOLL}, v6, {srd(sX)}, 0 offen offset:{(qt // 2) * 1024}")
                q.append("t")
            A(f"s_mov_b32 s{S_T0}, {qt << 21}\nbuffer_load_dword v{LPOLL}, v5, {srd(sWQ)}, s{S_T0} offen")
            q.append("t")
        A(f"s_mov_b32 s{S_T0}, {384 * 2048}")
        for h in range(2):
            A(f"buffer_load_dword v{LPOLL}, v6, {srd(sX)}, s{S_T0} offen offset:{h * 1024}")
            q.append("t")
        pre[0] = cfg.s1pre
        issue_kv(pre[0], -1, cfg.s1win)
    if cfg.afirst and sfx == "a":
        pre[0] = cfg.afirst
        issue_kv(pre[0], -1, cfg.bwin or 8)
    if cfg.stag or (cfg.afirst and sfx == "a"):
        issue_q(0)
        issue_q(1)
    base = sum(pre)
    issue_kv(pre[0], -1, 0)
    nq = 2
    qskip = cfg.qskip if sfx == 'a' else cfg.qskipb
    qskip = [int(x) for x in str(qskip).split('.')] if qskip else []
    for k in range(0, 33):
        wait(k)
        barrier()
        if not cfg.lazyp:
            unpark(k)
        while nq <= min(15, k + 1 + cfg.qd) and k not in qskip:
            issue_q(nq)
            nq += 1
        w = ((cfg.winb or cfg.win) if sfx == 'b' else cfg.win) if role is None else (cfg.s1win if role else (cfg.s0win if k < cfg.s0sw else cfg.s0late))
        if cfg.winlate and k >= cfg.late and sfx != 'b':
            w = cfg.winlate
        win = 0 if k < 16 else (cfg.win16 if k == 16 else w)
        lead = min(128, end(k + 1) + ((win + 5) // 10 if win in (45, 55) else win or 8)) if k >= 14 else 0
        if k <= 15:
            ramp = sum(pre[:k + 2]) + (4 * max(0, k - 13) if role == 1 else 0)
        else:
            b0 = base + cfg.win16 + (8 if role == 1 else 0)
            last = (cfg.lastb or cfg.last) if sfx == 'b' else cfg.last
            ramp = min(128, b0 + ((128 - b0) * (k - 16)) // (last - 16))
            if cfg.shape and k < last:
                u = (k - 16) / (last - 16)
                ramp = int(b0 + (128 - b0) * u + cfg.shape * 4 * u * (1 - u) + 0.5)
        issue_kv(max(lead, ramp if base else 0), k, win or cfg.bwin)
        while qskip and k == qskip[-1] and nq <= min(15, k + cfg.qres):
            issue_q(nq)
            nq += 1
        assert nq > min(15, k + 1)
        if cfg.lazyp:
            unpark(k, 99, True)
            unpark(k - 1)
        if k == 20 and cfg.oord:
            A(f"""s_add_u32 s{S_T2}, s{S_BP}, s{S_J}
            s_and_b32 s{S_T2}, s{S_T2}, {cfg.oord - 1}
            s_mul_i32 s{S_T2}, s{S_T2}, {8 // cfg.oord}
            s_sub_u32 s{S_T3}, s{S_J}, s{S_T2}
            s_and_b32 s{S_T3}, s{S_T3}, 7
            s_lshl_b32 s{S_T2}, s{S_T2}, 1""")
        for h, tk in enumerate(str(cfg.ptouch).split(".") if cfg.ptouch else []):
            if int(tk) == k:
                throttle(win)
                A(f"""s_mul_i32 s{S_T0}, s{S_J}, 49152
                s_add_u32 s{S_T0}, s{S_T0}, {h * 24576}
                v_mul_u32_u24 v3, 0x70, v0
                v_add_u32 v3, v3, v{LOB}
                s_mov_b32 exec_hi, 0xffff
                buffer_load_dword v{LPOLL}, v3, {srd(sWS)}, s{S_T0} offen
                s_mov_b64 exec, -1""")
                q.append("t")
        if k == 26:
            A(f"buffer_load_dword v{LPOLL}, v{LFLAG}, {srd(sWS)}, 0 offen sc1")
            q.append("t")
        for m in range(4):
            if wo_at[m] == k and not (m < 2 and m >= 2 - cfg.w1late):
                issue_ow(m, wtag(m), win if state["next"] < 128 else (cfg.wwin if k == 32 else 0))
        if coop and k == cfg.coopw0:
            touch_w(0)
    assert state["next"] == 128 and not parked
    if spre:
        A(f"""s_lshl_b32 s{S_DW}, s{S_HG}, 21
        s_lshl_b32 s{S_T0}, s{S_BP}, 16
        s_add_u32 s{S_DW}, s{S_DW}, s{S_T0}
        s_lshl_b32 s{S_T0}, s{S_W}, 14
        s_add_u32 s{S_DW}, s{S_DW}, s{S_T0}
        s_lshl_b32 s{S_T0}, s{S_NU}, 8
        s_add_u32 s{S_DW}, s{S_DW}, s{S_T0}""")
    A("; output projection: wo stages, waits for the producers of the next operand blocks")
    if cfg.w1late:
        A("s_barrier")
        if cfg.w1late == 2:
            issue_ow(0, 33)
        issue_ow(1, 34)
    wait(33)
    barrier()
    if cfg.w1late:
        wait(34)
        A("s_barrier")
    def finish():
        if cfg.stamps:
            A(f"""s_lshl_b32 s{S_T0}, s2, 3
            s_add_u32 s{S_T0}, s{S_T0}, s{S_WAVE}
            s_lshl_b32 s{S_T0}, s{S_T0}, 8
            s_add_u32 s{S_T0}, s{S_T0}, {WS_STAMP}
            v_lshl_add_u32 v1, v0, 2, s{S_T0}
            buffer_store_dword v{LSTAMP}, v1, {srd(sWS)}, 0 offen""")
        A("s_endpgm")
        return tr

    def need_head(m):
        A(f"""{o_index(m)}
        s_bfe_u32 s{S_T1}, s{S_T0}, 0x30001
        {f"s_add_u32 s{S_T1}, s{S_T1}, 8" if cfg.split and o_rel(cfg)[m] & 1 else ""}
        s_mov_b32 s{S_SPIN}, 0""")
        n = f"L_need{m}{sfx}"
        loop = P.add(f"""{n}:
        s_bitcmp1_b32 s{S_MASK}, s{S_T1}
        s_cbranch_scc1 {n}_done
        buffer_load_dword v{LPOLL}, v{LFLAG}, {srd(sWS)}, 0 offen sc1
        s_add_u32 s{S_SPIN}, s{S_SPIN}, 1
        s_waitcnt vmcnt(0)
        {f"v_cmp_le_u32 vcc, v{LTQ}, v{LPOLL}" if cfg.split else f"v_cmp_eq_u32 vcc, 1, v{LPOLL}"}
        s_mov_b32 s{S_MASK}, vcc_lo
        s_cmp_lt_u32 s{S_SPIN}, {SPIN_MAX}
        s_cbranch_scc1 {n}""")
        tr.extend(loop + loop)
        A(f"{n}_done:")

    if cfg.bdirect:
        for m in (2, 3):
            if wo_at[m] == 33:
                issue_ow(m, 33 + m)
        A(f"s_mov_b32 s{S_MASK}, 0")
        seen = set()
        if cfg.split:
            A(f"v_bfe_u32 v{LTQ}, v0, 3, 1\nv_add_u32 v{LTQ}, 1, v{LTQ}")

        def need_new(m):
            key = o_rel(cfg)[m] >> (0 if cfg.split else 1)
            if key not in seen:
                seen.add(key)
                need_head(m)

        need_new(2)
        need_new(3)
        A("s_barrier")
        stamp()
        for m in (2, 3):
            if wo_at[m] == 34:
                issue_ow(m, 33 + m)
        nm = 4
        for k in range(35, 49):
            if k - 31 <= 15:
                need_new(k - 31)
            wait(k)
            barrier()
            while nm <= min(15, k + 1 + cfg.od - 33):
                issue_ow(nm, nm + 33)
                nm += 1
        return finish()
    if wo_at[2] == 33:
        issue_ow(2, 35)
    if cfg.prog:
        A(f"s_mov_b32 s{S_MASK}, 0")
        need_head(2)
    else:
        poll_loop(P, tr, "poll1" + sfx, LPOLL, LFLAG)
        del q[:]
        q.append("poll")
    stamp()
    if coop:
        touch_b(0)
    issue_ob(2, 35)
    if wo_at[2] == 34:
        issue_ow(2, 35)
    coop_after(2)
    if wo_at[3] == 33:
        issue_ow(3, 36)
    issue_ob(3, 36)
    if wo_at[3] == 34:
        issue_ow(3, 36)
    coop_after(3)
    scalar_pre()
    nm = 4
    for k in range(35, 49):
        wait(k)
        barrier()
        while nm <= min(15, k + 1 + cfg.od - 33):
            issue_ow(nm, nm + 33)
            if cfg.prog and nm % 2 == 0:
                need_head(nm)
            issue_ob(nm, nm + 33)
            coop_after(nm)
            nm += 1
        scalar_pre()
    return finish()


def order(n, snake):
    return [(T, t) for T in range(n) for t in (reversed(T3) if snake and T & 1 else T3)]


def gemm_reads(b, s, kind, with_b=True):
    r = []
    if with_b:
        for t in T3:
            if kind == "q":
                r.append(f"ds_read_b128 {v4(FB(b, t))}, v{AB(s)} offset:{t * 2048}")
            else:
                r.append(f"ds_read_b128 {v4(FB(b, t))}, v{AB(0)} offset:{s * 3072 + t * 1024}")
    for T in range(8):
        for u in range(2):
            off = s * 8192 + u * (1024 if kind == "q" else 4096)
            r.append(f"ds_read_b64_tr_b16 {v2(FA(b, T) + 2 * u)}, v{AW(T)} offset:{off}")
    return r


def gemm_mfma(cfg, b, bsrc=None, zero=False):
    return [f"{MFMA} {v4(ACC(T, t))}, {v4(FA(b, T))}, {v4(bsrc(t) if bsrc else FB(b, t))}, {'0' if zero else v4(ACC(T, t))}"
            for T, t in order(8, cfg.snake)]


def gemm_loop(P, tr, cfg, kind, label, iters):
    sal = [f"s_add_u32 s{S_SLOT}, s{S_SLOT}, 1", f"s_and_b32 s{S_SLOT}, s{S_SLOT}, 3", f"s_cselect_b32 s{S_DW}, {WSLOT}, s{S_T2}"]
    if kind == "o":
        sal.append(f"s_cmp_lg_u32 s{S_SLOT}, 2")
    sal.append(f"s_cselect_b32 s{S_DB}, {BSLOT}, s{S_T3}")
    val = [f"v_add_u32 v{AB(s)}, s{S_DB}, v{AB(s)}" for s in range(2 if kind == "q" else 1)]
    val += [f"v_add_u32 v{AW(T)}, s{S_DW}, v{AW(T)}" for T in range(8)]
    nb = len(val) - 8
    hook = [(18, f"s_cmp_eq_u32 s{S_CNT}, s{S_FLAG}"), (19, "s_cbranch_scc1 L_count"), (19, "L_counted:")] if kind == "q" else []
    if kind == "o" and cfg.wb:
        hook = [(18, f"s_cmp_eq_u32 s{S_CNT}, s{S_FLAG}"), (19, "s_cbranch_scc1 L_wb"), (19, "L_wbdone:")]
    h0 = weave(gemm_mfma(cfg, 0), spread(gemm_reads(1, 1, kind), 0, 18) + spread(sal, 0, 4) + spread(val[:nb + 6], 12, 19)
               + spread(val[nb + 6:], 20, 21) + [(22, "s_waitcnt lgkmcnt(0)"), (22, "s_barrier")])
    h1 = weave(gemm_mfma(cfg, 1), spread(gemm_reads(0, 0, kind), -1, 17)
               + hook + [(20, f"s_sub_u32 s{S_CNT}, s{S_CNT}, 1"), (20, f"s_cmp_lg_u32 s{S_CNT}, 0")])
    tr.extend(P.add(f"s_mov_b32 s{S_CNT}, {iters}\ns_waitcnt lgkmcnt(0)"))
    if kind == "q":
        tr.extend(P.add(".p2align 3"))
        body = P.add([label + ":"] + h0 + h1 + ["s_waitcnt lgkmcnt(0)", f"s_cbranch_scc1 {label}"])
        tr.extend(body + body)
        return
    h0 = weave(gemm_mfma(cfg, 0), spread(gemm_reads(1, 1, kind), 0, 18) + spread(sal, 0, 4) + spread(val[:nb + 6], 11, 18)
               + spread(val[nb + 6:], 19, 19) + [(6, f"s_sub_u32 s{S_CNT}, s{S_CNT}, 1"), (7, f"s_cmp_eq_u32 s{S_CNT}, 0"),
                                                  (20, f"s_cbranch_scc1 {label}_out"), (22, "s_waitcnt lgkmcnt(0)"), (22, "s_barrier")])
    h1 = weave(gemm_mfma(cfg, 1), spread(gemm_reads(0, 0, kind), -1, 17) + hook)
    cut = h0.index(f"s_cbranch_scc1 {label}_out") + 1
    tr.extend(P.add(".p2align 3"))
    first = P.add([label + ":"] + h0[:cut])
    rest = P.add(h0[cut:] + h1 + ["s_waitcnt lgkmcnt(0)", f"s_branch {label}"])
    tr.extend(first + rest + first + P.add([label + "_out:"] + gemm_mfma(cfg, 0)[21:]))


def k_reads(tile):
    return [f"ds_read_b128 {v4(FR(kt * 4 + s))}, v{AK(s)} offset:{(tile % 3) * ASLOT + kt * 4096}" for kt in range(2) for s in range(4)]


def v_reads(T, tile):
    return [f"ds_read_b64_tr_b16 {v2(FR(T) + 2 * u)}, v{AV(T)} offset:{(tile % 3) * ASLOT + u * 4096}" for u in range(2)]


def qk_mfma(first=False):
    c0 = lambda t: "0" if first else v4(NM(t))
    return [f"{MFMA} {v4(SS(kt, t))}, {v4(FR(kt * 4 + s))}, {v4(QF(s, t))}, {c0(t) if s == 0 else v4(SS(kt, t))}"
            for kt in range(2) for s in range(4) for t in T3]


def pv_mfma(cfg):
    return [f"{MFMA} {v4(ACC(T, t))}, {v4(FR(T))}, {v4(PP(t))}, {v4(ACC(T, t))}" for T, t in order(8, cfg.snake)]


def xlane(op, regs, tmps):
    out = []
    for sw in ("v_permlane32_swap_b32", "v_permlane16_swap_b32"):
        out += [f"v_mov_b32 v{x}, v{r}" for r, x in zip(regs, tmps)]
        out += [f"{sw} v{r}, v{x}" for r, x in zip(regs, tmps)]
        out += [f"{op} v{r}, v{r}, v{x}" for r, x in zip(regs, tmps)]
    return out


def row_max():
    o = [f"v_max3_f32 v{VD(t)}, v{SS(0, t)}, v{SS(0, t) + 1}, v{SS(0, t) + 2}" for t in T3]
    o += [f"v_max3_f32 v{VD(t)}, v{SS(0, t) + 3}, v{SS(1, t)}, v{VD(t)}" for t in T3]
    o += [f"v_max3_f32 v{VD(t)}, v{SS(1, t) + 1}, v{SS(1, t) + 2}, v{VD(t)}" for t in T3]
    o += [f"v_max_f32 v{VD(t)}, v{SS(1, t) + 3}, v{VD(t)}" for t in T3]
    return o + xlane("v_max_f32", [VD(t) for t in T3], [VT(t) for t in T3])


def shift_scores():
    return [f"v_sub_f32 v{SS(kt, t) + r}, v{SS(kt, t) + r}, v{VD(t)}" for kt in range(2) for t in T3 for r in range(4)]


def guard_max(kt):
    r = [SS(kt, t) + k for t in T3 for k in range(4)]
    if kt == 0:
        o = [f"v_max3_f32 v{VX}, v{r[0]}, v{r[1]}, v{r[2]}"]
        o += [f"v_max3_f32 v{VX}, v{r[k]}, v{r[k + 1]}, v{VX}" for k in range(3, 11, 2)]
        return o + [f"v_max_f32 v{VX}, v{r[11]}, v{VX}"]
    return [f"v_max3_f32 v{VX}, v{r[k]}, v{r[k + 1]}, v{VX}" for k in range(0, 12, 2)]


def p_cvt(kt, h=None):
    return [f"v_cvt_pk_bf16_f32 v{PP(t) + 2 * kt + hh}, v{SS(kt, t) + 2 * hh}, v{SS(kt, t) + 2 * hh + 1}"
            for hh in ((0, 1) if h is None else (h,)) for t in T3]


def exp_sum(cfg, kt, h):
    o = [f"v_exp_f32 v{SS(kt, t) + 2 * h + r}, v{SS(kt, t) + 2 * h + r}" for t in T3 for r in range(2)]
    if cfg.pk:
        o += [f"v_pk_add_f32 {v2(VL(t))}, {v2(VL(t))}, {v2(SS(kt, t) + 2 * h)}" for t in T3]
    else:
        o += [f"v_add_f32 v{VL(t) + r}, v{VL(t) + r}, v{SS(kt, t) + 2 * h + r}" for t in T3 for r in range(2)]
    return o


def exps(kt, h):
    return [f"v_exp_f32 v{SS(kt, t) + 2 * h + r}, v{SS(kt, t) + 2 * h + r}" for t in T3 for r in range(2)]


def pk_sum(kt, h):
    return [f"v_pk_add_f32 {v2(VL(t))}, {v2(VL(t))}, {v2(SS(kt, t) + 2 * h)}" for t in T3]


def rescale(by):
    return [f"v_mul_f32 v{ACC(T, t) + r}, v{ACC(T, t) + r}, v{by(t)}" for T in range(8) for t in T3 for r in range(4)]


def acc_to_frag(s, QF=QF):
    return [f"v_cvt_pk_bf16_f32 v{QF(s, t) + 2 * u + h}, v{ACC(2 * s + u, t) + 2 * h}, v{ACC(2 * s + u, t) + 2 * h + 1}"
            for u in range(2) for t in T3 for h in range(2)]


def compute(P, cfg):
    tr = []
    side = []
    A = lambda t: tr.extend(P.add(t))
    nst = [0]

    def stamp():
        if cfg.stamps:
            A(f"s_memrealtime s[{S_ST + 2 * nst[0]}:{S_ST + 2 * nst[0] + 1}]\ns_waitcnt lgkmcnt(0)")
            nst[0] += 1

    A("; ---- compute waves: first read of x, inbox clear, code prefetch")
    A(f"L_compute:\ns_getpc_b64 s[{S_PC}:{S_PC + 1}]\nL_text:\n{late_ids(cfg)}\ns_waitcnt lgkmcnt(0)")
    if cfg.xtouch and not cfg.xtouch & 4:
        A(make_srd(((sX, 4, 768 * 2048),)))
        A(x_touch(cfg, 112, 113))
    A(make_srd(((sOUT, 14, 768 * 4096), (sWS, 18, 256 << 20), (sDBG, 16, 256))))
    if cfg.prio:
        A(f"s_setprio {cfg.prio}")
    A(f"""
    s_getreg_b32 s{S_XCC}, hwreg(HW_REG_XCC_ID, 0, 3)
    s_cmp_lg_u32 s{S_W}, 0
    s_cbranch_scc1 L_noclear
    s_lshl_b32 s{S_T0}, s2, 11
    s_add_u32 s{S_T0}, s{S_T0}, {WS_INBOX}
    v_lshlrev_b32 v1, 4, v0
    v_mov_b64 v[4:5], 0
    v_mov_b64 v[6:7], 0
    buffer_store_dwordx4 v[4:7], v1, {srd(sWS)}, s{S_T0} offen sc1
    buffer_store_dwordx4 v[4:7], v1, {srd(sWS)}, s{S_T0} offen offset:1024 sc1
    {code_touch(0, 110, 111) if cfg.ctouch else ""}
    L_noclear:
    s_lshl_b32 s{S_XCC}, s{S_XCC}, 2
    v_and_b32 v{V_TMP}, 3, v0
    v_xor_b32 v{V_TMP}, s{S_GRP}, v{V_TMP}
    v_lshlrev_b32 v{V_TMP}, 2, v{V_TMP}
    v_lshrrev_b32 v100, 4, v0
    v_and_b32 v101, 15, v0
    v_bfe_u32 v102, v0, 2, 2
    v_bfe_u32 v103, v0, 1, 1
    v_and_b32 v104, 1, v0
    v_lshlrev_b32 v109, 4, v0
    """)
    A(f"""
    v_lshl_add_u32 v105, v100, 3, v102
    v_lshlrev_b32 v105, 8, v105
    v_lshl_add_u32 v105, v104, 3, v105
    v_lshl_add_u32 v105, v103, 4, v105
    v_and_b32 v106, 1, v100
    v_lshl_add_u32 v106, v106, 2, v102
    v_lshl_add_u32 v{AW(0)}, v106, 5, v105
    """)
    for T in range(1, 8):
        A(f"v_xor_b32 v{AW(T)}, {T << 5}, v{AW(0)}")
    A(f"""
    s_add_u32 s{S_T0}, s{S_LWB}, {BRING}
    v_lshl_add_u32 v105, v101, 7, s{S_T0}
    v_lshrrev_b32 v107, 1, v101
    v_xor_b32 v107, v107, v100
    v_lshl_add_u32 v{AB(0)}, v107, 4, v105
    v_xor_b32 v{AB(1)}, 64, v{AB(0)}
    """)
    A(f"""
    s_lshr_b32 s{S_T0}, s{S_W}, 1
    s_lshl_b32 s{S_T0}, s{S_T0}, 13
    s_add_u32 s{S_T0}, s{S_T0}, {KRING}
    v_lshl_add_u32 v105, v101, 8, s{S_T0}
    v_lshrrev_b32 v107, 1, v100
    v_and_b32 v108, 1, v100
    v_lshl_add_u32 v107, v108, 1, v107
    v_xor_b32 v107, v107, v101
    v_lshl_add_u32 v{AK(0)}, v107, 4, v105
    """)
    for s in range(1, 4):
        A(f"v_xor_b32 v{AK(s)}, {s << 6}, v{AK(0)}")
    A(f"""
    s_add_u32 s{S_T0}, s{S_T0}, {VRING - KRING}
    v_lshl_add_u32 v105, v100, 2, v102
    v_lshl_add_u32 v105, v105, 8, s{S_T0}
    v_lshl_add_u32 v105, v104, 3, v105
    v_lshl_add_u32 v105, v103, 4, v105
    v_lshl_add_u32 v{AV(0)}, v106, 5, v105
    """)
    for T in range(1, 8):
        A(f"v_xor_b32 v{AV(T)}, {T << 5}, v{AV(0)}")
    A(f"s_mov_b32 s{S_C}, {f32(1.4426950408889634 / 128 ** 0.5)}\ns_mov_b32 s{S_C + 1}, s{S_C}")
    A(f"s_mov_b32 s{S_T2}, {-3 * WSLOT}\ns_mov_b32 s{S_T3}, {-3 * BSLOT}\ns_mov_b32 s{S_SLOT}, 0")
    A([f"v_pk_mov_b32 {v2(r)}, 0, 0" for r in range(0, 96, 2)])
    if cfg.tag or cfg.oclear:
        A([f"v_mov_b32 v{r}, -1" for r in range(116, 120)])
    xclear = [f"s_mul_i32 s{S_T0}, s{S_W}, 9216", f"s_mul_i32 s{S_T1}, s2, 36864", f"s_add_u32 s{S_T0}, s{S_T0}, s{S_T1}", f"s_add_u32 s{S_T0}, s{S_T0}, {WS_X}"]
    for k in range(9):
        if k and k % 4 == 0:
            xclear.append(f"s_add_u32 s{S_T0}, s{S_T0}, 4096")
        xclear.append(f"buffer_store_dwordx4 v[116:119], v109, {srd(sWS)}, s{S_T0} offen offset:{(k % 4) * 1024} sc1")
    if cfg.tag and not cfg.clear_at:
        A(xclear)
    if cfg.oclear:
        A(f"""s_mul_i32 s{S_T0}, s{S_GRP}, 393216
        s_mul_i32 s{S_T1}, s{S_J}, 49152
        s_add_u32 s{S_T0}, s{S_T0}, s{S_T1}
        s_mul_i32 s{S_T1}, s{S_W}, 12288
        s_add_u32 s{S_T0}, s{S_T0}, s{S_T1}""")
        for k in range(12):
            if k and k % 4 == 0:
                A(f"s_add_u32 s{S_T0}, s{S_T0}, 4096")
            A(f"buffer_store_dwordx4 v[116:119], v109, {srd(sWS)}, s{S_T0} offen offset:{(k % 4) * 1024} sc1")
    count = f"""s_lshl_b32 s{S_T0}, 1, s{S_XCC}
    v_mov_b32 v{V_CHK}, s{S_T0}
    s_mov_b64 exec, 1
    s_waitcnt vmcnt(0)
    buffer_atomic_add v{V_CHK}, v{V_TMP}, {srd(sDBG)}, 0 offen
    s_mov_b64 exec, -1""".split("\n")
    rare = [["L_count:", f"s_cmp_eq_u32 s{S_FLAG}, {cfg.fetch_at}", "s_cbranch_scc1 L_fetch", f"s_mov_b32 s{S_FLAG}, {cfg.fetch_at}",
             "s_waitcnt vmcnt(0)", f"s_cmp_lg_u32 s{S_W}, 0", "s_cbranch_scc1 L_counted"] + count + ["s_branch L_counted",
             "L_fetch:", f"buffer_load_dword v{V_CHK}, v{V_TMP}, {srd(sDBG)}, 0 offen sc1", "s_branch L_counted"]]
    if cfg.clear_at:
        assert cfg.latefetch and cfg.tag and min(cfg.clear_at, cfg.clear_b or 99) > cfg.count_at + 1
        rare = [["L_count:", f"s_cmp_le_u32 s{S_FLAG}, {cfg.count_at + 1}", "s_cbranch_scc1 L_drain"] + xclear
                + [f"s_cmp_eq_u32 s{S_W}, 0", f"s_cselect_b32 s{S_FLAG}, {cfg.count_at}, {cfg.count_at + 1}", "s_branch L_counted",
                   "L_drain:", "s_waitcnt vmcnt(0)", f"s_cmp_lg_u32 s{S_W}, 0", "s_cbranch_scc1 L_counted"] + count + ["s_branch L_counted"]]
        A(f"s_bitcmp{1 - cfg.clsinv}_b32 s2, {cfg.cls}\ns_cselect_b32 s{S_FLAG}, {cfg.clear_b or cfg.clear_at}, {cfg.clear_at}")
    elif cfg.latefetch:
        assert not (cfg.tag or cfg.oclear or cfg.stag)
        rare = [["L_count:"] + count + ["s_branch L_counted"]]
        A(f"""s_lshr_b32 s{S_T0}, s2, {cfg.spreadsh}
        s_and_b32 s{S_T0}, s{S_T0}, {cfg.spreadc}
        s_sub_u32 s{S_T0}, {cfg.count_at}, s{S_T0}
        s_cmp_eq_u32 s{S_W}, {4 if cfg.nocount else 0}
        s_cselect_b32 s{S_FLAG}, s{S_T0}, 0""")
    else:
        A(f"s_cmp_eq_u32 s{S_W}, 0\ns_cselect_b32 s{S_FLAG}, {cfg.count_at}, {cfg.count_at + 1}")
    assert not (cfg.stag and (cfg.tag or cfg.oclear))
    if cfg.stag:
        A([f"s_cmp_ge_u32 s{S_BP}, 2", f"s_cselect_b32 s{S_T1}, s{S_FLAG}, 0", f"s_cmp_lg_u32 s{S_T1}, {cfg.count_at}", "s_cbranch_scc1 L_nocount"]
          + count + [f"s_mov_b32 s{S_FLAG}, {cfg.fetch_at}", "L_nocount:"])
    A("; ---- Q projection")
    A("s_barrier")
    A(gemm_reads(0, 0, "q"))
    gemm_loop(P, tr, cfg, "q", "L_qloop", 16)
    A(k_reads(0))
    def judge(v):
        return f"""v_lshrrev_b32 v{VT(0)}, 4, v{v}
        v_and_b32 v{VT(0)}, 0x0f0f0f0f, v{VT(0)}
        v_and_b32 v{VT(1)}, 0x0f0f0f0f, v{v}
        v_add_u32 v{VT(0)}, v{VT(0)}, v{VT(1)}
        v_sad_u8 v{VT(0)}, v{VT(0)}, 0, 0
        v_readfirstlane_b32 s{S_T1}, v{v}
        v_cmp_ne_u32 vcc, 8, v{VT(0)}
        s_lshl_b32 s{S_T0}, 8, s{S_XCC}
        s_cmp_eq_u32 s{S_T0}, s{S_T1}
        s_cselect_b32 s{S_FLAG}, {cfg.local}, 0
        s_cmp_eq_u64 vcc, 0
        s_cselect_b32 s{S_FLAG}, s{S_FLAG}, 2""".split("\n")

    dbgaddr = lambda v: [f"v_and_b32 v{v}, 3, v{V_TMP}", f"v_xor_b32 v{v}, s{S_GRP}, v{v}", f"v_lshlrev_b32 v{v}, 2, v{v}"]
    ahook = []
    if cfg.latefetch:
        A("s_waitcnt vmcnt(0)")
        ahook = [f"s_cmp_le_u32 s{S_CNT}, 2", "s_cbranch_scc1 L_ahook", "L_ahooked:"]
        rare.append(["L_ahook:", f"s_cmp_eq_u32 s{S_CNT}, 1", "s_cbranch_scc1 L_judge"] + dbgaddr(VT(0))
                    + [f"buffer_load_dword v{V_CHK}, v{VT(0)}, {srd(sDBG)}, 0 offen sc1", "s_branch L_ahooked", "L_judge:", "s_waitcnt vmcnt(0)"]
                    + judge(V_CHK) + ([f"s_mov_b32 s{S_FLAG}, 1"] if cfg.nocount else [])
                    + ([f"s_add_u32 s{S_T0}, s{S_W}, s{S_J}", f"s_bitcmp1_b32 s{S_T0}, 0", f"s_cselect_b32 s{S_FLAG}, 2, s{S_FLAG}"] if cfg.forcepend else []) + [f"v_mov_b32 v{V_CHK}, 1", "s_branch L_ahooked"])
    else:
        A(["s_waitcnt vmcnt(0)"] + judge(V_CHK))
    A([f"v_pk_mul_f32 {v2(r)}, {v2(r)}, s[{S_C}:{S_C + 1}]" for r in range(0, 96, 2)])

    def q_frag(s):
        return acc_to_frag(s) + [f"v_permlane16_swap_b32 v{QF(s, t) + h}, v{QF(s, t) + 2 + h}" for t in T3 for h in range(2)]

    qk0 = qk_mfma(True)
    qk0 = [qk0[kt * 12 + s * 3 + t] for s in range(4) for kt in range(2) for t in T3]
    zero = [f"v_mov_b64 {v2(r)}, 0" for r in range(0, 96, 2)]
    addr = f"""{lane_id(V_TMP)}
    s_mul_i32 s{S_T0}, s{S_GRP}, 393216
    s_mul_i32 s{S_T1}, s{S_J}, 49152
    s_add_u32 s{S_T0}, s{S_T0}, s{S_T1}
    s_add_u32 s{S_T0}, s{S_T0}, s{S_LWB}
    v_lshl_add_u32 v{V_OST}, v{V_TMP}, 4, s{S_T0}
    s_andn2_b32 s{S_T0}, s2, 0x38
    s_lshl_b32 s{S_T0}, s{S_T0}, 11
    s_lshl_b32 s{S_T1}, s{S_J}, 2
    s_add_u32 s{S_T0}, s{S_T0}, s{S_T1}
    s_lshl_b32 s{S_T1}, s{S_W}, 9
    s_add_u32 s{S_T0}, s{S_T0}, s{S_T1}
    s_add_u32 s{S_T0}, s{S_T0}, {WS_INBOX}
    v_lshl_add_u32 v{V_FLG}, v{V_TMP}, 14, s{S_T0}
    v_mov_b32 v{V_CHK}, 1""".split("\n")
    A(q_frag(0))
    A(weave(qk0, spread(addr, 0, 20) + [(6 * s - 6 + k // 3, x) for s in range(1, 4) for k, x in enumerate(q_frag(s))] + spread(zero[:12], 18, 23)))
    A(zero[12:20])
    if cfg.earlyb:
        A("s_barrier")
    A(row_max())
    A([f"v_pk_add_f32 {v2(SS(kt, t) + r)}, {v2(SS(kt, t) + r)}, {v2(VD(t) & ~1)} op_sel:[0,{VD(t) & 1}] op_sel_hi:[1,{VD(t) & 1}] neg_lo:[0,1] neg_hi:[0,1]"
       for kt in range(2) for t in T3 for r in (0, 2)])
    A([f"v_sub_f32 v{NM(t) + r}, 0, v{VD(t)}" for t in T3 for r in range(4)])
    A([f"v_mov_b64 {v2(VL(t))}, 0" for t in T3])
    A(exps(0, 0) + exps(0, 1) + exps(1, 0))
    if cfg.earlyb:
        A(k_reads(1))
        A(zero[20:])
    else:
        A("s_barrier")
        A(k_reads(1))
        A(zero[20:])

    def iteration(i):
        pre = pk_sum(0, 0) + pk_sum(0, 1) + pk_sum(1, 0) + p_cvt(0) + p_cvt(1, 0)
        vr = [x for T in range(8) for x in v_reads(T, i)]
        vgap = list(range(8, 22)) + [23, 24]
        add11 = [f"v_add_f32 v{VL(t) + r}, v{VL(t) + r}, v{SS(1, t) + 2 + r}" for t in T3 for r in range(2)]
        early = exps(0, 0) + exps(0, 1) + exps(1, 0)
        fill = ([(5, "s_waitcnt lgkmcnt(0)"), (22, "s_waitcnt lgkmcnt(4)"), (35, "s_waitcnt lgkmcnt(0)")]
                + ([(12, f"s_sub_u32 s{S_CNT}, s{S_CNT}, 1"), (40, f"s_cmp_lg_u32 s{S_CNT}, 0")] if i == 2 else [])
                + list(zip(vgap, vr)) + list(zip(range(6), exps(1, 1))) + list(zip((6, 6, 7, 7, 8, 9), add11)) + list(zip((10, 11, 11), p_cvt(1, 1)))
                + list(zip(range(16, 22), guard_max(0))) + list(zip((25, 25, 26, 26, 27, 27), guard_max(1)))
                + [(28, f"v_cmp_lt_f32 vcc, s{S_C}, v{VX}"), (29, f"s_cbranch_vccnz L_up_{i}")] + list(zip(range(30, 48), early)))
        mf = qk_mfma() + pv_mfma(cfg)
        if cfg.heat:
            fill += spread([f"v_fma_f32 v{VT(k % 3)}, v{96 + (5 * k) % 48}, v{96 + (7 * k + 3) % 48}, v{96 + (11 * k + 1) % 48}" for k in range(cfg.heat)], 0, 46)
        rare.append([f"L_up_{i}:", "s_waitcnt lgkmcnt(0)"] + mf[30:] + row_max() + [f"v_max_f32 v{VD(t)}, 0, v{VD(t)}" for t in T3] + shift_scores()
                    + [f"v_exp_f32 v{VA(t)}, -v{VD(t)}" for t in T3]
                    + [f"v_sub_f32 v{NM(t) + r}, v{NM(t) + r}, v{VD(t)}" for t in T3 for r in range(4)]
                    + [f"v_mul_f32 v{VL(t) + r}, v{VL(t) + r}, v{VA(t)}" for t in T3 for r in range(2)]
                    + rescale(VA) + early + [f"s_cmp_lg_u32 s{S_CNT}, 0", f"s_branch L_back_{i}"])
        return pre + ["s_waitcnt lgkmcnt(6)"] + weave(mf, fill) + [f"L_back_{i}:"]

    A("; ---- attention loop, three key tiles per trip")
    A(f"s_mov_b32 s{S_C}, {f32(cfg.thr)}\ns_mov_b32 s{S_CNT}, 5\ns_branch L_aenter\n.p2align 3")
    top = P.add(["L_aloop:"] + ahook + ["s_barrier"] + k_reads(1) + ["L_aenter:"])
    body = P.add(iteration(0) + ["s_barrier"] + k_reads(2) + iteration(1) + ["s_barrier"] + k_reads(0) + iteration(2)
                 + ["s_cbranch_scc1 L_aloop"])
    tr.extend(body + top + body)
    A(exps(1, 1) + pk_sum(0, 0) + pk_sum(0, 1) + pk_sum(1, 0) + pk_sum(1, 1))
    A([f"v_add_f32 v{VL(t)}, v{VL(t)}, v{VL(t) + 1}" for t in T3])
    A(xlane("v_add_f32", [VL(t) for t in T3], [VT(t) for t in T3]))
    A([f"v_rcp_f32 v{VL(t)}, v{VL(t)}" for t in T3])
    bc = "op_sel_hi:[1,0]"
    A([f"v_pk_mul_f32 {v2(SS(kt, t) + r)}, {v2(SS(kt, t) + r)}, {v2(VL(t))} {bc}" for kt in range(2) for t in T3 for r in (0, 2)])
    A(p_cvt(0) + p_cvt(1))
    oscale = [f"v_pk_mul_f32 {v2(ACC(T, t) + r)}, {v2(ACC(T, t) + r)}, {v2(VL(t))} {bc}" for T in range(8) for t in T3 for r in (0, 2)]
    A(oscale[:24])
    A("s_barrier")
    A([x for T in range(8) for x in v_reads(T, 15)])
    A(oscale[24:])

    def last_pv(pol, hold=False):
        def o_out(s):
            return (acc_to_frag(s) + [f"s_mov_b32 s{S_T0}, {(s >> 1) * 24576 + (s & 1) * 3072}"]
                    + [f"buffer_store_dwordx4 {v4(QF(s, t))}, v{V_OST}, {srd(sWS)}, s{S_T0} offen offset:{t * 1024} {pol}" for t in T3])
        fill = []
        for s in range(3):
            o = o_out(s)
            fill += [(6 * s + 12, x) for x in o[12:]] if s < 2 else []
            fill += spread(o[:12], 6 * s + 6, 6 * s + 11)
        if hold:
            return weave(pv_mfma(cfg), fill) + o_out(3)[:12], o_out(2)[12:] + o_out(3)[12:]
        return weave(pv_mfma(cfg), fill) + o_out(2)[12:] + o_out(3)

    near, held = last_pv("", True) if cfg.split else (last_pv(""), [])
    A([f"s_cmp_lg_u32 s{S_FLAG}, 1", "s_cbranch_scc1 L_far"] + near + ["L_near:"])
    rare.append(["L_far:"] + last_pv("sc1")
                + [f"v_and_b32 v{VA(0)}, 3, v{V_TMP}", f"v_xor_b32 v{VA(0)}, s{S_GRP}, v{VA(0)}", f"v_lshlrev_b32 v{VA(0)}, 2, v{VA(0)}",
                   f"s_mov_b32 s{S_SPIN}, 0", "L_rechk:", f"s_cmp_lg_u32 s{S_FLAG}, 2", "s_cbranch_scc1 L_rechk_done",
                   f"buffer_load_dword v{VA(1)}, v{VA(0)}, {srd(sDBG)}, 0 offen sc1", "s_waitcnt vmcnt(0)"] + judge(VA(1))
                + [f"s_add_u32 s{S_SPIN}, s{S_SPIN}, 1", f"s_cmp_lt_u32 s{S_SPIN}, {cfg.chk_max}", "s_cbranch_scc1 L_rechk",
                   "L_rechk_done:", f"s_mov_b32 s{S_FLAG}, 0"]
                + ([f"v_mov_b32 v{V_CHK}, 2", f"v_mov_b32 v{V_OST}, 0x40000000"] if cfg.split else []) + ["s_branch L_near"])
    stamp()
    if cfg.w1late:
        A("s_barrier")
    fst = f"buffer_store_dword v{V_CHK}, v{V_FLG}, {srd(sWS)}, 0 offen"
    flag = [f"s_cmp_eq_u32 s{S_FLAG}, 0", "s_mov_b64 exec, 0xff", "s_waitcnt vmcnt(0)", "s_cbranch_scc1 L_farflag", fst, "L_flagged:", "s_mov_b64 exec, -1"]
    rare.append(["L_farflag:", fst + " sc1", "s_branch L_flagged"])
    A(f"""
    s_lshl_b32 s{S_T0}, s{S_HG}, 6
    v_and_b32 v{AW(0)}, 0xfff, v{AV(0)}
    v_xor_b32 v{AW(0)}, s{S_T0}, v{AW(0)}
    """)
    for T in range(1, 8):
        A(f"v_xor_b32 v{AW(T)}, {T << 5}, v{AW(0)}")
    A(f"""
    s_add_u32 s{S_T0}, s{S_LWB}, {BRING}
    v_lshl_add_u32 v{AB(0)}, v{V_TMP}, 4, s{S_T0}
    v_mov_b32 v{AK(1)}, 1
    """)
    if cfg.flag_after < 0:
        A(flag)
        stamp()
    A("s_barrier")
    A(gemm_reads(0, 0, "o", with_b=False))
    wstep = [f"v_add_u32 v{AW(T)}, {WSLOT}, v{AW(T)}" for T in range(8)]
    for hs in range(0 if cfg.bdirect else 4):
        if hs == cfg.flag_after:
            A(flag)
            stamp()
        fill = []
        if hs < 3:
            fill += spread(gemm_reads((hs + 1) & 1, (hs + 1) & 1, "o", with_b=False), 0, 15)
        if hs in (0, 2):
            fill += spread(wstep, 16, 23)
        A(weave(gemm_mfma(cfg, hs & 1, bsrc=lambda t: QF(hs, t), zero=(hs == 0)), fill))
    SL = AV(4) if cfg.coal else V_TMP
    src_lane = ""
    if cfg.coal:
        src_lane = f"""v_and_b32 v{SL}, 12, v{V_TMP}
        v_lshrrev_b32 v{AV(0)}, 4, v{V_TMP}
        v_or_b32 v{SL}, v{SL}, v{AV(0)}
        v_and_b32 v{AV(0)}, 3, v{V_TMP}
        v_lshl_or_b32 v{SL}, v{AV(0)}, 4, v{SL}"""
    xaddr = (f"""
    s_mul_i32 s{S_T0}, s{S_W}, 9216
    s_add_u32 s{S_T0}, s{S_T0}, {WS_X}
    v_lshl_add_u32 v{AB(1)}, v{V_TMP}, 4, s{S_T0}
    v_and_b32 v{AK(3)}, 3, v{V_TMP}
    s_lshl_b32 s{S_T0}, s{S_W}, 9
    s_add_u32 s{S_T0}, s{S_T0}, {WS_INBOX}
    v_lshl_add_u32 v{AK(2)}, v{AK(3)}, 7, s{S_T0}
    v_xor_b32 v{AK(0)}, s2, v{AK(3)}
    v_lshl_add_u32 v{AK(0)}, v{AK(0)}, 11, v{AK(2)}
    v_max_u32 v{AK(3)}, 1, v{AK(3)}
    s_lshl_b32 s{S_T1}, s2, 11
    s_add_u32 s{S_T0}, s{S_T0}, s{S_T1}
    v_lshl_add_u32 v{AK(2)}, v{AK(3)}, 7, s{S_T0}
    {src_lane}
    v_and_b32 v{AV(0)}, 15, v{SL}
    v_bfe_u32 v{AV(1)}, v{SL}, 4, 1
    v_bfe_u32 v{AV(2)}, v{SL}, 5, 1
    {f"v_lshlrev_b32 v{SL}, 2, v{SL}" if cfg.coal else ""}
    s_mul_i32 s{S_T0}, s{S_BP}, 192
    s_mul_i32 s{S_T1}, s{S_W}, 48
    s_add_u32 s{S_T0}, s{S_T0}, s{S_T1}
    s_lshl_b32 s{S_T0}, s{S_T0}, 12
    s_lshl_b32 s{S_T1}, s{S_BLK}, 11
    s_add_u32 s{S_T0}, s{S_T0}, s{S_T1}
    s_lshl_b32 s{S_T1}, s{S_NU}, 8
    s_add_u32 s{S_T0}, s{S_T0}, s{S_T1}
    s_lshl_b32 s{S_T1}, s{S_HG}, 6
    s_add_u32 s{S_T0}, s{S_T0}, s{S_T1}
    v_lshl_add_u32 v{AV(0)}, v{AV(0)}, 12, s{S_T0}
    v_lshl_add_u32 v{AV(0)}, v{AV(1)}, 5, v{AV(0)}
    v_lshl_add_u32 v{AV(0)}, v{AV(2)}, 4, v{AV(0)}
    """)
    if cfg.wideflag:
        xaddr += f"""v_bfe_u32 v{AK(3)}, v{V_TMP}, 3, 2
        v_xor_b32 v{AK(0)}, s2, v{AK(3)}
        v_lshlrev_b32 v{AK(0)}, 11, v{AK(0)}
        v_lshl_add_u32 v{AK(0)}, v{AK(3)}, 7, v{AK(0)}
        v_and_b32 v{AK(3)}, 7, v{V_TMP}
        v_lshl_add_u32 v{AK(0)}, v{AK(3)}, 4, v{AK(0)}
        s_lshl_b32 s{S_T0}, s{S_W}, 9
        s_add_u32 s{S_T0}, s{S_T0}, {WS_INBOX}
        v_add_u32 v{AK(0)}, s{S_T0}, v{AK(0)}
        """ + "".join(f"v_mov_b32 v{AV(4) + k}, 1\n" for k in range(4))
    if not cfg.bdirect:
        A(xaddr + f"s_mov_b32 s{S_SLOT}, 2")
    if cfg.wb:
        A(f"""s_and_b32 s{S_T0}, s2, {cfg.wbmask}
        s_or_b32 s{S_T0}, s{S_T0}, s{S_W}
        s_cselect_b32 s{S_FLAG}, 0, {cfg.wb}""")
        rare.append(["L_wb:", "buffer_wbl2 sc1", "s_branch L_wbdone"])
    XF = QF
    after = []
    mf = gemm_mfma(cfg, 1)
    if cfg.bdirect:
        assert cfg.par in (0, 1) and not cfg.oord and cfg.flag_after in (-1, 1)
        ring = [FB(0, 0), FB(1, 0)] + [QF(s, 0) for s in range(4)]
        BR = lambda h: (lambda t: ring[(h - 4) % 6] + 4 * t)
        rel = o_rel(cfg)[2:]
        tbl = sum(r << (4 * n) for n, r in enumerate(rel))
        nxt = [f"s_add_u32 s{S_BO}, s{S_TBL}, s{S_J2}", f"s_and_b32 s{S_BO}, s{S_BO}, 15", f"s_mul_i32 s{S_BO}, s{S_BO}, 24576",
               f"s_lshr_b64 s[{S_TBL}:{S_TBL + 1}], s[{S_TBL}:{S_TBL + 1}], 4"]
        bload = lambda h: [f"buffer_load_dwordx4 {v4(BR(h)(t))}, v{AV(3) if h & 1 else AB(0)}, {srd(sWS)}, s{S_BO} offen offset:{t * 1024} {cfg.pol_ob}" for t in T3]
        bgaps = [int(x) for x in cfg.bgaps.split(".")]
        sal = [f"s_add_u32 s{S_SLOT}, s{S_SLOT}, 1", f"s_and_b32 s{S_SLOT}, s{S_SLOT}, 3", f"s_cselect_b32 s{S_DW}, {WSLOT}, s{S_T2}"]
        val = [f"v_add_u32 v{AW(T)}, s{S_DW}, v{AW(T)}" for T in range(8)]

        def half(h, extra=()):
            b = h & 1
            fill = []
            if 2 <= h <= 26:
                fill += (list(zip(range(4, 8), nxt)) if b else []) + list(zip(bgaps, bload(h + 5)))
            if b:
                fill += spread(gemm_reads(0, 0, "o", with_b=False), -1, 14) + [(22, "s_waitcnt lgkmcnt(0)")]
            else:
                fill += spread(gemm_reads(1, 1, "o", with_b=False), 0, 15) + list(zip(range(3), sal)) + list(zip((8, 9, 10, 11, 12, 13, 14, 16), val))
                fill += [(22, "s_waitcnt lgkmcnt(0)")] + ([(22, "s_barrier")] if 2 <= h <= 28 or (h == 0 and cfg.w1late) else [])
            if 3 <= h <= 30:
                fill += [(23, f"s_waitcnt vmcnt({3 * min(4, 30 - h)})")]
            return weave(gemm_mfma(cfg, b, bsrc=BR(h), zero=(h == 0)), fill + list(extra))

        A(f"""s_mul_i32 s{S_T0}, s{S_GRP}, 393216
        s_add_u32 s{S_T0}, s{S_T0}, s{S_LWB}
        v_lshl_add_u32 v{AB(0)}, v{V_TMP}, 4, s{S_T0}
        v_add_u32 v{AV(3)}, 3072, v{AB(0)}
        s_mov_b32 s{S_TBL}, {tbl & 0xffffffff}
        s_mov_b32 s{S_TBL + 1}, {tbl >> 32}
        s_lshl_b32 s{S_J2}, s{S_J}, 1
        s_mov_b32 s{S_SLOT}, 0""")
        xa = [x.strip() for x in xaddr.split("\n") if x.strip()]
        if cfg.split:
            if cfg.flag_after < 0:
                A(half(0, list(zip((3, 4, 8, 12, 15, 16, 19, 22), held))))
                A(half(1, [(0, f"v_mov_b32 v{V_CHK}, 2")] + spread(xa, 1, 21)))
            else:
                h0 = half(0, list(zip((16, 17, 20, 23), held[:4])))
                cut = [k for k, x in enumerate(h0) if x.startswith("v_mfma")][cfg.fgap]
                A(h0[:cut] + flag + h0[cut:])
                stamp()
                A(half(1, list(zip((1, 2, 5, 8), held[4:])) + [(9, f"v_mov_b32 v{V_CHK}, 2")] + spread(xa, 10, 21)))
            A([f"s_cmp_eq_u32 s{S_FLAG}, 0", "s_cbranch_scc1 L_flagged2", "s_mov_b64 exec, 0xff", "s_waitcnt vmcnt(0)", fst, "s_mov_b64 exec, -1", "L_flagged2:"])
        else:
            A(half(0))
            if cfg.flag_after == 1:
                A(flag)
                stamp()
            A(half(1, spread(xa, 0, 21)))
        A(["s_barrier"] + nxt + bload(4) + bload(5) + nxt + bload(6))
        A(half(2))
        A(f"s_mov_b32 s{S_CNT}, 4\n.p2align 3")
        body = P.add(["L_oloop:"] + half(3) + half(4) + half(5) + half(6) + half(7)
                     + half(8, [(5, f"s_sub_u32 s{S_CNT}, s{S_CNT}, 1"), (6, f"s_cmp_lg_u32 s{S_CNT}, 0")]) + ["s_cbranch_scc1 L_oloop"])
        tr.extend(body + body)
        XF = lambda i, t: QF(0, t) if i == 0 else 144 + ((i - 1) * 3 + t) * 4
        mf = gemm_mfma(cfg, 1, bsrc=BR(31))
        if not cfg.defer:
            for h in range(27, 31):
                A(half(h))
        elif cfg.defer == 2:
            rd = lambda h, T, reg: [f"ds_read_b64_tr_b16 {v2(reg + 2 * u)}, v{AW(T)} offset:{(h - 28) * 8192 + u * 4096}" for u in range(2)]
            seq = [(27, 1), (27, 2), (27, 3), (28, 1), (28, 2), (29, 1), (30, 1), (31, 1), (29, 2), (30, 2), (31, 2),
                   (28, 3), (29, 3), (30, 3), (31, 3), (27, 0), (28, 0), (29, 0), (30, 0), (31, 0)]
            XF = lambda i, t: {0: QF(0, t), 1: QF(2, t), 2: FA(1, 2 + t), 3: FA(1, 5 + t)}[i]
            main, fill, k = [], [(17, "s_barrier")], 0
            prev = [-1] * 4
            for n, (h, g) in enumerate(seq):
                if h == 27:
                    a = FA(1, 2 * g)
                else:
                    a = FA(0, 2 * (k % 4))
                    at = max(prev[k % 4] + 1, n - 3, 3 if h >= 30 else 0)
                    fill += list(zip(range(6 * at, 6 * at + 4), [x for u in range(2) for x in rd(h, 2 * g + u, a + 4 * u)]))
                    prev[k % 4] = n
                    k += 1
                main += [f"{MFMA} {v4(ACC(2 * g + T, t))}, {v4(a + 4 * T)}, {v4(BR(h)(t))}, {v4(ACC(2 * g + T, t))}" for T, t in order(2, cfg.snake)]
                if g == 1 and h > 27:
                    fill.append((6 * n - 1, f"s_waitcnt vmcnt({3 * (31 - h)})"))
            for i in range(1, 4):
                n = seq.index((31, i)) + 1
                so = [f"s_xor_b32 s{S_T0}, s2, {i}", f"s_mul_i32 s{S_T0}, s{S_T0}, 36864", f"s_add_u32 s{S_T0}, s{S_T0}, {(i - 1) * 3072}"]
                st = [f"buffer_store_dwordx4 {v4(XF(i, t))}, v{AB(1)}, {srd(sWS)}, s{S_T0} offen offset:{t * 1024} sc1" for t in T3]
                cv = acc_to_frag(i, XF)
                cv = [cv[6 * u + 2 * t + hh] for t in (2, 1, 0) for u in range(2) for hh in range(2)]
                fill = list(zip(range(6 * n, 6 * n + 3), so)) + list(zip((6 * n + 4, 6 * n + 6, 6 * n + 8), reversed(st))) + fill
                fill += spread(cv, 6 * n + 2, 6 * n + 7)
            xflag = lambda i, n: [f"s_waitcnt vmcnt({n})", f"s_mov_b64 exec, {1 << i}", f"buffer_store_dword v{AK(1)}, v{AK(0)}, {srd(sWS)}, 0 offen sc1", "s_mov_b64 exec, -1"]
            if cfg.xprog:
                assert cfg.xprog > 98
                fill += [(cfg.xprog, x) for x in xflag(1, 6)]
            A(weave(main, fill))
            stamp()
        else:
            rd = lambda h, T, reg: [f"ds_read_b64_tr_b16 {v2(reg + 2 * u)}, v{AW(T)} offset:{(h - 28) * 8192 + u * 4096}" for u in range(2)]
            own = lambda h, T: {27: FA(1, T), 28: FA(0, T), 29: QF(2, 0) + 4 * T, 30: FA(1, T), 31: FA(0, T)}[h]
            ownrd = lambda h: [x for T in range(2) for x in rd(h, T, own(h, T))]
            for h in range(27, 31):
                b = h & 1
                reads = [x for T in range(2, 8) for x in rd(h + 1, T, FA(1 - b, T))] + ownrd(28 + (h - 27) // 2)[2 * (1 - b):2 * (1 - b) + 2]
                fill = spread(reads, -1 if b else 0, 12 if b else 13)
                fill += [(16, "s_waitcnt lgkmcnt(2)")] + ([(16, "s_barrier")] if h == 28 else []) + [(17, f"s_waitcnt vmcnt({3 * (30 - h)})")]
                A(weave(gemm_mfma(cfg, b, bsrc=BR(h))[6:], fill))
            XF = lambda i, t: {0: QF(0, t), 1: FA(0, 2 + t), 2: FA(0, 5 + t), 3: FA(1, 2 + t)}[i]
            late = [f"{MFMA} {v4(ACC(T, t))}, {v4(own(h, T))}, {v4(BR(h)(t))}, {v4(ACC(T, t))}" for h in range(27, 32) for T, t in order(2, cfg.snake)]
            mf = late[:6] + mf[6:]
            after = weave(late[6:], list(zip(range(0, 4), ownrd(30))) + list(zip(range(6, 10), ownrd(31))))
    else:
        A("s_barrier")
        A(gemm_reads(0, 0, "o"))
        gemm_loop(P, tr, cfg, "o", "L_oloop", 14)
    fill = []
    for i in range(1, 4):
        so = [f"s_xor_b32 s{S_T0}, s2, {i}", f"s_mul_i32 s{S_T0}, s{S_T0}, 36864", f"s_add_u32 s{S_T0}, s{S_T0}, {(i - 1) * 3072}"]
        st = [f"buffer_store_dwordx4 {v4(XF(i, t))}, v{AB(1)}, {srd(sWS)}, s{S_T0} offen offset:{t * 1024} sc1" for t in T3]
        fill += [(6 * i + 6, x) for x in st] + list(zip(range(6 * i + 1, 6 * i + 4), so)) + spread(acc_to_frag(i, XF), 6 * i, 6 * i + 5)
    if cfg.defer != 2:
        A("; ---- partner tiles leave first, the own tiles finish meanwhile")
        last = [x for g, x in fill if g == 24]
        A(weave(mf[6:] + mf[:6], [(g, x) for g, x in fill if g < 24]) + last)
        stamp()
        A(after)
    xload = lambda k, so: f"buffer_load_dwordx4 {v4(24 + 4 * k)}, v{AB(1)}, {srd(sWS)}, s{so} offen offset:{(k % 3) * 1024} sc1"

    def xadd(i):
        for k in range(3 * i, 3 * i + 3):
            for d in range(4):
                src, dst = 24 + 4 * k + d, ACC(d >> 1, k % 3) + 2 * (d & 1)
                A(f"""v_lshlrev_b32 v64, 16, v{src}
                v_and_b32 v65, s{S_C}, v{src}
                v_pk_add_f32 {v2(dst)}, {v2(dst)}, v[64:65]""")

    so = (S_T0, S_T1, S_T2)
    xbase = f"s_mul_i32 s{S_T0}, s2, 36864\ns_add_u32 s{S_T1}, s{S_T0}, 3072\ns_add_u32 s{S_T2}, s{S_T0}, 6144\ns_mov_b32 s{S_C}, 0xffff0000"
    if cfg.xprog:
        A(xflag(2, 4))
        A(xbase + f"\ns_mov_b32 s{S_MASK}, 0\ns_mov_b32 s{S_SPIN}, 0")
        A(xflag(3, 2))
        stamp()
        for i in range(3):
            loop = P.add(f"""L_x{i}:
            s_bitcmp1_b32 s{S_MASK}, {i + 1}
            s_cbranch_scc1 L_x{i}_done
            buffer_load_dword v{V_CHK}, v{AK(2)}, {srd(sWS)}, 0 offen sc1
            s_add_u32 s{S_SPIN}, s{S_SPIN}, 1
            s_waitcnt vmcnt(0)
            v_cmp_eq_u32 vcc, 1, v{V_CHK}
            s_mov_b32 s{S_MASK}, vcc_lo
            s_cmp_lt_u32 s{S_SPIN}, {SPIN_MAX}
            s_cbranch_scc1 L_x{i}""")
            tr.extend(loop[:3])
            side.append(loop + loop)
            A(f"L_x{i}_done:")
            if i == 2:
                stamp()
            A([xload(k, so[i]) for k in range(3 * i, 3 * i + 3)])
        for i in range(3):
            xadd(i)
    elif not cfg.tag:
        if cfg.wideflag:
            A(["s_mov_b32 exec_lo, 0xffffff00", "s_mov_b32 exec_hi, 0", "s_waitcnt vmcnt(0)",
               f"buffer_store_dwordx4 {v4(AV(4))}, v{AK(0)}, {srd(sWS)}, 0 offen sc1", "s_mov_b64 exec, -1"])
        else:
            A(["s_waitcnt vmcnt(0)", "s_mov_b64 exec, 14", f"buffer_store_dword v{AK(1)}, v{AK(0)}, {srd(sWS)}, 0 offen sc1", "s_mov_b64 exec, -1"])
        stamp()
        if cfg.apoll:
            A("s_mov_b64 exec, 14")
        poll_loop(P, tr, "poll2", V_CHK, AK(2), cfg.apoll)
        if cfg.apoll:
            A("s_mov_b64 exec, -1")
        stamp()
        A(xbase)
        A([xload(k, so[k // 3]) for k in range(9)])
        for i in range(3):
            xadd(i)
    else:
        stamp()
        A(xbase)
        A(f"s_mov_b32 s{S_SPIN}, 0")
        if cfg.tag == 2:
            probe = P.add(["L_probe:"] + [xload(3 * i + 2, so[i]) for i in range(3)] + f"""s_add_u32 s{S_SPIN}, s{S_SPIN}, 1
            s_cmp_ge_u32 s{S_SPIN}, {SPIN_MAX}
            s_cbranch_scc1 L_probed
            s_waitcnt vmcnt(0)
            v_max3_u32 v64, v35, v47, v59
            v_cmp_eq_u32 vcc, -1, v64
            s_cbranch_vccnz L_probe""".split("\n"))
            tr.extend(probe + probe)
            A("L_probed:")
        first = [xload(k, so[k // 3]) for k in range(9) if cfg.tag == 1 or k % 3 != 2]
        A(first)
        for i in range(3):
            b = 24 + 12 * i
            chk2 = ([f"v_max3_u32 v64, v{b}, v{b + 1}, v{b + 2}"] + [f"v_max3_u32 v64, v{b + k}, v{b + k + 1}, v64" for k in range(3, 11, 2)]
                    + [f"v_max_u32 v64, v{b + 11}, v64", "v_cmp_eq_u32 vcc, -1, v64"])
            A([f"L_x{i}:"] + chk2 + [f"s_cbranch_vccnz L_xr{i}", f"L_xok{i}:"])
            rare.append([f"L_xr{i}:"] + [xload(k, so[i]) for k in range(3 * i, 3 * i + 3)]
                        + [f"s_add_u32 s{S_SPIN}, s{S_SPIN}, 1", f"s_cmp_lt_u32 s{S_SPIN}, {SPIN_MAX}", "s_waitcnt vmcnt(0)",
                           f"s_cbranch_scc1 L_x{i}", f"s_branch L_xok{i}"])
            if i == 2:
                stamp()
            xadd(i)
    A(acc_to_frag(0))
    A([f"v_permlane16_swap_b32 v{QF(0, t) + h}, v{QF(0, t) + 2 + h}" for t in T3 for h in range(2)])
    if cfg.coal:
        A([f"ds_bpermute_b32 v{QF(0, t) + r}, v{SL}, v{QF(0, t) + r}" for t in T3 for r in range(4)])
    if cfg.linout:
        A(f"s_lshl_b32 s{S_T0}, s2, 2\ns_add_u32 s{S_T0}, s{S_T0}, s{S_W}\ns_mul_i32 s{S_T0}, s{S_T0}, 3072\nv_lshl_add_u32 v{AV(0)}, v{V_TMP}, 4, s{S_T0}")
    for t in T3:
        A(f"s_mov_b32 s{S_T0}, {t * (1024 if cfg.linout else 65536)}\nbuffer_store_dwordx4 {v4(QF(0, t))}, v{AV(0)}, {srd(sOUT)}, s{S_T0} offen {cfg.pol_out}")
    if cfg.stamps:
        A("s_waitcnt vmcnt(0)")
        stamp()
        A(f"v_mov_b32 v1, 0")
        for k in range(nst[0]):
            A(f"v_writelane_b32 v1, s{S_ST + 2 * k}, {k}")
        A(f"""s_lshl_b32 s{S_T0}, s2, 3
        s_add_u32 s{S_T0}, s{S_T0}, s{S_WAVE}
        s_lshl_b32 s{S_T0}, s{S_T0}, 8
        s_add_u32 s{S_T0}, s{S_T0}, {WS_STAMP}
        v_lshl_add_u32 v2, v{V_TMP}, 2, s{S_T0}
        buffer_store_dword v1, v2, {srd(sWS)}, 0 offen""")
    A("L_exit:\ns_endpgm")
    blocks = {}
    for blk in rare:
        blocks[blk[0][:-1]] = P.add(blk)
    tr2 = []
    skip = None
    for ins in tr:
        if skip:
            if ins.text == skip + ":":
                skip = None
            else:
                continue
        tr2.append(ins)
        if ins.op.startswith("s_cbranch") and ins.text.split()[1] in blocks:
            blk = blocks[ins.text.split()[1]]
            tr2 += blk
            skip = blk[-1].text.split()[1]
    assert skip is None
    return [tr, tr2], side


def generate(cfg):
    P = Prog()
    pre = P.add(("s_memrealtime s[96:97]\n" if cfg.stamps else "") + "s_cmp_ge_u32 s2, 256\ns_cbranch_scc1 L_exit")
    if cfg.remap:
        pre += P.add("""s_bfe_u32 s4, s2, 0x20003
        s_lshr_b32 s5, s2, 5
        s_and_b32 s2, s2, 7
        s_lshl_b32 s4, s4, 6
        s_lshl_b32 s5, s5, 3
        s_or_b32 s2, s2, s4
        s_or_b32 s2, s2, s5""")
    pre += prologue(P, cfg)
    tl = loader(P, cfg)
    tc, side = compute(P, cfg)
    body = P.finish([pre + t for t in tc + tl] + side)
    if cfg.align:
        body = align8(body)
    body = body.replace(".p2align 3", f".p2align {cfg.lalign}" + "\n    s_nop 0" * cfg.lpad)
    return (HEADER + DOC + "; @launch grid=(256,1,1) block=(512,1,1) lds=163840\n"
            + '.amdgcn_target "amdgcn-amd-amdhsa--gfx950"\n.text\n'
            + f".globl {NAME}_kernel\n.p2align 8\n.type {NAME}_kernel,@function\n{NAME}_kernel:\n" + body
            + f"""L_text_end:
.section .rodata,"a"
.p2align 6
.amdhsa_kernel {NAME}_kernel
  .amdhsa_next_free_vgpr 256
  .amdhsa_next_free_sgpr 102
  .amdhsa_accum_offset 256
  .amdhsa_group_segment_fixed_size 0
  .amdhsa_kernarg_size 104
  .amdhsa_user_sgpr_count 2
  .amdhsa_user_sgpr_kernarg_segment_ptr 1
  .amdhsa_system_sgpr_workgroup_id_x 1
  .amdhsa_float_denorm_mode_32 3
.end_amdhsa_kernel
""")


def parse(args):
    kw = {}
    for a in args:
        k, v = a.split("=")
        kw[k] = float(v) if k == "thr" else (int(v) if v.lstrip("-").isdigit() and not k.startswith(("pre", "ptouch", "spre", "bgaps", "order", "kbits", "qskip")) else v.replace("+", " "))
    return Cfg(**kw)


if __name__ == "__main__":
    open(sys.argv[1], "w").write(generate(parse(sys.argv[2:])))
```
